```python
import torch

def _softmax(x, axis=-1):
    return torch.softmax(x, dim=axis)
def _gelu(x):
    return torch.nn.functional.gelu(x, approximate="tanh")
def _silu(x):
    return torch.nn.functional.silu(x)
def _sigmoid(x):
    return torch.sigmoid(x)
def _layernorm(x, axis=-1, eps=1e-5):
    m = x.mean(dim=axis, keepdim=True)
    v = x.var(dim=axis, keepdim=True, unbiased=False)
    return (x - m) / torch.sqrt(v + eps)
def _scatter_add(tgt, idx, src, axis=0):
    return tgt.clone().index_add_(axis, idx, src)
def _segment_sum(src, seg, n):
    out = torch.zeros((n,) + src.shape[1:], dtype=src.dtype)
    return out.index_add_(0, seg, src)
def _pad(x, pw):
    flat = tuple(v for pair in reversed(pw) for v in pair)
    return torch.nn.functional.pad(x, flat)

kernel_name = 'concat_heads__compressed_kv_cla__gqa_block_cached__decode'

def setup_inputs():

    _w = (lambda a: (lambda t: t.to(torch.bfloat16) if t.is_floating_point() else t)(torch.as_tensor(a)))
    def _A_setup():
        B, H, Sq, Sk, D, M = 2, 32, 1, 8192, 128, 512
        Dc = 4 * D
        return {
            "x": _w((lambda *s: torch.randn(*s, dtype=torch.bfloat16) * 3.2)(B, Sq, M)),
            "c_kv": _w((lambda *s: torch.randn(*s, dtype=torch.bfloat16) * 0.1)(B, Sk, Dc)),
            "w_q": _w((lambda *s: torch.randn(*s, dtype=torch.bfloat16) * 6.4)(M, H, D) * (M ** -0.5)),
            "w_uk": _w((lambda *s: torch.randn(*s, dtype=torch.bfloat16) * 6.4)(Dc, H, D) * (Dc ** -0.5)),
            "w_uv": _w((lambda *s: torch.randn(*s, dtype=torch.bfloat16) * 0.1)(Dc, H, D) * (Dc ** -0.5)),
            "w_o": _w((lambda *s: torch.randn(*s, dtype=torch.bfloat16) * 0.1)(H, D, M) * ((H * D) ** -0.5)),
        }
    _A_in = _A_setup()

    def _B_setup():
        B, Sq, D = 2, 1, 512
        Hq, Hkv, Sk, Dh = 32, 8, 8192, 128
        assert Hq % Hkv == 0, (Hq, Hkv)
        return {
            "x": _w((lambda *s: torch.randn(*s, dtype=torch.bfloat16) * 1.6)(B, Sq, D)),
            "k_cache": _w((lambda *s: torch.randn(*s, dtype=torch.bfloat16) * 1.6)(B, Hkv, Sk, Dh)),
            "v_cache": _w((lambda *s: torch.randn(*s, dtype=torch.bfloat16) * 0.05)(B, Hkv, Sk, Dh)),
            "wq": _w((lambda *s: torch.randn(*s, dtype=torch.bfloat16) * 1.6)(D, Hq * Dh) * (D ** -0.5)),
            "wo": _w((lambda *s: torch.randn(*s, dtype=torch.bfloat16) * 0.05)(Hq * Dh, D) * ((Hq * Dh) ** -0.5)),
        }
    _B_in = _B_setup()

    return {
        "A_x": _A_in["x"],
        "A_c_kv": _A_in["c_kv"],
        "A_w_q": _A_in["w_q"],
        "A_w_uk": _A_in["w_uk"],
        "A_w_uv": _A_in["w_uv"],
        "A_w_o": _A_in["w_o"],
        "B_x": _B_in["x"],
        "B_k_cache": _B_in["k_cache"],
        "B_v_cache": _B_in["v_cache"],
        "B_wq": _B_in["wq"],
        "B_wo": _B_in["wo"],
    }

def reference(A_x, A_c_kv, A_w_q, A_w_uk, A_w_uv, A_w_o, B_x, B_k_cache, B_v_cache, B_wq, B_wo):
    def _A_ref(x, c_kv, w_q, w_uk, w_uv, w_o):
        B, Sq, M = x.shape[0], x.shape[1], x.shape[2]
        Sk = c_kv.shape[1]
        H, D = w_q.shape[1], w_q.shape[2]
        q = torch.einsum("bqm,mhd->bhqd", x, w_q)
        k = torch.einsum("bkc,chd->bhkd", c_kv, w_uk)
        v = torch.einsum("bkc,chd->bhkd", c_kv, w_uv)
        scores = torch.einsum("bhqd,bhkd->bhqk", q, k) * (D ** -0.5)
        off = Sk - Sq
        qi = torch.arange(Sq)[:, None]
        kj = torch.arange(Sk)[None, :]
        cmask = kj <= (qi + off)
        scores = torch.where(cmask[None, None], scores, -1e9)
        p = _softmax(scores, axis=-1)
        ctx = torch.einsum("bhqk,bhkd->bhqd", p, v)
        return torch.einsum("bhqd,hdm->bqm", ctx, w_o)

    def _B_ref(x, k_cache, v_cache, wq, wo):
        B, Sq, D = x.shape
        Hq, Dh = 32, 128
        Hkv = k_cache.shape[1]
        rep = Hq // Hkv
        q = (lambda x, *d: x.permute(*d))((x @ wq).reshape(B, Sq, Hq, Dh), 0, 2, 1, 3)
        k = (lambda x, n, axis: torch.repeat_interleave(x, n, dim=axis))(k_cache, rep, axis=1)
        v = (lambda x, n, axis: torch.repeat_interleave(x, n, dim=axis))(v_cache, rep, axis=1)
        scores = torch.einsum("bhqd,bhkd->bhqk", q, k) * (Dh ** -0.5)
        p = _softmax(scores, axis=-1)
        o = torch.einsum("bhqk,bhkd->bhqd", p, v)
        return (lambda x, *d: x.permute(*d))(o, 0, 2, 1, 3).reshape(B, Sq, Hq * Dh) @ wo

    a = _A_ref(A_x, A_c_kv, A_w_q, A_w_uk, A_w_uv, A_w_o)
    b = _B_ref(B_x, B_k_cache, B_v_cache, B_wq, B_wo)
    return torch.concatenate([a, b], axis=-1)
```

```python
import re

TRANS = ("v_exp_f32", "v_log_f32", "v_rcp_f32", "v_rsq_f32", "v_sqrt_f32", "v_sin_f32", "v_cos_f32")

def _regs(tok):
    tok = tok.strip().lstrip("-")
    m = re.fullmatch(r"abs\((.*)\)", tok)
    if m: tok = m.group(1)
    m = re.fullmatch(r"([vsa])(\d+)", tok)
    if m: return [(m.group(1), int(m.group(2)))]
    m = re.fullmatch(r"([vsa])\[(\d+):(\d+)\]", tok)
    if m: return [(m.group(1), i) for i in range(int(m.group(2)), int(m.group(3)) + 1)]
    if tok == "vcc": return [("s", 106), ("s", 107)]
    if tok == "exec": return [("s", 126), ("s", 127)]
    if tok == "m0": return [("s", 124)]
    return []

class Ins:
    def __init__(self, text):
        self.text = text
        t = text.split(";")[0].strip()
        self.label = t[:-1] if t.endswith(":") else None
        self.op = t.split()[0] if t and not self.label else ""
        rest = t[len(self.op):].strip() if self.op else ""
        toks = [x.strip() for x in re.split(r",(?![^\[]*\])", rest)] if rest else []
        if toks:
            last = toks[-1].split()
            self.mods = last[1:]
            toks[-1] = last[0] if last else ""
        else:
            self.mods = []
        self.toks = toks
        op = self.op
        self.w, self.r = [], []
        self.kind = "other"
        self.states = 1
        R = [_regs(x) for x in toks]
        flat = lambda l: [x for y in l for x in y]
        if op == "s_nop":
            self.states = int(toks[0], 0) + 1
        elif op.startswith("v_mfma"):
            self.kind = "mfma"; self.passes = 8 if "32x32" in op else 4
            self.w = R[0]; self.ra = R[1] + R[2]; self.rc = R[3]; self.r = self.ra + self.rc
        elif op.startswith("v_permlane"):
            self.kind = "perml"; self.w = R[0] + R[1]; self.r = R[0] + R[1]
        elif op.startswith("v_readfirstlane") or op.startswith("v_readlane"):
            self.kind = "rdlane"; self.w = R[0]; self.r = flat(R[1:])
        elif op.startswith("v_cmp"):
            self.kind = "valu"; self.w = R[0]; self.r = flat(R[1:])
        elif op.startswith("v_"):
            self.kind = "dpp" if ("_dpp" in op) else ("trans" if op.replace("_e32", "").replace("_e64", "") in TRANS else "valu")
            self.w = R[0]; self.r = flat(R[1:])
            if op.startswith(("v_fmac", "v_dot2c")) or self.kind == "dpp": self.r = self.r + R[0]
            if op.startswith("v_cndmask") and len(toks) == 3: self.r += _regs("vcc")
        elif op.startswith("buffer_") or op.startswith("global_"):
            if "lds" in self.mods:
                self.kind = "vmem"; self.r = flat(R) + _regs("m0"); self.lds = True
            elif "_load" in op:
                self.kind = "vmem"; self.w = R[0]; self.r = flat(R[1:])
            else:
                self.kind = "vmem"; self.r = flat(R)
                if op.endswith(("x3", "x4")):
                    self.wide = R[0] if op.startswith("buffer_") else R[1]
        elif op.startswith("ds_"):
            self.kind = "ds"
            if "read" in op or "permute" in op or "swizzle" in op:
                self.w = R[0]; self.r = flat(R[1:])
            else:
                self.r = flat(R)
        elif op.startswith("s_"):
            self.kind = "salu"
            if op.startswith(("s_cmp", "s_cbranch", "s_branch", "s_waitcnt", "s_barrier", "s_endpgm", "s_sleep", "s_setprio")):
                self.r = flat(R)
            else:
                self.w = R[0] if R else []; self.r = flat(R[1:])
                if "saveexec" in op: self.w = self.w + _regs("exec")
        self.isvalu = self.kind in ("valu", "dpp", "trans", "perml", "rdlane")

def need(p, c):
    n = 0
    pw = set(p.w); cr = set(c.r); cw = set(c.w)
    pv = {x for x in pw if x[0] in "va"}; ps = {x for x in pw if x[0] == "s"}
    if p.isvalu:
        if c.kind == "mfma" and pv & cr: n = max(n, 2)
        if c.kind in ("dpp", "perml") and pv & cr: n = max(n, 2)
        if c.kind == "rdlane" and pv & cr: n = max(n, 1)
        if p.kind == "trans" and c.isvalu and c.kind != "trans" and pv & (cr | cw): n = max(n, 1)
        if p.kind == "trans" and c.kind == "trans" and pv & cr: n = max(n, 1)
        if ps & cr:
            if c.kind == "vmem": n = max(n, 5)
            elif c.isvalu or c.kind == "mfma": n = max(n, 4 if c.kind == "rdlane" else 2)
            elif c.kind == "salu": n = max(n, 1)
    if p.kind == "mfma":
        big = 12 if p.passes == 8 else 8
        if c.kind == "mfma":
            if pw & set(c.ra): n = max(n, big)
            if pw & set(c.rc) and not (p.w == c.rc and p.passes == c.passes): n = max(n, 10 if p.passes == 8 else 6)
            if pw & cw and not (p.w == c.w and p.passes == c.passes): n = max(n, 10 if p.passes == 8 else 6)
        elif (c.isvalu or c.kind in ("vmem", "ds")) and pw & (cr | cw): n = max(n, big)
        if c.isvalu and set(p.rc) & cw: n = max(n, 7 if p.passes == 8 else 3)
    if getattr(p, "wide", None) and (c.isvalu or c.kind in ("ds", "vmem", "mfma")) and set(p.wide) & cw: n = max(n, 2)
    if p.kind == "salu" and ("s", 124) in pw and getattr(c, "lds", False): n = max(n, 1)
    return n

def fix_hazards(lines):
    ins = [Ins(l) for l in lines]
    W = 14
    def merge(a, b):
        d = {}
        for (p, age) in a + b:
            k = id(p); d[k] = (p, min(age, d[k][1])) if k in d else (p, age)
        return list(d.values())
    incoming = {}
    pads = {}
    for _ in range(3):
        hist = []
        dead = False
        for i, c in enumerate(ins):
            if c.label:
                hist = merge([] if dead else hist, incoming.get(c.label, [])); dead = False
                continue
            if not c.op or c.op.startswith("."): continue
            add = pads.get(i, 0)
            req = max([need(p, c) - age - add for (p, age) in hist] + [0])
            if req > 0:
                pads[i] = add + req; add += req
            hist = [(p, age + add + c.states) for (p, age) in hist if age + add + c.states < W]
            hist.append((c, 0))
            if c.op.startswith(("s_cbranch", "s_branch")):
                tgt = c.toks[0]
                incoming[tgt] = merge(incoming.get(tgt, []), hist)
                if c.op == "s_branch": dead = True
            if c.op == "s_endpgm": dead = True
    out = []
    npad = 0
    for i, c in enumerate(ins):
        if pads.get(i, 0):
            out.append("s_nop %d" % (pads[i] - 1)); npad += 1
        out.append(c.text)
    return out, npad

class Emit:
    def __init__(self):
        self.L = []
        self.vm = 0
        self.uid = 0
    def __call__(self, s):
        for x in s.strip().split("\n"):
            x = x.strip()
            if x: self.L.append(x)
    def mem(self, s):
        self(s); self.vm += 1; return self.vm
    def wait(self, tag):
        n = self.vm - tag
        assert 0 <= n <= 63, n
        self(f"s_waitcnt vmcnt({n})")
    def lab(self, base):
        self.uid += 1; return f"{base}_{self.uid}"
```

```python
import sys, math
from asmlib import Emit, fix_hazards

NAME = "concat_heads__compressed_kv_cla__gqa_block_cached__decode"
HEADER = open("cdna_kernels/%s.s.ref" % NAME).read().split("; Override launch")[0]

QBP = 0x000000
QAP = 0x020000
AST = 0x040000
MB  = 0x100000
MB_ST = 6144
MB_2  = 8192
AP  = 0x200000
WS_USED = 0x400000
STAMPS = 0x800000
C_QB = 0
C_CLR = 32
C_QA = 128
C_AP = 160

SCALE = math.log2(math.e) / math.sqrt(128.0)
import struct
def f2u(x): return struct.unpack("<I", struct.pack("<f", x))[0]

SRD_WS, SRD_DBG, SRD_A, SRD_B, SRD_C, SRD_D, SRD_E = 44, 48, 52, 56, 60, 64, 68
P_AX, P_CKV, P_AWQ, P_WUK, P_WUV, P_AWO, P_BX, P_BK, P_BV, P_BWQ, P_BWO, P_OUT, P_DBG, P_WS = range(16, 44, 2)
S_SC = 15
S_SPIN = 14
MASK0 = 72
ST0 = 84
SPIN = 200000

def srd(n): return f"s[{n}:{n+3}]"
def vr(a, n): return f"v[{a}:{a+n-1}]" if n > 1 else f"v{a}"

class Gen:
    def __init__(self, stamps=False, win=12):
        self.e = Emit(); self.stamps = stamps; self.win = win

    def mk_srd(self, d, p, size):
        self.e(f"s_mov_b32 s{d}, s{p}\ns_mov_b32 s{d+1}, s{p+1}\ns_mov_b32 s{d+2}, {size:#x}\ns_mov_b32 s{d+3}, 0x20000")

    def stamp(self, i):
        if self.stamps: self.e(f"s_memrealtime s[{ST0+2*i}:{ST0+2*i+1}]")

    def stamp_out(self, t=246):
        if not self.stamps: return
        e = self.e
        e("s_waitcnt lgkmcnt(0)\ns_mov_b64 exec, 1")
        e(f"s_lshl_b32 s4, s2, 3\ns_add_u32 s4, s4, s3\ns_lshl_b32 s4, s4, 6\ns_add_u32 s4, s4, {STAMPS}")
        e(f"s_mov_b32 s{SRD_WS+2}, 0x1000000")
        for i in range(4):
            for k in range(4): e(f"v_mov_b32 v{t+k}, s{ST0+4*i+k}")
            e(f"buffer_store_dwordx4 v[{t}:{t+3}], off, {srd(SRD_WS)}, s4 offset:{16*i}")
            e("s_nop 2")

    def selectors(self, a_lo, b_lo, a_hi, b_hi, base_lo, base_hi, tmp):
        e = self.e
        e(f"v_and_b32 v{tmp}, 1, v0\nv_cmp_eq_u32 vcc, 1, v{tmp}")
        e(f"v_mov_b32 v{base_lo}, 0x0c0c0100\nv_mov_b32 v{tmp}, 0x01000c0c\nv_cndmask_b32 v{base_lo}, v{base_lo}, v{tmp}, vcc")
        e(f"v_mov_b32 v{base_hi}, 0x0c0c0302\nv_mov_b32 v{tmp}, 0x03020c0c\nv_cndmask_b32 v{base_hi}, v{base_hi}, v{tmp}, vcc")
        if a_lo is None: return
        e(f"v_and_b32 v{tmp}, 2, v0\nv_cmp_eq_u32 vcc, 0, v{tmp}\nv_mov_b32 v{tmp}, 0x0c0c0c0c")
        e(f"v_cndmask_b32 v{a_lo}, v{tmp}, v{base_lo}, vcc\nv_cndmask_b32 v{b_lo}, v{base_lo}, v{tmp}, vcc")
        e(f"v_cndmask_b32 v{a_hi}, v{tmp}, v{base_hi}, vcc\nv_cndmask_b32 v{b_hi}, v{base_hi}, v{tmp}, vcc")

    def masks(self, lo, hi):
        for j in range(4):
            self.e(f"s_mov_b32 s{MASK0+2*j}, {(lo << (2*j)):#x}\ns_mov_b32 s{MASK0+2*j+1}, {(hi << (2*j)):#x}")

    def rws256(self, nload, x, w, acc, base_lo, base_hi, t0, waits=None):
        e = self.e
        for t in range(nload):
            a = t0 + 1 + 1 + 4 * (t & 1)
            a += a & 1
            e(f"v_perm_b32 v{t0}, v{x+(t>>1)}, v{x+(t>>1)}, v{base_hi if t & 1 else base_lo}")
            for j in range(4): e(f"v_cndmask_b32 v{a+j}, 0, v{t0}, s[{MASK0+2*j}:{MASK0+2*j+1}]")
            if waits: e.wait(waits[t])
            e(f"v_mfma_f32_16x16x32_bf16 {vr(acc,4)}, {vr(a,4)}, {vr(w+4*t,4)}, {vr(acc,4) if t else 0}")

    def rws128(self, nload, x, w, acc0, acc1, sel, pa, waits=None):
        e = self.e
        for t in range(nload):
            p = pa + 2 + 4 * (t & 1)
            sa, sb = (sel + 2, sel + 3) if t & 1 else (sel, sel + 1)
            e(f"v_perm_b32 v{p}, v{x+(t>>1)}, v{x+(t>>1)}, v{sa}\nv_perm_b32 v{p+1}, v{x+(t>>1)}, v{x+(t>>1)}, v{sb}")
            if waits: e.wait(waits[t])
            e(f"v_mfma_f32_16x16x32_bf16 {vr(acc0,4)}, {vr(p,4)}, {vr(w+4*t,4)}, {vr(acc0,4) if t else 0}")
            e(f"v_mfma_f32_16x16x32_bf16 {vr(acc1,4)}, {vr(p-2,4)}, {vr(w+4*t,4)}, {vr(acc1,4) if t else 0}")

    def quad_sum(self, ds):
        e = self.e
        for r in range(4):
            for d in ds:
                q = f"quad_perm:[{r},{r},{r},{r}] row_mask:0xf bank_mask:0xf"
                if r == 0: e(f"v_mov_b32_dpp v{d}, v{d} {q}")
                else: e(f"v_add_f32_dpp v{d}, v{d+r}, v{d} {q}")

    def swap_red(self, op, x, t, which):
        for s in which:
            self.e(f"v_mov_b32 v{t}, v{x}\nv_permlane{s}_swap_b32 v{x}, v{t}\n{op} v{x}, v{x}, v{t}")

    def row_red(self, op, x, rots):
        for r in rots:
            self.e(f"{op}_dpp v{x}, v{x}, v{x} row_ror:{r} row_mask:0xf bank_mask:0xf")

    def spin_tail(self, top, done):
        self.e(f"s_sub_u32 s{S_SPIN}, s{S_SPIN}, 1\ns_cbranch_scc0 {top}\n{done}:")

    def atomic_inc(self, off, soff="0", t=3):
        self.e(f"s_mov_b64 exec, 1\nv_mov_b32 v{t}, 1")
        self.e(f"buffer_atomic_add v{t}, off, {srd(SRD_DBG)}, {soff} offset:{off}\ns_mov_b64 exec, -1")

    def bside(self, kind):
        e = self.e; e.vm = 0
        n = 6 if kind == "B" else 4
        VK, VL, TMP, SEL, BLO, BHI, QF, AC0, AC1, LS, MX = 1, 2, 3, 4, 8, 9, 10, 14, 18, 22, 23
        T = 24; D0 = 32; KR = 36; VR = 132; PA = 228; U = 246
        L_T1, L_Q, L_MAX, L_L, L_PRIV, L_RED = 0, 8192, 9216, 9344, 10240, 16384
        S_KV, S_VV, S_G, S_B, S_SP = 5, 6, 7, 8, 9
        e(f"L_{kind}:")
        self.stamp(0)
        e(f"""v_bfe_u32 v{VK}, v0, 2, 2
        v_lshlrev_b32 v{VK}, 8, v{VK}
        v_lshrrev_b32 v{TMP}, 4, v0
        v_lshl_add_u32 v{VK}, v{TMP}, 6, v{VK}
        v_and_b32 v{T}, 3, v0
        v_lshl_add_u32 v{VK}, v{T}, 4, v{VK}
        v_lshlrev_b32 v{VL}, 4, v0""")
        if kind == "B":
            e(f"""s_sub_u32 s4, s2, 128
            s_lshr_b32 s10, s4, 3
            s_and_b32 s{S_SP}, s4, 7
            s_mul_i32 s11, s{S_SP}, 48
            s_mul_i32 s12, s3, 6
            s_lshr_b32 s13, s4, 2
            s_and_b32 s4, s4, 3
            v_and_b32 v{T+4}, 15, v0
            v_lshlrev_b32 v{T+4}, 4, v{T+4}
            v_lshl_add_u32 v{T+4}, v{TMP}, 15, v{T+4}
            v_bfe_u32 v{T+5}, v0, 3, 1
            v_lshlrev_b32 v{T+5}, 10, v{T+5}
            v_lshl_add_u32 v{T+5}, v{TMP}, 3, v{T+5}""")
        else:
            e(f"""s_lshr_b32 s10, s2, 2
            s_and_b32 s4, s2, 3
            s_add_u32 s{S_SP}, s4, 8
            s_lshl_b32 s11, s4, 5
            s_add_u32 s11, s11, 384
            s_lshl_b32 s12, s3, 2
            v_lshrrev_b32 v{T+4}, 3, v0
            v_lshlrev_b32 v{T+4}, 16, v{T+4}
            v_and_b32 v{T+5}, 7, v0
            v_lshl_add_u32 v{T+4}, v{T+5}, 4, v{T+4}
            v_bfe_u32 v{T+5}, v0, 3, 1
            v_lshlrev_b32 v{T+5}, 10, v{T+5}
            v_lshl_add_u32 v{T+5}, v{TMP}, 5, v{T+5}
            v_bfe_u32 v{T+6}, v0, 2, 1
            v_lshl_add_u32 v{T+5}, v{T+6}, 4, v{T+5}
            v_bfe_u32 v{T+6}, v0, 2, 2
            v_lshlrev_b32 v{T+6}, 17, v{T+6}
            v_lshrrev_b32 v{T+7}, 5, v0
            v_lshl_add_u32 v{T+6}, v{T+7}, 16, v{T+6}
            v_bfe_u32 v{T+7}, v0, 4, 1
            v_lshl_add_u32 v{T+6}, v{T+7}, 6, v{T+6}
            v_lshl_add_u32 v{T+6}, v{T}, 4, v{T+6}""")
        e(f"""s_and_b32 s{S_G}, s10, 7
        s_lshr_b32 s{S_B}, s10, 3
        s_add_u32 s11, s11, s12
        s_lshl_b32 s11, s11, 12
        s_lshl_b32 s10, s10, 21
        s_add_u32 s{S_KV}, s10, s11
        s_mov_b32 s{S_VV}, s{S_KV}""")
        e("s_waitcnt lgkmcnt(0)")
        self.stamp(1)
        def ktile(i):
            last = None
            for j in range(4):
                last = e.mem(f"buffer_load_dwordx4 {vr(KR+16*i+4*j,4)}, v{VK}, {srd(SRD_A)}, s{S_KV} offen offset:{1024*j} nt")
            e(f"s_add_u32 s{S_KV}, s{S_KV}, 4096")
            return last
        def vtile(i):
            last = None
            for j in range(4):
                last = e.mem(f"buffer_load_dwordx4 {vr(VR+16*i+4*j,4)}, v{VL}, {srd(SRD_B)}, s{S_VV} offen offset:{1024*j} nt")
            e(f"s_add_u32 s{S_VV}, s{S_VV}, 4096")
            return last
        def throttle():
            e(f"s_waitcnt vmcnt({self.win-4})")
        kt = {}; vt = {}
        if kind == "B":
            self.mk_srd(SRD_C, P_BX, 2048); self.mk_srd(SRD_D, P_BWQ, 4 << 20)
            e(f"""s_lshl_b32 s10, s4, 7
            s_lshl_b32 s11, s3, 4
            s_add_u32 s10, s10, s11
            s_lshl_b32 s11, s10, 1
            s_lshl_b32 s10, s10, 13
            s_lshl_b32 s12, s13, 8
            s_add_u32 s10, s10, s12""")
            xl = e.mem(f"buffer_load_dwordx2 {vr(T,2)}, v{T+5}, {srd(SRD_C)}, s11 offen")
            w = []
            for t in range(4):
                w.append(e.mem(f"buffer_load_dwordx4 {vr(VR+4*t,4)}, v{T+4}, {srd(SRD_D)}, s10 offen nt"))
                e("s_add_u32 s10, s10, 8192")
            self.mk_srd(SRD_A, P_BK, 32 << 20); self.mk_srd(SRD_B, P_BV, 32 << 20)
            kt[0] = ktile(0); kt[1] = ktile(1)
        else:
            self.mk_srd(SRD_C, P_AX, 2048); self.mk_srd(SRD_D, P_AWQ, 4 << 20); self.mk_srd(SRD_E, P_WUK, 4 << 20)
            e(f"""s_lshl_b32 s11, s3, 7
            s_lshl_b32 s10, s3, 19
            s_lshl_b32 s12, s2, 7
            s_add_u32 s10, s10, s12""")
            xl = e.mem(f"buffer_load_dwordx4 {vr(T,4)}, v{T+5}, {srd(SRD_C)}, s11 offen")
            w = []; w3 = []
            e("s_mov_b32 s11, s10")
            for t in range(8):
                w.append(e.mem(f"buffer_load_dwordx4 {vr(VR+4*t,4)}, v{T+4}, {srd(SRD_D)}, s10 offen nt"))
                e("s_add_u32 s10, s10, 8192")
            for t in range(8):
                w3.append(e.mem(f"buffer_load_dwordx4 {vr(VR+32+4*t,4)}, v{T+6}, {srd(SRD_E)}, s11 offen nt"))
                e("s_add_u32 s11, s11, 8192")
            self.mk_srd(SRD_A, P_BK, 32 << 20); self.mk_srd(SRD_B, P_BV, 32 << 20)
        self.mk_srd(SRD_WS, P_WS, WS_USED); self.mk_srd(SRD_DBG, P_DBG, 256)
        e(f"s_mov_b32 s{S_SC}, {f2u(SCALE):#x}\ns_mov_b32 s{S_SPIN}, {SPIN}")
        self.selectors(SEL, SEL+1, SEL+2, SEL+3, BLO, BHI, TMP)
        e.wait(xl)
        if kind == "B":
            self.masks(0x03030303, 0x03030303)
            self.rws256(4, T, VR, AC0, BLO, BHI, PA, w)
            e(f"s_lshl_b32 s10, s3, 10\nv_add_u32 v{TMP}, s10, v{VL}")
            e(f"ds_write_b128 v{TMP}, {vr(AC0,4)} offset:{L_T1}\ns_waitcnt lgkmcnt(0)\ns_barrier")
            skip = e.lab("L_t1pub")
            e(f"s_cmp_lg_u32 s3, 0\ns_cbranch_scc1 {skip}")
            for i in range(8): e(f"ds_read_b128 {vr(VR+4*i,4)}, v{VL} offset:{L_T1+1024*i}")
            e(f"""v_lshrrev_b32 v{T}, 5, v0
            v_lshlrev_b32 v{T}, 14, v{T}
            v_and_b32 v{T+1}, 15, v0
            v_lshl_add_u32 v{T}, v{T+1}, 5, v{T}
            v_bfe_u32 v{T+1}, v0, 4, 1
            v_lshl_add_u32 v{T}, v{T+1}, 4, v{T}
            s_lshl_b32 s10, s4, 15
            s_lshl_b32 s11, s13, 9
            s_add_u32 s10, s10, s11
            s_add_u32 s10, s10, {QBP}
            s_and_b32 s11, s13, 0x1c
            s_waitcnt lgkmcnt(0)""")
            for st in (1, 2, 4):
                for i in range(0, 8, 2 * st):
                    for r in range(4): e(f"v_add_f32 v{VR+4*i+r}, v{VR+4*i+r}, v{VR+4*(i+st)+r}")
            e(f"buffer_store_dwordx4 {vr(VR,4)}, v{T}, {srd(SRD_WS)}, s10 offen sc1\ns_waitcnt vmcnt(0)")
            self.atomic_inc(C_QB, "s11")
            e(f"{skip}:")
        else:
            for z in (0, 1, 4, 5, 8, 9): e(f"v_mov_b32 v{PA+z}, 0")
            self.rws128(8, T, VR, AC0, AC1, SEL, PA, w)
            e(f"""v_bfe_u32 v{T}, v0, 3, 1
            v_lshlrev_b32 v{T}, 9, v{T}
            v_lshrrev_b32 v{T+1}, 5, v0
            v_lshl_add_u32 v{T}, v{T+1}, 8, v{T}
            v_and_b32 v{T+1}, 7, v0
            v_lshl_add_u32 v{T}, v{T+1}, 5, v{T}
            s_lshl_b32 s10, s3, 10
            v_add_u32 v{T}, s10, v{T}
            s_mov_b32 exec_lo, 0xff0000ff
            s_mov_b32 exec_hi, 0xff0000ff
            ds_write_b128 v{T}, {vr(AC0,4)} offset:{L_T1}
            ds_write_b128 v{T}, {vr(AC1,4)} offset:{L_T1+16}
            s_mov_b64 exec, -1
            v_lshlrev_b32 v{T}, 3, v0
            s_waitcnt lgkmcnt(0)
            s_barrier""")
            for i in range(16): e(f"ds_read_b64 {vr(KR+2*i,2)}, v{T} offset:{L_T1+512*i}")
            e(f"""s_lshl_b32 s10, s3, 8
            s_add_u32 s10, s10, {L_PRIV}
            v_lshl_add_u32 v{T}, v0, 2, s10
            v_bfe_u32 v{T+1}, v0, 2, 1
            v_lshlrev_b32 v{T+1}, 7, v{T+1}
            v_bfe_u32 v{T+2}, v0, 4, 1
            v_lshl_add_u32 v{T+1}, v{T+2}, 6, v{T+1}
            v_and_b32 v{T+2}, 3, v0
            v_lshl_add_u32 v{T+1}, v{T+2}, 4, v{T+1}
            v_add_u32 v{T+1}, s10, v{T+1}
            s_mov_b32 s12, 0x00ff00ff
            s_mov_b32 s13, 0xff00ff00
            s_waitcnt lgkmcnt(0)""")
            for st in (1, 2, 4, 8):
                for i in range(0, 16, 2 * st):
                    for r in range(2): e(f"v_add_f32 v{KR+2*i+r}, v{KR+2*i+r}, v{KR+2*(i+st)+r}")
            e(f"""v_cvt_pk_bf16_f32 v{KR}, v{KR}, v{KR+1}
            ds_write_b32 v{T}, v{KR}
            s_waitcnt lgkmcnt(0)
            ds_read_b128 {vr(QF,4)}, v{T+1}
            v_bfe_u32 v{T}, v0, 2, 1
            v_lshlrev_b32 v{T}, 15, v{T}
            v_lshrrev_b32 v{T+1}, 4, v0
            v_lshl_add_u32 v{T}, v{T+1}, 5, v{T}
            v_bfe_u32 v{T+1}, v0, 3, 1
            v_lshl_add_u32 v{T}, v{T+1}, 4, v{T}
            s_and_b32 s10, s2, 1
            s_lshl_b32 s10, s10, 16
            s_lshr_b32 s11, s2, 1
            s_lshl_b32 s11, s11, 10
            s_add_u32 s10, s10, s11
            s_lshl_b32 s11, s3, 7
            s_add_u32 s10, s10, s11
            s_add_u32 s10, s10, {QAP}
            s_waitcnt lgkmcnt(0)""")
            for r in range(4): e(f"v_cndmask_b32 v{QF+r}, 0, v{QF+r}, s[12:13]")
            for t in range(8):
                e.wait(w3[t])
                e(f"v_mfma_f32_16x16x32_bf16 {vr(KR+4*t,4)}, {vr(VR+32+4*t,4)}, {vr(QF,4)}, 0")
            self.quad_sum([KR + 4 * t for t in range(8)])
            for i in range(4): e(f"v_cvt_pk_bf16_f32 v{AC0+i}, v{KR+8*i}, v{KR+8*i+4}")
            e("s_mov_b32 exec_lo, 0x11111111\ns_mov_b32 exec_hi, 0x11111111")
            st = e.mem(f"buffer_store_dwordx4 {vr(AC0,4)}, v{T}, {srd(SRD_WS)}, s10 offen sc1")
            e("s_mov_b64 exec, -1")
            kt[0] = ktile(0); kt[1] = ktile(1)
            e.wait(st)
            e("s_barrier")
            skip = e.lab("L_qapub")
            e(f"s_cmp_lg_u32 s3, 0\ns_cbranch_scc1 {skip}")
            self.atomic_inc(C_QA)
            e(f"{skip}:")
        self.stamp(2)
        for i in range(2, n - 2):
            throttle(); kt[i] = ktile(i)
        e(f"""v_and_b32 v{T}, 1, v0
        v_cmp_eq_u32 vcc, 1, v{T}
        s_lshl_b32 s10, s{S_G}, 2
        v_mov_b32 v{T}, s10
        v_mov_b32 v{T+1}, {C_CLR}
        v_cndmask_b32 v{T}, v{T}, v{T+1}, vcc
        v_mov_b32 v{T+1}, 16
        v_mov_b32 v{T+2}, 64
        v_cndmask_b32 v{T+1}, v{T+1}, v{T+2}, vcc""")
        cn = e.mem(f"buffer_load_dword v{T+2}, v{T}, {srd(SRD_DBG)}, 0 offen sc1")
        throttle(); kt[n-2] = ktile(n - 2)
        e.wait(cn)
        top, done = e.lab("L_qspin"), e.lab("L_qok")
        e(f"""{top}:
        v_cmp_ne_u32 vcc, v{T+2}, v{T+1}
        s_cbranch_vccz {done}
        buffer_load_dword v{T+2}, v{T}, {srd(SRD_DBG)}, 0 offen sc1
        s_waitcnt vmcnt(0)""")
        self.spin_tail(top, done)
        self.stamp(3)
        e(f"""s_lshl_b32 s10, s{S_B}, 14
        s_lshl_b32 s11, s{S_G}, 11
        s_add_u32 s10, s10, s11
        s_lshl_b32 s11, s3, 8
        s_add_u32 s10, s10, s11
        s_add_u32 s10, s10, {QBP}
        v_lshlrev_b32 v{TMP}, 2, v0""")
        for k in range(4):
            qg = e.mem(f"buffer_load_dword v{T+k}, v{TMP}, {srd(SRD_WS)}, s10 offen sc1")
            e("s_add_u32 s10, s10, 32768")
        throttle(); kt[n-1] = ktile(n - 1)
        throttle(); vt[0] = vtile(0)
        throttle(); vt[1] = vtile(1)
        e(f"""s_lshl_b32 s10, s3, 7
        v_lshl_add_u32 v{TMP}, v0, 1, s10
        v_lshrrev_b32 v{T+4}, 4, v0
        v_lshlrev_b32 v{T+4}, 6, v{T+4}
        v_bfe_u32 v{T+5}, v0, 2, 2
        v_lshl_add_u32 v{T+4}, v{T+5}, 8, v{T+4}
        v_and_b32 v{T+6}, 3, v0
        v_lshl_add_u32 v{T+4}, v{T+6}, 4, v{T+4}
        v_lshlrev_b32 v{T+5}, 5, v{T+5}""")
        for z in range(0, 18, 4): e(f"v_mov_b32 v{PA+z}, 0\nv_mov_b32 v{PA+z+1}, 0")
        e.wait(qg)
        e(f"""v_add_f32 v{T}, v{T}, v{T+1}
        v_add_f32 v{T+2}, v{T+2}, v{T+3}
        v_add_f32 v{T}, v{T}, v{T+2}
        v_cvt_pk_bf16_f32 v{T}, v{T}, v{T}
        ds_write_b16 v{TMP}, v{T} offset:{L_Q}
        s_waitcnt lgkmcnt(0)
        s_barrier
        ds_read_b128 {vr(QF,4)}, v{T+4} offset:{L_Q}
        s_waitcnt lgkmcnt(0)""")
        self.stamp(4)
        SK = lambda k: D0 + 4 * k
        nv = 2
        for i in range(n + 1):
            if i < n:
                e.wait(kt[i])
                for j in range(4):
                    k = 4 * i + j
                    e(f"v_mfma_f32_16x16x32_bf16 {vr(SK(k),4)}, {vr(KR+4*k,4)}, {vr(QF,4)}, 0")
            if i > 0:
                ks = [SK(4 * (i - 1) + j) for j in range(4)]
                self.quad_sum(ks)
                if i == 1: e(f"v_max_f32 v{MX}, v{ks[0]}, v{ks[1]}\nv_max3_f32 v{MX}, v{MX}, v{ks[2]}, v{ks[3]}")
                else: e(f"v_max3_f32 v{MX}, v{MX}, v{ks[0]}, v{ks[1]}\nv_max3_f32 v{MX}, v{MX}, v{ks[2]}, v{ks[3]}")
        vt[nv] = vtile(nv); nv += 1
        self.swap_red("v_max_f32", MX, TMP, (16, 32))
        e(f"""s_lshl_b32 s10, s3, 2
        v_add_u32 v{T+6}, s10, v{T+5}
        ds_write_b32 v{T+6}, v{MX} offset:{L_MAX}
        s_waitcnt lgkmcnt(0)
        s_barrier
        ds_read_b128 {vr(U,4)}, v{T+5} offset:{L_MAX}
        ds_read_b128 {vr(U+4,4)}, v{T+5} offset:{L_MAX+16}
        s_waitcnt lgkmcnt(0)
        v_max3_f32 v{MX}, v{U}, v{U+1}, v{U+2}
        v_max3_f32 v{MX}, v{MX}, v{U+3}, v{U+4}
        v_max3_f32 v{MX}, v{MX}, v{U+5}, v{U+6}
        v_max_f32 v{MX}, v{MX}, v{U+7}
        v_mul_f32 v{MX}, s{S_SC}, v{MX}""")
        for k in range(4 * n): e(f"v_fma_f32 v{SK(k)}, v{SK(k)}, s{S_SC}, -v{MX}")
        for k in range(4 * n): e(f"v_exp_f32 v{SK(k)}, v{SK(k)}")
        e(f"v_add_f32 v{LS}, v{SK(0)}, v{SK(1)}")
        for k in range(2, 4 * n): e(f"v_add_f32 v{LS}, v{LS}, v{SK(k)}")
        for k in range(0, 4 * n, 2): e(f"v_cvt_pk_bf16_f32 v{SK(k)}, v{SK(k)}, v{SK(k+1)}")
        self.swap_red("v_add_f32", LS, TMP, (16, 32))
        e(f"ds_write_b32 v{T+6}, v{LS} offset:{L_L}")
        self.stamp(5)
        for i in range(n):
            if nv < n:
                throttle(); vt[nv] = vtile(nv); nv += 1
            for j in range(4):
                k = 4 * i + j; pk = SK(k & ~1); p = PA + 2 + 4 * j
                sa, sb = (SEL + 2, SEL + 3) if k & 1 else (SEL, SEL + 1)
                e(f"v_perm_b32 v{p}, v{pk}, v{pk}, v{sa}\nv_perm_b32 v{p+1}, v{pk}, v{pk}, v{sb}")
            if i == n - 1:
                e(f"""s_lshl_b32 s10, s3, 11
                v_lshl_add_u32 v{T}, v0, 5, s10
                s_lshl_b32 s10, s3, 8
                v_lshl_add_u32 v{T+1}, v0, 2, s10
                v_lshlrev_b32 v{T+2}, 2, v0
                s_lshl_b32 s10, s{S_G}, 3
                s_add_u32 s10, s10, s3
                s_lshl_b32 s10, s10, 14
                s_mul_i32 s11, s{S_B}, 12
                s_add_u32 s11, s11, s{S_SP}
                s_lshl_b32 s11, s11, 8
                s_add_u32 s10, s10, s11
                s_add_u32 s10, s10, {MB}""")
            e.wait(vt[i])
            for j in range(4):
                k = 4 * i + j; p = PA + 2 + 4 * j
                e(f"v_mfma_f32_16x16x32_bf16 {vr(AC0,4)}, {vr(p,4)}, {vr(VR+4*k,4)}, {vr(AC0,4) if k else 0}")
                e(f"v_mfma_f32_16x16x32_bf16 {vr(AC1,4)}, {vr(p-2,4)}, {vr(VR+4*k,4)}, {vr(AC1,4) if k else 0}")
            if i == 1:
                skip = e.lab("L_stat")
                e(f"""s_waitcnt lgkmcnt(0)
                s_barrier
                s_cmp_lg_u32 s3, 0
                s_cbranch_scc1 {skip}
                ds_read_b128 {vr(U,4)}, v{T+5} offset:{L_L}
                ds_read_b128 {vr(U+4,4)}, v{T+5} offset:{L_L+16}
                v_bfe_u32 v{T}, v0, 2, 2
                v_lshlrev_b32 v{T}, 15, v{T}
                v_and_b32 v{T+1}, 1, v0
                v_lshl_add_u32 v{T}, v{T+1}, 14, v{T}
                s_lshl_b32 s10, s{S_G}, 17
                s_lshl_b32 s11, s{S_B}, 4
                s_add_u32 s11, s11, s{S_SP}
                s_lshl_b32 s11, s11, 3
                s_add_u32 s10, s10, s11
                s_add_u32 s10, s10, {MB+MB_ST}
                s_waitcnt lgkmcnt(0)
                v_add_f32 v{U}, v{U}, v{U+1}
                v_add_f32 v{U+2}, v{U+2}, v{U+3}
                v_add_f32 v{U+4}, v{U+4}, v{U+5}
                v_add_f32 v{U+6}, v{U+6}, v{U+7}
                v_add_f32 v{U}, v{U}, v{U+2}
                v_add_f32 v{U+4}, v{U+4}, v{U+6}
                v_add_f32 v{U+1}, v{U}, v{U+4}
                v_min_u32 v{U}, -2, v{MX}
                v_min_u32 v{U+1}, -2, v{U+1}
                s_mov_b64 exec, 0x3333
                buffer_store_dwordx2 {vr(U,2)}, v{T}, {srd(SRD_WS)}, s10 offen sc1
                s_mov_b64 exec, -1
                {skip}:""")
        self.stamp(6)
        e(f"""ds_write_b128 v{T}, {vr(AC0,4)} offset:{L_RED}
        ds_write_b128 v{T}, {vr(AC1,4)} offset:{L_RED+16}
        s_waitcnt lgkmcnt(0)
        s_barrier""")
        for i in range(8): e(f"ds_read_b32 v{U+i}, v{T+1} offset:{L_RED+2048*i}")
        e(f"""s_waitcnt lgkmcnt(6)
        v_add_f32 v{U}, v{U}, v{U+1}
        s_waitcnt lgkmcnt(4)
        v_add_f32 v{U+2}, v{U+2}, v{U+3}
        s_waitcnt lgkmcnt(2)
        v_add_f32 v{U+4}, v{U+4}, v{U+5}
        v_add_f32 v{U}, v{U}, v{U+2}
        s_waitcnt lgkmcnt(0)
        v_add_f32 v{U+6}, v{U+6}, v{U+7}
        v_add_f32 v{U}, v{U}, v{U+4}
        v_add_f32 v{U}, v{U}, v{U+6}
        v_min_u32 v{U}, -2, v{U}
        buffer_store_dword v{U}, v{T+2}, {srd(SRD_WS)}, s10 offen sc1""")
        self.stamp(7)
        self.stamp_out(100)
        e("s_endpgm")

    def a_compute(self):
        e = self.e; e.vm = 0
        AC, AT, TA, M, LS, T = 1, 2, 3, 4, 5, 6
        FR, S, O, QA = 16, 48, 64, 128
        X = 131072
        X_MAX, X_AL, X_L, X_P = 0, 1024, 1536, 2048
        S_B, S_SP, S_R = 5, 6, 7
        e("L_AC:")
        self.stamp(0)
        e(f"""s_lshr_b32 s{S_B}, s4, 5
        s_and_b32 s{S_SP}, s4, 31
        v_lshlrev_b32 v{T}, 4, v0
        s_waitcnt lgkmcnt(0)""")
        self.mk_srd(SRD_WS, P_WS, WS_USED); self.mk_srd(SRD_DBG, P_DBG, 256)
        skip = e.lab("L_clr")
        e(f"""s_cmp_lg_u32 s3, 3
        s_cbranch_scc1 {skip}
        s_lshl_b32 s10, s4, 14
        s_add_u32 s10, s10, {MB}""")
        for r in range(4): e(f"v_mov_b32 v{FR+r}, -1")
        for i in range(16):
            e(f"buffer_store_dwordx4 {vr(FR,4)}, v{T}, {srd(SRD_WS)}, s10 offen offset:{1024*(i&3)} sc1")
            if i & 3 == 3: e("s_add_u32 s10, s10, 4096")
        e("s_waitcnt vmcnt(0)")
        self.atomic_inc(C_CLR)
        e(f"{skip}:")
        e(f"s_mov_b32 s{S_SC}, {f2u(SCALE):#x}\ns_mov_b32 s{S_SPIN}, {SPIN}")
        e(f"""v_and_b32 v{T+1}, 3, v0
        v_lshlrev_b32 v{T+1}, 2, v{T+1}
        v_bfe_u32 v{T+2}, v0, 2, 2
        v_or_b32 v{T+1}, v{T+1}, v{T+2}
        v_lshrrev_b32 v{T+2}, 5, v0
        v_xor_b32 v{T+1}, v{T+1}, v{T+2}
        v_lshlrev_b32 v{T+1}, 4, v{T+1}
        v_and_b32 v{T+3}, 31, v0
        v_lshl_add_u32 v{AC}, v{T+3}, 10, v{T+1}
        v_bfe_u32 v{T+1}, v0, 2, 2
        v_lshl_add_u32 v{T+3}, v{T+2}, 2, v{T+1}
        v_lshlrev_b32 v{AT}, 10, v{T+3}
        v_bfe_u32 v{T+3}, v0, 4, 1
        v_lshlrev_b32 v{T+3}, 1, v{T+3}
        v_bfe_u32 v{T+4}, v0, 1, 1
        v_or_b32 v{T+3}, v{T+3}, v{T+4}
        v_xor_b32 v{T+3}, v{T+3}, v{T+2}
        v_lshl_add_u32 v{T+3}, v{T+1}, 2, v{T+3}
        v_lshl_add_u32 v{AT}, v{T+3}, 4, v{AT}
        v_and_b32 v{T+3}, 1, v0
        v_lshl_add_u32 v{AT}, v{T+3}, 3, v{AT}
        s_lshl_b32 s10, s3, 8
        v_add_u32 v{AT}, s10, v{AT}
        v_mov_b32 v{M}, 0xff800000
        v_mov_b32 v{LS}, 0""")
        top, done = e.lab("L_qaspin"), e.lab("L_qaok")
        e(f"""{top}:
        buffer_load_dword v{T+1}, off, {srd(SRD_DBG)}, 0 offset:{C_QA} sc1
        s_waitcnt vmcnt(0)
        v_cmp_ne_u32 vcc, 64, v{T+1}
        s_cbranch_vccz {done}""")
        self.spin_tail(top, done)
        self.stamp(1)
        e(f"""s_lshl_b32 s10, s{S_B}, 15
        s_lshl_b32 s11, s3, 13
        s_add_u32 s10, s10, s11
        s_add_u32 s10, s10, {QAP}
        s_add_u32 s11, s10, 65536""")
        e.vm = 0
        g = []
        for i in range(8):
            e.mem(f"buffer_load_dwordx4 {vr(O+8*i,4)}, v{T}, {srd(SRD_WS)}, s10 offen offset:{1024*(i&3)} sc1")
            g.append(e.mem(f"buffer_load_dwordx4 {vr(O+8*i+4,4)}, v{T}, {srd(SRD_WS)}, s11 offen offset:{1024*(i&3)} sc1"))
            if i == 3: e("s_add_u32 s10, s10, 4096\ns_add_u32 s11, s11, 4096")
        e(f"""s_mov_b32 s12, 0xffff0000
        s_lshl_b32 s10, s3, 13
        s_add_u32 s10, s10, {X}
        s_and_b32 s11, s3, 1
        s_lshl_b32 s11, s11, 5
        v_xor_b32 v{T}, s11, v{T}
        v_add_u32 v{T}, s10, v{T}""")
        for i in range(8):
            e.wait(g[i])
            for r in range(4):
                a, b, d = O + 8 * i + r, O + 8 * i + 4 + r, FR + 4 * i + r
                e(f"""v_lshlrev_b32 v{T+1}, 16, v{a}
                v_lshlrev_b32 v{T+2}, 16, v{b}
                v_and_b32 v{a}, s12, v{a}
                v_and_b32 v{b}, s12, v{b}
                v_add_f32 v{T+1}, v{T+1}, v{T+2}
                v_add_f32 v{a}, v{a}, v{b}
                v_cvt_pk_bf16_f32 v{d}, v{T+1}, v{a}""")
            sw = ((i & 3) << 2) | (i >> 2)
            e(f"v_xor_b32 v{T+3}, {sw << 4}, v{T}\nds_write_b128 v{T+3}, {vr(FR+4*i,4)} offset:{1024*i}")
        for r in range(64): e(f"v_mov_b32 v{O+r}, 0")
        e("s_waitcnt lgkmcnt(0)\ns_barrier")
        self.stamp(2)
        e(f"v_add_u32 v{T}, {X}, v{AC}")
        for i in range(8):
            e(f"v_xor_b32 v{T+1+(i&1)}, {i << 5}, v{T}")
            for q in range(4): e(f"ds_read_b128 {vr(QA+4*(i+8*q),4)}, v{T+1+(i&1)} offset:{256*q}")
            if i & 1: e("s_waitcnt lgkmcnt(4)")
        e(f"""s_lshl_b32 s10, s3, 15
        v_add_u32 v{AC}, s10, v{AC}
        v_and_b32 v{T+6}, 31, v0
        v_lshlrev_b32 v{T+6}, 4, v{T+6}
        v_add_u32 v{T+6}, {X}, v{T+6}
        s_lshl_b32 s10, s3, 2
        v_add_u32 v{T+7}, s10, v{T+6}
        v_lshlrev_b32 v{T+8}, 4, v0
        v_add_u32 v{T+8}, {X+X_P}, v{T+8}
        s_mov_b32 s{S_R}, 0
        s_waitcnt lgkmcnt(0)
        s_barrier""")
        e("L_AROUND:")
        def cread(i):
            e(f"v_xor_b32 v{TA}, {i << 5}, v{AC}")
            for q in range(4): e(f"ds_read_b128 {vr(FR+16*(i&1)+4*q,4)}, v{TA} offset:{256*q}")
        cread(0)
        for i in range(8):
            if i < 7: cread(i + 1)
            for q in range(4):
                e(f"s_waitcnt lgkmcnt({(7 if i < 7 else 3) - q})")
                e(f"v_mfma_f32_32x32x16_bf16 {vr(S,16)}, {vr(FR+16*(i&1)+4*q,4)}, {vr(QA+4*(i+8*q),4)}, {vr(S,16) if i or q else 0}")
        e(f"v_max3_f32 v{T}, v{S}, v{S+1}, v{S+2}")
        for r in range(3, 15, 2): e(f"v_max3_f32 v{T}, v{T}, v{S+r}, v{S+r+1}")
        e(f"v_max_f32 v{T}, v{T}, v{S+15}")
        self.swap_red("v_max_f32", T, T + 1, (32,))
        e(f"""ds_write_b32 v{T+7}, v{T} offset:{X_MAX}
        s_waitcnt lgkmcnt(0)
        s_barrier
        ds_read_b128 {vr(FR,4)}, v{T+6} offset:{X_MAX}
        s_lshl_b32 s10, s3, 7
        s_add_u32 s10, s10, {X+X_AL}
        v_and_b32 v{T+2}, 31, v0
        v_lshl_add_u32 v{T+2}, v{T+2}, 2, s10
        v_lshrrev_b32 v{T+3}, 5, v0
        v_lshl_add_u32 v{T+3}, v{T+3}, 4, s10
        s_waitcnt lgkmcnt(0)
        v_max3_f32 v{T}, v{FR}, v{FR+1}, v{FR+2}
        v_max_f32 v{T}, v{T}, v{FR+3}
        v_mul_f32 v{T}, s{S_SC}, v{T}
        v_max_f32 v{T}, v{T}, v{M}
        v_sub_f32 v{T+1}, v{M}, v{T}
        v_exp_f32 v{T+1}, v{T+1}
        v_mov_b32 v{M}, v{T}
        ds_write_b32 v{T+2}, v{T+1}
        v_mul_f32 v{LS}, v{LS}, v{T+1}""")
        for r in range(16): e(f"v_fma_f32 v{S+r}, v{S+r}, s{S_SC}, -v{M}")
        for r in range(16): e(f"v_exp_f32 v{S+r}, v{S+r}")
        for r in range(16): e(f"v_add_f32 v{LS}, v{LS}, v{S+r}")
        for r in range(8): e(f"v_cvt_pk_bf16_f32 v{FR+r}, v{S+2*r}, v{S+2*r+1}")
        e(f"""s_lshl_b32 s10, s3, 11
        v_add_u32 v{T+4}, s10, v{T+8}
        ds_write_b128 v{T+4}, {vr(FR,4)}
        ds_write_b128 v{T+4}, {vr(FR+4,4)} offset:1024
        v_mov_b32 v{T}, v{LS}""")
        self.swap_red("v_add_f32", T, T + 1, (32,))
        e(f"ds_write_b32 v{T+7}, v{T} offset:{X_L}")
        skip = e.lab("L_noresc")
        e(f"s_cmp_eq_u32 s{S_R}, 0\ns_cbranch_scc1 {skip}")
        e("s_waitcnt lgkmcnt(0)")
        for q in range(4): e(f"ds_read_b128 {vr(S+4*q,4)}, v{T+3} offset:{32*q}")
        e("s_waitcnt lgkmcnt(0)")
        for ct in range(4):
            for r in range(16): e(f"v_mul_f32 v{O+16*ct+r}, v{O+16*ct+r}, v{S+r}")
        e(f"{skip}:")
        e("s_waitcnt lgkmcnt(0)\ns_barrier")
        def tread(tp, ct):
            f = FR + 16 * (ct & 1)
            for hh in range(2):
                e(f"v_xor_b32 v{TA}, {(4*ct+2*hh) << 4}, v{AT}")
                e(f"v_add_u32 v{TA}, {65536*tp + 8192*hh}, v{TA}")
                for u in range(4):
                    e(f"ds_read_b64_tr_b16 {vr(f+4*u+2*hh,2)}, v{TA} offset:{32768*(u>>1)+16384*(u&1)}")
        for tp in range(2):
            for u in range(4): e(f"ds_read_b128 {vr(S+4*u,4)}, v{T+8} offset:{4096*tp+1024*u}")
            tread(tp, 0)
            for ct in range(4):
                if ct < 3:
                    e("s_waitcnt lgkmcnt(7)")
                    tread(tp, ct + 1)
                for u in range(4):
                    e(f"s_waitcnt lgkmcnt({(11 if ct < 3 else 3) - u})")
                    e(f"v_mfma_f32_32x32x16_bf16 {vr(O+16*ct,16)}, {vr(S+4*u,4)}, {vr(FR+16*(ct&1)+4*u,4)}, {vr(O+16*ct,16)}")
        e(f"""s_cmp_eq_u32 s{S_R}, 1
        s_cbranch_scc1 L_APUB
        s_mov_b32 s{S_R}, 1
        s_barrier""")
        self.stamp(3)
        e("s_barrier")
        self.stamp(4)
        e("s_branch L_AROUND\nL_APUB:")
        self.stamp(5)
        e(f"""v_lshrrev_b32 v{T}, 5, v0
        v_lshlrev_b32 v{T}, 18, v{T}
        v_and_b32 v{T+1}, 31, v0
        v_lshl_add_u32 v{T}, v{T+1}, 3, v{T}
        s_lshl_b32 s10, s4, 10
        s_lshl_b32 s11, s3, 8
        s_add_u32 s10, s10, s11
        s_add_u32 s10, s10, {AP}""")
        for r in range(16):
            d = FR + 2 * r
            e(f"v_cvt_pk_bf16_f32 v{d}, v{O+r}, v{O+16+r}\nv_cvt_pk_bf16_f32 v{d+1}, v{O+32+r}, v{O+48+r}")
            e(f"buffer_store_dwordx2 {vr(d,2)}, v{T}, {srd(SRD_WS)}, s10 offen sc1")
            e(f"s_add_u32 s10, s10, {65536 * (5 if r & 3 == 3 else 1)}")
        skip = e.lab("L_ast")
        e(f"""s_cmp_lg_u32 s3, 0
        s_cbranch_scc1 {skip}
        ds_read_b128 {vr(S,4)}, v{T+6} offset:{X_L}
        v_lshlrev_b32 v{T+1}, 9, v{T+1}
        s_lshl_b32 s10, s4, 3
        s_add_u32 s10, s10, {AST}
        s_waitcnt lgkmcnt(0)
        v_add_f32 v{S}, v{S}, v{S+1}
        v_add_f32 v{S+2}, v{S+2}, v{S+3}
        v_add_f32 v{S+1}, v{S}, v{S+2}
        v_mov_b32 v{S}, v{M}
        s_mov_b32 exec_hi, 0
        buffer_store_dwordx2 {vr(S,2)}, v{T+1}, {srd(SRD_WS)}, s10 offen sc1
        s_mov_b64 exec, -1
        {skip}:
        s_waitcnt vmcnt(0)
        s_barrier""")
        self.stamp(6)
        skip = e.lab("L_apcnt")
        e(f"s_cmp_lg_u32 s3, 0\ns_cbranch_scc1 {skip}")
        self.atomic_inc(C_AP)
        e(f"{skip}:")
        self.stamp(7)
        self.stamp_out(16)
        e("s_endpgm")

    def a_loader(self):
        e = self.e; e.vm = 0
        VL, TMP, SEL, BLO, BHI, VW, T = 1, 3, 4, 8, 9, 2, 10
        XO, STG, WUV = 16, 32, 160
        W, G = 32, 96
        AC0, AC1, PA, XR, U = 224, 228, 232, 244, 16
        S_LW, S_PART, S_PRIV, S_MBJ = 5, 6, 7, 8
        e("L_AL:")
        self.stamp(0)
        e(f"""s_sub_u32 s{S_LW}, s3, 4
        v_lshlrev_b32 v{VL}, 4, v0""")
        for i in range(16): e(f"v_xor_b32 v{XO+i}, {(((i & 3) << 2) | (i >> 2)) << 4}, v{VL}")
        e(f"""s_lshl_b32 s10, s4, 18
        s_lshl_b32 s11, s{S_LW}, 15
        s_add_u32 s10, s10, s11
        s_waitcnt lgkmcnt(0)""")
        self.mk_srd(SRD_A, P_CKV, 16 << 20)
        for r in range(32):
            if r & 3 == 0: e("s_mov_b32 m0, s11")
            dma = e.mem(f"buffer_load_dwordx4 v{XO+(r&15)}, {srd(SRD_A)}, s10 offen offset:{1024*(r&3)} nt lds")
            if r & 3 == 3: e("s_add_u32 s10, s10, 4096\ns_add_u32 s11, s11, 4096")
        self.stamp(1)
        e("s_add_u32 s10, s10, 98304")
        for r in range(32):
            if r & 7 == 0: e("s_waitcnt vmcnt(24)")
            stg = e.mem(f"buffer_load_dwordx4 {vr(STG+4*r,4)}, v{XO+(r&15)}, {srd(SRD_A)}, s10 offen offset:{1024*(r&3)} nt")
            if r & 3 == 3: e("s_add_u32 s10, s10, 4096")
        self.mk_srd(SRD_B, P_WUV, 4 << 20); self.mk_srd(SRD_C, P_AWO, 4 << 20); self.mk_srd(SRD_D, P_BWO, 4 << 20)
        self.mk_srd(SRD_E, P_OUT, 4096); self.mk_srd(SRD_WS, P_WS, WS_USED); self.mk_srd(SRD_DBG, P_DBG, 256)
        e(f"""v_lshrrev_b32 v{T}, 3, v0
        v_lshlrev_b32 v{T}, 17, v{T}
        v_and_b32 v{T+1}, 7, v0
        v_lshl_add_u32 v{T}, v{T+1}, 4, v{T}
        s_lshl_b32 s10, s{S_LW}, 20
        s_lshl_b32 s11, s4, 7
        s_add_u32 s10, s10, s11""")
        for t in range(16):
            if t & 7 == 0: e("s_waitcnt vmcnt(24)")
            e.mem(f"buffer_load_dwordx4 {vr(WUV+4*t,4)}, v{T}, {srd(SRD_B)}, s10 offen nt")
            e("s_add_u32 s10, s10, 8192")
        e(f"""v_lshrrev_b32 v{VW}, 4, v0
        v_lshlrev_b32 v{VW}, 14, v{VW}
        v_and_b32 v{T+1}, 15, v0
        v_lshl_add_u32 v{VW}, v{T+1}, 4, v{VW}
        s_mov_b32 s{S_SPIN}, {SPIN}
        s_lshl_b32 s{S_PRIV}, s{S_LW}, 12
        s_lshl_b32 s{S_MBJ}, s4, 14
        s_add_u32 s{S_MBJ}, s{S_MBJ}, {MB}
        s_lshl_b32 s10, s{S_LW}, 15
        v_add_u32 v{T}, s10, v{VL}""")
        self.selectors(SEL, SEL+1, SEL+2, SEL+3, BLO, BHI, TMP)
        e.wait(dma)
        self.stamp(2)
        e("s_barrier\ns_barrier\ns_barrier\ns_barrier")
        e.wait(stg)
        e("s_barrier")
        for r in range(32): e(f"ds_write_b128 v{T}, {vr(STG+4*r,4)} offset:{1024*r}")
        e("s_waitcnt lgkmcnt(0)\ns_barrier")
        def wload(s):
            e(f"""s_lshl_b32 s10, s4, 16
            s_lshl_b32 s11, s{S_LW}, 8
            s_add_u32 s10, s10, s11""")
            for t in range(16):
                last = e.mem(f"buffer_load_dwordx4 {vr(W+4*t,4)}, v{VW}, {srd(s)}, s10 offen offset:{1024*(t&3)} nt")
                if t & 3 == 3: e("s_add_u32 s10, s10, 4096")
            return last
        wload(SRD_C)
        e("s_barrier\ns_barrier\ns_barrier")
        self.stamp(3)
        top, done = e.lab("L_apspin"), e.lab("L_apok")
        e(f"""{top}:
        buffer_load_dword v{T}, off, {srd(SRD_DBG)}, 0 offset:{C_AP} sc1
        s_waitcnt vmcnt(0)
        v_cmp_ne_u32 vcc, 64, v{T}
        s_cbranch_vccz {done}""")
        self.spin_tail(top, done)
        self.stamp(4)
        e.vm = 0
        e(f"""s_lshr_b32 s12, s4, 1
        s_lshl_b32 s10, s12, 9
        s_add_u32 s10, s10, {AST}
        v_lshlrev_b32 v{T}, 3, v0""")
        st = e.mem(f"buffer_load_dwordx2 {vr(U,2)}, v{T}, {srd(SRD_WS)}, s10 offen sc1")
        e(f"""s_lshl_b32 s10, s12, 16
        s_lshl_b32 s11, s{S_LW}, 8
        s_add_u32 s10, s10, s11
        s_add_u32 s10, s10, {AP}""")
        g = []
        for t in range(16):
            g.append(e.mem(f"buffer_load_dwordx4 {vr(G+4*t,4)}, v{VW}, {srd(SRD_WS)}, s10 offen offset:{1024*(t&3)} sc1"))
            if t & 3 == 3: e("s_add_u32 s10, s10, 4096")
        self.masks(0x00030003, 0x03000300)
        e(f"""v_lshl_add_u32 v{T}, v0, 1, s{S_PRIV}
        v_lshrrev_b32 v{T+1}, 4, v0
        v_lshl_add_u32 v{T+1}, v{T+1}, 5, s{S_PRIV}""")
        e.wait(st)
        e(f"v_mov_b32 v{U+2}, v{U}")
        self.row_red("v_max_f32", U + 2, (1, 2, 4, 8)); self.swap_red("v_max_f32", U + 2, TMP, (16,))
        e(f"v_sub_f32 v{U}, v{U}, v{U+2}\nv_exp_f32 v{U}, v{U}\nv_mul_f32 v{U+1}, v{U}, v{U+1}")
        self.row_red("v_add_f32", U + 1, (1, 2, 4, 8)); self.swap_red("v_add_f32", U + 1, TMP, (16,))
        e(f"""v_rcp_f32 v{U+1}, v{U+1}
        v_mul_f32 v{U}, v{U}, v{U+1}
        v_cvt_pk_bf16_f32 v{U}, v{U}, v{U}
        ds_write_b16 v{T}, v{U}
        s_waitcnt lgkmcnt(0)
        ds_read_b128 {vr(XR,4)}, v{T+1}
        ds_read_b128 {vr(XR+4,4)}, v{T+1} offset:16
        v_lshrrev_b32 v{T}, 5, v0
        v_lshlrev_b32 v{T}, 8, v{T}
        v_and_b32 v{T+1}, 15, v0
        v_lshl_add_u32 v{T}, v{T+1}, 2, v{T}
        v_bfe_u32 v{T+1}, v0, 4, 1
        v_lshl_add_u32 v{T}, v{T+1}, 1, v{T}
        v_add_u32 v{T}, s{S_PRIV}, v{T}
        v_bfe_u32 v{T+1}, v0, 3, 1
        v_lshlrev_b32 v{T+1}, 8, v{T+1}
        v_lshrrev_b32 v{T+2}, 4, v0
        v_lshl_add_u32 v{T+1}, v{T+2}, 6, v{T+1}
        v_bfe_u32 v{T+2}, v0, 2, 1
        v_lshl_add_u32 v{T+1}, v{T+2}, 5, v{T+1}
        v_add_u32 v{T+1}, s{S_PRIV}, v{T+1}
        s_waitcnt lgkmcnt(0)""")
        self.rws256(16, XR, G, AC0, BLO, BHI, PA, g)
        e(f"""v_cvt_pk_bf16_f32 v{U}, v{AC0}, v{AC0+1}
        v_cvt_pk_bf16_f32 v{U+1}, v{AC0+2}, v{AC0+3}
        ds_write_b16 v{T}, v{U} offset:256
        ds_write_b16_d16_hi v{T}, v{U} offset:320
        ds_write_b16 v{T}, v{U+1} offset:384
        ds_write_b16_d16_hi v{T}, v{U+1} offset:448
        s_waitcnt lgkmcnt(0)
        ds_read_b128 {vr(XR,4)}, v{T+1} offset:256
        ds_read_b128 {vr(XR+4,4)}, v{T+1} offset:272""")
        for z in (0, 1, 4, 5, 8, 9): e(f"v_mov_b32 v{PA+z}, 0")
        e(f"""v_bfe_u32 v{T}, v0, 3, 1
        v_lshlrev_b32 v{T}, 9, v{T}
        v_lshrrev_b32 v{T+1}, 5, v0
        v_lshl_add_u32 v{T}, v{T+1}, 8, v{T}
        v_and_b32 v{T+1}, 7, v0
        v_lshl_add_u32 v{T}, v{T+1}, 5, v{T}
        s_lshl_b32 s10, s{S_LW}, 10
        v_add_u32 v{T}, s10, v{T}
        s_waitcnt lgkmcnt(0)""")
        self.rws128(16, XR, WUV, AC0, AC1, SEL, PA)
        RED = 16384
        e(f"""s_mov_b32 exec_lo, 0xff0000ff
        s_mov_b32 exec_hi, 0xff0000ff
        ds_write_b128 v{T}, {vr(AC0,4)} offset:{RED}
        ds_write_b128 v{T}, {vr(AC1,4)} offset:{RED+16}
        s_mov_b64 exec, -1
        v_lshlrev_b32 v{T}, 3, v0
        s_waitcnt lgkmcnt(0)
        s_barrier""")
        for i in range(8): e(f"ds_read_b64 {vr(U+2*i,2)}, v{T} offset:{RED+512*i}")
        self.masks(0x03030303, 0x03030303)
        A_CW, A_CR, A_MB = T + 3, T + 4, T + 5
        e(f"""v_lshl_add_u32 v{A_CW}, v0, 2, s{S_PRIV}
        v_bfe_u32 v{A_CR}, v0, 3, 1
        v_lshlrev_b32 v{A_CR}, 7, v{A_CR}
        v_lshrrev_b32 v{T+1}, 4, v0
        v_lshl_add_u32 v{A_CR}, v{T+1}, 5, v{A_CR}
        v_add_u32 v{A_CR}, s{S_PRIV}, v{A_CR}
        v_lshrrev_b32 v{A_MB}, 5, v0
        v_lshlrev_b32 v{A_MB}, 19, v{A_MB}
        v_bfe_u32 v{T+1}, v0, 1, 3
        v_lshl_add_u32 v{A_MB}, v{T+1}, 14, v{A_MB}
        v_and_b32 v{T+1}, 1, v0
        v_lshl_add_u32 v{A_MB}, v{T+1}, 5, v{A_MB}
        v_bfe_u32 v{T+1}, v0, 4, 1
        v_lshl_add_u32 v{A_MB}, v{T+1}, 4, v{A_MB}
        s_mov_b32 s{S_PART}, 0
        s_waitcnt lgkmcnt(0)""")
        for st_ in (1, 2, 4):
            for i in range(0, 8, 2 * st_):
                for r in range(2): e(f"v_add_f32 v{U+2*i+r}, v{U+2*i+r}, v{U+2*(i+st_)+r}")
        self.stamp(5)
        e(f"""L_CORE:
        v_cvt_pk_bf16_f32 v{U}, v{U}, v{U+1}
        ds_write_b32 v{A_CW}, v{U} offset:1024
        s_lshl_b32 s10, s{S_LW}, 17
        s_lshl_b32 s11, s4, 6
        s_add_u32 s10, s10, s11
        s_lshl_b32 s11, s{S_PART}, 12
        s_add_u32 s10, s10, s11
        s_add_u32 s10, s10, {MB+MB_2}
        s_waitcnt lgkmcnt(0)
        ds_read_b128 {vr(XR,4)}, v{A_CR} offset:1024
        ds_read_b128 {vr(XR+4,4)}, v{A_CR} offset:1040
        s_waitcnt lgkmcnt(0)""")
        self.rws256(16, XR, W, AC0, BLO, BHI, PA)
        for r in range(4): e(f"v_min_u32 v{AC0+r}, -2, v{AC0+r}")
        e(f"buffer_store_dwordx4 {vr(AC0,4)}, v{A_MB}, {srd(SRD_WS)}, s10 offen sc1")
        e(f"s_cmp_eq_u32 s{S_PART}, 1\ns_cbranch_scc1 L_FIN")
        wload(SRD_D)
        e("L_FIN:")
        e(f"s_cmp_lg_u32 s{S_LW}, 0\ns_cbranch_scc1 L_FINDONE")
        e(f"s_lshl_b32 s11, s{S_PART}, 12\ns_add_u32 s10, s{S_MBJ}, s11\ns_add_u32 s10, s10, {MB_2}")
        top, done = e.lab("L_fspin"), e.lab("L_fok")
        e(f"{top}:")
        for i in range(4): e(f"buffer_load_dwordx4 {vr(G+4*i,4)}, v{VL}, {srd(SRD_WS)}, s10 offen offset:{1024*i} sc1")
        e("s_waitcnt vmcnt(0)")
        e(f"v_max3_u32 v{T}, v{G}, v{G+1}, v{G+2}")
        for r in range(3, 15, 2): e(f"v_max3_u32 v{T}, v{T}, v{G+r}, v{G+r+1}")
        e(f"v_max_u32 v{T}, v{T}, v{G+15}\nv_cmp_eq_u32 vcc, -1, v{T}\ns_cbranch_vccz {done}")
        self.spin_tail(top, done)
        for r in range(4): e(f"v_add_f32 v{G+r}, v{G+r}, v{G+4+r}\nv_add_f32 v{G+8+r}, v{G+8+r}, v{G+12+r}")
        for r in range(4): e(f"v_add_f32 v{G+r}, v{G+r}, v{G+8+r}")
        for rot in (4, 8):
            for r in range(4): self.row_red("v_add_f32", G + r, (rot,))
        for s in (16, 32):
            for r in range(4): e(f"v_mov_b32 v{G+4+r}, v{G+r}")
            for r in range(4): e(f"v_permlane{s}_swap_b32 v{G+r}, v{G+4+r}")
            for r in range(4): e(f"v_add_f32 v{G+r}, v{G+r}, v{G+4+r}")
        e(f"""v_cvt_pk_bf16_f32 v{G}, v{G}, v{G+1}
        v_cvt_pk_bf16_f32 v{G+1}, v{G+2}, v{G+3}
        v_lshlrev_b32 v{T}, 3, v0
        s_lshr_b32 s10, s4, 5
        s_lshl_b32 s10, s10, 11
        s_and_b32 s11, s4, 31
        s_lshl_b32 s11, s11, 5
        s_add_u32 s10, s10, s11
        s_lshl_b32 s11, s{S_PART}, 10
        s_add_u32 s10, s10, s11
        s_mov_b64 exec, 15
        buffer_store_dwordx2 {vr(G,2)}, v{T}, {srd(SRD_E)}, s10 offen
        s_mov_b64 exec, -1
        L_FINDONE:
        s_cmp_eq_u32 s{S_PART}, 1
        s_cbranch_scc1 L_ALEND""")
        self.stamp(6)
        e(f"""s_mov_b32 s{S_PART}, 1
        v_lshlrev_b32 v{T}, 3, v0
        s_add_u32 s10, s{S_MBJ}, {MB_ST}
        s_mov_b32 s12, 0x0fff0fff
        s_mov_b32 s13, 0""")
        top, done = e.lab("L_sspin"), e.lab("L_sok")
        e(f"""{top}:
        buffer_load_dwordx2 {vr(U,2)}, v{T}, {srd(SRD_WS)}, s10 offen sc1
        s_waitcnt vmcnt(0)
        v_max_u32 v{U+2}, v{U}, v{U+1}
        v_cmp_eq_u32 vcc, -1, v{U+2}
        s_and_b64 vcc, vcc, s[12:13]
        s_cbranch_vccz {done}""")
        self.spin_tail(top, done)
        e(f"""v_mov_b32 v{U+2}, 0xff800000
        v_cndmask_b32 v{U}, v{U+2}, v{U}, s[12:13]
        v_cndmask_b32 v{U+1}, 0, v{U+1}, s[12:13]
        v_mov_b32 v{U+2}, v{U}""")
        self.row_red("v_max_f32", U + 2, (1, 2, 4, 8))
        e(f"v_sub_f32 v{U}, v{U}, v{U+2}\nv_exp_f32 v{U}, v{U}\nv_mul_f32 v{U+1}, v{U}, v{U+1}")
        self.row_red("v_add_f32", U + 1, (1, 2, 4, 8))
        WG = 160
        e(f"""v_rcp_f32 v{U+1}, v{U+1}
        v_mul_f32 v{U}, v{U}, v{U+1}
        ds_write_b32 v{A_CW}, v{U} offset:1536
        v_lshrrev_b32 v{T}, 5, v0
        v_lshl_add_u32 v{T+1}, v{T}, 6, s{S_PRIV}
        v_mul_u32_u24 v{T}, 3072, v{T}
        v_and_b32 v{T+2}, 31, v0
        v_lshl_add_u32 v{T}, v{T+2}, 3, v{T}
        s_waitcnt lgkmcnt(0)""")
        for q in range(3): e(f"ds_read_b128 {vr(WG+4*q,4)}, v{T+1} offset:{1536+16*q}")
        top, done = e.lab("L_ospin"), e.lab("L_ook")
        e(f"{top}:")
        for sp in range(12): e(f"buffer_load_dwordx2 {vr(G+2*sp,2)}, v{T}, {srd(SRD_WS)}, s{S_MBJ} offen offset:{256*sp} sc1")
        e("s_waitcnt vmcnt(0) lgkmcnt(0)")
        e(f"v_max3_u32 v{T+1}, v{G}, v{G+1}, v{G+2}\nv_max3_u32 v{T+2}, v{G+3}, v{G+4}, v{G+5}")
        for r in range(6, 22, 4): e(f"v_max3_u32 v{T+1}, v{T+1}, v{G+r}, v{G+r+1}\nv_max3_u32 v{T+2}, v{T+2}, v{G+r+2}, v{G+r+3}")
        e(f"v_max3_u32 v{T+1}, v{T+1}, v{G+22}, v{G+23}\nv_max_u32 v{T+1}, v{T+1}, v{T+2}")
        e(f"v_cmp_eq_u32 vcc, -1, v{T+1}\ns_cbranch_vccz {done}")
        self.spin_tail(top, done)
        self.stamp(7)
        e(f"v_mul_f32 v{U}, v{G}, v{WG}\nv_mul_f32 v{U+1}, v{G+1}, v{WG}\nv_mul_f32 v{U+2}, v{G+2}, v{WG+1}\nv_mul_f32 v{U+3}, v{G+3}, v{WG+1}")
        for sp in range(2, 12):
            o = 2 * (sp & 1)
            e(f"v_fmac_f32 v{U+o}, v{G+2*sp}, v{WG+sp}\nv_fmac_f32 v{U+o+1}, v{G+2*sp+1}, v{WG+sp}")
        e(f"v_add_f32 v{U}, v{U}, v{U+2}\nv_add_f32 v{U+1}, v{U+1}, v{U+3}\ns_branch L_CORE")
        e("L_ALEND:")
        if self.stamps:
            e(f"s_memrealtime s[{ST0+2}:{ST0+3}]")
        self.stamp_out(16)
        e("s_endpgm")

    def build(self):
        e = self.e
        e(f"""s_cmp_ge_u32 s2, 256
        s_cbranch_scc1 L_END
        s_load_dwordx16 s[16:31], s[0:1], 0
        s_load_dwordx8 s[32:39], s[0:1], 64
        s_load_dwordx4 s[40:43], s[0:1], 96
        v_lshrrev_b32 v1, 6, v0
        v_and_b32 v0, 63, v0
        v_readfirstlane_b32 s3, v1
        s_cmp_lt_u32 s2, 64
        s_cbranch_scc1 L_PB
        s_cmp_ge_u32 s2, 128
        s_cbranch_scc1 L_B
        s_sub_u32 s4, s2, 64
        s_cmp_lt_u32 s3, 4
        s_cbranch_scc1 L_AC""")
        self.a_loader()
        self.bside("PB")
        self.bside("B")
        self.a_compute()
        e("L_END:\ns_endpgm")
        body, npad = fix_hazards(e.L)
        out = [HEADER.rstrip(), "; @launch grid=(256,1,1) block=(512,1,1) lds=163840",
               '.amdgcn_target "amdgcn-amd-amdhsa--gfx950"', ".text", f".globl {NAME}_kernel", ".p2align 8",
               f".type {NAME}_kernel,@function", f"{NAME}_kernel:"]
        out += [("" if l.endswith(":") else "    ") + l for l in body]
        out += ['.section .rodata,"a"', ".p2align 6", f".amdhsa_kernel {NAME}_kernel",
                "  .amdhsa_next_free_vgpr 256", "  .amdhsa_next_free_sgpr 102", "  .amdhsa_accum_offset 256",
                "  .amdhsa_group_segment_fixed_size 0", "  .amdhsa_kernarg_size 112", "  .amdhsa_user_sgpr_count 2",
                "  .amdhsa_user_sgpr_kernarg_segment_ptr 1", "  .amdhsa_system_sgpr_workgroup_id_x 1",
                ".end_amdhsa_kernel"]
        return "\n".join(out) + "\n", npad

if __name__ == "__main__":
    import argparse
    ap = argparse.ArgumentParser()
    ap.add_argument("out"); ap.add_argument("--stamps", action="store_true"); ap.add_argument("--win", type=int, default=12)
    a = ap.parse_args()
    s, npad = Gen(stamps=a.stamps, win=a.win).build()
    open(a.out, "w").write(s)
    print("wrote", a.out, "lines", s.count("\n"), "pads", npad)
```

```python
import re

TRANS = ("v_exp_f32", "v_log_f32", "v_rcp_f32", "v_rsq_f32", "v_sqrt_f32", "v_sin_f32", "v_cos_f32")

def _regs(tok):
    tok = tok.strip().lstrip("-")
    m = re.fullmatch(r"abs\((.*)\)", tok)
    if m: tok = m.group(1)
    m = re.fullmatch(r"([vsa])(\d+)", tok)
    if m: return [(m.group(1), int(m.group(2)))]
    m = re.fullmatch(r"([vsa])\[(\d+):(\d+)\]", tok)
    if m: return [(m.group(1), i) for i in range(int(m.group(2)), int(m.group(3)) + 1)]
    if tok == "vcc": return [("s", 106), ("s", 107)]
    if tok == "exec": return [("s", 126), ("s", 127)]
    if tok == "m0": return [("s", 124)]
    return []

class Ins:
    def __init__(self, text):
        self.text = text
        t = text.split(";")[0].strip()
        self.label = t[:-1] if t.endswith(":") else None
        self.op = t.split()[0] if t and not self.label else ""
        rest = t[len(self.op):].strip() if self.op else ""
        toks = [x.strip() for x in re.split(r",(?![^\[]*\])", rest)] if rest else []
        if toks:
            last = toks[-1].split()
            self.mods = last[1:]
            toks[-1] = last[0] if last else ""
        else:
            self.mods = []
        self.toks = toks
        op = self.op
        self.w, self.r = [], []
        self.kind = "other"
        self.states = 1
        R = [_regs(x) for x in toks]
        flat = lambda l: [x for y in l for x in y]
        if op == "s_nop":
            self.states = int(toks[0], 0) + 1
        elif op.startswith("v_mfma"):
            self.kind = "mfma"; self.passes = 8 if "32x32" in op else 4
            self.w = R[0]; self.ra = R[1] + R[2]; self.rc = R[3]; self.r = self.ra + self.rc
        elif op.startswith("v_permlane"):
            self.kind = "perml"; self.w = R[0] + R[1]; self.r = R[0] + R[1]
        elif op.startswith("v_readfirstlane") or op.startswith("v_readlane"):
            self.kind = "rdlane"; self.w = R[0]; self.r = flat(R[1:])
        elif op.startswith("v_cmp"):
            self.kind = "valu"; self.w = R[0]; self.r = flat(R[1:])
        elif op.startswith("v_"):
            self.kind = "dpp" if ("_dpp" in op) else ("trans" if op.replace("_e32", "").replace("_e64", "") in TRANS else "valu")
            self.w = R[0]; self.r = flat(R[1:])
            if op.startswith(("v_fmac", "v_dot2c")) or self.kind == "dpp": self.r = self.r + R[0]
            if op.startswith("v_cndmask") and len(toks) == 3: self.r += _regs("vcc")
        elif op.startswith("buffer_") or op.startswith("global_"):
            if "lds" in self.mods:
                self.kind = "vmem"; self.r = flat(R) + _regs("m0"); self.lds = True
            elif "_load" in op:
                self.kind = "vmem"; self.w = R[0]; self.r = flat(R[1:])
            else:
                self.kind = "vmem"; self.r = flat(R)
                if op.endswith(("x3", "x4")):
                    self.wide = R[0] if op.startswith("buffer_") else R[1]
        elif op.startswith("ds_"):
            self.kind = "ds"
            if "read" in op or "permute" in op or "swizzle" in op:
                self.w = R[0]; self.r = flat(R[1:])
            else:
                self.r = flat(R)
        elif op.startswith("s_"):
            self.kind = "salu"
            if op.startswith(("s_cmp", "s_cbranch", "s_branch", "s_waitcnt", "s_barrier", "s_endpgm", "s_sleep", "s_setprio")):
                self.r = flat(R)
            else:
                self.w = R[0] if R else []; self.r = flat(R[1:])
                if "saveexec" in op: self.w = self.w + _regs("exec")
        self.isvalu = self.kind in ("valu", "dpp", "trans", "perml", "rdlane")

def need(p, c):
    n = 0
    pw = set(p.w); cr = set(c.r); cw = set(c.w)
    pv = {x for x in pw if x[0] in "va"}; ps = {x for x in pw if x[0] == "s"}
    if p.isvalu:
        if c.kind == "mfma" and pv & cr: n = max(n, 2)
        if c.kind in ("dpp", "perml") and pv & cr: n = max(n, 2)
        if c.kind == "rdlane" and pv & cr: n = max(n, 1)
        if p.kind == "trans" and c.isvalu and c.kind != "trans" and pv & (cr | cw): n = max(n, 1)
        if p.kind == "trans" and c.kind == "trans" and pv & cr: n = max(n, 1)
        if ps & cr:
            if c.kind == "vmem": n = max(n, 5)
            elif c.isvalu or c.kind == "mfma": n = max(n, 4 if c.kind == "rdlane" else 2)
            elif c.kind == "salu": n = max(n, 1)
    if p.kind == "mfma":
        big = 12 if p.passes == 8 else 8
        if c.kind == "mfma":
            if pw & set(c.ra): n = max(n, big)
            if pw & set(c.rc) and not (p.w == c.rc and p.passes == c.passes): n = max(n, 10 if p.passes == 8 else 6)
            if pw & cw and not (p.w == c.w and p.passes == c.passes): n = max(n, 10 if p.passes == 8 else 6)
        elif (c.isvalu or c.kind in ("vmem", "ds")) and pw & (cr | cw): n = max(n, big)
        if c.isvalu and set(p.rc) & cw: n = max(n, 7 if p.passes == 8 else 3)
    if getattr(p, "wide", None) and (c.isvalu or c.kind in ("ds", "vmem", "mfma")) and set(p.wide) & cw: n = max(n, 2)
    if p.kind == "salu" and ("s", 124) in pw and getattr(c, "lds", False): n = max(n, 1)
    return n

def fix_hazards(lines):
    ins = [Ins(l) for l in lines]
    W = 14
    def merge(a, b):
        d = {}
        for (p, age) in a + b:
            k = id(p); d[k] = (p, min(age, d[k][1])) if k in d else (p, age)
        return list(d.values())
    incoming = {}
    pads = {}
    for _ in range(3):
        hist = []
        dead = False
        for i, c in enumerate(ins):
            if c.label:
                hist = merge([] if dead else hist, incoming.get(c.label, [])); dead = False
                continue
            if not c.op or c.op.startswith("."): continue
            add = pads.get(i, 0)
            req = max([need(p, c) - age - add for (p, age) in hist] + [0])
            if req > 0:
                pads[i] = add + req; add += req
            hist = [(p, age + add + c.states) for (p, age) in hist if age + add + c.states < W]
            hist.append((c, 0))
            if c.op.startswith(("s_cbranch", "s_branch")):
                tgt = c.toks[0]
                incoming[tgt] = merge(incoming.get(tgt, []), hist)
                if c.op == "s_branch": dead = True
            if c.op == "s_endpgm": dead = True
    out = []
    npad = 0
    for i, c in enumerate(ins):
        if pads.get(i, 0):
            out.append("s_nop %d" % (pads[i] - 1)); npad += 1
        out.append(c.text)
    return out, npad

class Emit:
    def __init__(self):
        self.L = []
        self.vm = 0
        self.uid = 0
        self.lg = 0
        self.lgdone = 0
    def __call__(self, s):
        for x in s.strip().split("\n"):
            x = x.strip()
            if x: self.L.append(x)
    def mem(self, s):
        self(s); self.vm += 1; return self.vm
    def wait(self, tag):
        n = self.vm - tag
        assert 0 <= n <= 63, n
        self(f"s_waitcnt vmcnt({n})")
    def ds_reset(self):
        self.lg = 0; self.lgdone = 0
    def ds(self, s):
        if self.lg - self.lgdone >= 15: self.dswait(self.lg - 12)
        self(s); self.lg += 1; return self.lg
    def dswait(self, tag):
        if tag <= self.lgdone: return
        self(f"s_waitcnt lgkmcnt({self.lg - tag})"); self.lgdone = tag
    def lab(self, base):
        self.uid += 1; return f"{base}_{self.uid}"
```

```python
import sys, math, struct, argparse
from asmlib import Emit, fix_hazards

NAME = "concat_heads__compressed_kv_cla__gqa_block_cached__decode"
HEADER = open("cdna_kernels/%s.s.ref" % NAME).read().split("; Override launch")[0]

QBP = 0x000000
QAP = 0x020000
AST = 0x040000
FB  = 0x050000
EPOCH = 0x060000
FA  = 0x080000
MB  = 0x100000
MB_ST = 6144
MB_2  = 8192
AP  = 0x200000
XQ  = 0x400000
WS_USED = 0x500000
STAMPS = 0x800000

SCALE = math.log2(math.e) / math.sqrt(128.0)
def f2u(x): return struct.unpack("<I", struct.pack("<f", x))[0]

SRD_WS, SRD_A, SRD_B, SRD_C, SRD_D, SRD_E, SRD_F, SRD_G = 44, 48, 52, 56, 60, 64, 68, 96
P_AX, P_CKV, P_AWQ, P_WUK, P_WUV, P_AWO, P_BX, P_BK, P_BV, P_BWQ, P_BWO, P_OUT, P_DBG, P_WS = range(16, 44, 2)
S_SC, S_SPIN = 15, 14
MASK0 = 72
TAG = 94
ST0 = 16
SPIN = 20000
X = 131072

def srd(n): return f"s[{n}:{n+3}]"
def vr(a, n): return f"v[{a}:{a+n-1}]" if n > 1 else f"v{a}"

DEFAULTS = dict(np=6, uv0=16, wo_at=0, pf=4, pfw=0, pre_q=0, uv1=8, a0=3, t2w=0, wq1=2, kq1=4, sleep=0, pre_p=0, w1=2, kf_p=0, kf_q=12, wq0=8, wk=8, wt=10, wv=8)

class Gen:
    def __init__(self, opt, pts, x):
        self.o = opt; self.alt = pts; self.x = x; self.role = None
        self.stamps = bool(pts)
        self.e = Emit()

    def mk_srd(self, d, p, size):
        self.e(f"s_mov_b32 s{d}, s{p}\ns_mov_b32 s{d+1}, s{p+1}\ns_mov_b32 s{d+2}, {size:#x}\ns_mov_b32 s{d+3}, 0x20000")

    def pt(self, name, role=None):
        sel = self.alt.get(role or self.role)
        if sel and name in sel:
            i = sel.index(name); self.e(f"s_memrealtime s[{80+2*i}:{81+2*i}]" if i < 7 else "s_memrealtime s[100:101]")

    def stamp_out(self, t):
        if not self.stamps: return
        e = self.e
        e("s_waitcnt lgkmcnt(0)\ns_mov_b64 exec, 1")
        e(f"s_lshl_b32 s4, s2, 3\ns_add_u32 s4, s4, s3\ns_lshl_b32 s4, s4, 6\ns_add_u32 s4, s4, {STAMPS}")
        e(f"s_mov_b32 s{SRD_WS+2}, 0x1000000")
        regs = list(range(80, 94)) + [100, 101]
        for i in range(4):
            for k in range(4): e(f"v_mov_b32 v{t+k}, s{regs[4*i+k]}")
            e(f"buffer_store_dwordx4 v[{t}:{t+3}], off, {srd(SRD_WS)}, s4 offset:{16*i}")
            e("s_nop 2")

    def selectors(self, sel, base_lo, base_hi, tmp):
        self.e(f"""v_and_b32 v{tmp}, 1, v0
        v_cmp_eq_u32 vcc, 1, v{tmp}
        v_mov_b32 v{base_lo}, 0x0c0c0100
        v_mov_b32 v{tmp}, 0x01000c0c
        v_cndmask_b32 v{base_lo}, v{base_lo}, v{tmp}, vcc
        v_add_u32 v{base_hi}, 0x0202, v{base_lo}
        v_mov_b32 v{tmp}, 0x03020c0c
        v_cndmask_b32 v{base_hi}, v{base_hi}, v{tmp}, vcc
        v_and_b32 v{tmp}, 2, v0
        v_cmp_eq_u32 vcc, 0, v{tmp}
        v_mov_b32 v{tmp}, 0x0c0c0c0c
        v_cndmask_b32 v{sel}, v{tmp}, v{base_lo}, vcc
        v_cndmask_b32 v{sel+1}, v{base_lo}, v{tmp}, vcc
        v_cndmask_b32 v{sel+2}, v{tmp}, v{base_hi}, vcc
        v_cndmask_b32 v{sel+3}, v{base_hi}, v{tmp}, vcc""")

    def masks(self, lo, hi):
        for j in range(4):
            self.e(f"s_mov_b32 s{MASK0+2*j}, {(lo << (2*j)):#x}\ns_mov_b32 s{MASK0+2*j+1}, {(hi << (2*j)):#x}")

    def rws256(self, nload, x, w, acc, base_lo, base_hi, t0, waits=None):
        e = self.e
        for t in range(nload):
            a = t0 + 2 + 4 * (t & 1)
            e(f"v_perm_b32 v{t0}, v{x+(t>>1)}, v{x+(t>>1)}, v{base_hi if t & 1 else base_lo}")
            for j in range(4): e(f"v_cndmask_b32 v{a+j}, 0, v{t0}, s[{MASK0+2*j}:{MASK0+2*j+1}]")
            if waits: e.wait(waits[t])
            e(f"v_mfma_f32_16x16x32_bf16 {vr(acc,4)}, {vr(a,4)}, {vr(w+4*t,4)}, {vr(acc,4) if t else 0}")

    def rws128(self, nload, x, w, acc0, acc1, sel, pa):
        e = self.e
        for t in range(nload):
            p = pa + 2 + 4 * (t & 1)
            sa, sb = (sel + 2, sel + 3) if t & 1 else (sel, sel + 1)
            e(f"v_perm_b32 v{p}, v{x+(t>>1)}, v{x+(t>>1)}, v{sa}\nv_perm_b32 v{p+1}, v{x+(t>>1)}, v{x+(t>>1)}, v{sb}")
            e(f"v_mfma_f32_16x16x32_bf16 {vr(acc0,4)}, {vr(p,4)}, {vr(w+4*t,4)}, {vr(acc0,4) if t else 0}")
            e(f"v_mfma_f32_16x16x32_bf16 {vr(acc1,4)}, {vr(p-2,4)}, {vr(w+4*t,4)}, {vr(acc1,4) if t else 0}")

    def quad_sum(self, ds):
        for r in range(4):
            for d in ds:
                q = f"quad_perm:[{r},{r},{r},{r}] row_mask:0xf bank_mask:0xf"
                self.e(f"v_mov_b32_dpp v{d}, v{d} {q}" if r == 0 else f"v_add_f32_dpp v{d}, v{d+r}, v{d} {q}")

    def swap_red(self, op, x, t, which):
        for s in which:
            self.e(f"v_mov_b32 v{t}, v{x}\nv_permlane{s}_swap_b32 v{x}, v{t}\n{op} v{x}, v{x}, v{t}")

    def row_red(self, op, x, rots):
        for r in rots:
            self.e(f"{op}_dpp v{x}, v{x}, v{x} row_ror:{r} row_mask:0xf bank_mask:0xf")

    def tree(self, op, base, n, width):
        st = 1
        while st < n:
            for i in range(0, n, 2 * st):
                for r in range(width): self.e(f"{op} v{base+width*i+r}, v{base+width*i+r}, v{base+width*(i+st)+r}")
            st *= 2

    def max3_chain(self, op, dst, regs):
        regs = list(regs)
        self.e(f"v_max3_{op} v{dst}, v{regs[0]}, v{regs[1]}, v{regs[2]}")
        regs = regs[3:]
        while len(regs) >= 2:
            self.e(f"v_max3_{op} v{dst}, v{dst}, v{regs[0]}, v{regs[1]}"); regs = regs[2:]
        if regs: self.e(f"v_max_{op} v{dst}, v{dst}, v{regs[0]}")

    def spin_tail(self, top, done, sleep=0):
        if sleep: self.e(f"s_sleep {sleep}")
        self.e(f"s_sub_u32 s{S_SPIN}, s{S_SPIN}, 1\ns_cbranch_scc0 {top}\n{done}:")

    def lds_wait(self, addr, t):
        e = self.e
        top, done = e.lab("L_spin"), e.lab("L_ok")
        e(f"""v_mov_b32 v{t}, {addr}
        s_mov_b32 s{S_SPIN}, {SPIN * 20}
        {top}:
        ds_read_b32 v{t+1}, v{t}
        s_waitcnt lgkmcnt(0)
        v_cmp_ne_u32 vcc, 4, v{t+1}
        s_cbranch_vccz {done}""")
        self.spin_tail(top, done, 2)

    def lds_inc(self, addr, t):
        self.e(f"""v_mov_b32 v{t}, {addr}
        v_mov_b32 v{t+1}, 1
        s_mov_b64 exec, 1
        ds_add_u32 v{t}, v{t+1}
        s_mov_b64 exec, -1""")

    def only_wave(self, w):
        skip = self.e.lab("L_skip")
        self.e(f"s_cmp_lg_u32 s3, {w}\ns_cbranch_scc1 {skip}")
        return skip

    def epoch_load(self):
        self.e(f"s_load_dword s{TAG}, s[{P_WS}:{P_WS+1}], {EPOCH:#x}")

    def epoch_tag(self):
        self.e(f"s_waitcnt lgkmcnt(0)\ns_add_u32 s{TAG}, s{TAG}, 1\ns_xor_b32 s{TAG+1}, s{TAG}, 0x5bd1e995")

    def post_b(self, sg, sslot, t):
        self.e(f"""v_cmp_lt_u32 vcc, 11, v0
        v_add_u32 v{t+3}, 84, v0
        v_cndmask_b32 v{t+2}, v0, v{t+3}, vcc
        v_lshlrev_b32 v{t+2}, 8, v{t+2}
        v_mov_b32 v{t}, s{TAG}
        v_mov_b32 v{t+1}, s{TAG+1}
        s_mul_i32 s10, s{sg}, 3072
        s_lshl_b32 s11, s{sslot}, 3
        s_add_u32 s10, s10, s11
        s_add_u32 s10, s10, {FB}
        s_mov_b64 exec, 0xffffff
        buffer_store_dwordx2 {vr(t,2)}, v{t+2}, {srd(SRD_WS)}, s10 offen sc1
        s_mov_b64 exec, -1""")

    def post_a(self, sid, off, t):
        self.e(f"""v_lshlrev_b32 v{t+2}, 11, v0
        v_mov_b32 v{t}, s{TAG}
        v_mov_b32 v{t+1}, s{TAG+1}
        s_lshl_b32 s10, s{sid}, 3
        s_add_u32 s10, s10, {FA+off}
        buffer_store_dwordx2 {vr(t,2)}, v{t+2}, {srd(SRD_WS)}, s10 offen sc1""")

    def poll_a(self, off, nld, t):
        e = self.e
        top, done = e.lab("L_spin"), e.lab("L_ok")
        e(f"""s_lshl_b32 s10, s4, 11
        s_add_u32 s10, s10, {FA+off}
        v_lshlrev_b32 v{t+4}, 3, v0
        {top}:""")
        for i in range(nld): e(f"buffer_load_dwordx2 {vr(t+2*i,2)}, v{t+4}, {srd(SRD_WS)}, s10 offen offset:{512*i} sc1")
        e(f"s_waitcnt vmcnt(0)\nv_cmp_ne_u64 vcc, s[{TAG}:{TAG+1}], {vr(t,2)}")
        if nld == 2: e(f"v_cmp_ne_u64 s[12:13], s[{TAG}:{TAG+1}], {vr(t+2,2)}\ns_or_b64 vcc, vcc, s[12:13]")
        e(f"s_cbranch_vccz {done}")
        self.spin_tail(top, done, self.o["sleep"])

    def bside(self, kind):
        e = self.e; e.vm = 0; o = self.o
        n = o["np"] if kind == "P" else 16 - 2 * o["np"]
        VK, VL, TMP, SEL, BLO, BHI, QF, AC0, AC1, LS, MX = 1, 2, 3, 4, 8, 9, 10, 14, 18, 22, 23
        T = 24; D0 = 32; KR = 36; VR = 132; PA = 228; U = 246
        L_T1, L_Q, L_MAX, L_L, L_RED, L_T2, L_QA = 0, 8192, 9216, 9344, 16384, 32768, 40960
        S_KV, S_VV, S_G, S_B, S_SP = 5, 6, 7, 8, 9
        e(f"L_{kind}:")
        self.role = kind
        if "no" + kind in self.x: e("s_endpgm")
        self.pt("start")
        e(f"""v_and_b32 v{T}, 3, v0
        v_lshrrev_b32 v{TMP}, 4, v0
        v_lshlrev_b32 v{T+1}, 6, v{TMP}
        v_lshl_add_u32 v{T+1}, v{T}, 4, v{T+1}
        v_bfe_u32 v{T}, v0, 2, 2
        v_lshl_add_u32 v{VK}, v{T}, 8, v{T+1}
        v_lshlrev_b32 v{VL}, 4, v0""")
        if kind == "P":
            e(f"""v_lshl_add_u32 v{T+6}, v{T}, 15, v{T+1}
            v_and_b32 v{T+4}, 15, v0
            v_lshlrev_b32 v{T+4}, 4, v{T+4}
            v_lshl_add_u32 v{T+4}, v{TMP}, 15, v{T+4}
            v_bfe_u32 v{T+5}, v0, 3, 1
            v_lshlrev_b32 v{T+5}, 10, v{T+5}
            v_lshl_add_u32 v{T+5}, v{TMP}, 3, v{T+5}
            s_lshr_b32 s10, s2, 3
            s_and_b32 s{S_SP}, s2, 7
            s_mul_i32 s11, s{S_SP}, {8*n}
            s_mul_i32 s12, s3, {n}
            s_lshr_b32 s13, s2, 2
            s_and_b32 s4, s2, 3""")
        else:
            e(f"""s_sub_u32 s4, s2, 192
            s_lshr_b32 s10, s4, 2
            s_and_b32 s4, s4, 3
            s_add_u32 s{S_SP}, s4, 8
            s_mul_i32 s11, s4, {8*n}
            s_add_u32 s11, s11, {64*o["np"]}
            s_mul_i32 s12, s3, {n}
            v_and_b32 v{T+4}, 15, v0
            v_lshlrev_b32 v{T+4}, 4, v{T+4}
            v_lshl_add_u32 v{T+4}, v{TMP}, 16, v{T+4}
            v_bfe_u32 v{T+5}, v0, 3, 1
            v_lshlrev_b32 v{T+5}, 10, v{T+5}
            v_lshl_add_u32 v{T+5}, v{TMP}, 4, v{T+5}
            s_sub_u32 s13, s2, 192
            s_and_b32 s4, s13, 1
            s_lshr_b32 s13, s13, 1""")
        e(f"""s_and_b32 s{S_G}, s10, 7
        s_lshr_b32 s{S_B}, s10, 3
        s_add_u32 s11, s11, s12
        s_lshl_b32 s11, s11, 12
        s_lshl_b32 s10, s10, 21
        s_add_u32 s{S_KV}, s10, s11
        s_mov_b32 s{S_VV}, s{S_KV}""")
        sh = 7 if kind == "P" else 8
        e(f"""s_lshl_b32 s10, s4, {sh}
        s_lshl_b32 s11, s3, {sh-3}
        s_add_u32 s10, s10, s11
        s_lshl_b32 s11, s10, 1
        s_lshl_b32 s10, s10, 13
        s_lshl_b32 s12, s13, 8
        s_add_u32 s10, s10, s12""")
        e("s_waitcnt lgkmcnt(0)")
        self.epoch_load()
        tags = []
        def issue(upto):
            while len(tags) < min(upto, 8 * n):
                x = len(tags); k = x % (4 * n); j = k & 3
                if x < 4 * n:
                    tags.append(e.mem(f"buffer_load_dwordx4 {vr(KR+4*k,4)}, v{VK}, {srd(SRD_A)}, s{S_KV} offen offset:{1024*j} nt"))
                    if j == 3: e(f"s_add_u32 s{S_KV}, s{S_KV}, 4096")
                else:
                    tags.append(e.mem(f"buffer_load_dwordx4 {vr(VR+4*k,4)}, v{VL}, {srd(SRD_B)}, s{S_VV} offen offset:{1024*j} nt"))
                    if j == 3: e(f"s_add_u32 s{S_VV}, s{S_VV}, 4096")
        def slide(k0, k1, w):
            for k in range(k0, k1):
                e.wait(tags[k]); issue(k + 1 + w)
        self.mk_srd(SRD_WS, P_WS, WS_USED)
        if kind == "P":
            self.mk_srd(SRD_C, P_AX, 2048); self.mk_srd(SRD_D, P_AWQ, 4 << 20)
            skip = self.only_wave(7)
            e(f"""v_lshrrev_b32 v{U+4}, 4, v0
            v_lshlrev_b32 v{U+4}, 15, v{U+4}
            v_and_b32 v{U+5}, 15, v0
            v_lshl_add_u32 v{U+4}, v{U+5}, 4, v{U+4}
            s_lshl_b32 s12, s2, 8
            s_add_u32 s12, s12, {QAP}""")
            for r in range(4): e(f"v_mov_b32 v{U+r}, -1")
            e(f"""s_mov_b32 exec_hi, 0
            buffer_store_dwordx4 {vr(U,4)}, v{U+4}, {srd(SRD_WS)}, s12 offen sc1
            s_mov_b64 exec, -1
            {skip}:""")
            def four(slot, voff, s):
                e("s_mov_b32 s12, s10")
                r = []
                for t in range(4):
                    r.append(e.mem(f"buffer_load_dwordx4 {vr(VR+4*(slot+t),4)}, v{voff}, {srd(s)}, s12 offen nt"))
                    if t < 3: e("s_add_u32 s12, s12, 8192")
                return r
            xa = e.mem(f"buffer_load_dwordx2 {vr(T,2)}, v{T+5}, {srd(SRD_C)}, s11 offen")
            w2 = four(0, T + 4, SRD_D)
            self.mk_srd(SRD_E, P_WUK, 4 << 20)
            if o["t2w"] >= 0: e.wait(w2[o["t2w"]])
            w3 = four(4, T + 6, SRD_E)
        else:
            self.mk_srd(SRD_C, P_BX, 2048); self.mk_srd(SRD_D, P_BWQ, 4 << 20)
            xb = e.mem(f"buffer_load_dwordx4 {vr(T,4)}, v{T+5}, {srd(SRD_C)}, s11 offen")
            w1 = []
            for t in range(8):
                w1.append(e.mem(f"buffer_load_dwordx4 {vr(VR+4*t,4)}, v{T+4}, {srd(SRD_D)}, s10 offen nt"))
                if t < 7: e("s_add_u32 s10, s10, 8192")
            if o["pf"]:
                self.mk_srd(SRD_F, P_CKV, 16 << 20)
                e(f"""s_sub_u32 s10, s2, 192
                s_lshl_b32 s10, s10, 18
                s_lshl_b32 s11, s3, 12
                s_add_u32 s10, s10, s11
                s_add_u32 s10, s10, {262144 - 32768 * o['pf']}""")
                if o["pfw"] >= 0: e.wait(w1[o["pfw"]])
                for t in range(4 * o["pf"]):
                    e.mem(f"buffer_load_dwordx4 {vr(KR+4*t,4)}, v{VL}, {srd(SRD_F)}, s10 offen offset:{1024*(t&3)} nt")
                    if t & 3 == 3: e("s_add_u32 s10, s10, 32768")
        self.mk_srd(SRD_A, P_BK, 32 << 20); self.mk_srd(SRD_B, P_BV, 32 << 20)
        issue(o["pre_p"] if kind == "P" else o["pre_q"])
        e(f"s_mov_b32 s{S_SC}, {f2u(SCALE):#x}\ns_mov_b32 s{S_SPIN}, {SPIN}")
        self.selectors(SEL, BLO, BHI, TMP)
        self.epoch_tag()
        if kind == "P":
            self.masks(0x03030303, 0x03030303)
            skip = self.only_wave(7)
            e(f"s_waitcnt vmcnt({e.vm})")
            self.post_a(2, 0, U)
            e(f"{skip}:")
            e(f"s_lshl_b32 s10, s3, 10\nv_add_u32 v{T+7}, s10, v{VL}")
            e.wait(xa)
            self.rws256(4, T, VR, AC0, BLO, BHI, PA, w2)
            self.pt("t2")
            e(f"ds_write_b128 v{T+7}, {vr(AC0,4)} offset:{L_T2}\ns_waitcnt lgkmcnt(0)\ns_barrier")
            XT = VR + 48
            skip = self.only_wave(0)
            for i in range(8): e(f"ds_read_b128 {vr(XT+4*i,4)}, v{VL} offset:{L_T2+1024*i}")
            e(f"""v_lshrrev_b32 v{U}, 5, v0
            v_lshlrev_b32 v{U}, 10, v{U}
            v_and_b32 v{U+1}, 15, v0
            v_lshl_add_u32 v{U}, v{U+1}, 6, v{U}
            v_bfe_u32 v{U+1}, v0, 4, 1
            v_lshl_add_u32 v{U}, v{U+1}, 5, v{U}
            v_mov_b32 v{U+1}, s{TAG+1}
            s_lshl_b32 s10, s13, 15
            s_lshl_b32 s11, s4, 11
            s_add_u32 s10, s10, s11
            s_add_u32 s10, s10, {XQ}
            s_mov_b32 s11, 0xffffff00
            s_waitcnt lgkmcnt(0)""")
            self.tree("v_add_f32", XT, 8, 4)
            for r in range(4): e(f"v_bfi_b32 v{XT+8+2*r}, s11, v{XT+r}, v{U+1}\nv_mov_b32 v{XT+9+2*r}, s{TAG}")
            for i in range(4):
                e(f"buffer_store_dwordx4 {vr(XT+8,4)}, v{U}, {srd(SRD_WS)}, s10 offen sc1")
                e(f"buffer_store_dwordx4 {vr(XT+12,4)}, v{U}, {srd(SRD_WS)}, s10 offen offset:16 sc1")
                if i < 3: e("s_add_u32 s10, s10, 8192")
            e(f"{skip}:")
            self.pt("xq")
            skip = e.lab("L_skip")
            top, done = e.lab("L_spin"), e.lab("L_ok")
            e(f"""s_cmp_lt_u32 s3, 4
            s_cbranch_scc1 {skip}
            s_lshl_b32 s10, s2, 13
            s_lshl_b32 s11, s3, 9
            s_add_u32 s10, s10, s11
            s_add_u32 s10, s10, {XQ-2048}
            s_add_u32 s11, s10, 4096
            v_lshlrev_b32 v{U}, 3, v0
            v_mov_b32 v{U+1}, 0xff
            s_lshl_b32 s12, s3, 7
            v_lshl_add_u32 v{U+2}, v0, 1, s12
            {top}:""")
            for i in range(4): e(f"buffer_load_dwordx2 {vr(VR+2*i,2)}, v{U}, {srd(SRD_WS)}, s{10+(i>>1)} offen offset:{2048*(i&1)} sc1")
            e("s_waitcnt vmcnt(0)")
            for i in range(4): e(f"v_xor_b32 v{VR+8+i}, s{TAG+1}, v{VR+2*i}\nv_xor_b32 v{VR+1+2*i}, s{TAG}, v{VR+1+2*i}")
            for i in range(4): e(f"v_and_or_b32 v{VR+8+i}, v{VR+8+i}, v{U+1}, v{VR+1+2*i}")
            e(f"""v_or3_b32 v{VR+8}, v{VR+8}, v{VR+9}, v{VR+10}
            v_or_b32 v{VR+8}, v{VR+8}, v{VR+11}
            v_cmp_ne_u32 vcc, 0, v{VR+8}
            s_cbranch_vccz {done}""")
            self.spin_tail(top, done)
            e(f"""v_add_f32 v{VR}, v{VR}, v{VR+2}
            v_add_f32 v{VR+4}, v{VR+4}, v{VR+6}
            v_add_f32 v{VR}, v{VR}, v{VR+4}
            v_cvt_pk_bf16_f32 v{VR}, v{VR}, v{VR}
            ds_write_b16 v{U+2}, v{VR} offset:{L_QA-512}
            {skip}:
            v_bfe_u32 v{U}, v0, 2, 1
            v_lshlrev_b32 v{U+1}, 8, v{U}
            v_and_b32 v{U+2}, 0xf0, v{VK}
            v_add_u32 v{U+1}, v{U+1}, v{U+2}
            v_lshlrev_b32 v{U}, 15, v{U}
            v_lshrrev_b32 v{U+2}, 4, v0
            v_lshl_add_u32 v{U}, v{U+2}, 3, v{U}
            s_lshl_b32 s10, s2, 8
            s_lshl_b32 s11, s3, 5
            s_add_u32 s10, s10, s11
            s_add_u32 s10, s10, {QAP}
            s_waitcnt lgkmcnt(0)
            s_barrier
            ds_read_b128 {vr(QF,4)}, v{U+1} offset:{L_QA}
            s_waitcnt lgkmcnt(0)""")
            self.pt("qa")
            e.wait(w3[3])
            for t in range(4): e(f"v_mfma_f32_16x16x32_bf16 {vr(VR+4*t,4)}, {vr(VR+16+4*t,4)}, {vr(QF,4)}, 0")
            self.quad_sum([VR + 4 * t for t in range(4)])
            e(f"""v_cvt_pk_bf16_f32 v{AC0}, v{VR}, v{VR+4}
            v_cvt_pk_bf16_f32 v{AC0+1}, v{VR+8}, v{VR+12}
            v_min_u32 v{AC0}, -2, v{AC0}
            v_min_u32 v{AC0+1}, -2, v{AC0+1}
            s_mov_b32 exec_lo, 0x00110011
            s_mov_b32 exec_hi, 0x00110011
            buffer_store_dwordx2 {vr(AC0,2)}, v{U}, {srd(SRD_WS)}, s10 offen sc1
            s_mov_b64 exec, -1""")
            self.pt("st")
            issue(o["w1"])
        else:
            self.masks(0x03030303, 0x03030303)
            e(f"s_lshl_b32 s10, s3, 10\nv_add_u32 v{T+7}, s10, v{VL}")
            e.wait(xb)
            self.rws256(8, T, VR, AC1, BLO, BHI, PA, w1)
            e(f"ds_write_b128 v{T+7}, {vr(AC1,4)} offset:{L_T1}\ns_waitcnt lgkmcnt(0)\ns_barrier")
            self.pt("t1")
            skip = self.only_wave(0)
            for i in range(8): e(f"ds_read_b128 {vr(VR+4*i,4)}, v{VL} offset:{L_T1+1024*i}")
            e(f"""v_lshrrev_b32 v{U}, 5, v0
            v_lshlrev_b32 v{U}, 14, v{U}
            v_and_b32 v{U+1}, 15, v0
            v_lshl_add_u32 v{U}, v{U+1}, 5, v{U}
            v_bfe_u32 v{U+1}, v0, 4, 1
            v_lshl_add_u32 v{U}, v{U+1}, 4, v{U}
            s_lshl_b32 s10, s4, 15
            s_lshl_b32 s11, s13, 9
            s_add_u32 s10, s10, s11
            s_add_u32 s10, s10, {QBP}
            s_sub_u32 s12, s2, 192
            s_lshr_b32 s13, s12, 3
            s_and_b32 s12, s12, 7
            s_waitcnt lgkmcnt(0)""")
            self.tree("v_add_f32", VR, 8, 4)
            e(f"buffer_store_dwordx4 {vr(VR,4)}, v{U}, {srd(SRD_WS)}, s10 offen sc1\ns_waitcnt vmcnt(0)")
            self.post_b(13, 12, U)
            e(f"{skip}:")
        kf, wearly = (o["kf_p"], o["w1"]) if kind == "P" else (o["kf_q"], o["wq0"])
        if kind == "Q":
            issue(o["wq1"]); slide(0, o["kq1"], o["wq1"]); issue(o["kq1"] + wearly); slide(o["kq1"], kf, wearly)
        else:
            slide(0, kf, wearly)
        e(f"""s_lshl_b32 s12, s{S_B}, 3
        s_add_u32 s12, s12, s{S_G}
        s_mul_i32 s12, s12, 12
        s_add_u32 s12, s12, s{S_SP}
        s_lshl_b32 s12, s12, 8
        s_add_u32 s12, s12, {FB}
        v_lshlrev_b32 v{T+2}, 3, v0
        s_mov_b64 exec, 0xffff""")
        k1 = len(tags)
        fl = e.mem(f"buffer_load_dwordx2 {vr(T,2)}, v{T+2}, {srd(SRD_WS)}, s12 offen sc1")
        e("s_mov_b64 exec, -1")
        issue(kf + o["wk"])
        slide(kf, k1, o["wk"])
        e(f"""s_lshl_b32 s10, s{S_B}, 14
        s_lshl_b32 s11, s{S_G}, 11
        s_add_u32 s10, s10, s11
        s_lshl_b32 s11, s3, 8
        s_add_u32 s10, s10, s11
        s_add_u32 s10, s10, {QBP}
        v_lshlrev_b32 v{TMP}, 2, v0""")
        e.wait(fl)
        top, done = e.lab("L_spin"), e.lab("L_ok")
        e(f"""s_mov_b64 exec, 0xffff
        {top}:
        v_cmp_ne_u64 vcc, s[{TAG}:{TAG+1}], {vr(T,2)}
        s_cbranch_vccz {done}
        buffer_load_dwordx2 {vr(T,2)}, v{T+2}, {srd(SRD_WS)}, s12 offen sc1
        s_waitcnt vmcnt(0)""")
        self.spin_tail(top, done, o["sleep"])
        e("s_mov_b64 exec, -1")
        self.pt("qf")
        k2 = len(tags)
        for k in range(2):
            qg = e.mem(f"buffer_load_dword v{T+k}, v{TMP}, {srd(SRD_WS)}, s10 offen sc1")
            e("s_add_u32 s10, s10, 32768")
        slide(k1, min(k2, 4 * n), o["wk"])
        e(f"""s_lshl_b32 s10, s3, 7
        v_lshl_add_u32 v{TMP}, v0, 1, s10
        v_bfe_u32 v{T+5}, v0, 2, 2
        v_lshlrev_b32 v{T+5}, 5, v{T+5}""")
        for z in range(0, 18, 4): e(f"v_mov_b32 v{PA+z}, 0\nv_mov_b32 v{PA+z+1}, 0")
        e.wait(qg)
        e(f"""v_add_f32 v{T}, v{T}, v{T+1}
        v_cvt_pk_bf16_f32 v{T}, v{T}, v{T}
        ds_write_b16 v{TMP}, v{T} offset:{L_Q}
        s_waitcnt lgkmcnt(0)
        s_barrier
        ds_read_b128 {vr(QF,4)}, v{VK} offset:{L_Q}
        s_waitcnt lgkmcnt(0)""")
        self.pt("q")
        SK = lambda k: D0 + 4 * k
        for i in range(n + 1):
            if i < n:
                for j in range(4):
                    k = 4 * i + j
                    e.wait(tags[k])
                    issue(k + 1 + (o["wk"] if k < 4 * n - 4 else o["wt"]))
                    e(f"v_mfma_f32_16x16x32_bf16 {vr(SK(k),4)}, {vr(KR+4*k,4)}, {vr(QF,4)}, 0")
            if i > 0:
                ks = [SK(4 * (i - 1) + j) for j in range(4)]
                self.quad_sum(ks)
                self.max3_chain("f32", MX, ks if i == 1 else [MX] + ks)
        self.pt("k")
        self.swap_red("v_max_f32", MX, TMP, (16, 32))
        e(f"""s_lshl_b32 s10, s3, 2
        v_add_u32 v{T+6}, s10, v{T+5}
        ds_write_b32 v{T+6}, v{MX} offset:{L_MAX}
        s_waitcnt lgkmcnt(0)
        s_barrier
        ds_read_b128 {vr(U,4)}, v{T+5} offset:{L_MAX}
        ds_read_b128 {vr(U+4,4)}, v{T+5} offset:{L_MAX+16}
        s_waitcnt lgkmcnt(0)""")
        self.max3_chain("f32", MX, range(U, U + 8))
        e(f"v_mul_f32 v{MX}, s{S_SC}, v{MX}")
        for k in range(4 * n): e(f"v_fma_f32 v{SK(k)}, v{SK(k)}, s{S_SC}, -v{MX}")
        for k in range(4 * n): e(f"v_exp_f32 v{SK(k)}, v{SK(k)}")
        e(f"v_add_f32 v{LS}, v{SK(0)}, v{SK(1)}")
        for k in range(2, 4 * n): e(f"v_add_f32 v{LS}, v{LS}, v{SK(k)}")
        for k in range(0, 4 * n, 2): e(f"v_cvt_pk_bf16_f32 v{SK(k)}, v{SK(k)}, v{SK(k+1)}")
        self.swap_red("v_add_f32", LS, TMP, (16, 32))
        e(f"ds_write_b32 v{T+6}, v{LS} offset:{L_L}")
        self.pt("p")
        for i in range(n):
            for j in range(4):
                k = 4 * i + j; pk = SK(k & ~1); p = PA + 2 + 4 * j
                sa, sb = (SEL + 2, SEL + 3) if k & 1 else (SEL, SEL + 1)
                e(f"v_perm_b32 v{p}, v{pk}, v{pk}, v{sa}\nv_perm_b32 v{p+1}, v{pk}, v{pk}, v{sb}")
            if i == n - 1:
                e(f"""s_lshl_b32 s10, s3, 11
                v_lshl_add_u32 v{T}, v0, 5, s10
                s_lshl_b32 s10, s3, 8
                v_lshl_add_u32 v{T+1}, v0, 2, s10
                v_lshlrev_b32 v{T+2}, 2, v0
                s_lshl_b32 s10, s{S_G}, 3
                s_add_u32 s10, s10, s3
                s_lshl_b32 s10, s10, 14
                s_mul_i32 s11, s{S_B}, 12
                s_add_u32 s11, s11, s{S_SP}
                s_lshl_b32 s11, s11, 8
                s_add_u32 s10, s10, s11
                s_add_u32 s10, s10, {MB}""")
            for j in range(4):
                k = 4 * i + j; p = PA + 2 + 4 * j
                e.wait(tags[4 * n + k])
                issue(4 * n + k + 1 + o["wv"])
                e(f"v_mfma_f32_16x16x32_bf16 {vr(AC0,4)}, {vr(p,4)}, {vr(VR+4*k,4)}, {vr(AC0,4) if k else 0}")
                e(f"v_mfma_f32_16x16x32_bf16 {vr(AC1,4)}, {vr(p-2,4)}, {vr(VR+4*k,4)}, {vr(AC1,4) if k else 0}")
            if i == 1:
                e("s_waitcnt lgkmcnt(0)\ns_barrier")
                skip = self.only_wave(0)
                e(f"""ds_read_b128 {vr(U,4)}, v{T+5} offset:{L_L}
                ds_read_b128 {vr(U+4,4)}, v{T+5} offset:{L_L+16}
                v_bfe_u32 v{T}, v0, 2, 2
                v_lshlrev_b32 v{T}, 15, v{T}
                v_and_b32 v{T+1}, 1, v0
                v_lshl_add_u32 v{T}, v{T+1}, 14, v{T}
                s_lshl_b32 s10, s{S_G}, 17
                s_lshl_b32 s11, s{S_B}, 4
                s_add_u32 s11, s11, s{S_SP}
                s_lshl_b32 s11, s11, 3
                s_add_u32 s10, s10, s11
                s_add_u32 s10, s10, {MB+MB_ST}
                s_waitcnt lgkmcnt(0)""")
                self.tree("v_add_f32", U, 8, 1)
                e(f"""v_min_u32 v{U+1}, -2, v{U}
                v_min_u32 v{U}, -2, v{MX}
                s_mov_b64 exec, 0x3333
                buffer_store_dwordx2 {vr(U,2)}, v{T}, {srd(SRD_WS)}, s10 offen sc1
                s_mov_b64 exec, -1
                {skip}:""")
        self.pt("v")
        e(f"""ds_write_b128 v{T}, {vr(AC0,4)} offset:{L_RED}
        ds_write_b128 v{T}, {vr(AC1,4)} offset:{L_RED+16}
        s_waitcnt lgkmcnt(0)
        s_barrier""")
        for i in range(8): e(f"ds_read_b32 v{U+i}, v{T+1} offset:{L_RED+2048*i}")
        e(f"""s_waitcnt lgkmcnt(6)
        v_add_f32 v{U}, v{U}, v{U+1}
        s_waitcnt lgkmcnt(4)
        v_add_f32 v{U+2}, v{U+2}, v{U+3}
        s_waitcnt lgkmcnt(2)
        v_add_f32 v{U+4}, v{U+4}, v{U+5}
        v_add_f32 v{U}, v{U}, v{U+2}
        s_waitcnt lgkmcnt(0)
        v_add_f32 v{U+6}, v{U+6}, v{U+7}
        v_add_f32 v{U}, v{U}, v{U+4}
        v_add_f32 v{U}, v{U}, v{U+6}
        v_min_u32 v{U}, -2, v{U}
        buffer_store_dword v{U}, v{T+2}, {srd(SRD_WS)}, s10 offen sc1""")
        self.pt("end")
        self.stamp_out(100)
        e("s_endpgm")

    X_MAX, X_P, X_L, X_CNT = 0, 2048, 20480, 24576

    def row_addr(self, dst, t):
        self.e(f"""v_and_b32 v{t}, 3, v0
        v_lshlrev_b32 v{t}, 2, v{t}
        v_bfe_u32 v{t+1}, v0, 2, 2
        v_or_b32 v{t}, v{t}, v{t+1}
        v_lshrrev_b32 v{t+1}, 5, v0
        v_xor_b32 v{t}, v{t}, v{t+1}
        v_lshlrev_b32 v{t}, 4, v{t}
        v_and_b32 v{t+1}, 31, v0
        v_lshl_add_u32 v{dst}, v{t+1}, 10, v{t}""")

    def qk(self, S, FR, AQ, TA, creg=None, AC=None):
        e = self.e
        groups = [(qp, i) for qp in range(2) for i in range(8)]
        buf = (lambda g: FR + 8 * (g & 3)) if creg else (lambda g: FR + 16 * (g & 1))
        tg = {}
        e.ds_reset()
        def rd(g):
            qp, i = groups[g]; f = buf(g)
            e(f"v_xor_b32 v{TA}, {i << 5}, v{AQ}")
            if not creg: e(f"v_xor_b32 v{TA+1}, {i << 5}, v{AC}")
            for q in range(2):
                tg[g, q] = e.ds(f"ds_read_b128 {vr(f+4*q,4)}, v{TA} offset:{512*qp+256*q}")
                if not creg: tg[g, q] = e.ds(f"ds_read_b128 {vr(f+8+4*q,4)}, v{TA+1} offset:{512*qp+256*q}")
        ahead = 3 if creg else 1
        for g in range(ahead): rd(g)
        for g in range(16):
            if g + ahead < 16: rd(g + ahead)
            qp, i = groups[g]; f = buf(g)
            for q in range(2):
                e.dswait(tg[g, q])
                c = creg(i + 8 * (2 * qp + q)) if creg else f + 8 + 4 * q
                e(f"v_mfma_f32_32x32x16_bf16 {vr(S,16)}, {vr(c,4)}, {vr(f+4*q,4)}, {vr(S,16) if g or q else 0}")
            if g == 8: e("s_barrier")

    def softmax(self, S, P, M, T, tile):
        e = self.e
        e(f"""v_and_b32 v{T+2}, 15, v0
        v_lshlrev_b32 v{T+2}, 5, v{T+2}
        v_bfe_u32 v{T+3}, v0, 4, 1
        v_lshl_add_u32 v{T+2}, v{T+3}, 10, v{T+2}
        v_add_u32 v{T+2}, {X}, v{T+2}
        s_lshl_b32 s10, s3, 2
        v_add_u32 v{T+3}, s10, v{T+2}""")
        self.max3_chain("f32", T, range(S, S + 16))
        self.swap_red("v_max_f32", T, T + 1, (32,))
        e(f"""ds_write_b32 v{T+3}, v{T} offset:{self.X_MAX}
        s_waitcnt lgkmcnt(0)
        s_barrier
        ds_read_b128 {vr(P,4)}, v{T+2} offset:{self.X_MAX}
        ds_read_b128 {vr(P+4,4)}, v{T+2} offset:{self.X_MAX+16}
        v_mov_b32 v{T}, {X+self.X_CNT}
        v_mov_b32 v{T+1}, 0
        ds_write2_b32 v{T}, v{T+1}, v{T+1} offset0:0 offset1:16
        ds_write_b32 v{T}, v{T+1} offset:128
        s_lshl_b32 s10, s{tile}, 11
        s_add_u32 s10, s10, {X+self.X_P}
        v_lshl_add_u32 v{T+1}, v0, 4, s10
        s_waitcnt lgkmcnt(0)""")
        self.max3_chain("f32", M, range(P, P + 8))
        e(f"v_mul_f32 v{M}, s{S_SC}, v{M}")
        for r in range(16): e(f"v_fma_f32 v{S+r}, v{S+r}, s{S_SC}, -v{M}")
        for r in range(16): e(f"v_exp_f32 v{S+r}, v{S+r}")
        for r in range(8): e(f"v_cvt_pk_bf16_f32 v{P+r}, v{S+2*r}, v{S+2*r+1}")
        e(f"ds_write_b128 v{T+1}, {vr(P,4)}\nds_write_b128 v{T+1}, {vr(P+4,4)} offset:1024")
        self.tree("v_add_f32", S, 16, 1)
        self.swap_red("v_add_f32", S, T, (32,))
        e(f"ds_write_b32 v{T+3}, v{S} offset:{self.X_L}\ns_waitcnt lgkmcnt(0)\ns_barrier")

    VL, VW, TMP, SEL, BLO, BHI, T, U, W, G, WUV, AC0, AC1, PA, XR = 1, 2, 3, 4, 8, 9, 10, 16, 32, 96, 160, 224, 228, 232, 244
    A_CW, A_CR, A_MB = 13, 14, 15
    S_LW, S_PART, S_PRIV, S_MBJ = 5, 6, 7, 8

    def vw_addr(self):
        VW, T = self.VW, self.T
        self.e(f"""v_lshrrev_b32 v{VW}, 4, v0
        v_lshlrev_b32 v{VW}, 14, v{VW}
        v_and_b32 v{T+1}, 15, v0
        v_lshl_add_u32 v{VW}, v{T+1}, 4, v{VW}""")

    def tail_setup(self):
        VL, T, A_CW, A_CR, A_MB = self.VL, self.T, self.A_CW, self.A_CR, self.A_MB
        self.e(f"""v_lshlrev_b32 v{VL}, 4, v0
        s_lshl_b32 s{self.S_PRIV}, s3, 11
        s_lshl_b32 s{self.S_MBJ}, s4, 14
        s_add_u32 s{self.S_MBJ}, s{self.S_MBJ}, {MB}
        v_lshl_add_u32 v{A_CW}, v0, 2, s{self.S_PRIV}
        v_bfe_u32 v{A_CR}, v0, 3, 1
        v_lshlrev_b32 v{A_CR}, 7, v{A_CR}
        v_lshrrev_b32 v{T+1}, 4, v0
        v_lshl_add_u32 v{A_CR}, v{T+1}, 5, v{A_CR}
        v_add_u32 v{A_CR}, s{self.S_PRIV}, v{A_CR}
        v_lshrrev_b32 v{A_MB}, 5, v0
        v_lshlrev_b32 v{A_MB}, 19, v{A_MB}
        v_bfe_u32 v{T+1}, v0, 1, 3
        v_lshl_add_u32 v{A_MB}, v{T+1}, 14, v{A_MB}
        v_and_b32 v{T+1}, 1, v0
        v_lshl_add_u32 v{A_MB}, v{T+1}, 5, v{A_MB}
        v_bfe_u32 v{T+1}, v0, 4, 1
        v_lshl_add_u32 v{A_MB}, v{T+1}, 4, v{A_MB}""")
        self.selectors(self.SEL, self.BLO, self.BHI, self.TMP)

    def wload(self, s):
        e = self.e
        e(f"s_lshl_b32 s10, s4, 16\ns_lshl_b32 s11, s{self.S_LW}, 8\ns_add_u32 s10, s10, s11")
        for t in range(16):
            e.mem(f"buffer_load_dwordx4 {vr(self.W+4*t,4)}, v{self.VW}, {srd(s)}, s10 offen offset:{1024*(t&3)} nt")
            if t & 3 == 3: e("s_add_u32 s10, s10, 4096")

    def a_compute(self):
        e = self.e; e.vm = 0
        AC, AT, AQ, M, TA, T = 1, 2, 3, 4, 6, 8
        FR, S, O, PV = 16, 48, 64, 128
        e("L_AC:")
        self.role = "AC"
        self.pt("start")
        e(f"v_lshlrev_b32 v{T}, 4, v0\ns_waitcnt lgkmcnt(0)")
        self.epoch_load()
        self.mk_srd(SRD_WS, P_WS, WS_USED); self.mk_srd(SRD_D, P_BWO, 4 << 20); self.mk_srd(SRD_E, P_OUT, 4096)
        for r in range(4): e(f"v_mov_b32 v{FR+r}, -1")
        e(f"s_lshl_b32 s10, s4, 14\ns_lshl_b32 s11, s3, 12\ns_add_u32 s10, s10, s11\ns_add_u32 s10, s10, {MB}")
        for i in range(4): e(f"buffer_store_dwordx4 {vr(FR,4)}, v{T}, {srd(SRD_WS)}, s10 offen offset:{1024*i} sc1")
        e(f"s_mov_b32 s{S_SC}, {f2u(SCALE):#x}\ns_mov_b32 s{S_SPIN}, {SPIN}")
        self.row_addr(AC, T + 1)
        e(f"""v_add_u32 v{AQ}, {X}, v{AC}
        s_lshl_b32 s10, s3, 15
        v_add_u32 v{AC}, s10, v{AC}
        v_lshrrev_b32 v{T+2}, 5, v0
        v_bfe_u32 v{T+1}, v0, 2, 2
        v_lshl_add_u32 v{T+3}, v{T+2}, 2, v{T+1}
        v_lshlrev_b32 v{AT}, 10, v{T+3}
        v_bfe_u32 v{T+3}, v0, 4, 1
        v_lshlrev_b32 v{T+3}, 1, v{T+3}
        v_bfe_u32 v{T+4}, v0, 1, 1
        v_or_b32 v{T+3}, v{T+3}, v{T+4}
        v_xor_b32 v{T+3}, v{T+3}, v{T+2}
        v_lshl_add_u32 v{T+3}, v{T+1}, 2, v{T+3}
        v_lshl_add_u32 v{AT}, v{T+3}, 4, v{AT}
        v_and_b32 v{T+3}, 1, v0
        v_lshl_add_u32 v{AT}, v{T+3}, 3, v{AT}
        s_lshl_b32 s10, s3, 8
        v_add_u32 v{AT}, s10, v{AT}""")
        self.epoch_tag()
        def tr_addr():
            for k in range(8):
                e(f"v_xor_b32 v{S+k}, {(2*k) << 4}, v{AT}")
                if k & 1: e(f"v_add_u32 v{S+k}, 8192, v{S+k}")
        def tr_step():
            for k in range(8): e(f"v_add_u32 v{S+k}, 65536, v{S+k}")
        def tr_ct(u, ct):
            for hh in range(2):
                last = e.ds(f"ds_read_b64_tr_b16 {vr(PV+16*(u&7)+4*ct+2*hh,2)}, v{S+2*ct+hh} offset:{32768*((u>>1)&1)+16384*(u&1)}")
            return last
        tr_addr()
        e(f"""s_lshl_b32 s9, s4, 11
        s_add_u32 s9, s9, {FA}
        v_lshlrev_b32 v{FR+8}, 3, v0""")
        def qc_load():
            for i in range(2): e(f"buffer_load_dwordx2 {vr(FR+4+2*i,2)}, v{FR+8}, {srd(SRD_WS)}, s9 offen offset:{512*i} sc1")
        for t in range(4):
            if t == 2: e("s_waitcnt vmcnt(0)")
            e("s_barrier")
            self.pt(f"t{t}")
            if t == 2:
                qc_load(); tr_step()
                skip = self.only_wave(0)
                e("s_lshr_b32 s12, s4, 3\ns_and_b32 s13, s4, 7\ns_add_u32 s13, s13, 8")
                self.post_b(12, 13, FR)
                e(f"{skip}:")
            e.ds_reset()
            for u in (2 * t, 2 * t + 1):
                for ct in range(4): tr_ct(u, ct)
            e("s_waitcnt lgkmcnt(0)")
        e("s_barrier\ns_barrier")
        self.pt("half")
        top, done = e.lab("L_spin"), e.lab("L_ok")
        e(f"""{top}:
        s_waitcnt vmcnt(0)
        v_cmp_ne_u64 vcc, s[{TAG}:{TAG+1}], {vr(FR+4,2)}
        v_cmp_ne_u64 s[12:13], s[{TAG}:{TAG+1}], {vr(FR+6,2)}
        s_or_b64 vcc, vcc, s[12:13]
        s_cbranch_vccz {done}""")
        qc_load()
        self.spin_tail(top, done)
        self.pt("qc")
        e(f"""s_lshr_b32 s10, s4, 5
        s_lshl_b32 s10, s10, 15
        s_lshl_b32 s11, s3, 13
        s_add_u32 s10, s10, s11
        s_add_u32 s10, s10, {QAP}
        s_add_u32 s11, s10, 4096
        s_lshl_b32 s12, s3, 13
        s_add_u32 s12, s12, {X}
        s_and_b32 s13, s3, 1
        s_lshl_b32 s13, s13, 5
        v_xor_b32 v{T+1}, s13, v{T}
        v_add_u32 v{T+1}, s12, v{T+1}""")
        top, done = e.lab("L_spin"), e.lab("L_ok")
        e(f"{top}:")
        for i in range(8): e(f"buffer_load_dwordx4 {vr(O+4*i,4)}, v{T}, {srd(SRD_WS)}, s{10+(i>>2)} offen offset:{1024*(i&3)} sc1")
        e("s_waitcnt vmcnt(0)")
        self.max3_chain("u32", T + 2, range(O, O + 16)); self.max3_chain("u32", T + 3, range(O + 16, O + 32))
        e(f"v_max_u32 v{T+2}, v{T+2}, v{T+3}\nv_cmp_eq_u32 vcc, -1, v{T+2}\ns_cbranch_vccz {done}")
        self.spin_tail(top, done)
        self.pt("qd")
        for i in range(8):
            sw = ((i & 3) << 2) | (i >> 2)
            e(f"v_xor_b32 v{TA+(i&1)}, {sw << 4}, v{T+1}\nds_write_b128 v{TA+(i&1)}, {vr(O+4*i,4)} offset:{1024*i}")
        e("s_add_u32 s9, s3, 4\ns_waitcnt lgkmcnt(0)\ns_barrier")
        self.pt("b1")
        self.qk(S, FR, AQ, TA, AC=AC)
        self.pt("qk")
        self.softmax(S, FR, M, T + 1, 9)
        self.pt("bp")
        e(f"v_add_u32 v{T}, {X+self.X_P}, v{T}")
        e.ds_reset()
        pt_, tt_ = {}, {}
        def pread(u): pt_[u] = e.ds(f"ds_read_b128 {vr(FR+4*(u&7),4)}, v{T} offset:{1024*u}")
        for u in range(8): pread(u)
        tr_addr()
        for u in range(16):
            e.dswait(max(pt_[u], tt_.get(u, 0)))
            if u == 4: tr_step()
            for ct in range(4):
                e(f"v_mfma_f32_32x32x16_bf16 {vr(O+16*ct,16)}, {vr(FR+4*(u&7),4)}, {vr(PV+16*(u&7)+4*ct,4)}, {vr(O+16*ct,16) if u else 0}")
                if u < 8: tt_[u + 8] = tr_ct(u + 8, ct)
            if u < 8: pread(u + 8)
        self.pt("pv")
        e(f"""v_lshrrev_b32 v{T}, 5, v0
        v_lshlrev_b32 v{T}, 18, v{T}
        v_and_b32 v{T+1}, 31, v0
        v_lshl_add_u32 v{T}, v{T+1}, 3, v{T}
        s_lshl_b32 s10, s4, 10
        s_lshl_b32 s11, s3, 8
        s_add_u32 s10, s10, s11
        s_add_u32 s10, s10, {AP}""")
        for r in range(16):
            d = FR + 2 * r
            e(f"v_cvt_pk_bf16_f32 v{d}, v{O+r}, v{O+16+r}\nv_cvt_pk_bf16_f32 v{d+1}, v{O+32+r}, v{O+48+r}")
            e(f"buffer_store_dwordx2 {vr(d,2)}, v{T}, {srd(SRD_WS)}, s10 offen sc1")
            e(f"s_add_u32 s10, s10, {65536 * (5 if r & 3 == 3 else 1)}")
        skip = self.only_wave(0)
        e(f"""ds_read_b128 {vr(S,4)}, v{T+3} offset:{self.X_L}
        ds_read_b128 {vr(S+4,4)}, v{T+3} offset:{self.X_L+16}
        v_lshlrev_b32 v{T+1}, 9, v{T+1}
        s_lshl_b32 s10, s4, 3
        s_add_u32 s10, s10, {AST}
        s_waitcnt lgkmcnt(0)""")
        self.tree("v_add_f32", S, 8, 1)
        e(f"""v_mov_b32 v{S+1}, v{S}
        v_mov_b32 v{S}, v{M}
        s_mov_b32 exec_hi, 0
        buffer_store_dwordx2 {vr(S,2)}, v{T+1}, {srd(SRD_WS)}, s10 offen sc1
        s_mov_b64 exec, -1
        {skip}:
        s_mov_b32 s5, s3
        s_mov_b32 s6, 1""")
        skip = e.lab("L_skip")
        e(f"""v_mov_b32 v100, {X+self.X_CNT+64}
        v_mov_b32 v101, 1
        s_mov_b64 exec, 1
        s_waitcnt vmcnt(0)
        ds_add_rtn_u32 v102, v100, v101
        s_waitcnt lgkmcnt(0)
        v_cmp_eq_u32 vcc, 3, v102
        s_mov_b64 exec, -1
        s_cbranch_vccz {skip}""")
        self.post_a(4, 1024, 96)
        e(f"{skip}:")
        self.pt("b9")
        self.vw_addr()
        self.tail_setup()
        self.masks(0x03030303, 0x03030303)
        self.lds_wait(X + self.X_CNT + 128, 100)
        e(f"s_mov_b32 s{S_SPIN}, {SPIN}")
        self.wload(SRD_D)
        self.b_pre()

    def b_pre(self):
        e = self.e
        T, U, G, A_CW, S_PRIV, S_MBJ = self.T, self.U, self.G, self.A_CW, self.S_PRIV, self.S_MBJ
        e(f"""v_lshlrev_b32 v{T}, 3, v0
        s_add_u32 s10, s{S_MBJ}, {MB_ST}
        s_mov_b32 s12, 0x0fff0fff
        s_mov_b32 s13, 0""")
        top, done = e.lab("L_spin"), e.lab("L_ok")
        e(f"""{top}:
        buffer_load_dwordx2 {vr(U,2)}, v{T}, {srd(SRD_WS)}, s10 offen sc1
        s_waitcnt vmcnt(0)
        v_max_u32 v{U+2}, v{U}, v{U+1}
        v_cmp_eq_u32 vcc, -1, v{U+2}
        s_and_b64 vcc, vcc, s[12:13]
        s_cbranch_vccz {done}""")
        self.spin_tail(top, done)
        self.pt("bstat")
        e(f"""v_mov_b32 v{U+2}, 0xff800000
        v_cndmask_b32 v{U}, v{U+2}, v{U}, s[12:13]
        v_cndmask_b32 v{U+1}, 0, v{U+1}, s[12:13]
        v_mov_b32 v{U+2}, v{U}""")
        self.row_red("v_max_f32", U + 2, (1, 2, 4, 8))
        e(f"v_sub_f32 v{U}, v{U}, v{U+2}\nv_exp_f32 v{U}, v{U}\nv_mul_f32 v{U+1}, v{U}, v{U+1}")
        self.row_red("v_add_f32", U + 1, (1, 2, 4, 8))
        WG = 160
        e(f"""v_rcp_f32 v{U+1}, v{U+1}
        v_mul_f32 v{U}, v{U}, v{U+1}
        ds_write_b32 v{A_CW}, v{U} offset:1536
        v_lshrrev_b32 v{T}, 5, v0
        v_lshl_add_u32 v{T+1}, v{T}, 6, s{S_PRIV}
        v_mul_u32_u24 v{T}, 3072, v{T}
        v_and_b32 v{T+2}, 31, v0
        v_lshl_add_u32 v{T}, v{T+2}, 3, v{T}
        s_waitcnt lgkmcnt(0)""")
        for q in range(3): e(f"ds_read_b128 {vr(WG+4*q,4)}, v{T+1} offset:{1536+16*q}")
        top, done = e.lab("L_spin"), e.lab("L_ok")
        e(f"{top}:")
        for sp in range(12): e(f"buffer_load_dwordx2 {vr(G+2*sp,2)}, v{T}, {srd(SRD_WS)}, s{S_MBJ} offen offset:{256*sp} sc1")
        e("s_waitcnt vmcnt(0) lgkmcnt(0)")
        self.max3_chain("u32", T + 1, range(G, G + 12)); self.max3_chain("u32", T + 2, range(G + 12, G + 24))
        e(f"v_max_u32 v{T+1}, v{T+1}, v{T+2}\nv_cmp_eq_u32 vcc, -1, v{T+1}\ns_cbranch_vccz {done}")
        self.spin_tail(top, done)
        self.pt("bo")
        e(f"v_mul_f32 v{U}, v{G}, v{WG}\nv_mul_f32 v{U+1}, v{G+1}, v{WG}\nv_mul_f32 v{U+2}, v{G+2}, v{WG+1}\nv_mul_f32 v{U+3}, v{G+3}, v{WG+1}")
        for sp in range(2, 12):
            k = 2 * (sp & 1)
            e(f"v_fmac_f32 v{U+k}, v{G+2*sp}, v{WG+sp}\nv_fmac_f32 v{U+k+1}, v{G+2*sp+1}, v{WG+sp}")
        e(f"v_add_f32 v{U}, v{U}, v{U+2}\nv_add_f32 v{U+1}, v{U+1}, v{U+3}\ns_branch L_CORE")

    def a_loader(self):
        e = self.e; e.vm = 0
        VL, VW, TMP, SEL, BLO, BHI, T, U, W, G, WUV, AC0, AC1, PA, XR = (self.VL, self.VW, self.TMP, self.SEL, self.BLO,
            self.BHI, self.T, self.U, self.W, self.G, self.WUV, self.AC0, self.AC1, self.PA, self.XR)
        S_LW, S_PART, S_PRIV, S_MBJ = self.S_LW, self.S_PART, self.S_PRIV, self.S_MBJ
        XO, S, FR, AQ, AC, TA, M = 232, 16, 224, 4, 5, 6, 8
        CNT = X + self.X_CNT
        creg = lambda ks: (W + 4 * ks) if ks < 16 else (WUV + 4 * (ks - 16))
        e("L_AL:")
        self.role = "AL"
        self.pt("start")
        e(f"""s_sub_u32 s{S_LW}, s3, 4
        s_and_b32 s10, s3, 1
        s_lshl_b32 s10, s10, 5
        v_lshlrev_b32 v{VL}, 4, v0
        v_xor_b32 v{T}, s10, v{VL}""")
        for i in range(8): e(f"v_xor_b32 v{XO+i}, {(((i & 3) << 2) | (i >> 2)) << 4}, v{T}")
        e(f"""s_lshl_b32 s66, s4, 18
        s_lshl_b32 s67, s{S_LW}, 13
        s_add_u32 s66, s66, s67
        s_waitcnt lgkmcnt(0)""")
        self.epoch_load()
        self.mk_srd(SRD_A, P_CKV, 16 << 20)
        dma = []
        def dma_tile(t):
            for r in range(8):
                if r & 3 == 0: e("s_mov_b32 m0, s67")
                last = e.mem(f"buffer_load_dwordx4 v{XO+r}, {srd(SRD_A)}, s66 offen offset:{1024*(r&3)} nt lds")
                if r == 3: e("s_add_u32 s66, s66, 4096\ns_add_u32 s67, s67, 4096")
                if r == 7: e(f"s_add_u32 s66, s66, 28672\ns_add_u32 s67, s67, {28672 if t != 3 else (28672 - 131072) & 0xffffffff:#x}")
            dma.append(last)
        a0 = self.o["a0"]
        for t in range(a0): dma_tile(t)
        self.mk_srd(SRD_B, P_WUV, 4 << 20); self.mk_srd(SRD_C, P_AWO, 4 << 20)
        self.mk_srd(SRD_F, P_OUT, 4096); self.mk_srd(SRD_WS, P_WS, WS_USED)
        self.row_addr(AC, T)
        e(f"""v_add_u32 v{AQ}, {X}, v{AC}
        s_lshl_b32 s10, s{S_LW}, 15
        v_add_u32 v{AC}, s10, v{AC}
        s_mov_b32 s{S_SC}, {f2u(SCALE):#x}
        s_mov_b32 s{S_SPIN}, {SPIN}
        s_mov_b32 s{S_PART}, 0""")
        self.epoch_tag()
        for t in range(5):
            if t < 4: e.wait(dma[t])
            e("s_barrier")
            self.pt(f"bar{t}")
            while len(dma) < min(8, a0 + t + 1, 4 + t) or (t == 4 and len(dma) < 8): dma_tile(len(dma))
            self.pt(f"iss{t}")
            if t < 4:
                skip = self.only_wave(4 + t)
                for i in range(8):
                    e(f"v_xor_b32 v{TA+(i&1)}, {i << 5}, v{AC}")
                    for q in range(4): e(f"ds_read_b128 {vr(creg(i+8*q),4)}, v{TA+(i&1)} offset:{256*q}")
                    if i & 1: e("s_waitcnt lgkmcnt(4)")
                e(f"s_waitcnt lgkmcnt(0)\n{skip}:")
        if self.stamps:
            for t in (4, 5, 6): e.wait(dma[t]); self.pt(f"d{t}")
        UV, GA = 96, 160
        e(f"""v_lshrrev_b32 v{BHI}, 3, v0
        v_lshlrev_b32 v{BHI}, 17, v{BHI}
        v_and_b32 v{T+1}, 7, v0
        v_lshl_add_u32 v{BHI}, v{T+1}, 4, v{BHI}
        s_lshl_b32 s9, s{S_LW}, 20
        s_lshl_b32 s11, s4, 7
        s_add_u32 s9, s9, s11""")
        def uv(t0, t1):
            for t in range(t0, t1):
                e.mem(f"buffer_load_dwordx4 {vr(UV+4*t,4)}, v{BHI}, {srd(SRD_B)}, s9 offen nt")
                e("s_add_u32 s9, s9, 8192")
        uv0, uv1 = self.o["uv0"], max(self.o["uv0"], self.o["uv1"])
        uv(0, uv0)
        e("s_barrier")
        self.mk_srd(SRD_E, SRD_F, 4096)
        self.vw_addr()
        e.wait(dma[7])
        self.pt("dma")
        e("s_barrier")
        uv(uv0, uv1)
        self.qk(S, FR, AQ, TA, creg=creg)
        if self.o["wo_at"] == 0: self.wload(SRD_C)
        self.softmax(S, FR, M, T, S_LW)
        uv(uv1, 16)
        if self.o["wo_at"] == 1: self.wload(SRD_C)
        self.tail_setup()
        self.lds_wait(CNT + 64, T)
        e(f"s_mov_b32 s{S_SPIN}, {SPIN}")
        self.pt("b9")
        if self.o["wo_at"] == 2: self.wload(SRD_C)
        self.poll_a(1024, 1, U)
        self.pt("apf")
        e.vm = 0
        e(f"""s_lshr_b32 s12, s4, 1
        s_lshl_b32 s10, s12, 9
        s_add_u32 s10, s10, {AST}
        v_lshlrev_b32 v{T}, 3, v0""")
        st = e.mem(f"buffer_load_dwordx2 {vr(U,2)}, v{T}, {srd(SRD_WS)}, s10 offen sc1")
        e(f"""s_lshl_b32 s10, s12, 16
        s_lshl_b32 s11, s{S_LW}, 8
        s_add_u32 s10, s10, s11
        s_add_u32 s10, s10, {AP}""")
        g = []
        for t in range(16):
            g.append(e.mem(f"buffer_load_dwordx4 {vr(GA+4*t,4)}, v{VW}, {srd(SRD_WS)}, s10 offen offset:{1024*(t&3)} sc1"))
            if t & 3 == 3: e("s_add_u32 s10, s10, 4096")
        self.masks(0x00030003, 0x03000300)
        e(f"""v_lshl_add_u32 v{T}, v0, 1, s{S_PRIV}
        v_lshrrev_b32 v{T+1}, 4, v0
        v_lshl_add_u32 v{T+1}, v{T+1}, 5, s{S_PRIV}""")
        e.wait(st)
        e(f"v_mov_b32 v{U+2}, v{U}")
        self.row_red("v_max_f32", U + 2, (1, 2, 4, 8)); self.swap_red("v_max_f32", U + 2, TMP, (16,))
        e(f"v_sub_f32 v{U}, v{U}, v{U+2}\nv_exp_f32 v{U}, v{U}\nv_mul_f32 v{U+1}, v{U}, v{U+1}")
        self.row_red("v_add_f32", U + 1, (1, 2, 4, 8)); self.swap_red("v_add_f32", U + 1, TMP, (16,))
        e(f"""v_rcp_f32 v{U+1}, v{U+1}
        v_mul_f32 v{U}, v{U}, v{U+1}
        v_cvt_pk_bf16_f32 v{U}, v{U}, v{U}
        ds_write_b16 v{T}, v{U}
        s_waitcnt lgkmcnt(0)
        ds_read_b128 {vr(XR,4)}, v{T+1}
        ds_read_b128 {vr(XR+4,4)}, v{T+1} offset:16
        v_lshrrev_b32 v{T}, 5, v0
        v_lshlrev_b32 v{T}, 8, v{T}
        v_and_b32 v{T+1}, 15, v0
        v_lshl_add_u32 v{T}, v{T+1}, 2, v{T}
        v_bfe_u32 v{T+1}, v0, 4, 1
        v_lshl_add_u32 v{T}, v{T+1}, 1, v{T}
        v_add_u32 v{T}, s{S_PRIV}, v{T}
        v_bfe_u32 v{T+1}, v0, 3, 1
        v_lshlrev_b32 v{T+1}, 8, v{T+1}
        v_lshrrev_b32 v{T+2}, 4, v0
        v_lshl_add_u32 v{T+1}, v{T+2}, 6, v{T+1}
        v_bfe_u32 v{T+2}, v0, 2, 1
        v_lshl_add_u32 v{T+1}, v{T+2}, 5, v{T+1}
        v_add_u32 v{T+1}, s{S_PRIV}, v{T+1}
        s_waitcnt lgkmcnt(0)""")
        self.rws256(16, XR, GA, AC0, BLO, BHI, PA, g)
        self.lds_inc(CNT + 128, U + 2)
        self.pt("lat")
        e(f"""v_cvt_pk_bf16_f32 v{U}, v{AC0}, v{AC0+1}
        v_cvt_pk_bf16_f32 v{U+1}, v{AC0+2}, v{AC0+3}
        ds_write_b16 v{T}, v{U} offset:256
        ds_write_b16_d16_hi v{T}, v{U} offset:320
        ds_write_b16 v{T}, v{U+1} offset:384
        ds_write_b16_d16_hi v{T}, v{U+1} offset:448
        s_waitcnt lgkmcnt(0)
        ds_read_b128 {vr(XR,4)}, v{T+1} offset:256
        ds_read_b128 {vr(XR+4,4)}, v{T+1} offset:272""")
        for z in (0, 1, 4, 5, 8, 9): e(f"v_mov_b32 v{PA+z}, 0")
        e(f"""v_bfe_u32 v{T}, v0, 3, 1
        v_lshlrev_b32 v{T}, 9, v{T}
        v_lshrrev_b32 v{T+1}, 5, v0
        v_lshl_add_u32 v{T}, v{T+1}, 8, v{T}
        v_and_b32 v{T+1}, 7, v0
        v_lshl_add_u32 v{T}, v{T+1}, 5, v{T}
        s_lshl_b32 s10, s{S_LW}, 10
        v_add_u32 v{T}, s10, v{T}
        s_waitcnt lgkmcnt(0)""")
        self.rws128(16, XR, UV, AC0, AC1, SEL, PA)
        RED = 16384
        e(f"""s_mov_b32 exec_lo, 0xff0000ff
        s_mov_b32 exec_hi, 0xff0000ff
        ds_write_b128 v{T}, {vr(AC0,4)} offset:{RED}
        ds_write_b128 v{T}, {vr(AC1,4)} offset:{RED+16}
        s_mov_b64 exec, -1
        v_lshlrev_b32 v{T}, 3, v0""")
        self.lds_inc(CNT, T + 1)
        self.masks(0x03030303, 0x03030303)
        top, done = e.lab("L_spin"), e.lab("L_ok")
        e(f"""{top}:
        ds_read_b32 v{T+2}, v{T+1}
        s_waitcnt lgkmcnt(0)
        v_cmp_ne_u32 vcc, 4, v{T+2}
        s_cbranch_vccz {done}""")
        self.spin_tail(top, done)
        for i in range(8): e(f"ds_read_b64 {vr(U+2*i,2)}, v{T} offset:{RED+512*i}")
        e("s_waitcnt lgkmcnt(0)")
        self.tree("v_add_f32", U, 8, 2)
        self.pt("ctx")
        A_CW, A_CR, A_MB = self.A_CW, self.A_CR, self.A_MB
        e(f"""L_CORE:
        v_cvt_pk_bf16_f32 v{U}, v{U}, v{U+1}
        ds_write_b32 v{A_CW}, v{U} offset:1024
        s_lshl_b32 s10, s{S_LW}, 17
        s_lshl_b32 s11, s4, 6
        s_add_u32 s10, s10, s11
        s_lshl_b32 s11, s{S_PART}, 12
        s_add_u32 s10, s10, s11
        s_add_u32 s10, s10, {MB+MB_2}
        s_waitcnt lgkmcnt(0)
        ds_read_b128 {vr(XR,4)}, v{A_CR} offset:1024
        ds_read_b128 {vr(XR+4,4)}, v{A_CR} offset:1040
        s_waitcnt lgkmcnt(0)""")
        self.rws256(16, XR, W, AC0, BLO, BHI, PA)
        for r in range(4): e(f"v_min_u32 v{AC0+r}, -2, v{AC0+r}")
        e(f"buffer_store_dwordx4 {vr(AC0,4)}, v{A_MB}, {srd(SRD_WS)}, s10 offen sc1")
        self.pt("core")
        e(f"s_cmp_lg_u32 s{S_LW}, 0\ns_cbranch_scc1 L_FINDONE")
        e(f"s_add_u32 s10, s{S_MBJ}, s11\ns_add_u32 s10, s10, {MB_2}")
        top, done = e.lab("L_spin"), e.lab("L_ok")
        e(f"{top}:")
        for i in range(4): e(f"buffer_load_dwordx4 {vr(G+4*i,4)}, v{VL}, {srd(SRD_WS)}, s10 offen offset:{1024*i} sc1")
        e("s_waitcnt vmcnt(0)")
        self.max3_chain("u32", T, range(G, G + 16))
        e(f"v_cmp_eq_u32 vcc, -1, v{T}\ns_cbranch_vccz {done}")
        self.spin_tail(top, done)
        self.tree("v_add_f32", G, 4, 4)
        for rot in (4, 8):
            for r in range(4): self.row_red("v_add_f32", G + r, (rot,))
        for s in (16, 32):
            for r in range(4): e(f"v_mov_b32 v{G+4+r}, v{G+r}")
            for r in range(4): e(f"v_permlane{s}_swap_b32 v{G+r}, v{G+4+r}")
            for r in range(4): e(f"v_add_f32 v{G+r}, v{G+r}, v{G+4+r}")
        e(f"""v_cvt_pk_bf16_f32 v{G}, v{G}, v{G+1}
        v_cvt_pk_bf16_f32 v{G+1}, v{G+2}, v{G+3}
        v_lshlrev_b32 v{T}, 3, v0
        s_lshr_b32 s10, s4, 5
        s_lshl_b32 s10, s10, 11
        s_and_b32 s11, s4, 31
        s_lshl_b32 s11, s11, 5
        s_add_u32 s10, s10, s11
        s_lshl_b32 s11, s{S_PART}, 10
        s_add_u32 s10, s10, s11
        s_mov_b64 exec, 15
        buffer_store_dwordx2 {vr(G,2)}, v{T}, {srd(SRD_E)}, s10 offen
        s_lshl_b32 s10, s4, 1
        s_add_u32 s10, s10, s{S_PART}
        s_cmp_lg_u32 s10, 1
        s_cbranch_scc1 L_FINDONE
        s_mov_b64 exec, 1
        v_mov_b32 v{T}, s{TAG}
        s_mov_b32 s10, {EPOCH}
        buffer_store_dword v{T}, off, {srd(SRD_WS)}, s10
        L_FINDONE:""")
        self.pt("end")
        self.stamp_out(16)
        e("s_endpgm")

    def build(self):
        e = self.e
        e("""s_cmp_ge_u32 s2, 256
        s_cbranch_scc1 L_END
        s_load_dwordx16 s[16:31], s[0:1], 0
        s_load_dwordx8 s[32:39], s[0:1], 64
        s_load_dwordx4 s[40:43], s[0:1], 96
        v_lshrrev_b32 v1, 6, v0
        v_and_b32 v0, 63, v0
        v_readfirstlane_b32 s3, v1
        s_cmp_lt_u32 s2, 128
        s_cbranch_scc1 L_P
        s_cmp_ge_u32 s2, 192
        s_cbranch_scc1 L_Q
        s_sub_u32 s4, s2, 128
        s_cmp_lt_u32 s3, 4
        s_cbranch_scc1 L_AC""")
        self.a_loader()
        self.bside("P")
        self.bside("Q")
        self.a_compute()
        e("L_END:\ns_endpgm")
        body, npad = fix_hazards(e.L)
        out = [HEADER.rstrip(), "; @launch grid=(256,1,1) block=(512,1,1) lds=163840",
               '.amdgcn_target "amdgcn-amd-amdhsa--gfx950"', ".text", f".globl {NAME}_kernel", ".p2align 8",
               f".type {NAME}_kernel,@function", f"{NAME}_kernel:"]
        out += [("" if l.endswith(":") else "    ") + l for l in body]
        out += ['.section .rodata,"a"', ".p2align 6", f".amdhsa_kernel {NAME}_kernel",
                "  .amdhsa_next_free_vgpr 256", "  .amdhsa_next_free_sgpr 102", "  .amdhsa_accum_offset 256",
                "  .amdhsa_group_segment_fixed_size 0", "  .amdhsa_kernarg_size 112", "  .amdhsa_user_sgpr_count 2",
                "  .amdhsa_user_sgpr_kernarg_segment_ptr 1", "  .amdhsa_system_sgpr_workgroup_id_x 1",
                ".end_amdhsa_kernel"]
        return "\n".join(out) + "\n", npad

PTS = {"P": "start,t2,xq,st,qf,k,v,end", "Q": "start,t1,qf,q,k,p,v,end",
       "AC": "start,end,qc,qd,b1,core,b9,bo", "AL": "start,end,dma,b9,apf,core,lat,ctx"}

if __name__ == "__main__":
    ap = argparse.ArgumentParser()
    ap.add_argument("out"); ap.add_argument("--stamps", action="store_true")
    ap.add_argument("--pts", action="append", default=[]); ap.add_argument("--x", default="")
    for k, v in DEFAULTS.items(): ap.add_argument("--" + k, type=int, default=v)
    a = ap.parse_args()
    pts = {}
    if a.stamps:
        pts = {k: v.split(",") for k, v in PTS.items()}
        for p in a.pts:
            r, l = p.split(":"); pts[r] = l.split(",")
    s, npad = Gen({k: getattr(a, k) for k in DEFAULTS}, pts, set(a.x.split(","))).build()
    open(a.out, "w").write(s)
    print("wrote", a.out, "lines", s.count("\n"), "pads", npad)
```

```python
import sys, math, struct, argparse
from asmlib import Emit, fix_hazards

NAME = "concat_heads__compressed_kv_cla__gqa_block_cached__decode"
HEADER = open("cdna_kernels/%s.s.ref" % NAME).read().split("; Override launch")[0]

QBP = 0x000000
QAP = 0x020000
AST = 0x040000
FB  = 0x050000
EPOCH = 0x060000
FA  = 0x080000
MB  = 0x100000
MB_ST = 6144
MB_2  = 8192
AP  = 0x200000
XQ  = 0x400000
WS_USED = 0x500000
STAMPS = 0x800000

SCALE = math.log2(math.e) / math.sqrt(128.0)
def f2u(x): return struct.unpack("<I", struct.pack("<f", x))[0]

SRD_WS, SRD_A, SRD_B, SRD_C, SRD_D, SRD_E, SRD_F, SRD_G = 44, 48, 52, 56, 60, 64, 68, 96
P_AX, P_CKV, P_AWQ, P_WUK, P_WUV, P_AWO, P_BX, P_BK, P_BV, P_BWQ, P_BWO, P_OUT, P_DBG, P_WS = range(16, 44, 2)
S_SC, S_SPIN = 15, 14
MASK0 = 72
TAG = 94
ST0 = 16
SPIN = 20000
X = 131072

def srd(n): return f"s[{n}:{n+3}]"
def vr(a, n): return f"v[{a}:{a+n-1}]" if n > 1 else f"v{a}"

DEFAULTS = dict(np=6, uv0=16, wo_at=0, pf=4, pfw=0, pre_q=0, uv1=8, a0=3, t2w=0, wq1=2, kq1=4, sleep=0, pre_p=0, w1=2, kf_p=0, kf_q=12, wq0=8, wk=8, wt=10, wv=8)

class Gen:
    def __init__(self, opt, pts, x):
        self.o = opt; self.alt = pts; self.x = x; self.role = None
        self.stamps = bool(pts)
        self.e = Emit()

    def mk_srd(self, d, p, size):
        self.e(f"s_mov_b32 s{d}, s{p}\ns_mov_b32 s{d+1}, s{p+1}\ns_mov_b32 s{d+2}, {size:#x}\ns_mov_b32 s{d+3}, 0x20000")

    def pt(self, name, role=None):
        sel = self.alt.get(role or self.role)
        if sel and name in sel:
            i = sel.index(name); self.e(f"s_memrealtime s[{80+2*i}:{81+2*i}]" if i < 7 else "s_memrealtime s[100:101]")

    def stamp_out(self, t):
        if not self.stamps: return
        e = self.e
        if "dbg" in self.x:
            skip = e.lab("L_skip")
            e(f"""s_waitcnt lgkmcnt(0)
            s_and_b32 s10, s2, 127
            s_lshl_b32 s10, s10, 3
            s_add_u32 s10, s10, s3
            s_cmp_lg_u32 s10, 0
            s_cbranch_scc1 {skip}
            s_lshr_b32 s10, s2, 7
            s_lshl_b32 s10, s10, 5
            s_mov_b64 exec, 1""")
            self.mk_srd(SRD_A, P_DBG, 256)
            regs = [80, 82, 84, 86, 88, 90, 92, 100]
            for k in range(8):
                e(f"s_sub_u32 s11, s{regs[k]}, {'s80' if k else '0'}\nv_mov_b32 v{t+k}, s11")
            e(f"buffer_store_dwordx4 v[{t}:{t+3}], off, {srd(SRD_A)}, s10\nbuffer_store_dwordx4 v[{t+4}:{t+7}], off, {srd(SRD_A)}, s10 offset:16")
            e(f"{skip}:")
            return
        e("s_waitcnt lgkmcnt(0)\ns_mov_b64 exec, 1")
        e(f"s_lshl_b32 s4, s2, 3\ns_add_u32 s4, s4, s3\ns_lshl_b32 s4, s4, 6\ns_add_u32 s4, s4, {STAMPS}")
        e(f"s_mov_b32 s{SRD_WS+2}, 0x1000000")
        regs = list(range(80, 94)) + [100, 101]
        for i in range(4):
            for k in range(4): e(f"v_mov_b32 v{t+k}, s{regs[4*i+k]}")
            e(f"buffer_store_dwordx4 v[{t}:{t+3}], off, {srd(SRD_WS)}, s4 offset:{16*i}")
            e("s_nop 2")

    def selectors(self, sel, base_lo, base_hi, tmp):
        self.e(f"""v_and_b32 v{tmp}, 1, v0
        v_cmp_eq_u32 vcc, 1, v{tmp}
        v_mov_b32 v{base_lo}, 0x0c0c0100
        v_mov_b32 v{tmp}, 0x01000c0c
        v_cndmask_b32 v{base_lo}, v{base_lo}, v{tmp}, vcc
        v_add_u32 v{base_hi}, 0x0202, v{base_lo}
        v_mov_b32 v{tmp}, 0x03020c0c
        v_cndmask_b32 v{base_hi}, v{base_hi}, v{tmp}, vcc
        v_and_b32 v{tmp}, 2, v0
        v_cmp_eq_u32 vcc, 0, v{tmp}
        v_mov_b32 v{tmp}, 0x0c0c0c0c
        v_cndmask_b32 v{sel}, v{tmp}, v{base_lo}, vcc
        v_cndmask_b32 v{sel+1}, v{base_lo}, v{tmp}, vcc
        v_cndmask_b32 v{sel+2}, v{tmp}, v{base_hi}, vcc
        v_cndmask_b32 v{sel+3}, v{base_hi}, v{tmp}, vcc""")

    def masks(self, lo, hi):
        for j in range(4):
            self.e(f"s_mov_b32 s{MASK0+2*j}, {(lo << (2*j)):#x}\ns_mov_b32 s{MASK0+2*j+1}, {(hi << (2*j)):#x}")

    def rws256(self, nload, x, w, acc, base_lo, base_hi, t0, waits=None):
        e = self.e
        for t in range(nload):
            a = t0 + 2 + 4 * (t & 1)
            e(f"v_perm_b32 v{t0}, v{x+(t>>1)}, v{x+(t>>1)}, v{base_hi if t & 1 else base_lo}")
            for j in range(4): e(f"v_cndmask_b32 v{a+j}, 0, v{t0}, s[{MASK0+2*j}:{MASK0+2*j+1}]")
            if waits: e.wait(waits[t])
            e(f"v_mfma_f32_16x16x32_bf16 {vr(acc,4)}, {vr(a,4)}, {vr(w+4*t,4)}, {vr(acc,4) if t else 0}")

    def rws128(self, nload, x, w, acc0, acc1, sel, pa):
        e = self.e
        for t in range(nload):
            p = pa + 2 + 4 * (t & 1)
            sa, sb = (sel + 2, sel + 3) if t & 1 else (sel, sel + 1)
            e(f"v_perm_b32 v{p}, v{x+(t>>1)}, v{x+(t>>1)}, v{sa}\nv_perm_b32 v{p+1}, v{x+(t>>1)}, v{x+(t>>1)}, v{sb}")
            e(f"v_mfma_f32_16x16x32_bf16 {vr(acc0,4)}, {vr(p,4)}, {vr(w+4*t,4)}, {vr(acc0,4) if t else 0}")
            e(f"v_mfma_f32_16x16x32_bf16 {vr(acc1,4)}, {vr(p-2,4)}, {vr(w+4*t,4)}, {vr(acc1,4) if t else 0}")

    def quad_sum(self, ds):
        for r in range(4):
            for d in ds:
                q = f"quad_perm:[{r},{r},{r},{r}] row_mask:0xf bank_mask:0xf"
                self.e(f"v_mov_b32_dpp v{d}, v{d} {q}" if r == 0 else f"v_add_f32_dpp v{d}, v{d+r}, v{d} {q}")

    def swap_red(self, op, x, t, which):
        for s in which:
            self.e(f"v_mov_b32 v{t}, v{x}\nv_permlane{s}_swap_b32 v{x}, v{t}\n{op} v{x}, v{x}, v{t}")

    def row_red(self, op, x, rots):
        for r in rots:
            self.e(f"{op}_dpp v{x}, v{x}, v{x} row_ror:{r} row_mask:0xf bank_mask:0xf")

    def tree(self, op, base, n, width):
        st = 1
        while st < n:
            for i in range(0, n, 2 * st):
                for r in range(width): self.e(f"{op} v{base+width*i+r}, v{base+width*i+r}, v{base+width*(i+st)+r}")
            st *= 2

    def max3_chain(self, op, dst, regs):
        regs = list(regs)
        self.e(f"v_max3_{op} v{dst}, v{regs[0]}, v{regs[1]}, v{regs[2]}")
        regs = regs[3:]
        while len(regs) >= 2:
            self.e(f"v_max3_{op} v{dst}, v{dst}, v{regs[0]}, v{regs[1]}"); regs = regs[2:]
        if regs: self.e(f"v_max_{op} v{dst}, v{dst}, v{regs[0]}")

    def spin_tail(self, top, done, sleep=0):
        if sleep: self.e(f"s_sleep {sleep}")
        self.e(f"s_sub_u32 s{S_SPIN}, s{S_SPIN}, 1\ns_cbranch_scc0 {top}\n{done}:")

    def lds_wait(self, addr, t):
        e = self.e
        top, done = e.lab("L_spin"), e.lab("L_ok")
        e(f"""v_mov_b32 v{t}, {addr}
        s_mov_b32 s{S_SPIN}, {SPIN * 20}
        {top}:
        ds_read_b32 v{t+1}, v{t}
        s_waitcnt lgkmcnt(0)
        v_cmp_ne_u32 vcc, 4, v{t+1}
        s_cbranch_vccz {done}""")
        self.spin_tail(top, done, 2)

    def lds_inc(self, addr, t):
        self.e(f"""v_mov_b32 v{t}, {addr}
        v_mov_b32 v{t+1}, 1
        s_mov_b64 exec, 1
        ds_add_u32 v{t}, v{t+1}
        s_mov_b64 exec, -1""")

    def only_wave(self, w):
        skip = self.e.lab("L_skip")
        self.e(f"s_cmp_lg_u32 s3, {w}\ns_cbranch_scc1 {skip}")
        return skip

    def epoch_load(self):
        self.e(f"s_load_dword s{TAG}, s[{P_WS}:{P_WS+1}], {EPOCH:#x}")

    def epoch_tag(self):
        self.e(f"s_waitcnt lgkmcnt(0)\ns_add_u32 s{TAG}, s{TAG}, 1\ns_xor_b32 s{TAG+1}, s{TAG}, 0x5bd1e995")

    def post_b(self, sg, sslot, t):
        self.e(f"""v_cmp_lt_u32 vcc, 11, v0
        v_add_u32 v{t+3}, 84, v0
        v_cndmask_b32 v{t+2}, v0, v{t+3}, vcc
        v_lshlrev_b32 v{t+2}, 8, v{t+2}
        v_mov_b32 v{t}, s{TAG}
        v_mov_b32 v{t+1}, s{TAG+1}
        s_mul_i32 s10, s{sg}, 3072
        s_lshl_b32 s11, s{sslot}, 3
        s_add_u32 s10, s10, s11
        s_add_u32 s10, s10, {FB}
        s_mov_b64 exec, 0xffffff
        buffer_store_dwordx2 {vr(t,2)}, v{t+2}, {srd(SRD_WS)}, s10 offen sc1
        s_mov_b64 exec, -1""")

    def post_a(self, sid, off, t):
        self.e(f"""v_lshlrev_b32 v{t+2}, 11, v0
        v_mov_b32 v{t}, s{TAG}
        v_mov_b32 v{t+1}, s{TAG+1}
        s_lshl_b32 s10, s{sid}, 3
        s_add_u32 s10, s10, {FA+off}
        buffer_store_dwordx2 {vr(t,2)}, v{t+2}, {srd(SRD_WS)}, s10 offen sc1""")

    def poll_a(self, off, nld, t):
        e = self.e
        top, done = e.lab("L_spin"), e.lab("L_ok")
        e(f"""s_lshl_b32 s10, s4, 11
        s_add_u32 s10, s10, {FA+off}
        v_lshlrev_b32 v{t+4}, 3, v0
        {top}:""")
        for i in range(nld): e(f"buffer_load_dwordx2 {vr(t+2*i,2)}, v{t+4}, {srd(SRD_WS)}, s10 offen offset:{512*i} sc1")
        e(f"s_waitcnt vmcnt(0)\nv_cmp_ne_u64 vcc, s[{TAG}:{TAG+1}], {vr(t,2)}")
        if nld == 2: e(f"v_cmp_ne_u64 s[12:13], s[{TAG}:{TAG+1}], {vr(t+2,2)}\ns_or_b64 vcc, vcc, s[12:13]")
        e(f"s_cbranch_vccz {done}")
        self.spin_tail(top, done, self.o["sleep"])

    def bside(self, kind):
        e = self.e; e.vm = 0; o = self.o
        n = o["np"] if kind == "P" else 16 - 2 * o["np"]
        VK, VL, TMP, SEL, BLO, BHI, QF, AC0, AC1, LS, MX = 1, 2, 3, 4, 8, 9, 10, 14, 18, 22, 23
        T = 24; D0 = 32; KR = 36; VR = 132; PA = 228; U = 246
        L_T1, L_Q, L_MAX, L_L, L_RED, L_T2, L_QA = 0, 8192, 9216, 9344, 16384, 32768, 40960
        S_KV, S_VV, S_G, S_B, S_SP = 5, 6, 7, 8, 9
        e(f"L_{kind}:")
        self.role = kind
        if "no" + kind in self.x: e("s_endpgm")
        self.pt("start")
        e(f"""v_and_b32 v{T}, 3, v0
        v_lshrrev_b32 v{TMP}, 4, v0
        v_lshlrev_b32 v{T+1}, 6, v{TMP}
        v_lshl_add_u32 v{T+1}, v{T}, 4, v{T+1}
        v_bfe_u32 v{T}, v0, 2, 2
        v_lshl_add_u32 v{VK}, v{T}, 8, v{T+1}
        v_lshlrev_b32 v{VL}, 4, v0""")
        if kind == "P":
            e(f"""v_lshl_add_u32 v{T+6}, v{T}, 15, v{T+1}
            v_and_b32 v{T+4}, 15, v0
            v_lshlrev_b32 v{T+4}, 4, v{T+4}
            v_lshl_add_u32 v{T+4}, v{TMP}, 15, v{T+4}
            v_bfe_u32 v{T+5}, v0, 3, 1
            v_lshlrev_b32 v{T+5}, 10, v{T+5}
            v_lshl_add_u32 v{T+5}, v{TMP}, 3, v{T+5}
            s_lshr_b32 s10, s2, 3
            s_and_b32 s{S_SP}, s2, 7
            s_mul_i32 s11, s{S_SP}, {8*n}
            s_mul_i32 s12, s3, {n}
            s_lshr_b32 s13, s2, 2
            s_and_b32 s4, s2, 3""")
        else:
            e(f"""s_sub_u32 s4, s2, 192
            s_lshr_b32 s10, s4, 2
            s_and_b32 s4, s4, 3
            s_add_u32 s{S_SP}, s4, 8
            s_mul_i32 s11, s4, {8*n}
            s_add_u32 s11, s11, {64*o["np"]}
            s_mul_i32 s12, s3, {n}
            v_and_b32 v{T+4}, 15, v0
            v_lshlrev_b32 v{T+4}, 4, v{T+4}
            v_lshl_add_u32 v{T+4}, v{TMP}, 16, v{T+4}
            v_bfe_u32 v{T+5}, v0, 3, 1
            v_lshlrev_b32 v{T+5}, 10, v{T+5}
            v_lshl_add_u32 v{T+5}, v{TMP}, 4, v{T+5}
            s_sub_u32 s13, s2, 192
            s_and_b32 s4, s13, 1
            s_lshr_b32 s13, s13, 1""")
        e(f"""s_and_b32 s{S_G}, s10, 7
        s_lshr_b32 s{S_B}, s10, 3
        s_add_u32 s11, s11, s12
        s_lshl_b32 s11, s11, 12
        s_lshl_b32 s10, s10, 21
        s_add_u32 s{S_KV}, s10, s11
        s_mov_b32 s{S_VV}, s{S_KV}""")
        sh = 7 if kind == "P" else 8
        e(f"""s_lshl_b32 s10, s4, {sh}
        s_lshl_b32 s11, s3, {sh-3}
        s_add_u32 s10, s10, s11
        s_lshl_b32 s11, s10, 1
        s_lshl_b32 s10, s10, 13
        s_lshl_b32 s12, s13, 8
        s_add_u32 s10, s10, s12""")
        e("s_waitcnt lgkmcnt(0)")
        self.epoch_load()
        tags = []
        def issue(upto):
            while len(tags) < min(upto, 8 * n):
                x = len(tags); k = x % (4 * n); j = k & 3
                if x < 4 * n:
                    tags.append(e.mem(f"buffer_load_dwordx4 {vr(KR+4*k,4)}, v{VK}, {srd(SRD_A)}, s{S_KV} offen offset:{1024*j} nt"))
                    if j == 3: e(f"s_add_u32 s{S_KV}, s{S_KV}, 4096")
                else:
                    tags.append(e.mem(f"buffer_load_dwordx4 {vr(VR+4*k,4)}, v{VL}, {srd(SRD_B)}, s{S_VV} offen offset:{1024*j} nt"))
                    if j == 3: e(f"s_add_u32 s{S_VV}, s{S_VV}, 4096")
        def slide(k0, k1, w):
            for k in range(k0, k1):
                e.wait(tags[k]); issue(k + 1 + w)
        self.mk_srd(SRD_WS, P_WS, WS_USED)
        if kind == "P":
            self.mk_srd(SRD_C, P_AX, 2048); self.mk_srd(SRD_D, P_AWQ, 4 << 20)
            skip = self.only_wave(7)
            e(f"""v_lshrrev_b32 v{U+4}, 4, v0
            v_lshlrev_b32 v{U+4}, 15, v{U+4}
            v_and_b32 v{U+5}, 15, v0
            v_lshl_add_u32 v{U+4}, v{U+5}, 4, v{U+4}
            s_lshl_b32 s12, s2, 8
            s_add_u32 s12, s12, {QAP}""")
            for r in range(4): e(f"v_mov_b32 v{U+r}, -1")
            e(f"""s_mov_b32 exec_hi, 0
            buffer_store_dwordx4 {vr(U,4)}, v{U+4}, {srd(SRD_WS)}, s12 offen sc1
            s_mov_b64 exec, -1
            {skip}:""")
            def four(slot, voff, s):
                e("s_mov_b32 s12, s10")
                r = []
                for t in range(4):
                    r.append(e.mem(f"buffer_load_dwordx4 {vr(VR+4*(slot+t),4)}, v{voff}, {srd(s)}, s12 offen nt"))
                    if t < 3: e("s_add_u32 s12, s12, 8192")
                return r
            xa = e.mem(f"buffer_load_dwordx2 {vr(T,2)}, v{T+5}, {srd(SRD_C)}, s11 offen")
            w2 = four(0, T + 4, SRD_D)
            self.mk_srd(SRD_E, P_WUK, 4 << 20)
            if o["t2w"] >= 0: e.wait(w2[o["t2w"]])
            w3 = four(4, T + 6, SRD_E)
        else:
            self.mk_srd(SRD_C, P_BX, 2048); self.mk_srd(SRD_D, P_BWQ, 4 << 20)
            xb = e.mem(f"buffer_load_dwordx4 {vr(T,4)}, v{T+5}, {srd(SRD_C)}, s11 offen")
            w1 = []
            for t in range(8):
                w1.append(e.mem(f"buffer_load_dwordx4 {vr(VR+4*t,4)}, v{T+4}, {srd(SRD_D)}, s10 offen nt"))
                if t < 7: e("s_add_u32 s10, s10, 8192")
            if o["pf"]:
                self.mk_srd(SRD_F, P_CKV, 16 << 20)
                e(f"""s_sub_u32 s10, s2, 192
                s_lshl_b32 s10, s10, 18
                s_lshl_b32 s11, s3, 12
                s_add_u32 s10, s10, s11
                s_add_u32 s10, s10, {262144 - 32768 * o['pf']}""")
                if o["pfw"] >= 0: e.wait(w1[o["pfw"]])
                for t in range(4 * o["pf"]):
                    e.mem(f"buffer_load_dwordx4 {vr(KR+4*t,4)}, v{VL}, {srd(SRD_F)}, s10 offen offset:{1024*(t&3)} nt")
                    if t & 3 == 3: e("s_add_u32 s10, s10, 32768")
        self.mk_srd(SRD_A, P_BK, 32 << 20); self.mk_srd(SRD_B, P_BV, 32 << 20)
        issue(o["pre_p"] if kind == "P" else o["pre_q"])
        e(f"s_mov_b32 s{S_SC}, {f2u(SCALE):#x}\ns_mov_b32 s{S_SPIN}, {SPIN}")
        self.selectors(SEL, BLO, BHI, TMP)
        self.epoch_tag()
        if kind == "P":
            self.masks(0x03030303, 0x03030303)
            skip = self.only_wave(7)
            e(f"s_waitcnt vmcnt({e.vm})")
            self.post_a(2, 0, U)
            e(f"{skip}:")
            e(f"s_lshl_b32 s10, s3, 10\nv_add_u32 v{T+7}, s10, v{VL}")
            e.wait(xa)
            self.rws256(4, T, VR, AC0, BLO, BHI, PA, w2)
            self.pt("t2")
            e(f"ds_write_b128 v{T+7}, {vr(AC0,4)} offset:{L_T2}\ns_waitcnt lgkmcnt(0)\ns_barrier")
            XT = VR + 48
            skip = self.only_wave(0)
            for i in range(8): e(f"ds_read_b128 {vr(XT+4*i,4)}, v{VL} offset:{L_T2+1024*i}")
            e(f"""v_lshrrev_b32 v{U}, 5, v0
            v_lshlrev_b32 v{U}, 10, v{U}
            v_and_b32 v{U+1}, 15, v0
            v_lshl_add_u32 v{U}, v{U+1}, 6, v{U}
            v_bfe_u32 v{U+1}, v0, 4, 1
            v_lshl_add_u32 v{U}, v{U+1}, 5, v{U}
            v_mov_b32 v{U+1}, s{TAG+1}
            s_lshl_b32 s10, s13, 15
            s_lshl_b32 s11, s4, 11
            s_add_u32 s10, s10, s11
            s_add_u32 s10, s10, {XQ}
            s_mov_b32 s11, 0xffffff00
            s_waitcnt lgkmcnt(0)""")
            self.tree("v_add_f32", XT, 8, 4)
            for r in range(4): e(f"v_bfi_b32 v{XT+8+2*r}, s11, v{XT+r}, v{U+1}\nv_mov_b32 v{XT+9+2*r}, s{TAG}")
            for i in range(4):
                e(f"buffer_store_dwordx4 {vr(XT+8,4)}, v{U}, {srd(SRD_WS)}, s10 offen sc1")
                e(f"buffer_store_dwordx4 {vr(XT+12,4)}, v{U}, {srd(SRD_WS)}, s10 offen offset:16 sc1")
                if i < 3: e("s_add_u32 s10, s10, 8192")
            e(f"{skip}:")
            self.pt("xq")
            skip = e.lab("L_skip")
            top, done = e.lab("L_spin"), e.lab("L_ok")
            e(f"""s_cmp_lt_u32 s3, 4
            s_cbranch_scc1 {skip}
            s_lshl_b32 s10, s2, 13
            s_lshl_b32 s11, s3, 9
            s_add_u32 s10, s10, s11
            s_add_u32 s10, s10, {XQ-2048}
            s_add_u32 s11, s10, 4096
            v_lshlrev_b32 v{U}, 3, v0
            v_mov_b32 v{U+1}, 0xff
            s_lshl_b32 s12, s3, 7
            v_lshl_add_u32 v{U+2}, v0, 1, s12
            {top}:""")
            for i in range(4): e(f"buffer_load_dwordx2 {vr(VR+2*i,2)}, v{U}, {srd(SRD_WS)}, s{10+(i>>1)} offen offset:{2048*(i&1)} sc1")
            e("s_waitcnt vmcnt(0)")
            for i in range(4): e(f"v_xor_b32 v{VR+8+i}, s{TAG+1}, v{VR+2*i}\nv_xor_b32 v{VR+1+2*i}, s{TAG}, v{VR+1+2*i}")
            for i in range(4): e(f"v_and_or_b32 v{VR+8+i}, v{VR+8+i}, v{U+1}, v{VR+1+2*i}")
            e(f"""v_or3_b32 v{VR+8}, v{VR+8}, v{VR+9}, v{VR+10}
            v_or_b32 v{VR+8}, v{VR+8}, v{VR+11}
            v_cmp_ne_u32 vcc, 0, v{VR+8}
            s_cbranch_vccz {done}""")
            self.spin_tail(top, done)
            e(f"""v_add_f32 v{VR}, v{VR}, v{VR+2}
            v_add_f32 v{VR+4}, v{VR+4}, v{VR+6}
            v_add_f32 v{VR}, v{VR}, v{VR+4}
            v_cvt_pk_bf16_f32 v{VR}, v{VR}, v{VR}
            ds_write_b16 v{U+2}, v{VR} offset:{L_QA-512}
            {skip}:
            v_bfe_u32 v{U}, v0, 2, 1
            v_lshlrev_b32 v{U+1}, 8, v{U}
            v_and_b32 v{U+2}, 0xf0, v{VK}
            v_add_u32 v{U+1}, v{U+1}, v{U+2}
            v_lshlrev_b32 v{U}, 15, v{U}
            v_lshrrev_b32 v{U+2}, 4, v0
            v_lshl_add_u32 v{U}, v{U+2}, 3, v{U}
            s_lshl_b32 s10, s2, 8
            s_lshl_b32 s11, s3, 5
            s_add_u32 s10, s10, s11
            s_add_u32 s10, s10, {QAP}
            s_waitcnt lgkmcnt(0)
            s_barrier
            ds_read_b128 {vr(QF,4)}, v{U+1} offset:{L_QA}
            s_waitcnt lgkmcnt(0)""")
            self.pt("qa")
            e.wait(w3[3])
            for t in range(4): e(f"v_mfma_f32_16x16x32_bf16 {vr(VR+4*t,4)}, {vr(VR+16+4*t,4)}, {vr(QF,4)}, 0")
            self.quad_sum([VR + 4 * t for t in range(4)])
            e(f"""v_cvt_pk_bf16_f32 v{AC0}, v{VR}, v{VR+4}
            v_cvt_pk_bf16_f32 v{AC0+1}, v{VR+8}, v{VR+12}
            v_min_u32 v{AC0}, -2, v{AC0}
            v_min_u32 v{AC0+1}, -2, v{AC0+1}
            s_mov_b32 exec_lo, 0x00110011
            s_mov_b32 exec_hi, 0x00110011
            buffer_store_dwordx2 {vr(AC0,2)}, v{U}, {srd(SRD_WS)}, s10 offen sc1
            s_mov_b64 exec, -1""")
            self.pt("st")
            issue(o["w1"])
        else:
            self.masks(0x03030303, 0x03030303)
            e(f"s_lshl_b32 s10, s3, 10\nv_add_u32 v{T+7}, s10, v{VL}")
            e.wait(xb)
            self.rws256(8, T, VR, AC1, BLO, BHI, PA, w1)
            e(f"ds_write_b128 v{T+7}, {vr(AC1,4)} offset:{L_T1}\ns_waitcnt lgkmcnt(0)\ns_barrier")
            self.pt("t1")
            skip = self.only_wave(0)
            for i in range(8): e(f"ds_read_b128 {vr(VR+4*i,4)}, v{VL} offset:{L_T1+1024*i}")
            e(f"""v_lshrrev_b32 v{U}, 5, v0
            v_lshlrev_b32 v{U}, 14, v{U}
            v_and_b32 v{U+1}, 15, v0
            v_lshl_add_u32 v{U}, v{U+1}, 5, v{U}
            v_bfe_u32 v{U+1}, v0, 4, 1
            v_lshl_add_u32 v{U}, v{U+1}, 4, v{U}
            s_lshl_b32 s10, s4, 15
            s_lshl_b32 s11, s13, 9
            s_add_u32 s10, s10, s11
            s_add_u32 s10, s10, {QBP}
            s_sub_u32 s12, s2, 192
            s_lshr_b32 s13, s12, 3
            s_and_b32 s12, s12, 7
            s_waitcnt lgkmcnt(0)""")
            self.tree("v_add_f32", VR, 8, 4)
            e(f"buffer_store_dwordx4 {vr(VR,4)}, v{U}, {srd(SRD_WS)}, s10 offen sc1\ns_waitcnt vmcnt(0)")
            self.post_b(13, 12, U)
            e(f"{skip}:")
        kf, wearly = (o["kf_p"], o["w1"]) if kind == "P" else (o["kf_q"], o["wq0"])
        if kind == "Q":
            issue(o["wq1"]); slide(0, o["kq1"], o["wq1"]); issue(o["kq1"] + wearly); slide(o["kq1"], kf, wearly)
        else:
            slide(0, kf, wearly)
        e(f"""s_lshl_b32 s12, s{S_B}, 3
        s_add_u32 s12, s12, s{S_G}
        s_mul_i32 s12, s12, 12
        s_add_u32 s12, s12, s{S_SP}
        s_lshl_b32 s12, s12, 8
        s_add_u32 s12, s12, {FB}
        v_lshlrev_b32 v{T+2}, 3, v0
        s_mov_b64 exec, 0xffff""")
        k1 = len(tags)
        fl = e.mem(f"buffer_load_dwordx2 {vr(T,2)}, v{T+2}, {srd(SRD_WS)}, s12 offen sc1")
        e("s_mov_b64 exec, -1")
        issue(kf + o["wk"])
        slide(kf, k1, o["wk"])
        e(f"""s_lshl_b32 s10, s{S_B}, 14
        s_lshl_b32 s11, s{S_G}, 11
        s_add_u32 s10, s10, s11
        s_lshl_b32 s11, s3, 8
        s_add_u32 s10, s10, s11
        s_add_u32 s10, s10, {QBP}
        v_lshlrev_b32 v{TMP}, 2, v0""")
        e.wait(fl)
        top, done = e.lab("L_spin"), e.lab("L_ok")
        e(f"""s_mov_b64 exec, 0xffff
        {top}:
        v_cmp_ne_u64 vcc, s[{TAG}:{TAG+1}], {vr(T,2)}
        s_cbranch_vccz {done}
        buffer_load_dwordx2 {vr(T,2)}, v{T+2}, {srd(SRD_WS)}, s12 offen sc1
        s_waitcnt vmcnt(0)""")
        self.spin_tail(top, done, o["sleep"])
        e("s_mov_b64 exec, -1")
        self.pt("qf")
        k2 = len(tags)
        for k in range(2):
            qg = e.mem(f"buffer_load_dword v{T+k}, v{TMP}, {srd(SRD_WS)}, s10 offen sc1")
            e("s_add_u32 s10, s10, 32768")
        slide(k1, min(k2, 4 * n), o["wk"])
        e(f"""s_lshl_b32 s10, s3, 7
        v_lshl_add_u32 v{TMP}, v0, 1, s10
        v_bfe_u32 v{T+5}, v0, 2, 2
        v_lshlrev_b32 v{T+5}, 5, v{T+5}""")
        for z in range(0, 18, 4): e(f"v_mov_b32 v{PA+z}, 0\nv_mov_b32 v{PA+z+1}, 0")
        e.wait(qg)
        e(f"""v_add_f32 v{T}, v{T}, v{T+1}
        v_cvt_pk_bf16_f32 v{T}, v{T}, v{T}
        ds_write_b16 v{TMP}, v{T} offset:{L_Q}
        s_waitcnt lgkmcnt(0)
        s_barrier
        ds_read_b128 {vr(QF,4)}, v{VK} offset:{L_Q}
        s_waitcnt lgkmcnt(0)""")
        self.pt("q")
        SK = lambda k: D0 + 4 * k
        for i in range(n + 1):
            if i < n:
                for j in range(4):
                    k = 4 * i + j
                    e.wait(tags[k])
                    issue(k + 1 + (o["wk"] if k < 4 * n - 4 else o["wt"]))
                    e(f"v_mfma_f32_16x16x32_bf16 {vr(SK(k),4)}, {vr(KR+4*k,4)}, {vr(QF,4)}, 0")
            if i > 0:
                ks = [SK(4 * (i - 1) + j) for j in range(4)]
                self.quad_sum(ks)
                self.max3_chain("f32", MX, ks if i == 1 else [MX] + ks)
        self.pt("k")
        self.swap_red("v_max_f32", MX, TMP, (16, 32))
        e(f"""s_lshl_b32 s10, s3, 2
        v_add_u32 v{T+6}, s10, v{T+5}
        ds_write_b32 v{T+6}, v{MX} offset:{L_MAX}
        s_waitcnt lgkmcnt(0)
        s_barrier
        ds_read_b128 {vr(U,4)}, v{T+5} offset:{L_MAX}
        ds_read_b128 {vr(U+4,4)}, v{T+5} offset:{L_MAX+16}
        s_waitcnt lgkmcnt(0)""")
        self.max3_chain("f32", MX, range(U, U + 8))
        e(f"v_mul_f32 v{MX}, s{S_SC}, v{MX}")
        for k in range(4 * n): e(f"v_fma_f32 v{SK(k)}, v{SK(k)}, s{S_SC}, -v{MX}")
        for k in range(4 * n): e(f"v_exp_f32 v{SK(k)}, v{SK(k)}")
        e(f"v_add_f32 v{LS}, v{SK(0)}, v{SK(1)}")
        for k in range(2, 4 * n): e(f"v_add_f32 v{LS}, v{LS}, v{SK(k)}")
        for k in range(0, 4 * n, 2): e(f"v_cvt_pk_bf16_f32 v{SK(k)}, v{SK(k)}, v{SK(k+1)}")
        self.swap_red("v_add_f32", LS, TMP, (16, 32))
        e(f"ds_write_b32 v{T+6}, v{LS} offset:{L_L}")
        self.pt("p")
        for i in range(n):
            for j in range(4):
                k = 4 * i + j; pk = SK(k & ~1); p = PA + 2 + 4 * j
                sa, sb = (SEL + 2, SEL + 3) if k & 1 else (SEL, SEL + 1)
                e(f"v_perm_b32 v{p}, v{pk}, v{pk}, v{sa}\nv_perm_b32 v{p+1}, v{pk}, v{pk}, v{sb}")
            if i == n - 1:
                e(f"""s_lshl_b32 s10, s3, 11
                v_lshl_add_u32 v{T}, v0, 5, s10
                s_lshl_b32 s10, s3, 8
                v_lshl_add_u32 v{T+1}, v0, 2, s10
                v_lshlrev_b32 v{T+2}, 2, v0
                s_lshl_b32 s10, s{S_G}, 3
                s_add_u32 s10, s10, s3
                s_lshl_b32 s10, s10, 14
                s_mul_i32 s11, s{S_B}, 12
                s_add_u32 s11, s11, s{S_SP}
                s_lshl_b32 s11, s11, 8
                s_add_u32 s10, s10, s11
                s_add_u32 s10, s10, {MB}""")
            for j in range(4):
                k = 4 * i + j; p = PA + 2 + 4 * j
                e.wait(tags[4 * n + k])
                issue(4 * n + k + 1 + o["wv"])
                e(f"v_mfma_f32_16x16x32_bf16 {vr(AC0,4)}, {vr(p,4)}, {vr(VR+4*k,4)}, {vr(AC0,4) if k else 0}")
                e(f"v_mfma_f32_16x16x32_bf16 {vr(AC1,4)}, {vr(p-2,4)}, {vr(VR+4*k,4)}, {vr(AC1,4) if k else 0}")
            if i == 1:
                e("s_waitcnt lgkmcnt(0)\ns_barrier")
                skip = self.only_wave(0)
                e(f"""ds_read_b128 {vr(U,4)}, v{T+5} offset:{L_L}
                ds_read_b128 {vr(U+4,4)}, v{T+5} offset:{L_L+16}
                v_bfe_u32 v{T}, v0, 2, 2
                v_lshlrev_b32 v{T}, 15, v{T}
                v_and_b32 v{T+1}, 1, v0
                v_lshl_add_u32 v{T}, v{T+1}, 14, v{T}
                s_lshl_b32 s10, s{S_G}, 17
                s_lshl_b32 s11, s{S_B}, 4
                s_add_u32 s11, s11, s{S_SP}
                s_lshl_b32 s11, s11, 3
                s_add_u32 s10, s10, s11
                s_add_u32 s10, s10, {MB+MB_ST}
                s_waitcnt lgkmcnt(0)""")
                self.tree("v_add_f32", U, 8, 1)
                e(f"""v_min_u32 v{U+1}, -2, v{U}
                v_min_u32 v{U}, -2, v{MX}
                s_mov_b64 exec, 0x3333
                buffer_store_dwordx2 {vr(U,2)}, v{T}, {srd(SRD_WS)}, s10 offen sc1
                s_mov_b64 exec, -1
                {skip}:""")
        self.pt("v")
        e(f"""ds_write_b128 v{T}, {vr(AC0,4)} offset:{L_RED}
        ds_write_b128 v{T}, {vr(AC1,4)} offset:{L_RED+16}
        s_waitcnt lgkmcnt(0)
        s_barrier""")
        for i in range(8): e(f"ds_read_b32 v{U+i}, v{T+1} offset:{L_RED+2048*i}")
        e(f"""s_waitcnt lgkmcnt(6)
        v_add_f32 v{U}, v{U}, v{U+1}
        s_waitcnt lgkmcnt(4)
        v_add_f32 v{U+2}, v{U+2}, v{U+3}
        s_waitcnt lgkmcnt(2)
        v_add_f32 v{U+4}, v{U+4}, v{U+5}
        v_add_f32 v{U}, v{U}, v{U+2}
        s_waitcnt lgkmcnt(0)
        v_add_f32 v{U+6}, v{U+6}, v{U+7}
        v_add_f32 v{U}, v{U}, v{U+4}
        v_add_f32 v{U}, v{U}, v{U+6}
        v_min_u32 v{U}, -2, v{U}
        buffer_store_dword v{U}, v{T+2}, {srd(SRD_WS)}, s10 offen sc1""")
        self.pt("end")
        self.stamp_out(100)
        e("s_endpgm")

    X_MAX, X_P, X_L, X_CNT = 0, 2048, 20480, 24576

    def row_addr(self, dst, t):
        self.e(f"""v_and_b32 v{t}, 3, v0
        v_lshlrev_b32 v{t}, 2, v{t}
        v_bfe_u32 v{t+1}, v0, 2, 2
        v_or_b32 v{t}, v{t}, v{t+1}
        v_lshrrev_b32 v{t+1}, 5, v0
        v_xor_b32 v{t}, v{t}, v{t+1}
        v_lshlrev_b32 v{t}, 4, v{t}
        v_and_b32 v{t+1}, 31, v0
        v_lshl_add_u32 v{dst}, v{t+1}, 10, v{t}""")

    def qk(self, S, FR, AQ, TA, creg=None, AC=None):
        e = self.e
        groups = [(qp, i) for qp in range(2) for i in range(8)]
        buf = (lambda g: FR + 8 * (g & 3)) if creg else (lambda g: FR + 16 * (g & 1))
        tg = {}
        e.ds_reset()
        def rd(g):
            qp, i = groups[g]; f = buf(g)
            e(f"v_xor_b32 v{TA}, {i << 5}, v{AQ}")
            if not creg: e(f"v_xor_b32 v{TA+1}, {i << 5}, v{AC}")
            for q in range(2):
                tg[g, q] = e.ds(f"ds_read_b128 {vr(f+4*q,4)}, v{TA} offset:{512*qp+256*q}")
                if not creg: tg[g, q] = e.ds(f"ds_read_b128 {vr(f+8+4*q,4)}, v{TA+1} offset:{512*qp+256*q}")
        ahead = 3 if creg else 1
        for g in range(ahead): rd(g)
        for g in range(16):
            if g + ahead < 16: rd(g + ahead)
            qp, i = groups[g]; f = buf(g)
            for q in range(2):
                e.dswait(tg[g, q])
                c = creg(i + 8 * (2 * qp + q)) if creg else f + 8 + 4 * q
                e(f"v_mfma_f32_32x32x16_bf16 {vr(S,16)}, {vr(c,4)}, {vr(f+4*q,4)}, {vr(S,16) if g or q else 0}")
            if g == 8: e("s_barrier")

    def softmax(self, S, P, M, T, tile):
        e = self.e
        e(f"""v_and_b32 v{T+2}, 15, v0
        v_lshlrev_b32 v{T+2}, 5, v{T+2}
        v_bfe_u32 v{T+3}, v0, 4, 1
        v_lshl_add_u32 v{T+2}, v{T+3}, 10, v{T+2}
        v_add_u32 v{T+2}, {X}, v{T+2}
        s_lshl_b32 s10, s3, 2
        v_add_u32 v{T+3}, s10, v{T+2}""")
        self.max3_chain("f32", T, range(S, S + 16))
        self.swap_red("v_max_f32", T, T + 1, (32,))
        e(f"""ds_write_b32 v{T+3}, v{T} offset:{self.X_MAX}
        s_waitcnt lgkmcnt(0)
        s_barrier
        ds_read_b128 {vr(P,4)}, v{T+2} offset:{self.X_MAX}
        ds_read_b128 {vr(P+4,4)}, v{T+2} offset:{self.X_MAX+16}
        v_mov_b32 v{T}, {X+self.X_CNT}
        v_mov_b32 v{T+1}, 0
        ds_write2_b32 v{T}, v{T+1}, v{T+1} offset0:0 offset1:16
        ds_write_b32 v{T}, v{T+1} offset:128
        s_lshl_b32 s10, s{tile}, 11
        s_add_u32 s10, s10, {X+self.X_P}
        v_lshl_add_u32 v{T+1}, v0, 4, s10
        s_waitcnt lgkmcnt(0)""")
        self.max3_chain("f32", M, range(P, P + 8))
        e(f"v_mul_f32 v{M}, s{S_SC}, v{M}")
        for r in range(16): e(f"v_fma_f32 v{S+r}, v{S+r}, s{S_SC}, -v{M}")
        for r in range(16): e(f"v_exp_f32 v{S+r}, v{S+r}")
        for r in range(8): e(f"v_cvt_pk_bf16_f32 v{P+r}, v{S+2*r}, v{S+2*r+1}")
        e(f"ds_write_b128 v{T+1}, {vr(P,4)}\nds_write_b128 v{T+1}, {vr(P+4,4)} offset:1024")
        self.tree("v_add_f32", S, 16, 1)
        self.swap_red("v_add_f32", S, T, (32,))
        e(f"ds_write_b32 v{T+3}, v{S} offset:{self.X_L}\ns_waitcnt lgkmcnt(0)\ns_barrier")

    VL, VW, TMP, SEL, BLO, BHI, T, U, W, G, WUV, AC0, AC1, PA, XR = 1, 2, 3, 4, 8, 9, 10, 16, 32, 96, 160, 224, 228, 232, 244
    A_CW, A_CR, A_MB = 13, 14, 15
    S_LW, S_PART, S_PRIV, S_MBJ = 5, 6, 7, 8

    def vw_addr(self):
        VW, T = self.VW, self.T
        self.e(f"""v_lshrrev_b32 v{VW}, 4, v0
        v_lshlrev_b32 v{VW}, 14, v{VW}
        v_and_b32 v{T+1}, 15, v0
        v_lshl_add_u32 v{VW}, v{T+1}, 4, v{VW}""")

    def tail_setup(self):
        VL, T, A_CW, A_CR, A_MB = self.VL, self.T, self.A_CW, self.A_CR, self.A_MB
        self.e(f"""v_lshlrev_b32 v{VL}, 4, v0
        s_lshl_b32 s{self.S_PRIV}, s3, 11
        s_lshl_b32 s{self.S_MBJ}, s4, 14
        s_add_u32 s{self.S_MBJ}, s{self.S_MBJ}, {MB}
        v_lshl_add_u32 v{A_CW}, v0, 2, s{self.S_PRIV}
        v_bfe_u32 v{A_CR}, v0, 3, 1
        v_lshlrev_b32 v{A_CR}, 7, v{A_CR}
        v_lshrrev_b32 v{T+1}, 4, v0
        v_lshl_add_u32 v{A_CR}, v{T+1}, 5, v{A_CR}
        v_add_u32 v{A_CR}, s{self.S_PRIV}, v{A_CR}
        v_lshrrev_b32 v{A_MB}, 5, v0
        v_lshlrev_b32 v{A_MB}, 19, v{A_MB}
        v_bfe_u32 v{T+1}, v0, 1, 3
        v_lshl_add_u32 v{A_MB}, v{T+1}, 14, v{A_MB}
        v_and_b32 v{T+1}, 1, v0
        v_lshl_add_u32 v{A_MB}, v{T+1}, 5, v{A_MB}
        v_bfe_u32 v{T+1}, v0, 4, 1
        v_lshl_add_u32 v{A_MB}, v{T+1}, 4, v{A_MB}""")
        self.selectors(self.SEL, self.BLO, self.BHI, self.TMP)

    def wload(self, s):
        e = self.e
        e(f"s_lshl_b32 s10, s4, 16\ns_lshl_b32 s11, s{self.S_LW}, 8\ns_add_u32 s10, s10, s11")
        for t in range(16):
            e.mem(f"buffer_load_dwordx4 {vr(self.W+4*t,4)}, v{self.VW}, {srd(s)}, s10 offen offset:{1024*(t&3)} nt")
            if t & 3 == 3: e("s_add_u32 s10, s10, 4096")

    def a_compute(self):
        e = self.e; e.vm = 0
        AC, AT, AQ, M, TA, T = 1, 2, 3, 4, 6, 8
        FR, S, O, PV = 16, 48, 64, 128
        e("L_AC:")
        self.role = "AC"
        self.pt("start")
        e(f"v_lshlrev_b32 v{T}, 4, v0\ns_waitcnt lgkmcnt(0)")
        self.epoch_load()
        self.mk_srd(SRD_WS, P_WS, WS_USED); self.mk_srd(SRD_D, P_BWO, 4 << 20); self.mk_srd(SRD_E, P_OUT, 4096)
        for r in range(4): e(f"v_mov_b32 v{FR+r}, -1")
        e(f"s_lshl_b32 s10, s4, 14\ns_lshl_b32 s11, s3, 12\ns_add_u32 s10, s10, s11\ns_add_u32 s10, s10, {MB}")
        for i in range(4): e(f"buffer_store_dwordx4 {vr(FR,4)}, v{T}, {srd(SRD_WS)}, s10 offen offset:{1024*i} sc1")
        e(f"s_mov_b32 s{S_SC}, {f2u(SCALE):#x}\ns_mov_b32 s{S_SPIN}, {SPIN}")
        self.row_addr(AC, T + 1)
        e(f"""v_add_u32 v{AQ}, {X}, v{AC}
        s_lshl_b32 s10, s3, 15
        v_add_u32 v{AC}, s10, v{AC}
        v_lshrrev_b32 v{T+2}, 5, v0
        v_bfe_u32 v{T+1}, v0, 2, 2
        v_lshl_add_u32 v{T+3}, v{T+2}, 2, v{T+1}
        v_lshlrev_b32 v{AT}, 10, v{T+3}
        v_bfe_u32 v{T+3}, v0, 4, 1
        v_lshlrev_b32 v{T+3}, 1, v{T+3}
        v_bfe_u32 v{T+4}, v0, 1, 1
        v_or_b32 v{T+3}, v{T+3}, v{T+4}
        v_xor_b32 v{T+3}, v{T+3}, v{T+2}
        v_lshl_add_u32 v{T+3}, v{T+1}, 2, v{T+3}
        v_lshl_add_u32 v{AT}, v{T+3}, 4, v{AT}
        v_and_b32 v{T+3}, 1, v0
        v_lshl_add_u32 v{AT}, v{T+3}, 3, v{AT}
        s_lshl_b32 s10, s3, 8
        v_add_u32 v{AT}, s10, v{AT}""")
        self.epoch_tag()
        def tr_addr():
            for k in range(8):
                e(f"v_xor_b32 v{S+k}, {(2*k) << 4}, v{AT}")
                if k & 1: e(f"v_add_u32 v{S+k}, 8192, v{S+k}")
        def tr_step():
            for k in range(8): e(f"v_add_u32 v{S+k}, 65536, v{S+k}")
        def tr_ct(u, ct):
            for hh in range(2):
                last = e.ds(f"ds_read_b64_tr_b16 {vr(PV+16*(u&7)+4*ct+2*hh,2)}, v{S+2*ct+hh} offset:{32768*((u>>1)&1)+16384*(u&1)}")
            return last
        tr_addr()
        e(f"""s_lshl_b32 s9, s4, 11
        s_add_u32 s9, s9, {FA}
        v_lshlrev_b32 v{FR+8}, 3, v0""")
        def qc_load():
            for i in range(2): e(f"buffer_load_dwordx2 {vr(FR+4+2*i,2)}, v{FR+8}, {srd(SRD_WS)}, s9 offen offset:{512*i} sc1")
        for t in range(4):
            if t == 2: e("s_waitcnt vmcnt(0)")
            e("s_barrier")
            self.pt(f"t{t}")
            if t == 2:
                qc_load(); tr_step()
                skip = self.only_wave(0)
                e("s_lshr_b32 s12, s4, 3\ns_and_b32 s13, s4, 7\ns_add_u32 s13, s13, 8")
                self.post_b(12, 13, FR)
                e(f"{skip}:")
            e.ds_reset()
            for u in (2 * t, 2 * t + 1):
                for ct in range(4): tr_ct(u, ct)
            e("s_waitcnt lgkmcnt(0)")
        e("s_barrier\ns_barrier")
        self.pt("half")
        top, done = e.lab("L_spin"), e.lab("L_ok")
        e(f"""{top}:
        s_waitcnt vmcnt(0)
        v_cmp_ne_u64 vcc, s[{TAG}:{TAG+1}], {vr(FR+4,2)}
        v_cmp_ne_u64 s[12:13], s[{TAG}:{TAG+1}], {vr(FR+6,2)}
        s_or_b64 vcc, vcc, s[12:13]
        s_cbranch_vccz {done}""")
        qc_load()
        self.spin_tail(top, done)
        self.pt("qc")
        e(f"""s_lshr_b32 s10, s4, 5
        s_lshl_b32 s10, s10, 15
        s_lshl_b32 s11, s3, 13
        s_add_u32 s10, s10, s11
        s_add_u32 s10, s10, {QAP}
        s_add_u32 s11, s10, 4096
        s_lshl_b32 s12, s3, 13
        s_add_u32 s12, s12, {X}
        s_and_b32 s13, s3, 1
        s_lshl_b32 s13, s13, 5
        v_xor_b32 v{T+1}, s13, v{T}
        v_add_u32 v{T+1}, s12, v{T+1}""")
        top, done = e.lab("L_spin"), e.lab("L_ok")
        e(f"{top}:")
        for i in range(8): e(f"buffer_load_dwordx4 {vr(O+4*i,4)}, v{T}, {srd(SRD_WS)}, s{10+(i>>2)} offen offset:{1024*(i&3)} sc1")
        e("s_waitcnt vmcnt(0)")
        self.max3_chain("u32", T + 2, range(O, O + 16)); self.max3_chain("u32", T + 3, range(O + 16, O + 32))
        e(f"v_max_u32 v{T+2}, v{T+2}, v{T+3}\nv_cmp_eq_u32 vcc, -1, v{T+2}\ns_cbranch_vccz {done}")
        self.spin_tail(top, done)
        self.pt("qd")
        for i in range(8):
            sw = ((i & 3) << 2) | (i >> 2)
            e(f"v_xor_b32 v{TA+(i&1)}, {sw << 4}, v{T+1}\nds_write_b128 v{TA+(i&1)}, {vr(O+4*i,4)} offset:{1024*i}")
        e("s_add_u32 s9, s3, 4\ns_waitcnt lgkmcnt(0)\ns_barrier")
        self.pt("b1")
        self.qk(S, FR, AQ, TA, AC=AC)
        self.pt("qk")
        self.softmax(S, FR, M, T + 1, 9)
        self.pt("bp")
        e(f"v_add_u32 v{T}, {X+self.X_P}, v{T}")
        e.ds_reset()
        pt_, tt_ = {}, {}
        def pread(u): pt_[u] = e.ds(f"ds_read_b128 {vr(FR+4*(u&7),4)}, v{T} offset:{1024*u}")
        for u in range(8): pread(u)
        tr_addr()
        for u in range(16):
            e.dswait(max(pt_[u], tt_.get(u, 0)))
            if u == 4: tr_step()
            for ct in range(4):
                e(f"v_mfma_f32_32x32x16_bf16 {vr(O+16*ct,16)}, {vr(FR+4*(u&7),4)}, {vr(PV+16*(u&7)+4*ct,4)}, {vr(O+16*ct,16) if u else 0}")
                if u < 8: tt_[u + 8] = tr_ct(u + 8, ct)
            if u < 8: pread(u + 8)
        self.pt("pv")
        e(f"""v_lshrrev_b32 v{T}, 5, v0
        v_lshlrev_b32 v{T}, 18, v{T}
        v_and_b32 v{T+1}, 31, v0
        v_lshl_add_u32 v{T}, v{T+1}, 3, v{T}
        s_lshl_b32 s10, s4, 10
        s_lshl_b32 s11, s3, 8
        s_add_u32 s10, s10, s11
        s_add_u32 s10, s10, {AP}""")
        for r in range(16):
            d = FR + 2 * r
            e(f"v_cvt_pk_bf16_f32 v{d}, v{O+r}, v{O+16+r}\nv_cvt_pk_bf16_f32 v{d+1}, v{O+32+r}, v{O+48+r}")
            e(f"buffer_store_dwordx2 {vr(d,2)}, v{T}, {srd(SRD_WS)}, s10 offen sc1")
            e(f"s_add_u32 s10, s10, {65536 * (5 if r & 3 == 3 else 1)}")
        skip = self.only_wave(0)
        e(f"""ds_read_b128 {vr(S,4)}, v{T+3} offset:{self.X_L}
        ds_read_b128 {vr(S+4,4)}, v{T+3} offset:{self.X_L+16}
        v_lshlrev_b32 v{T+1}, 9, v{T+1}
        s_lshl_b32 s10, s4, 3
        s_add_u32 s10, s10, {AST}
        s_waitcnt lgkmcnt(0)""")
        self.tree("v_add_f32", S, 8, 1)
        e(f"""v_mov_b32 v{S+1}, v{S}
        v_mov_b32 v{S}, v{M}
        s_mov_b32 exec_hi, 0
        buffer_store_dwordx2 {vr(S,2)}, v{T+1}, {srd(SRD_WS)}, s10 offen sc1
        s_mov_b64 exec, -1
        {skip}:
        s_mov_b32 s5, s3
        s_mov_b32 s6, 1""")
        skip = e.lab("L_skip")
        e(f"""v_mov_b32 v100, {X+self.X_CNT+64}
        v_mov_b32 v101, 1
        s_mov_b64 exec, 1
        s_waitcnt vmcnt(0)
        ds_add_rtn_u32 v102, v100, v101
        s_waitcnt lgkmcnt(0)
        v_cmp_eq_u32 vcc, 3, v102
        s_mov_b64 exec, -1
        s_cbranch_vccz {skip}""")
        self.post_a(4, 1024, 96)
        e(f"{skip}:")
        self.pt("b9")
        self.vw_addr()
        self.tail_setup()
        self.masks(0x03030303, 0x03030303)
        self.lds_wait(X + self.X_CNT + 128, 100)
        e(f"s_mov_b32 s{S_SPIN}, {SPIN}")
        self.wload(SRD_D)
        self.b_pre()

    def b_pre(self):
        e = self.e
        T, U, G, A_CW, S_PRIV, S_MBJ = self.T, self.U, self.G, self.A_CW, self.S_PRIV, self.S_MBJ
        e(f"""v_lshlrev_b32 v{T}, 3, v0
        s_add_u32 s10, s{S_MBJ}, {MB_ST}
        s_mov_b32 s12, 0x0fff0fff
        s_mov_b32 s13, 0""")
        top, done = e.lab("L_spin"), e.lab("L_ok")
        e(f"""{top}:
        buffer_load_dwordx2 {vr(U,2)}, v{T}, {srd(SRD_WS)}, s10 offen sc1
        s_waitcnt vmcnt(0)
        v_max_u32 v{U+2}, v{U}, v{U+1}
        v_cmp_eq_u32 vcc, -1, v{U+2}
        s_and_b64 vcc, vcc, s[12:13]
        s_cbranch_vccz {done}""")
        self.spin_tail(top, done)
        self.pt("bstat")
        e(f"""v_mov_b32 v{U+2}, 0xff800000
        v_cndmask_b32 v{U}, v{U+2}, v{U}, s[12:13]
        v_cndmask_b32 v{U+1}, 0, v{U+1}, s[12:13]
        v_mov_b32 v{U+2}, v{U}""")
        self.row_red("v_max_f32", U + 2, (1, 2, 4, 8))
        e(f"v_sub_f32 v{U}, v{U}, v{U+2}\nv_exp_f32 v{U}, v{U}\nv_mul_f32 v{U+1}, v{U}, v{U+1}")
        self.row_red("v_add_f32", U + 1, (1, 2, 4, 8))
        WG = 160
        e(f"""v_rcp_f32 v{U+1}, v{U+1}
        v_mul_f32 v{U}, v{U}, v{U+1}
        ds_write_b32 v{A_CW}, v{U} offset:1536
        v_lshrrev_b32 v{T}, 5, v0
        v_lshl_add_u32 v{T+1}, v{T}, 6, s{S_PRIV}
        v_mul_u32_u24 v{T}, 3072, v{T}
        v_and_b32 v{T+2}, 31, v0
        v_lshl_add_u32 v{T}, v{T+2}, 3, v{T}
        s_waitcnt lgkmcnt(0)""")
        for q in range(3): e(f"ds_read_b128 {vr(WG+4*q,4)}, v{T+1} offset:{1536+16*q}")
        top, done = e.lab("L_spin"), e.lab("L_ok")
        e(f"{top}:")
        for sp in range(12): e(f"buffer_load_dwordx2 {vr(G+2*sp,2)}, v{T}, {srd(SRD_WS)}, s{S_MBJ} offen offset:{256*sp} sc1")
        e("s_waitcnt vmcnt(0) lgkmcnt(0)")
        self.max3_chain("u32", T + 1, range(G, G + 12)); self.max3_chain("u32", T + 2, range(G + 12, G + 24))
        e(f"v_max_u32 v{T+1}, v{T+1}, v{T+2}\nv_cmp_eq_u32 vcc, -1, v{T+1}\ns_cbranch_vccz {done}")
        self.spin_tail(top, done)
        self.pt("bo")
        e(f"v_mul_f32 v{U}, v{G}, v{WG}\nv_mul_f32 v{U+1}, v{G+1}, v{WG}\nv_mul_f32 v{U+2}, v{G+2}, v{WG+1}\nv_mul_f32 v{U+3}, v{G+3}, v{WG+1}")
        for sp in range(2, 12):
            k = 2 * (sp & 1)
            e(f"v_fmac_f32 v{U+k}, v{G+2*sp}, v{WG+sp}\nv_fmac_f32 v{U+k+1}, v{G+2*sp+1}, v{WG+sp}")
        e(f"v_add_f32 v{U}, v{U}, v{U+2}\nv_add_f32 v{U+1}, v{U+1}, v{U+3}\ns_branch L_CORE")

    def a_loader(self):
        e = self.e; e.vm = 0
        VL, VW, TMP, SEL, BLO, BHI, T, U, W, G, WUV, AC0, AC1, PA, XR = (self.VL, self.VW, self.TMP, self.SEL, self.BLO,
            self.BHI, self.T, self.U, self.W, self.G, self.WUV, self.AC0, self.AC1, self.PA, self.XR)
        S_LW, S_PART, S_PRIV, S_MBJ = self.S_LW, self.S_PART, self.S_PRIV, self.S_MBJ
        XO, S, FR, AQ, AC, TA, M = 232, 16, 224, 4, 5, 6, 8
        CNT = X + self.X_CNT
        creg = lambda ks: (W + 4 * ks) if ks < 16 else (WUV + 4 * (ks - 16))
        e("L_AL:")
        self.role = "AL"
        self.pt("start")
        e(f"""s_sub_u32 s{S_LW}, s3, 4
        s_and_b32 s10, s3, 1
        s_lshl_b32 s10, s10, 5
        v_lshlrev_b32 v{VL}, 4, v0
        v_xor_b32 v{T}, s10, v{VL}""")
        for i in range(8): e(f"v_xor_b32 v{XO+i}, {(((i & 3) << 2) | (i >> 2)) << 4}, v{T}")
        e(f"""s_lshl_b32 s66, s4, 18
        s_lshl_b32 s67, s{S_LW}, 13
        s_add_u32 s66, s66, s67
        s_waitcnt lgkmcnt(0)""")
        self.epoch_load()
        self.mk_srd(SRD_A, P_CKV, 16 << 20)
        dma = []
        def dma_tile(t):
            for r in range(8):
                if r & 3 == 0: e("s_mov_b32 m0, s67")
                last = e.mem(f"buffer_load_dwordx4 v{XO+r}, {srd(SRD_A)}, s66 offen offset:{1024*(r&3)} nt lds")
                if r == 3: e("s_add_u32 s66, s66, 4096\ns_add_u32 s67, s67, 4096")
                if r == 7: e(f"s_add_u32 s66, s66, 28672\ns_add_u32 s67, s67, {28672 if t != 3 else (28672 - 131072) & 0xffffffff:#x}")
            dma.append(last)
        a0 = self.o["a0"]
        for t in range(a0): dma_tile(t)
        self.mk_srd(SRD_B, P_WUV, 4 << 20); self.mk_srd(SRD_C, P_AWO, 4 << 20)
        self.mk_srd(SRD_F, P_OUT, 4096); self.mk_srd(SRD_WS, P_WS, WS_USED)
        self.row_addr(AC, T)
        e(f"""v_add_u32 v{AQ}, {X}, v{AC}
        s_lshl_b32 s10, s{S_LW}, 15
        v_add_u32 v{AC}, s10, v{AC}
        s_mov_b32 s{S_SC}, {f2u(SCALE):#x}
        s_mov_b32 s{S_SPIN}, {SPIN}
        s_mov_b32 s{S_PART}, 0""")
        self.epoch_tag()
        for t in range(5):
            if t < 4: e.wait(dma[t])
            e("s_barrier")
            self.pt(f"bar{t}")
            while len(dma) < min(8, a0 + t + 1, 4 + t) or (t == 4 and len(dma) < 8): dma_tile(len(dma))
            self.pt(f"iss{t}")
            if t < 4:
                skip = self.only_wave(4 + t)
                for i in range(8):
                    e(f"v_xor_b32 v{TA+(i&1)}, {i << 5}, v{AC}")
                    for q in range(4): e(f"ds_read_b128 {vr(creg(i+8*q),4)}, v{TA+(i&1)} offset:{256*q}")
                    if i & 1: e("s_waitcnt lgkmcnt(4)")
                e(f"s_waitcnt lgkmcnt(0)\n{skip}:")
        if self.stamps:
            for t in (4, 5, 6): e.wait(dma[t]); self.pt(f"d{t}")
        UV, GA = 96, 160
        e(f"""v_lshrrev_b32 v{BHI}, 3, v0
        v_lshlrev_b32 v{BHI}, 17, v{BHI}
        v_and_b32 v{T+1}, 7, v0
        v_lshl_add_u32 v{BHI}, v{T+1}, 4, v{BHI}
        s_lshl_b32 s9, s{S_LW}, 20
        s_lshl_b32 s11, s4, 7
        s_add_u32 s9, s9, s11""")
        def uv(t0, t1):
            for t in range(t0, t1):
                e.mem(f"buffer_load_dwordx4 {vr(UV+4*t,4)}, v{BHI}, {srd(SRD_B)}, s9 offen nt")
                e("s_add_u32 s9, s9, 8192")
        uv0, uv1 = self.o["uv0"], max(self.o["uv0"], self.o["uv1"])
        uv(0, uv0)
        e("s_barrier")
        self.mk_srd(SRD_E, SRD_F, 4096)
        self.vw_addr()
        e.wait(dma[7])
        self.pt("dma")
        e("s_barrier")
        uv(uv0, uv1)
        self.qk(S, FR, AQ, TA, creg=creg)
        if self.o["wo_at"] == 0: self.wload(SRD_C)
        self.softmax(S, FR, M, T, S_LW)
        uv(uv1, 16)
        if self.o["wo_at"] == 1: self.wload(SRD_C)
        self.tail_setup()
        self.lds_wait(CNT + 64, T)
        e(f"s_mov_b32 s{S_SPIN}, {SPIN}")
        self.pt("b9")
        if self.o["wo_at"] == 2: self.wload(SRD_C)
        self.poll_a(1024, 1, U)
        self.pt("apf")
        e.vm = 0
        e(f"""s_lshr_b32 s12, s4, 1
        s_lshl_b32 s10, s12, 9
        s_add_u32 s10, s10, {AST}
        v_lshlrev_b32 v{T}, 3, v0""")
        st = e.mem(f"buffer_load_dwordx2 {vr(U,2)}, v{T}, {srd(SRD_WS)}, s10 offen sc1")
        e(f"""s_lshl_b32 s10, s12, 16
        s_lshl_b32 s11, s{S_LW}, 8
        s_add_u32 s10, s10, s11
        s_add_u32 s10, s10, {AP}""")
        g = []
        for t in range(16):
            g.append(e.mem(f"buffer_load_dwordx4 {vr(GA+4*t,4)}, v{VW}, {srd(SRD_WS)}, s10 offen offset:{1024*(t&3)} sc1"))
            if t & 3 == 3: e("s_add_u32 s10, s10, 4096")
        self.masks(0x00030003, 0x03000300)
        e(f"""v_lshl_add_u32 v{T}, v0, 1, s{S_PRIV}
        v_lshrrev_b32 v{T+1}, 4, v0
        v_lshl_add_u32 v{T+1}, v{T+1}, 5, s{S_PRIV}""")
        e.wait(st)
        e(f"v_mov_b32 v{U+2}, v{U}")
        self.row_red("v_max_f32", U + 2, (1, 2, 4, 8)); self.swap_red("v_max_f32", U + 2, TMP, (16,))
        e(f"v_sub_f32 v{U}, v{U}, v{U+2}\nv_exp_f32 v{U}, v{U}\nv_mul_f32 v{U+1}, v{U}, v{U+1}")
        self.row_red("v_add_f32", U + 1, (1, 2, 4, 8)); self.swap_red("v_add_f32", U + 1, TMP, (16,))
        e(f"""v_rcp_f32 v{U+1}, v{U+1}
        v_mul_f32 v{U}, v{U}, v{U+1}
        v_cvt_pk_bf16_f32 v{U}, v{U}, v{U}
        ds_write_b16 v{T}, v{U}
        s_waitcnt lgkmcnt(0)
        ds_read_b128 {vr(XR,4)}, v{T+1}
        ds_read_b128 {vr(XR+4,4)}, v{T+1} offset:16
        v_lshrrev_b32 v{T}, 5, v0
        v_lshlrev_b32 v{T}, 8, v{T}
        v_and_b32 v{T+1}, 15, v0
        v_lshl_add_u32 v{T}, v{T+1}, 2, v{T}
        v_bfe_u32 v{T+1}, v0, 4, 1
        v_lshl_add_u32 v{T}, v{T+1}, 1, v{T}
        v_add_u32 v{T}, s{S_PRIV}, v{T}
        v_bfe_u32 v{T+1}, v0, 3, 1
        v_lshlrev_b32 v{T+1}, 8, v{T+1}
        v_lshrrev_b32 v{T+2}, 4, v0
        v_lshl_add_u32 v{T+1}, v{T+2}, 6, v{T+1}
        v_bfe_u32 v{T+2}, v0, 2, 1
        v_lshl_add_u32 v{T+1}, v{T+2}, 5, v{T+1}
        v_add_u32 v{T+1}, s{S_PRIV}, v{T+1}
        s_waitcnt lgkmcnt(0)""")
        self.rws256(16, XR, GA, AC0, BLO, BHI, PA, g)
        self.lds_inc(CNT + 128, U + 2)
        self.pt("lat")
        e(f"""v_cvt_pk_bf16_f32 v{U}, v{AC0}, v{AC0+1}
        v_cvt_pk_bf16_f32 v{U+1}, v{AC0+2}, v{AC0+3}
        ds_write_b16 v{T}, v{U} offset:256
        ds_write_b16_d16_hi v{T}, v{U} offset:320
        ds_write_b16 v{T}, v{U+1} offset:384
        ds_write_b16_d16_hi v{T}, v{U+1} offset:448
        s_waitcnt lgkmcnt(0)
        ds_read_b128 {vr(XR,4)}, v{T+1} offset:256
        ds_read_b128 {vr(XR+4,4)}, v{T+1} offset:272""")
        for z in (0, 1, 4, 5, 8, 9): e(f"v_mov_b32 v{PA+z}, 0")
        e(f"""v_bfe_u32 v{T}, v0, 3, 1
        v_lshlrev_b32 v{T}, 9, v{T}
        v_lshrrev_b32 v{T+1}, 5, v0
        v_lshl_add_u32 v{T}, v{T+1}, 8, v{T}
        v_and_b32 v{T+1}, 7, v0
        v_lshl_add_u32 v{T}, v{T+1}, 5, v{T}
        s_lshl_b32 s10, s{S_LW}, 10
        v_add_u32 v{T}, s10, v{T}
        s_waitcnt lgkmcnt(0)""")
        self.rws128(16, XR, UV, AC0, AC1, SEL, PA)
        RED = 16384
        e(f"""s_mov_b32 exec_lo, 0xff0000ff
        s_mov_b32 exec_hi, 0xff0000ff
        ds_write_b128 v{T}, {vr(AC0,4)} offset:{RED}
        ds_write_b128 v{T}, {vr(AC1,4)} offset:{RED+16}
        s_mov_b64 exec, -1
        v_lshlrev_b32 v{T}, 3, v0""")
        self.lds_inc(CNT, T + 1)
        self.masks(0x03030303, 0x03030303)
        top, done = e.lab("L_spin"), e.lab("L_ok")
        e(f"""{top}:
        ds_read_b32 v{T+2}, v{T+1}
        s_waitcnt lgkmcnt(0)
        v_cmp_ne_u32 vcc, 4, v{T+2}
        s_cbranch_vccz {done}""")
        self.spin_tail(top, done)
        for i in range(8): e(f"ds_read_b64 {vr(U+2*i,2)}, v{T} offset:{RED+512*i}")
        e("s_waitcnt lgkmcnt(0)")
        self.tree("v_add_f32", U, 8, 2)
        self.pt("ctx")
        A_CW, A_CR, A_MB = self.A_CW, self.A_CR, self.A_MB
        e(f"""L_CORE:
        v_cvt_pk_bf16_f32 v{U}, v{U}, v{U+1}
        ds_write_b32 v{A_CW}, v{U} offset:1024
        s_lshl_b32 s10, s{S_LW}, 17
        s_lshl_b32 s11, s4, 6
        s_add_u32 s10, s10, s11
        s_lshl_b32 s11, s{S_PART}, 12
        s_add_u32 s10, s10, s11
        s_add_u32 s10, s10, {MB+MB_2}
        s_waitcnt lgkmcnt(0)
        ds_read_b128 {vr(XR,4)}, v{A_CR} offset:1024
        ds_read_b128 {vr(XR+4,4)}, v{A_CR} offset:1040
        s_waitcnt lgkmcnt(0)""")
        self.rws256(16, XR, W, AC0, BLO, BHI, PA)
        for r in range(4): e(f"v_min_u32 v{AC0+r}, -2, v{AC0+r}")
        e(f"buffer_store_dwordx4 {vr(AC0,4)}, v{A_MB}, {srd(SRD_WS)}, s10 offen sc1")
        self.pt("core")
        e(f"s_cmp_lg_u32 s{S_LW}, 0\ns_cbranch_scc1 L_FINDONE")
        e(f"s_add_u32 s10, s{S_MBJ}, s11\ns_add_u32 s10, s10, {MB_2}")
        top, done = e.lab("L_spin"), e.lab("L_ok")
        e(f"{top}:")
        for i in range(4): e(f"buffer_load_dwordx4 {vr(G+4*i,4)}, v{VL}, {srd(SRD_WS)}, s10 offen offset:{1024*i} sc1")
        e("s_waitcnt vmcnt(0)")
        self.max3_chain("u32", T, range(G, G + 16))
        e(f"v_cmp_eq_u32 vcc, -1, v{T}\ns_cbranch_vccz {done}")
        self.spin_tail(top, done)
        self.tree("v_add_f32", G, 4, 4)
        for rot in (4, 8):
            for r in range(4): self.row_red("v_add_f32", G + r, (rot,))
        for s in (16, 32):
            for r in range(4): e(f"v_mov_b32 v{G+4+r}, v{G+r}")
            for r in range(4): e(f"v_permlane{s}_swap_b32 v{G+r}, v{G+4+r}")
            for r in range(4): e(f"v_add_f32 v{G+r}, v{G+r}, v{G+4+r}")
        e(f"""v_cvt_pk_bf16_f32 v{G}, v{G}, v{G+1}
        v_cvt_pk_bf16_f32 v{G+1}, v{G+2}, v{G+3}
        v_lshlrev_b32 v{T}, 3, v0
        s_lshr_b32 s10, s4, 5
        s_lshl_b32 s10, s10, 11
        s_and_b32 s11, s4, 31
        s_lshl_b32 s11, s11, 5
        s_add_u32 s10, s10, s11
        s_lshl_b32 s11, s{S_PART}, 10
        s_add_u32 s10, s10, s11
        s_mov_b64 exec, 15
        buffer_store_dwordx2 {vr(G,2)}, v{T}, {srd(SRD_E)}, s10 offen
        s_lshl_b32 s10, s4, 1
        s_add_u32 s10, s10, s{S_PART}
        s_cmp_lg_u32 s10, 1
        s_cbranch_scc1 L_FINDONE
        s_mov_b64 exec, 1
        v_mov_b32 v{T}, s{TAG}
        s_mov_b32 s10, {EPOCH}
        buffer_store_dword v{T}, off, {srd(SRD_WS)}, s10
        L_FINDONE:""")
        self.pt("end")
        self.stamp_out(16)
        e("s_endpgm")

    def build(self):
        e = self.e
        e("""s_cmp_ge_u32 s2, 256
        s_cbranch_scc1 L_END
        s_load_dwordx16 s[16:31], s[0:1], 0
        s_load_dwordx8 s[32:39], s[0:1], 64
        s_load_dwordx4 s[40:43], s[0:1], 96
        v_lshrrev_b32 v1, 6, v0
        v_and_b32 v0, 63, v0
        v_readfirstlane_b32 s3, v1
        s_cmp_lt_u32 s2, 128
        s_cbranch_scc1 L_P
        s_cmp_ge_u32 s2, 192
        s_cbranch_scc1 L_Q
        s_sub_u32 s4, s2, 128
        s_cmp_lt_u32 s3, 4
        s_cbranch_scc1 L_AC""")
        self.a_loader()
        self.bside("P")
        self.bside("Q")
        self.a_compute()
        e("L_END:\ns_endpgm")
        body, npad = fix_hazards(e.L)
        out = [HEADER.rstrip(), "; @launch grid=(256,1,1) block=(512,1,1) lds=163840",
               '.amdgcn_target "amdgcn-amd-amdhsa--gfx950"', ".text", f".globl {NAME}_kernel", ".p2align 8",
               f".type {NAME}_kernel,@function", f"{NAME}_kernel:"]
        out += [("" if l.endswith(":") else "    ") + l for l in body]
        out += ['.section .rodata,"a"', ".p2align 6", f".amdhsa_kernel {NAME}_kernel",
                "  .amdhsa_next_free_vgpr 256", "  .amdhsa_next_free_sgpr 102", "  .amdhsa_accum_offset 256",
                "  .amdhsa_group_segment_fixed_size 0", "  .amdhsa_kernarg_size 112", "  .amdhsa_user_sgpr_count 2",
                "  .amdhsa_user_sgpr_kernarg_segment_ptr 1", "  .amdhsa_system_sgpr_workgroup_id_x 1",
                ".end_amdhsa_kernel"]
        return "\n".join(out) + "\n", npad

PTS = {"P": "start,t2,xq,st,qf,k,v,end", "Q": "start,t1,qf,q,k,p,v,end",
       "AC": "start,end,qc,qd,b1,core,b9,bo", "AL": "start,end,dma,b9,apf,core,lat,ctx"}

if __name__ == "__main__":
    ap = argparse.ArgumentParser()
    ap.add_argument("out"); ap.add_argument("--stamps", action="store_true")
    ap.add_argument("--pts", action="append", default=[]); ap.add_argument("--x", default="")
    for k, v in DEFAULTS.items(): ap.add_argument("--" + k, type=int, default=v)
    a = ap.parse_args()
    pts = {}
    if a.stamps:
        pts = {k: v.split(",") for k, v in PTS.items()}
        for p in a.pts:
            r, l = p.split(":"); pts[r] = l.split(",")
    s, npad = Gen({k: getattr(a, k) for k in DEFAULTS}, pts, set(a.x.split(","))).build()
    open(a.out, "w").write(s)
    print("wrote", a.out, "lines", s.count("\n"), "pads", npad)
```

```python
import sys, math, struct, argparse
from asmlib import Emit, fix_hazards

NAME = "concat_heads__compressed_kv_cla__gqa_block_cached__decode"
HEADER = open("cdna_kernels/%s.s.ref" % NAME).read().split("; Override launch")[0]

QBP = 0x000000
QAP = 0x020000
AST = 0x040000
FB  = 0x050000
EPOCH = 0x060000
FA  = 0x080000
MB  = 0x100000
MB_ST = 6144
MB_2  = 8192
AP  = 0x200000
XQ  = 0x400000
WS_USED = 0x500000
STAMPS = 0x800000

SCALE = math.log2(math.e) / math.sqrt(128.0)
def f2u(x): return struct.unpack("<I", struct.pack("<f", x))[0]

SRD_WS, SRD_A, SRD_B, SRD_C, SRD_D, SRD_E, SRD_F, SRD_G = 44, 48, 52, 56, 60, 64, 68, 96
P_AX, P_CKV, P_AWQ, P_WUK, P_WUV, P_AWO, P_BX, P_BK, P_BV, P_BWQ, P_BWO, P_OUT, P_DBG, P_WS = range(16, 44, 2)
S_SC, S_SPIN = 15, 14
MASK0 = 72
TAG = 94
ST0 = 16
SPIN = 20000
X = 131072

def srd(n): return f"s[{n}:{n+3}]"
def vr(a, n): return f"v[{a}:{a+n-1}]" if n > 1 else f"v{a}"

DEFAULTS = dict(np=6, uv0=16, wo_at=0, pf=4, pfw=0, pre_q=0, uv1=8, a0=3, t2w=0, wq1=2, kq1=4, sleep=0, pre_p=0, w1=2, kf_p=0, kf_q=12, wq0=8, wk=8, wt=10, wv=8)

class Gen:
    def __init__(self, opt, pts, x):
        self.o = opt; self.alt = pts; self.x = x; self.role = None
        self.stamps = bool(pts)
        self.e = Emit()

    def mk_srd(self, d, p, size):
        self.e(f"s_mov_b32 s{d}, s{p}\ns_mov_b32 s{d+1}, s{p+1}\ns_mov_b32 s{d+2}, {size:#x}\ns_mov_b32 s{d+3}, 0x20000")

    def pt(self, name, role=None):
        sel = self.alt.get(role or self.role)
        if sel and name in sel:
            i = sel.index(name); self.e(f"s_memrealtime s[{80+2*i}:{81+2*i}]" if i < 7 else "s_memrealtime s[100:101]")

    def stamp_out(self, t):
        if not self.stamps: return
        e = self.e
        if "dbg" in self.x:
            skip = e.lab("L_skip")
            e(f"""s_waitcnt lgkmcnt(0)
            s_and_b32 s10, s2, 127
            s_lshl_b32 s10, s10, 3
            s_add_u32 s10, s10, s3
            s_cmp_lg_u32 s10, 0
            s_cbranch_scc1 {skip}
            s_lshr_b32 s10, s2, 7
            s_lshl_b32 s10, s10, 5
            s_mov_b64 exec, 1""")
            for x in self.x:
                if x.startswith("hold"):
                    top = e.lab("L_hold")
                    e(f"""{top}:
                    s_memrealtime s[12:13]
                    s_waitcnt lgkmcnt(0)
                    s_sub_u32 s12, s12, s80
                    s_cmp_lt_u32 s12, {int(x[4:])}
                    s_cbranch_scc1 {top}""")
            self.mk_srd(SRD_A, P_DBG, 256)
            regs = [80, 82, 84, 86, 88, 90, 92, 100]
            for k in range(8):
                e(f"s_sub_u32 s11, s{regs[k]}, {'s80' if k else '0'}\nv_mov_b32 v{t+k}, s11")
            e(f"buffer_store_dwordx4 v[{t}:{t+3}], off, {srd(SRD_A)}, s10\nbuffer_store_dwordx4 v[{t+4}:{t+7}], off, {srd(SRD_A)}, s10 offset:16")
            e(f"{skip}:")
            return
        e("s_waitcnt lgkmcnt(0)\ns_mov_b64 exec, 1")
        e(f"s_lshl_b32 s4, s2, 3\ns_add_u32 s4, s4, s3\ns_lshl_b32 s4, s4, 6\ns_add_u32 s4, s4, {STAMPS}")
        e(f"s_mov_b32 s{SRD_WS+2}, 0x1000000")
        regs = list(range(80, 94)) + [100, 101]
        for i in range(4):
            for k in range(4): e(f"v_mov_b32 v{t+k}, s{regs[4*i+k]}")
            e(f"buffer_store_dwordx4 v[{t}:{t+3}], off, {srd(SRD_WS)}, s4 offset:{16*i}")
            e("s_nop 2")

    def selectors(self, sel, base_lo, base_hi, tmp):
        self.e(f"""v_and_b32 v{tmp}, 1, v0
        v_cmp_eq_u32 vcc, 1, v{tmp}
        v_mov_b32 v{base_lo}, 0x0c0c0100
        v_mov_b32 v{tmp}, 0x01000c0c
        v_cndmask_b32 v{base_lo}, v{base_lo}, v{tmp}, vcc
        v_add_u32 v{base_hi}, 0x0202, v{base_lo}
        v_mov_b32 v{tmp}, 0x03020c0c
        v_cndmask_b32 v{base_hi}, v{base_hi}, v{tmp}, vcc
        v_and_b32 v{tmp}, 2, v0
        v_cmp_eq_u32 vcc, 0, v{tmp}
        v_mov_b32 v{tmp}, 0x0c0c0c0c
        v_cndmask_b32 v{sel}, v{tmp}, v{base_lo}, vcc
        v_cndmask_b32 v{sel+1}, v{base_lo}, v{tmp}, vcc
        v_cndmask_b32 v{sel+2}, v{tmp}, v{base_hi}, vcc
        v_cndmask_b32 v{sel+3}, v{base_hi}, v{tmp}, vcc""")

    def masks(self, lo, hi):
        for j in range(4):
            self.e(f"s_mov_b32 s{MASK0+2*j}, {(lo << (2*j)):#x}\ns_mov_b32 s{MASK0+2*j+1}, {(hi << (2*j)):#x}")

    def rws256(self, nload, x, w, acc, base_lo, base_hi, t0, waits=None):
        e = self.e
        for t in range(nload):
            a = t0 + 2 + 4 * (t & 1)
            e(f"v_perm_b32 v{t0}, v{x+(t>>1)}, v{x+(t>>1)}, v{base_hi if t & 1 else base_lo}")
            for j in range(4): e(f"v_cndmask_b32 v{a+j}, 0, v{t0}, s[{MASK0+2*j}:{MASK0+2*j+1}]")
            if waits: e.wait(waits[t])
            e(f"v_mfma_f32_16x16x32_bf16 {vr(acc,4)}, {vr(a,4)}, {vr(w+4*t,4)}, {vr(acc,4) if t else 0}")

    def rws128(self, nload, x, w, acc0, acc1, sel, pa):
        e = self.e
        for t in range(nload):
            p = pa + 2 + 4 * (t & 1)
            sa, sb = (sel + 2, sel + 3) if t & 1 else (sel, sel + 1)
            e(f"v_perm_b32 v{p}, v{x+(t>>1)}, v{x+(t>>1)}, v{sa}\nv_perm_b32 v{p+1}, v{x+(t>>1)}, v{x+(t>>1)}, v{sb}")
            e(f"v_mfma_f32_16x16x32_bf16 {vr(acc0,4)}, {vr(p,4)}, {vr(w+4*t,4)}, {vr(acc0,4) if t else 0}")
            e(f"v_mfma_f32_16x16x32_bf16 {vr(acc1,4)}, {vr(p-2,4)}, {vr(w+4*t,4)}, {vr(acc1,4) if t else 0}")

    def quad_sum(self, ds):
        for r in range(4):
            for d in ds:
                q = f"quad_perm:[{r},{r},{r},{r}] row_mask:0xf bank_mask:0xf"
                self.e(f"v_mov_b32_dpp v{d}, v{d} {q}" if r == 0 else f"v_add_f32_dpp v{d}, v{d+r}, v{d} {q}")

    def swap_red(self, op, x, t, which):
        for s in which:
            self.e(f"v_mov_b32 v{t}, v{x}\nv_permlane{s}_swap_b32 v{x}, v{t}\n{op} v{x}, v{x}, v{t}")

    def row_red(self, op, x, rots):
        for r in rots:
            self.e(f"{op}_dpp v{x}, v{x}, v{x} row_ror:{r} row_mask:0xf bank_mask:0xf")

    def tree(self, op, base, n, width):
        st = 1
        while st < n:
            for i in range(0, n, 2 * st):
                for r in range(width): self.e(f"{op} v{base+width*i+r}, v{base+width*i+r}, v{base+width*(i+st)+r}")
            st *= 2

    def max3_chain(self, op, dst, regs):
        regs = list(regs)
        self.e(f"v_max3_{op} v{dst}, v{regs[0]}, v{regs[1]}, v{regs[2]}")
        regs = regs[3:]
        while len(regs) >= 2:
            self.e(f"v_max3_{op} v{dst}, v{dst}, v{regs[0]}, v{regs[1]}"); regs = regs[2:]
        if regs: self.e(f"v_max_{op} v{dst}, v{dst}, v{regs[0]}")

    def spin_tail(self, top, done, sleep=0):
        if sleep: self.e(f"s_sleep {sleep}")
        self.e(f"s_sub_u32 s{S_SPIN}, s{S_SPIN}, 1\ns_cbranch_scc0 {top}\n{done}:")

    def lds_wait(self, addr, t):
        e = self.e
        top, done = e.lab("L_spin"), e.lab("L_ok")
        e(f"""v_mov_b32 v{t}, {addr}
        s_mov_b32 s{S_SPIN}, {SPIN * 20}
        {top}:
        ds_read_b32 v{t+1}, v{t}
        s_waitcnt lgkmcnt(0)
        v_cmp_ne_u32 vcc, 4, v{t+1}
        s_cbranch_vccz {done}""")
        self.spin_tail(top, done, 2)

    def lds_inc(self, addr, t):
        self.e(f"""v_mov_b32 v{t}, {addr}
        v_mov_b32 v{t+1}, 1
        s_mov_b64 exec, 1
        ds_add_u32 v{t}, v{t+1}
        s_mov_b64 exec, -1""")

    def only_wave(self, w):
        skip = self.e.lab("L_skip")
        self.e(f"s_cmp_lg_u32 s3, {w}\ns_cbranch_scc1 {skip}")
        return skip

    def epoch_load(self):
        self.e(f"s_load_dword s{TAG}, s[{P_WS}:{P_WS+1}], {EPOCH:#x}")

    def epoch_tag(self):
        self.e(f"s_waitcnt lgkmcnt(0)\ns_add_u32 s{TAG}, s{TAG}, 1\ns_xor_b32 s{TAG+1}, s{TAG}, 0x5bd1e995")

    def post_b(self, sg, sslot, t):
        self.e(f"""v_cmp_lt_u32 vcc, 11, v0
        v_add_u32 v{t+3}, 84, v0
        v_cndmask_b32 v{t+2}, v0, v{t+3}, vcc
        v_lshlrev_b32 v{t+2}, 8, v{t+2}
        v_mov_b32 v{t}, s{TAG}
        v_mov_b32 v{t+1}, s{TAG+1}
        s_mul_i32 s10, s{sg}, 3072
        s_lshl_b32 s11, s{sslot}, 3
        s_add_u32 s10, s10, s11
        s_add_u32 s10, s10, {FB}
        s_mov_b64 exec, 0xffffff
        buffer_store_dwordx2 {vr(t,2)}, v{t+2}, {srd(SRD_WS)}, s10 offen sc1
        s_mov_b64 exec, -1""")

    def post_a(self, sid, off, t):
        self.e(f"""v_lshlrev_b32 v{t+2}, 11, v0
        v_mov_b32 v{t}, s{TAG}
        v_mov_b32 v{t+1}, s{TAG+1}
        s_lshl_b32 s10, s{sid}, 3
        s_add_u32 s10, s10, {FA+off}
        buffer_store_dwordx2 {vr(t,2)}, v{t+2}, {srd(SRD_WS)}, s10 offen sc1""")

    def poll_a(self, off, nld, t):
        e = self.e
        top, done = e.lab("L_spin"), e.lab("L_ok")
        e(f"""s_lshl_b32 s10, s4, 11
        s_add_u32 s10, s10, {FA+off}
        v_lshlrev_b32 v{t+4}, 3, v0
        {top}:""")
        for i in range(nld): e(f"buffer_load_dwordx2 {vr(t+2*i,2)}, v{t+4}, {srd(SRD_WS)}, s10 offen offset:{512*i} sc1")
        e(f"s_waitcnt vmcnt(0)\nv_cmp_ne_u64 vcc, s[{TAG}:{TAG+1}], {vr(t,2)}")
        if nld == 2: e(f"v_cmp_ne_u64 s[12:13], s[{TAG}:{TAG+1}], {vr(t+2,2)}\ns_or_b64 vcc, vcc, s[12:13]")
        e(f"s_cbranch_vccz {done}")
        self.spin_tail(top, done, self.o["sleep"])

    def bside(self, kind):
        e = self.e; e.vm = 0; o = self.o
        n = o["np"] if kind == "P" else 16 - 2 * o["np"]
        VK, VL, TMP, SEL, BLO, BHI, QF, AC0, AC1, LS, MX = 1, 2, 3, 4, 8, 9, 10, 14, 18, 22, 23
        T = 24; D0 = 32; KR = 36; VR = 132; PA = 228; U = 246
        L_T1, L_Q, L_MAX, L_L, L_RED, L_T2, L_QA = 0, 8192, 9216, 9344, 16384, 32768, 40960
        S_KV, S_VV, S_G, S_B, S_SP = 5, 6, 7, 8, 9
        e(f"L_{kind}:")
        self.role = kind
        if "no" + kind in self.x: e("s_endpgm")
        self.pt("start")
        e(f"""v_and_b32 v{T}, 3, v0
        v_lshrrev_b32 v{TMP}, 4, v0
        v_lshlrev_b32 v{T+1}, 6, v{TMP}
        v_lshl_add_u32 v{T+1}, v{T}, 4, v{T+1}
        v_bfe_u32 v{T}, v0, 2, 2
        v_lshl_add_u32 v{VK}, v{T}, 8, v{T+1}
        v_lshlrev_b32 v{VL}, 4, v0""")
        if kind == "P":
            e(f"""v_lshl_add_u32 v{T+6}, v{T}, 15, v{T+1}
            v_and_b32 v{T+4}, 15, v0
            v_lshlrev_b32 v{T+4}, 4, v{T+4}
            v_lshl_add_u32 v{T+4}, v{TMP}, 15, v{T+4}
            v_bfe_u32 v{T+5}, v0, 3, 1
            v_lshlrev_b32 v{T+5}, 10, v{T+5}
            v_lshl_add_u32 v{T+5}, v{TMP}, 3, v{T+5}
            s_lshr_b32 s10, s2, 3
            s_and_b32 s{S_SP}, s2, 7
            s_mul_i32 s11, s{S_SP}, {8*n}
            s_mul_i32 s12, s3, {n}
            s_lshr_b32 s13, s2, 2
            s_and_b32 s4, s2, 3""")
        else:
            e(f"""s_sub_u32 s4, s2, 192
            s_lshr_b32 s10, s4, 2
            s_and_b32 s4, s4, 3
            s_add_u32 s{S_SP}, s4, 8
            s_mul_i32 s11, s4, {8*n}
            s_add_u32 s11, s11, {64*o["np"]}
            s_mul_i32 s12, s3, {n}
            v_and_b32 v{T+4}, 15, v0
            v_lshlrev_b32 v{T+4}, 4, v{T+4}
            v_lshl_add_u32 v{T+4}, v{TMP}, 16, v{T+4}
            v_bfe_u32 v{T+5}, v0, 3, 1
            v_lshlrev_b32 v{T+5}, 10, v{T+5}
            v_lshl_add_u32 v{T+5}, v{TMP}, 4, v{T+5}
            s_sub_u32 s13, s2, 192
            s_and_b32 s4, s13, 1
            s_lshr_b32 s13, s13, 1""")
        e(f"""s_and_b32 s{S_G}, s10, 7
        s_lshr_b32 s{S_B}, s10, 3
        s_add_u32 s11, s11, s12
        s_lshl_b32 s11, s11, 12
        s_lshl_b32 s10, s10, 21
        s_add_u32 s{S_KV}, s10, s11
        s_mov_b32 s{S_VV}, s{S_KV}""")
        sh = 7 if kind == "P" else 8
        e(f"""s_lshl_b32 s10, s4, {sh}
        s_lshl_b32 s11, s3, {sh-3}
        s_add_u32 s10, s10, s11
        s_lshl_b32 s11, s10, 1
        s_lshl_b32 s10, s10, 13
        s_lshl_b32 s12, s13, 8
        s_add_u32 s10, s10, s12""")
        e("s_waitcnt lgkmcnt(0)")
        self.epoch_load()
        tags = []
        def issue(upto):
            while len(tags) < min(upto, 8 * n):
                x = len(tags); k = x % (4 * n); j = k & 3
                if x < 4 * n:
                    tags.append(e.mem(f"buffer_load_dwordx4 {vr(KR+4*k,4)}, v{VK}, {srd(SRD_A)}, s{S_KV} offen offset:{1024*j} nt"))
                    if j == 3: e(f"s_add_u32 s{S_KV}, s{S_KV}, 4096")
                else:
                    tags.append(e.mem(f"buffer_load_dwordx4 {vr(VR+4*k,4)}, v{VL}, {srd(SRD_B)}, s{S_VV} offen offset:{1024*j} nt"))
                    if j == 3: e(f"s_add_u32 s{S_VV}, s{S_VV}, 4096")
        def slide(k0, k1, w):
            for k in range(k0, k1):
                e.wait(tags[k]); issue(k + 1 + w)
        self.mk_srd(SRD_WS, P_WS, WS_USED)
        if kind == "P":
            self.mk_srd(SRD_C, P_AX, 2048); self.mk_srd(SRD_D, P_AWQ, 4 << 20)
            skip = self.only_wave(7)
            e(f"""v_lshrrev_b32 v{U+4}, 4, v0
            v_lshlrev_b32 v{U+4}, 15, v{U+4}
            v_and_b32 v{U+5}, 15, v0
            v_lshl_add_u32 v{U+4}, v{U+5}, 4, v{U+4}
            s_lshl_b32 s12, s2, 8
            s_add_u32 s12, s12, {QAP}""")
            for r in range(4): e(f"v_mov_b32 v{U+r}, -1")
            e(f"""s_mov_b32 exec_hi, 0
            buffer_store_dwordx4 {vr(U,4)}, v{U+4}, {srd(SRD_WS)}, s12 offen sc1
            s_mov_b64 exec, -1
            {skip}:""")
            def four(slot, voff, s):
                e("s_mov_b32 s12, s10")
                r = []
                for t in range(4):
                    r.append(e.mem(f"buffer_load_dwordx4 {vr(VR+4*(slot+t),4)}, v{voff}, {srd(s)}, s12 offen nt"))
                    if t < 3: e("s_add_u32 s12, s12, 8192")
                return r
            xa = e.mem(f"buffer_load_dwordx2 {vr(T,2)}, v{T+5}, {srd(SRD_C)}, s11 offen")
            w2 = four(0, T + 4, SRD_D)
            self.mk_srd(SRD_E, P_WUK, 4 << 20)
            if o["t2w"] >= 0: e.wait(w2[o["t2w"]])
            w3 = four(4, T + 6, SRD_E)
        else:
            self.mk_srd(SRD_C, P_BX, 2048); self.mk_srd(SRD_D, P_BWQ, 4 << 20)
            xb = e.mem(f"buffer_load_dwordx4 {vr(T,4)}, v{T+5}, {srd(SRD_C)}, s11 offen")
            w1 = []
            for t in range(8):
                w1.append(e.mem(f"buffer_load_dwordx4 {vr(VR+4*t,4)}, v{T+4}, {srd(SRD_D)}, s10 offen nt"))
                if t < 7: e("s_add_u32 s10, s10, 8192")
            if o["pf"]:
                self.mk_srd(SRD_F, P_CKV, 16 << 20)
                e(f"""s_sub_u32 s10, s2, 192
                s_lshl_b32 s10, s10, 18
                s_lshl_b32 s11, s3, 12
                s_add_u32 s10, s10, s11
                s_add_u32 s10, s10, {262144 - 32768 * o['pf']}""")
                if o["pfw"] >= 0: e.wait(w1[o["pfw"]])
                for t in range(4 * o["pf"]):
                    e.mem(f"buffer_load_dwordx4 {vr(KR+4*t,4)}, v{VL}, {srd(SRD_F)}, s10 offen offset:{1024*(t&3)} nt")
                    if t & 3 == 3: e("s_add_u32 s10, s10, 32768")
        self.mk_srd(SRD_A, P_BK, 32 << 20); self.mk_srd(SRD_B, P_BV, 32 << 20)
        issue(o["pre_p"] if kind == "P" else o["pre_q"])
        e(f"s_mov_b32 s{S_SC}, {f2u(SCALE):#x}\ns_mov_b32 s{S_SPIN}, {SPIN}")
        self.selectors(SEL, BLO, BHI, TMP)
        self.epoch_tag()
        if kind == "P":
            self.masks(0x03030303, 0x03030303)
            skip = self.only_wave(7)
            e(f"s_waitcnt vmcnt({e.vm})")
            self.post_a(2, 0, U)
            e(f"{skip}:")
            e(f"s_lshl_b32 s10, s3, 10\nv_add_u32 v{T+7}, s10, v{VL}")
            e.wait(xa)
            self.rws256(4, T, VR, AC0, BLO, BHI, PA, w2)
            self.pt("t2")
            e(f"ds_write_b128 v{T+7}, {vr(AC0,4)} offset:{L_T2}\ns_waitcnt lgkmcnt(0)\ns_barrier")
            XT = VR + 48
            skip = self.only_wave(0)
            for i in range(8): e(f"ds_read_b128 {vr(XT+4*i,4)}, v{VL} offset:{L_T2+1024*i}")
            e(f"""v_lshrrev_b32 v{U}, 5, v0
            v_lshlrev_b32 v{U}, 10, v{U}
            v_and_b32 v{U+1}, 15, v0
            v_lshl_add_u32 v{U}, v{U+1}, 6, v{U}
            v_bfe_u32 v{U+1}, v0, 4, 1
            v_lshl_add_u32 v{U}, v{U+1}, 5, v{U}
            v_mov_b32 v{U+1}, s{TAG+1}
            s_lshl_b32 s10, s13, 15
            s_lshl_b32 s11, s4, 11
            s_add_u32 s10, s10, s11
            s_add_u32 s10, s10, {XQ}
            s_mov_b32 s11, 0xffffff00
            s_waitcnt lgkmcnt(0)""")
            self.tree("v_add_f32", XT, 8, 4)
            for r in range(4): e(f"v_bfi_b32 v{XT+8+2*r}, s11, v{XT+r}, v{U+1}\nv_mov_b32 v{XT+9+2*r}, s{TAG}")
            for i in range(4):
                e(f"buffer_store_dwordx4 {vr(XT+8,4)}, v{U}, {srd(SRD_WS)}, s10 offen sc1")
                e(f"buffer_store_dwordx4 {vr(XT+12,4)}, v{U}, {srd(SRD_WS)}, s10 offen offset:16 sc1")
                if i < 3: e("s_add_u32 s10, s10, 8192")
            e(f"{skip}:")
            self.pt("xq")
            skip = e.lab("L_skip")
            top, done = e.lab("L_spin"), e.lab("L_ok")
            e(f"""s_cmp_lt_u32 s3, 4
            s_cbranch_scc1 {skip}
            s_lshl_b32 s10, s2, 13
            s_lshl_b32 s11, s3, 9
            s_add_u32 s10, s10, s11
            s_add_u32 s10, s10, {XQ-2048}
            s_add_u32 s11, s10, 4096
            v_lshlrev_b32 v{U}, 3, v0
            v_mov_b32 v{U+1}, 0xff
            s_lshl_b32 s12, s3, 7
            v_lshl_add_u32 v{U+2}, v0, 1, s12
            {top}:""")
            for i in range(4): e(f"buffer_load_dwordx2 {vr(VR+2*i,2)}, v{U}, {srd(SRD_WS)}, s{10+(i>>1)} offen offset:{2048*(i&1)} sc1")
            e("s_waitcnt vmcnt(0)")
            for i in range(4): e(f"v_xor_b32 v{VR+8+i}, s{TAG+1}, v{VR+2*i}\nv_xor_b32 v{VR+1+2*i}, s{TAG}, v{VR+1+2*i}")
            for i in range(4): e(f"v_and_or_b32 v{VR+8+i}, v{VR+8+i}, v{U+1}, v{VR+1+2*i}")
            e(f"""v_or3_b32 v{VR+8}, v{VR+8}, v{VR+9}, v{VR+10}
            v_or_b32 v{VR+8}, v{VR+8}, v{VR+11}
            v_cmp_ne_u32 vcc, 0, v{VR+8}
            s_cbranch_vccz {done}""")
            self.spin_tail(top, done)
            e(f"""v_add_f32 v{VR}, v{VR}, v{VR+2}
            v_add_f32 v{VR+4}, v{VR+4}, v{VR+6}
            v_add_f32 v{VR}, v{VR}, v{VR+4}
            v_cvt_pk_bf16_f32 v{VR}, v{VR}, v{VR}
            ds_write_b16 v{U+2}, v{VR} offset:{L_QA-512}
            {skip}:
            v_bfe_u32 v{U}, v0, 2, 1
            v_lshlrev_b32 v{U+1}, 8, v{U}
            v_and_b32 v{U+2}, 0xf0, v{VK}
            v_add_u32 v{U+1}, v{U+1}, v{U+2}
            v_lshlrev_b32 v{U}, 15, v{U}
            v_lshrrev_b32 v{U+2}, 4, v0
            v_lshl_add_u32 v{U}, v{U+2}, 3, v{U}
            s_lshl_b32 s10, s2, 8
            s_lshl_b32 s11, s3, 5
            s_add_u32 s10, s10, s11
            s_add_u32 s10, s10, {QAP}
            s_waitcnt lgkmcnt(0)
            s_barrier
            ds_read_b128 {vr(QF,4)}, v{U+1} offset:{L_QA}
            s_waitcnt lgkmcnt(0)""")
            self.pt("qa")
            e.wait(w3[3])
            for t in range(4): e(f"v_mfma_f32_16x16x32_bf16 {vr(VR+4*t,4)}, {vr(VR+16+4*t,4)}, {vr(QF,4)}, 0")
            self.quad_sum([VR + 4 * t for t in range(4)])
            e(f"""v_cvt_pk_bf16_f32 v{AC0}, v{VR}, v{VR+4}
            v_cvt_pk_bf16_f32 v{AC0+1}, v{VR+8}, v{VR+12}
            v_min_u32 v{AC0}, -2, v{AC0}
            v_min_u32 v{AC0+1}, -2, v{AC0+1}
            s_mov_b32 exec_lo, 0x00110011
            s_mov_b32 exec_hi, 0x00110011
            buffer_store_dwordx2 {vr(AC0,2)}, v{U}, {srd(SRD_WS)}, s10 offen sc1
            s_mov_b64 exec, -1""")
            self.pt("st")
            issue(o["w1"])
        else:
            self.masks(0x03030303, 0x03030303)
            e(f"s_lshl_b32 s10, s3, 10\nv_add_u32 v{T+7}, s10, v{VL}")
            e.wait(xb)
            self.rws256(8, T, VR, AC1, BLO, BHI, PA, w1)
            e(f"ds_write_b128 v{T+7}, {vr(AC1,4)} offset:{L_T1}\ns_waitcnt lgkmcnt(0)\ns_barrier")
            self.pt("t1")
            skip = self.only_wave(0)
            for i in range(8): e(f"ds_read_b128 {vr(VR+4*i,4)}, v{VL} offset:{L_T1+1024*i}")
            e(f"""v_lshrrev_b32 v{U}, 5, v0
            v_lshlrev_b32 v{U}, 14, v{U}
            v_and_b32 v{U+1}, 15, v0
            v_lshl_add_u32 v{U}, v{U+1}, 5, v{U}
            v_bfe_u32 v{U+1}, v0, 4, 1
            v_lshl_add_u32 v{U}, v{U+1}, 4, v{U}
            s_lshl_b32 s10, s4, 15
            s_lshl_b32 s11, s13, 9
            s_add_u32 s10, s10, s11
            s_add_u32 s10, s10, {QBP}
            s_sub_u32 s12, s2, 192
            s_lshr_b32 s13, s12, 3
            s_and_b32 s12, s12, 7
            s_waitcnt lgkmcnt(0)""")
            self.tree("v_add_f32", VR, 8, 4)
            e(f"buffer_store_dwordx4 {vr(VR,4)}, v{U}, {srd(SRD_WS)}, s10 offen sc1\ns_waitcnt vmcnt(0)")
            self.post_b(13, 12, U)
            e(f"{skip}:")
        kf, wearly = (o["kf_p"], o["w1"]) if kind == "P" else (o["kf_q"], o["wq0"])
        if kind == "Q":
            issue(o["wq1"]); slide(0, o["kq1"], o["wq1"]); issue(o["kq1"] + wearly); slide(o["kq1"], kf, wearly)
        else:
            slide(0, kf, wearly)
        e(f"""s_lshl_b32 s12, s{S_B}, 3
        s_add_u32 s12, s12, s{S_G}
        s_mul_i32 s12, s12, 12
        s_add_u32 s12, s12, s{S_SP}
        s_lshl_b32 s12, s12, 8
        s_add_u32 s12, s12, {FB}
        v_lshlrev_b32 v{T+2}, 3, v0
        s_mov_b64 exec, 0xffff""")
        k1 = len(tags)
        fl = e.mem(f"buffer_load_dwordx2 {vr(T,2)}, v{T+2}, {srd(SRD_WS)}, s12 offen sc1")
        e("s_mov_b64 exec, -1")
        issue(kf + o["wk"])
        slide(kf, k1, o["wk"])
        e(f"""s_lshl_b32 s10, s{S_B}, 14
        s_lshl_b32 s11, s{S_G}, 11
        s_add_u32 s10, s10, s11
        s_lshl_b32 s11, s3, 8
        s_add_u32 s10, s10, s11
        s_add_u32 s10, s10, {QBP}
        v_lshlrev_b32 v{TMP}, 2, v0""")
        e.wait(fl)
        top, done = e.lab("L_spin"), e.lab("L_ok")
        e(f"""s_mov_b64 exec, 0xffff
        {top}:
        v_cmp_ne_u64 vcc, s[{TAG}:{TAG+1}], {vr(T,2)}
        s_cbranch_vccz {done}
        buffer_load_dwordx2 {vr(T,2)}, v{T+2}, {srd(SRD_WS)}, s12 offen sc1
        s_waitcnt vmcnt(0)""")
        self.spin_tail(top, done, o["sleep"])
        e("s_mov_b64 exec, -1")
        self.pt("qf")
        k2 = len(tags)
        for k in range(2):
            qg = e.mem(f"buffer_load_dword v{T+k}, v{TMP}, {srd(SRD_WS)}, s10 offen sc1")
            e("s_add_u32 s10, s10, 32768")
        slide(k1, min(k2, 4 * n), o["wk"])
        e(f"""s_lshl_b32 s10, s3, 7
        v_lshl_add_u32 v{TMP}, v0, 1, s10
        v_bfe_u32 v{T+5}, v0, 2, 2
        v_lshlrev_b32 v{T+5}, 5, v{T+5}""")
        for z in range(0, 18, 4): e(f"v_mov_b32 v{PA+z}, 0\nv_mov_b32 v{PA+z+1}, 0")
        e.wait(qg)
        e(f"""v_add_f32 v{T}, v{T}, v{T+1}
        v_cvt_pk_bf16_f32 v{T}, v{T}, v{T}
        ds_write_b16 v{TMP}, v{T} offset:{L_Q}
        s_waitcnt lgkmcnt(0)
        s_barrier
        ds_read_b128 {vr(QF,4)}, v{VK} offset:{L_Q}
        s_waitcnt lgkmcnt(0)""")
        self.pt("q")
        SK = lambda k: D0 + 4 * k
        for i in range(n + 1):
            if i < n:
                for j in range(4):
                    k = 4 * i + j
                    e.wait(tags[k])
                    issue(k + 1 + (o["wk"] if k < 4 * n - 4 else o["wt"]))
                    e(f"v_mfma_f32_16x16x32_bf16 {vr(SK(k),4)}, {vr(KR+4*k,4)}, {vr(QF,4)}, 0")
            if i > 0:
                ks = [SK(4 * (i - 1) + j) for j in range(4)]
                self.quad_sum(ks)
                self.max3_chain("f32", MX, ks if i == 1 else [MX] + ks)
        self.pt("k")
        self.swap_red("v_max_f32", MX, TMP, (16, 32))
        e(f"""s_lshl_b32 s10, s3, 2
        v_add_u32 v{T+6}, s10, v{T+5}
        ds_write_b32 v{T+6}, v{MX} offset:{L_MAX}
        s_waitcnt lgkmcnt(0)
        s_barrier
        ds_read_b128 {vr(U,4)}, v{T+5} offset:{L_MAX}
        ds_read_b128 {vr(U+4,4)}, v{T+5} offset:{L_MAX+16}
        s_waitcnt lgkmcnt(0)""")
        self.max3_chain("f32", MX, range(U, U + 8))
        e(f"v_mul_f32 v{MX}, s{S_SC}, v{MX}")
        for k in range(4 * n): e(f"v_fma_f32 v{SK(k)}, v{SK(k)}, s{S_SC}, -v{MX}")
        for k in range(4 * n): e(f"v_exp_f32 v{SK(k)}, v{SK(k)}")
        e(f"v_add_f32 v{LS}, v{SK(0)}, v{SK(1)}")
        for k in range(2, 4 * n): e(f"v_add_f32 v{LS}, v{LS}, v{SK(k)}")
        for k in range(0, 4 * n, 2): e(f"v_cvt_pk_bf16_f32 v{SK(k)}, v{SK(k)}, v{SK(k+1)}")
        self.swap_red("v_add_f32", LS, TMP, (16, 32))
        e(f"ds_write_b32 v{T+6}, v{LS} offset:{L_L}")
        self.pt("p")
        for i in range(n):
            for j in range(4):
                k = 4 * i + j; pk = SK(k & ~1); p = PA + 2 + 4 * j
                sa, sb = (SEL + 2, SEL + 3) if k & 1 else (SEL, SEL + 1)
                e(f"v_perm_b32 v{p}, v{pk}, v{pk}, v{sa}\nv_perm_b32 v{p+1}, v{pk}, v{pk}, v{sb}")
            if i == n - 1:
                e(f"""s_lshl_b32 s10, s3, 11
                v_lshl_add_u32 v{T}, v0, 5, s10
                s_lshl_b32 s10, s3, 8
                v_lshl_add_u32 v{T+1}, v0, 2, s10
                v_lshlrev_b32 v{T+2}, 2, v0
                s_lshl_b32 s10, s{S_G}, 3
                s_add_u32 s10, s10, s3
                s_lshl_b32 s10, s10, 14
                s_mul_i32 s11, s{S_B}, 12
                s_add_u32 s11, s11, s{S_SP}
                s_lshl_b32 s11, s11, 8
                s_add_u32 s10, s10, s11
                s_add_u32 s10, s10, {MB}""")
            for j in range(4):
                k = 4 * i + j; p = PA + 2 + 4 * j
                e.wait(tags[4 * n + k])
                issue(4 * n + k + 1 + o["wv"])
                e(f"v_mfma_f32_16x16x32_bf16 {vr(AC0,4)}, {vr(p,4)}, {vr(VR+4*k,4)}, {vr(AC0,4) if k else 0}")
                e(f"v_mfma_f32_16x16x32_bf16 {vr(AC1,4)}, {vr(p-2,4)}, {vr(VR+4*k,4)}, {vr(AC1,4) if k else 0}")
            if i == 1:
                e("s_waitcnt lgkmcnt(0)\ns_barrier")
                skip = self.only_wave(0)
                e(f"""ds_read_b128 {vr(U,4)}, v{T+5} offset:{L_L}
                ds_read_b128 {vr(U+4,4)}, v{T+5} offset:{L_L+16}
                v_bfe_u32 v{T}, v0, 2, 2
                v_lshlrev_b32 v{T}, 15, v{T}
                v_and_b32 v{T+1}, 1, v0
                v_lshl_add_u32 v{T}, v{T+1}, 14, v{T}
                s_lshl_b32 s10, s{S_G}, 17
                s_lshl_b32 s11, s{S_B}, 4
                s_add_u32 s11, s11, s{S_SP}
                s_lshl_b32 s11, s11, 3
                s_add_u32 s10, s10, s11
                s_add_u32 s10, s10, {MB+MB_ST}
                s_waitcnt lgkmcnt(0)""")
                self.tree("v_add_f32", U, 8, 1)
                e(f"""v_min_u32 v{U+1}, -2, v{U}
                v_min_u32 v{U}, -2, v{MX}
                s_mov_b64 exec, 0x3333
                buffer_store_dwordx2 {vr(U,2)}, v{T}, {srd(SRD_WS)}, s10 offen sc1
                s_mov_b64 exec, -1
                {skip}:""")
        self.pt("v")
        e(f"""ds_write_b128 v{T}, {vr(AC0,4)} offset:{L_RED}
        ds_write_b128 v{T}, {vr(AC1,4)} offset:{L_RED+16}
        s_waitcnt lgkmcnt(0)
        s_barrier""")
        for i in range(8): e(f"ds_read_b32 v{U+i}, v{T+1} offset:{L_RED+2048*i}")
        e(f"""s_waitcnt lgkmcnt(6)
        v_add_f32 v{U}, v{U}, v{U+1}
        s_waitcnt lgkmcnt(4)
        v_add_f32 v{U+2}, v{U+2}, v{U+3}
        s_waitcnt lgkmcnt(2)
        v_add_f32 v{U+4}, v{U+4}, v{U+5}
        v_add_f32 v{U}, v{U}, v{U+2}
        s_waitcnt lgkmcnt(0)
        v_add_f32 v{U+6}, v{U+6}, v{U+7}
        v_add_f32 v{U}, v{U}, v{U+4}
        v_add_f32 v{U}, v{U}, v{U+6}
        v_min_u32 v{U}, -2, v{U}
        buffer_store_dword v{U}, v{T+2}, {srd(SRD_WS)}, s10 offen sc1""")
        self.pt("end")
        self.stamp_out(100)
        e("s_endpgm")

    X_MAX, X_P, X_L, X_CNT = 0, 2048, 20480, 24576

    def row_addr(self, dst, t):
        self.e(f"""v_and_b32 v{t}, 3, v0
        v_lshlrev_b32 v{t}, 2, v{t}
        v_bfe_u32 v{t+1}, v0, 2, 2
        v_or_b32 v{t}, v{t}, v{t+1}
        v_lshrrev_b32 v{t+1}, 5, v0
        v_xor_b32 v{t}, v{t}, v{t+1}
        v_lshlrev_b32 v{t}, 4, v{t}
        v_and_b32 v{t+1}, 31, v0
        v_lshl_add_u32 v{dst}, v{t+1}, 10, v{t}""")

    def qk(self, S, FR, AQ, TA, creg=None, AC=None):
        e = self.e
        groups = [(qp, i) for qp in range(2) for i in range(8)]
        buf = (lambda g: FR + 8 * (g & 3)) if creg else (lambda g: FR + 16 * (g & 1))
        tg = {}
        e.ds_reset()
        def rd(g):
            qp, i = groups[g]; f = buf(g)
            e(f"v_xor_b32 v{TA}, {i << 5}, v{AQ}")
            if not creg: e(f"v_xor_b32 v{TA+1}, {i << 5}, v{AC}")
            for q in range(2):
                tg[g, q] = e.ds(f"ds_read_b128 {vr(f+4*q,4)}, v{TA} offset:{512*qp+256*q}")
                if not creg: tg[g, q] = e.ds(f"ds_read_b128 {vr(f+8+4*q,4)}, v{TA+1} offset:{512*qp+256*q}")
        ahead = 3 if creg else 1
        for g in range(ahead): rd(g)
        for g in range(16):
            if g + ahead < 16: rd(g + ahead)
            qp, i = groups[g]; f = buf(g)
            for q in range(2):
                e.dswait(tg[g, q])
                c = creg(i + 8 * (2 * qp + q)) if creg else f + 8 + 4 * q
                e(f"v_mfma_f32_32x32x16_bf16 {vr(S,16)}, {vr(c,4)}, {vr(f+4*q,4)}, {vr(S,16) if g or q else 0}")
            if g == 8: e("s_barrier")

    def softmax(self, S, P, M, T, tile):
        e = self.e
        e(f"""v_and_b32 v{T+2}, 15, v0
        v_lshlrev_b32 v{T+2}, 5, v{T+2}
        v_bfe_u32 v{T+3}, v0, 4, 1
        v_lshl_add_u32 v{T+2}, v{T+3}, 10, v{T+2}
        v_add_u32 v{T+2}, {X}, v{T+2}
        s_lshl_b32 s10, s3, 2
        v_add_u32 v{T+3}, s10, v{T+2}""")
        self.max3_chain("f32", T, range(S, S + 16))
        self.swap_red("v_max_f32", T, T + 1, (32,))
        e(f"""ds_write_b32 v{T+3}, v{T} offset:{self.X_MAX}
        s_waitcnt lgkmcnt(0)
        s_barrier
        ds_read_b128 {vr(P,4)}, v{T+2} offset:{self.X_MAX}
        ds_read_b128 {vr(P+4,4)}, v{T+2} offset:{self.X_MAX+16}
        v_mov_b32 v{T}, {X+self.X_CNT}
        v_mov_b32 v{T+1}, 0
        ds_write2_b32 v{T}, v{T+1}, v{T+1} offset0:0 offset1:16
        ds_write_b32 v{T}, v{T+1} offset:128
        s_lshl_b32 s10, s{tile}, 11
        s_add_u32 s10, s10, {X+self.X_P}
        v_lshl_add_u32 v{T+1}, v0, 4, s10
        s_waitcnt lgkmcnt(0)""")
        self.max3_chain("f32", M, range(P, P + 8))
        e(f"v_mul_f32 v{M}, s{S_SC}, v{M}")
        for r in range(16): e(f"v_fma_f32 v{S+r}, v{S+r}, s{S_SC}, -v{M}")
        for r in range(16): e(f"v_exp_f32 v{S+r}, v{S+r}")
        for r in range(8): e(f"v_cvt_pk_bf16_f32 v{P+r}, v{S+2*r}, v{S+2*r+1}")
        e(f"ds_write_b128 v{T+1}, {vr(P,4)}\nds_write_b128 v{T+1}, {vr(P+4,4)} offset:1024")
        self.tree("v_add_f32", S, 16, 1)
        self.swap_red("v_add_f32", S, T, (32,))
        e(f"ds_write_b32 v{T+3}, v{S} offset:{self.X_L}\ns_waitcnt lgkmcnt(0)\ns_barrier")

    VL, VW, TMP, SEL, BLO, BHI, T, U, W, G, WUV, AC0, AC1, PA, XR = 1, 2, 3, 4, 8, 9, 10, 16, 32, 96, 160, 224, 228, 232, 244
    A_CW, A_CR, A_MB = 13, 14, 15
    S_LW, S_PART, S_PRIV, S_MBJ = 5, 6, 7, 8

    def vw_addr(self):
        VW, T = self.VW, self.T
        self.e(f"""v_lshrrev_b32 v{VW}, 4, v0
        v_lshlrev_b32 v{VW}, 14, v{VW}
        v_and_b32 v{T+1}, 15, v0
        v_lshl_add_u32 v{VW}, v{T+1}, 4, v{VW}""")

    def tail_setup(self):
        VL, T, A_CW, A_CR, A_MB = self.VL, self.T, self.A_CW, self.A_CR, self.A_MB
        self.e(f"""v_lshlrev_b32 v{VL}, 4, v0
        s_lshl_b32 s{self.S_PRIV}, s3, 11
        s_lshl_b32 s{self.S_MBJ}, s4, 14
        s_add_u32 s{self.S_MBJ}, s{self.S_MBJ}, {MB}
        v_lshl_add_u32 v{A_CW}, v0, 2, s{self.S_PRIV}
        v_bfe_u32 v{A_CR}, v0, 3, 1
        v_lshlrev_b32 v{A_CR}, 7, v{A_CR}
        v_lshrrev_b32 v{T+1}, 4, v0
        v_lshl_add_u32 v{A_CR}, v{T+1}, 5, v{A_CR}
        v_add_u32 v{A_CR}, s{self.S_PRIV}, v{A_CR}
        v_lshrrev_b32 v{A_MB}, 5, v0
        v_lshlrev_b32 v{A_MB}, 19, v{A_MB}
        v_bfe_u32 v{T+1}, v0, 1, 3
        v_lshl_add_u32 v{A_MB}, v{T+1}, 14, v{A_MB}
        v_and_b32 v{T+1}, 1, v0
        v_lshl_add_u32 v{A_MB}, v{T+1}, 5, v{A_MB}
        v_bfe_u32 v{T+1}, v0, 4, 1
        v_lshl_add_u32 v{A_MB}, v{T+1}, 4, v{A_MB}""")
        self.selectors(self.SEL, self.BLO, self.BHI, self.TMP)

    def wload(self, s):
        e = self.e
        e(f"s_lshl_b32 s10, s4, 16\ns_lshl_b32 s11, s{self.S_LW}, 8\ns_add_u32 s10, s10, s11")
        for t in range(16):
            e.mem(f"buffer_load_dwordx4 {vr(self.W+4*t,4)}, v{self.VW}, {srd(s)}, s10 offen offset:{1024*(t&3)} nt")
            if t & 3 == 3: e("s_add_u32 s10, s10, 4096")

    def a_compute(self):
        e = self.e; e.vm = 0
        AC, AT, AQ, M, TA, T = 1, 2, 3, 4, 6, 8
        FR, S, O, PV = 16, 48, 64, 128
        e("L_AC:")
        self.role = "AC"
        self.pt("start")
        e(f"v_lshlrev_b32 v{T}, 4, v0\ns_waitcnt lgkmcnt(0)")
        self.epoch_load()
        self.mk_srd(SRD_WS, P_WS, WS_USED); self.mk_srd(SRD_D, P_BWO, 4 << 20); self.mk_srd(SRD_E, P_OUT, 4096)
        for r in range(4): e(f"v_mov_b32 v{FR+r}, -1")
        e(f"s_lshl_b32 s10, s4, 14\ns_lshl_b32 s11, s3, 12\ns_add_u32 s10, s10, s11\ns_add_u32 s10, s10, {MB}")
        for i in range(4): e(f"buffer_store_dwordx4 {vr(FR,4)}, v{T}, {srd(SRD_WS)}, s10 offen offset:{1024*i} sc1")
        e(f"s_mov_b32 s{S_SC}, {f2u(SCALE):#x}\ns_mov_b32 s{S_SPIN}, {SPIN}")
        self.row_addr(AC, T + 1)
        e(f"""v_add_u32 v{AQ}, {X}, v{AC}
        s_lshl_b32 s10, s3, 15
        v_add_u32 v{AC}, s10, v{AC}
        v_lshrrev_b32 v{T+2}, 5, v0
        v_bfe_u32 v{T+1}, v0, 2, 2
        v_lshl_add_u32 v{T+3}, v{T+2}, 2, v{T+1}
        v_lshlrev_b32 v{AT}, 10, v{T+3}
        v_bfe_u32 v{T+3}, v0, 4, 1
        v_lshlrev_b32 v{T+3}, 1, v{T+3}
        v_bfe_u32 v{T+4}, v0, 1, 1
        v_or_b32 v{T+3}, v{T+3}, v{T+4}
        v_xor_b32 v{T+3}, v{T+3}, v{T+2}
        v_lshl_add_u32 v{T+3}, v{T+1}, 2, v{T+3}
        v_lshl_add_u32 v{AT}, v{T+3}, 4, v{AT}
        v_and_b32 v{T+3}, 1, v0
        v_lshl_add_u32 v{AT}, v{T+3}, 3, v{AT}
        s_lshl_b32 s10, s3, 8
        v_add_u32 v{AT}, s10, v{AT}""")
        self.epoch_tag()
        def tr_addr():
            for k in range(8):
                e(f"v_xor_b32 v{S+k}, {(2*k) << 4}, v{AT}")
                if k & 1: e(f"v_add_u32 v{S+k}, 8192, v{S+k}")
        def tr_step():
            for k in range(8): e(f"v_add_u32 v{S+k}, 65536, v{S+k}")
        def tr_ct(u, ct):
            for hh in range(2):
                last = e.ds(f"ds_read_b64_tr_b16 {vr(PV+16*(u&7)+4*ct+2*hh,2)}, v{S+2*ct+hh} offset:{32768*((u>>1)&1)+16384*(u&1)}")
            return last
        tr_addr()
        e(f"""s_lshl_b32 s9, s4, 11
        s_add_u32 s9, s9, {FA}
        v_lshlrev_b32 v{FR+8}, 3, v0""")
        def qc_load():
            for i in range(2): e(f"buffer_load_dwordx2 {vr(FR+4+2*i,2)}, v{FR+8}, {srd(SRD_WS)}, s9 offen offset:{512*i} sc1")
        for t in range(4):
            if t == 2: e("s_waitcnt vmcnt(0)")
            e("s_barrier")
            self.pt(f"t{t}")
            if t == 2:
                qc_load(); tr_step()
                skip = self.only_wave(0)
                e("s_lshr_b32 s12, s4, 3\ns_and_b32 s13, s4, 7\ns_add_u32 s13, s13, 8")
                self.post_b(12, 13, FR)
                e(f"{skip}:")
            e.ds_reset()
            for u in (2 * t, 2 * t + 1):
                for ct in range(4): tr_ct(u, ct)
            e("s_waitcnt lgkmcnt(0)")
        e("s_barrier\ns_barrier")
        self.pt("half")
        top, done = e.lab("L_spin"), e.lab("L_ok")
        e(f"""{top}:
        s_waitcnt vmcnt(0)
        v_cmp_ne_u64 vcc, s[{TAG}:{TAG+1}], {vr(FR+4,2)}
        v_cmp_ne_u64 s[12:13], s[{TAG}:{TAG+1}], {vr(FR+6,2)}
        s_or_b64 vcc, vcc, s[12:13]
        s_cbranch_vccz {done}""")
        qc_load()
        self.spin_tail(top, done)
        self.pt("qc")
        e(f"""s_lshr_b32 s10, s4, 5
        s_lshl_b32 s10, s10, 15
        s_lshl_b32 s11, s3, 13
        s_add_u32 s10, s10, s11
        s_add_u32 s10, s10, {QAP}
        s_add_u32 s11, s10, 4096
        s_lshl_b32 s12, s3, 13
        s_add_u32 s12, s12, {X}
        s_and_b32 s13, s3, 1
        s_lshl_b32 s13, s13, 5
        v_xor_b32 v{T+1}, s13, v{T}
        v_add_u32 v{T+1}, s12, v{T+1}""")
        top, done = e.lab("L_spin"), e.lab("L_ok")
        e(f"{top}:")
        for i in range(8): e(f"buffer_load_dwordx4 {vr(O+4*i,4)}, v{T}, {srd(SRD_WS)}, s{10+(i>>2)} offen offset:{1024*(i&3)} sc1")
        e("s_waitcnt vmcnt(0)")
        self.max3_chain("u32", T + 2, range(O, O + 16)); self.max3_chain("u32", T + 3, range(O + 16, O + 32))
        e(f"v_max_u32 v{T+2}, v{T+2}, v{T+3}\nv_cmp_eq_u32 vcc, -1, v{T+2}\ns_cbranch_vccz {done}")
        self.spin_tail(top, done)
        self.pt("qd")
        for i in range(8):
            sw = ((i & 3) << 2) | (i >> 2)
            e(f"v_xor_b32 v{TA+(i&1)}, {sw << 4}, v{T+1}\nds_write_b128 v{TA+(i&1)}, {vr(O+4*i,4)} offset:{1024*i}")
        e("s_add_u32 s9, s3, 4\ns_waitcnt lgkmcnt(0)\ns_barrier")
        self.pt("b1")
        self.qk(S, FR, AQ, TA, AC=AC)
        self.pt("qk")
        self.softmax(S, FR, M, T + 1, 9)
        self.pt("bp")
        e(f"v_add_u32 v{T}, {X+self.X_P}, v{T}")
        e.ds_reset()
        pt_, tt_ = {}, {}
        def pread(u): pt_[u] = e.ds(f"ds_read_b128 {vr(FR+4*(u&7),4)}, v{T} offset:{1024*u}")
        for u in range(8): pread(u)
        tr_addr()
        for u in range(16):
            e.dswait(max(pt_[u], tt_.get(u, 0)))
            if u == 4: tr_step()
            for ct in range(4):
                e(f"v_mfma_f32_32x32x16_bf16 {vr(O+16*ct,16)}, {vr(FR+4*(u&7),4)}, {vr(PV+16*(u&7)+4*ct,4)}, {vr(O+16*ct,16) if u else 0}")
                if u < 8: tt_[u + 8] = tr_ct(u + 8, ct)
            if u < 8: pread(u + 8)
        self.pt("pv")
        e(f"""v_lshrrev_b32 v{T}, 5, v0
        v_lshlrev_b32 v{T}, 18, v{T}
        v_and_b32 v{T+1}, 31, v0
        v_lshl_add_u32 v{T}, v{T+1}, 3, v{T}
        s_lshl_b32 s10, s4, 10
        s_lshl_b32 s11, s3, 8
        s_add_u32 s10, s10, s11
        s_add_u32 s10, s10, {AP}""")
        for r in range(16):
            d = FR + 2 * r
            e(f"v_cvt_pk_bf16_f32 v{d}, v{O+r}, v{O+16+r}\nv_cvt_pk_bf16_f32 v{d+1}, v{O+32+r}, v{O+48+r}")
            e(f"buffer_store_dwordx2 {vr(d,2)}, v{T}, {srd(SRD_WS)}, s10 offen sc1")
            e(f"s_add_u32 s10, s10, {65536 * (5 if r & 3 == 3 else 1)}")
        skip = self.only_wave(0)
        e(f"""ds_read_b128 {vr(S,4)}, v{T+3} offset:{self.X_L}
        ds_read_b128 {vr(S+4,4)}, v{T+3} offset:{self.X_L+16}
        v_lshlrev_b32 v{T+1}, 9, v{T+1}
        s_lshl_b32 s10, s4, 3
        s_add_u32 s10, s10, {AST}
        s_waitcnt lgkmcnt(0)""")
        self.tree("v_add_f32", S, 8, 1)
        e(f"""v_mov_b32 v{S+1}, v{S}
        v_mov_b32 v{S}, v{M}
        s_mov_b32 exec_hi, 0
        buffer_store_dwordx2 {vr(S,2)}, v{T+1}, {srd(SRD_WS)}, s10 offen sc1
        s_mov_b64 exec, -1
        {skip}:
        s_mov_b32 s5, s3
        s_mov_b32 s6, 1""")
        skip = e.lab("L_skip")
        e(f"""v_mov_b32 v100, {X+self.X_CNT+64}
        v_mov_b32 v101, 1
        s_mov_b64 exec, 1
        s_waitcnt vmcnt(0)
        ds_add_rtn_u32 v102, v100, v101
        s_waitcnt lgkmcnt(0)
        v_cmp_eq_u32 vcc, 3, v102
        s_mov_b64 exec, -1
        s_cbranch_vccz {skip}""")
        self.post_a(4, 1024, 96)
        e(f"{skip}:")
        self.pt("b9")
        self.vw_addr()
        self.tail_setup()
        self.masks(0x03030303, 0x03030303)
        self.lds_wait(X + self.X_CNT + 128, 100)
        e(f"s_mov_b32 s{S_SPIN}, {SPIN}")
        self.wload(SRD_D)
        self.b_pre()

    def b_pre(self):
        e = self.e
        T, U, G, A_CW, S_PRIV, S_MBJ = self.T, self.U, self.G, self.A_CW, self.S_PRIV, self.S_MBJ
        e(f"""v_lshlrev_b32 v{T}, 3, v0
        s_add_u32 s10, s{S_MBJ}, {MB_ST}
        s_mov_b32 s12, 0x0fff0fff
        s_mov_b32 s13, 0""")
        top, done = e.lab("L_spin"), e.lab("L_ok")
        e(f"""{top}:
        buffer_load_dwordx2 {vr(U,2)}, v{T}, {srd(SRD_WS)}, s10 offen sc1
        s_waitcnt vmcnt(0)
        v_max_u32 v{U+2}, v{U}, v{U+1}
        v_cmp_eq_u32 vcc, -1, v{U+2}
        s_and_b64 vcc, vcc, s[12:13]
        s_cbranch_vccz {done}""")
        self.spin_tail(top, done)
        self.pt("bstat")
        e(f"""v_mov_b32 v{U+2}, 0xff800000
        v_cndmask_b32 v{U}, v{U+2}, v{U}, s[12:13]
        v_cndmask_b32 v{U+1}, 0, v{U+1}, s[12:13]
        v_mov_b32 v{U+2}, v{U}""")
        self.row_red("v_max_f32", U + 2, (1, 2, 4, 8))
        e(f"v_sub_f32 v{U}, v{U}, v{U+2}\nv_exp_f32 v{U}, v{U}\nv_mul_f32 v{U+1}, v{U}, v{U+1}")
        self.row_red("v_add_f32", U + 1, (1, 2, 4, 8))
        WG = 160
        e(f"""v_rcp_f32 v{U+1}, v{U+1}
        v_mul_f32 v{U}, v{U}, v{U+1}
        ds_write_b32 v{A_CW}, v{U} offset:1536
        v_lshrrev_b32 v{T}, 5, v0
        v_lshl_add_u32 v{T+1}, v{T}, 6, s{S_PRIV}
        v_mul_u32_u24 v{T}, 3072, v{T}
        v_and_b32 v{T+2}, 31, v0
        v_lshl_add_u32 v{T}, v{T+2}, 3, v{T}
        s_waitcnt lgkmcnt(0)""")
        for q in range(3): e(f"ds_read_b128 {vr(WG+4*q,4)}, v{T+1} offset:{1536+16*q}")
        top, done = e.lab("L_spin"), e.lab("L_ok")
        e(f"{top}:")
        for sp in range(12): e(f"buffer_load_dwordx2 {vr(G+2*sp,2)}, v{T}, {srd(SRD_WS)}, s{S_MBJ} offen offset:{256*sp} sc1")
        e("s_waitcnt vmcnt(0) lgkmcnt(0)")
        self.max3_chain("u32", T + 1, range(G, G + 12)); self.max3_chain("u32", T + 2, range(G + 12, G + 24))
        e(f"v_max_u32 v{T+1}, v{T+1}, v{T+2}\nv_cmp_eq_u32 vcc, -1, v{T+1}\ns_cbranch_vccz {done}")
        self.spin_tail(top, done)
        self.pt("bo")
        e(f"v_mul_f32 v{U}, v{G}, v{WG}\nv_mul_f32 v{U+1}, v{G+1}, v{WG}\nv_mul_f32 v{U+2}, v{G+2}, v{WG+1}\nv_mul_f32 v{U+3}, v{G+3}, v{WG+1}")
        for sp in range(2, 12):
            k = 2 * (sp & 1)
            e(f"v_fmac_f32 v{U+k}, v{G+2*sp}, v{WG+sp}\nv_fmac_f32 v{U+k+1}, v{G+2*sp+1}, v{WG+sp}")
        e(f"v_add_f32 v{U}, v{U}, v{U+2}\nv_add_f32 v{U+1}, v{U+1}, v{U+3}\ns_branch L_CORE")

    def a_loader(self):
        e = self.e; e.vm = 0
        VL, VW, TMP, SEL, BLO, BHI, T, U, W, G, WUV, AC0, AC1, PA, XR = (self.VL, self.VW, self.TMP, self.SEL, self.BLO,
            self.BHI, self.T, self.U, self.W, self.G, self.WUV, self.AC0, self.AC1, self.PA, self.XR)
        S_LW, S_PART, S_PRIV, S_MBJ = self.S_LW, self.S_PART, self.S_PRIV, self.S_MBJ
        XO, S, FR, AQ, AC, TA, M = 232, 16, 224, 4, 5, 6, 8
        CNT = X + self.X_CNT
        creg = lambda ks: (W + 4 * ks) if ks < 16 else (WUV + 4 * (ks - 16))
        e("L_AL:")
        self.role = "AL"
        self.pt("start")
        e(f"""s_sub_u32 s{S_LW}, s3, 4
        s_and_b32 s10, s3, 1
        s_lshl_b32 s10, s10, 5
        v_lshlrev_b32 v{VL}, 4, v0
        v_xor_b32 v{T}, s10, v{VL}""")
        for i in range(8): e(f"v_xor_b32 v{XO+i}, {(((i & 3) << 2) | (i >> 2)) << 4}, v{T}")
        e(f"""s_lshl_b32 s66, s4, 18
        s_lshl_b32 s67, s{S_LW}, 13
        s_add_u32 s66, s66, s67
        s_waitcnt lgkmcnt(0)""")
        self.epoch_load()
        self.mk_srd(SRD_A, P_CKV, 16 << 20)
        dma = []
        def dma_tile(t):
            for r in range(8):
                if r & 3 == 0: e("s_mov_b32 m0, s67")
                last = e.mem(f"buffer_load_dwordx4 v{XO+r}, {srd(SRD_A)}, s66 offen offset:{1024*(r&3)} nt lds")
                if r == 3: e("s_add_u32 s66, s66, 4096\ns_add_u32 s67, s67, 4096")
                if r == 7: e(f"s_add_u32 s66, s66, 28672\ns_add_u32 s67, s67, {28672 if t != 3 else (28672 - 131072) & 0xffffffff:#x}")
            dma.append(last)
        a0 = self.o["a0"]
        for t in range(a0): dma_tile(t)
        self.mk_srd(SRD_B, P_WUV, 4 << 20); self.mk_srd(SRD_C, P_AWO, 4 << 20)
        self.mk_srd(SRD_F, P_OUT, 4096); self.mk_srd(SRD_WS, P_WS, WS_USED)
        self.row_addr(AC, T)
        e(f"""v_add_u32 v{AQ}, {X}, v{AC}
        s_lshl_b32 s10, s{S_LW}, 15
        v_add_u32 v{AC}, s10, v{AC}
        s_mov_b32 s{S_SC}, {f2u(SCALE):#x}
        s_mov_b32 s{S_SPIN}, {SPIN}
        s_mov_b32 s{S_PART}, 0""")
        self.epoch_tag()
        for t in range(5):
            if t < 4: e.wait(dma[t])
            e("s_barrier")
            self.pt(f"bar{t}")
            while len(dma) < min(8, a0 + t + 1, 4 + t) or (t == 4 and len(dma) < 8): dma_tile(len(dma))
            self.pt(f"iss{t}")
            if t < 4:
                skip = self.only_wave(4 + t)
                for i in range(8):
                    e(f"v_xor_b32 v{TA+(i&1)}, {i << 5}, v{AC}")
                    for q in range(4): e(f"ds_read_b128 {vr(creg(i+8*q),4)}, v{TA+(i&1)} offset:{256*q}")
                    if i & 1: e("s_waitcnt lgkmcnt(4)")
                e(f"s_waitcnt lgkmcnt(0)\n{skip}:")
        if self.stamps:
            for t in (4, 5, 6): e.wait(dma[t]); self.pt(f"d{t}")
        UV, GA = 96, 160
        e(f"""v_lshrrev_b32 v{BHI}, 3, v0
        v_lshlrev_b32 v{BHI}, 17, v{BHI}
        v_and_b32 v{T+1}, 7, v0
        v_lshl_add_u32 v{BHI}, v{T+1}, 4, v{BHI}
        s_lshl_b32 s9, s{S_LW}, 20
        s_lshl_b32 s11, s4, 7
        s_add_u32 s9, s9, s11""")
        def uv(t0, t1):
            for t in range(t0, t1):
                e.mem(f"buffer_load_dwordx4 {vr(UV+4*t,4)}, v{BHI}, {srd(SRD_B)}, s9 offen nt")
                e("s_add_u32 s9, s9, 8192")
        uv0, uv1 = self.o["uv0"], max(self.o["uv0"], self.o["uv1"])
        uv(0, uv0)
        e("s_barrier")
        self.mk_srd(SRD_E, SRD_F, 4096)
        self.vw_addr()
        e.wait(dma[7])
        self.pt("dma")
        e("s_barrier")
        uv(uv0, uv1)
        self.qk(S, FR, AQ, TA, creg=creg)
        if self.o["wo_at"] == 0: self.wload(SRD_C)
        self.softmax(S, FR, M, T, S_LW)
        uv(uv1, 16)
        if self.o["wo_at"] == 1: self.wload(SRD_C)
        self.tail_setup()
        self.lds_wait(CNT + 64, T)
        e(f"s_mov_b32 s{S_SPIN}, {SPIN}")
        self.pt("b9")
        if self.o["wo_at"] == 2: self.wload(SRD_C)
        self.poll_a(1024, 1, U)
        self.pt("apf")
        e.vm = 0
        e(f"""s_lshr_b32 s12, s4, 1
        s_lshl_b32 s10, s12, 9
        s_add_u32 s10, s10, {AST}
        v_lshlrev_b32 v{T}, 3, v0""")
        st = e.mem(f"buffer_load_dwordx2 {vr(U,2)}, v{T}, {srd(SRD_WS)}, s10 offen sc1")
        e(f"""s_lshl_b32 s10, s12, 16
        s_lshl_b32 s11, s{S_LW}, 8
        s_add_u32 s10, s10, s11
        s_add_u32 s10, s10, {AP}""")
        g = []
        for t in range(16):
            g.append(e.mem(f"buffer_load_dwordx4 {vr(GA+4*t,4)}, v{VW}, {srd(SRD_WS)}, s10 offen offset:{1024*(t&3)} sc1"))
            if t & 3 == 3: e("s_add_u32 s10, s10, 4096")
        self.masks(0x00030003, 0x03000300)
        e(f"""v_lshl_add_u32 v{T}, v0, 1, s{S_PRIV}
        v_lshrrev_b32 v{T+1}, 4, v0
        v_lshl_add_u32 v{T+1}, v{T+1}, 5, s{S_PRIV}""")
        e.wait(st)
        e(f"v_mov_b32 v{U+2}, v{U}")
        self.row_red("v_max_f32", U + 2, (1, 2, 4, 8)); self.swap_red("v_max_f32", U + 2, TMP, (16,))
        e(f"v_sub_f32 v{U}, v{U}, v{U+2}\nv_exp_f32 v{U}, v{U}\nv_mul_f32 v{U+1}, v{U}, v{U+1}")
        self.row_red("v_add_f32", U + 1, (1, 2, 4, 8)); self.swap_red("v_add_f32", U + 1, TMP, (16,))
        e(f"""v_rcp_f32 v{U+1}, v{U+1}
        v_mul_f32 v{U}, v{U}, v{U+1}
        v_cvt_pk_bf16_f32 v{U}, v{U}, v{U}
        ds_write_b16 v{T}, v{U}
        s_waitcnt lgkmcnt(0)
        ds_read_b128 {vr(XR,4)}, v{T+1}
        ds_read_b128 {vr(XR+4,4)}, v{T+1} offset:16
        v_lshrrev_b32 v{T}, 5, v0
        v_lshlrev_b32 v{T}, 8, v{T}
        v_and_b32 v{T+1}, 15, v0
        v_lshl_add_u32 v{T}, v{T+1}, 2, v{T}
        v_bfe_u32 v{T+1}, v0, 4, 1
        v_lshl_add_u32 v{T}, v{T+1}, 1, v{T}
        v_add_u32 v{T}, s{S_PRIV}, v{T}
        v_bfe_u32 v{T+1}, v0, 3, 1
        v_lshlrev_b32 v{T+1}, 8, v{T+1}
        v_lshrrev_b32 v{T+2}, 4, v0
        v_lshl_add_u32 v{T+1}, v{T+2}, 6, v{T+1}
        v_bfe_u32 v{T+2}, v0, 2, 1
        v_lshl_add_u32 v{T+1}, v{T+2}, 5, v{T+1}
        v_add_u32 v{T+1}, s{S_PRIV}, v{T+1}
        s_waitcnt lgkmcnt(0)""")
        self.rws256(16, XR, GA, AC0, BLO, BHI, PA, g)
        self.lds_inc(CNT + 128, U + 2)
        self.pt("lat")
        e(f"""v_cvt_pk_bf16_f32 v{U}, v{AC0}, v{AC0+1}
        v_cvt_pk_bf16_f32 v{U+1}, v{AC0+2}, v{AC0+3}
        ds_write_b16 v{T}, v{U} offset:256
        ds_write_b16_d16_hi v{T}, v{U} offset:320
        ds_write_b16 v{T}, v{U+1} offset:384
        ds_write_b16_d16_hi v{T}, v{U+1} offset:448
        s_waitcnt lgkmcnt(0)
        ds_read_b128 {vr(XR,4)}, v{T+1} offset:256
        ds_read_b128 {vr(XR+4,4)}, v{T+1} offset:272""")
        for z in (0, 1, 4, 5, 8, 9): e(f"v_mov_b32 v{PA+z}, 0")
        e(f"""v_bfe_u32 v{T}, v0, 3, 1
        v_lshlrev_b32 v{T}, 9, v{T}
        v_lshrrev_b32 v{T+1}, 5, v0
        v_lshl_add_u32 v{T}, v{T+1}, 8, v{T}
        v_and_b32 v{T+1}, 7, v0
        v_lshl_add_u32 v{T}, v{T+1}, 5, v{T}
        s_lshl_b32 s10, s{S_LW}, 10
        v_add_u32 v{T}, s10, v{T}
        s_waitcnt lgkmcnt(0)""")
        self.rws128(16, XR, UV, AC0, AC1, SEL, PA)
        RED = 16384
        e(f"""s_mov_b32 exec_lo, 0xff0000ff
        s_mov_b32 exec_hi, 0xff0000ff
        ds_write_b128 v{T}, {vr(AC0,4)} offset:{RED}
        ds_write_b128 v{T}, {vr(AC1,4)} offset:{RED+16}
        s_mov_b64 exec, -1
        v_lshlrev_b32 v{T}, 3, v0""")
        self.lds_inc(CNT, T + 1)
        self.masks(0x03030303, 0x03030303)
        top, done = e.lab("L_spin"), e.lab("L_ok")
        e(f"""{top}:
        ds_read_b32 v{T+2}, v{T+1}
        s_waitcnt lgkmcnt(0)
        v_cmp_ne_u32 vcc, 4, v{T+2}
        s_cbranch_vccz {done}""")
        self.spin_tail(top, done)
        for i in range(8): e(f"ds_read_b64 {vr(U+2*i,2)}, v{T} offset:{RED+512*i}")
        e("s_waitcnt lgkmcnt(0)")
        self.tree("v_add_f32", U, 8, 2)
        self.pt("ctx")
        A_CW, A_CR, A_MB = self.A_CW, self.A_CR, self.A_MB
        e(f"""L_CORE:
        v_cvt_pk_bf16_f32 v{U}, v{U}, v{U+1}
        ds_write_b32 v{A_CW}, v{U} offset:1024
        s_lshl_b32 s10, s{S_LW}, 17
        s_lshl_b32 s11, s4, 6
        s_add_u32 s10, s10, s11
        s_lshl_b32 s11, s{S_PART}, 12
        s_add_u32 s10, s10, s11
        s_add_u32 s10, s10, {MB+MB_2}
        s_waitcnt lgkmcnt(0)
        ds_read_b128 {vr(XR,4)}, v{A_CR} offset:1024
        ds_read_b128 {vr(XR+4,4)}, v{A_CR} offset:1040
        s_waitcnt lgkmcnt(0)""")
        self.rws256(16, XR, W, AC0, BLO, BHI, PA)
        for r in range(4): e(f"v_min_u32 v{AC0+r}, -2, v{AC0+r}")
        e(f"buffer_store_dwordx4 {vr(AC0,4)}, v{A_MB}, {srd(SRD_WS)}, s10 offen sc1")
        self.pt("core")
        e(f"s_cmp_lg_u32 s{S_LW}, 0\ns_cbranch_scc1 L_FINDONE")
        e(f"s_add_u32 s10, s{S_MBJ}, s11\ns_add_u32 s10, s10, {MB_2}")
        top, done = e.lab("L_spin"), e.lab("L_ok")
        e(f"{top}:")
        for i in range(4): e(f"buffer_load_dwordx4 {vr(G+4*i,4)}, v{VL}, {srd(SRD_WS)}, s10 offen offset:{1024*i} sc1")
        e("s_waitcnt vmcnt(0)")
        self.max3_chain("u32", T, range(G, G + 16))
        e(f"v_cmp_eq_u32 vcc, -1, v{T}\ns_cbranch_vccz {done}")
        self.spin_tail(top, done)
        self.tree("v_add_f32", G, 4, 4)
        for rot in (4, 8):
            for r in range(4): self.row_red("v_add_f32", G + r, (rot,))
        for s in (16, 32):
            for r in range(4): e(f"v_mov_b32 v{G+4+r}, v{G+r}")
            for r in range(4): e(f"v_permlane{s}_swap_b32 v{G+r}, v{G+4+r}")
            for r in range(4): e(f"v_add_f32 v{G+r}, v{G+r}, v{G+4+r}")
        e(f"""v_cvt_pk_bf16_f32 v{G}, v{G}, v{G+1}
        v_cvt_pk_bf16_f32 v{G+1}, v{G+2}, v{G+3}
        v_lshlrev_b32 v{T}, 3, v0
        s_lshr_b32 s10, s4, 5
        s_lshl_b32 s10, s10, 11
        s_and_b32 s11, s4, 31
        s_lshl_b32 s11, s11, 5
        s_add_u32 s10, s10, s11
        s_lshl_b32 s11, s{S_PART}, 10
        s_add_u32 s10, s10, s11
        s_mov_b64 exec, 15
        buffer_store_dwordx2 {vr(G,2)}, v{T}, {srd(SRD_E)}, s10 offen
        s_lshl_b32 s10, s4, 1
        s_add_u32 s10, s10, s{S_PART}
        s_cmp_lg_u32 s10, 1
        s_cbranch_scc1 L_FINDONE
        s_mov_b64 exec, 1
        v_mov_b32 v{T}, s{TAG}
        s_mov_b32 s10, {EPOCH}
        buffer_store_dword v{T}, off, {srd(SRD_WS)}, s10
        L_FINDONE:""")
        self.pt("end")
        self.stamp_out(16)
        e("s_endpgm")

    def build(self):
        e = self.e
        e("""s_cmp_ge_u32 s2, 256
        s_cbranch_scc1 L_END
        s_load_dwordx16 s[16:31], s[0:1], 0
        s_load_dwordx8 s[32:39], s[0:1], 64
        s_load_dwordx4 s[40:43], s[0:1], 96
        v_lshrrev_b32 v1, 6, v0
        v_and_b32 v0, 63, v0
        v_readfirstlane_b32 s3, v1
        s_cmp_lt_u32 s2, 128
        s_cbranch_scc1 L_P
        s_cmp_ge_u32 s2, 192
        s_cbranch_scc1 L_Q
        s_sub_u32 s4, s2, 128
        s_cmp_lt_u32 s3, 4
        s_cbranch_scc1 L_AC""")
        self.a_loader()
        self.bside("P")
        self.bside("Q")
        self.a_compute()
        e("L_END:\ns_endpgm")
        body, npad = fix_hazards(e.L)
        out = [HEADER.rstrip(), "; @launch grid=(256,1,1) block=(512,1,1) lds=163840",
               '.amdgcn_target "amdgcn-amd-amdhsa--gfx950"', ".text", f".globl {NAME}_kernel", ".p2align 8",
               f".type {NAME}_kernel,@function", f"{NAME}_kernel:"]
        out += [("" if l.endswith(":") else "    ") + l for l in body]
        out += ['.section .rodata,"a"', ".p2align 6", f".amdhsa_kernel {NAME}_kernel",
                "  .amdhsa_next_free_vgpr 256", "  .amdhsa_next_free_sgpr 102", "  .amdhsa_accum_offset 256",
                "  .amdhsa_group_segment_fixed_size 0", "  .amdhsa_kernarg_size 112", "  .amdhsa_user_sgpr_count 2",
                "  .amdhsa_user_sgpr_kernarg_segment_ptr 1", "  .amdhsa_system_sgpr_workgroup_id_x 1",
                ".end_amdhsa_kernel"]
        return "\n".join(out) + "\n", npad

PTS = {"P": "start,t2,xq,st,qf,k,v,end", "Q": "start,t1,qf,q,k,p,v,end",
       "AC": "start,end,qc,qd,b1,core,b9,bo", "AL": "start,end,dma,b9,apf,core,lat,ctx"}

if __name__ == "__main__":
    ap = argparse.ArgumentParser()
    ap.add_argument("out"); ap.add_argument("--stamps", action="store_true")
    ap.add_argument("--pts", action="append", default=[]); ap.add_argument("--x", default="")
    for k, v in DEFAULTS.items(): ap.add_argument("--" + k, type=int, default=v)
    a = ap.parse_args()
    pts = {}
    if a.stamps:
        pts = {k: v.split(",") for k, v in PTS.items()}
        for p in a.pts:
            r, l = p.split(":"); pts[r] = l.split(",")
    s, npad = Gen({k: getattr(a, k) for k in DEFAULTS}, pts, set(a.x.split(","))).build()
    open(a.out, "w").write(s)
    print("wrote", a.out, "lines", s.count("\n"), "pads", npad)
```

```python
import sys, math, struct, argparse
from asmlib import Emit, fix_hazards

NAME = "concat_heads__compressed_kv_cla__gqa_block_cached__decode"
HEADER = open("cdna_kernels/%s.s.ref" % NAME).read().split("; Override launch")[0]

QBP = 0x000000
QAP = 0x020000
AST = 0x040000
BS  = 0x048000
FB  = 0x050000
EPOCH = 0x060000
FA  = 0x080000
MB  = 0x100000
MB_2 = 4096
AP  = 0x200000
XQ  = 0x400000
WS_USED = 0x500000
STAMPS = 0x800000

SCALE = math.log2(math.e) / math.sqrt(128.0)
def f2u(x): return struct.unpack("<I", struct.pack("<f", x))[0]

SRD_WS, SRD_A, SRD_B, SRD_C, SRD_D, SRD_E, SRD_F, SRD_G = 44, 48, 52, 56, 60, 64, 68, 96
P_AX, P_CKV, P_AWQ, P_WUK, P_WUV, P_AWO, P_BX, P_BK, P_BV, P_BWQ, P_BWO, P_OUT, P_DBG, P_WS = range(16, 44, 2)
S_SC, S_SPIN = 15, 14
MASK0 = 72
TAG = 94
ST0 = 16
SPIN = 20000
X = 131072

def srd(n): return f"s[{n}:{n+3}]"
def vr(a, n): return f"v[{a}:{a+n-1}]" if n > 1 else f"v{a}"

DEFAULTS = dict(wsb=0, wt1=8, pf1=1, pfwin=6, stw=0, sl_ap=4, sl_xq0=0, sl_xq=2, sl_qa=4, sl_bs=8, np=6, uv0=16, wa=0, wb=0, wc=0, pf=4, pfw=0, pre_q=0, uv1=8, a0=3, t2w=0, wq1=2, kq1=4, sleep=0, pre_p=0, w1=2, kf_p=0, kf_q=12, wq0=8, wk=8, wt=10, wv=8)

class Gen:
    def __init__(self, opt, pts, x):
        self.o = opt; self.alt = pts; self.x = x; self.role = None
        self.stamps = bool(pts)
        self.e = Emit()

    def mk_srd(self, d, p, size):
        self.e(f"s_mov_b32 s{d}, s{p}\ns_mov_b32 s{d+1}, s{p+1}\ns_mov_b32 s{d+2}, {size:#x}\ns_mov_b32 s{d+3}, 0x20000")

    def pt(self, name, role=None):
        sel = self.alt.get(role or self.role)
        if sel and name in sel:
            i = sel.index(name); self.e(f"s_memrealtime s[{80+2*i}:{81+2*i}]" if i < 7 else "s_memrealtime s[100:101]")

    def stamp_out(self, t):
        if not self.stamps: return
        e = self.e
        if "dbg" in self.x:
            skip = e.lab("L_skip")
            e(f"""s_waitcnt lgkmcnt(0)
            s_and_b32 s10, s2, 127
            s_lshl_b32 s10, s10, 3
            s_add_u32 s10, s10, s3
            s_cmp_lg_u32 s10, 0
            s_cbranch_scc1 {skip}
            s_lshr_b32 s10, s2, 7
            s_lshl_b32 s10, s10, 5
            s_mov_b64 exec, 1""")
            for x in self.x:
                if x.startswith("hold"):
                    top = e.lab("L_hold")
                    e(f"""{top}:
                    s_memrealtime s[12:13]
                    s_waitcnt lgkmcnt(0)
                    s_sub_u32 s12, s12, s80
                    s_cmp_lt_u32 s12, {int(x[4:])}
                    s_cbranch_scc1 {top}""")
            self.mk_srd(SRD_A, P_DBG, 256)
            regs = [80, 82, 84, 86, 88, 90, 92, 100]
            for k in range(8):
                e(f"s_sub_u32 s11, s{regs[k]}, {'s80' if k else '0'}\nv_mov_b32 v{t+k}, s11")
            e(f"buffer_store_dwordx4 v[{t}:{t+3}], off, {srd(SRD_A)}, s10\nbuffer_store_dwordx4 v[{t+4}:{t+7}], off, {srd(SRD_A)}, s10 offset:16")
            e(f"{skip}:")
            return
        e("s_waitcnt lgkmcnt(0)\ns_mov_b64 exec, 1")
        e(f"s_lshl_b32 s4, s2, 3\ns_add_u32 s4, s4, s3\ns_lshl_b32 s4, s4, 6\ns_add_u32 s4, s4, {STAMPS}")
        e(f"s_mov_b32 s{SRD_WS+2}, 0x1000000")
        regs = list(range(80, 94)) + [100, 101]
        for i in range(4):
            for k in range(4): e(f"v_mov_b32 v{t+k}, s{regs[4*i+k]}")
            e(f"buffer_store_dwordx4 v[{t}:{t+3}], off, {srd(SRD_WS)}, s4 offset:{16*i}")
            e("s_nop 2")

    def selectors(self, sel, base_lo, base_hi, tmp):
        self.e(f"""v_and_b32 v{tmp}, 1, v0
        v_cmp_eq_u32 vcc, 1, v{tmp}
        v_mov_b32 v{base_lo}, 0x0c0c0100
        v_mov_b32 v{tmp}, 0x01000c0c
        v_cndmask_b32 v{base_lo}, v{base_lo}, v{tmp}, vcc
        v_add_u32 v{base_hi}, 0x0202, v{base_lo}
        v_mov_b32 v{tmp}, 0x03020c0c
        v_cndmask_b32 v{base_hi}, v{base_hi}, v{tmp}, vcc
        v_and_b32 v{tmp}, 2, v0
        v_cmp_eq_u32 vcc, 0, v{tmp}
        v_mov_b32 v{tmp}, 0x0c0c0c0c
        v_cndmask_b32 v{sel}, v{tmp}, v{base_lo}, vcc
        v_cndmask_b32 v{sel+1}, v{base_lo}, v{tmp}, vcc
        v_cndmask_b32 v{sel+2}, v{tmp}, v{base_hi}, vcc
        v_cndmask_b32 v{sel+3}, v{base_hi}, v{tmp}, vcc""")

    def masks(self, lo, hi):
        for j in range(4):
            self.e(f"s_mov_b32 s{MASK0+2*j}, {(lo << (2*j)):#x}\ns_mov_b32 s{MASK0+2*j+1}, {(hi << (2*j)):#x}")

    def rws256(self, nload, x, w, acc, base_lo, base_hi, t0, waits=None):
        e = self.e
        for t in range(nload):
            a = t0 + 2 + 4 * (t & 1)
            e(f"v_perm_b32 v{t0}, v{x+(t>>1)}, v{x+(t>>1)}, v{base_hi if t & 1 else base_lo}")
            for j in range(4): e(f"v_cndmask_b32 v{a+j}, 0, v{t0}, s[{MASK0+2*j}:{MASK0+2*j+1}]")
            if waits: e.wait(waits[t])
            e(f"v_mfma_f32_16x16x32_bf16 {vr(acc,4)}, {vr(a,4)}, {vr(w+4*t,4)}, {vr(acc,4) if t else 0}")

    def rws128(self, nload, x, w, acc0, acc1, sel, pa):
        e = self.e
        for t in range(nload):
            p = pa + 2 + 4 * (t & 1)
            sa, sb = (sel + 2, sel + 3) if t & 1 else (sel, sel + 1)
            e(f"v_perm_b32 v{p}, v{x+(t>>1)}, v{x+(t>>1)}, v{sa}\nv_perm_b32 v{p+1}, v{x+(t>>1)}, v{x+(t>>1)}, v{sb}")
            e(f"v_mfma_f32_16x16x32_bf16 {vr(acc0,4)}, {vr(p,4)}, {vr(w+4*t,4)}, {vr(acc0,4) if t else 0}")
            e(f"v_mfma_f32_16x16x32_bf16 {vr(acc1,4)}, {vr(p-2,4)}, {vr(w+4*t,4)}, {vr(acc1,4) if t else 0}")

    def quad_sum(self, ds):
        for r in range(4):
            for d in ds:
                q = f"quad_perm:[{r},{r},{r},{r}] row_mask:0xf bank_mask:0xf"
                self.e(f"v_mov_b32_dpp v{d}, v{d} {q}" if r == 0 else f"v_add_f32_dpp v{d}, v{d+r}, v{d} {q}")

    def swap_red(self, op, x, t, which):
        for s in which:
            self.e(f"v_mov_b32 v{t}, v{x}\nv_permlane{s}_swap_b32 v{x}, v{t}\n{op} v{x}, v{x}, v{t}")

    def row_red(self, op, x, rots):
        for r in rots:
            self.e(f"{op}_dpp v{x}, v{x}, v{x} row_ror:{r} row_mask:0xf bank_mask:0xf")

    def tree(self, op, base, n, width):
        st = 1
        while st < n:
            for i in range(0, n, 2 * st):
                for r in range(width): self.e(f"{op} v{base+width*i+r}, v{base+width*i+r}, v{base+width*(i+st)+r}")
            st *= 2

    def max3_chain(self, op, dst, regs):
        regs = list(regs)
        self.e(f"v_max3_{op} v{dst}, v{regs[0]}, v{regs[1]}, v{regs[2]}")
        regs = regs[3:]
        while len(regs) >= 2:
            self.e(f"v_max3_{op} v{dst}, v{dst}, v{regs[0]}, v{regs[1]}"); regs = regs[2:]
        if regs: self.e(f"v_max_{op} v{dst}, v{dst}, v{regs[0]}")

    def spin_tail(self, top, done, sleep=0):
        if sleep: self.e(f"s_sleep {sleep}")
        if "nodep" in self.x: self.e(f"{done}:"); return
        self.e(f"s_sub_u32 s{S_SPIN}, s{S_SPIN}, 1\ns_cbranch_scc0 {top}\n{done}:")

    def lds_wait(self, addr, t):
        e = self.e
        top, done = e.lab("L_spin"), e.lab("L_ok")
        e(f"""v_mov_b32 v{t}, {addr}
        s_mov_b32 s{S_SPIN}, {SPIN * 20}
        {top}:
        ds_read_b32 v{t+1}, v{t}
        s_waitcnt lgkmcnt(0)
        v_cmp_ne_u32 vcc, 4, v{t+1}
        s_cbranch_vccz {done}""")
        self.spin_tail(top, done, 2)

    def lds_inc(self, addr, t):
        self.e(f"""v_mov_b32 v{t}, {addr}
        v_mov_b32 v{t+1}, 1
        s_mov_b64 exec, 1
        ds_add_u32 v{t}, v{t+1}
        s_mov_b64 exec, -1""")

    def only_wave(self, w):
        skip = self.e.lab("L_skip")
        self.e(f"s_cmp_lg_u32 s3, {w}\ns_cbranch_scc1 {skip}")
        return skip

    def epoch_load(self):
        if self.o["wsb"]: self.e(f"s_add_u32 s{P_WS}, s{P_WS}, {self.o['wsb'] << 20:#x}\ns_addc_u32 s{P_WS+1}, s{P_WS+1}, 0")
        self.e(f"s_load_dword s{TAG}, s[{P_WS}:{P_WS+1}], {EPOCH:#x}")

    def epoch_tag(self):
        self.e(f"s_waitcnt lgkmcnt(0)\ns_add_u32 s{TAG}, s{TAG}, 1\ns_xor_b32 s{TAG+1}, s{TAG}, 0x5bd1e995")

    def post_b(self, sg, sslot, t):
        self.e(f"""v_mov_b32 v{t}, s{TAG}
        v_mov_b32 v{t+1}, s{TAG+1}
        s_lshl_b32 s10, s{sg}, 7
        s_lshl_b32 s11, s{sslot}, 3
        s_add_u32 s10, s10, s11
        s_add_u32 s10, s10, {FB}
        s_mov_b64 exec, 1
        buffer_store_dwordx2 {vr(t,2)}, off, {srd(SRD_WS)}, s10 sc1 ; c:FLAG
        s_mov_b64 exec, -1""")

    def post_a(self, sid, off, t):
        self.e(f"""v_lshlrev_b32 v{t+2}, 11, v0
        v_mov_b32 v{t}, s{TAG}
        v_mov_b32 v{t+1}, s{TAG+1}
        s_lshl_b32 s10, s{sid}, 3
        s_add_u32 s10, s10, {FA+off}
        s_mov_b64 exec, 0xff
        buffer_store_dwordx2 {vr(t,2)}, v{t+2}, {srd(SRD_WS)}, s10 offen sc1 ; c:FLAG
        s_mov_b64 exec, -1""")

    def poll_a(self, off, t):
        e = self.e
        top, done = e.lab("L_spin"), e.lab("L_ok")
        e(f"""s_and_b32 s10, s4, 7
        s_lshl_b32 s10, s10, 11
        s_add_u32 s10, s10, {FA+off}
        v_lshlrev_b32 v{t+2}, 3, v0
        {top}:
        buffer_load_dwordx2 {vr(t,2)}, v{t+2}, {srd(SRD_WS)}, s10 offen sc1
        s_waitcnt vmcnt(0)
        v_cmp_ne_u64 vcc, s[{TAG}:{TAG+1}], {vr(t,2)}
        s_cbranch_vccz {done}""")
        self.spin_tail(top, done, self.o["sl_ap"])

    def tag_check(self, g, n, t):
        e = self.e
        for i in range(n):
            e(f"v_xor_b32 v{t+2}, s{TAG+1}, v{g+2*i}\nv_xor_b32 v{g+2*i+1}, s{TAG}, v{g+2*i+1}")
            e(f"v_and_or_b32 v{g+2*i+1}, v{t+2}, v{t+1}, v{g+2*i+1}")
        e(f"v_or_b32 v{t}, v{g+1}, v{g+3}")
        for i in range(2, n, 2): e(f"v_or3_b32 v{t}, v{t}, v{g+2*i+1}, v{g+2*i+3}")

    def bside(self, kind):
        e = self.e; e.vm = 0; o = self.o
        n = o["np"] if kind == "P" else 16 - 2 * o["np"]
        VK, VL, TMP, SEL, BLO, BHI, QF, AC0, AC1, LS, MX = 1, 2, 3, 4, 8, 9, 10, 14, 18, 22, 23
        T = 24; D0 = 32; KR = 36; VR = 132; PA = 228; U = 246
        L_T1, L_Q, L_MAX, L_L, L_RED, L_T2, L_QA, L_W = 0, 8192, 9216, 9344, 16384, 32768, 40960, 32768
        S_KV, S_VV, S_G, S_B, S_SP = 5, 6, 7, 8, 9
        e(f"L_{kind}:")
        self.role = kind
        if "no" + kind in self.x: e("s_endpgm")
        self.pt("start")
        e(f"""v_and_b32 v{T}, 3, v0
        v_lshrrev_b32 v{TMP}, 4, v0
        v_lshlrev_b32 v{T+1}, 6, v{TMP}
        v_lshl_add_u32 v{T+1}, v{T}, 4, v{T+1}
        v_bfe_u32 v{T}, v0, 2, 2
        v_lshl_add_u32 v{VK}, v{T}, 8, v{T+1}
        v_lshlrev_b32 v{VL}, 4, v0""")
        if kind == "P":
            e(f"""v_lshl_add_u32 v{T+6}, v{T}, 15, v{T+1}
            v_and_b32 v{T+4}, 15, v0
            v_lshlrev_b32 v{T+4}, 4, v{T+4}
            v_lshl_add_u32 v{T+4}, v{TMP}, 15, v{T+4}
            v_bfe_u32 v{T+5}, v0, 3, 1
            v_lshlrev_b32 v{T+5}, 10, v{T+5}
            v_lshl_add_u32 v{T+5}, v{TMP}, 3, v{T+5}
            s_lshr_b32 s10, s2, 3
            s_and_b32 s{S_SP}, s2, 7
            s_mul_i32 s11, s{S_SP}, {8*n}
            s_mul_i32 s12, s3, {n}
            s_lshr_b32 s13, s2, 2
            s_and_b32 s4, s2, 3""")
        else:
            e(f"""s_sub_u32 s4, s2, 192
            s_lshr_b32 s10, s4, 2
            s_and_b32 s4, s4, 3
            s_add_u32 s{S_SP}, s4, 8
            s_mul_i32 s11, s4, {8*n}
            s_add_u32 s11, s11, {64*o["np"]}
            s_mul_i32 s12, s3, {n}
            v_and_b32 v{T+4}, 15, v0
            v_lshlrev_b32 v{T+4}, 4, v{T+4}
            v_lshl_add_u32 v{T+4}, v{TMP}, 16, v{T+4}
            v_bfe_u32 v{T+5}, v0, 3, 1
            v_lshlrev_b32 v{T+5}, 10, v{T+5}
            v_lshl_add_u32 v{T+5}, v{TMP}, 4, v{T+5}
            s_sub_u32 s13, s2, 192
            s_and_b32 s4, s13, 1
            s_lshr_b32 s13, s13, 1""")
        e(f"""s_and_b32 s{S_G}, s10, 7
        s_lshr_b32 s{S_B}, s10, 3
        s_add_u32 s11, s11, s12
        s_lshl_b32 s11, s11, 12
        s_lshl_b32 s10, s10, 21
        s_add_u32 s{S_KV}, s10, s11
        s_mov_b32 s{S_VV}, s{S_KV}""")
        sh = 7 if kind == "P" else 8
        e(f"""s_lshl_b32 s10, s4, {sh}
        s_lshl_b32 s11, s3, {sh-3}
        s_add_u32 s10, s10, s11
        s_lshl_b32 s11, s10, 1
        s_lshl_b32 s10, s10, 13
        s_lshl_b32 s12, s13, 8
        s_add_u32 s10, s10, s12""")
        e("s_waitcnt lgkmcnt(0)")
        self.epoch_load()
        tags = []
        def issue(upto):
            while len(tags) < min(upto, 8 * n):
                x = len(tags); k = x % (4 * n); j = k & 3
                if x < 4 * n:
                    tags.append(e.mem(f"buffer_load_dwordx4 {vr(KR+4*k,4)}, v{VK}, {srd(SRD_A)}, s{S_KV} offen offset:{1024*j} nt"))
                    if j == 3: e(f"s_add_u32 s{S_KV}, s{S_KV}, 4096")
                else:
                    tags.append(e.mem(f"buffer_load_dwordx4 {vr(VR+4*k,4)}, v{VL}, {srd(SRD_B)}, s{S_VV} offen offset:{1024*j} nt"))
                    if j == 3: e(f"s_add_u32 s{S_VV}, s{S_VV}, 4096")
        def slide(k0, k1, w):
            for k in range(k0, k1):
                e.wait(tags[k]); issue(k + 1 + w)
        self.mk_srd(SRD_WS, P_WS, WS_USED)
        if kind == "P":
            self.mk_srd(SRD_C, P_AX, 2048); self.mk_srd(SRD_D, P_AWQ, 4 << 20)
            e(f"""v_lshlrev_b32 v{LS}, 15, v{TMP}
            v_and_b32 v{U+5}, 15, v0
            v_lshl_add_u32 v{LS}, v{U+5}, 4, v{LS}""")
            skip = self.only_wave(7)
            e(f"""s_lshl_b32 s12, s2, 8
            s_add_u32 s12, s12, {QAP}""")
            for r in range(4): e(f"v_mov_b32 v{U+r}, -1")
            e(f"""s_mov_b32 exec_hi, 0
            buffer_store_dwordx4 {vr(U,4)}, v{LS}, {srd(SRD_WS)}, s12 offen sc1 ; c:QCLR
            s_mov_b64 exec, -1
            {skip}:""")
            def four(slot, voff, s):
                e("s_mov_b32 s12, s10")
                r = []
                for t in range(4):
                    r.append(e.mem(f"buffer_load_dwordx4 {vr(VR+4*(slot+t),4)}, v{voff}, {srd(s)}, s12 offen nt"))
                    if t < 3: e("s_add_u32 s12, s12, 8192")
                return r
            xa = e.mem(f"buffer_load_dwordx2 {vr(T,2)}, v{T+5}, {srd(SRD_C)}, s11 offen")
            w2 = four(0, T + 4, SRD_D)
            self.mk_srd(SRD_E, P_WUK, 4 << 20)
            if o["t2w"] >= 0: e.wait(w2[o["t2w"]])
            w3 = four(4, T + 6, SRD_E)
        else:
            self.mk_srd(SRD_C, P_BX, 2048); self.mk_srd(SRD_D, P_BWQ, 4 << 20)
            xb = e.mem(f"buffer_load_dwordx4 {vr(T,4)}, v{T+5}, {srd(SRD_C)}, s11 offen")
            w1 = []
            for t in range(8):
                if t >= o["wt1"]: e.wait(w1[t - o["wt1"]])
                w1.append(e.mem(f"buffer_load_dwordx4 {vr(VR+4*t,4)}, v{T+4}, {srd(SRD_D)}, s10 offen nt"))
                if t < 7: e("s_add_u32 s10, s10, 8192")
            self.mk_srd(SRD_E, P_OUT, 4096)
            e(f"""v_lshrrev_b32 v{T+6}, 3, v0
            v_lshlrev_b32 v{T+6}, 17, v{T+6}
            v_and_b32 v{U}, 7, v0
            v_lshl_add_u32 v{T+6}, v{U}, 4, v{T+6}
            v_and_b32 v{U}, 15, v0
            v_lshlrev_b32 v{U}, 4, v{U}
            v_lshl_add_u32 v{U}, v{TMP}, 14, v{U}
            s_sub_u32 s68, s2, 192
            s_cmp_lt_u32 s3, 4
            s_cselect_b32 s{SRD_C}, s{P_WUV}, s{P_AWO}
            s_cselect_b32 s{SRD_C+1}, s{P_WUV+1}, s{P_AWO+1}
            s_mov_b32 s{SRD_C+2}, 0x400000
            s_movk_i32 s69, 1024
            s_cselect_b32 s69, 8192, s69
            s_cselect_b64 vcc, -1, 0
            v_cndmask_b32 v{T+6}, v{U}, v{T+6}, vcc
            s_lshl_b32 s10, s3, 20
            s_lshl_b32 s11, s68, 7
            s_add_u32 s10, s10, s11
            s_lshl_b32 s11, s68, 16
            s_and_b32 s12, s3, 3
            s_lshl_b32 s12, s12, 8
            s_add_u32 s11, s11, s12
            s_cmp_lt_u32 s3, 4
            s_cselect_b32 s70, s10, s11
            s_lshl_b32 s71, s3, 14
            s_add_u32 s71, s71, {L_W}""")
            wd = []
            def wdma(upto, w):
                while len(wd) < upto:
                    e(f"s_waitcnt vmcnt({w-1})\ns_mov_b32 m0, s71")
                    wd.append(e.mem(f"buffer_load_dwordx4 v{T+6}, {srd(SRD_C)}, s70 offen nt lds"))
                    e("s_add_u32 s70, s70, s69\ns_add_u32 s71, s71, 1024")
        self.mk_srd(SRD_A, P_BK, 32 << 20); self.mk_srd(SRD_B, P_BV, 32 << 20)
        if kind == "P": issue(o["pre_p"])
        e(f"s_mov_b32 s{S_SC}, {f2u(SCALE):#x}\ns_mov_b32 s{S_SPIN}, {SPIN}")
        self.selectors(SEL, BLO, BHI, TMP)
        self.epoch_tag()
        if kind == "P":
            self.masks(0x03030303, 0x03030303)
            skip = self.only_wave(7)
            e(f"s_waitcnt vmcnt({e.vm})")
            self.post_a(2, 0, U)
            e(f"{skip}:")
            e(f"s_lshl_b32 s10, s3, 10\nv_add_u32 v{T+7}, s10, v{VL}")
            e.wait(xa)
            self.rws256(4, T, VR, AC0, BLO, BHI, PA, w2)
            self.pt("t2")
            e(f"ds_write_b128 v{T+7}, {vr(AC0,4)} offset:{L_T2}\ns_waitcnt lgkmcnt(0)\ns_barrier")
            XT = VR + 48
            skip = self.only_wave(0)
            for i in range(8): e(f"ds_read_b128 {vr(XT+4*i,4)}, v{VL} offset:{L_T2+1024*i}")
            e(f"""v_mov_b32 v{U+1}, s{TAG+1}
            s_lshl_b32 s10, s2, 11
            s_add_u32 s10, s10, {XQ}
            s_mov_b32 s11, 0xffffff00
            s_waitcnt lgkmcnt(0)""")
            self.tree("v_add_f32", XT, 8, 4)
            for r in range(4): e(f"v_bfi_b32 v{XT+8+2*r}, s11, v{XT+r}, v{U+1}\nv_mov_b32 v{XT+9+2*r}, s{TAG}")
            e(f"buffer_store_dwordx4 {vr(XT+8,4)}, v{VL}, {srd(SRD_WS)}, s10 offen sc1 ; c:XQ")
            e(f"buffer_store_dwordx4 {vr(XT+12,4)}, v{VL}, {srd(SRD_WS)}, s10 offen offset:1024 sc1 ; c:XQ")
            e(f"{skip}:")
            self.pt("xq")
            skip = e.lab("L_skip")
            top, done = e.lab("L_spin"), e.lab("L_ok")
            e(f"""s_lshr_b32 s10, s3, 1
            s_cmp_lg_u32 s10, 2
            s_cbranch_scc1 {skip}
            s_lshl_b32 s10, s13, 13
            s_and_b32 s12, s3, 1
            s_lshl_b32 s11, s12, 10
            s_add_u32 s10, s10, s11
            s_add_u32 s10, s10, {XQ}
            s_add_u32 s11, s10, 4096
            v_mov_b32 v{U+1}, 0xff
            v_lshrrev_b32 v{U+3}, 5, v0
            v_lshlrev_b32 v{U+3}, 8, v{U+3}
            v_and_b32 v{U+4}, 15, v0
            v_lshl_add_u32 v{U+3}, v{U+4}, 4, v{U+3}
            v_bfe_u32 v{U+4}, v0, 4, 1
            v_lshl_add_u32 v{U+3}, v{U+4}, 3, v{U+3}
            s_lshl_b32 s12, s12, 2
            v_add_u32 v{U+3}, s12, v{U+3}""")
            if o["sl_xq0"]: e(f"s_sleep {o['sl_xq0']}")
            e(f"{top}:")
            for i in range(4): e(f"buffer_load_dwordx4 {vr(VR+4*i,4)}, v{VL}, {srd(SRD_WS)}, s{10+(i>>1)} offen offset:{2048*(i&1)} sc1 ; c:LXQ")
            e("s_waitcnt vmcnt(0)")
            self.tag_check(VR, 8, U)
            e(f"v_cmp_ne_u32 vcc, 0, v{U}\ns_cbranch_vccz {done}")
            self.spin_tail(top, done, o["sl_xq"])
            e(f"""v_add_f32 v{VR}, v{VR}, v{VR+4}
            v_add_f32 v{VR+2}, v{VR+2}, v{VR+6}
            v_add_f32 v{VR+8}, v{VR+8}, v{VR+12}
            v_add_f32 v{VR+10}, v{VR+10}, v{VR+14}
            v_add_f32 v{VR}, v{VR}, v{VR+8}
            v_add_f32 v{VR+2}, v{VR+2}, v{VR+10}
            v_cvt_pk_bf16_f32 v{VR}, v{VR}, v{VR+2}
            ds_write_b32 v{U+3}, v{VR} offset:{L_QA}
            {skip}:
            v_bfe_u32 v{U}, v0, 2, 1
            v_lshlrev_b32 v{U}, 8, v{U}
            v_and_b32 v{U+2}, 0xf0, v{VK}
            v_add_u32 v{U+1}, v{U}, v{U+2}
            v_lshrrev_b32 v{U+2}, 4, v0
            v_lshl_add_u32 v{U}, v{U+2}, 3, v{U}
            s_lshl_b32 s11, s3, 5
            v_add_u32 v{U}, s11, v{U}
            s_waitcnt lgkmcnt(0)
            s_barrier
            ds_read_b128 {vr(QF,4)}, v{U+1} offset:{L_QA}
            s_waitcnt lgkmcnt(0)""")
            self.pt("qa")
            e.wait(w3[3])
            for t in range(4): e(f"v_mfma_f32_16x16x32_bf16 {vr(VR+4*t,4)}, {vr(VR+16+4*t,4)}, {vr(QF,4)}, 0")
            self.quad_sum([VR + 4 * t for t in range(4)])
            e(f"""v_cvt_pk_bf16_f32 v{AC0}, v{VR}, v{VR+4}
            v_cvt_pk_bf16_f32 v{AC0+1}, v{VR+8}, v{VR+12}
            s_mov_b32 exec_lo, 0x00110011
            s_mov_b32 exec_hi, 0x00110011
            ds_write_b64 v{U}, {vr(AC0,2)} offset:{L_QA+512}
            s_mov_b64 exec, -1
            s_waitcnt lgkmcnt(0)
            s_barrier""")
            skip = self.only_wave(7)
            e(f"""ds_read_b128 {vr(AC0,4)}, v{VL} offset:{L_QA+512}
            s_lshl_b32 s10, s2, 8
            s_add_u32 s10, s10, {QAP}
            s_waitcnt lgkmcnt(0)""")
            for r in range(4): e(f"v_min_u32 v{AC0+r}, -2, v{AC0+r}")
            e(f"""s_mov_b32 exec_hi, 0
            buffer_store_dwordx4 {vr(AC0,4)}, v{LS}, {srd(SRD_WS)}, s10 offen sc1 ; c:QAP
            s_mov_b64 exec, -1""")
            if o["stw"] in (1, 2):
                self.pt("st7"); e("s_waitcnt vmcnt(0)"); self.pt("ack7")
            e(f"{skip}:")
            if o["stw"] > 1: e("s_barrier")
            self.pt("st")
            issue(o["w1"])
        else:
            self.masks(0x03030303, 0x03030303)
            e(f"s_lshl_b32 s10, s3, 10\nv_add_u32 v{T+7}, s10, v{VL}")
            e.wait(xb)
            self.rws256(8, T, VR, AC1, BLO, BHI, PA, w1)
            e(f"ds_write_b128 v{T+7}, {vr(AC1,4)} offset:{L_T1}")
            wdma(o["wq1"], 16)
            e("s_waitcnt lgkmcnt(0)\ns_barrier")
            self.pt("t1")
            skip = self.only_wave(0)
            for i in range(8): e(f"ds_read_b128 {vr(VR+4*i,4)}, v{VL} offset:{L_T1+1024*i}")
            e(f"""v_lshrrev_b32 v{U}, 5, v0
            v_lshlrev_b32 v{U}, 14, v{U}
            v_and_b32 v{U+1}, 15, v0
            v_lshl_add_u32 v{U}, v{U+1}, 5, v{U}
            v_bfe_u32 v{U+1}, v0, 4, 1
            v_lshl_add_u32 v{U}, v{U+1}, 4, v{U}
            s_lshl_b32 s10, s4, 15
            s_lshl_b32 s11, s13, 9
            s_add_u32 s10, s10, s11
            s_add_u32 s10, s10, {QBP}
            s_sub_u32 s12, s2, 192
            s_lshr_b32 s13, s12, 3
            s_and_b32 s12, s12, 7
            s_waitcnt lgkmcnt(0)""")
            self.tree("v_add_f32", VR, 8, 4)
            e(f"buffer_store_dwordx4 {vr(VR,4)}, v{U}, {srd(SRD_WS)}, s10 offen sc1\ns_waitcnt vmcnt(0)")
            self.post_b(13, 12, U)
            e(f"{skip}:")
        kf, wearly = (o["kf_p"], o["w1"]) if kind == "P" else (o["kf_q"], o["wq0"])
        if kind == "Q":
            wdma(16, o["wq1"])
            self.pt("w")
            for k in range(wearly):
                e(f"s_waitcnt vmcnt({wearly-1})"); issue(k + 1)
            slide(0, kf, wearly)
        else:
            slide(0, kf, wearly)
        e(f"""s_cmp_eq_u32 s3, 0
        s_cselect_b32 s13, 0, 0x40000000
        s_lshl_b32 s12, s{S_G}, 7
        s_add_u32 s12, s12, {FB}
        s_add_u32 s12, s12, s13
        v_lshlrev_b32 v{T+2}, 3, v0
        s_mov_b64 exec, 0xffff""")
        k1 = len(tags)
        fl = e.mem(f"buffer_load_dwordx2 {vr(T,2)}, v{T+2}, {srd(SRD_WS)}, s12 offen sc1 ; c:LFB")
        e("s_mov_b64 exec, -1")
        issue(kf + o["wk"])
        slide(kf, k1, o["wk"])
        e(f"""s_lshl_b32 s10, s{S_B}, 14
        s_lshl_b32 s11, s{S_G}, 11
        s_add_u32 s10, s10, s11
        s_add_u32 s10, s10, {QBP}
        s_add_u32 s10, s10, s13
        s_add_u32 s11, s10, 32768
        v_lshlrev_b32 v{TMP}, 5, v0""")
        e.wait(fl)
        top, done = e.lab("L_spin"), e.lab("L_ok")
        e(f"""s_cmp_lg_u32 s3, 0
        s_cbranch_scc1 {done}
        s_mov_b64 exec, 0xffff
        {top}:
        v_cmp_ne_u64 vcc, s[{TAG}:{TAG+1}], {vr(T,2)}
        s_cbranch_vccz {done}
        buffer_load_dwordx2 {vr(T,2)}, v{T+2}, {srd(SRD_WS)}, s12 offen sc1 ; c:LFB
        s_waitcnt vmcnt(0)""")
        self.spin_tail(top, done, o["sleep"])
        e("s_mov_b64 exec, -1")
        self.pt("qf")
        k2 = len(tags)
        QG = PA
        for k in range(4):
            qg = e.mem(f"buffer_load_dwordx4 {vr(QG+4*k,4)}, v{TMP}, {srd(SRD_WS)}, s{10+(k>>1)} offen offset:{16*(k&1)} sc1 ; c:LQB")
        slide(k1, min(k2, 4 * n), o["wk"])
        e(f"v_bfe_u32 v{T+5}, v0, 2, 2\nv_lshlrev_b32 v{T+5}, 5, v{T+5}")
        e.wait(qg)
        skip = self.only_wave(0)
        for r in range(8): e(f"v_add_f32 v{QG+r}, v{QG+r}, v{QG+8+r}")
        for r in range(4): e(f"v_cvt_pk_bf16_f32 v{QG+r}, v{QG+2*r}, v{QG+2*r+1}")
        e(f"""ds_write_b128 v{VL}, {vr(QG,4)} offset:{L_Q}
        s_waitcnt lgkmcnt(0)
        {skip}:
        s_barrier
        ds_read_b128 {vr(QF,4)}, v{VK} offset:{L_Q}""")
        for z in range(0, 18, 4): e(f"v_mov_b32 v{PA+z}, 0\nv_mov_b32 v{PA+z+1}, 0")
        e("s_waitcnt lgkmcnt(0)")
        self.pt("q")
        SK = lambda k: D0 + 4 * k
        for i in range(n + 1):
            if i < n:
                for j in range(4):
                    k = 4 * i + j
                    e.wait(tags[k])
                    issue(k + 1 + (o["wk"] if k < 4 * n - 4 else o["wt"]))
                    e(f"v_mfma_f32_16x16x32_bf16 {vr(SK(k),4)}, {vr(KR+4*k,4)}, {vr(QF,4)}, 0")
            if i > 0:
                ks = [SK(4 * (i - 1) + j) for j in range(4)]
                self.quad_sum(ks)
                self.max3_chain("f32", MX, ks if i == 1 else [MX] + ks)
        self.pt("k")
        self.swap_red("v_max_f32", MX, TMP, (16, 32))
        e(f"""s_lshl_b32 s10, s3, 2
        v_add_u32 v{T+6}, s10, v{T+5}
        ds_write_b32 v{T+6}, v{MX} offset:{L_MAX}
        s_waitcnt lgkmcnt(0)
        s_barrier
        ds_read_b128 {vr(U,4)}, v{T+5} offset:{L_MAX}
        ds_read_b128 {vr(U+4,4)}, v{T+5} offset:{L_MAX+16}
        s_waitcnt lgkmcnt(0)""")
        self.max3_chain("f32", MX, range(U, U + 8))
        e(f"v_mul_f32 v{MX}, s{S_SC}, v{MX}")
        for k in range(4 * n): e(f"v_fma_f32 v{SK(k)}, v{SK(k)}, s{S_SC}, -v{MX}")
        for k in range(4 * n): e(f"v_exp_f32 v{SK(k)}, v{SK(k)}")
        e(f"v_add_f32 v{LS}, v{SK(0)}, v{SK(1)}")
        for k in range(2, 4 * n): e(f"v_add_f32 v{LS}, v{LS}, v{SK(k)}")
        for k in range(0, 4 * n, 2): e(f"v_cvt_pk_bf16_f32 v{SK(k)}, v{SK(k)}, v{SK(k+1)}")
        self.swap_red("v_add_f32", LS, TMP, (16, 32))
        e(f"ds_write_b32 v{T+6}, v{LS} offset:{L_L}")
        self.pt("p")
        for i in range(n):
            for j in range(4):
                k = 4 * i + j; pk = SK(k & ~1); p = PA + 2 + 4 * j
                sa, sb = (SEL + 2, SEL + 3) if k & 1 else (SEL, SEL + 1)
                e(f"v_perm_b32 v{p}, v{pk}, v{pk}, v{sa}\nv_perm_b32 v{p+1}, v{pk}, v{pk}, v{sb}")
            if i == n - 1:
                e(f"""s_lshl_b32 s10, s3, 11
                v_lshl_add_u32 v{T}, v0, 5, s10
                s_lshl_b32 s10, s3, 8
                v_and_b32 v{T+2}, 31, v0
                v_lshl_add_u32 v{T+1}, v{T+2}, 3, s10
                v_lshlrev_b32 v{T+2}, 2, v0
                s_lshl_b32 s10, s{S_G}, 3
                s_add_u32 s10, s10, s3
                s_lshl_b32 s10, s10, 14
                s_mul_i32 s11, s{S_B}, 12
                s_add_u32 s11, s11, s{S_SP}
                s_lshl_b32 s11, s11, 7
                s_add_u32 s10, s10, s11
                s_add_u32 s10, s10, {MB}""")
            for j in range(4):
                k = 4 * i + j; p = PA + 2 + 4 * j
                e.wait(tags[4 * n + k])
                issue(4 * n + k + 1 + o["wv"])
                e(f"v_mfma_f32_16x16x32_bf16 {vr(AC0,4)}, {vr(p,4)}, {vr(VR+4*k,4)}, {vr(AC0,4) if k else 0}")
                e(f"v_mfma_f32_16x16x32_bf16 {vr(AC1,4)}, {vr(p-2,4)}, {vr(VR+4*k,4)}, {vr(AC1,4) if k else 0}")
            if i == 1:
                e("s_waitcnt lgkmcnt(0)\ns_barrier")
                skip = self.only_wave(0)
                e(f"""v_and_b32 v{T}, 3, v0
                v_lshlrev_b32 v{T}, 5, v{T}
                ds_read_b128 {vr(U,4)}, v{T} offset:{L_L}
                ds_read_b128 {vr(U+4,4)}, v{T} offset:{L_L+16}
                v_lshlrev_b32 v{T+1}, 4, v0
                ds_bpermute_b32 v{T+2}, v{T+1}, v{MX}
                v_mov_b32 v{T+3}, s{TAG+1}
                s_lshl_b32 s10, s{S_B}, 3
                s_add_u32 s10, s10, s{S_G}
                s_mul_i32 s10, s10, 12
                s_add_u32 s10, s10, s{S_SP}
                s_lshl_b32 s10, s10, 6
                s_add_u32 s10, s10, {BS}
                s_mov_b32 s11, 0xffffff00
                s_waitcnt lgkmcnt(0)""")
                self.tree("v_add_f32", U, 8, 1)
                e(f"""v_bfi_b32 v{U+2}, s11, v{U}, v{T+3}
                v_bfi_b32 v{U}, s11, v{T+2}, v{T+3}
                v_mov_b32 v{U+1}, s{TAG}
                v_mov_b32 v{U+3}, s{TAG}
                s_mov_b64 exec, 15
                buffer_store_dwordx4 {vr(U,4)}, v{VL}, {srd(SRD_WS)}, s10 offen sc1 ; c:BST
                s_mov_b64 exec, -1
                {skip}:""")
        self.pt("v")
        e(f"""ds_write_b128 v{T}, {vr(AC0,4)} offset:{L_RED}
        ds_write_b128 v{T}, {vr(AC1,4)} offset:{L_RED+16}
        s_waitcnt lgkmcnt(0)
        s_barrier""")
        for i in range(8): e(f"ds_read_b64 {vr(KR+2*i,2)}, v{T+1} offset:{L_RED+2048*i}")
        for i in range(0, 8, 2):
            e(f"s_waitcnt lgkmcnt({6-i})\nv_add_f32 v{KR+2*i}, v{KR+2*i}, v{KR+2*i+2}\nv_add_f32 v{KR+2*i+1}, v{KR+2*i+1}, v{KR+2*i+3}")
            if i == 2: e(f"v_add_f32 v{KR}, v{KR}, v{KR+4}\nv_add_f32 v{KR+1}, v{KR+1}, v{KR+5}")
            if i == 4: e(f"v_add_f32 v{KR}, v{KR}, v{KR+8}\nv_add_f32 v{KR+1}, v{KR+1}, v{KR+9}")
        e(f"""v_add_f32 v{KR}, v{KR}, v{KR+12}
        v_add_f32 v{KR+1}, v{KR+1}, v{KR+13}
        v_cvt_pk_bf16_f32 v{KR}, v{KR}, v{KR+1}
        v_min_u32 v{KR}, -2, v{KR}
        s_mov_b32 exec_hi, 0
        buffer_store_dword v{KR}, v{T+2}, {srd(SRD_WS)}, s10 offen sc1 ; c:MB1""")
        self.pt("end")
        if kind == "Q": e("s_mov_b64 exec, -1\ns_mov_b32 s4, s68\ns_cmp_lt_u32 s3, 4\ns_cbranch_scc1 L_ATAIL")
        self.stamp_out(100)
        e("s_endpgm")

    X_MAX, X_P, X_L, X_CNT = 0, 2048, 20480, 24576

    def row_addr(self, dst, t):
        self.e(f"""v_and_b32 v{t}, 3, v0
        v_lshlrev_b32 v{t}, 2, v{t}
        v_bfe_u32 v{t+1}, v0, 2, 2
        v_or_b32 v{t}, v{t}, v{t+1}
        v_lshrrev_b32 v{t+1}, 5, v0
        v_xor_b32 v{t}, v{t}, v{t+1}
        v_lshlrev_b32 v{t}, 4, v{t}
        v_and_b32 v{t+1}, 31, v0
        v_lshl_add_u32 v{dst}, v{t+1}, 10, v{t}""")

    def qk(self, S, FR, AQ, TA, creg=None, AC=None):
        e = self.e
        groups = [(qp, i) for qp in range(2) for i in range(8)]
        buf = (lambda g: FR + 8 * (g & 3)) if creg else (lambda g: FR + 16 * (g & 1))
        tg = {}
        e.ds_reset()
        def rd(g):
            qp, i = groups[g]; f = buf(g)
            e(f"v_xor_b32 v{TA}, {i << 5}, v{AQ}")
            if not creg: e(f"v_xor_b32 v{TA+1}, {i << 5}, v{AC}")
            for q in range(2):
                tg[g, q] = e.ds(f"ds_read_b128 {vr(f+4*q,4)}, v{TA} offset:{512*qp+256*q}")
                if not creg: tg[g, q] = e.ds(f"ds_read_b128 {vr(f+8+4*q,4)}, v{TA+1} offset:{512*qp+256*q}")
        ahead = 3 if creg else 1
        for g in range(ahead): rd(g)
        for g in range(16):
            if g + ahead < 16: rd(g + ahead)
            qp, i = groups[g]; f = buf(g)
            for q in range(2):
                e.dswait(tg[g, q])
                c = creg(i + 8 * (2 * qp + q)) if creg else f + 8 + 4 * q
                e(f"v_mfma_f32_32x32x16_bf16 {vr(S,16)}, {vr(c,4)}, {vr(f+4*q,4)}, {vr(S,16) if g or q else 0}")
            if g == 8: e("s_barrier")

    def softmax(self, S, P, M, T, tile):
        e = self.e
        e(f"""v_and_b32 v{T+2}, 15, v0
        v_lshlrev_b32 v{T+2}, 5, v{T+2}
        v_bfe_u32 v{T+3}, v0, 4, 1
        v_lshl_add_u32 v{T+2}, v{T+3}, 10, v{T+2}
        v_add_u32 v{T+2}, {X}, v{T+2}
        s_lshl_b32 s10, s3, 2
        v_add_u32 v{T+3}, s10, v{T+2}""")
        self.max3_chain("f32", T, range(S, S + 16))
        self.swap_red("v_max_f32", T, T + 1, (32,))
        e(f"""ds_write_b32 v{T+3}, v{T} offset:{self.X_MAX}
        s_waitcnt lgkmcnt(0)
        s_barrier
        ds_read_b128 {vr(P,4)}, v{T+2} offset:{self.X_MAX}
        ds_read_b128 {vr(P+4,4)}, v{T+2} offset:{self.X_MAX+16}
        v_mov_b32 v{T}, {X+self.X_CNT}
        v_mov_b32 v{T+1}, 0
        ds_write2_b32 v{T}, v{T+1}, v{T+1} offset0:0 offset1:16
        ds_write_b32 v{T}, v{T+1} offset:128
        s_lshl_b32 s10, s{tile}, 11
        s_add_u32 s10, s10, {X+self.X_P}
        v_lshl_add_u32 v{T+1}, v0, 4, s10
        s_waitcnt lgkmcnt(0)""")
        self.max3_chain("f32", M, range(P, P + 8))
        e(f"v_mul_f32 v{M}, s{S_SC}, v{M}")
        for r in range(16): e(f"v_fma_f32 v{S+r}, v{S+r}, s{S_SC}, -v{M}")
        for r in range(16): e(f"v_exp_f32 v{S+r}, v{S+r}")
        for r in range(8): e(f"v_cvt_pk_bf16_f32 v{P+r}, v{S+2*r}, v{S+2*r+1}")
        e(f"ds_write_b128 v{T+1}, {vr(P,4)}\nds_write_b128 v{T+1}, {vr(P+4,4)} offset:1024")
        self.tree("v_add_f32", S, 16, 1)
        self.swap_red("v_add_f32", S, T, (32,))
        e(f"ds_write_b32 v{T+3}, v{S} offset:{self.X_L}\ns_waitcnt lgkmcnt(0)\ns_barrier")

    VL, VW, TMP, SEL, BLO, BHI, T, U, W, G, WUV, AC0, AC1, PA, XR = 1, 2, 3, 4, 8, 9, 10, 16, 32, 96, 160, 224, 228, 232, 244
    A_CW, A_CR, A_MB = 13, 14, 15
    S_LW, S_PART, S_PRIV, S_MBJ = 5, 6, 7, 8

    def vw_addr(self):
        VW, T = self.VW, self.T
        self.e(f"""v_lshrrev_b32 v{VW}, 4, v0
        v_lshlrev_b32 v{VW}, 14, v{VW}
        v_and_b32 v{T+1}, 15, v0
        v_lshl_add_u32 v{VW}, v{T+1}, 4, v{VW}""")

    def tail_setup(self):
        VL, T, A_CW, A_CR, A_MB = self.VL, self.T, self.A_CW, self.A_CR, self.A_MB
        self.e(f"""v_lshlrev_b32 v{VL}, 4, v0
        s_lshl_b32 s{self.S_PRIV}, s3, 11
        s_lshl_b32 s{self.S_MBJ}, s4, 14
        s_add_u32 s{self.S_MBJ}, s{self.S_MBJ}, {MB}
        v_lshl_add_u32 v{A_CW}, v0, 2, s{self.S_PRIV}
        v_bfe_u32 v{A_CR}, v0, 3, 1
        v_lshlrev_b32 v{A_CR}, 7, v{A_CR}
        v_lshrrev_b32 v{T+1}, 4, v0
        v_lshl_add_u32 v{A_CR}, v{T+1}, 5, v{A_CR}
        v_add_u32 v{A_CR}, s{self.S_PRIV}, v{A_CR}
        v_lshrrev_b32 v{A_MB}, 5, v0
        v_lshlrev_b32 v{A_MB}, 17, v{A_MB}
        v_bfe_u32 v{T+1}, v0, 3, 1
        v_lshl_add_u32 v{A_MB}, v{T+1}, 14, v{A_MB}
        v_and_b32 v{T+1}, 7, v0
        v_lshl_add_u32 v{A_MB}, v{T+1}, 4, v{A_MB}""")
        self.selectors(self.SEL, self.BLO, self.BHI, self.TMP)

    def wload(self, s, t0=0, t1=16):
        e = self.e
        if "now" in self.x or t0 >= t1: return
        e(f"s_lshl_b32 s10, s4, 16\ns_lshl_b32 s11, s{self.S_LW}, 8\ns_add_u32 s10, s10, s11")
        if t0: e(f"s_add_u32 s10, s10, {1024 * t0}")
        for t in range(t0, t1):
            e.mem(f"buffer_load_dwordx4 {vr(self.W+4*t,4)}, v{self.VW}, {srd(s)}, s10 offen offset:{1024*(t&3)} nt")
            if t & 3 == 3: e("s_add_u32 s10, s10, 4096")

    def a_compute(self):
        e = self.e; e.vm = 0
        AC, AT, AQ, M, TA, T = 1, 2, 3, 4, 6, 8
        FR, S, O, PV = 16, 48, 64, 128
        e("L_AC:")
        self.role = "AC"
        self.pt("start")
        e(f"v_lshlrev_b32 v{T}, 4, v0\ns_waitcnt lgkmcnt(0)")
        self.epoch_load()
        self.mk_srd(SRD_WS, P_WS, WS_USED); self.mk_srd(SRD_D, P_BWO, 4 << 20); self.mk_srd(SRD_E, P_OUT, 4096)
        for r in range(4): e(f"v_mov_b32 v{FR+r}, -1")
        skip = e.lab("L_skip"); two = e.lab("L_two")
        e(f"""s_lshl_b32 s10, s4, 14
        s_lshl_b32 s11, s3, 12
        s_add_u32 s10, s10, s11
        s_add_u32 s10, s10, {MB}
        s_cmp_eq_u32 s3, 0
        s_cbranch_scc1 {two}
        s_cmp_eq_u32 s3, 3
        s_cbranch_scc1 {skip}
        s_cmp_ge_u32 s4, 32
        s_cbranch_scc1 {skip}
        buffer_store_dwordx4 {vr(FR,4)}, v{T}, {srd(SRD_WS)}, s10 offen offset:3072 sc1 ; c:CLR
        {two}:""")
        for i in range(3): e(f"buffer_store_dwordx4 {vr(FR,4)}, v{T}, {srd(SRD_WS)}, s10 offen offset:{1024*i} sc1 ; c:CLR")
        e(f"{skip}:")
        e(f"s_mov_b32 s{S_SC}, {f2u(SCALE):#x}\ns_mov_b32 s{S_SPIN}, {SPIN}")
        self.row_addr(AC, T + 1)
        e(f"""v_add_u32 v{AQ}, {X}, v{AC}
        s_lshl_b32 s10, s3, 15
        v_add_u32 v{AC}, s10, v{AC}
        v_lshrrev_b32 v{T+2}, 5, v0
        v_bfe_u32 v{T+1}, v0, 2, 2
        v_lshl_add_u32 v{T+3}, v{T+2}, 2, v{T+1}
        v_lshlrev_b32 v{AT}, 10, v{T+3}
        v_bfe_u32 v{T+3}, v0, 4, 1
        v_lshlrev_b32 v{T+3}, 1, v{T+3}
        v_bfe_u32 v{T+4}, v0, 1, 1
        v_or_b32 v{T+3}, v{T+3}, v{T+4}
        v_xor_b32 v{T+3}, v{T+3}, v{T+2}
        v_lshl_add_u32 v{T+3}, v{T+1}, 2, v{T+3}
        v_lshl_add_u32 v{AT}, v{T+3}, 4, v{AT}
        v_and_b32 v{T+3}, 1, v0
        v_lshl_add_u32 v{AT}, v{T+3}, 3, v{AT}
        s_lshl_b32 s10, s3, 8
        v_add_u32 v{AT}, s10, v{AT}""")
        self.epoch_tag()
        def tr_addr():
            for k in range(8):
                e(f"v_xor_b32 v{S+k}, {(2*k) << 4}, v{AT}")
                if k & 1: e(f"v_add_u32 v{S+k}, 8192, v{S+k}")
        def tr_step():
            for k in range(8): e(f"v_add_u32 v{S+k}, 65536, v{S+k}")
        def tr_ct(u, ct):
            for hh in range(2):
                last = e.ds(f"ds_read_b64_tr_b16 {vr(PV+16*(u&7)+4*ct+2*hh,2)}, v{S+2*ct+hh} offset:{32768*((u>>1)&1)+16384*(u&1)}")
            return last
        tr_addr()
        e(f"""s_and_b32 s9, s4, 7
        s_lshl_b32 s9, s9, 11
        s_add_u32 s9, s9, {FA}
        v_lshlrev_b32 v{FR+10}, 3, v0""")
        def qc_load():
            for i in range(3): e(f"buffer_load_dwordx2 {vr(FR+4+2*i,2)}, v{FR+10}, {srd(SRD_WS)}, s9 offen offset:{512*i} sc1 ; c:LQC")
        for t in range(4):
            if t == 1: e("s_waitcnt vmcnt(0)")
            e("s_barrier")
            self.pt(f"t{t}")
            if t == 3: qc_load()
            if t == 2: tr_step()
            if t == 1:
                skip = self.only_wave(0)
                e("s_lshr_b32 s12, s4, 3\ns_and_b32 s13, s4, 7\ns_add_u32 s13, s13, 8")
                self.post_b(12, 13, FR)
                self.post_a(4, 1024, FR + 12)
                e(f"{skip}:")
            e.ds_reset()
            for u in (2 * t, 2 * t + 1):
                for ct in range(4): tr_ct(u, ct)
            e("s_waitcnt lgkmcnt(0)")
        e("s_barrier\ns_barrier")
        self.pt("half")
        top, done = e.lab("L_spin"), e.lab("L_ok")
        e(f"""{top}:
        s_waitcnt vmcnt(0)
        v_cmp_ne_u64 vcc, s[{TAG}:{TAG+1}], {vr(FR+4,2)}
        v_cmp_ne_u64 s[12:13], s[{TAG}:{TAG+1}], {vr(FR+6,2)}
        s_or_b64 vcc, vcc, s[12:13]
        v_cmp_ne_u64 s[12:13], s[{TAG}:{TAG+1}], {vr(FR+8,2)}
        s_or_b64 vcc, vcc, s[12:13]
        s_cbranch_vccz {done}""")
        qc_load()
        self.spin_tail(top, done)
        self.pt("qc")
        e(f"""s_lshr_b32 s10, s4, 5
        s_lshl_b32 s10, s10, 15
        s_lshl_b32 s11, s3, 13
        s_add_u32 s10, s10, s11
        s_add_u32 s10, s10, {QAP}
        s_add_u32 s11, s10, 4096
        s_lshl_b32 s12, s3, 13
        s_add_u32 s12, s12, {X}
        s_and_b32 s13, s3, 1
        s_lshl_b32 s13, s13, 5
        v_xor_b32 v{T+1}, s13, v{T}
        v_add_u32 v{T+1}, s12, v{T+1}""")
        top, done = e.lab("L_spin"), e.lab("L_ok")
        e(f"{top}:")
        self.pt("qr")
        for i in range(8): e(f"buffer_load_dwordx4 {vr(O+4*i,4)}, v{T}, {srd(SRD_WS)}, s{10+(i>>2)} offen offset:{1024*(i&3)} sc1 ; c:LQA")
        e("s_waitcnt vmcnt(0)")
        self.max3_chain("u32", T + 2, range(O, O + 16)); self.max3_chain("u32", T + 3, range(O + 16, O + 32))
        e(f"v_max_u32 v{T+2}, v{T+2}, v{T+3}\nv_cmp_eq_u32 vcc, -1, v{T+2}\ns_cbranch_vccz {done}")
        self.spin_tail(top, done, self.o["sl_qa"])
        self.pt("qd")
        for i in range(8):
            sw = ((i & 3) << 2) | (i >> 2)
            e(f"v_xor_b32 v{TA+(i&1)}, {sw << 4}, v{T+1}\nds_write_b128 v{TA+(i&1)}, {vr(O+4*i,4)} offset:{1024*i}")
        e("s_add_u32 s9, s3, 4\ns_waitcnt lgkmcnt(0)\ns_barrier")
        self.pt("b1")
        self.qk(S, FR, AQ, TA, AC=AC)
        self.pt("qk")
        self.softmax(S, FR, M, T + 1, 9)
        self.pt("bp")
        e(f"v_add_u32 v{T}, {X+self.X_P}, v{T}")
        e.ds_reset()
        pt_, tt_ = {}, {}
        def pread(u): pt_[u] = e.ds(f"ds_read_b128 {vr(FR+4*(u&7),4)}, v{T} offset:{1024*u}")
        for u in range(8): pread(u)
        tr_addr()
        for u in range(16):
            e.dswait(max(pt_[u], tt_.get(u, 0)))
            if u == 4: tr_step()
            for ct in range(4):
                e(f"v_mfma_f32_32x32x16_bf16 {vr(O+16*ct,16)}, {vr(FR+4*(u&7),4)}, {vr(PV+16*(u&7)+4*ct,4)}, {vr(O+16*ct,16) if u else 0}")
                if u < 8: tt_[u + 8] = tr_ct(u + 8, ct)
            if u < 8: pread(u + 8)
        self.pt("pv")
        e(f"""v_lshrrev_b32 v{T}, 5, v0
        v_lshlrev_b32 v{T}, 18, v{T}
        v_bfe_u32 v{T+1}, v0, 4, 1
        v_lshl_add_u32 v{T}, v{T+1}, 16, v{T}
        v_and_b32 v{T+1}, 15, v0
        v_lshl_add_u32 v{T}, v{T+1}, 4, v{T}
        s_lshl_b32 s10, s4, 10
        s_lshl_b32 s11, s3, 8
        s_add_u32 s10, s10, s11
        s_add_u32 s10, s10, {AP}""")
        for r in range(16):
            d = FR + 2 * r
            e(f"v_cvt_pk_bf16_f32 v{d}, v{O+r}, v{O+16+r}\nv_cvt_pk_bf16_f32 v{d+1}, v{O+32+r}, v{O+48+r}")
            if r >= 3 and r & 1:
                k = FR + 2 * (r - 3)
                e(f"v_permlane16_swap_b32 v{k}, v{k+2}\nv_permlane16_swap_b32 v{k+1}, v{k+3}")
                e(f"buffer_store_dwordx4 {vr(k,4)}, v{T}, {srd(SRD_WS)}, s10 offen sc1 ; c:AP")
                e(f"s_add_u32 s10, s10, {65536 * (6 if (r - 3) & 2 else 2)}")
        k = FR + 28
        e(f"v_permlane16_swap_b32 v{k}, v{k+2}\nv_permlane16_swap_b32 v{k+1}, v{k+3}")
        e(f"buffer_store_dwordx4 {vr(k,4)}, v{T}, {srd(SRD_WS)}, s10 offen sc1 ; c:AP")
        skip = self.only_wave(0)
        e(f"""ds_read_b128 {vr(S,4)}, v{T+3} offset:{self.X_L}
        ds_read_b128 {vr(S+4,4)}, v{T+3} offset:{self.X_L+16}
        v_lshlrev_b32 v{T+1}, 3, v0
        s_lshl_b32 s10, s4, 8
        s_add_u32 s10, s10, {AST}
        s_waitcnt lgkmcnt(0)""")
        self.tree("v_add_f32", S, 8, 1)
        e(f"""v_mov_b32 v{S+1}, v{S}
        v_mov_b32 v{S}, v{M}
        s_mov_b32 exec_hi, 0
        buffer_store_dwordx2 {vr(S,2)}, v{T+1}, {srd(SRD_WS)}, s10 offen sc1
        s_mov_b64 exec, -1
        {skip}:
        s_mov_b32 s5, s3
        s_mov_b32 s6, 1""")
        skip = e.lab("L_skip")
        e(f"""v_mov_b32 v100, {X+self.X_CNT+64}
        v_mov_b32 v101, 1
        s_mov_b64 exec, 1
        s_waitcnt vmcnt(0)
        ds_add_rtn_u32 v102, v100, v101
        s_waitcnt lgkmcnt(0)
        v_cmp_eq_u32 vcc, 3, v102
        s_mov_b64 exec, -1
        s_cbranch_vccz {skip}""")
        self.post_a(4, 1536, 96)
        e(f"{skip}:")
        self.pt("b9")
        self.vw_addr()
        self.tail_setup()
        self.masks(0x03030303, 0x03030303)
        self.wload(SRD_D)
        self.lds_wait(X + self.X_CNT + 64, 100)
        e(f"s_mov_b32 s{S_SPIN}, {SPIN}")
        self.b_pre()

    def b_pre(self):
        e = self.e
        T, U, G, A_CW, S_PRIV, S_MBJ = self.T, self.U, self.G, self.A_CW, self.S_PRIV, self.S_MBJ
        e(f"""v_bfe_u32 v{T}, v0, 4, 1
        v_mul_u32_u24 v{T}, 6144, v{T}
        v_and_b32 v{T+1}, 15, v0
        v_lshl_add_u32 v{T}, v{T+1}, 6, v{T}
        s_lshr_b32 s10, s4, 3
        s_mul_i32 s10, s10, 768
        s_bfe_u32 s11, s4, 0x20001
        s_lshl_b32 s11, s11, 4
        s_add_u32 s10, s10, s11
        s_add_u32 s10, s10, {BS}
        s_mov_b32 s12, 0x0fff0fff
        s_mov_b32 s13, 0
        v_mov_b32 v{U+5}, 0xff
        s_mov_b64 exec, s[12:13]""")
        top, done = e.lab("L_spin"), e.lab("L_ok")
        e(f"""{top}:
        buffer_load_dwordx4 {vr(U,4)}, v{T}, {srd(SRD_WS)}, s10 offen sc1
        s_waitcnt vmcnt(0)""")
        self.tag_check(U, 2, U + 4)
        e(f"v_cmp_ne_u32 vcc, 0, v{U+4}\ns_cbranch_vccz {done}")
        self.spin_tail(top, done, self.o["sl_bs"])
        e(f"s_mov_b64 exec, -1\nv_mov_b32 v{U+1}, v{U+2}")
        self.pt("bstat")
        e(f"""v_mov_b32 v{U+2}, 0xff800000
        v_cndmask_b32 v{U}, v{U+2}, v{U}, s[12:13]
        v_cndmask_b32 v{U+1}, 0, v{U+1}, s[12:13]
        v_mov_b32 v{U+2}, v{U}""")
        self.row_red("v_max_f32", U + 2, (1, 2, 4, 8))
        e(f"v_sub_f32 v{U}, v{U}, v{U+2}\nv_exp_f32 v{U}, v{U}\nv_mul_f32 v{U+1}, v{U}, v{U+1}")
        self.row_red("v_add_f32", U + 1, (1, 2, 4, 8))
        WG = 160
        e(f"""v_rcp_f32 v{U+1}, v{U+1}
        v_mul_f32 v{U}, v{U}, v{U+1}
        ds_write_b32 v{A_CW}, v{U} offset:1536
        v_lshrrev_b32 v{T}, 5, v0
        v_lshl_add_u32 v{T+1}, v{T}, 6, s{S_PRIV}
        v_mul_u32_u24 v{T}, 1536, v{T}
        v_and_b32 v{T+2}, 31, v0
        v_lshl_add_u32 v{T}, v{T+2}, 2, v{T}
        s_mov_b32 s12, 0xffff0000
        s_waitcnt lgkmcnt(0)""")
        for q in range(3): e(f"ds_read_b128 {vr(WG+4*q,4)}, v{T+1} offset:{1536+16*q}")
        top, done = e.lab("L_spin"), e.lab("L_ok")
        e(f"{top}:")
        for sp in range(12): e(f"buffer_load_dword v{G+sp}, v{T}, {srd(SRD_WS)}, s{S_MBJ} offen offset:{128*sp} sc1")
        e("s_waitcnt vmcnt(0) lgkmcnt(0)")
        self.max3_chain("u32", T + 1, range(G, G + 12))
        e(f"v_cmp_eq_u32 vcc, -1, v{T+1}\ns_cbranch_vccz {done}")
        self.spin_tail(top, done)
        self.pt("bo")
        for sp in range(12): e(f"v_lshlrev_b32 v{G+12+sp}, 16, v{G+sp}\nv_and_b32 v{G+sp}, s12, v{G+sp}")
        e(f"v_mul_f32 v{U}, v{G+12}, v{WG}\nv_mul_f32 v{U+1}, v{G}, v{WG}\nv_mul_f32 v{U+2}, v{G+13}, v{WG+1}\nv_mul_f32 v{U+3}, v{G+1}, v{WG+1}")
        for sp in range(2, 12):
            k = 2 * (sp & 1)
            e(f"v_fmac_f32 v{U+k}, v{G+12+sp}, v{WG+sp}\nv_fmac_f32 v{U+k+1}, v{G+sp}, v{WG+sp}")
        e(f"v_add_f32 v{U}, v{U}, v{U+2}\nv_add_f32 v{U+1}, v{U+1}, v{U+3}\ns_branch L_CORE")

    def a_loader(self):
        e = self.e; e.vm = 0
        VL, VW, TMP, SEL, BLO, BHI, T, U, W, G, WUV, AC0, AC1, PA, XR = (self.VL, self.VW, self.TMP, self.SEL, self.BLO,
            self.BHI, self.T, self.U, self.W, self.G, self.WUV, self.AC0, self.AC1, self.PA, self.XR)
        S_LW, S_PART, S_PRIV, S_MBJ = self.S_LW, self.S_PART, self.S_PRIV, self.S_MBJ
        XO, S, FR, AQ, AC, TA, M = 232, 16, 224, 4, 5, 6, 8
        CNT = X + self.X_CNT
        creg = lambda ks: (W + 4 * ks) if ks < 16 else (WUV + 4 * (ks - 16))
        e("L_AL:")
        self.role = "AL"
        self.pt("start")
        e(f"""s_sub_u32 s{S_LW}, s3, 4
        s_and_b32 s10, s3, 1
        s_lshl_b32 s10, s10, 5
        v_lshlrev_b32 v{VL}, 4, v0
        v_xor_b32 v{T}, s10, v{VL}""")
        for i in range(8): e(f"v_xor_b32 v{XO+i}, {(((i & 3) << 2) | (i >> 2)) << 4}, v{T}")
        e(f"""s_lshl_b32 s66, s4, 18
        s_lshl_b32 s67, s{S_LW}, 13
        s_add_u32 s66, s66, s67
        s_waitcnt lgkmcnt(0)""")
        self.mk_srd(SRD_A, P_CKV, 16 << 20)
        dma = []
        def dma_tile(t):
            for r in range(8):
                if r & 3 == 0: e("s_mov_b32 m0, s67")
                last = e.mem(f"buffer_load_dwordx4 v{XO+r}, {srd(SRD_A)}, s66 offen offset:{1024*(r&3)} nt lds")
                if r == 3: e("s_add_u32 s66, s66, 4096\ns_add_u32 s67, s67, 4096")
                if r == 7: e(f"s_add_u32 s66, s66, 28672\ns_add_u32 s67, s67, {28672 if t != 3 else (28672 - 131072) & 0xffffffff:#x}")
            dma.append(last)
        a0 = self.o["a0"]
        for t in range(a0): dma_tile(t)
        if self.stamps: self.mk_srd(SRD_WS, P_WS, WS_USED)
        self.row_addr(AC, T)
        e(f"""v_add_u32 v{AQ}, {X}, v{AC}
        s_lshl_b32 s10, s{S_LW}, 15
        v_add_u32 v{AC}, s10, v{AC}
        s_mov_b32 s{S_SC}, {f2u(SCALE):#x}""")
        for t in range(5):
            if t < 4: e.wait(dma[t])
            e("s_barrier")
            self.pt(f"bar{t}")
            while len(dma) < min(8, a0 + t + 1, 4 + t) or (t == 4 and len(dma) < 8): dma_tile(len(dma))
            self.pt(f"iss{t}")
            if t < 4:
                skip = self.only_wave(4 + t)
                for i in range(8):
                    e(f"v_xor_b32 v{TA+(i&1)}, {i << 5}, v{AC}")
                    for q in range(4): e(f"ds_read_b128 {vr(creg(i+8*q),4)}, v{TA+(i&1)} offset:{256*q}")
                    if i & 1: e("s_waitcnt lgkmcnt(4)")
                e(f"s_waitcnt lgkmcnt(0)\n{skip}:")
        if self.stamps:
            for t in (4, 5, 6): e.wait(dma[t]); self.pt(f"d{t}")
        e("s_barrier\ns_waitcnt vmcnt(0)")
        self.pt("dma")
        e("s_barrier")
        self.qk(S, FR, AQ, TA, creg=creg)
        self.softmax(S, FR, M, T, S_LW)
        self.pt("end")
        self.stamp_out(32)
        e("s_endpgm")

    def a_tail(self):
        e = self.e; e.vm = 0
        VL, VW, TMP, SEL, BLO, BHI, T, U, W, G, AC0, AC1, PA, XR = (self.VL, self.VW, self.TMP, self.SEL, self.BLO,
            self.BHI, self.T, self.U, self.W, self.G, self.AC0, self.AC1, self.PA, self.XR)
        S_LW, S_PART, S_PRIV, S_MBJ = self.S_LW, self.S_PART, self.S_PRIV, self.S_MBJ
        UV, GA, L_W = 96, 160, 32768
        e("L_ATAIL:")
        self.role = "Q"
        e(f"s_mov_b32 s{S_LW}, s3\ns_mov_b32 s{S_PART}, 0\ns_mov_b32 s{S_SPIN}, {SPIN}")
        self.vw_addr()
        self.tail_setup()
        e(f"""s_lshl_b32 s10, s3, 14
        s_add_u32 s10, s10, {L_W}
        v_add_u32 v{T}, s10, v{VL}
        v_add_u32 v{T+1}, 65536, v{T}""")
        e.ds_reset()
        for t in range(16): e.ds(f"ds_read_b128 {vr(UV+4*t,4)}, v{T} offset:{1024*t}")
        for t in range(16): e.ds(f"ds_read_b128 {vr(W+4*t,4)}, v{T+1} offset:{1024*t}")
        e("s_waitcnt lgkmcnt(0)\ns_barrier")
        self.pt('free')
        self.poll_a(1536, U)
        self.pt("apf")
        e.vm = 0
        e(f"""s_lshr_b32 s12, s4, 1
        s_lshl_b32 s10, s12, 3
        s_add_u32 s10, s10, {AST}
        v_lshlrev_b32 v{T}, 8, v0""")
        st = e.mem(f"buffer_load_dwordx2 {vr(U,2)}, v{T}, {srd(SRD_WS)}, s10 offen sc1")
        e(f"""s_lshl_b32 s10, s12, 16
        s_lshl_b32 s11, s{S_LW}, 8
        s_add_u32 s10, s10, s11
        s_add_u32 s10, s10, {AP}""")
        g = []
        for t in range(16):
            g.append(e.mem(f"buffer_load_dwordx4 {vr(GA+4*t,4)}, v{VW}, {srd(SRD_WS)}, s10 offen offset:{1024*(t&3)} sc1 ; c:LAP"))
            if t & 3 == 3: e("s_add_u32 s10, s10, 4096")
        self.masks(0x00030003, 0x03000300)
        e(f"""v_lshl_add_u32 v{T}, v0, 1, s{S_PRIV}
        v_lshrrev_b32 v{T+1}, 4, v0
        v_lshl_add_u32 v{T+1}, v{T+1}, 5, s{S_PRIV}""")
        e.wait(st)
        e(f"v_mov_b32 v{U+2}, v{U}")
        self.row_red("v_max_f32", U + 2, (1, 2, 4, 8)); self.swap_red("v_max_f32", U + 2, TMP, (16,))
        e(f"v_sub_f32 v{U}, v{U}, v{U+2}\nv_exp_f32 v{U}, v{U}\nv_mul_f32 v{U+1}, v{U}, v{U+1}")
        self.row_red("v_add_f32", U + 1, (1, 2, 4, 8)); self.swap_red("v_add_f32", U + 1, TMP, (16,))
        e(f"""v_rcp_f32 v{U+1}, v{U+1}
        v_mul_f32 v{U}, v{U}, v{U+1}
        v_cvt_pk_bf16_f32 v{U}, v{U}, v{U}
        ds_write_b16 v{T}, v{U}
        s_waitcnt lgkmcnt(0)
        ds_read_b128 {vr(XR,4)}, v{T+1}
        ds_read_b128 {vr(XR+4,4)}, v{T+1} offset:16
        v_lshrrev_b32 v{T}, 5, v0
        v_lshlrev_b32 v{T}, 8, v{T}
        v_and_b32 v{T+1}, 15, v0
        v_lshl_add_u32 v{T}, v{T+1}, 1, v{T}
        v_bfe_u32 v{T+1}, v0, 4, 1
        v_lshl_add_u32 v{T}, v{T+1}, 5, v{T}
        v_add_u32 v{T}, s{S_PRIV}, v{T}
        v_bfe_u32 v{T+1}, v0, 3, 1
        v_lshlrev_b32 v{T+1}, 8, v{T+1}
        v_lshrrev_b32 v{T+2}, 4, v0
        v_lshl_add_u32 v{T+1}, v{T+2}, 6, v{T+1}
        v_bfe_u32 v{T+2}, v0, 2, 1
        v_lshl_add_u32 v{T+1}, v{T+2}, 5, v{T+1}
        v_add_u32 v{T+1}, s{S_PRIV}, v{T+1}
        s_waitcnt lgkmcnt(0)""")
        self.rws256(16, XR, GA, AC0, BLO, BHI, PA, g)
        self.pt("lat")
        e(f"""v_cvt_pk_bf16_f32 v{U}, v{AC0}, v{AC0+1}
        v_cvt_pk_bf16_f32 v{U+1}, v{AC0+2}, v{AC0+3}
        ds_write_b16 v{T}, v{U} offset:256
        ds_write_b16_d16_hi v{T}, v{U} offset:320
        ds_write_b16 v{T}, v{U+1} offset:384
        ds_write_b16_d16_hi v{T}, v{U+1} offset:448
        s_waitcnt lgkmcnt(0)
        ds_read_b128 {vr(XR,4)}, v{T+1} offset:256
        ds_read_b128 {vr(XR+4,4)}, v{T+1} offset:272""")
        for z in (0, 1, 4, 5, 8, 9): e(f"v_mov_b32 v{PA+z}, 0")
        e(f"""v_bfe_u32 v{T}, v0, 3, 1
        v_lshlrev_b32 v{T}, 9, v{T}
        v_lshrrev_b32 v{T+1}, 5, v0
        v_lshl_add_u32 v{T}, v{T+1}, 8, v{T}
        v_and_b32 v{T+1}, 7, v0
        v_lshl_add_u32 v{T}, v{T+1}, 5, v{T}
        s_lshl_b32 s10, s{S_LW}, 10
        v_add_u32 v{T}, s10, v{T}
        s_waitcnt lgkmcnt(0)""")
        self.rws128(16, XR, UV, AC0, AC1, SEL, PA)
        RED = 16384
        e(f"""s_mov_b32 exec_lo, 0xff0000ff
        s_mov_b32 exec_hi, 0xff0000ff
        ds_write_b128 v{T}, {vr(AC0,4)} offset:{RED}
        ds_write_b128 v{T}, {vr(AC1,4)} offset:{RED+16}
        s_mov_b64 exec, -1
        v_lshlrev_b32 v{T}, 3, v0""")
        self.masks(0x03030303, 0x03030303)
        e("s_waitcnt lgkmcnt(0)\ns_barrier")
        for i in range(8): e(f"ds_read_b64 {vr(U+2*i,2)}, v{T} offset:{RED+512*i}")
        e("s_waitcnt lgkmcnt(0)")
        self.tree("v_add_f32", U, 8, 2)
        self.pt("ctx")
        A_CW, A_CR, A_MB = self.A_CW, self.A_CR, self.A_MB
        e(f"""L_CORE:
        v_cvt_pk_bf16_f32 v{U}, v{U}, v{U+1}
        ds_write_b32 v{A_CW}, v{U} offset:1024
        s_lshl_b32 s10, s{S_LW}, 15
        s_lshl_b32 s11, s4, 7
        s_add_u32 s10, s10, s11
        s_lshl_b32 s11, s{S_PART}, 18
        s_add_u32 s10, s10, s11
        s_add_u32 s10, s10, {MB+MB_2}
        s_waitcnt lgkmcnt(0)
        ds_read_b128 {vr(XR,4)}, v{A_CR} offset:1024
        ds_read_b128 {vr(XR+4,4)}, v{A_CR} offset:1040
        s_waitcnt lgkmcnt(0)""")
        self.rws256(16, XR, W, AC0, BLO, BHI, PA)
        e(f"""v_cvt_pk_bf16_f32 v{AC1}, v{AC0}, v{AC0+1}
        v_cvt_pk_bf16_f32 v{AC1+1}, v{AC0+2}, v{AC0+3}
        v_min_u32 v{AC1}, -2, v{AC1}
        v_min_u32 v{AC1+1}, -2, v{AC1+1}
        v_mov_b32 v{AC1+2}, v{AC1}
        v_mov_b32 v{AC1+3}, v{AC1+1}
        v_permlane16_swap_b32 v{AC1}, v{AC1+2}
        v_permlane16_swap_b32 v{AC1+1}, v{AC1+3}
        s_mov_b32 exec_lo, 0xffff
        s_mov_b32 exec_hi, 0xffff
        buffer_store_dwordx4 {vr(AC1,4)}, v{A_MB}, {srd(SRD_WS)}, s10 offen sc1
        s_mov_b64 exec, -1""")
        self.pt("core")
        e(f"""s_lshr_b32 s10, s4, 4
        s_cmp_lg_u32 s10, s{S_PART}
        s_cbranch_scc1 L_FINDONE
        s_cmp_lg_u32 s{S_LW}, 0
        s_cbranch_scc1 L_FINDONE
        s_add_u32 s10, s{S_MBJ}, {MB_2}
        s_add_u32 s11, s10, 4096
        v_mov_b32 v{T}, 0x3f803f80
        v_perm_b32 v{PA+2}, v{T}, v{T}, v{SEL}
        v_perm_b32 v{PA+3}, v{T}, v{T}, v{SEL+1}""")
        for z in (0, 1, 4, 5): e(f"v_mov_b32 v{PA+z}, 0")
        top, done = e.lab("L_spin"), e.lab("L_ok")
        e(f"{top}:")
        for i in range(8): e(f"buffer_load_dwordx4 {vr(G+4*i,4)}, v{VL}, {srd(SRD_WS)}, s{10+(i>>2)} offen offset:{1024*(i&3)} sc1")
        for i in range(8):
            e(f"s_waitcnt vmcnt({7-i})")
            e(f"v_mfma_f32_16x16x32_bf16 {vr(AC0,4)}, {vr(PA+2,4)}, {vr(G+4*i,4)}, {vr(AC0,4) if i else 0}")
            e(f"v_mfma_f32_16x16x32_bf16 {vr(AC1,4)}, {vr(PA,4)}, {vr(G+4*i,4)}, {vr(AC1,4) if i else 0}")
            if i == 0: e(f"v_max3_u32 v{T}, v{G}, v{G+1}, v{G+2}\nv_max_u32 v{T}, v{T}, v{G+3}")
            else: e(f"v_max3_u32 v{T}, v{T}, v{G+4*i}, v{G+4*i+1}\nv_max3_u32 v{T}, v{T}, v{G+4*i+2}, v{G+4*i+3}")
        e(f"v_cmp_eq_u32 vcc, -1, v{T}\ns_cbranch_vccz {done}")
        self.spin_tail(top, done)
        for r in range(8): self.row_red("v_add_f32", AC0 + r, (8,))
        for r in range(4): e(f"v_cvt_pk_bf16_f32 v{G+r}, v{AC0+2*r}, v{AC0+2*r+1}")
        e(f"""s_bfe_u32 s10, s4, 0x10003
        s_lshl_b32 s10, s10, 11
        s_and_b32 s11, s4, 7
        s_lshl_b32 s11, s11, 7
        s_add_u32 s10, s10, s11
        s_lshl_b32 s11, s{S_PART}, 10
        s_add_u32 s10, s10, s11
        s_mov_b64 exec, 0xff
        buffer_store_dwordx4 {vr(G,4)}, v{VL}, {srd(SRD_E)}, s10 offen
        s_cmp_lg_u32 s4, 16
        s_cbranch_scc1 L_FINDONE
        s_mov_b64 exec, 1
        v_mov_b32 v{T}, s{TAG}
        s_mov_b32 s10, {EPOCH}
        buffer_store_dword v{T}, off, {srd(SRD_WS)}, s10
        L_FINDONE:""")
        self.pt("fin")
        self.stamp_out(16)
        e("s_endpgm")

    def build(self):
        e = self.e
        e("""s_cmp_ge_u32 s2, 256
        s_cbranch_scc1 L_END
        s_load_dwordx16 s[16:31], s[0:1], 0
        s_load_dwordx8 s[32:39], s[0:1], 64
        s_load_dwordx4 s[40:43], s[0:1], 96
        v_lshrrev_b32 v1, 6, v0
        v_and_b32 v0, 63, v0
        v_readfirstlane_b32 s3, v1
        s_cmp_lt_u32 s2, 128
        s_cbranch_scc1 L_P
        s_cmp_ge_u32 s2, 192
        s_cbranch_scc1 L_Q
        s_sub_u32 s4, s2, 128
        s_cmp_lt_u32 s3, 4
        s_cbranch_scc1 L_AC""")
        self.a_loader()
        self.bside("P")
        self.bside("Q")
        self.a_tail()
        self.a_compute()
        e("L_END:\ns_endpgm")
        if "nobar" in self.x:
            i0 = e.L.index("L_P:"); i1 = e.L.index("L_AC:")
            e.L = e.L[:i0] + [l for l in e.L[i0:i1] if l != "s_barrier"] + e.L[i1:]
        if "nomath" in self.x:
            i0 = e.L.index("L_P:"); i1 = e.L.index("L_AC:")
            e.L = e.L[:i0] + [l for l in e.L[i0:i1] if not l.startswith(("v_mfma", "v_exp", "v_fma", "v_perm_", "v_add_f32", "v_mov_b32_dpp", "v_cvt", "v_max3"))] + e.L[i1:]
        if "noph1" in self.x:
            i0 = e.L.index("L_P:"); i1 = e.L.index("L_AC:")
            e.L = e.L[:i0] + [l for l in e.L[i0:i1] if not (l.startswith("buffer_load") and (srd(SRD_D) in l or srd(SRD_E) in l))] + e.L[i1:]
        for x in self.x:
            if x.startswith("c:"): e.L = [l for l in e.L if not l.endswith("; " + x)]
        for x in self.x:
            if x.startswith("allst="):
                m = x[6:].replace("+", " ")
                e.L = [l.replace(" sc1", " " + m if m else "") if l.startswith("buffer_store") else l for l in e.L]
        if "nost" in self.x:
            e.L = [l for l in e.L if not (l.startswith("buffer_store") and "sc1" in l)]
        if "nosc" in self.x:
            e.L = [l for l in e.L if not (l.startswith("buffer_load") and "sc1" in l)]
        if "noA" in self.x:
            for lab in ("L_AL:", "L_AC:"):
                i = e.L.index(lab); e.L.insert(i + 1, "s_endpgm")
        if "link" in self.x:
            e.L = [l.replace(", v1, s[48:51]", ", v2, s[48:51]") if l.startswith("buffer_load_dwordx4") and "lds" not in l else l for l in e.L]
        body, npad = fix_hazards(e.L)
        out = [HEADER.rstrip(), "; @launch grid=(256,1,1) block=(512,1,1) lds=163840",
               '.amdgcn_target "amdgcn-amd-amdhsa--gfx950"', ".text", f".globl {NAME}_kernel", ".p2align 8",
               f".type {NAME}_kernel,@function", f"{NAME}_kernel:"]
        out += [("" if l.endswith(":") else "    ") + l for l in body]
        out += ['.section .rodata,"a"', ".p2align 6", f".amdhsa_kernel {NAME}_kernel",
                "  .amdhsa_next_free_vgpr 256", "  .amdhsa_next_free_sgpr 102", "  .amdhsa_accum_offset 256",
                "  .amdhsa_group_segment_fixed_size 0", "  .amdhsa_kernarg_size 112", "  .amdhsa_user_sgpr_count 2",
                "  .amdhsa_user_sgpr_kernarg_segment_ptr 1", "  .amdhsa_system_sgpr_workgroup_id_x 1",
                ".end_amdhsa_kernel"]
        return "\n".join(out) + "\n", npad

PTS = {"P": "start,xq,st,qf,q,k,v,end", "Q": "start,fin,w,free,end,core,apf,ctx",
       "AC": "start,fin,qd,b1,b9,core,pv,bo", "AL": "start,bar0,bar3,iss4,dma,x,y,end"}

if __name__ == "__main__":
    ap = argparse.ArgumentParser()
    ap.add_argument("out"); ap.add_argument("--stamps", action="store_true")
    ap.add_argument("--pts", action="append", default=[]); ap.add_argument("--x", default="")
    for k, v in DEFAULTS.items(): ap.add_argument("--" + k, type=int, default=v)
    a = ap.parse_args()
    pts = {}
    if a.stamps:
        pts = {k: v.split(",") for k, v in PTS.items()}
        for p in a.pts:
            r, l = p.split(":"); pts[r] = l.split(",")
    s, npad = Gen({k: getattr(a, k) for k in DEFAULTS}, pts, set(a.x.split(","))).build()
    open(a.out, "w").write(s)
    print("wrote", a.out, "lines", s.count("\n"), "pads", npad)
```

```python
import sys, math, struct, argparse
from asmlib import Emit, fix_hazards

NAME = "concat_heads__compressed_kv_cla__gqa_block_cached__decode"
HEADER = open("cdna_kernels/%s.s.ref" % NAME).read().split("; Override launch")[0]

QBP = 0x000000
QAP = 0x020000
AST = 0x040000
BS  = 0x048000
FB  = 0x050000
EPOCH = 0x060000
FA  = 0x080000
MB  = 0x100000
MB_2 = 4096
AP  = 0x200000
XQ  = 0x400000
WS_USED = 0x500000
STAMPS = 0x800000

SCALE = math.log2(math.e) / math.sqrt(128.0)
def f2u(x): return struct.unpack("<I", struct.pack("<f", x))[0]

SRD_WS, SRD_A, SRD_B, SRD_C, SRD_D, SRD_E, SRD_F, SRD_G = 44, 48, 52, 56, 60, 64, 68, 96
P_AX, P_CKV, P_AWQ, P_WUK, P_WUV, P_AWO, P_BX, P_BK, P_BV, P_BWQ, P_BWO, P_OUT, P_DBG, P_WS = range(16, 44, 2)
S_SC, S_SPIN = 15, 14
MASK0 = 72
TAG = 94
ST0 = 16
SPIN = 20000
X = 131072

def srd(n): return f"s[{n}:{n+3}]"
def vr(a, n): return f"v[{a}:{a+n-1}]" if n > 1 else f"v{a}"

DEFAULTS = dict(pa=6, pb=6, qa=4, qat=3, fat=2, uvb=0, pv=0, pvw=4, pvwait=1, pvwin=4, ne=4, we=2, sl_bo=0, kq=12, cu=2, wsb=0, wt1=8, pf1=1, pfwin=6, stw=0, sl_ap=4, sl_xq0=0, sl_xq=2, sl_qa=4, sl_bs=8, np=6, uv0=16, wa=0, wb=0, wc=0, pf=4, pfw=0, pre_q=0, uv1=8, a0=3, t2w=0, wq1=2, kq1=4, sleep=0, pre_p=0, w1=2, kf_p=0, kf_q=12, wq0=8, wk=8, wt=10, wv=8)

class Gen:
    def __init__(self, opt, pts, x):
        self.o = opt; self.alt = pts; self.x = x; self.role = None
        self.stamps = bool(pts)
        self.e = Emit()

    def mk_srd(self, d, p, size):
        self.e(f"s_mov_b32 s{d}, s{p}\ns_mov_b32 s{d+1}, s{p+1}\ns_mov_b32 s{d+2}, {size:#x}\ns_mov_b32 s{d+3}, 0x20000")

    def pt(self, name, role=None):
        sel = self.alt.get(role or self.role)
        if sel and name in sel:
            i = sel.index(name); self.e(f"s_memrealtime s[{80+2*i}:{81+2*i}]" if i < 7 else "s_memrealtime s[100:101]")

    def stamp_out(self, t):
        if not self.stamps: return
        e = self.e
        if "dbg" in self.x:
            skip = e.lab("L_skip")
            e(f"""s_waitcnt lgkmcnt(0)
            s_and_b32 s10, s2, 127
            s_lshl_b32 s10, s10, 3
            s_add_u32 s10, s10, s3
            s_cmp_lg_u32 s10, 0
            s_cbranch_scc1 {skip}
            s_lshr_b32 s10, s2, 7
            s_lshl_b32 s10, s10, 5
            s_mov_b64 exec, 1""")
            for x in self.x:
                if x.startswith("hold"):
                    top = e.lab("L_hold")
                    e(f"""{top}:
                    s_memrealtime s[12:13]
                    s_waitcnt lgkmcnt(0)
                    s_sub_u32 s12, s12, s80
                    s_cmp_lt_u32 s12, {int(x[4:])}
                    s_cbranch_scc1 {top}""")
            self.mk_srd(SRD_A, P_DBG, 256)
            regs = [80, 82, 84, 86, 88, 90, 92, 100]
            for k in range(8):
                e(f"s_sub_u32 s11, s{regs[k]}, {'s80' if k else '0'}\nv_mov_b32 v{t+k}, s11")
            e(f"buffer_store_dwordx4 v[{t}:{t+3}], off, {srd(SRD_A)}, s10\nbuffer_store_dwordx4 v[{t+4}:{t+7}], off, {srd(SRD_A)}, s10 offset:16")
            e(f"{skip}:")
            return
        e("s_waitcnt lgkmcnt(0)\ns_mov_b64 exec, 1")
        e(f"s_lshl_b32 s4, s2, 3\ns_add_u32 s4, s4, s3\ns_lshl_b32 s4, s4, 6\ns_add_u32 s4, s4, {STAMPS}")
        e(f"s_mov_b32 s{SRD_WS+2}, 0x1000000")
        regs = list(range(80, 94)) + [100, 101]
        for i in range(4):
            for k in range(4): e(f"v_mov_b32 v{t+k}, s{regs[4*i+k]}")
            e(f"buffer_store_dwordx4 v[{t}:{t+3}], off, {srd(SRD_WS)}, s4 offset:{16*i}")
            e("s_nop 2")

    def selectors(self, sel, base_lo, base_hi, tmp):
        self.e(f"""v_and_b32 v{tmp}, 1, v0
        v_cmp_eq_u32 vcc, 1, v{tmp}
        v_mov_b32 v{base_lo}, 0x0c0c0100
        v_mov_b32 v{tmp}, 0x01000c0c
        v_cndmask_b32 v{base_lo}, v{base_lo}, v{tmp}, vcc
        v_add_u32 v{base_hi}, 0x0202, v{base_lo}
        v_mov_b32 v{tmp}, 0x03020c0c
        v_cndmask_b32 v{base_hi}, v{base_hi}, v{tmp}, vcc
        v_and_b32 v{tmp}, 2, v0
        v_cmp_eq_u32 vcc, 0, v{tmp}
        v_mov_b32 v{tmp}, 0x0c0c0c0c
        v_cndmask_b32 v{sel}, v{tmp}, v{base_lo}, vcc
        v_cndmask_b32 v{sel+1}, v{base_lo}, v{tmp}, vcc
        v_cndmask_b32 v{sel+2}, v{tmp}, v{base_hi}, vcc
        v_cndmask_b32 v{sel+3}, v{base_hi}, v{tmp}, vcc""")

    def masks(self, lo, hi):
        for j in range(4):
            self.e(f"s_mov_b32 s{MASK0+2*j}, {(lo << (2*j)):#x}\ns_mov_b32 s{MASK0+2*j+1}, {(hi << (2*j)):#x}")

    def rws256(self, nload, x, w, acc, base_lo, base_hi, t0, waits=None):
        e = self.e
        for t in range(nload):
            a = t0 + 2 + 4 * (t & 1)
            e(f"v_perm_b32 v{t0}, v{x+(t>>1)}, v{x+(t>>1)}, v{base_hi if t & 1 else base_lo}")
            for j in range(4): e(f"v_cndmask_b32 v{a+j}, 0, v{t0}, s[{MASK0+2*j}:{MASK0+2*j+1}]")
            if waits: e.wait(waits[t])
            e(f"v_mfma_f32_16x16x32_bf16 {vr(acc,4)}, {vr(a,4)}, {vr(w+4*t,4)}, {vr(acc,4) if t else 0}")

    def rws128(self, nload, x, w, acc0, acc1, sel, pa):
        e = self.e
        for t in range(nload):
            p = pa + 2 + 4 * (t & 1)
            sa, sb = (sel + 2, sel + 3) if t & 1 else (sel, sel + 1)
            e(f"v_perm_b32 v{p}, v{x+(t>>1)}, v{x+(t>>1)}, v{sa}\nv_perm_b32 v{p+1}, v{x+(t>>1)}, v{x+(t>>1)}, v{sb}")
            e(f"v_mfma_f32_16x16x32_bf16 {vr(acc0,4)}, {vr(p,4)}, {vr(w+4*t,4)}, {vr(acc0,4) if t else 0}")
            e(f"v_mfma_f32_16x16x32_bf16 {vr(acc1,4)}, {vr(p-2,4)}, {vr(w+4*t,4)}, {vr(acc1,4) if t else 0}")

    def quad_sum(self, ds):
        for r in range(4):
            for d in ds:
                q = f"quad_perm:[{r},{r},{r},{r}] row_mask:0xf bank_mask:0xf"
                self.e(f"v_mov_b32_dpp v{d}, v{d} {q}" if r == 0 else f"v_add_f32_dpp v{d}, v{d+r}, v{d} {q}")

    def swap_red(self, op, x, t, which):
        for s in which:
            self.e(f"v_mov_b32 v{t}, v{x}\nv_permlane{s}_swap_b32 v{x}, v{t}\n{op} v{x}, v{x}, v{t}")

    def row_red(self, op, x, rots):
        for r in rots:
            self.e(f"{op}_dpp v{x}, v{x}, v{x} row_ror:{r} row_mask:0xf bank_mask:0xf")

    def tree(self, op, base, n, width):
        st = 1
        while st < n:
            for i in range(0, n, 2 * st):
                for r in range(width): self.e(f"{op} v{base+width*i+r}, v{base+width*i+r}, v{base+width*(i+st)+r}")
            st *= 2

    def max3_chain(self, op, dst, regs):
        regs = list(regs)
        self.e(f"v_max3_{op} v{dst}, v{regs[0]}, v{regs[1]}, v{regs[2]}")
        regs = regs[3:]
        while len(regs) >= 2:
            self.e(f"v_max3_{op} v{dst}, v{dst}, v{regs[0]}, v{regs[1]}"); regs = regs[2:]
        if regs: self.e(f"v_max_{op} v{dst}, v{dst}, v{regs[0]}")

    def spin_tail(self, top, done, sleep=0):
        if sleep: self.e(f"s_sleep {sleep}")
        if "nodep" in self.x: self.e(f"{done}:"); return
        self.e(f"s_sub_u32 s{S_SPIN}, s{S_SPIN}, 1\ns_cbranch_scc0 {top}\n{done}:")

    def lds_wait(self, addr, t):
        e = self.e
        top, done = e.lab("L_spin"), e.lab("L_ok")
        e(f"""v_mov_b32 v{t}, {addr}
        s_mov_b32 s{S_SPIN}, {SPIN * 20}
        {top}:
        ds_read_b32 v{t+1}, v{t}
        s_waitcnt lgkmcnt(0)
        v_cmp_ne_u32 vcc, 4, v{t+1}
        s_cbranch_vccz {done}""")
        self.spin_tail(top, done, 2)

    def lds_inc(self, addr, t):
        self.e(f"""v_mov_b32 v{t}, {addr}
        v_mov_b32 v{t+1}, 1
        s_mov_b64 exec, 1
        ds_add_u32 v{t}, v{t+1}
        s_mov_b64 exec, -1""")

    def only_wave(self, w):
        skip = self.e.lab("L_skip")
        self.e(f"s_cmp_lg_u32 s3, {w}\ns_cbranch_scc1 {skip}")
        return skip

    def epoch_load(self):
        if self.o["wsb"]: self.e(f"s_add_u32 s{P_WS}, s{P_WS}, {self.o['wsb'] << 20:#x}\ns_addc_u32 s{P_WS+1}, s{P_WS+1}, 0")
        self.e(f"s_load_dword s{TAG}, s[{P_WS}:{P_WS+1}], {EPOCH:#x}")

    def epoch_tag(self):
        self.e(f"s_waitcnt lgkmcnt(0)\ns_add_u32 s{TAG}, s{TAG}, 1\ns_xor_b32 s{TAG+1}, s{TAG}, 0x5bd1e995")

    def post_b(self, sg, sslot, t):
        self.e(f"""v_mov_b32 v{t}, s{TAG}
        v_mov_b32 v{t+1}, s{TAG+1}
        s_lshl_b32 s10, s{sg}, 7
        s_lshl_b32 s11, s{sslot}, 3
        s_add_u32 s10, s10, s11
        s_add_u32 s10, s10, {FB}
        s_mov_b64 exec, 1
        buffer_store_dwordx2 {vr(t,2)}, off, {srd(SRD_WS)}, s10 sc1 ; c:FLAG
        s_mov_b64 exec, -1""")

    def post_a(self, sid, off, t):
        self.e(f"""v_lshlrev_b32 v{t+2}, 11, v0
        v_mov_b32 v{t}, s{TAG}
        v_mov_b32 v{t+1}, s{TAG+1}
        s_lshl_b32 s10, s{sid}, 3
        s_add_u32 s10, s10, {FA+off}
        s_mov_b64 exec, 0xff
        buffer_store_dwordx2 {vr(t,2)}, v{t+2}, {srd(SRD_WS)}, s10 offen sc1 ; c:FLAG
        s_mov_b64 exec, -1""")

    def poll_a(self, off, t):
        e = self.e
        top, done = e.lab("L_spin"), e.lab("L_ok")
        e(f"""s_and_b32 s10, s4, 7
        s_lshl_b32 s10, s10, 11
        s_add_u32 s10, s10, {FA+off}
        v_lshlrev_b32 v{t+2}, 3, v0
        {top}:
        buffer_load_dwordx2 {vr(t,2)}, v{t+2}, {srd(SRD_WS)}, s10 offen sc1
        s_waitcnt vmcnt(0)
        v_cmp_ne_u64 vcc, s[{TAG}:{TAG+1}], {vr(t,2)}
        s_cbranch_vccz {done}""")
        self.spin_tail(top, done, self.o["sl_ap"])

    def tag_check(self, g, n, t):
        e = self.e
        for i in range(n):
            e(f"v_xor_b32 v{t+2}, s{TAG+1}, v{g+2*i}\nv_xor_b32 v{g+2*i+1}, s{TAG}, v{g+2*i+1}")
            e(f"v_and_or_b32 v{g+2*i+1}, v{t+2}, v{t+1}, v{g+2*i+1}")
        e(f"v_or_b32 v{t}, v{g+1}, v{g+3}")
        for i in range(2, n, 2): e(f"v_or3_b32 v{t}, v{t}, v{g+2*i+1}, v{g+2*i+3}")

    def bside(self, kind):
        e = self.e; e.vm = 0; o = self.o
        tp = 4 * (o["pa"] + o["pb"])
        pa, pb = (o["pa"], o["pb"]) if kind == "P" else (o["qa"], (128 - 2 * tp) // 4 - o["qa"])
        n = max(pa, pb)
        VK, VL, TMP, SEL, BLO, BHI, QF, AC0, AC1, LS, MX = 1, 2, 3, 4, 8, 9, 10, 14, 18, 22, 23
        T = 24; D0 = 32; KR = 36; VR = 132; PA = 228; U = 246
        L_T1, L_Q, L_MAX, L_L, L_RED, L_T2, L_QA, L_W = 0, 8192, 9216, 9344, 16384, 32768, 40960, 32768
        S_KV, S_VV, S_G, S_B, S_SP = 5, 6, 7, 8, 9
        L_F = 9472
        e(f"L_{kind}:")
        self.role = kind
        if "no" + kind in self.x: e("s_endpgm")
        self.pt("start")
        e(f"""v_and_b32 v{T}, 3, v0
        v_lshrrev_b32 v{TMP}, 4, v0
        v_lshlrev_b32 v{T+1}, 6, v{TMP}
        v_lshl_add_u32 v{T+1}, v{T}, 4, v{T+1}
        v_bfe_u32 v{T}, v0, 2, 2
        v_lshl_add_u32 v{VK}, v{T}, 8, v{T+1}
        v_lshlrev_b32 v{VL}, 4, v0""")
        if kind == "P":
            e(f"""v_lshl_add_u32 v{T+6}, v{T}, 15, v{T+1}
            v_and_b32 v{T+4}, 15, v0
            v_lshlrev_b32 v{T+4}, 4, v{T+4}
            v_lshl_add_u32 v{T+4}, v{TMP}, 15, v{T+4}
            v_bfe_u32 v{T+5}, v0, 3, 1
            v_lshlrev_b32 v{T+5}, 10, v{T+5}
            v_lshl_add_u32 v{T+5}, v{TMP}, 3, v{T+5}
            s_lshr_b32 s10, s2, 3
            s_and_b32 s{S_SP}, s2, 7
            s_mul_i32 s11, s{S_SP}, {tp}
            s_lshr_b32 s13, s2, 2
            s_and_b32 s4, s2, 3""")
        else:
            e(f"""s_sub_u32 s4, s2, 192
            s_lshr_b32 s10, s4, 2
            s_and_b32 s4, s4, 3
            s_add_u32 s{S_SP}, s4, 8
            s_mul_i32 s11, s4, {4*(pa+pb)}
            s_add_u32 s11, s11, {8*tp}
            v_and_b32 v{T+4}, 15, v0
            v_lshlrev_b32 v{T+4}, 4, v{T+4}
            v_lshl_add_u32 v{T+4}, v{TMP}, 16, v{T+4}
            v_bfe_u32 v{T+5}, v0, 3, 1
            v_lshlrev_b32 v{T+5}, 10, v{T+5}
            v_lshl_add_u32 v{T+5}, v{TMP}, 4, v{T+5}
            s_sub_u32 s13, s2, 192
            s_and_b32 s4, s13, 1
            s_lshr_b32 s13, s13, 1""")
        e(f"""s_mul_i32 s12, s3, {pb}
        s_min_u32 s{S_G}, s3, 4
        s_mul_i32 s{S_G}, s{S_G}, {pa-pb}
        s_add_u32 s12, s12, s{S_G}
        s_and_b32 s{S_G}, s10, 7
        s_lshr_b32 s{S_B}, s10, 3
        s_add_u32 s11, s11, s12
        s_lshl_b32 s11, s11, 12
        s_lshl_b32 s10, s10, 21
        s_add_u32 s{S_KV}, s10, s11
        s_mov_b32 s{S_VV}, s{S_KV}""")
        sh = 7 if kind == "P" else 8
        e(f"""s_lshl_b32 s10, s4, {sh}
        s_lshl_b32 s11, s3, {sh-3}
        s_add_u32 s10, s10, s11
        s_lshl_b32 s11, s10, 1
        s_lshl_b32 s10, s10, 13
        s_lshl_b32 s12, s13, 8
        s_add_u32 s10, s10, s12""")
        e("s_waitcnt lgkmcnt(0)")
        self.epoch_load()
        tags = []; cur = [min(pa, pb)]
        def issue(upto):
            n = cur[0]
            while len(tags) < min(upto, 8 * n):
                x = len(tags); k = x % (4 * n); j = k & 3
                if x < 4 * n:
                    tags.append(e.mem(f"buffer_load_dwordx4 {vr(KR+4*k,4)}, v{VK}, {srd(SRD_A)}, s{S_KV} offen offset:{1024*j} nt"))
                    if j == 3: e(f"s_add_u32 s{S_KV}, s{S_KV}, 4096")
                else:
                    tags.append(e.mem(f"buffer_load_dwordx4 {vr(VR+4*k,4)}, v{VL}, {srd(SRD_B)}, s{S_VV} offen offset:{1024*j} nt"))
                    if j == 3: e(f"s_add_u32 s{S_VV}, s{S_VV}, 4096")
        seen = set()
        def land(k):
            e.wait(tags[k])
            if k not in seen: seen.add(k); self.pt(f"l{k}")
        def slide(k0, k1, w):
            for k in range(k0, k1):
                land(k); issue(k + 1 + w)
        self.mk_srd(SRD_WS, P_WS, WS_USED)
        if kind == "P":
            self.mk_srd(SRD_C, P_AX, 2048); self.mk_srd(SRD_D, P_AWQ, 4 << 20)
            e(f"""v_lshlrev_b32 v{LS}, 15, v{TMP}
            v_and_b32 v{U+5}, 15, v0
            v_lshl_add_u32 v{LS}, v{U+5}, 4, v{LS}""")
            skip = self.only_wave(7)
            e(f"""s_lshl_b32 s12, s2, 8
            s_add_u32 s12, s12, {QAP}""")
            for r in range(4): e(f"v_mov_b32 v{U+r}, -1")
            e(f"""s_mov_b32 exec_hi, 0
            buffer_store_dwordx4 {vr(U,4)}, v{LS}, {srd(SRD_WS)}, s12 offen sc1 ; c:QCLR
            s_mov_b64 exec, -1
            {skip}:""")
            def four(slot, voff, s):
                e("s_mov_b32 s12, s10")
                r = []
                for t in range(4):
                    r.append(e.mem(f"buffer_load_dwordx4 {vr(VR+4*(slot+t),4)}, v{voff}, {srd(s)}, s12 offen nt"))
                    if t < 3: e("s_add_u32 s12, s12, 8192")
                return r
            xa = e.mem(f"buffer_load_dwordx2 {vr(T,2)}, v{T+5}, {srd(SRD_C)}, s11 offen")
            w2 = four(0, T + 4, SRD_D)
            self.mk_srd(SRD_E, P_WUK, 4 << 20)
            if o["t2w"] >= 0: e.wait(w2[o["t2w"]])
            w3 = four(4, T + 6, SRD_E)
        else:
            self.mk_srd(SRD_C, P_BX, 2048); self.mk_srd(SRD_D, P_BWQ, 4 << 20)
            xb = e.mem(f"buffer_load_dwordx4 {vr(T,4)}, v{T+5}, {srd(SRD_C)}, s11 offen")
            w1 = []
            for t in range(8):
                if t >= o["wt1"]: e.wait(w1[t - o["wt1"]])
                w1.append(e.mem(f"buffer_load_dwordx4 {vr(VR+4*t,4)}, v{T+4}, {srd(SRD_D)}, s10 offen nt"))
                if t < 7: e("s_add_u32 s10, s10, 8192")
            self.mk_srd(SRD_E, P_OUT, 4096)
            e(f"""v_lshrrev_b32 v{T+6}, 3, v0
            v_lshlrev_b32 v{T+6}, 17, v{T+6}
            v_and_b32 v{U}, 7, v0
            v_lshl_add_u32 v{T+6}, v{U}, 4, v{T+6}
            v_and_b32 v{U}, 15, v0
            v_lshlrev_b32 v{U}, 4, v{U}
            v_lshl_add_u32 v{U}, v{TMP}, 14, v{U}
            s_sub_u32 s68, s2, 192
            s_cmp_lt_u32 s3, 4
            s_cselect_b32 s{SRD_C}, s{P_WUV}, s{P_AWO}
            s_cselect_b32 s{SRD_C+1}, s{P_WUV+1}, s{P_AWO+1}
            s_mov_b32 s{SRD_C+2}, 0x400000
            s_movk_i32 s69, 1024
            s_cselect_b32 s69, 8192, s69
            s_cselect_b64 vcc, -1, 0
            v_cndmask_b32 v{T+6}, v{U}, v{T+6}, vcc
            s_lshl_b32 s10, s3, 20
            s_lshl_b32 s11, s68, 7
            s_add_u32 s10, s10, s11
            s_lshl_b32 s11, s68, 16
            s_and_b32 s12, s3, 3
            s_lshl_b32 s12, s12, 8
            s_add_u32 s11, s11, s12
            s_cmp_lt_u32 s3, 4
            s_cselect_b32 s70, s10, s11
            s_lshl_b32 s71, s3, 14
            s_add_u32 s71, s71, {L_W}""")
            wd = []
            def wdma(upto, w):
                while len(wd) < upto:
                    e(f"s_waitcnt vmcnt({w-1})\ns_mov_b32 m0, s71")
                    wd.append(e.mem(f"buffer_load_dwordx4 v{T+6}, {srd(SRD_C)}, s70 offen nt lds"))
                    e("s_add_u32 s70, s70, s69\ns_add_u32 s71, s71, 1024")
        self.mk_srd(SRD_A, P_BK, 32 << 20); self.mk_srd(SRD_B, P_BV, 32 << 20)
        if kind == "P": issue(o["pre_p"])
        e(f"s_mov_b32 s{S_SC}, {f2u(SCALE):#x}\ns_mov_b32 s{S_SPIN}, {SPIN}")
        self.selectors(SEL, BLO, BHI, TMP)
        e(f"v_mov_b32 v{AC0}, 0\nv_mov_b32 v{AC0+1}, 0\nds_write_b64 v{AC0}, {vr(AC0,2)} offset:{L_F}")
        self.epoch_tag()
        if kind == "P":
            self.masks(0x03030303, 0x03030303)
            skip = self.only_wave(7)
            e(f"s_waitcnt vmcnt({e.vm})")
            self.post_a(2, 0, U)
            e(f"{skip}:")
            e(f"s_lshl_b32 s10, s3, 10\nv_add_u32 v{T+7}, s10, v{VL}")
            e.wait(xa)
            self.rws256(4, T, VR, AC0, BLO, BHI, PA, w2)
            self.pt("t2")
            e(f"ds_write_b128 v{T+7}, {vr(AC0,4)} offset:{L_T2}\ns_waitcnt lgkmcnt(0)\ns_barrier")
            XT = VR + 48
            skip = self.only_wave(0)
            for i in range(8): e(f"ds_read_b128 {vr(XT+4*i,4)}, v{VL} offset:{L_T2+1024*i}")
            e(f"""v_mov_b32 v{U+1}, s{TAG+1}
            s_lshl_b32 s10, s2, 11
            s_add_u32 s10, s10, {XQ}
            s_mov_b32 s11, 0xffffff00
            s_waitcnt lgkmcnt(0)""")
            self.tree("v_add_f32", XT, 8, 4)
            for r in range(4): e(f"v_bfi_b32 v{XT+8+2*r}, s11, v{XT+r}, v{U+1}\nv_mov_b32 v{XT+9+2*r}, s{TAG}")
            e(f"buffer_store_dwordx4 {vr(XT+8,4)}, v{VL}, {srd(SRD_WS)}, s10 offen sc1 ; c:XQ")
            e(f"buffer_store_dwordx4 {vr(XT+12,4)}, v{VL}, {srd(SRD_WS)}, s10 offen offset:1024 sc1 ; c:XQ")
            e(f"{skip}:")
            self.pt("xq")
            skip, other = e.lab("L_skip"), e.lab("L_other")
            top, done = e.lab("L_spin"), e.lab("L_ok")
            e(f"""s_lshr_b32 s10, s3, 1
            s_cmp_lg_u32 s10, 2
            s_cbranch_scc1 {other}
            s_lshl_b32 s10, s13, 13
            s_and_b32 s12, s3, 1
            s_lshl_b32 s11, s12, 10
            s_add_u32 s10, s10, s11
            s_add_u32 s10, s10, {XQ}
            s_add_u32 s11, s10, 4096
            v_mov_b32 v{U+1}, 0xff
            v_lshrrev_b32 v{U+3}, 5, v0
            v_lshlrev_b32 v{U+3}, 8, v{U+3}
            v_and_b32 v{U+4}, 15, v0
            v_lshl_add_u32 v{U+3}, v{U+4}, 4, v{U+3}
            v_bfe_u32 v{U+4}, v0, 4, 1
            v_lshl_add_u32 v{U+3}, v{U+4}, 3, v{U+3}
            s_lshl_b32 s12, s12, 2
            v_add_u32 v{U+3}, s12, v{U+3}""")
            if o["sl_xq0"]: e(f"s_sleep {o['sl_xq0']}")
            e(f"{top}:")
            for i in range(4): e(f"buffer_load_dwordx4 {vr(VR+4*i,4)}, v{VL}, {srd(SRD_WS)}, s{10+(i>>1)} offen offset:{2048*(i&1)} sc1 ; c:LXQ")
            e("s_waitcnt vmcnt(0)")
            self.tag_check(VR, 8, U)
            e(f"v_cmp_ne_u32 vcc, 0, v{U}\ns_cbranch_vccz {done}")
            self.spin_tail(top, done, o["sl_xq"])
            e(f"""v_add_f32 v{VR}, v{VR}, v{VR+4}
            v_add_f32 v{VR+2}, v{VR+2}, v{VR+6}
            v_add_f32 v{VR+8}, v{VR+8}, v{VR+12}
            v_add_f32 v{VR+10}, v{VR+10}, v{VR+14}
            v_add_f32 v{VR}, v{VR}, v{VR+8}
            v_add_f32 v{VR+2}, v{VR+2}, v{VR+10}
            v_cvt_pk_bf16_f32 v{VR}, v{VR}, v{VR+2}
            ds_write_b32 v{U+3}, v{VR} offset:{L_QA}""")
            ne, we = o["ne"], o["we"]
            vm0, L0 = e.vm, len(e.L)
            issue(len(tags) + ne)
            body = e.L[L0:]
            e(f"s_branch {skip}\n{other}:")
            cnt = 0
            for l in body:
                if l.startswith("buffer_load"):
                    if cnt >= we: e(f"s_waitcnt vmcnt({we-1})")
                    cnt += 1
                e(l)
            e(f"""{skip}:
            v_bfe_u32 v{U}, v0, 2, 1
            v_lshlrev_b32 v{U}, 8, v{U}
            v_and_b32 v{U+2}, 0xf0, v{VK}
            v_add_u32 v{U+1}, v{U}, v{U+2}
            v_lshrrev_b32 v{U+2}, 4, v0
            v_lshl_add_u32 v{U}, v{U+2}, 3, v{U}
            s_lshl_b32 s11, s3, 5
            v_add_u32 v{U}, s11, v{U}
            s_waitcnt lgkmcnt(0)
            s_barrier
            ds_read_b128 {vr(QF,4)}, v{U+1} offset:{L_QA}
            s_waitcnt lgkmcnt(0)""")
            self.pt("qa")
            e.wait(w3[3])
            for t in range(4): e(f"v_mfma_f32_16x16x32_bf16 {vr(VR+4*t,4)}, {vr(VR+16+4*t,4)}, {vr(QF,4)}, 0")
            self.quad_sum([VR + 4 * t for t in range(4)])
            e(f"""v_cvt_pk_bf16_f32 v{AC0}, v{VR}, v{VR+4}
            v_cvt_pk_bf16_f32 v{AC0+1}, v{VR+8}, v{VR+12}
            s_mov_b32 exec_lo, 0x00110011
            s_mov_b32 exec_hi, 0x00110011
            ds_write_b64 v{U}, {vr(AC0,2)} offset:{L_QA+512}
            s_mov_b64 exec, -1
            s_waitcnt lgkmcnt(0)
            s_barrier""")
            skip = self.only_wave(7)
            e(f"""ds_read_b128 {vr(AC0,4)}, v{VL} offset:{L_QA+512}
            s_lshl_b32 s10, s2, 8
            s_add_u32 s10, s10, {QAP}
            s_waitcnt lgkmcnt(0)""")
            for r in range(4): e(f"v_min_u32 v{AC0+r}, -2, v{AC0+r}")
            e(f"""s_mov_b32 exec_hi, 0
            buffer_store_dwordx4 {vr(AC0,4)}, v{LS}, {srd(SRD_WS)}, s10 offen sc1 ; c:QAP
            s_mov_b64 exec, -1""")
            if o["stw"] in (1, 2):
                self.pt("st7"); e("s_waitcnt vmcnt(0)"); self.pt("ack7")
            e(f"{skip}:")
            if o["stw"] > 1: e("s_barrier")
            self.pt("st")
            issue(o["w1"])
        else:
            self.masks(0x03030303, 0x03030303)
            e(f"s_lshl_b32 s10, s3, 10\nv_add_u32 v{T+7}, s10, v{VL}")
            e.wait(xb)
            self.rws256(8, T, VR, AC1, BLO, BHI, PA, w1)
            e(f"ds_write_b128 v{T+7}, {vr(AC1,4)} offset:{L_T1}")
            wdma(o["wq1"], 16)
            e("s_waitcnt lgkmcnt(0)\ns_barrier")
            self.pt("t1")
            skip = self.only_wave(0)
            for i in range(8): e(f"ds_read_b128 {vr(VR+4*i,4)}, v{VL} offset:{L_T1+1024*i}")
            e(f"""v_lshrrev_b32 v{U}, 5, v0
            v_lshlrev_b32 v{U}, 14, v{U}
            v_and_b32 v{U+1}, 15, v0
            v_lshl_add_u32 v{U}, v{U+1}, 5, v{U}
            v_bfe_u32 v{U+1}, v0, 4, 1
            v_lshl_add_u32 v{U}, v{U+1}, 4, v{U}
            s_lshl_b32 s10, s4, 15
            s_lshl_b32 s11, s13, 9
            s_add_u32 s10, s10, s11
            s_add_u32 s10, s10, {QBP}
            s_sub_u32 s12, s2, 192
            s_lshr_b32 s13, s12, 3
            s_and_b32 s12, s12, 7
            s_waitcnt lgkmcnt(0)""")
            self.tree("v_add_f32", VR, 8, 4)
            e(f"buffer_store_dwordx4 {vr(VR,4)}, v{U}, {srd(SRD_WS)}, s10 offen sc1\ns_waitcnt vmcnt(0)")
            self.post_b(13, 12, U)
            e(f"{skip}:")
        variants = [pa] if pa == pb else [pa, pb]
        if kind == "Q":
            wdma(16, o["wq1"])
            self.pt("w")
        if len(variants) > 1: e(f"s_cmp_ge_u32 s3, 4\ns_cbranch_scc1 L_{kind}_B")
        tags0, vm0 = list(tags), e.vm
        for vi, nv in enumerate(variants):
            if vi: e(f"L_{kind}_B:")
            n = nv; cur[0] = nv; tags[:] = tags0; e.vm = vm0; seen.clear()
            kf, wearly = (o["kf_p"], o["w1"]) if kind == "P" else (o["kf_q"], o["wq0"])
            if kind == "Q":
                for k in range(wearly):
                    e(f"s_waitcnt vmcnt({wearly-1})"); issue(k + 1)
                slide(0, kf, wearly)
            else:
                slide(0, kf, wearly)
            e(f"""s_cmp_eq_u32 s3, 0
            s_cselect_b32 s13, 0, 0x40000000
            s_lshl_b32 s12, s{S_G}, 7
            s_add_u32 s12, s12, {FB}
            s_add_u32 s12, s12, s13
            v_lshlrev_b32 v{T+2}, 3, v0
            s_mov_b64 exec, 0xffff""")
            k1 = len(tags)
            fl = e.mem(f"buffer_load_dwordx2 {vr(T,2)}, v{T+2}, {srd(SRD_WS)}, s12 offen sc1 ; c:LFB")
            e("s_mov_b64 exec, -1")
            issue(kf + o["wk"])
            slide(kf, k1, o["wk"])
            e(f"""s_lshl_b32 s10, s{S_B}, 14
            s_lshl_b32 s11, s{S_G}, 11
            s_add_u32 s10, s10, s11
            s_add_u32 s10, s10, {QBP}
            s_add_u32 s10, s10, s13
            s_add_u32 s11, s10, 32768
            v_lshlrev_b32 v{TMP}, 5, v0""")
            e.wait(fl)
            top, done = e.lab("L_spin"), e.lab("L_ok")
            e(f"""s_cmp_lg_u32 s3, 0
            s_cbranch_scc1 {done}
            s_mov_b64 exec, 0xffff
            {top}:
            v_cmp_ne_u64 vcc, s[{TAG}:{TAG+1}], {vr(T,2)}
            s_cbranch_vccz {done}
            buffer_load_dwordx2 {vr(T,2)}, v{T+2}, {srd(SRD_WS)}, s12 offen sc1 ; c:LFB
            s_waitcnt vmcnt(0)""")
            self.spin_tail(top, done, o["sleep"])
            e("s_mov_b64 exec, -1")
            self.pt("qf")
            k2 = len(tags)
            QG = PA
            for k in range(4):
                qg = e.mem(f"buffer_load_dwordx4 {vr(QG+4*k,4)}, v{TMP}, {srd(SRD_WS)}, s{10+(k>>1)} offen offset:{16*(k&1)} sc1 ; c:LQB")
            k3 = min(k2, 4 * n)
            slide(k1, k3, o["wk"])
            skip = self.only_wave(0)
            e.wait(qg)
            for r in range(8): e(f"v_add_f32 v{QG+r}, v{QG+r}, v{QG+8+r}")
            for r in range(4): e(f"v_cvt_pk_bf16_f32 v{QG+r}, v{QG+2*r}, v{QG+2*r+1}")
            e(f"""v_mov_b32 v{T}, 0
            v_mov_b32 v{T+1}, 1
            ds_write_b128 v{VL}, {vr(QG,4)} offset:{L_Q}
            s_waitcnt lgkmcnt(0)
            ds_write_b32 v{T}, v{T+1} offset:{L_F}
            {skip}:""")
            kq = max(k3, min(o["kq"], 4 * n))
            slide(k3, kq, o["wk"])
            top, done = e.lab("L_spin"), e.lab("L_ok")
            e(f"""v_mov_b32 v{T}, 0
            s_mov_b32 s{S_SPIN}, {SPIN * 20}
            {top}:
            ds_read_b32 v{T+1}, v{T} offset:{L_F}
            ds_read_b128 {vr(QF,4)}, v{VK} offset:{L_Q}
            s_waitcnt lgkmcnt(0)
            v_cmp_eq_u32 vcc, 0, v{T+1}
            s_cbranch_vccz {done}""")
            self.spin_tail(top, done, 1)
            e(f"v_bfe_u32 v{T+5}, v0, 2, 2\nv_lshlrev_b32 v{T+5}, 5, v{T+5}\ns_lshl_b32 s10, s3, 2\nv_add_u32 v{T+6}, s10, v{T+5}")
            for z in range(0, 18, 4): e(f"v_mov_b32 v{PA+z}, 0\nv_mov_b32 v{PA+z+1}, 0")
            self.pt("q")
            SK = lambda k: D0 + 4 * k
            ahead = kq
            for i in range(n + 1):
                if i < n:
                    for j in range(4):
                        k = 4 * i + j
                        if k >= kq:
                            land(k); issue(k + 1 + (o["wk"] if k < 4 * n - 4 else o["wt"]))
                        elif j == 0 and o["cu"]:
                            issue(len(tags) + o["cu"])
                        e(f"v_mfma_f32_16x16x32_bf16 {vr(SK(k),4)}, {vr(KR+4*k,4)}, {vr(QF,4)}, 0")
                if i > 0:
                    ks = [SK(4 * (i - 1) + j) for j in range(4)]
                    self.quad_sum(ks)
                    self.max3_chain("f32", MX, ks if i == 1 else [MX] + ks)
            issue(4 * n + o["wt"])
            self.pt("k")
            self.swap_red("v_max_f32", MX, TMP, (16, 32))
            e(f"v_mul_f32 v{MX}, s{S_SC}, v{MX}\nds_write_b32 v{T+6}, v{MX} offset:{L_MAX}")
            for k in range(4 * n): e(f"v_fma_f32 v{SK(k)}, v{SK(k)}, s{S_SC}, -v{MX}")
            for k in range(4 * n): e(f"v_exp_f32 v{SK(k)}, v{SK(k)}")
            e(f"v_add_f32 v{LS}, v{SK(0)}, v{SK(1)}")
            for k in range(2, 4 * n): e(f"v_add_f32 v{LS}, v{LS}, v{SK(k)}")
            for k in range(0, 4 * n, 2): e(f"v_cvt_pk_bf16_f32 v{SK(k)}, v{SK(k)}, v{SK(k+1)}")
            self.swap_red("v_add_f32", LS, TMP, (16, 32))
            skip = e.lab("L_skip")
            e(f"""ds_write_b32 v{T+6}, v{LS} offset:{L_L}
            v_mov_b32 v{T}, 0
            v_mov_b32 v{T+1}, 1
            s_mov_b64 exec, 1
            ds_add_rtn_u32 v{T+2}, v{T}, v{T+1} offset:{L_F+4}
            s_waitcnt lgkmcnt(0)
            v_cmp_eq_u32 vcc, 7, v{T+2}
            s_mov_b64 exec, -1
            s_cbranch_vccz {skip}
            v_and_b32 v{T}, 3, v0
            v_lshlrev_b32 v{T}, 5, v{T}
            ds_read_b128 {vr(U,4)}, v{T} offset:{L_MAX}
            ds_read_b128 {vr(U+4,4)}, v{T} offset:{L_MAX+16}
            ds_read_b128 {vr(QF,4)}, v{T} offset:{L_L}
            ds_read_b128 {vr(AC0,4)}, v{T} offset:{L_L+16}
            v_mov_b32 v{T+3}, s{TAG+1}
            s_lshl_b32 s10, s{S_B}, 3
            s_add_u32 s10, s10, s{S_G}
            s_mul_i32 s10, s10, 12
            s_add_u32 s10, s10, s{S_SP}
            s_lshl_b32 s10, s10, 6
            s_add_u32 s10, s10, {BS}
            s_mov_b32 s11, 0xffffff00
            s_waitcnt lgkmcnt(0)""")
            self.max3_chain("f32", T + 2, range(U, U + 8))
            for r in range(8): e(f"v_sub_f32 v{U+r}, v{U+r}, v{T+2}")
            for r in range(8): e(f"v_exp_f32 v{U+r}, v{U+r}")
            e(f"v_mul_f32 v{T+1}, v{U}, v{QF}")
            for r in range(1, 8): e(f"v_fmac_f32 v{T+1}, v{U+r}, v{QF+r}")
            e(f"""v_bfi_b32 v{U+2}, s11, v{T+1}, v{T+3}
            v_bfi_b32 v{U}, s11, v{T+2}, v{T+3}
            v_mov_b32 v{U+1}, s{TAG}
            v_mov_b32 v{U+3}, s{TAG}
            s_mov_b64 exec, 15
            buffer_store_dwordx4 {vr(U,4)}, v{VL}, {srd(SRD_WS)}, s10 offen sc1 ; c:BST
            s_mov_b64 exec, -1
            {skip}:""")
            self.pt("p")
            for i in range(n):
                for j in range(4):
                    k = 4 * i + j; pk = SK(k & ~1); p = PA + 2 + 4 * j
                    sa, sb = (SEL + 2, SEL + 3) if k & 1 else (SEL, SEL + 1)
                    e(f"v_perm_b32 v{p}, v{pk}, v{pk}, v{sa}\nv_perm_b32 v{p+1}, v{pk}, v{pk}, v{sb}")
                if i == n - 1:
                    top, done = e.lab("L_spin"), e.lab("L_ok")
                    e(f"""v_mov_b32 v{T}, 0
                    v_lshrrev_b32 v{T+1}, 4, v0
                    v_lshlrev_b32 v{T+1}, 5, v{T+1}
                    s_lshl_b32 s10, s3, 2
                    v_add_u32 v{T+2}, s10, v{T+1}
                    {top}:
                    ds_read_b32 v{T+3}, v{T} offset:{L_F+4}
                    ds_read_b128 {vr(U,4)}, v{T+1} offset:{L_MAX}
                    ds_read_b128 {vr(U+4,4)}, v{T+1} offset:{L_MAX+16}
                    ds_read_b32 v{LS}, v{T+2} offset:{L_MAX}
                    s_waitcnt lgkmcnt(0)
                    v_cmp_ne_u32 vcc, 8, v{T+3}
                    s_cbranch_vccz {done}""")
                    self.spin_tail(top, done, 1)
                    self.max3_chain("f32", MX, range(U, U + 8))
                    e(f"v_sub_f32 v{LS}, v{LS}, v{MX}\nv_exp_f32 v{LS}, v{LS}")
                    e(f"""s_lshl_b32 s10, s3, 11
                    v_lshl_add_u32 v{T}, v0, 5, s10
                    s_lshl_b32 s10, s3, 8
                    v_and_b32 v{T+2}, 31, v0
                    v_lshl_add_u32 v{T+1}, v{T+2}, 3, s10
                    v_lshlrev_b32 v{T+2}, 2, v0
                    s_lshl_b32 s10, s{S_G}, 3
                    s_add_u32 s10, s10, s3
                    s_lshl_b32 s10, s10, 14
                    s_mul_i32 s11, s{S_B}, 12
                    s_add_u32 s11, s11, s{S_SP}
                    s_lshl_b32 s11, s11, 7
                    s_add_u32 s10, s10, s11
                    s_add_u32 s10, s10, {MB}""")
                for j in range(4):
                    k = 4 * i + j; p = PA + 2 + 4 * j
                    land(4 * n + k)
                    issue(4 * n + k + 1 + o["wv"])
                    e(f"v_mfma_f32_16x16x32_bf16 {vr(AC0,4)}, {vr(p,4)}, {vr(VR+4*k,4)}, {vr(AC0,4) if k else 0}")
                    e(f"v_mfma_f32_16x16x32_bf16 {vr(AC1,4)}, {vr(p-2,4)}, {vr(VR+4*k,4)}, {vr(AC1,4) if k else 0}")
            self.pt("v")
            for r in range(8): e(f"v_mul_f32 v{AC0+r}, v{AC0+r}, v{LS}")
            e(f"""ds_write_b128 v{T}, {vr(AC0,4)} offset:{L_RED}
            ds_write_b128 v{T}, {vr(AC1,4)} offset:{L_RED+16}
            s_waitcnt lgkmcnt(0)
            s_barrier""")
            for i in range(8): e(f"ds_read_b64 {vr(KR+2*i,2)}, v{T+1} offset:{L_RED+2048*i}")
            for i in range(0, 8, 2):
                e(f"s_waitcnt lgkmcnt({6-i})\nv_add_f32 v{KR+2*i}, v{KR+2*i}, v{KR+2*i+2}\nv_add_f32 v{KR+2*i+1}, v{KR+2*i+1}, v{KR+2*i+3}")
                if i == 2: e(f"v_add_f32 v{KR}, v{KR}, v{KR+4}\nv_add_f32 v{KR+1}, v{KR+1}, v{KR+5}")
                if i == 4: e(f"v_add_f32 v{KR}, v{KR}, v{KR+8}\nv_add_f32 v{KR+1}, v{KR+1}, v{KR+9}")
            e(f"""v_add_f32 v{KR}, v{KR}, v{KR+12}
            v_add_f32 v{KR+1}, v{KR+1}, v{KR+13}
            v_cvt_pk_bf16_f32 v{KR}, v{KR}, v{KR+1}
            v_min_u32 v{KR}, -2, v{KR}
            s_mov_b32 exec_hi, 0
            buffer_store_dword v{KR}, v{T+2}, {srd(SRD_WS)}, s10 offen sc1 ; c:MB1""")
            self.pt("end")
            if kind == "Q": e("s_mov_b64 exec, -1\ns_mov_b32 s4, s68\ns_cmp_lt_u32 s3, 4\ns_cbranch_scc1 L_ATAIL")
            self.stamp_out(100)
            e("s_endpgm")

    X_MAX, X_P, X_L, X_CNT = 0, 2048, 20480, 24576

    def row_addr(self, dst, t):
        self.e(f"""v_and_b32 v{t}, 3, v0
        v_lshlrev_b32 v{t}, 2, v{t}
        v_bfe_u32 v{t+1}, v0, 2, 2
        v_or_b32 v{t}, v{t}, v{t+1}
        v_lshrrev_b32 v{t+1}, 5, v0
        v_xor_b32 v{t}, v{t}, v{t+1}
        v_lshlrev_b32 v{t}, 4, v{t}
        v_and_b32 v{t+1}, 31, v0
        v_lshl_add_u32 v{dst}, v{t+1}, 10, v{t}""")

    X_AL = 22528

    def qk(self, rnd, S, FR, A, TA, creg):
        e = self.e
        seq = [(i, 2 * qp + q) for qp in range(2) for i in range(8) for q in range(2)]
        ks = lambda o: seq[o][0] + 8 * seq[o][1]
        qreg = lambda o: FR + 4 * o if o < 4 else creg(ks(o - 4))
        dst = qreg if rnd == 0 else (lambda o: FR + 16 + 4 * (o & 3))
        tg = {}
        e.ds_reset()
        def rd(o):
            if o & 1 == 0: e(f"v_xor_b32 v{TA+((o>>1)&1)}, {seq[o][0] << 5}, v{A}")
            tg[o] = e.ds(f"ds_read_b128 {vr(dst(o),4)}, v{TA+((o>>1)&1)} offset:{256*seq[o][1]}")
        for o in range(3): rd(o)
        for o in range(32):
            if o + 3 < 32: rd(o + 3)
            e.dswait(tg[o])
            c = creg(ks(o)) if rnd == 0 else dst(o)
            e(f"v_mfma_f32_32x32x16_bf16 {vr(S,16)}, {vr(c,4)}, {vr(qreg(o),4)}, {vr(S,16) if o else 0}")
            if rnd == 0 and o == 16: e("s_barrier")

    def stat_addr(self, d, t):
        self.e(f"""v_and_b32 v{d}, 15, v0
        v_lshlrev_b32 v{d}, 5, v{d}
        v_bfe_u32 v{t}, v0, 4, 1
        v_lshl_add_u32 v{d}, v{t}, 10, v{d}
        v_add_u32 v{d}, {X}, v{d}""")

    def softmax(self, rnd, S, P, M, LS, T, lw):
        e = self.e
        self.max3_chain("f32", T, range(S, S + 16))
        self.swap_red("v_max_f32", T, T + 1, (32,))
        e(f"""ds_write_b32 v{T+3}, v{T} offset:{self.X_MAX+16*rnd}
        s_waitcnt lgkmcnt(0)
        s_barrier
        ds_read_b128 {vr(P,4)}, v{T+2} offset:{self.X_MAX+16*rnd}""")
        if rnd == 0:
            e(f"""v_mov_b32 v{T}, {X+self.X_CNT}
            v_mov_b32 v{T+1}, 0
            ds_write2_b32 v{T}, v{T+1}, v{T+1} offset0:0 offset1:16
            ds_write2_b32 v{T}, v{T+1}, v{T+1} offset0:32 offset1:48""")
        e(f"""s_lshl_b32 s10, s{lw}, 11
        s_add_u32 s10, s10, {X+self.X_P+8192*rnd}
        v_lshl_add_u32 v{T+1}, v0, 4, s10
        s_waitcnt lgkmcnt(0)""")
        if rnd == 0:
            self.max3_chain("f32", M, range(P, P + 4))
            e(f"v_mul_f32 v{M}, s{S_SC}, v{M}")
        else:
            self.max3_chain("f32", T, range(P, P + 4))
            e(f"""v_mul_f32 v{T}, s{S_SC}, v{T}
            v_max_f32 v{T}, v{T}, v{M}
            v_sub_f32 v{M}, v{M}, v{T}
            v_exp_f32 v{P}, v{M}
            v_mov_b32 v{M}, v{T}
            v_mul_f32 v{LS}, v{LS}, v{P}""")
        for r in range(16): e(f"v_fma_f32 v{S+r}, v{S+r}, s{S_SC}, -v{M}")
        for r in range(16): e(f"v_exp_f32 v{S+r}, v{S+r}")
        for r in range(8): e(f"v_cvt_pk_bf16_f32 v{P+r}, v{S+2*r}, v{S+2*r+1}")
        e(f"ds_write_b128 v{T+1}, {vr(P,4)}\nds_write_b128 v{T+1}, {vr(P+4,4)} offset:1024")
        if rnd == 0:
            e("s_waitcnt lgkmcnt(0)\ns_barrier")
            self.tree("v_add_f32", S, 16, 1)
            e(f"v_mov_b32 v{LS}, v{S}")
        else:
            self.tree("v_add_f32", S, 16, 1)
            e(f"v_add_f32 v{S}, v{S}, v{LS}")
            self.swap_red("v_add_f32", S, T, (32,))
            e(f"ds_write_b32 v{T+3}, v{S} offset:{self.X_L}\ns_waitcnt lgkmcnt(0)\ns_barrier")

    VL, VW, TMP, SEL, BLO, BHI, T, U, W, G, WUV, AC0, AC1, PA, XR = 1, 2, 3, 4, 8, 9, 10, 16, 32, 96, 160, 224, 228, 232, 244
    A_CW, A_CR, A_MB = 13, 14, 15
    S_LW, S_PART, S_PRIV, S_MBJ = 5, 6, 7, 8

    def vw_addr(self):
        VW, T = self.VW, self.T
        self.e(f"""v_lshrrev_b32 v{VW}, 4, v0
        v_lshlrev_b32 v{VW}, 14, v{VW}
        v_and_b32 v{T+1}, 15, v0
        v_lshl_add_u32 v{VW}, v{T+1}, 4, v{VW}""")

    def tail_setup(self):
        VL, T, A_CW, A_CR, A_MB = self.VL, self.T, self.A_CW, self.A_CR, self.A_MB
        self.e(f"""v_lshlrev_b32 v{VL}, 4, v0
        s_lshl_b32 s{self.S_PRIV}, s3, 11
        s_lshl_b32 s{self.S_MBJ}, s4, 14
        s_add_u32 s{self.S_MBJ}, s{self.S_MBJ}, {MB}
        v_lshl_add_u32 v{A_CW}, v0, 2, s{self.S_PRIV}
        v_bfe_u32 v{A_CR}, v0, 3, 1
        v_lshlrev_b32 v{A_CR}, 7, v{A_CR}
        v_lshrrev_b32 v{T+1}, 4, v0
        v_lshl_add_u32 v{A_CR}, v{T+1}, 5, v{A_CR}
        v_add_u32 v{A_CR}, s{self.S_PRIV}, v{A_CR}
        v_lshrrev_b32 v{A_MB}, 5, v0
        v_lshlrev_b32 v{A_MB}, 17, v{A_MB}
        v_bfe_u32 v{T+1}, v0, 3, 1
        v_lshl_add_u32 v{A_MB}, v{T+1}, 14, v{A_MB}
        v_and_b32 v{T+1}, 7, v0
        v_lshl_add_u32 v{A_MB}, v{T+1}, 4, v{A_MB}""")
        self.selectors(self.SEL, self.BLO, self.BHI, self.TMP)

    def wload(self, s, t0=0, t1=16):
        e = self.e
        if "now" in self.x or t0 >= t1: return
        e(f"s_lshl_b32 s10, s4, 16\ns_lshl_b32 s11, s{self.S_LW}, 8\ns_add_u32 s10, s10, s11")
        if t0: e(f"s_add_u32 s10, s10, {1024 * t0}")
        for t in range(t0, t1):
            e.mem(f"buffer_load_dwordx4 {vr(self.W+4*t,4)}, v{self.VW}, {srd(s)}, s10 offen offset:{1024*(t&3)} nt")
            if t & 3 == 3: e("s_add_u32 s10, s10, 4096")

    def a_compute(self):
        e = self.e; e.vm = 0
        AC, AT, AQ, M, TA, T = 1, 2, 3, 4, 6, 8
        FR, S, O, PV = 16, 48, 64, 128
        e("L_AC:")
        self.role = "AC"
        self.pt("start")
        e(f"v_lshlrev_b32 v{T}, 4, v0\ns_waitcnt lgkmcnt(0)")
        self.epoch_load()
        self.mk_srd(SRD_WS, P_WS, WS_USED); self.mk_srd(SRD_D, P_BWO, 4 << 20); self.mk_srd(SRD_E, P_OUT, 4096)
        for r in range(4): e(f"v_mov_b32 v{FR+r}, -1")
        skip = e.lab("L_skip"); two = e.lab("L_two")
        e(f"""s_lshl_b32 s10, s4, 14
        s_lshl_b32 s11, s3, 12
        s_add_u32 s10, s10, s11
        s_add_u32 s10, s10, {MB}
        s_cmp_eq_u32 s3, 0
        s_cbranch_scc1 {two}
        s_cmp_eq_u32 s3, 3
        s_cbranch_scc1 {skip}
        s_cmp_ge_u32 s4, 32
        s_cbranch_scc1 {skip}
        buffer_store_dwordx4 {vr(FR,4)}, v{T}, {srd(SRD_WS)}, s10 offen offset:3072 sc1 ; c:CLR
        {two}:""")
        for i in range(3): e(f"buffer_store_dwordx4 {vr(FR,4)}, v{T}, {srd(SRD_WS)}, s10 offen offset:{1024*i} sc1 ; c:CLR")
        e(f"{skip}:")
        e(f"s_mov_b32 s{S_SC}, {f2u(SCALE):#x}\ns_mov_b32 s{S_SPIN}, {SPIN}")
        self.row_addr(AC, T + 1)
        e(f"""v_add_u32 v{AQ}, {X}, v{AC}
        s_lshl_b32 s10, s3, 15
        v_add_u32 v{AC}, s10, v{AC}
        v_lshrrev_b32 v{T+2}, 5, v0
        v_bfe_u32 v{T+1}, v0, 2, 2
        v_lshl_add_u32 v{T+3}, v{T+2}, 2, v{T+1}
        v_lshlrev_b32 v{AT}, 10, v{T+3}
        v_bfe_u32 v{T+3}, v0, 4, 1
        v_lshlrev_b32 v{T+3}, 1, v{T+3}
        v_bfe_u32 v{T+4}, v0, 1, 1
        v_or_b32 v{T+3}, v{T+3}, v{T+4}
        v_xor_b32 v{T+3}, v{T+3}, v{T+2}
        v_lshl_add_u32 v{T+3}, v{T+1}, 2, v{T+3}
        v_lshl_add_u32 v{AT}, v{T+3}, 4, v{AT}
        v_and_b32 v{T+3}, 1, v0
        v_lshl_add_u32 v{AT}, v{T+3}, 3, v{AT}
        s_lshl_b32 s10, s3, 8
        v_add_u32 v{AT}, s10, v{AT}""")
        self.epoch_tag()
        def tr_addr():
            for k in range(8):
                e(f"v_xor_b32 v{S+k}, {(2*k) << 4}, v{AT}")
                if k & 1: e(f"v_add_u32 v{S+k}, 8192, v{S+k}")
        def tr_step():
            for k in range(8): e(f"v_add_u32 v{S+k}, 65536, v{S+k}")
        def tr_ct(u, ct):
            for hh in range(2):
                last = e.ds(f"ds_read_b64_tr_b16 {vr(PV+16*(u&7)+4*ct+2*hh,2)}, v{S+2*ct+hh} offset:{32768*((u>>1)&1)+16384*(u&1)}")
            return last
        tr_addr()
        e(f"""s_and_b32 s9, s4, 7
        s_lshl_b32 s9, s9, 11
        s_add_u32 s9, s9, {FA}
        v_lshlrev_b32 v{FR+10}, 3, v0""")
        def qc_load():
            for i in range(3): e(f"buffer_load_dwordx2 {vr(FR+4+2*i,2)}, v{FR+10}, {srd(SRD_WS)}, s9 offen offset:{512*i} sc1 ; c:LQC")
        def q_load():
            for i in range(8): e(f"buffer_load_dwordx4 {vr(O+4*i,4)}, v{T}, {srd(SRD_WS)}, s{70+(i>>2)} offen offset:{1024*(i&3)} sc1 ; c:LQA")
        e(f"""s_lshr_b32 s70, s4, 5
        s_lshl_b32 s70, s70, 15
        s_lshl_b32 s71, s3, 13
        s_add_u32 s70, s70, s71
        s_add_u32 s70, s70, {QAP}
        s_add_u32 s71, s70, 4096""")
        qat = self.o["qat"]
        def flags_then_q():
            top, done = e.lab("L_spin"), e.lab("L_ok")
            e(f"""{top}:
            s_waitcnt vmcnt(0)
            v_cmp_ne_u64 vcc, s[{TAG}:{TAG+1}], {vr(FR+4,2)}
            v_cmp_ne_u64 s[12:13], s[{TAG}:{TAG+1}], {vr(FR+6,2)}
            s_or_b64 vcc, vcc, s[12:13]
        v_cmp_ne_u64 s[12:13], s[{TAG}:{TAG+1}], {vr(FR+8,2)}
        s_or_b64 vcc, vcc, s[12:13]
            s_cbranch_vccz {done}""")
            qc_load()
            self.spin_tail(top, done)
            self.pt("qc")
            q_load()
        for t in range(4):
            if t == 1: e("s_waitcnt vmcnt(0)")
            e("s_barrier")
            self.pt(f"t{t}")
            if t == 1:
                skip = self.only_wave(0)
                e("s_lshr_b32 s12, s4, 3\ns_and_b32 s13, s4, 7\ns_add_u32 s13, s13, 8")
                self.post_b(12, 13, FR)
                self.post_a(4, 1024, FR + 12)
                e(f"{skip}:")
            if t == self.o["fat"]: qc_load()
            if t == qat: flags_then_q()
            if t == 2: tr_step()
            e.ds_reset()
            for u in (2 * t, 2 * t + 1):
                for ct in range(4): tr_ct(u, ct)
            e("s_waitcnt lgkmcnt(0)")
        e("s_barrier")
        self.pt("half")
        if qat == 4: flags_then_q()
        e(f"""s_lshl_b32 s12, s3, 13
        s_add_u32 s12, s12, {X}
        s_and_b32 s13, s3, 1
        s_lshl_b32 s13, s13, 5
        v_xor_b32 v{T+1}, s13, v{T}
        v_add_u32 v{T+1}, s12, v{T+1}""")
        top, done = e.lab("L_spin"), e.lab("L_ok")
        e(f"{top}:\ns_waitcnt vmcnt(0)")
        self.max3_chain("u32", T + 2, range(O, O + 16)); self.max3_chain("u32", T + 3, range(O + 16, O + 32))
        e(f"v_max_u32 v{T+2}, v{T+2}, v{T+3}\nv_cmp_eq_u32 vcc, -1, v{T+2}\ns_cbranch_vccz {done}")
        self.pt("qr")
        q_load()
        self.spin_tail(top, done)
        self.pt("qd")
        for i in range(8):
            sw = ((i & 3) << 2) | (i >> 2)
            e(f"v_xor_b32 v{TA+(i&1)}, {sw << 4}, v{T+1}\nds_write_b128 v{TA+(i&1)}, {vr(O+4*i,4)} offset:{1024*i}")
        e("s_waitcnt lgkmcnt(0)\ns_barrier")
        self.pt("b1")
        e(f"v_add_u32 v{T}, {X+self.X_P}, v{T}")
        self.stat_addr(T + 3, T + 1)
        e(f"""s_lshl_b32 s10, s3, 7
        s_add_u32 s10, s10, {X+self.X_AL}
        v_and_b32 v{T+1}, 31, v0
        v_lshl_add_u32 v{AQ}, v{T+1}, 2, s10
        v_lshrrev_b32 v{T+1}, 5, v0
        v_lshl_add_u32 v{AC}, v{T+1}, 4, s10""")
        tr_addr()
        def pv(rnd):
            e.ds_reset()
            pt_ = [e.ds(f"ds_read_b128 {vr(FR+4*u,4)}, v{T} offset:{8192*rnd+1024*u}") for u in range(8)]
            for u in range(8):
                e.dswait(pt_[u])
                for ct in range(4):
                    e(f"v_mfma_f32_32x32x16_bf16 {vr(O+16*ct,16)}, {vr(FR+4*u,4)}, {vr(PV+16*u+4*ct,4)}, {vr(O+16*ct,16) if u or rnd else 0}")
        e("s_barrier\ns_barrier\ns_barrier")
        self.pt("bp0")
        pv(0)
        e("s_barrier")
        self.pt("bd")
        e.ds_reset()
        for u in range(8):
            if u == 4: tr_step()
            for ct in range(4): tr_ct(u, ct)
        e(f"""s_waitcnt lgkmcnt(0)
        s_barrier
        ds_read_b128 {vr(FR,4)}, v{T+3} offset:{self.X_MAX}
        ds_read_b128 {vr(FR+4,4)}, v{T+3} offset:{self.X_MAX+16}
        s_waitcnt lgkmcnt(0)""")
        self.max3_chain("f32", T + 1, range(FR, FR + 4))
        self.max3_chain("f32", M, [T + 1] + list(range(FR + 4, FR + 8)))
        e(f"""v_mul_f32 v{T+1}, s{S_SC}, v{T+1}
        v_mul_f32 v{M}, s{S_SC}, v{M}
        v_sub_f32 v{T+1}, v{T+1}, v{M}
        v_exp_f32 v{T+1}, v{T+1}
        ds_write_b32 v{AQ}, v{T+1}""")
        for q in range(4): e(f"ds_read_b128 {vr(S+4*q,4)}, v{AC} offset:{32*q}")
        e("s_waitcnt lgkmcnt(0)")
        for ct in range(4):
            for r in range(16): e(f"v_mul_f32 v{O+16*ct+r}, v{O+16*ct+r}, v{S+r}")
        e("s_barrier")
        self.pt("bp")
        pv(1)
        self.pt("pv")
        e(f"""v_lshrrev_b32 v{T}, 5, v0
        v_lshlrev_b32 v{T}, 18, v{T}
        v_bfe_u32 v{T+1}, v0, 4, 1
        v_lshl_add_u32 v{T}, v{T+1}, 16, v{T}
        v_and_b32 v{T+1}, 15, v0
        v_lshl_add_u32 v{T}, v{T+1}, 4, v{T}
        s_lshl_b32 s10, s4, 10
        s_lshl_b32 s11, s3, 8
        s_add_u32 s10, s10, s11
        s_add_u32 s10, s10, {AP}""")
        for r in range(16):
            d = FR + 2 * r
            e(f"v_cvt_pk_bf16_f32 v{d}, v{O+r}, v{O+16+r}\nv_cvt_pk_bf16_f32 v{d+1}, v{O+32+r}, v{O+48+r}")
            if r >= 3 and r & 1:
                k = FR + 2 * (r - 3)
                e(f"v_permlane16_swap_b32 v{k}, v{k+2}\nv_permlane16_swap_b32 v{k+1}, v{k+3}")
                e(f"buffer_store_dwordx4 {vr(k,4)}, v{T}, {srd(SRD_WS)}, s10 offen sc1 ; c:AP")
                e(f"s_add_u32 s10, s10, {65536 * (6 if (r - 3) & 2 else 2)}")
        k = FR + 28
        e(f"v_permlane16_swap_b32 v{k}, v{k+2}\nv_permlane16_swap_b32 v{k+1}, v{k+3}")
        e(f"buffer_store_dwordx4 {vr(k,4)}, v{T}, {srd(SRD_WS)}, s10 offen sc1 ; c:AP")
        skip = self.only_wave(0)
        e(f"""ds_read_b128 {vr(S,4)}, v{T+3} offset:{self.X_L}
        v_lshlrev_b32 v{T+1}, 3, v0
        s_lshl_b32 s10, s4, 8
        s_add_u32 s10, s10, {AST}
        s_waitcnt lgkmcnt(0)""")
        self.tree("v_add_f32", S, 4, 1)
        e(f"""v_mov_b32 v{S+1}, v{S}
        v_mov_b32 v{S}, v{M}
        s_mov_b32 exec_hi, 0
        buffer_store_dwordx2 {vr(S,2)}, v{T+1}, {srd(SRD_WS)}, s10 offen sc1
        s_mov_b64 exec, -1
        {skip}:
        s_mov_b32 s5, s3
        s_mov_b32 s6, 1""")
        skip = e.lab("L_skip")
        e(f"""v_mov_b32 v100, {X+self.X_CNT+64}
        v_mov_b32 v101, 1
        s_mov_b64 exec, 1
        s_waitcnt vmcnt(0)
        ds_add_rtn_u32 v102, v100, v101
        s_waitcnt lgkmcnt(0)
        v_cmp_eq_u32 vcc, 3, v102
        s_mov_b64 exec, -1
        s_cbranch_vccz {skip}""")
        if self.o["wb"]: e("buffer_wbl2 sc1\ns_waitcnt vmcnt(0)")
        self.post_a(4, 1536, 96)
        e(f"{skip}:")
        self.pt("b9")
        self.vw_addr()
        self.tail_setup()
        self.masks(0x03030303, 0x03030303)
        self.wload(SRD_D)
        self.lds_wait(X + self.X_CNT + 64, 100)
        e(f"""s_mov_b32 s{S_SPIN}, {SPIN * 20}
        v_lshlrev_b32 v{self.A_CW}, 2, v0
        v_subrev_u32 v{self.A_CR}, s{self.S_PRIV}, v{self.A_CR}
        s_cmp_eq_u32 s3, 0
        s_cbranch_scc1 L_BPRE
        v_mov_b32 v100, {X + self.X_CNT + 128}
        s_waitcnt vmcnt(0)""")
        top = e.lab("L_spin")
        XR = self.XR
        e(f"""{top}:
        ds_read_b32 v101, v100
        ds_read_b128 {vr(XR,4)}, v{self.A_CR} offset:1024
        ds_read_b128 {vr(XR+4,4)}, v{self.A_CR} offset:1040
        s_waitcnt lgkmcnt(0)
        v_cmp_ne_u32 vcc, 0, v101
        s_cbranch_vccnz L_CORE2
        s_sub_u32 s{S_SPIN}, s{S_SPIN}, 1
        s_cbranch_scc0 {top}
        s_branch L_CORE2
        L_BPRE:
        s_mov_b32 s{S_SPIN}, {SPIN}
        v_mov_b32 v100, {X + self.X_CNT + 128}
        v_mov_b32 v101, 1""")
        self.b_pre()

    def b_pre(self):
        e = self.e
        T, U, G, A_CW, S_PRIV, S_MBJ = self.T, self.U, 104, self.A_CW, self.S_PRIV, self.S_MBJ
        e(f"""v_bfe_u32 v{T}, v0, 4, 1
        v_mul_u32_u24 v{T}, 6144, v{T}
        v_and_b32 v{T+1}, 15, v0
        v_lshl_add_u32 v{T}, v{T+1}, 6, v{T}
        s_lshr_b32 s10, s4, 3
        s_mul_i32 s10, s10, 768
        s_bfe_u32 s11, s4, 0x20001
        s_lshl_b32 s11, s11, 4
        s_add_u32 s10, s10, s11
        s_add_u32 s10, s10, {BS}
        s_mov_b32 s12, 0x0fff0fff
        s_mov_b32 s13, 0
        v_mov_b32 v{U+5}, 0xff
        s_mov_b64 exec, s[12:13]""")
        top, done = e.lab("L_spin"), e.lab("L_ok")
        e(f"""{top}:
        buffer_load_dwordx4 {vr(U,4)}, v{T}, {srd(SRD_WS)}, s10 offen sc1
        s_waitcnt vmcnt(0)""")
        self.tag_check(U, 2, U + 4)
        e(f"v_cmp_ne_u32 vcc, 0, v{U+4}\ns_cbranch_vccz {done}")
        self.spin_tail(top, done, self.o["sl_bs"])
        e(f"s_mov_b64 exec, -1\nv_mov_b32 v{U+1}, v{U+2}")
        self.pt("bstat")
        e(f"""v_mov_b32 v{U+2}, 0xff800000
        v_cndmask_b32 v{U}, v{U+2}, v{U}, s[12:13]
        v_cndmask_b32 v{U+1}, 0, v{U+1}, s[12:13]
        v_mov_b32 v{U+2}, v{U}""")
        self.row_red("v_max_f32", U + 2, (1, 2, 4, 8))
        e(f"v_sub_f32 v{U}, v{U}, v{U+2}\nv_exp_f32 v{U}, v{U}\nv_mul_f32 v{U+1}, v{U}, v{U+1}")
        self.row_red("v_add_f32", U + 1, (1, 2, 4, 8))
        WG = 160
        e(f"""v_rcp_f32 v{U+1}, v{U+1}
        v_mul_f32 v{U}, v{U}, v{U+1}
        ds_write_b32 v{A_CW}, v{U} offset:1536
        v_lshrrev_b32 v{T}, 5, v0
        v_lshl_add_u32 v{T+1}, v{T}, 6, s{S_PRIV}
        v_mul_u32_u24 v{T}, 1536, v{T}
        v_and_b32 v{T+2}, 31, v0
        v_lshl_add_u32 v{T}, v{T+2}, 2, v{T}
        s_mov_b32 s12, 0xffff0000
        s_waitcnt lgkmcnt(0)""")
        for q in range(3): e(f"ds_read_b128 {vr(WG+4*q,4)}, v{T+1} offset:{1536+16*q}")
        top, done = e.lab("L_spin"), e.lab("L_ok")
        e(f"{top}:")
        self.pt("or")
        for sp in range(12): e(f"buffer_load_dword v{G+sp}, v{T}, {srd(SRD_WS)}, s{S_MBJ} offen offset:{128*sp} sc1")
        e("s_waitcnt vmcnt(0) lgkmcnt(0)")
        self.max3_chain("u32", T + 1, range(G, G + 12))
        e(f"v_cmp_eq_u32 vcc, -1, v{T+1}\ns_cbranch_vccz {done}")
        self.spin_tail(top, done, self.o["sl_bo"])
        self.pt("bo")
        for sp in range(12): e(f"v_lshlrev_b32 v{G+12+sp}, 16, v{G+sp}\nv_and_b32 v{G+sp}, s12, v{G+sp}")
        e(f"v_mul_f32 v{U}, v{G+12}, v{WG}\nv_mul_f32 v{U+1}, v{G}, v{WG}\nv_mul_f32 v{U+2}, v{G+13}, v{WG+1}\nv_mul_f32 v{U+3}, v{G+1}, v{WG+1}")
        for sp in range(2, 12):
            k = 2 * (sp & 1)
            e(f"v_fmac_f32 v{U+k}, v{G+12+sp}, v{WG+sp}\nv_fmac_f32 v{U+k+1}, v{G+sp}, v{WG+sp}")
        e(f"""v_add_f32 v{U}, v{U}, v{U+2}
        v_add_f32 v{U+1}, v{U+1}, v{U+3}
        v_cvt_pk_bf16_f32 v{U}, v{U}, v{U+1}
        ds_write_b32 v{A_CW}, v{U} offset:1024
        ds_write_b32 v100, v101
        s_branch L_CORE1""")

    def a_loader(self):
        e = self.e; e.vm = 0
        VL, VW, TMP, SEL, BLO, BHI, T, U, W, G, WUV, AC0, AC1, PA, XR = (self.VL, self.VW, self.TMP, self.SEL, self.BLO,
            self.BHI, self.T, self.U, self.W, self.G, self.WUV, self.AC0, self.AC1, self.PA, self.XR)
        S_LW, S_PART, S_PRIV, S_MBJ = self.S_LW, self.S_PART, self.S_PRIV, self.S_MBJ
        XO, S, FR, AQ, AC, TA, M = 232, 16, 224, 4, 5, 6, 8
        CNT = X + self.X_CNT
        creg = lambda ks: (W + 4 * ks) if ks < 16 else (WUV + 4 * (ks - 16))
        e("L_AL:")
        self.role = "AL"
        self.pt("start")
        e(f"""s_sub_u32 s{S_LW}, s3, 4
        s_and_b32 s10, s3, 1
        s_lshl_b32 s10, s10, 5
        v_lshlrev_b32 v{VL}, 4, v0
        v_xor_b32 v{T}, s10, v{VL}""")
        for i in range(8): e(f"v_xor_b32 v{XO+i}, {(((i & 3) << 2) | (i >> 2)) << 4}, v{T}")
        e(f"""s_lshl_b32 s66, s4, 18
        s_lshl_b32 s67, s{S_LW}, 13
        s_add_u32 s66, s66, s67
        s_waitcnt lgkmcnt(0)""")
        self.mk_srd(SRD_A, P_CKV, 16 << 20)
        dma = []
        def dma_tile(t):
            for r in range(8):
                if r & 3 == 0: e("s_mov_b32 m0, s67")
                last = e.mem(f"buffer_load_dwordx4 v{XO+r}, {srd(SRD_A)}, s66 offen offset:{1024*(r&3)} nt lds")
                if r == 3: e("s_add_u32 s66, s66, 4096\ns_add_u32 s67, s67, 4096")
                if r == 7: e(f"s_add_u32 s66, s66, 28672\ns_add_u32 s67, s67, {28672 if t != 3 else (28672 - 131072) & 0xffffffff:#x}")
            dma.append(last)
        a0 = self.o["a0"]
        for t in range(a0): dma_tile(t)
        if self.stamps: self.mk_srd(SRD_WS, P_WS, WS_USED)
        self.row_addr(AC, T)
        e(f"""v_add_u32 v{AQ}, {X}, v{AC}
        s_lshl_b32 s10, s{S_LW}, 15
        v_add_u32 v{AC}, s10, v{AC}
        s_mov_b32 s{S_SC}, {f2u(SCALE):#x}""")
        for t in range(5):
            if t < 4: e.wait(dma[t])
            e("s_barrier")
            self.pt(f"bar{t}")
            while len(dma) < min(8, a0 + t + 1, 4 + t) or (t == 4 and len(dma) < 8): dma_tile(len(dma))
            self.pt(f"iss{t}")
            if t < 4:
                skip = self.only_wave(4 + t)
                for i in range(8):
                    e(f"v_xor_b32 v{TA+(i&1)}, {i << 5}, v{AC}")
                    for q in range(4): e(f"ds_read_b128 {vr(creg(i+8*q),4)}, v{TA+(i&1)} offset:{256*q}")
                    if i & 1: e("s_waitcnt lgkmcnt(4)")
                e(f"s_waitcnt lgkmcnt(0)\n{skip}:")
        self.stat_addr(T + 2, T + 3)
        e(f"s_lshl_b32 s10, s{S_LW}, 2\nv_add_u32 v{T+3}, s10, v{T+2}\ns_barrier")
        self.qk(0, S, FR, AQ, TA, creg)
        self.softmax(0, S, FR + 16, M, TMP, T, S_LW)
        e("s_waitcnt vmcnt(0)")
        self.pt("dma")
        e("s_barrier")
        self.qk(1, S, FR, AC, TA, creg)
        self.softmax(1, S, FR + 16, M, TMP, T, S_LW)
        pv = self.o["pv"]
        if pv:
            npt = self.o["pb"]; assert self.o["pa"] == npt
            self.mk_srd(SRD_B, P_BV, 32 << 20)
            e(f"""s_lshr_b32 s10, s4, 3
            s_lshl_b32 s10, s10, 1
            s_lshr_b32 s11, s{S_LW}, 1
            s_add_u32 s10, s10, s11
            s_lshl_b32 s10, s10, 21
            s_and_b32 s11, s4, 7
            s_mul_i32 s11, s11, {8 * npt}
            s_and_b32 s12, s{S_LW}, 1
            s_lshl_b32 s12, s12, 1
            s_add_u32 s12, s12, {self.o['pvw']}
            s_mul_i32 s12, s12, {npt}
            s_add_u32 s11, s11, s12
            s_add_u32 s11, s11, {npt - pv}
            s_lshl_b32 s11, s11, 12
            s_add_u32 s10, s10, s11
            s_add_u32 s11, s10, {4096 * npt}""")
            if self.o["pvwait"]: self.lds_wait(X + self.X_CNT + 64, T)
            k = 0
            for t in range(pv):
                for sr in (10, 11):
                    for j in range(4):
                        if k >= self.o["pvwin"]: e(f"s_waitcnt vmcnt({self.o['pvwin'] - 1})")
                        e(f"buffer_load_dwordx4 {vr(32 + 4 * k, 4)}, v{VL}, {srd(SRD_B)}, s{sr} offen offset:{1024 * j} nt"); k += 1
                    e(f"s_add_u32 s{sr}, s{sr}, 4096")
            e("s_waitcnt vmcnt(0)")
        self.pt("end")
        self.stamp_out(32)
        e("s_endpgm")

    def a_tail(self):
        e = self.e; e.vm = 0
        VL, VW, TMP, SEL, BLO, BHI, T, U, W, G, AC0, AC1, PA, XR = (self.VL, self.VW, self.TMP, self.SEL, self.BLO,
            self.BHI, self.T, self.U, self.W, self.G, self.AC0, self.AC1, self.PA, self.XR)
        S_LW, S_PART, S_PRIV, S_MBJ = self.S_LW, self.S_PART, self.S_PRIV, self.S_MBJ
        UV, GA, L_W = 96, 160, 32768
        e("L_ATAIL:")
        self.role = "Q"
        e(f"s_mov_b32 s{S_LW}, s3\ns_mov_b32 s{S_PART}, 0\ns_mov_b32 s{S_SPIN}, {SPIN}")
        self.vw_addr()
        self.tail_setup()
        e(f"""s_lshl_b32 s10, s3, 14
        s_add_u32 s10, s10, {L_W}
        v_add_u32 v{T}, s10, v{VL}
        v_add_u32 v{T+1}, 65536, v{T}""")
        e.ds_reset()
        for t in range(16): e.ds(f"ds_read_b128 {vr(UV+4*t,4)}, v{T} offset:{1024*t}")
        for t in range(16): e.ds(f"ds_read_b128 {vr(W+4*t,4)}, v{T+1} offset:{1024*t}")
        e("s_waitcnt lgkmcnt(0)\ns_barrier")
        self.pt('free')
        self.poll_a(1536, U)
        self.pt("apf")
        e.vm = 0
        e(f"""s_lshr_b32 s12, s4, 1
        s_lshl_b32 s10, s12, 3
        s_add_u32 s10, s10, {AST}
        v_lshlrev_b32 v{T}, 8, v0""")
        st = e.mem(f"buffer_load_dwordx2 {vr(U,2)}, v{T}, {srd(SRD_WS)}, s10 offen sc1")
        e(f"""s_lshl_b32 s10, s12, 16
        s_lshl_b32 s11, s{S_LW}, 8
        s_add_u32 s10, s10, s11
        s_add_u32 s10, s10, {AP}""")
        g = []
        for t in range(16):
            g.append(e.mem(f"buffer_load_dwordx4 {vr(GA+4*t,4)}, v{VW}, {srd(SRD_WS)}, s10 offen offset:{1024*(t&3)} sc1 ; c:LAP"))
            if t & 3 == 3: e("s_add_u32 s10, s10, 4096")
        self.masks(0x00030003, 0x03000300)
        e(f"""v_lshl_add_u32 v{T}, v0, 1, s{S_PRIV}
        v_lshrrev_b32 v{T+1}, 4, v0
        v_lshl_add_u32 v{T+1}, v{T+1}, 5, s{S_PRIV}""")
        e.wait(st)
        e(f"v_mov_b32 v{U+2}, v{U}")
        self.row_red("v_max_f32", U + 2, (1, 2, 4, 8)); self.swap_red("v_max_f32", U + 2, TMP, (16,))
        e(f"v_sub_f32 v{U}, v{U}, v{U+2}\nv_exp_f32 v{U}, v{U}\nv_mul_f32 v{U+1}, v{U}, v{U+1}")
        self.row_red("v_add_f32", U + 1, (1, 2, 4, 8)); self.swap_red("v_add_f32", U + 1, TMP, (16,))
        e(f"""v_rcp_f32 v{U+1}, v{U+1}
        v_mul_f32 v{U}, v{U}, v{U+1}
        v_cvt_pk_bf16_f32 v{U}, v{U}, v{U}
        ds_write_b16 v{T}, v{U}
        s_waitcnt lgkmcnt(0)
        ds_read_b128 {vr(XR,4)}, v{T+1}
        ds_read_b128 {vr(XR+4,4)}, v{T+1} offset:16
        v_lshrrev_b32 v{T}, 5, v0
        v_lshlrev_b32 v{T}, 8, v{T}
        v_and_b32 v{T+1}, 15, v0
        v_lshl_add_u32 v{T}, v{T+1}, 1, v{T}
        v_bfe_u32 v{T+1}, v0, 4, 1
        v_lshl_add_u32 v{T}, v{T+1}, 5, v{T}
        v_add_u32 v{T}, s{S_PRIV}, v{T}
        v_bfe_u32 v{T+1}, v0, 3, 1
        v_lshlrev_b32 v{T+1}, 8, v{T+1}
        v_lshrrev_b32 v{T+2}, 4, v0
        v_lshl_add_u32 v{T+1}, v{T+2}, 6, v{T+1}
        v_bfe_u32 v{T+2}, v0, 2, 1
        v_lshl_add_u32 v{T+1}, v{T+2}, 5, v{T+1}
        v_add_u32 v{T+1}, s{S_PRIV}, v{T+1}
        s_waitcnt lgkmcnt(0)""")
        self.rws256(16, XR, GA, AC0, BLO, BHI, PA, g)
        self.pt("lat")
        e(f"""v_cvt_pk_bf16_f32 v{U}, v{AC0}, v{AC0+1}
        v_cvt_pk_bf16_f32 v{U+1}, v{AC0+2}, v{AC0+3}
        ds_write_b16 v{T}, v{U} offset:256
        ds_write_b16_d16_hi v{T}, v{U} offset:320
        ds_write_b16 v{T}, v{U+1} offset:384
        ds_write_b16_d16_hi v{T}, v{U+1} offset:448
        s_waitcnt lgkmcnt(0)
        ds_read_b128 {vr(XR,4)}, v{T+1} offset:256
        ds_read_b128 {vr(XR+4,4)}, v{T+1} offset:272""")
        for z in (0, 1, 4, 5, 8, 9): e(f"v_mov_b32 v{PA+z}, 0")
        e(f"""v_bfe_u32 v{T}, v0, 3, 1
        v_lshlrev_b32 v{T}, 9, v{T}
        v_lshrrev_b32 v{T+1}, 5, v0
        v_lshl_add_u32 v{T}, v{T+1}, 8, v{T}
        v_and_b32 v{T+1}, 7, v0
        v_lshl_add_u32 v{T}, v{T+1}, 5, v{T}
        s_lshl_b32 s10, s{S_LW}, 10
        v_add_u32 v{T}, s10, v{T}
        s_waitcnt lgkmcnt(0)""")
        self.rws128(16, XR, UV, AC0, AC1, SEL, PA)
        RED = 16384
        e(f"""s_mov_b32 exec_lo, 0xff0000ff
        s_mov_b32 exec_hi, 0xff0000ff
        ds_write_b128 v{T}, {vr(AC0,4)} offset:{RED}
        ds_write_b128 v{T}, {vr(AC1,4)} offset:{RED+16}
        s_mov_b64 exec, -1
        v_lshlrev_b32 v{T}, 3, v0""")
        self.masks(0x03030303, 0x03030303)
        e("s_waitcnt lgkmcnt(0)\ns_barrier")
        for i in range(8): e(f"ds_read_b64 {vr(U+2*i,2)}, v{T} offset:{RED+512*i}")
        e("s_waitcnt lgkmcnt(0)")
        self.tree("v_add_f32", U, 8, 2)
        self.pt("ctx")
        A_CW, A_CR, A_MB = self.A_CW, self.A_CR, self.A_MB
        e(f"""v_cvt_pk_bf16_f32 v{U}, v{U}, v{U+1}
        ds_write_b32 v{A_CW}, v{U} offset:1024
        L_CORE1:
        ds_read_b128 {vr(XR,4)}, v{A_CR} offset:1024
        ds_read_b128 {vr(XR+4,4)}, v{A_CR} offset:1040
        L_CORE2:
        s_lshl_b32 s10, s{S_LW}, 15
        s_lshl_b32 s11, s4, 7
        s_add_u32 s10, s10, s11
        s_lshl_b32 s11, s{S_PART}, 18
        s_add_u32 s10, s10, s11
        s_add_u32 s10, s10, {MB+MB_2}
        s_waitcnt lgkmcnt(0)""")
        self.pt("cx")
        self.rws256(16, XR, W, AC0, BLO, BHI, PA)
        e(f"""v_cvt_pk_bf16_f32 v{AC1}, v{AC0}, v{AC0+1}
        v_cvt_pk_bf16_f32 v{AC1+1}, v{AC0+2}, v{AC0+3}
        v_min_u32 v{AC1}, -2, v{AC1}
        v_min_u32 v{AC1+1}, -2, v{AC1+1}
        v_mov_b32 v{AC1+2}, v{AC1}
        v_mov_b32 v{AC1+3}, v{AC1+1}
        v_permlane16_swap_b32 v{AC1}, v{AC1+2}
        v_permlane16_swap_b32 v{AC1+1}, v{AC1+3}
        s_mov_b32 exec_lo, 0xffff
        s_mov_b32 exec_hi, 0xffff
        buffer_store_dwordx4 {vr(AC1,4)}, v{A_MB}, {srd(SRD_WS)}, s10 offen sc1
        s_mov_b64 exec, -1""")
        self.pt("core")
        e(f"""s_lshr_b32 s10, s4, 4
        s_cmp_lg_u32 s10, s{S_PART}
        s_cbranch_scc1 L_FINDONE
        s_cmp_lg_u32 s{S_LW}, 0
        s_cbranch_scc1 L_FINDONE
        s_add_u32 s10, s{S_MBJ}, {MB_2}
        s_add_u32 s11, s10, 4096
        v_mov_b32 v{T}, 0x3f803f80
        v_perm_b32 v{PA+2}, v{T}, v{T}, v{SEL}
        v_perm_b32 v{PA+3}, v{T}, v{T}, v{SEL+1}""")
        for z in (0, 1, 4, 5): e(f"v_mov_b32 v{PA+z}, 0")
        top, done = e.lab("L_spin"), e.lab("L_ok")
        e(f"{top}:")
        self.pt("fr")
        for i in range(8): e(f"buffer_load_dwordx4 {vr(G+4*i,4)}, v{VL}, {srd(SRD_WS)}, s{10+(i>>2)} offen offset:{1024*(i&3)} sc1")
        for i in range(8):
            e(f"s_waitcnt vmcnt({7-i})")
            e(f"v_mfma_f32_16x16x32_bf16 {vr(AC0,4)}, {vr(PA+2,4)}, {vr(G+4*i,4)}, {vr(AC0,4) if i else 0}")
            e(f"v_mfma_f32_16x16x32_bf16 {vr(AC1,4)}, {vr(PA,4)}, {vr(G+4*i,4)}, {vr(AC1,4) if i else 0}")
            if i == 0: e(f"v_max3_u32 v{T}, v{G}, v{G+1}, v{G+2}\nv_max_u32 v{T}, v{T}, v{G+3}")
            else: e(f"v_max3_u32 v{T}, v{T}, v{G+4*i}, v{G+4*i+1}\nv_max3_u32 v{T}, v{T}, v{G+4*i+2}, v{G+4*i+3}")
        e(f"v_cmp_eq_u32 vcc, -1, v{T}\ns_cbranch_vccz {done}")
        self.spin_tail(top, done)
        self.pt("fp")
        for r in range(8): self.row_red("v_add_f32", AC0 + r, (8,))
        for r in range(4): e(f"v_cvt_pk_bf16_f32 v{G+r}, v{AC0+2*r}, v{AC0+2*r+1}")
        e(f"""s_bfe_u32 s10, s4, 0x10003
        s_lshl_b32 s10, s10, 11
        s_and_b32 s11, s4, 7
        s_lshl_b32 s11, s11, 7
        s_add_u32 s10, s10, s11
        s_lshl_b32 s11, s{S_PART}, 10
        s_add_u32 s10, s10, s11
        s_mov_b64 exec, 0xff
        buffer_store_dwordx4 {vr(G,4)}, v{VL}, {srd(SRD_E)}, s10 offen
        s_cmp_lg_u32 s4, 16
        s_cbranch_scc1 L_FINDONE
        s_mov_b64 exec, 1
        v_mov_b32 v{T}, s{TAG}
        s_mov_b32 s10, {EPOCH}
        buffer_store_dword v{T}, off, {srd(SRD_WS)}, s10
        L_FINDONE:""")
        self.pt("fin")
        self.stamp_out(16)
        e("s_endpgm")

    def build(self):
        e = self.e
        e("""s_cmp_ge_u32 s2, 256
        s_cbranch_scc1 L_END
        s_load_dwordx16 s[16:31], s[0:1], 0
        s_load_dwordx8 s[32:39], s[0:1], 64
        s_load_dwordx4 s[40:43], s[0:1], 96
        v_lshrrev_b32 v1, 6, v0
        v_and_b32 v0, 63, v0
        v_readfirstlane_b32 s3, v1
        s_cmp_lt_u32 s2, 128
        s_cbranch_scc1 L_P
        s_cmp_ge_u32 s2, 192
        s_cbranch_scc1 L_Q
        s_sub_u32 s4, s2, 128
        s_cmp_lt_u32 s3, 4
        s_cbranch_scc1 L_AC""")
        self.a_loader()
        self.bside("P")
        self.bside("Q")
        self.a_tail()
        self.a_compute()
        e("L_END:\ns_endpgm")
        if "nobar" in self.x:
            i0 = e.L.index("L_P:"); i1 = e.L.index("L_AC:")
            e.L = e.L[:i0] + [l for l in e.L[i0:i1] if l != "s_barrier"] + e.L[i1:]
        if "nomath" in self.x:
            i0 = e.L.index("L_P:"); i1 = e.L.index("L_AC:")
            e.L = e.L[:i0] + [l for l in e.L[i0:i1] if not l.startswith(("v_mfma", "v_exp", "v_fma", "v_perm_", "v_add_f32", "v_mov_b32_dpp", "v_cvt", "v_max3"))] + e.L[i1:]
        if "noph1" in self.x:
            i0 = e.L.index("L_P:"); i1 = e.L.index("L_AC:")
            e.L = e.L[:i0] + [l for l in e.L[i0:i1] if not (l.startswith("buffer_load") and (srd(SRD_D) in l or srd(SRD_E) in l))] + e.L[i1:]
        for x in self.x:
            if x.startswith("c:"): e.L = [l for l in e.L if not l.endswith("; " + x)]
        for x in self.x:
            if x.startswith("allst="):
                m = x[6:].replace("+", " ")
                e.L = [l.replace(" sc1", " " + m if m else "") if l.startswith("buffer_store") else l for l in e.L]
        if "nost" in self.x:
            e.L = [l for l in e.L if not (l.startswith("buffer_store") and "sc1" in l)]
        if "nosc" in self.x:
            e.L = [l for l in e.L if not (l.startswith("buffer_load") and "sc1" in l)]
        if "noA" in self.x:
            for lab in ("L_AL:", "L_AC:"):
                i = e.L.index(lab); e.L.insert(i + 1, "s_endpgm")
        if "link" in self.x:
            e.L = [l.replace(", v1, s[48:51]", ", v2, s[48:51]") if l.startswith("buffer_load_dwordx4") and "lds" not in l else l for l in e.L]
        if self.o["wb"]: e.L = [l.replace(" sc1", "") if l.endswith("; c:AP") else l for l in e.L]
        body, npad = fix_hazards(e.L)
        out = [HEADER.rstrip(), "; @launch grid=(256,1,1) block=(512,1,1) lds=163840",
               '.amdgcn_target "amdgcn-amd-amdhsa--gfx950"', ".text", f".globl {NAME}_kernel", ".p2align 8",
               f".type {NAME}_kernel,@function", f"{NAME}_kernel:"]
        out += [("" if l.endswith(":") else "    ") + l for l in body]
        out += ['.section .rodata,"a"', ".p2align 6", f".amdhsa_kernel {NAME}_kernel",
                "  .amdhsa_next_free_vgpr 256", "  .amdhsa_next_free_sgpr 102", "  .amdhsa_accum_offset 256",
                "  .amdhsa_group_segment_fixed_size 0", "  .amdhsa_kernarg_size 112", "  .amdhsa_user_sgpr_count 2",
                "  .amdhsa_user_sgpr_kernarg_segment_ptr 1", "  .amdhsa_system_sgpr_workgroup_id_x 1",
                ".end_amdhsa_kernel"]
        return "\n".join(out) + "\n", npad

PTS = {"P": "start,xq,st,qf,q,k,v,end", "Q": "start,fin,w,free,end,core,apf,ctx",
       "AC": "start,fin,qd,b1,b9,core,pv,bo", "AL": "start,bar0,bar3,iss4,dma,x,y,end"}

if __name__ == "__main__":
    ap = argparse.ArgumentParser()
    ap.add_argument("out"); ap.add_argument("--stamps", action="store_true")
    ap.add_argument("--pts", action="append", default=[]); ap.add_argument("--x", default="")
    for k, v in DEFAULTS.items(): ap.add_argument("--" + k, type=int, default=v)
    a = ap.parse_args()
    pts = {}
    if a.stamps:
        pts = {k: v.split(",") for k, v in PTS.items()}
        for p in a.pts:
            r, l = p.split(":"); pts[r] = l.split(",")
    s, npad = Gen({k: getattr(a, k) for k in DEFAULTS}, pts, set(a.x.split(","))).build()
    open(a.out, "w").write(s)
    print("wrote", a.out, "lines", s.count("\n"), "pads", npad)
```

```python
import sys, math, struct, argparse
from asmlib import Emit, fix_hazards

NAME = "concat_heads__compressed_kv_cla__gqa_block_cached__decode"
HEADER = open("cdna_kernels/%s.s.ref" % NAME).read().split("; Override launch")[0]

QBP = 0x000000
QAP = 0x020000
AST = 0x040000
BS  = 0x048000
FB  = 0x050000
EPOCH = 0x060000
FA  = 0x080000
MB  = 0x100000
MB_2 = 4096
AP  = 0x200000
XQ  = 0x400000
WS_USED = 0x500000
STAMPS = 0x800000

SCALE = math.log2(math.e) / math.sqrt(128.0)
def f2u(x): return struct.unpack("<I", struct.pack("<f", x))[0]

SRD_WS, SRD_A, SRD_B, SRD_C, SRD_D, SRD_E, SRD_F, SRD_G = 44, 48, 52, 56, 60, 64, 68, 96
P_AX, P_CKV, P_AWQ, P_WUK, P_WUV, P_AWO, P_BX, P_BK, P_BV, P_BWQ, P_BWO, P_OUT, P_DBG, P_WS = range(16, 44, 2)
S_SC, S_SPIN = 15, 14
MASK0 = 72
TAG = 94
ST0 = 16
SPIN = 20000
X = 131072

def srd(n): return f"s[{n}:{n+3}]"
def vr(a, n): return f"v[{a}:{a+n-1}]" if n > 1 else f"v{a}"

DEFAULTS = dict(t1x=2, il=1, pack=0, pa=6, pb=6, qa=4, qat=3, fat=2, uvb=0, pv=0, pvw=4, pvwait=1, pvwin=4, ne=4, we=2, sl_bo=0, kq=12, cu=2, wsb=0, wt1=8, pf1=1, pfwin=6, stw=0, sl_ap=4, sl_xq0=0, sl_xq=2, sl_qa=4, sl_bs=8, np=6, uv0=16, wa=0, wb=0, wc=0, pf=4, pfw=0, pre_q=0, uv1=8, a0=3, t2w=0, wq1=2, kq1=4, sleep=0, pre_p=0, w1=2, kf_p=0, kf_q=12, wq0=8, wk=8, wt=10, wv=8)

class Gen:
    def __init__(self, opt, pts, x):
        self.o = opt; self.alt = pts; self.x = x; self.role = None
        self.stamps = bool(pts)
        self.e = Emit()

    def mk_srd(self, d, p, size):
        self.e(f"s_mov_b32 s{d}, s{p}\ns_mov_b32 s{d+1}, s{p+1}\ns_mov_b32 s{d+2}, {size:#x}\ns_mov_b32 s{d+3}, 0x20000")

    def pt(self, name, role=None):
        sel = self.alt.get(role or self.role)
        if sel and name in sel:
            i = sel.index(name); self.e(f"s_memrealtime s[{80+2*i}:{81+2*i}]" if i < 7 else "s_memrealtime s[100:101]")

    def stamp_out(self, t):
        if not self.stamps: return
        e = self.e
        if "dbg" in self.x:
            skip = e.lab("L_skip")
            e(f"""s_waitcnt lgkmcnt(0)
            s_and_b32 s10, s2, 127
            s_lshl_b32 s10, s10, 3
            s_add_u32 s10, s10, s3
            s_cmp_lg_u32 s10, 0
            s_cbranch_scc1 {skip}
            s_lshr_b32 s10, s2, 7
            s_lshl_b32 s10, s10, 5
            s_mov_b64 exec, 1""")
            for x in self.x:
                if x.startswith("hold"):
                    top = e.lab("L_hold")
                    e(f"""{top}:
                    s_memrealtime s[12:13]
                    s_waitcnt lgkmcnt(0)
                    s_sub_u32 s12, s12, s80
                    s_cmp_lt_u32 s12, {int(x[4:])}
                    s_cbranch_scc1 {top}""")
            self.mk_srd(SRD_A, P_DBG, 256)
            regs = [80, 82, 84, 86, 88, 90, 92, 100]
            for k in range(8):
                e(f"s_sub_u32 s11, s{regs[k]}, {'s80' if k else '0'}\nv_mov_b32 v{t+k}, s11")
            e(f"buffer_store_dwordx4 v[{t}:{t+3}], off, {srd(SRD_A)}, s10\nbuffer_store_dwordx4 v[{t+4}:{t+7}], off, {srd(SRD_A)}, s10 offset:16")
            e(f"{skip}:")
            return
        e("s_waitcnt lgkmcnt(0)\ns_mov_b64 exec, 1")
        e(f"s_lshl_b32 s4, s2, 3\ns_add_u32 s4, s4, s3\ns_lshl_b32 s4, s4, 6\ns_add_u32 s4, s4, {STAMPS}")
        e(f"s_mov_b32 s{SRD_WS+2}, 0x1000000")
        regs = list(range(80, 94)) + [100, 101]
        for i in range(4):
            for k in range(4): e(f"v_mov_b32 v{t+k}, s{regs[4*i+k]}")
            e(f"buffer_store_dwordx4 v[{t}:{t+3}], off, {srd(SRD_WS)}, s4 offset:{16*i}")
            e("s_nop 2")

    def selectors(self, sel, base_lo, base_hi, tmp):
        self.e(f"""v_and_b32 v{tmp}, 1, v0
        v_cmp_eq_u32 vcc, 1, v{tmp}
        v_mov_b32 v{base_lo}, 0x0c0c0100
        v_mov_b32 v{tmp}, 0x01000c0c
        v_cndmask_b32 v{base_lo}, v{base_lo}, v{tmp}, vcc
        v_add_u32 v{base_hi}, 0x0202, v{base_lo}
        v_mov_b32 v{tmp}, 0x03020c0c
        v_cndmask_b32 v{base_hi}, v{base_hi}, v{tmp}, vcc
        v_and_b32 v{tmp}, 2, v0
        v_cmp_eq_u32 vcc, 0, v{tmp}
        v_mov_b32 v{tmp}, 0x0c0c0c0c
        v_cndmask_b32 v{sel}, v{tmp}, v{base_lo}, vcc
        v_cndmask_b32 v{sel+1}, v{base_lo}, v{tmp}, vcc
        v_cndmask_b32 v{sel+2}, v{tmp}, v{base_hi}, vcc
        v_cndmask_b32 v{sel+3}, v{base_hi}, v{tmp}, vcc""")

    def masks(self, lo, hi):
        for j in range(4):
            self.e(f"s_mov_b32 s{MASK0+2*j}, {(lo << (2*j)):#x}\ns_mov_b32 s{MASK0+2*j+1}, {(hi << (2*j)):#x}")

    def rws256(self, nload, x, w, acc, base_lo, base_hi, t0, waits=None):
        e = self.e
        for t in range(nload):
            a = t0 + 2 + 4 * (t & 1)
            e(f"v_perm_b32 v{t0}, v{x+(t>>1)}, v{x+(t>>1)}, v{base_hi if t & 1 else base_lo}")
            for j in range(4): e(f"v_cndmask_b32 v{a+j}, 0, v{t0}, s[{MASK0+2*j}:{MASK0+2*j+1}]")
            if waits: e.wait(waits[t])
            e(f"v_mfma_f32_16x16x32_bf16 {vr(acc,4)}, {vr(a,4)}, {vr(w+4*t,4)}, {vr(acc,4) if t else 0}")

    def rws128(self, nload, x, w, acc0, acc1, sel, pa):
        e = self.e
        for t in range(nload):
            p = pa + 2 + 4 * (t & 1)
            sa, sb = (sel + 2, sel + 3) if t & 1 else (sel, sel + 1)
            e(f"v_perm_b32 v{p}, v{x+(t>>1)}, v{x+(t>>1)}, v{sa}\nv_perm_b32 v{p+1}, v{x+(t>>1)}, v{x+(t>>1)}, v{sb}")
            e(f"v_mfma_f32_16x16x32_bf16 {vr(acc0,4)}, {vr(p,4)}, {vr(w+4*t,4)}, {vr(acc0,4) if t else 0}")
            e(f"v_mfma_f32_16x16x32_bf16 {vr(acc1,4)}, {vr(p-2,4)}, {vr(w+4*t,4)}, {vr(acc1,4) if t else 0}")

    def quad_sum(self, ds):
        for r in range(4):
            for d in ds:
                q = f"quad_perm:[{r},{r},{r},{r}] row_mask:0xf bank_mask:0xf"
                self.e(f"v_mov_b32_dpp v{d}, v{d} {q}" if r == 0 else f"v_add_f32_dpp v{d}, v{d+r}, v{d} {q}")

    def swap_red(self, op, x, t, which):
        for s in which:
            self.e(f"v_mov_b32 v{t}, v{x}\nv_permlane{s}_swap_b32 v{x}, v{t}\n{op} v{x}, v{x}, v{t}")

    def row_red(self, op, x, rots):
        for r in rots:
            self.e(f"{op}_dpp v{x}, v{x}, v{x} row_ror:{r} row_mask:0xf bank_mask:0xf")

    def tree(self, op, base, n, width):
        st = 1
        while st < n:
            for i in range(0, n, 2 * st):
                for r in range(width): self.e(f"{op} v{base+width*i+r}, v{base+width*i+r}, v{base+width*(i+st)+r}")
            st *= 2

    def max3_chain(self, op, dst, regs):
        regs = list(regs)
        self.e(f"v_max3_{op} v{dst}, v{regs[0]}, v{regs[1]}, v{regs[2]}")
        regs = regs[3:]
        while len(regs) >= 2:
            self.e(f"v_max3_{op} v{dst}, v{dst}, v{regs[0]}, v{regs[1]}"); regs = regs[2:]
        if regs: self.e(f"v_max_{op} v{dst}, v{dst}, v{regs[0]}")

    def spin_tail(self, top, done, sleep=0):
        if sleep: self.e(f"s_sleep {sleep}")
        if "nodep" in self.x: self.e(f"{done}:"); return
        self.e(f"s_sub_u32 s{S_SPIN}, s{S_SPIN}, 1\ns_cbranch_scc0 {top}\n{done}:")

    def lds_wait(self, addr, t):
        e = self.e
        top, done = e.lab("L_spin"), e.lab("L_ok")
        e(f"""v_mov_b32 v{t}, {addr}
        s_mov_b32 s{S_SPIN}, {SPIN * 20}
        {top}:
        ds_read_b32 v{t+1}, v{t}
        s_waitcnt lgkmcnt(0)
        v_cmp_ne_u32 vcc, 4, v{t+1}
        s_cbranch_vccz {done}""")
        self.spin_tail(top, done, 2)

    def lds_inc(self, addr, t):
        self.e(f"""v_mov_b32 v{t}, {addr}
        v_mov_b32 v{t+1}, 1
        s_mov_b64 exec, 1
        ds_add_u32 v{t}, v{t+1}
        s_mov_b64 exec, -1""")

    def only_wave(self, w):
        skip = self.e.lab("L_skip")
        self.e(f"s_cmp_lg_u32 s3, {w}\ns_cbranch_scc1 {skip}")
        return skip

    def epoch_load(self):
        if self.o["wsb"]: self.e(f"s_add_u32 s{P_WS}, s{P_WS}, {self.o['wsb'] << 20:#x}\ns_addc_u32 s{P_WS+1}, s{P_WS+1}, 0")
        self.e(f"s_load_dword s{TAG}, s[{P_WS}:{P_WS+1}], {EPOCH:#x}")

    def epoch_tag(self):
        self.e(f"s_waitcnt lgkmcnt(0)\ns_add_u32 s{TAG}, s{TAG}, 1\ns_xor_b32 s{TAG+1}, s{TAG}, 0x5bd1e995")

    def post_b(self, sg, sslot, t):
        self.e(f"""v_mov_b32 v{t}, s{TAG}
        v_mov_b32 v{t+1}, s{TAG+1}
        s_lshl_b32 s10, s{sg}, 7
        s_lshl_b32 s11, s{sslot}, 3
        s_add_u32 s10, s10, s11
        s_add_u32 s10, s10, {FB}
        s_mov_b64 exec, 1
        buffer_store_dwordx2 {vr(t,2)}, off, {srd(SRD_WS)}, s10 sc1 ; c:FLAG
        s_mov_b64 exec, -1""")

    def post_a(self, sid, off, t):
        self.e(f"""v_lshlrev_b32 v{t+2}, 11, v0
        v_mov_b32 v{t}, s{TAG}
        v_mov_b32 v{t+1}, s{TAG+1}
        s_lshl_b32 s10, s{sid}, 3
        s_add_u32 s10, s10, {FA+off}
        s_mov_b64 exec, 0xff
        buffer_store_dwordx2 {vr(t,2)}, v{t+2}, {srd(SRD_WS)}, s10 offen sc1 ; c:FLAG
        s_mov_b64 exec, -1""")

    def poll_a(self, off, t):
        e = self.e
        top, done = e.lab("L_spin"), e.lab("L_ok")
        e(f"""s_and_b32 s10, s4, 7
        s_lshl_b32 s10, s10, 11
        s_add_u32 s10, s10, {FA+off}
        v_lshlrev_b32 v{t+2}, 3, v0
        {top}:
        buffer_load_dwordx2 {vr(t,2)}, v{t+2}, {srd(SRD_WS)}, s10 offen sc1
        s_waitcnt vmcnt(0)
        v_cmp_ne_u64 vcc, s[{TAG}:{TAG+1}], {vr(t,2)}
        s_cbranch_vccz {done}""")
        self.spin_tail(top, done, self.o["sl_ap"])

    def tag_check(self, g, n, t):
        e = self.e
        for i in range(n):
            e(f"v_xor_b32 v{t+2}, s{TAG+1}, v{g+2*i}\nv_xor_b32 v{g+2*i+1}, s{TAG}, v{g+2*i+1}")
            e(f"v_and_or_b32 v{g+2*i+1}, v{t+2}, v{t+1}, v{g+2*i+1}")
        e(f"v_or_b32 v{t}, v{g+1}, v{g+3}")
        for i in range(2, n, 2): e(f"v_or3_b32 v{t}, v{t}, v{g+2*i+1}, v{g+2*i+3}")

    def bside(self, kind):
        e = self.e; e.vm = 0; o = self.o
        tp = 4 * (o["pa"] + o["pb"])
        pa, pb = (o["pa"], o["pb"]) if kind == "P" else (o["qa"], (128 - 2 * tp) // 4 - o["qa"])
        n = max(pa, pb)
        VK, VL, TMP, SEL, BLO, BHI, QF, AC0, AC1, LS, MX = 1, 2, 3, 4, 8, 9, 10, 14, 18, 22, 23
        T = 24; D0 = 32; KR = 36; VR = 132; PA = 228; U = 246
        L_T1, L_Q, L_MAX, L_L, L_RED, L_T2, L_QA, L_W = 0, 8192, 9216, 9344, 16384, 32768, 40960, 32768
        S_KV, S_VV, S_G, S_B, S_SP = 5, 6, 7, 8, 9
        L_F = 9472
        e(f"L_{kind}:")
        self.role = kind
        if "no" + kind in self.x: e("s_endpgm")
        self.pt("start")
        e(f"""v_and_b32 v{T}, 3, v0
        v_lshrrev_b32 v{TMP}, 4, v0
        v_lshlrev_b32 v{T+1}, 6, v{TMP}
        v_lshl_add_u32 v{T+1}, v{T}, 4, v{T+1}
        v_bfe_u32 v{T}, v0, 2, 2
        v_lshl_add_u32 v{VK}, v{T}, 8, v{T+1}
        v_lshlrev_b32 v{VL}, 4, v0""")
        if kind == "P":
            e(f"""v_lshl_add_u32 v{T+6}, v{T}, 15, v{T+1}
            v_and_b32 v{T+4}, 15, v0
            v_lshlrev_b32 v{T+4}, 4, v{T+4}
            v_lshl_add_u32 v{T+4}, v{TMP}, 15, v{T+4}
            v_bfe_u32 v{T+5}, v0, 3, 1
            v_lshlrev_b32 v{T+5}, 10, v{T+5}
            v_lshl_add_u32 v{T+5}, v{TMP}, 3, v{T+5}
            s_lshr_b32 s10, s2, 3
            s_and_b32 s{S_SP}, s2, 7
            s_mul_i32 s11, s{S_SP}, {tp}
            s_lshr_b32 s13, s2, 2
            s_and_b32 s4, s2, 3""")
        else:
            e(f"""s_sub_u32 s4, s2, 192
            s_lshr_b32 s10, s4, 2
            s_and_b32 s4, s4, 3
            s_add_u32 s{S_SP}, s4, 8
            s_mul_i32 s11, s4, {4*(pa+pb)}
            s_add_u32 s11, s11, {8*tp}
            v_and_b32 v{T+4}, 15, v0
            v_lshlrev_b32 v{T+4}, 4, v{T+4}
            v_lshl_add_u32 v{T+4}, v{TMP}, 16, v{T+4}
            v_bfe_u32 v{T+5}, v0, 3, 1
            v_lshlrev_b32 v{T+5}, 10, v{T+5}
            v_lshl_add_u32 v{T+5}, v{TMP}, 4, v{T+5}
            s_sub_u32 s13, s2, 192
            s_and_b32 s4, s13, 1
            s_lshr_b32 s13, s13, 1
            s_xor_b32 s13, s13, {o["t1x"]}""")
        il = o["il"]
        if not il:
            e(f"""s_mul_i32 s12, s3, {pb}
            s_min_u32 s{S_G}, s3, 4
            s_mul_i32 s{S_G}, s{S_G}, {pa-pb}
            s_add_u32 s12, s12, s{S_G}
            s_add_u32 s11, s11, s12
            s_lshl_b32 s11, s11, 12""")
        else:
            e(f"s_lshl_b32 s11, s11, 12\ns_lshl_b32 s12, s3, 10\ns_add_u32 s11, s11, s12")
        e(f"""s_and_b32 s{S_G}, s10, 7
        s_lshr_b32 s{S_B}, s10, 3
        s_lshl_b32 s10, s10, 21
        s_add_u32 s{S_KV}, s10, s11
        s_mov_b32 s{S_VV}, s{S_KV}""")
        sh = 7 if kind == "P" else 8
        e(f"""s_lshl_b32 s10, s4, {sh}
        s_lshl_b32 s11, s3, {sh-3}
        s_add_u32 s10, s10, s11
        s_lshl_b32 s11, s10, 1
        s_lshl_b32 s10, s10, 13
        s_lshl_b32 s12, s13, 8
        s_add_u32 s10, s10, s12""")
        e("s_waitcnt lgkmcnt(0)")
        self.epoch_load()
        tags = []; cur = [min(pa, pb)]
        def issue(upto):
            n = cur[0]
            while len(tags) < min(upto, 8 * n):
                x = len(tags); k = x % (4 * n); j = k & 3
                r, v, sd, so = (KR, VK, SRD_A, S_KV) if x < 4 * n else (VR, VL, SRD_B, S_VV)
                tags.append(e.mem(f"buffer_load_dwordx4 {vr(r+4*k,4)}, v{v}, {srd(sd)}, s{so} offen offset:{0 if il else 1024*j} nt"))
                if not il:
                    if j == 3: e(f"s_add_u32 s{so}, s{so}, 4096")
                else:
                    nm = 4 * min(pa, pb)
                    step = 8192 if k < nm - 1 else 4096
                    if k == nm - 1: step = 8192 - (4096 if pb > pa else 0)
                    if k < 4 * n - 1: e(f"s_add_u32 s{so}, s{so}, {step}")
        seen = set()
        def land(k):
            e.wait(tags[k])
            if k not in seen: seen.add(k); self.pt(f"l{k}")
        def slide(k0, k1, w):
            for k in range(k0, k1):
                land(k); issue(k + 1 + w)
        self.mk_srd(SRD_WS, P_WS, WS_USED)
        if kind == "P":
            self.mk_srd(SRD_C, P_AX, 2048); self.mk_srd(SRD_D, P_AWQ, 4 << 20)
            e(f"""v_lshlrev_b32 v{LS}, 15, v{TMP}
            v_and_b32 v{U+5}, 15, v0
            v_lshl_add_u32 v{LS}, v{U+5}, 4, v{LS}""")
            skip = self.only_wave(7)
            e(f"""s_lshl_b32 s12, s2, 8
            s_add_u32 s12, s12, {QAP}""")
            for r in range(4): e(f"v_mov_b32 v{U+r}, -1")
            e(f"""s_mov_b32 exec_hi, 0
            buffer_store_dwordx4 {vr(U,4)}, v{LS}, {srd(SRD_WS)}, s12 offen sc1 ; c:QCLR
            s_mov_b64 exec, -1
            {skip}:""")
            def four(slot, voff, s):
                e("s_mov_b32 s12, s10")
                r = []
                for t in range(4):
                    r.append(e.mem(f"buffer_load_dwordx4 {vr(VR+4*(slot+t),4)}, v{voff}, {srd(s)}, s12 offen nt"))
                    if t < 3: e("s_add_u32 s12, s12, 8192")
                return r
            xa = e.mem(f"buffer_load_dwordx2 {vr(T,2)}, v{T+5}, {srd(SRD_C)}, s11 offen")
            w2 = four(0, T + 4, SRD_D)
            self.mk_srd(SRD_E, P_WUK, 4 << 20)
            if o["t2w"] >= 0: e.wait(w2[o["t2w"]])
            w3 = four(4, T + 6, SRD_E)
        else:
            self.mk_srd(SRD_C, P_BX, 2048); self.mk_srd(SRD_D, P_BWQ, 4 << 20)
            xb = e.mem(f"buffer_load_dwordx4 {vr(T,4)}, v{T+5}, {srd(SRD_C)}, s11 offen")
            w1 = []
            for t in range(8):
                if t >= o["wt1"]: e.wait(w1[t - o["wt1"]])
                w1.append(e.mem(f"buffer_load_dwordx4 {vr(VR+4*t,4)}, v{T+4}, {srd(SRD_D)}, s10 offen nt"))
                if t < 7: e("s_add_u32 s10, s10, 8192")
            self.mk_srd(SRD_E, P_OUT, 4096)
            e(f"""v_lshrrev_b32 v{T+6}, 3, v0
            v_lshlrev_b32 v{T+6}, 17, v{T+6}
            v_and_b32 v{U}, 7, v0
            v_lshl_add_u32 v{T+6}, v{U}, 4, v{T+6}
            v_and_b32 v{U}, 15, v0
            v_lshlrev_b32 v{U}, 4, v{U}
            v_lshl_add_u32 v{U}, v{TMP}, 14, v{U}
            s_sub_u32 s68, s2, 192
            s_cmp_lt_u32 s3, 4
            s_cselect_b32 s{SRD_C}, s{P_WUV}, s{P_AWO}
            s_cselect_b32 s{SRD_C+1}, s{P_WUV+1}, s{P_AWO+1}
            s_mov_b32 s{SRD_C+2}, 0x400000
            s_movk_i32 s69, 1024
            s_cselect_b32 s69, 8192, s69
            s_cselect_b64 vcc, -1, 0
            v_cndmask_b32 v{T+6}, v{U}, v{T+6}, vcc
            s_lshl_b32 s10, s3, 20
            s_lshl_b32 s11, s68, 7
            s_add_u32 s10, s10, s11
            s_lshl_b32 s11, s68, 16
            s_and_b32 s12, s3, 3
            s_lshl_b32 s12, s12, 8
            s_add_u32 s11, s11, s12
            s_cmp_lt_u32 s3, 4
            s_cselect_b32 s70, s10, s11
            s_lshl_b32 s71, s3, 14
            s_add_u32 s71, s71, {L_W}""")
            wd = []
            def wdma(upto, w):
                while len(wd) < upto:
                    e(f"s_waitcnt vmcnt({w-1})\ns_mov_b32 m0, s71")
                    wd.append(e.mem(f"buffer_load_dwordx4 v{T+6}, {srd(SRD_C)}, s70 offen nt lds"))
                    e("s_add_u32 s70, s70, s69\ns_add_u32 s71, s71, 1024")
        self.mk_srd(SRD_A, P_BK, 32 << 20); self.mk_srd(SRD_B, P_BV, 32 << 20)
        e.L.append("; split")
        if kind == "P": issue(o["pre_p"])
        e(f"s_mov_b32 s{S_SC}, {f2u(SCALE):#x}\ns_mov_b32 s{S_SPIN}, {SPIN}")
        self.selectors(SEL, BLO, BHI, TMP)
        e(f"v_mov_b32 v{AC0}, 0\nv_mov_b32 v{AC0+1}, 0\nds_write_b64 v{AC0}, {vr(AC0,2)} offset:{L_F}")
        self.epoch_tag()
        if kind == "P":
            self.masks(0x03030303, 0x03030303)
            skip = self.only_wave(7)
            e(f"s_waitcnt vmcnt({e.vm})")
            self.post_a(2, 0, U)
            e(f"{skip}:")
            e(f"s_lshl_b32 s10, s3, 10\nv_add_u32 v{T+7}, s10, v{VL}")
            e.wait(xa)
            self.rws256(4, T, VR, AC0, BLO, BHI, PA, w2)
            self.pt("t2")
            e(f"ds_write_b128 v{T+7}, {vr(AC0,4)} offset:{L_T2}\ns_waitcnt lgkmcnt(0)\ns_barrier")
            XT = VR + 48
            skip = self.only_wave(0)
            for i in range(8): e(f"ds_read_b128 {vr(XT+4*i,4)}, v{VL} offset:{L_T2+1024*i}")
            e(f"""v_mov_b32 v{U+1}, s{TAG+1}
            s_lshl_b32 s10, s2, 11
            s_add_u32 s10, s10, {XQ}
            s_mov_b32 s11, 0xffffff00
            s_waitcnt lgkmcnt(0)""")
            self.tree("v_add_f32", XT, 8, 4)
            for r in range(4): e(f"v_bfi_b32 v{XT+8+2*r}, s11, v{XT+r}, v{U+1}\nv_mov_b32 v{XT+9+2*r}, s{TAG}")
            e(f"buffer_store_dwordx4 {vr(XT+8,4)}, v{VL}, {srd(SRD_WS)}, s10 offen sc1 ; c:XQ")
            e(f"buffer_store_dwordx4 {vr(XT+12,4)}, v{VL}, {srd(SRD_WS)}, s10 offen offset:1024 sc1 ; c:XQ")
            e(f"{skip}:")
            self.pt("xq")
            skip, other = e.lab("L_skip"), e.lab("L_other")
            top, done = e.lab("L_spin"), e.lab("L_ok")
            e(f"""s_lshr_b32 s10, s3, 1
            s_cmp_lg_u32 s10, 2
            s_cbranch_scc1 {other}
            s_lshl_b32 s10, s13, 13
            s_and_b32 s12, s3, 1
            s_lshl_b32 s11, s12, 10
            s_add_u32 s10, s10, s11
            s_add_u32 s10, s10, {XQ}
            s_add_u32 s11, s10, 4096
            v_mov_b32 v{U+1}, 0xff
            v_lshrrev_b32 v{U+3}, 5, v0
            v_lshlrev_b32 v{U+3}, 8, v{U+3}
            v_and_b32 v{U+4}, 15, v0
            v_lshl_add_u32 v{U+3}, v{U+4}, 4, v{U+3}
            v_bfe_u32 v{U+4}, v0, 4, 1
            v_lshl_add_u32 v{U+3}, v{U+4}, 3, v{U+3}
            s_lshl_b32 s12, s12, 2
            v_add_u32 v{U+3}, s12, v{U+3}""")
            if o["sl_xq0"]: e(f"s_sleep {o['sl_xq0']}")
            e(f"{top}:")
            for i in range(4): e(f"buffer_load_dwordx4 {vr(VR+4*i,4)}, v{VL}, {srd(SRD_WS)}, s{10+(i>>1)} offen offset:{2048*(i&1)} sc1 ; c:LXQ")
            e("s_waitcnt vmcnt(0)")
            self.tag_check(VR, 8, U)
            e(f"v_cmp_ne_u32 vcc, 0, v{U}\ns_cbranch_vccz {done}")
            self.spin_tail(top, done, o["sl_xq"])
            e(f"""v_add_f32 v{VR}, v{VR}, v{VR+4}
            v_add_f32 v{VR+2}, v{VR+2}, v{VR+6}
            v_add_f32 v{VR+8}, v{VR+8}, v{VR+12}
            v_add_f32 v{VR+10}, v{VR+10}, v{VR+14}
            v_add_f32 v{VR}, v{VR}, v{VR+8}
            v_add_f32 v{VR+2}, v{VR+2}, v{VR+10}
            v_cvt_pk_bf16_f32 v{VR}, v{VR}, v{VR+2}
            ds_write_b32 v{U+3}, v{VR} offset:{L_QA}""")
            ne, we = o["ne"], o["we"]
            vm0, L0 = e.vm, len(e.L)
            issue(len(tags) + ne)
            body = e.L[L0:]
            e(f"s_branch {skip}\n{other}:")
            cnt = 0
            for l in body:
                if l.startswith("buffer_load"):
                    if cnt >= we: e(f"s_waitcnt vmcnt({we-1})")
                    cnt += 1
                e(l)
            e(f"""{skip}:
            v_bfe_u32 v{U}, v0, 2, 1
            v_lshlrev_b32 v{U}, 8, v{U}
            v_and_b32 v{U+2}, 0xf0, v{VK}
            v_add_u32 v{U+1}, v{U}, v{U+2}
            v_lshrrev_b32 v{U+2}, 4, v0
            v_lshl_add_u32 v{U}, v{U+2}, 3, v{U}
            s_lshl_b32 s11, s3, 5
            v_add_u32 v{U}, s11, v{U}
            s_waitcnt lgkmcnt(0)
            s_barrier
            ds_read_b128 {vr(QF,4)}, v{U+1} offset:{L_QA}
            s_waitcnt lgkmcnt(0)""")
            self.pt("qa")
            e.wait(w3[3])
            for t in range(4): e(f"v_mfma_f32_16x16x32_bf16 {vr(VR+4*t,4)}, {vr(VR+16+4*t,4)}, {vr(QF,4)}, 0")
            self.quad_sum([VR + 4 * t for t in range(4)])
            e(f"""v_cvt_pk_bf16_f32 v{AC0}, v{VR}, v{VR+4}
            v_cvt_pk_bf16_f32 v{AC0+1}, v{VR+8}, v{VR+12}
            s_mov_b32 exec_lo, 0x00110011
            s_mov_b32 exec_hi, 0x00110011
            ds_write_b64 v{U}, {vr(AC0,2)} offset:{L_QA+512}
            s_mov_b64 exec, -1
            s_waitcnt lgkmcnt(0)
            s_barrier""")
            skip = self.only_wave(7)
            e(f"""ds_read_b128 {vr(AC0,4)}, v{VL} offset:{L_QA+512}
            s_lshl_b32 s10, s2, 8
            s_add_u32 s10, s10, {QAP}
            s_waitcnt lgkmcnt(0)""")
            for r in range(4): e(f"v_min_u32 v{AC0+r}, -2, v{AC0+r}")
            e(f"""s_mov_b32 exec_hi, 0
            buffer_store_dwordx4 {vr(AC0,4)}, v{LS}, {srd(SRD_WS)}, s10 offen sc1 ; c:QAP
            s_mov_b64 exec, -1""")
            if o["stw"] in (1, 2):
                self.pt("st7"); e("s_waitcnt vmcnt(0)"); self.pt("ack7")
            e(f"{skip}:")
            if o["stw"] > 1: e("s_barrier")
            self.pt("st")
            issue(o["w1"])
        else:
            self.masks(0x03030303, 0x03030303)
            e(f"s_lshl_b32 s10, s3, 10\nv_add_u32 v{T+7}, s10, v{VL}")
            e.wait(xb)
            self.rws256(8, T, VR, AC1, BLO, BHI, PA, w1)
            e(f"ds_write_b128 v{T+7}, {vr(AC1,4)} offset:{L_T1}")
            wdma(o["wq1"], 16)
            e("s_waitcnt lgkmcnt(0)\ns_barrier")
            self.pt("t1")
            skip = self.only_wave(0)
            for i in range(8): e(f"ds_read_b128 {vr(VR+4*i,4)}, v{VL} offset:{L_T1+1024*i}")
            e(f"""v_lshrrev_b32 v{U}, 5, v0
            v_lshlrev_b32 v{U}, 14, v{U}
            v_and_b32 v{U+1}, 15, v0
            v_lshl_add_u32 v{U}, v{U+1}, 5, v{U}
            v_bfe_u32 v{U+1}, v0, 4, 1
            v_lshl_add_u32 v{U}, v{U+1}, 4, v{U}
            s_lshl_b32 s10, s4, 15
            s_lshl_b32 s11, s13, 9
            s_add_u32 s10, s10, s11
            s_add_u32 s10, s10, {QBP}
            s_sub_u32 s12, s2, 192
            s_lshr_b32 s13, s12, 3
            s_and_b32 s12, s12, 7
            s_waitcnt lgkmcnt(0)""")
            self.tree("v_add_f32", VR, 8, 4)
            e(f"buffer_store_dwordx4 {vr(VR,4)}, v{U}, {srd(SRD_WS)}, s10 offen sc1\ns_waitcnt vmcnt(0)")
            self.post_b(13, 12, U)
            e(f"{skip}:")
        variants = [pa] if pa == pb else [pa, pb]
        if kind == "Q":
            wdma(16, o["wq1"])
            self.pt("w")
        if len(variants) > 1: e(f"s_cmp_ge_u32 s3, 4\ns_cbranch_scc1 L_{kind}_B")
        tags0, vm0 = list(tags), e.vm
        for vi, nv in enumerate(variants):
            if vi: e(f"L_{kind}_B:")
            n = nv; cur[0] = nv; tags[:] = tags0; e.vm = vm0; seen.clear()
            kf, wearly = (o["kf_p"], o["w1"]) if kind == "P" else (o["kf_q"], o["wq0"])
            if kind == "Q":
                for k in range(wearly):
                    e(f"s_waitcnt vmcnt({wearly-1})"); issue(k + 1)
                slide(0, kf, wearly)
            else:
                slide(0, kf, wearly)
            e(f"""s_cmp_eq_u32 s3, 0
            s_cselect_b32 s13, 0, 0x40000000
            s_lshl_b32 s12, s{S_G}, 7
            s_add_u32 s12, s12, {FB}
            s_add_u32 s12, s12, s13
            v_lshlrev_b32 v{T+2}, 3, v0
            s_mov_b64 exec, 0xffff""")
            k1 = len(tags)
            fl = e.mem(f"buffer_load_dwordx2 {vr(T,2)}, v{T+2}, {srd(SRD_WS)}, s12 offen sc1 ; c:LFB")
            e("s_mov_b64 exec, -1")
            issue(kf + o["wk"])
            slide(kf, k1, o["wk"])
            e(f"""s_lshl_b32 s10, s{S_B}, 14
            s_lshl_b32 s11, s{S_G}, 11
            s_add_u32 s10, s10, s11
            s_add_u32 s10, s10, {QBP}
            s_add_u32 s10, s10, s13
            s_add_u32 s11, s10, 32768
            v_lshlrev_b32 v{TMP}, 5, v0""")
            e.wait(fl)
            top, done = e.lab("L_spin"), e.lab("L_ok")
            e(f"""s_cmp_lg_u32 s3, 0
            s_cbranch_scc1 {done}
            s_mov_b64 exec, 0xffff
            {top}:
            v_cmp_ne_u64 vcc, s[{TAG}:{TAG+1}], {vr(T,2)}
            s_cbranch_vccz {done}
            buffer_load_dwordx2 {vr(T,2)}, v{T+2}, {srd(SRD_WS)}, s12 offen sc1 ; c:LFB
            s_waitcnt vmcnt(0)""")
            self.spin_tail(top, done, o["sleep"])
            e("s_mov_b64 exec, -1")
            self.pt("qf")
            k2 = len(tags)
            QG = PA
            for k in range(4):
                qg = e.mem(f"buffer_load_dwordx4 {vr(QG+4*k,4)}, v{TMP}, {srd(SRD_WS)}, s{10+(k>>1)} offen offset:{16*(k&1)} sc1 ; c:LQB")
            k3 = min(k2, 4 * n)
            slide(k1, k3, o["wk"])
            skip = self.only_wave(0)
            e.wait(qg)
            for r in range(8): e(f"v_add_f32 v{QG+r}, v{QG+r}, v{QG+8+r}")
            for r in range(4): e(f"v_cvt_pk_bf16_f32 v{QG+r}, v{QG+2*r}, v{QG+2*r+1}")
            e(f"""v_mov_b32 v{T}, 0
            v_mov_b32 v{T+1}, 1
            ds_write_b128 v{VL}, {vr(QG,4)} offset:{L_Q}
            s_waitcnt lgkmcnt(0)
            ds_write_b32 v{T}, v{T+1} offset:{L_F}
            {skip}:""")
            kq = max(k3, min(o["kq"], 4 * n))
            slide(k3, kq, o["wk"])
            top, done = e.lab("L_spin"), e.lab("L_ok")
            e(f"""v_mov_b32 v{T}, 0
            s_mov_b32 s{S_SPIN}, {SPIN * 20}
            {top}:
            ds_read_b32 v{T+1}, v{T} offset:{L_F}
            ds_read_b128 {vr(QF,4)}, v{VK} offset:{L_Q}
            s_waitcnt lgkmcnt(0)
            v_cmp_eq_u32 vcc, 0, v{T+1}
            s_cbranch_vccz {done}""")
            self.spin_tail(top, done, 1)
            e(f"v_bfe_u32 v{T+5}, v0, 2, 2\nv_lshlrev_b32 v{T+5}, 5, v{T+5}\ns_lshl_b32 s10, s3, 2\nv_add_u32 v{T+6}, s10, v{T+5}")
            for z in range(0, 18, 4): e(f"v_mov_b32 v{PA+z}, 0\nv_mov_b32 v{PA+z+1}, 0")
            self.pt("q")
            SK = lambda k: D0 + 4 * k
            ahead = kq
            for i in range(n + 1):
                if i < n:
                    for j in range(4):
                        k = 4 * i + j
                        if k >= kq:
                            land(k); issue(k + 1 + (o["wk"] if k < 4 * n - 4 else o["wt"]))
                        elif j == 0 and o["cu"]:
                            issue(len(tags) + o["cu"])
                        e(f"v_mfma_f32_16x16x32_bf16 {vr(SK(k),4)}, {vr(KR+4*k,4)}, {vr(QF,4)}, 0")
                if i > 0:
                    ks = [SK(4 * (i - 1) + j) for j in range(4)]
                    self.quad_sum(ks)
                    self.max3_chain("f32", MX, ks if i == 1 else [MX] + ks)
            issue(4 * n + o["wt"])
            self.pt("k")
            self.swap_red("v_max_f32", MX, TMP, (16, 32))
            e(f"v_mul_f32 v{MX}, s{S_SC}, v{MX}\nds_write_b32 v{T+6}, v{MX} offset:{L_MAX}")
            for k in range(4 * n): e(f"v_fma_f32 v{SK(k)}, v{SK(k)}, s{S_SC}, -v{MX}")
            for k in range(4 * n): e(f"v_exp_f32 v{SK(k)}, v{SK(k)}")
            e(f"v_add_f32 v{LS}, v{SK(0)}, v{SK(1)}")
            for k in range(2, 4 * n): e(f"v_add_f32 v{LS}, v{LS}, v{SK(k)}")
            for k in range(0, 4 * n, 2): e(f"v_cvt_pk_bf16_f32 v{SK(k)}, v{SK(k)}, v{SK(k+1)}")
            self.swap_red("v_add_f32", LS, TMP, (16, 32))
            skip = e.lab("L_skip")
            e(f"""ds_write_b32 v{T+6}, v{LS} offset:{L_L}
            v_mov_b32 v{T}, 0
            v_mov_b32 v{T+1}, 1
            s_mov_b64 exec, 1
            ds_add_rtn_u32 v{T+2}, v{T}, v{T+1} offset:{L_F+4}
            s_waitcnt lgkmcnt(0)
            v_cmp_eq_u32 vcc, 7, v{T+2}
            s_mov_b64 exec, -1
            s_cbranch_vccz {skip}
            v_and_b32 v{T}, 3, v0
            v_lshlrev_b32 v{T}, 5, v{T}
            ds_read_b128 {vr(U,4)}, v{T} offset:{L_MAX}
            ds_read_b128 {vr(U+4,4)}, v{T} offset:{L_MAX+16}
            ds_read_b128 {vr(QF,4)}, v{T} offset:{L_L}
            ds_read_b128 {vr(AC0,4)}, v{T} offset:{L_L+16}
            v_mov_b32 v{T+3}, s{TAG+1}
            s_lshl_b32 s10, s{S_B}, 3
            s_add_u32 s10, s10, s{S_G}
            s_mul_i32 s10, s10, 12
            s_add_u32 s10, s10, s{S_SP}
            s_lshl_b32 s10, s10, 6
            s_add_u32 s10, s10, {BS}
            s_mov_b32 s11, 0xffffff00
            s_waitcnt lgkmcnt(0)""")
            self.max3_chain("f32", T + 2, range(U, U + 8))
            for r in range(8): e(f"v_sub_f32 v{U+r}, v{U+r}, v{T+2}")
            for r in range(8): e(f"v_exp_f32 v{U+r}, v{U+r}")
            e(f"v_mul_f32 v{T+1}, v{U}, v{QF}")
            for r in range(1, 8): e(f"v_fmac_f32 v{T+1}, v{U+r}, v{QF+r}")
            e(f"""v_bfi_b32 v{U+2}, s11, v{T+1}, v{T+3}
            v_bfi_b32 v{U}, s11, v{T+2}, v{T+3}
            v_mov_b32 v{U+1}, s{TAG}
            v_mov_b32 v{U+3}, s{TAG}
            s_mov_b64 exec, 15
            buffer_store_dwordx4 {vr(U,4)}, v{VL}, {srd(SRD_WS)}, s10 offen sc1 ; c:BST
            s_mov_b64 exec, -1
            {skip}:""")
            self.pt("p")
            for i in range(n):
                for j in range(4):
                    k = 4 * i + j; pk = SK(k & ~1); p = PA + 2 + 4 * j
                    sa, sb = (SEL + 2, SEL + 3) if k & 1 else (SEL, SEL + 1)
                    e(f"v_perm_b32 v{p}, v{pk}, v{pk}, v{sa}\nv_perm_b32 v{p+1}, v{pk}, v{pk}, v{sb}")
                if i == n - 1:
                    top, done = e.lab("L_spin"), e.lab("L_ok")
                    e(f"""v_mov_b32 v{T}, 0
                    v_lshrrev_b32 v{T+1}, 4, v0
                    v_lshlrev_b32 v{T+1}, 5, v{T+1}
                    s_lshl_b32 s10, s3, 2
                    v_add_u32 v{T+2}, s10, v{T+1}
                    {top}:
                    ds_read_b32 v{T+3}, v{T} offset:{L_F+4}
                    ds_read_b128 {vr(U,4)}, v{T+1} offset:{L_MAX}
                    ds_read_b128 {vr(U+4,4)}, v{T+1} offset:{L_MAX+16}
                    ds_read_b32 v{LS}, v{T+2} offset:{L_MAX}
                    s_waitcnt lgkmcnt(0)
                    v_cmp_ne_u32 vcc, 8, v{T+3}
                    s_cbranch_vccz {done}""")
                    self.spin_tail(top, done, 1)
                    self.max3_chain("f32", MX, range(U, U + 8))
                    e(f"v_sub_f32 v{LS}, v{LS}, v{MX}\nv_exp_f32 v{LS}, v{LS}")
                    e(f"""s_lshl_b32 s10, s3, 11
                    v_lshl_add_u32 v{T}, v0, 5, s10
                    s_lshl_b32 s10, s3, 8
                    v_and_b32 v{T+2}, 31, v0
                    v_lshl_add_u32 v{T+1}, v{T+2}, 3, s10
                    v_lshlrev_b32 v{T+2}, 2, v0
                    s_lshl_b32 s10, s{S_G}, 3
                    s_add_u32 s10, s10, s3
                    s_lshl_b32 s10, s10, 14
                    s_mul_i32 s11, s{S_B}, 12
                    s_add_u32 s11, s11, s{S_SP}
                    s_lshl_b32 s11, s11, 7
                    s_add_u32 s10, s10, s11
                    s_add_u32 s10, s10, {MB}""")
                for j in range(4):
                    k = 4 * i + j; p = PA + 2 + 4 * j
                    land(4 * n + k)
                    issue(4 * n + k + 1 + o["wv"])
                    e(f"v_mfma_f32_16x16x32_bf16 {vr(AC0,4)}, {vr(p,4)}, {vr(VR+4*k,4)}, {vr(AC0,4) if k else 0}")
                    e(f"v_mfma_f32_16x16x32_bf16 {vr(AC1,4)}, {vr(p-2,4)}, {vr(VR+4*k,4)}, {vr(AC1,4) if k else 0}")
            self.pt("v")
            for r in range(8): e(f"v_mul_f32 v{AC0+r}, v{AC0+r}, v{LS}")
            e(f"""ds_write_b128 v{T}, {vr(AC0,4)} offset:{L_RED}
            ds_write_b128 v{T}, {vr(AC1,4)} offset:{L_RED+16}
            s_waitcnt lgkmcnt(0)
            s_barrier""")
            for i in range(8): e(f"ds_read_b64 {vr(KR+2*i,2)}, v{T+1} offset:{L_RED+2048*i}")
            for i in range(0, 8, 2):
                e(f"s_waitcnt lgkmcnt({6-i})\nv_add_f32 v{KR+2*i}, v{KR+2*i}, v{KR+2*i+2}\nv_add_f32 v{KR+2*i+1}, v{KR+2*i+1}, v{KR+2*i+3}")
                if i == 2: e(f"v_add_f32 v{KR}, v{KR}, v{KR+4}\nv_add_f32 v{KR+1}, v{KR+1}, v{KR+5}")
                if i == 4: e(f"v_add_f32 v{KR}, v{KR}, v{KR+8}\nv_add_f32 v{KR+1}, v{KR+1}, v{KR+9}")
            e(f"""v_add_f32 v{KR}, v{KR}, v{KR+12}
            v_add_f32 v{KR+1}, v{KR+1}, v{KR+13}
            v_cvt_pk_bf16_f32 v{KR}, v{KR}, v{KR+1}
            v_min_u32 v{KR}, -2, v{KR}
            s_mov_b32 exec_hi, 0
            buffer_store_dword v{KR}, v{T+2}, {srd(SRD_WS)}, s10 offen sc1 ; c:MB1""")
            self.pt("end")
            if kind == "Q": e("s_mov_b64 exec, -1\ns_mov_b32 s4, s68\ns_cmp_lt_u32 s3, 4\ns_cbranch_scc1 L_ATAIL")
            self.stamp_out(100)
            e("s_endpgm")

    X_MAX, X_P, X_L, X_CNT = 0, 2048, 20480, 24576

    def row_addr(self, dst, t):
        self.e(f"""v_and_b32 v{t}, 3, v0
        v_lshlrev_b32 v{t}, 2, v{t}
        v_bfe_u32 v{t+1}, v0, 2, 2
        v_or_b32 v{t}, v{t}, v{t+1}
        v_lshrrev_b32 v{t+1}, 5, v0
        v_xor_b32 v{t}, v{t}, v{t+1}
        v_lshlrev_b32 v{t}, 4, v{t}
        v_and_b32 v{t+1}, 31, v0
        v_lshl_add_u32 v{dst}, v{t+1}, 10, v{t}""")

    X_AL = 22528

    def qk(self, rnd, S, FR, A, TA, creg):
        e = self.e
        seq = [(i, 2 * qp + q) for qp in range(2) for i in range(8) for q in range(2)]
        ks = lambda o: seq[o][0] + 8 * seq[o][1]
        qreg = lambda o: FR + 4 * o if o < 4 else creg(ks(o - 4))
        dst = qreg if rnd == 0 else (lambda o: FR + 16 + 4 * (o & 3))
        tg = {}
        e.ds_reset()
        def rd(o):
            if o & 1 == 0: e(f"v_xor_b32 v{TA+((o>>1)&1)}, {seq[o][0] << 5}, v{A}")
            tg[o] = e.ds(f"ds_read_b128 {vr(dst(o),4)}, v{TA+((o>>1)&1)} offset:{256*seq[o][1]}")
        for o in range(3): rd(o)
        for o in range(32):
            if o + 3 < 32: rd(o + 3)
            e.dswait(tg[o])
            c = creg(ks(o)) if rnd == 0 else dst(o)
            e(f"v_mfma_f32_32x32x16_bf16 {vr(S,16)}, {vr(c,4)}, {vr(qreg(o),4)}, {vr(S,16) if o else 0}")
            if rnd == 0 and o == 16: e("s_barrier")

    def stat_addr(self, d, t):
        self.e(f"""v_and_b32 v{d}, 15, v0
        v_lshlrev_b32 v{d}, 5, v{d}
        v_bfe_u32 v{t}, v0, 4, 1
        v_lshl_add_u32 v{d}, v{t}, 10, v{d}
        v_add_u32 v{d}, {X}, v{d}""")

    def softmax(self, rnd, S, P, M, LS, T, lw):
        e = self.e
        self.max3_chain("f32", T, range(S, S + 16))
        self.swap_red("v_max_f32", T, T + 1, (32,))
        e(f"""ds_write_b32 v{T+3}, v{T} offset:{self.X_MAX+16*rnd}
        s_waitcnt lgkmcnt(0)
        s_barrier
        ds_read_b128 {vr(P,4)}, v{T+2} offset:{self.X_MAX+16*rnd}""")
        if rnd == 0:
            e(f"""v_mov_b32 v{T}, {X+self.X_CNT}
            v_mov_b32 v{T+1}, 0
            ds_write2_b32 v{T}, v{T+1}, v{T+1} offset0:0 offset1:16
            ds_write2_b32 v{T}, v{T+1}, v{T+1} offset0:32 offset1:48""")
        e(f"""s_lshl_b32 s10, s{lw}, 11
        s_add_u32 s10, s10, {X+self.X_P+8192*rnd}
        v_lshl_add_u32 v{T+1}, v0, 4, s10
        s_waitcnt lgkmcnt(0)""")
        if rnd == 0:
            self.max3_chain("f32", M, range(P, P + 4))
            e(f"v_mul_f32 v{M}, s{S_SC}, v{M}")
        else:
            self.max3_chain("f32", T, range(P, P + 4))
            e(f"""v_mul_f32 v{T}, s{S_SC}, v{T}
            v_max_f32 v{T}, v{T}, v{M}
            v_sub_f32 v{M}, v{M}, v{T}
            v_exp_f32 v{P}, v{M}
            v_mov_b32 v{M}, v{T}
            v_mul_f32 v{LS}, v{LS}, v{P}""")
        for r in range(16): e(f"v_fma_f32 v{S+r}, v{S+r}, s{S_SC}, -v{M}")
        for r in range(16): e(f"v_exp_f32 v{S+r}, v{S+r}")
        for r in range(8): e(f"v_cvt_pk_bf16_f32 v{P+r}, v{S+2*r}, v{S+2*r+1}")
        e(f"ds_write_b128 v{T+1}, {vr(P,4)}\nds_write_b128 v{T+1}, {vr(P+4,4)} offset:1024")
        if rnd == 0:
            e("s_waitcnt lgkmcnt(0)\ns_barrier")
            self.tree("v_add_f32", S, 16, 1)
            e(f"v_mov_b32 v{LS}, v{S}")
        else:
            self.tree("v_add_f32", S, 16, 1)
            e(f"v_add_f32 v{S}, v{S}, v{LS}")
            self.swap_red("v_add_f32", S, T, (32,))
            e(f"ds_write_b32 v{T+3}, v{S} offset:{self.X_L}\ns_waitcnt lgkmcnt(0)\ns_barrier")

    VL, VW, TMP, SEL, BLO, BHI, T, U, W, G, WUV, AC0, AC1, PA, XR = 1, 2, 3, 4, 8, 9, 10, 16, 32, 96, 160, 224, 228, 232, 244
    A_CW, A_CR, A_MB = 13, 14, 15
    S_LW, S_PART, S_PRIV, S_MBJ = 5, 6, 7, 8

    def vw_addr(self):
        VW, T = self.VW, self.T
        self.e(f"""v_lshrrev_b32 v{VW}, 4, v0
        v_lshlrev_b32 v{VW}, 14, v{VW}
        v_and_b32 v{T+1}, 15, v0
        v_lshl_add_u32 v{VW}, v{T+1}, 4, v{VW}""")

    def tail_setup(self):
        VL, T, A_CW, A_CR, A_MB = self.VL, self.T, self.A_CW, self.A_CR, self.A_MB
        self.e(f"""v_lshlrev_b32 v{VL}, 4, v0
        s_lshl_b32 s{self.S_PRIV}, s3, 11
        s_lshl_b32 s{self.S_MBJ}, s4, 14
        s_add_u32 s{self.S_MBJ}, s{self.S_MBJ}, {MB}
        v_lshl_add_u32 v{A_CW}, v0, 2, s{self.S_PRIV}
        v_bfe_u32 v{A_CR}, v0, 3, 1
        v_lshlrev_b32 v{A_CR}, 7, v{A_CR}
        v_lshrrev_b32 v{T+1}, 4, v0
        v_lshl_add_u32 v{A_CR}, v{T+1}, 5, v{A_CR}
        v_add_u32 v{A_CR}, s{self.S_PRIV}, v{A_CR}
        v_lshrrev_b32 v{A_MB}, 5, v0
        v_lshlrev_b32 v{A_MB}, 17, v{A_MB}
        v_bfe_u32 v{T+1}, v0, 3, 1
        v_lshl_add_u32 v{A_MB}, v{T+1}, 14, v{A_MB}
        v_and_b32 v{T+1}, 7, v0
        v_lshl_add_u32 v{A_MB}, v{T+1}, 4, v{A_MB}""")
        self.selectors(self.SEL, self.BLO, self.BHI, self.TMP)

    def wload(self, s, t0=0, t1=16):
        e = self.e
        if "now" in self.x or t0 >= t1: return
        e(f"s_lshl_b32 s10, s4, 16\ns_lshl_b32 s11, s{self.S_LW}, 8\ns_add_u32 s10, s10, s11")
        if t0: e(f"s_add_u32 s10, s10, {1024 * t0}")
        for t in range(t0, t1):
            e.mem(f"buffer_load_dwordx4 {vr(self.W+4*t,4)}, v{self.VW}, {srd(s)}, s10 offen offset:{1024*(t&3)} nt")
            if t & 3 == 3: e("s_add_u32 s10, s10, 4096")

    def a_compute(self):
        e = self.e; e.vm = 0
        AC, AT, AQ, M, TA, T = 1, 2, 3, 4, 6, 8
        FR, S, O, PV = 16, 48, 64, 128
        e("L_AC:")
        self.role = "AC"
        self.pt("start")
        e.L.append("; split")
        e(f"v_lshlrev_b32 v{T}, 4, v0\ns_waitcnt lgkmcnt(0)")
        self.epoch_load()
        self.mk_srd(SRD_WS, P_WS, WS_USED); self.mk_srd(SRD_D, P_BWO, 4 << 20); self.mk_srd(SRD_E, P_OUT, 4096)
        for r in range(4): e(f"v_mov_b32 v{FR+r}, -1")
        skip = e.lab("L_skip"); two = e.lab("L_two")
        e(f"""s_lshl_b32 s10, s4, 14
        s_lshl_b32 s11, s3, 12
        s_add_u32 s10, s10, s11
        s_add_u32 s10, s10, {MB}
        s_cmp_eq_u32 s3, 0
        s_cbranch_scc1 {two}
        s_cmp_eq_u32 s3, 3
        s_cbranch_scc1 {skip}
        s_cmp_ge_u32 s4, 32
        s_cbranch_scc1 {skip}
        buffer_store_dwordx4 {vr(FR,4)}, v{T}, {srd(SRD_WS)}, s10 offen offset:3072 sc1 ; c:CLR
        {two}:""")
        for i in range(3): e(f"buffer_store_dwordx4 {vr(FR,4)}, v{T}, {srd(SRD_WS)}, s10 offen offset:{1024*i} sc1 ; c:CLR")
        e(f"{skip}:")
        e(f"s_mov_b32 s{S_SC}, {f2u(SCALE):#x}\ns_mov_b32 s{S_SPIN}, {SPIN}")
        self.row_addr(AC, T + 1)
        e(f"""v_add_u32 v{AQ}, {X}, v{AC}
        s_lshl_b32 s10, s3, 15
        v_add_u32 v{AC}, s10, v{AC}
        v_lshrrev_b32 v{T+2}, 5, v0
        v_bfe_u32 v{T+1}, v0, 2, 2
        v_lshl_add_u32 v{T+3}, v{T+2}, 2, v{T+1}
        v_lshlrev_b32 v{AT}, 10, v{T+3}
        v_bfe_u32 v{T+3}, v0, 4, 1
        v_lshlrev_b32 v{T+3}, 1, v{T+3}
        v_bfe_u32 v{T+4}, v0, 1, 1
        v_or_b32 v{T+3}, v{T+3}, v{T+4}
        v_xor_b32 v{T+3}, v{T+3}, v{T+2}
        v_lshl_add_u32 v{T+3}, v{T+1}, 2, v{T+3}
        v_lshl_add_u32 v{AT}, v{T+3}, 4, v{AT}
        v_and_b32 v{T+3}, 1, v0
        v_lshl_add_u32 v{AT}, v{T+3}, 3, v{AT}
        s_lshl_b32 s10, s3, 8
        v_add_u32 v{AT}, s10, v{AT}""")
        self.epoch_tag()
        def tr_addr():
            for k in range(8):
                e(f"v_xor_b32 v{S+k}, {(2*k) << 4}, v{AT}")
                if k & 1: e(f"v_add_u32 v{S+k}, 8192, v{S+k}")
        def tr_step():
            for k in range(8): e(f"v_add_u32 v{S+k}, 65536, v{S+k}")
        def tr_ct(u, ct):
            for hh in range(2):
                last = e.ds(f"ds_read_b64_tr_b16 {vr(PV+16*(u&7)+4*ct+2*hh,2)}, v{S+2*ct+hh} offset:{32768*((u>>1)&1)+16384*(u&1)}")
            return last
        tr_addr()
        e(f"""s_and_b32 s9, s4, 7
        s_lshl_b32 s9, s9, 11
        s_add_u32 s9, s9, {FA}
        v_lshlrev_b32 v{FR+10}, 3, v0""")
        def qc_load():
            for i in range(3): e(f"buffer_load_dwordx2 {vr(FR+4+2*i,2)}, v{FR+10}, {srd(SRD_WS)}, s9 offen offset:{512*i} sc1 ; c:LQC")
        def q_load():
            for i in range(8): e(f"buffer_load_dwordx4 {vr(O+4*i,4)}, v{T}, {srd(SRD_WS)}, s{70+(i>>2)} offen offset:{1024*(i&3)} sc1 ; c:LQA")
        e(f"""s_lshr_b32 s70, s4, 5
        s_lshl_b32 s70, s70, 15
        s_lshl_b32 s71, s3, 13
        s_add_u32 s70, s70, s71
        s_add_u32 s70, s70, {QAP}
        s_add_u32 s71, s70, 4096""")
        qat = self.o["qat"]
        def flags_then_q():
            top, done = e.lab("L_spin"), e.lab("L_ok")
            e(f"""{top}:
            s_waitcnt vmcnt(0)
            v_cmp_ne_u64 vcc, s[{TAG}:{TAG+1}], {vr(FR+4,2)}
            v_cmp_ne_u64 s[12:13], s[{TAG}:{TAG+1}], {vr(FR+6,2)}
            s_or_b64 vcc, vcc, s[12:13]
        v_cmp_ne_u64 s[12:13], s[{TAG}:{TAG+1}], {vr(FR+8,2)}
        s_or_b64 vcc, vcc, s[12:13]
            s_cbranch_vccz {done}""")
            qc_load()
            self.spin_tail(top, done)
            self.pt("qc")
            q_load()
        for t in range(4):
            if t == 1: e("s_waitcnt vmcnt(0)")
            e("s_barrier")
            self.pt(f"t{t}")
            if t == 1:
                skip = self.only_wave(0)
                e("s_lshr_b32 s12, s4, 3\ns_and_b32 s13, s4, 7\ns_add_u32 s13, s13, 8")
                self.post_b(12, 13, FR)
                self.post_a(4, 1024, FR + 12)
                e(f"{skip}:")
            if t == self.o["fat"]: qc_load()
            if t == qat: flags_then_q()
            if t == 2: tr_step()
            e.ds_reset()
            for u in (2 * t, 2 * t + 1):
                for ct in range(4): tr_ct(u, ct)
            e("s_waitcnt lgkmcnt(0)")
        e("s_barrier")
        self.pt("half")
        if qat == 4: flags_then_q()
        e(f"""s_lshl_b32 s12, s3, 13
        s_add_u32 s12, s12, {X}
        s_and_b32 s13, s3, 1
        s_lshl_b32 s13, s13, 5
        v_xor_b32 v{T+1}, s13, v{T}
        v_add_u32 v{T+1}, s12, v{T+1}""")
        top, done = e.lab("L_spin"), e.lab("L_ok")
        e(f"{top}:\ns_waitcnt vmcnt(0)")
        self.max3_chain("u32", T + 2, range(O, O + 16)); self.max3_chain("u32", T + 3, range(O + 16, O + 32))
        e(f"v_max_u32 v{T+2}, v{T+2}, v{T+3}\nv_cmp_eq_u32 vcc, -1, v{T+2}\ns_cbranch_vccz {done}")
        self.pt("qr")
        q_load()
        self.spin_tail(top, done)
        self.pt("qd")
        for i in range(8):
            sw = ((i & 3) << 2) | (i >> 2)
            e(f"v_xor_b32 v{TA+(i&1)}, {sw << 4}, v{T+1}\nds_write_b128 v{TA+(i&1)}, {vr(O+4*i,4)} offset:{1024*i}")
        e("s_waitcnt lgkmcnt(0)\ns_barrier")
        self.pt("b1")
        e(f"v_add_u32 v{T}, {X+self.X_P}, v{T}")
        self.stat_addr(T + 3, T + 1)
        e(f"""s_lshl_b32 s10, s3, 7
        s_add_u32 s10, s10, {X+self.X_AL}
        v_and_b32 v{T+1}, 31, v0
        v_lshl_add_u32 v{AQ}, v{T+1}, 2, s10
        v_lshrrev_b32 v{T+1}, 5, v0
        v_lshl_add_u32 v{AC}, v{T+1}, 4, s10""")
        tr_addr()
        def pv(rnd):
            e.ds_reset()
            pt_ = [e.ds(f"ds_read_b128 {vr(FR+4*u,4)}, v{T} offset:{8192*rnd+1024*u}") for u in range(8)]
            for u in range(8):
                e.dswait(pt_[u])
                for ct in range(4):
                    e(f"v_mfma_f32_32x32x16_bf16 {vr(O+16*ct,16)}, {vr(FR+4*u,4)}, {vr(PV+16*u+4*ct,4)}, {vr(O+16*ct,16) if u or rnd else 0}")
        e("s_barrier\ns_barrier\ns_barrier")
        self.pt("bp0")
        pv(0)
        e("s_barrier")
        self.pt("bd")
        e.ds_reset()
        for u in range(8):
            if u == 4: tr_step()
            for ct in range(4): tr_ct(u, ct)
        e(f"""s_waitcnt lgkmcnt(0)
        s_barrier
        ds_read_b128 {vr(FR,4)}, v{T+3} offset:{self.X_MAX}
        ds_read_b128 {vr(FR+4,4)}, v{T+3} offset:{self.X_MAX+16}
        s_waitcnt lgkmcnt(0)""")
        self.max3_chain("f32", T + 1, range(FR, FR + 4))
        self.max3_chain("f32", M, [T + 1] + list(range(FR + 4, FR + 8)))
        e(f"""v_mul_f32 v{T+1}, s{S_SC}, v{T+1}
        v_mul_f32 v{M}, s{S_SC}, v{M}
        v_sub_f32 v{T+1}, v{T+1}, v{M}
        v_exp_f32 v{T+1}, v{T+1}
        ds_write_b32 v{AQ}, v{T+1}""")
        for q in range(4): e(f"ds_read_b128 {vr(S+4*q,4)}, v{AC} offset:{32*q}")
        e("s_waitcnt lgkmcnt(0)")
        for ct in range(4):
            for r in range(16): e(f"v_mul_f32 v{O+16*ct+r}, v{O+16*ct+r}, v{S+r}")
        e("s_barrier")
        self.pt("bp")
        pv(1)
        self.pt("pv")
        e(f"""v_lshrrev_b32 v{T}, 5, v0
        v_lshlrev_b32 v{T}, 18, v{T}
        v_bfe_u32 v{T+1}, v0, 4, 1
        v_lshl_add_u32 v{T}, v{T+1}, 16, v{T}
        v_and_b32 v{T+1}, 15, v0
        v_lshl_add_u32 v{T}, v{T+1}, 4, v{T}
        s_lshl_b32 s10, s4, 10
        s_lshl_b32 s11, s3, 8
        s_add_u32 s10, s10, s11
        s_add_u32 s10, s10, {AP}""")
        for r in range(16):
            d = FR + 2 * r
            e(f"v_cvt_pk_bf16_f32 v{d}, v{O+r}, v{O+16+r}\nv_cvt_pk_bf16_f32 v{d+1}, v{O+32+r}, v{O+48+r}")
            if r >= 3 and r & 1:
                k = FR + 2 * (r - 3)
                e(f"v_permlane16_swap_b32 v{k}, v{k+2}\nv_permlane16_swap_b32 v{k+1}, v{k+3}")
                e(f"buffer_store_dwordx4 {vr(k,4)}, v{T}, {srd(SRD_WS)}, s10 offen sc1 ; c:AP")
                e(f"s_add_u32 s10, s10, {65536 * (6 if (r - 3) & 2 else 2)}")
        k = FR + 28
        e(f"v_permlane16_swap_b32 v{k}, v{k+2}\nv_permlane16_swap_b32 v{k+1}, v{k+3}")
        e(f"buffer_store_dwordx4 {vr(k,4)}, v{T}, {srd(SRD_WS)}, s10 offen sc1 ; c:AP")
        skip = self.only_wave(0)
        e(f"""ds_read_b128 {vr(S,4)}, v{T+3} offset:{self.X_L}
        v_lshlrev_b32 v{T+1}, 3, v0
        s_lshl_b32 s10, s4, 8
        s_add_u32 s10, s10, {AST}
        s_waitcnt lgkmcnt(0)""")
        self.tree("v_add_f32", S, 4, 1)
        e(f"""v_mov_b32 v{S+1}, v{S}
        v_mov_b32 v{S}, v{M}
        s_mov_b32 exec_hi, 0
        buffer_store_dwordx2 {vr(S,2)}, v{T+1}, {srd(SRD_WS)}, s10 offen sc1
        s_mov_b64 exec, -1
        {skip}:
        s_mov_b32 s5, s3
        s_mov_b32 s6, 1""")
        skip = e.lab("L_skip")
        e(f"""v_mov_b32 v100, {X+self.X_CNT+64}
        v_mov_b32 v101, 1
        s_mov_b64 exec, 1
        s_waitcnt vmcnt(0)
        ds_add_rtn_u32 v102, v100, v101
        s_waitcnt lgkmcnt(0)
        v_cmp_eq_u32 vcc, 3, v102
        s_mov_b64 exec, -1
        s_cbranch_vccz {skip}""")
        if self.o["wb"]: e("buffer_wbl2 sc1\ns_waitcnt vmcnt(0)")
        self.post_a(4, 1536, 96)
        e(f"{skip}:")
        self.pt("b9")
        self.vw_addr()
        self.tail_setup()
        self.masks(0x03030303, 0x03030303)
        self.wload(SRD_D)
        self.lds_wait(X + self.X_CNT + 64, 100)
        e(f"""s_mov_b32 s{S_SPIN}, {SPIN * 20}
        v_lshlrev_b32 v{self.A_CW}, 2, v0
        v_subrev_u32 v{self.A_CR}, s{self.S_PRIV}, v{self.A_CR}
        s_cmp_eq_u32 s3, 0
        s_cbranch_scc1 L_BPRE
        v_mov_b32 v100, {X + self.X_CNT + 128}
        s_waitcnt vmcnt(0)""")
        top = e.lab("L_spin")
        XR = self.XR
        e(f"""{top}:
        ds_read_b32 v101, v100
        ds_read_b128 {vr(XR,4)}, v{self.A_CR} offset:1024
        ds_read_b128 {vr(XR+4,4)}, v{self.A_CR} offset:1040
        s_waitcnt lgkmcnt(0)
        v_cmp_ne_u32 vcc, 0, v101
        s_cbranch_vccnz L_CORE2
        s_sub_u32 s{S_SPIN}, s{S_SPIN}, 1
        s_cbranch_scc0 {top}
        s_branch L_CORE2
        L_BPRE:
        s_mov_b32 s{S_SPIN}, {SPIN}
        v_mov_b32 v100, {X + self.X_CNT + 128}
        v_mov_b32 v101, 1""")
        self.b_pre()

    def b_pre(self):
        e = self.e
        T, U, G, A_CW, S_PRIV, S_MBJ = self.T, self.U, 104, self.A_CW, self.S_PRIV, self.S_MBJ
        e(f"""v_bfe_u32 v{T}, v0, 4, 1
        v_mul_u32_u24 v{T}, 6144, v{T}
        v_and_b32 v{T+1}, 15, v0
        v_lshl_add_u32 v{T}, v{T+1}, 6, v{T}
        s_lshr_b32 s10, s4, 3
        s_mul_i32 s10, s10, 768
        s_bfe_u32 s11, s4, 0x20001
        s_lshl_b32 s11, s11, 4
        s_add_u32 s10, s10, s11
        s_add_u32 s10, s10, {BS}
        s_mov_b32 s12, 0x0fff0fff
        s_mov_b32 s13, 0
        v_mov_b32 v{U+5}, 0xff
        s_mov_b64 exec, s[12:13]""")
        top, done = e.lab("L_spin"), e.lab("L_ok")
        e(f"""{top}:
        buffer_load_dwordx4 {vr(U,4)}, v{T}, {srd(SRD_WS)}, s10 offen sc1
        s_waitcnt vmcnt(0)""")
        self.tag_check(U, 2, U + 4)
        e(f"v_cmp_ne_u32 vcc, 0, v{U+4}\ns_cbranch_vccz {done}")
        self.spin_tail(top, done, self.o["sl_bs"])
        e(f"s_mov_b64 exec, -1\nv_mov_b32 v{U+1}, v{U+2}")
        self.pt("bstat")
        e(f"""v_mov_b32 v{U+2}, 0xff800000
        v_cndmask_b32 v{U}, v{U+2}, v{U}, s[12:13]
        v_cndmask_b32 v{U+1}, 0, v{U+1}, s[12:13]
        v_mov_b32 v{U+2}, v{U}""")
        self.row_red("v_max_f32", U + 2, (1, 2, 4, 8))
        e(f"v_sub_f32 v{U}, v{U}, v{U+2}\nv_exp_f32 v{U}, v{U}\nv_mul_f32 v{U+1}, v{U}, v{U+1}")
        self.row_red("v_add_f32", U + 1, (1, 2, 4, 8))
        WG = 160
        e(f"""v_rcp_f32 v{U+1}, v{U+1}
        v_mul_f32 v{U}, v{U}, v{U+1}
        ds_write_b32 v{A_CW}, v{U} offset:1536
        v_lshrrev_b32 v{T}, 5, v0
        v_lshl_add_u32 v{T+1}, v{T}, 6, s{S_PRIV}
        v_mul_u32_u24 v{T}, 1536, v{T}
        v_and_b32 v{T+2}, 31, v0
        v_lshl_add_u32 v{T}, v{T+2}, 2, v{T}
        s_mov_b32 s12, 0xffff0000
        s_waitcnt lgkmcnt(0)""")
        for q in range(3): e(f"ds_read_b128 {vr(WG+4*q,4)}, v{T+1} offset:{1536+16*q}")
        top, done = e.lab("L_spin"), e.lab("L_ok")
        e(f"{top}:")
        self.pt("or")
        for sp in range(12): e(f"buffer_load_dword v{G+sp}, v{T}, {srd(SRD_WS)}, s{S_MBJ} offen offset:{128*sp} sc1 ; c:LMB")
        e("s_waitcnt vmcnt(0) lgkmcnt(0)")
        self.max3_chain("u32", T + 1, range(G, G + 12))
        e(f"v_cmp_eq_u32 vcc, -1, v{T+1}\ns_cbranch_vccz {done}")
        self.spin_tail(top, done, self.o["sl_bo"])
        self.pt("bo")
        for sp in range(12): e(f"v_lshlrev_b32 v{G+12+sp}, 16, v{G+sp}\nv_and_b32 v{G+sp}, s12, v{G+sp}")
        e(f"v_mul_f32 v{U}, v{G+12}, v{WG}\nv_mul_f32 v{U+1}, v{G}, v{WG}\nv_mul_f32 v{U+2}, v{G+13}, v{WG+1}\nv_mul_f32 v{U+3}, v{G+1}, v{WG+1}")
        for sp in range(2, 12):
            k = 2 * (sp & 1)
            e(f"v_fmac_f32 v{U+k}, v{G+12+sp}, v{WG+sp}\nv_fmac_f32 v{U+k+1}, v{G+sp}, v{WG+sp}")
        e(f"""v_add_f32 v{U}, v{U}, v{U+2}
        v_add_f32 v{U+1}, v{U+1}, v{U+3}
        v_cvt_pk_bf16_f32 v{U}, v{U}, v{U+1}
        ds_write_b32 v{A_CW}, v{U} offset:1024
        ds_write_b32 v100, v101
        s_branch L_CORE1""")

    def a_loader(self):
        e = self.e; e.vm = 0
        VL, VW, TMP, SEL, BLO, BHI, T, U, W, G, WUV, AC0, AC1, PA, XR = (self.VL, self.VW, self.TMP, self.SEL, self.BLO,
            self.BHI, self.T, self.U, self.W, self.G, self.WUV, self.AC0, self.AC1, self.PA, self.XR)
        S_LW, S_PART, S_PRIV, S_MBJ = self.S_LW, self.S_PART, self.S_PRIV, self.S_MBJ
        XO, S, FR, AQ, AC, TA, M = 232, 16, 224, 4, 5, 6, 8
        CNT = X + self.X_CNT
        creg = lambda ks: (W + 4 * ks) if ks < 16 else (WUV + 4 * (ks - 16))
        e("L_AL:")
        self.role = "AL"
        self.pt("start")
        e(f"""s_sub_u32 s{S_LW}, s3, 4
        s_and_b32 s10, s3, 1
        s_lshl_b32 s10, s10, 5
        v_lshlrev_b32 v{VL}, 4, v0
        v_xor_b32 v{T}, s10, v{VL}""")
        for i in range(8): e(f"v_xor_b32 v{XO+i}, {(((i & 3) << 2) | (i >> 2)) << 4}, v{T}")
        e(f"""s_lshl_b32 s66, s4, 18
        s_lshl_b32 s67, s{S_LW}, 13
        s_add_u32 s66, s66, s67
        s_waitcnt lgkmcnt(0)""")
        self.mk_srd(SRD_A, P_CKV, 16 << 20)
        dma = []
        def dma_tile(t):
            for r in range(8):
                if r & 3 == 0: e("s_mov_b32 m0, s67")
                last = e.mem(f"buffer_load_dwordx4 v{XO+r}, {srd(SRD_A)}, s66 offen offset:{1024*(r&3)} nt lds")
                if r == 3: e("s_add_u32 s66, s66, 4096\ns_add_u32 s67, s67, 4096")
                if r == 7: e(f"s_add_u32 s66, s66, 28672\ns_add_u32 s67, s67, {28672 if t != 3 else (28672 - 131072) & 0xffffffff:#x}")
            dma.append(last)
        a0 = self.o["a0"]
        dma_tile(0)
        e.L.append("; split")
        for t in range(1, a0): dma_tile(t)
        if self.stamps: self.mk_srd(SRD_WS, P_WS, WS_USED)
        self.row_addr(AC, T)
        e(f"""v_add_u32 v{AQ}, {X}, v{AC}
        s_lshl_b32 s10, s{S_LW}, 15
        v_add_u32 v{AC}, s10, v{AC}
        s_mov_b32 s{S_SC}, {f2u(SCALE):#x}""")
        for t in range(5):
            if t < 4: e.wait(dma[t])
            e("s_barrier")
            self.pt(f"bar{t}")
            while len(dma) < min(8, a0 + t + 1, 4 + t) or (t == 4 and len(dma) < 8): dma_tile(len(dma))
            self.pt(f"iss{t}")
            if t < 4:
                skip = self.only_wave(4 + t)
                for i in range(8):
                    e(f"v_xor_b32 v{TA+(i&1)}, {i << 5}, v{AC}")
                    for q in range(4): e(f"ds_read_b128 {vr(creg(i+8*q),4)}, v{TA+(i&1)} offset:{256*q}")
                    if i & 1: e("s_waitcnt lgkmcnt(4)")
                e(f"s_waitcnt lgkmcnt(0)\n{skip}:")
        self.stat_addr(T + 2, T + 3)
        e(f"s_lshl_b32 s10, s{S_LW}, 2\nv_add_u32 v{T+3}, s10, v{T+2}\ns_barrier")
        self.qk(0, S, FR, AQ, TA, creg)
        self.softmax(0, S, FR + 16, M, TMP, T, S_LW)
        e("s_waitcnt vmcnt(0)")
        self.pt("dma")
        e("s_barrier")
        self.qk(1, S, FR, AC, TA, creg)
        self.softmax(1, S, FR + 16, M, TMP, T, S_LW)
        pv = self.o["pv"]
        if pv:
            npt = self.o["pb"]; assert self.o["pa"] == npt
            self.mk_srd(SRD_B, P_BV, 32 << 20)
            e(f"""s_lshr_b32 s10, s4, 3
            s_lshl_b32 s10, s10, 1
            s_lshr_b32 s11, s{S_LW}, 1
            s_add_u32 s10, s10, s11
            s_lshl_b32 s10, s10, 21
            s_and_b32 s11, s4, 7
            s_mul_i32 s11, s11, {8 * npt}
            s_and_b32 s12, s{S_LW}, 1
            s_lshl_b32 s12, s12, 1
            s_add_u32 s12, s12, {self.o['pvw']}
            s_mul_i32 s12, s12, {npt}
            s_add_u32 s11, s11, s12
            s_add_u32 s11, s11, {npt - pv}
            s_lshl_b32 s11, s11, 12
            s_add_u32 s10, s10, s11
            s_add_u32 s11, s10, {4096 * npt}""")
            if self.o["pvwait"]: self.lds_wait(X + self.X_CNT + 64, T)
            k = 0
            for t in range(pv):
                for sr in (10, 11):
                    for j in range(4):
                        if k >= self.o["pvwin"]: e(f"s_waitcnt vmcnt({self.o['pvwin'] - 1})")
                        e(f"buffer_load_dwordx4 {vr(32 + 4 * k, 4)}, v{VL}, {srd(SRD_B)}, s{sr} offen offset:{1024 * j} nt"); k += 1
                    e(f"s_add_u32 s{sr}, s{sr}, 4096")
            e("s_waitcnt vmcnt(0)")
        self.pt("end")
        self.stamp_out(32)
        e("s_endpgm")

    def a_tail(self):
        e = self.e; e.vm = 0
        VL, VW, TMP, SEL, BLO, BHI, T, U, W, G, AC0, AC1, PA, XR = (self.VL, self.VW, self.TMP, self.SEL, self.BLO,
            self.BHI, self.T, self.U, self.W, self.G, self.AC0, self.AC1, self.PA, self.XR)
        S_LW, S_PART, S_PRIV, S_MBJ = self.S_LW, self.S_PART, self.S_PRIV, self.S_MBJ
        UV, GA, L_W = 96, 160, 32768
        e("L_ATAIL:")
        self.role = "Q"
        e(f"s_mov_b32 s{S_LW}, s3\ns_mov_b32 s{S_PART}, 0\ns_mov_b32 s{S_SPIN}, {SPIN}")
        self.vw_addr()
        self.tail_setup()
        e(f"""s_lshl_b32 s10, s3, 14
        s_add_u32 s10, s10, {L_W}
        v_add_u32 v{T}, s10, v{VL}
        v_add_u32 v{T+1}, 65536, v{T}""")
        e.ds_reset()
        for t in range(16): e.ds(f"ds_read_b128 {vr(UV+4*t,4)}, v{T} offset:{1024*t}")
        for t in range(16): e.ds(f"ds_read_b128 {vr(W+4*t,4)}, v{T+1} offset:{1024*t}")
        e("s_waitcnt lgkmcnt(0)\ns_barrier")
        self.pt('free')
        self.poll_a(1536, U)
        self.pt("apf")
        e.vm = 0
        e(f"""s_lshr_b32 s12, s4, 1
        s_lshl_b32 s10, s12, 3
        s_add_u32 s10, s10, {AST}
        v_lshlrev_b32 v{T}, 8, v0""")
        st = e.mem(f"buffer_load_dwordx2 {vr(U,2)}, v{T}, {srd(SRD_WS)}, s10 offen sc1")
        e(f"""s_lshl_b32 s10, s12, 16
        s_lshl_b32 s11, s{S_LW}, 8
        s_add_u32 s10, s10, s11
        s_add_u32 s10, s10, {AP}""")
        g = []
        for t in range(16):
            g.append(e.mem(f"buffer_load_dwordx4 {vr(GA+4*t,4)}, v{VW}, {srd(SRD_WS)}, s10 offen offset:{1024*(t&3)} sc1 ; c:LAP"))
            if t & 3 == 3: e("s_add_u32 s10, s10, 4096")
        self.masks(0x00030003, 0x03000300)
        e(f"""v_lshl_add_u32 v{T}, v0, 1, s{S_PRIV}
        v_lshrrev_b32 v{T+1}, 4, v0
        v_lshl_add_u32 v{T+1}, v{T+1}, 5, s{S_PRIV}""")
        e.wait(st)
        e(f"v_mov_b32 v{U+2}, v{U}")
        self.row_red("v_max_f32", U + 2, (1, 2, 4, 8)); self.swap_red("v_max_f32", U + 2, TMP, (16,))
        e(f"v_sub_f32 v{U}, v{U}, v{U+2}\nv_exp_f32 v{U}, v{U}\nv_mul_f32 v{U+1}, v{U}, v{U+1}")
        self.row_red("v_add_f32", U + 1, (1, 2, 4, 8)); self.swap_red("v_add_f32", U + 1, TMP, (16,))
        e(f"""v_rcp_f32 v{U+1}, v{U+1}
        v_mul_f32 v{U}, v{U}, v{U+1}
        v_cvt_pk_bf16_f32 v{U}, v{U}, v{U}
        ds_write_b16 v{T}, v{U}
        s_waitcnt lgkmcnt(0)
        ds_read_b128 {vr(XR,4)}, v{T+1}
        ds_read_b128 {vr(XR+4,4)}, v{T+1} offset:16
        v_lshrrev_b32 v{T}, 5, v0
        v_lshlrev_b32 v{T}, 8, v{T}
        v_and_b32 v{T+1}, 15, v0
        v_lshl_add_u32 v{T}, v{T+1}, 1, v{T}
        v_bfe_u32 v{T+1}, v0, 4, 1
        v_lshl_add_u32 v{T}, v{T+1}, 5, v{T}
        v_add_u32 v{T}, s{S_PRIV}, v{T}
        v_bfe_u32 v{T+1}, v0, 3, 1
        v_lshlrev_b32 v{T+1}, 8, v{T+1}
        v_lshrrev_b32 v{T+2}, 4, v0
        v_lshl_add_u32 v{T+1}, v{T+2}, 6, v{T+1}
        v_bfe_u32 v{T+2}, v0, 2, 1
        v_lshl_add_u32 v{T+1}, v{T+2}, 5, v{T+1}
        v_add_u32 v{T+1}, s{S_PRIV}, v{T+1}
        s_waitcnt lgkmcnt(0)""")
        self.rws256(16, XR, GA, AC0, BLO, BHI, PA, g)
        self.pt("lat")
        e(f"""v_cvt_pk_bf16_f32 v{U}, v{AC0}, v{AC0+1}
        v_cvt_pk_bf16_f32 v{U+1}, v{AC0+2}, v{AC0+3}
        ds_write_b16 v{T}, v{U} offset:256
        ds_write_b16_d16_hi v{T}, v{U} offset:320
        ds_write_b16 v{T}, v{U+1} offset:384
        ds_write_b16_d16_hi v{T}, v{U+1} offset:448
        s_waitcnt lgkmcnt(0)
        ds_read_b128 {vr(XR,4)}, v{T+1} offset:256
        ds_read_b128 {vr(XR+4,4)}, v{T+1} offset:272""")
        for z in (0, 1, 4, 5, 8, 9): e(f"v_mov_b32 v{PA+z}, 0")
        e(f"""v_bfe_u32 v{T}, v0, 3, 1
        v_lshlrev_b32 v{T}, 9, v{T}
        v_lshrrev_b32 v{T+1}, 5, v0
        v_lshl_add_u32 v{T}, v{T+1}, 8, v{T}
        v_and_b32 v{T+1}, 7, v0
        v_lshl_add_u32 v{T}, v{T+1}, 5, v{T}
        s_lshl_b32 s10, s{S_LW}, 10
        v_add_u32 v{T}, s10, v{T}
        s_waitcnt lgkmcnt(0)""")
        self.rws128(16, XR, UV, AC0, AC1, SEL, PA)
        RED = 16384
        e(f"""s_mov_b32 exec_lo, 0xff0000ff
        s_mov_b32 exec_hi, 0xff0000ff
        ds_write_b128 v{T}, {vr(AC0,4)} offset:{RED}
        ds_write_b128 v{T}, {vr(AC1,4)} offset:{RED+16}
        s_mov_b64 exec, -1
        v_lshlrev_b32 v{T}, 3, v0""")
        self.masks(0x03030303, 0x03030303)
        e("s_waitcnt lgkmcnt(0)\ns_barrier")
        for i in range(8): e(f"ds_read_b64 {vr(U+2*i,2)}, v{T} offset:{RED+512*i}")
        e("s_waitcnt lgkmcnt(0)")
        self.tree("v_add_f32", U, 8, 2)
        self.pt("ctx")
        A_CW, A_CR, A_MB = self.A_CW, self.A_CR, self.A_MB
        e(f"""v_cvt_pk_bf16_f32 v{U}, v{U}, v{U+1}
        ds_write_b32 v{A_CW}, v{U} offset:1024
        L_CORE1:
        ds_read_b128 {vr(XR,4)}, v{A_CR} offset:1024
        ds_read_b128 {vr(XR+4,4)}, v{A_CR} offset:1040
        L_CORE2:
        s_lshl_b32 s10, s{S_LW}, 15
        s_lshl_b32 s11, s4, 7
        s_add_u32 s10, s10, s11
        s_lshl_b32 s11, s{S_PART}, 18
        s_add_u32 s10, s10, s11
        s_add_u32 s10, s10, {MB+MB_2}
        s_waitcnt lgkmcnt(0)""")
        self.pt("cx")
        self.rws256(16, XR, W, AC0, BLO, BHI, PA)
        e(f"""v_cvt_pk_bf16_f32 v{AC1}, v{AC0}, v{AC0+1}
        v_cvt_pk_bf16_f32 v{AC1+1}, v{AC0+2}, v{AC0+3}
        v_min_u32 v{AC1}, -2, v{AC1}
        v_min_u32 v{AC1+1}, -2, v{AC1+1}
        v_mov_b32 v{AC1+2}, v{AC1}
        v_mov_b32 v{AC1+3}, v{AC1+1}
        v_permlane16_swap_b32 v{AC1}, v{AC1+2}
        v_permlane16_swap_b32 v{AC1+1}, v{AC1+3}
        s_mov_b32 exec_lo, 0xffff
        s_mov_b32 exec_hi, 0xffff
        buffer_store_dwordx4 {vr(AC1,4)}, v{A_MB}, {srd(SRD_WS)}, s10 offen sc1 ; c:MB2
        s_mov_b64 exec, -1""")
        self.pt("core")
        e(f"""s_lshr_b32 s10, s4, 4
        s_cmp_lg_u32 s10, s{S_PART}
        s_cbranch_scc1 L_FINDONE
        s_cmp_lg_u32 s{S_LW}, 0
        s_cbranch_scc1 L_FINDONE
        s_add_u32 s10, s{S_MBJ}, {MB_2}
        s_add_u32 s11, s10, 4096
        v_mov_b32 v{T}, 0x3f803f80
        v_perm_b32 v{PA+2}, v{T}, v{T}, v{SEL}
        v_perm_b32 v{PA+3}, v{T}, v{T}, v{SEL+1}""")
        for z in (0, 1, 4, 5): e(f"v_mov_b32 v{PA+z}, 0")
        top, done = e.lab("L_spin"), e.lab("L_ok")
        e(f"{top}:")
        self.pt("fr")
        for i in range(8): e(f"buffer_load_dwordx4 {vr(G+4*i,4)}, v{VL}, {srd(SRD_WS)}, s{10+(i>>2)} offen offset:{1024*(i&3)} sc1 ; c:LMB")
        for i in range(8):
            e(f"s_waitcnt vmcnt({7-i})")
            e(f"v_mfma_f32_16x16x32_bf16 {vr(AC0,4)}, {vr(PA+2,4)}, {vr(G+4*i,4)}, {vr(AC0,4) if i else 0}")
            e(f"v_mfma_f32_16x16x32_bf16 {vr(AC1,4)}, {vr(PA,4)}, {vr(G+4*i,4)}, {vr(AC1,4) if i else 0}")
            if i == 0: e(f"v_max3_u32 v{T}, v{G}, v{G+1}, v{G+2}\nv_max_u32 v{T}, v{T}, v{G+3}")
            else: e(f"v_max3_u32 v{T}, v{T}, v{G+4*i}, v{G+4*i+1}\nv_max3_u32 v{T}, v{T}, v{G+4*i+2}, v{G+4*i+3}")
        e(f"v_cmp_eq_u32 vcc, -1, v{T}\ns_cbranch_vccz {done}")
        self.spin_tail(top, done)
        self.pt("fp")
        for r in range(8): self.row_red("v_add_f32", AC0 + r, (8,))
        for r in range(4): e(f"v_cvt_pk_bf16_f32 v{G+r}, v{AC0+2*r}, v{AC0+2*r+1}")
        e(f"""s_bfe_u32 s10, s4, 0x10003
        s_lshl_b32 s10, s10, 11
        s_and_b32 s11, s4, 7
        s_lshl_b32 s11, s11, 7
        s_add_u32 s10, s10, s11
        s_lshl_b32 s11, s{S_PART}, 10
        s_add_u32 s10, s10, s11
        s_mov_b64 exec, 0xff
        buffer_store_dwordx4 {vr(G,4)}, v{VL}, {srd(SRD_E)}, s10 offen
        s_cmp_lg_u32 s4, 16
        s_cbranch_scc1 L_FINDONE
        s_mov_b64 exec, 1
        v_mov_b32 v{T}, s{TAG}
        s_mov_b32 s10, {EPOCH}
        buffer_store_dword v{T}, off, {srd(SRD_WS)}, s10
        L_FINDONE:""")
        self.pt("fin")
        self.stamp_out(16)
        e("s_endpgm")

    def build(self):
        e = self.e
        e("""s_cmp_ge_u32 s2, 256
        s_cbranch_scc1 L_END
        s_load_dwordx16 s[16:31], s[0:1], 0
        s_load_dwordx8 s[32:39], s[0:1], 64
        s_load_dwordx4 s[40:43], s[0:1], 96
        v_lshrrev_b32 v1, 6, v0
        v_and_b32 v0, 63, v0
        v_readfirstlane_b32 s3, v1
        s_sub_u32 s4, s2, 128""")
        tests = {"P": "s_cmp_lt_u32 s2, 128\ns_cbranch_scc1 L_P", "Q": "s_cmp_ge_u32 s2, 192\ns_cbranch_scc1 L_Q",
                 "L": "s_cmp_ge_u32 s5, 64\ns_cbranch_scc0 L_AL", "C": "s_cmp_lt_u32 s5, 64\ns_cbranch_scc1 L_AC"}
        order = self.o["order"]
        for r in order[1:]:
            if r == "L": e("s_cmp_ge_u32 s3, 4\ns_cselect_b32 s5, s4, 64")
            if r == "C": e("s_cmp_lt_u32 s3, 4\ns_cselect_b32 s5, s4, 64")
            e(tests[r])
        fn = {"P": lambda: self.bside("P"), "Q": lambda: (self.bside("Q"), self.a_tail()), "L": self.a_loader, "C": self.a_compute}
        marks = {}
        for r in order:
            i0 = len(e.L); fn[r](); marks[r] = (i0, len(e.L))
        if self.o["pack"]:
            heads, bodies = [], []
            for r in order:
                seg = e.L[marks[r][0]:marks[r][1]]
                k = seg.index("; split")
                heads += seg[:k] + [f"s_branch L_{r}_REST"]
                bodies += [f"L_{r}_REST:"] + seg[k + 1:]
            e.L = e.L[:marks[order[0]][0]] + heads + bodies
        e.L = [l for l in e.L if l != "; split"]
        e("L_END:\ns_endpgm")
        if "nobar" in self.x:
            i0 = e.L.index("L_P:"); i1 = e.L.index("L_AC:")
            e.L = e.L[:i0] + [l for l in e.L[i0:i1] if l != "s_barrier"] + e.L[i1:]
        if "nomath" in self.x:
            i0 = e.L.index("L_P:"); i1 = e.L.index("L_AC:")
            e.L = e.L[:i0] + [l for l in e.L[i0:i1] if not l.startswith(("v_mfma", "v_exp", "v_fma", "v_perm_", "v_add_f32", "v_mov_b32_dpp", "v_cvt", "v_max3"))] + e.L[i1:]
        if "noph1" in self.x:
            i0 = e.L.index("L_P:"); i1 = e.L.index("L_AC:")
            e.L = e.L[:i0] + [l for l in e.L[i0:i1] if not (l.startswith("buffer_load") and (srd(SRD_D) in l or srd(SRD_E) in l))] + e.L[i1:]
        for x in self.x:
            if x.startswith("c:"): e.L = [l for l in e.L if not l.endswith("; " + x)]
        for x in self.x:
            if x.startswith("m:"):
                tag, m = x[2:].split("=")
                e.L = [l.replace(" sc1", " " + m.replace("+", " ")) if l.endswith("; c:" + tag) else l for l in e.L]
            if x.startswith("allst="):
                m = x[6:].replace("+", " ")
                e.L = [l.replace(" sc1", " " + m if m else "") if l.startswith("buffer_store") else l for l in e.L]
        if "nost" in self.x:
            e.L = [l for l in e.L if not (l.startswith("buffer_store") and "sc1" in l)]
        if "nosc" in self.x:
            e.L = [l for l in e.L if not (l.startswith("buffer_load") and "sc1" in l)]
        if "noA" in self.x:
            for lab in ("L_AL:", "L_AC:"):
                i = e.L.index(lab); e.L.insert(i + 1, "s_endpgm")
        if "link" in self.x:
            e.L = [l.replace(", v1, s[48:51]", ", v2, s[48:51]") if l.startswith("buffer_load_dwordx4") and "lds" not in l else l for l in e.L]
        if self.o["wb"]: e.L = [l.replace(" sc1", "") if l.endswith("; c:AP") else l for l in e.L]
        body, npad = fix_hazards(e.L)
        out = [HEADER.rstrip(), "; @launch grid=(256,1,1) block=(512,1,1) lds=163840",
               '.amdgcn_target "amdgcn-amd-amdhsa--gfx950"', ".text", f".globl {NAME}_kernel", ".p2align 8",
               f".type {NAME}_kernel,@function", f"{NAME}_kernel:"]
        out += [("" if l.endswith(":") else "    ") + l for l in body]
        out += ['.section .rodata,"a"', ".p2align 6", f".amdhsa_kernel {NAME}_kernel",
                "  .amdhsa_next_free_vgpr 256", "  .amdhsa_next_free_sgpr 102", "  .amdhsa_accum_offset 256",
                "  .amdhsa_group_segment_fixed_size 0", "  .amdhsa_kernarg_size 112", "  .amdhsa_user_sgpr_count 2",
                "  .amdhsa_user_sgpr_kernarg_segment_ptr 1", "  .amdhsa_system_sgpr_workgroup_id_x 1",
                ".end_amdhsa_kernel"]
        return "\n".join(out) + "\n", npad

PTS = {"P": "start,xq,st,qf,q,k,v,end", "Q": "start,fin,w,free,end,core,apf,ctx",
       "AC": "start,fin,qd,b1,b9,core,pv,bo", "AL": "start,bar0,bar3,iss4,dma,x,y,end"}

if __name__ == "__main__":
    ap = argparse.ArgumentParser()
    ap.add_argument("out"); ap.add_argument("--stamps", action="store_true")
    ap.add_argument("--pts", action="append", default=[]); ap.add_argument("--x", default="")
    for k, v in DEFAULTS.items(): ap.add_argument("--" + k, type=int, default=v)
    ap.add_argument("--order", default="LPQC"); DEFAULTS["order"] = 0
    a = ap.parse_args()
    pts = {}
    if a.stamps:
        pts = {k: v.split(",") for k, v in PTS.items()}
        for p in a.pts:
            r, l = p.split(":"); pts[r] = l.split(",")
    s, npad = Gen({k: getattr(a, k) for k in DEFAULTS}, pts, set(a.x.split(","))).build()
    open(a.out, "w").write(s)
    print("wrote", a.out, "lines", s.count("\n"), "pads", npad)
```

```python
import sys, math, struct, argparse
from asmlib import Emit, fix_hazards

NAME = "concat_heads__compressed_kv_cla__gqa_block_cached__decode"
HEADER = open("cdna_kernels/%s.s.ref" % NAME).read().split("; Override launch")[0]

QBP = 0x000000
QAP = 0x020000
AST = 0x040000
BS  = 0x048000
FB  = 0x050000
EPOCH = 0x060000
FA  = 0x080000
MB  = 0x100000
MB_2 = 4096
AP  = 0x200000
XQ  = 0x400000
WS_USED = 0x500000
STAMPS = 0x800000

SCALE = math.log2(math.e) / math.sqrt(128.0)
def f2u(x): return struct.unpack("<I", struct.pack("<f", x))[0]

SRD_WS, SRD_A, SRD_B, SRD_C, SRD_D, SRD_E, SRD_F, SRD_G = 44, 48, 52, 56, 60, 64, 68, 96
P_AX, P_CKV, P_AWQ, P_WUK, P_WUV, P_AWO, P_BX, P_BK, P_BV, P_BWQ, P_BWO, P_OUT, P_DBG, P_WS = range(16, 44, 2)
S_SC, S_SPIN = 15, 14
MASK0 = 72
TAG = 94
ST0 = 16
SPIN = 20000
X = 131072

def srd(n): return f"s[{n}:{n+3}]"
def vr(a, n): return f"v[{a}:{a+n-1}]" if n > 1 else f"v{a}"

DEFAULTS = dict(cpf=1, t1x=2, il=1, pack=0, pa=6, pb=6, qa=4, qat=3, fat=2, uvb=0, pv=0, pvw=4, pvwait=1, pvwin=4, ne=4, we=2, sl_bo=0, kq=12, cu=2, wsb=0, wt1=8, pf1=1, pfwin=6, stw=0, sl_ap=4, sl_xq0=0, sl_xq=2, sl_qa=4, sl_bs=8, np=6, uv0=16, wa=0, wb=0, wc=0, pf=4, pfw=0, pre_q=0, uv1=8, a0=3, t2w=0, wq1=2, kq1=4, sleep=0, pre_p=0, w1=2, kf_p=0, kf_q=12, wq0=8, wk=8, wt=10, wv=8)

class Gen:
    def __init__(self, opt, pts, x):
        self.o = opt; self.alt = pts; self.x = x; self.role = None
        self.stamps = bool(pts)
        self.e = Emit()

    def mk_srd(self, d, p, size):
        self.e(f"s_mov_b32 s{d}, s{p}\ns_mov_b32 s{d+1}, s{p+1}\ns_mov_b32 s{d+2}, {size:#x}\ns_mov_b32 s{d+3}, 0x20000")

    def pt(self, name, role=None):
        sel = self.alt.get(role or self.role)
        if sel and name in sel:
            i = sel.index(name); self.e(f"s_memrealtime s[{80+2*i}:{81+2*i}]" if i < 7 else "s_memrealtime s[100:101]")

    def stamp_out(self, t):
        if not self.stamps: return
        e = self.e
        if "dbg" in self.x:
            skip = e.lab("L_skip")
            e(f"""s_waitcnt lgkmcnt(0)
            s_and_b32 s10, s2, 127
            s_lshl_b32 s10, s10, 3
            s_add_u32 s10, s10, s3
            s_cmp_lg_u32 s10, 0
            s_cbranch_scc1 {skip}
            s_lshr_b32 s10, s2, 7
            s_lshl_b32 s10, s10, 5
            s_mov_b64 exec, 1""")
            for x in self.x:
                if x.startswith("hold"):
                    top = e.lab("L_hold")
                    e(f"""{top}:
                    s_memrealtime s[12:13]
                    s_waitcnt lgkmcnt(0)
                    s_sub_u32 s12, s12, s80
                    s_cmp_lt_u32 s12, {int(x[4:])}
                    s_cbranch_scc1 {top}""")
            self.mk_srd(SRD_A, P_DBG, 256)
            regs = [80, 82, 84, 86, 88, 90, 92, 100]
            for k in range(8):
                e(f"s_sub_u32 s11, s{regs[k]}, {'s80' if k else '0'}\nv_mov_b32 v{t+k}, s11")
            e(f"buffer_store_dwordx4 v[{t}:{t+3}], off, {srd(SRD_A)}, s10\nbuffer_store_dwordx4 v[{t+4}:{t+7}], off, {srd(SRD_A)}, s10 offset:16")
            e(f"{skip}:")
            return
        e("s_waitcnt lgkmcnt(0)\ns_mov_b64 exec, 1")
        e(f"s_lshl_b32 s4, s2, 3\ns_add_u32 s4, s4, s3\ns_lshl_b32 s4, s4, 6\ns_add_u32 s4, s4, {STAMPS}")
        e(f"s_mov_b32 s{SRD_WS+2}, 0x1000000")
        regs = list(range(80, 94)) + [100, 101]
        for i in range(4):
            for k in range(4): e(f"v_mov_b32 v{t+k}, s{regs[4*i+k]}")
            e(f"buffer_store_dwordx4 v[{t}:{t+3}], off, {srd(SRD_WS)}, s4 offset:{16*i}")
            e("s_nop 2")

    def selectors(self, sel, base_lo, base_hi, tmp):
        self.e(f"""v_and_b32 v{tmp}, 1, v0
        v_cmp_eq_u32 vcc, 1, v{tmp}
        v_mov_b32 v{base_lo}, 0x0c0c0100
        v_mov_b32 v{tmp}, 0x01000c0c
        v_cndmask_b32 v{base_lo}, v{base_lo}, v{tmp}, vcc
        v_add_u32 v{base_hi}, 0x0202, v{base_lo}
        v_mov_b32 v{tmp}, 0x03020c0c
        v_cndmask_b32 v{base_hi}, v{base_hi}, v{tmp}, vcc
        v_and_b32 v{tmp}, 2, v0
        v_cmp_eq_u32 vcc, 0, v{tmp}
        v_mov_b32 v{tmp}, 0x0c0c0c0c
        v_cndmask_b32 v{sel}, v{tmp}, v{base_lo}, vcc
        v_cndmask_b32 v{sel+1}, v{base_lo}, v{tmp}, vcc
        v_cndmask_b32 v{sel+2}, v{tmp}, v{base_hi}, vcc
        v_cndmask_b32 v{sel+3}, v{base_hi}, v{tmp}, vcc""")

    def masks(self, lo, hi):
        for j in range(4):
            self.e(f"s_mov_b32 s{MASK0+2*j}, {(lo << (2*j)):#x}\ns_mov_b32 s{MASK0+2*j+1}, {(hi << (2*j)):#x}")

    def rws256(self, nload, x, w, acc, base_lo, base_hi, t0, waits=None):
        e = self.e
        for t in range(nload):
            a = t0 + 2 + 4 * (t & 1)
            e(f"v_perm_b32 v{t0}, v{x+(t>>1)}, v{x+(t>>1)}, v{base_hi if t & 1 else base_lo}")
            for j in range(4): e(f"v_cndmask_b32 v{a+j}, 0, v{t0}, s[{MASK0+2*j}:{MASK0+2*j+1}]")
            if waits: e.wait(waits[t])
            e(f"v_mfma_f32_16x16x32_bf16 {vr(acc,4)}, {vr(a,4)}, {vr(w+4*t,4)}, {vr(acc,4) if t else 0}")

    def rws128(self, nload, x, w, acc0, acc1, sel, pa):
        e = self.e
        for t in range(nload):
            p = pa + 2 + 4 * (t & 1)
            sa, sb = (sel + 2, sel + 3) if t & 1 else (sel, sel + 1)
            e(f"v_perm_b32 v{p}, v{x+(t>>1)}, v{x+(t>>1)}, v{sa}\nv_perm_b32 v{p+1}, v{x+(t>>1)}, v{x+(t>>1)}, v{sb}")
            e(f"v_mfma_f32_16x16x32_bf16 {vr(acc0,4)}, {vr(p,4)}, {vr(w+4*t,4)}, {vr(acc0,4) if t else 0}")
            e(f"v_mfma_f32_16x16x32_bf16 {vr(acc1,4)}, {vr(p-2,4)}, {vr(w+4*t,4)}, {vr(acc1,4) if t else 0}")

    def quad_sum(self, ds):
        for r in range(4):
            for d in ds:
                q = f"quad_perm:[{r},{r},{r},{r}] row_mask:0xf bank_mask:0xf"
                self.e(f"v_mov_b32_dpp v{d}, v{d} {q}" if r == 0 else f"v_add_f32_dpp v{d}, v{d+r}, v{d} {q}")

    def swap_red(self, op, x, t, which):
        for s in which:
            self.e(f"v_mov_b32 v{t}, v{x}\nv_permlane{s}_swap_b32 v{x}, v{t}\n{op} v{x}, v{x}, v{t}")

    def row_red(self, op, x, rots):
        for r in rots:
            self.e(f"{op}_dpp v{x}, v{x}, v{x} row_ror:{r} row_mask:0xf bank_mask:0xf")

    def tree(self, op, base, n, width):
        st = 1
        while st < n:
            for i in range(0, n, 2 * st):
                for r in range(width): self.e(f"{op} v{base+width*i+r}, v{base+width*i+r}, v{base+width*(i+st)+r}")
            st *= 2

    def max3_chain(self, op, dst, regs):
        regs = list(regs)
        self.e(f"v_max3_{op} v{dst}, v{regs[0]}, v{regs[1]}, v{regs[2]}")
        regs = regs[3:]
        while len(regs) >= 2:
            self.e(f"v_max3_{op} v{dst}, v{dst}, v{regs[0]}, v{regs[1]}"); regs = regs[2:]
        if regs: self.e(f"v_max_{op} v{dst}, v{dst}, v{regs[0]}")

    def spin_tail(self, top, done, sleep=0):
        if sleep: self.e(f"s_sleep {sleep}")
        if "nodep" in self.x: self.e(f"{done}:"); return
        self.e(f"s_sub_u32 s{S_SPIN}, s{S_SPIN}, 1\ns_cbranch_scc0 {top}\n{done}:")

    def lds_wait(self, addr, t):
        e = self.e
        top, done = e.lab("L_spin"), e.lab("L_ok")
        e(f"""v_mov_b32 v{t}, {addr}
        s_mov_b32 s{S_SPIN}, {SPIN * 20}
        {top}:
        ds_read_b32 v{t+1}, v{t}
        s_waitcnt lgkmcnt(0)
        v_cmp_ne_u32 vcc, 4, v{t+1}
        s_cbranch_vccz {done}""")
        self.spin_tail(top, done, 2)

    def lds_inc(self, addr, t):
        self.e(f"""v_mov_b32 v{t}, {addr}
        v_mov_b32 v{t+1}, 1
        s_mov_b64 exec, 1
        ds_add_u32 v{t}, v{t+1}
        s_mov_b64 exec, -1""")

    def only_wave(self, w):
        skip = self.e.lab("L_skip")
        self.e(f"s_cmp_lg_u32 s3, {w}\ns_cbranch_scc1 {skip}")
        return skip

    def epoch_load(self):
        if self.o["wsb"]: self.e(f"s_add_u32 s{P_WS}, s{P_WS}, {self.o['wsb'] << 20:#x}\ns_addc_u32 s{P_WS+1}, s{P_WS+1}, 0")
        self.e(f"s_load_dword s{TAG}, s[{P_WS}:{P_WS+1}], {EPOCH:#x}")

    def epoch_tag(self):
        self.e(f"s_waitcnt lgkmcnt(0)\ns_add_u32 s{TAG}, s{TAG}, 1\ns_xor_b32 s{TAG+1}, s{TAG}, 0x5bd1e995")

    def post_b(self, sg, sslot, t):
        self.e(f"""v_mov_b32 v{t}, s{TAG}
        v_mov_b32 v{t+1}, s{TAG+1}
        s_lshl_b32 s10, s{sg}, 7
        s_lshl_b32 s11, s{sslot}, 3
        s_add_u32 s10, s10, s11
        s_add_u32 s10, s10, {FB}
        s_mov_b64 exec, 1
        buffer_store_dwordx2 {vr(t,2)}, off, {srd(SRD_WS)}, s10 sc1 ; c:FLAG
        s_mov_b64 exec, -1""")

    def post_a(self, sid, off, t):
        self.e(f"""v_lshlrev_b32 v{t+2}, 11, v0
        v_mov_b32 v{t}, s{TAG}
        v_mov_b32 v{t+1}, s{TAG+1}
        s_lshl_b32 s10, s{sid}, 3
        s_add_u32 s10, s10, {FA+off}
        s_mov_b64 exec, 0xff
        buffer_store_dwordx2 {vr(t,2)}, v{t+2}, {srd(SRD_WS)}, s10 offen sc1 ; c:FLAG
        s_mov_b64 exec, -1""")

    def poll_a(self, off, t):
        e = self.e
        top, done = e.lab("L_spin"), e.lab("L_ok")
        e(f"""s_and_b32 s10, s4, 7
        s_lshl_b32 s10, s10, 11
        s_add_u32 s10, s10, {FA+off}
        v_lshlrev_b32 v{t+2}, 3, v0
        {top}:
        buffer_load_dwordx2 {vr(t,2)}, v{t+2}, {srd(SRD_WS)}, s10 offen sc1
        s_waitcnt vmcnt(0)
        v_cmp_ne_u64 vcc, s[{TAG}:{TAG+1}], {vr(t,2)}
        s_cbranch_vccz {done}""")
        self.spin_tail(top, done, self.o["sl_ap"])

    def tag_check(self, g, n, t):
        e = self.e
        for i in range(n):
            e(f"v_xor_b32 v{t+2}, s{TAG+1}, v{g+2*i}\nv_xor_b32 v{g+2*i+1}, s{TAG}, v{g+2*i+1}")
            e(f"v_and_or_b32 v{g+2*i+1}, v{t+2}, v{t+1}, v{g+2*i+1}")
        e(f"v_or_b32 v{t}, v{g+1}, v{g+3}")
        for i in range(2, n, 2): e(f"v_or3_b32 v{t}, v{t}, v{g+2*i+1}, v{g+2*i+3}")

    def bside(self, kind):
        e = self.e; e.vm = 0; o = self.o
        tp = 4 * (o["pa"] + o["pb"])
        pa, pb = (o["pa"], o["pb"]) if kind == "P" else (o["qa"], (128 - 2 * tp) // 4 - o["qa"])
        n = max(pa, pb)
        VK, VL, TMP, SEL, BLO, BHI, QF, AC0, AC1, LS, MX = 1, 2, 3, 4, 8, 9, 10, 14, 18, 22, 23
        T = 24; D0 = 32; KR = 36; VR = 132; PA = 228; U = 246
        L_T1, L_Q, L_MAX, L_L, L_RED, L_T2, L_QA, L_W = 0, 8192, 9216, 9344, 16384, 32768, 40960, 32768
        S_KV, S_VV, S_G, S_B, S_SP = 5, 6, 7, 8, 9
        L_F = 9472
        e(f"L_{kind}:")
        self.role = kind
        if "no" + kind in self.x: e("s_endpgm")
        self.pt("start")
        e(f"""v_and_b32 v{T}, 3, v0
        v_lshrrev_b32 v{TMP}, 4, v0
        v_lshlrev_b32 v{T+1}, 6, v{TMP}
        v_lshl_add_u32 v{T+1}, v{T}, 4, v{T+1}
        v_bfe_u32 v{T}, v0, 2, 2
        v_lshl_add_u32 v{VK}, v{T}, 8, v{T+1}
        v_lshlrev_b32 v{VL}, 4, v0""")
        if kind == "P":
            e(f"""v_lshl_add_u32 v{T+6}, v{T}, 15, v{T+1}
            v_and_b32 v{T+4}, 15, v0
            v_lshlrev_b32 v{T+4}, 4, v{T+4}
            v_lshl_add_u32 v{T+4}, v{TMP}, 15, v{T+4}
            v_bfe_u32 v{T+5}, v0, 3, 1
            v_lshlrev_b32 v{T+5}, 10, v{T+5}
            v_lshl_add_u32 v{T+5}, v{TMP}, 3, v{T+5}
            s_lshr_b32 s10, s2, 3
            s_and_b32 s{S_SP}, s2, 7
            s_mul_i32 s11, s{S_SP}, {tp}
            s_lshr_b32 s13, s2, 2
            s_and_b32 s4, s2, 3""")
        else:
            e(f"""s_sub_u32 s4, s2, 192
            s_lshr_b32 s10, s4, 2
            s_and_b32 s4, s4, 3
            s_add_u32 s{S_SP}, s4, 8
            s_mul_i32 s11, s4, {4*(pa+pb)}
            s_add_u32 s11, s11, {8*tp}
            v_and_b32 v{T+4}, 15, v0
            v_lshlrev_b32 v{T+4}, 4, v{T+4}
            v_lshl_add_u32 v{T+4}, v{TMP}, 16, v{T+4}
            v_bfe_u32 v{T+5}, v0, 3, 1
            v_lshlrev_b32 v{T+5}, 10, v{T+5}
            v_lshl_add_u32 v{T+5}, v{TMP}, 4, v{T+5}
            s_sub_u32 s13, s2, 192
            s_and_b32 s4, s13, 1
            s_lshr_b32 s13, s13, 1
            s_xor_b32 s13, s13, {o["t1x"]}""")
        il = o["il"]
        if not il:
            e(f"""s_mul_i32 s12, s3, {pb}
            s_min_u32 s{S_G}, s3, 4
            s_mul_i32 s{S_G}, s{S_G}, {pa-pb}
            s_add_u32 s12, s12, s{S_G}
            s_add_u32 s11, s11, s12
            s_lshl_b32 s11, s11, 12""")
        else:
            e(f"s_lshl_b32 s11, s11, 12\ns_lshl_b32 s12, s3, 10\ns_add_u32 s11, s11, s12")
        e(f"""s_and_b32 s{S_G}, s10, 7
        s_lshr_b32 s{S_B}, s10, 3
        s_lshl_b32 s10, s10, 21
        s_add_u32 s{S_KV}, s10, s11
        s_mov_b32 s{S_VV}, s{S_KV}""")
        sh = 7 if kind == "P" else 8
        e(f"""s_lshl_b32 s10, s4, {sh}
        s_lshl_b32 s11, s3, {sh-3}
        s_add_u32 s10, s10, s11
        s_lshl_b32 s11, s10, 1
        s_lshl_b32 s10, s10, 13
        s_lshl_b32 s12, s13, 8
        s_add_u32 s10, s10, s12""")
        e("s_waitcnt lgkmcnt(0)")
        self.epoch_load()
        tags = []; cur = [min(pa, pb)]
        def issue(upto):
            n = cur[0]
            while len(tags) < min(upto, 8 * n):
                x = len(tags); k = x % (4 * n); j = k & 3
                r, v, sd, so = (KR, VK, SRD_A, S_KV) if x < 4 * n else (VR, VL, SRD_B, S_VV)
                tags.append(e.mem(f"buffer_load_dwordx4 {vr(r+4*k,4)}, v{v}, {srd(sd)}, s{so} offen offset:{0 if il else 1024*j} nt"))
                if not il:
                    if j == 3: e(f"s_add_u32 s{so}, s{so}, 4096")
                else:
                    nm = 4 * min(pa, pb)
                    step = 8192 if k < nm - 1 else 4096
                    if k == nm - 1: step = 8192 - (4096 if pb > pa else 0)
                    if k < 4 * n - 1: e(f"s_add_u32 s{so}, s{so}, {step}")
        seen = set()
        def land(k):
            e.wait(tags[k])
            if k not in seen: seen.add(k); self.pt(f"l{k}")
        def slide(k0, k1, w):
            for k in range(k0, k1):
                land(k); issue(k + 1 + w)
        self.mk_srd(SRD_WS, P_WS, WS_USED)
        if kind == "P":
            self.mk_srd(SRD_C, P_AX, 2048); self.mk_srd(SRD_D, P_AWQ, 4 << 20)
            e(f"""v_lshlrev_b32 v{LS}, 15, v{TMP}
            v_and_b32 v{U+5}, 15, v0
            v_lshl_add_u32 v{LS}, v{U+5}, 4, v{LS}""")
            skip = self.only_wave(7)
            e(f"""s_lshl_b32 s12, s2, 8
            s_add_u32 s12, s12, {QAP}""")
            for r in range(4): e(f"v_mov_b32 v{U+r}, -1")
            e(f"""s_mov_b32 exec_hi, 0
            buffer_store_dwordx4 {vr(U,4)}, v{LS}, {srd(SRD_WS)}, s12 offen sc1 ; c:QCLR
            s_mov_b64 exec, -1
            {skip}:""")
            def four(slot, voff, s):
                e("s_mov_b32 s12, s10")
                r = []
                for t in range(4):
                    r.append(e.mem(f"buffer_load_dwordx4 {vr(VR+4*(slot+t),4)}, v{voff}, {srd(s)}, s12 offen nt"))
                    if t < 3: e("s_add_u32 s12, s12, 8192")
                return r
            xa = e.mem(f"buffer_load_dwordx2 {vr(T,2)}, v{T+5}, {srd(SRD_C)}, s11 offen")
            w2 = four(0, T + 4, SRD_D)
            self.mk_srd(SRD_E, P_WUK, 4 << 20)
            if o["t2w"] >= 0: e.wait(w2[o["t2w"]])
            w3 = four(4, T + 6, SRD_E)
        else:
            self.mk_srd(SRD_C, P_BX, 2048); self.mk_srd(SRD_D, P_BWQ, 4 << 20)
            xb = e.mem(f"buffer_load_dwordx4 {vr(T,4)}, v{T+5}, {srd(SRD_C)}, s11 offen")
            w1 = []
            for t in range(8):
                if t >= o["wt1"]: e.wait(w1[t - o["wt1"]])
                w1.append(e.mem(f"buffer_load_dwordx4 {vr(VR+4*t,4)}, v{T+4}, {srd(SRD_D)}, s10 offen nt"))
                if t < 7: e("s_add_u32 s10, s10, 8192")
            self.mk_srd(SRD_E, P_OUT, 4096)
            e(f"""v_lshrrev_b32 v{T+6}, 3, v0
            v_lshlrev_b32 v{T+6}, 17, v{T+6}
            v_and_b32 v{U}, 7, v0
            v_lshl_add_u32 v{T+6}, v{U}, 4, v{T+6}
            v_and_b32 v{U}, 15, v0
            v_lshlrev_b32 v{U}, 4, v{U}
            v_lshl_add_u32 v{U}, v{TMP}, 14, v{U}
            s_sub_u32 s68, s2, 192
            s_cmp_lt_u32 s3, 4
            s_cselect_b32 s{SRD_C}, s{P_WUV}, s{P_AWO}
            s_cselect_b32 s{SRD_C+1}, s{P_WUV+1}, s{P_AWO+1}
            s_mov_b32 s{SRD_C+2}, 0x400000
            s_movk_i32 s69, 1024
            s_cselect_b32 s69, 8192, s69
            s_cselect_b64 vcc, -1, 0
            v_cndmask_b32 v{T+6}, v{U}, v{T+6}, vcc
            s_lshl_b32 s10, s3, 20
            s_lshl_b32 s11, s68, 7
            s_add_u32 s10, s10, s11
            s_lshl_b32 s11, s68, 16
            s_and_b32 s12, s3, 3
            s_lshl_b32 s12, s12, 8
            s_add_u32 s11, s11, s12
            s_cmp_lt_u32 s3, 4
            s_cselect_b32 s70, s10, s11
            s_lshl_b32 s71, s3, 14
            s_add_u32 s71, s71, {L_W}""")
            wd = []
            def wdma(upto, w):
                while len(wd) < upto:
                    e(f"s_waitcnt vmcnt({w-1})\ns_mov_b32 m0, s71")
                    wd.append(e.mem(f"buffer_load_dwordx4 v{T+6}, {srd(SRD_C)}, s70 offen nt lds"))
                    e("s_add_u32 s70, s70, s69\ns_add_u32 s71, s71, 1024")
        self.mk_srd(SRD_A, P_BK, 32 << 20); self.mk_srd(SRD_B, P_BV, 32 << 20)
        e.L.append("; split")
        if kind == "P": issue(o["pre_p"])
        e(f"s_mov_b32 s{S_SC}, {f2u(SCALE):#x}\ns_mov_b32 s{S_SPIN}, {SPIN}")
        self.selectors(SEL, BLO, BHI, TMP)
        e(f"v_mov_b32 v{AC0}, 0\nv_mov_b32 v{AC0+1}, 0\nds_write_b64 v{AC0}, {vr(AC0,2)} offset:{L_F}")
        self.epoch_tag()
        if kind == "P":
            self.masks(0x03030303, 0x03030303)
            skip = self.only_wave(7)
            e(f"s_waitcnt vmcnt({e.vm})")
            self.post_a(2, 0, U)
            e(f"{skip}:")
            e(f"s_lshl_b32 s10, s3, 10\nv_add_u32 v{T+7}, s10, v{VL}")
            e.wait(xa)
            self.rws256(4, T, VR, AC0, BLO, BHI, PA, w2)
            self.pt("t2")
            e(f"ds_write_b128 v{T+7}, {vr(AC0,4)} offset:{L_T2}\ns_waitcnt lgkmcnt(0)\ns_barrier")
            XT = VR + 48
            skip = self.only_wave(0)
            for i in range(8): e(f"ds_read_b128 {vr(XT+4*i,4)}, v{VL} offset:{L_T2+1024*i}")
            e(f"""v_mov_b32 v{U+1}, s{TAG+1}
            s_lshl_b32 s10, s2, 11
            s_add_u32 s10, s10, {XQ}
            s_mov_b32 s11, 0xffffff00
            s_waitcnt lgkmcnt(0)""")
            self.tree("v_add_f32", XT, 8, 4)
            for r in range(4): e(f"v_bfi_b32 v{XT+8+2*r}, s11, v{XT+r}, v{U+1}\nv_mov_b32 v{XT+9+2*r}, s{TAG}")
            e(f"buffer_store_dwordx4 {vr(XT+8,4)}, v{VL}, {srd(SRD_WS)}, s10 offen sc1 ; c:XQ")
            e(f"buffer_store_dwordx4 {vr(XT+12,4)}, v{VL}, {srd(SRD_WS)}, s10 offen offset:1024 sc1 ; c:XQ")
            e(f"{skip}:")
            self.pt("xq")
            skip, other = e.lab("L_skip"), e.lab("L_other")
            top, done = e.lab("L_spin"), e.lab("L_ok")
            e(f"""s_lshr_b32 s10, s3, 1
            s_cmp_lg_u32 s10, 2
            s_cbranch_scc1 {other}
            s_lshl_b32 s10, s13, 13
            s_and_b32 s12, s3, 1
            s_lshl_b32 s11, s12, 10
            s_add_u32 s10, s10, s11
            s_add_u32 s10, s10, {XQ}
            s_add_u32 s11, s10, 4096
            v_mov_b32 v{U+1}, 0xff
            v_lshrrev_b32 v{U+3}, 5, v0
            v_lshlrev_b32 v{U+3}, 8, v{U+3}
            v_and_b32 v{U+4}, 15, v0
            v_lshl_add_u32 v{U+3}, v{U+4}, 4, v{U+3}
            v_bfe_u32 v{U+4}, v0, 4, 1
            v_lshl_add_u32 v{U+3}, v{U+4}, 3, v{U+3}
            s_lshl_b32 s12, s12, 2
            v_add_u32 v{U+3}, s12, v{U+3}""")
            if o["sl_xq0"]: e(f"s_sleep {o['sl_xq0']}")
            e(f"{top}:")
            for i in range(4): e(f"buffer_load_dwordx4 {vr(VR+4*i,4)}, v{VL}, {srd(SRD_WS)}, s{10+(i>>1)} offen offset:{2048*(i&1)} sc1 ; c:LXQ")
            e("s_waitcnt vmcnt(0)")
            self.tag_check(VR, 8, U)
            e(f"v_cmp_ne_u32 vcc, 0, v{U}\ns_cbranch_vccz {done}")
            self.spin_tail(top, done, o["sl_xq"])
            e(f"""v_add_f32 v{VR}, v{VR}, v{VR+4}
            v_add_f32 v{VR+2}, v{VR+2}, v{VR+6}
            v_add_f32 v{VR+8}, v{VR+8}, v{VR+12}
            v_add_f32 v{VR+10}, v{VR+10}, v{VR+14}
            v_add_f32 v{VR}, v{VR}, v{VR+8}
            v_add_f32 v{VR+2}, v{VR+2}, v{VR+10}
            v_cvt_pk_bf16_f32 v{VR}, v{VR}, v{VR+2}
            ds_write_b32 v{U+3}, v{VR} offset:{L_QA}""")
            ne, we = o["ne"], o["we"]
            vm0, L0 = e.vm, len(e.L)
            issue(len(tags) + ne)
            body = e.L[L0:]
            e(f"s_branch {skip}\n{other}:")
            cnt = 0
            for l in body:
                if l.startswith("buffer_load"):
                    if cnt >= we: e(f"s_waitcnt vmcnt({we-1})")
                    cnt += 1
                e(l)
            e(f"""{skip}:
            v_bfe_u32 v{U}, v0, 2, 1
            v_lshlrev_b32 v{U}, 8, v{U}
            v_and_b32 v{U+2}, 0xf0, v{VK}
            v_add_u32 v{U+1}, v{U}, v{U+2}
            v_lshrrev_b32 v{U+2}, 4, v0
            v_lshl_add_u32 v{U}, v{U+2}, 3, v{U}
            s_lshl_b32 s11, s3, 5
            v_add_u32 v{U}, s11, v{U}
            s_waitcnt lgkmcnt(0)
            s_barrier
            ds_read_b128 {vr(QF,4)}, v{U+1} offset:{L_QA}
            s_waitcnt lgkmcnt(0)""")
            self.pt("qa")
            e.wait(w3[3])
            for t in range(4): e(f"v_mfma_f32_16x16x32_bf16 {vr(VR+4*t,4)}, {vr(VR+16+4*t,4)}, {vr(QF,4)}, 0")
            self.quad_sum([VR + 4 * t for t in range(4)])
            e(f"""v_cvt_pk_bf16_f32 v{AC0}, v{VR}, v{VR+4}
            v_cvt_pk_bf16_f32 v{AC0+1}, v{VR+8}, v{VR+12}
            s_mov_b32 exec_lo, 0x00110011
            s_mov_b32 exec_hi, 0x00110011
            ds_write_b64 v{U}, {vr(AC0,2)} offset:{L_QA+512}
            s_mov_b64 exec, -1
            s_waitcnt lgkmcnt(0)
            s_barrier""")
            skip = self.only_wave(7)
            e(f"""ds_read_b128 {vr(AC0,4)}, v{VL} offset:{L_QA+512}
            s_lshl_b32 s10, s2, 8
            s_add_u32 s10, s10, {QAP}
            s_waitcnt lgkmcnt(0)""")
            for r in range(4): e(f"v_min_u32 v{AC0+r}, -2, v{AC0+r}")
            e(f"""s_mov_b32 exec_hi, 0
            buffer_store_dwordx4 {vr(AC0,4)}, v{LS}, {srd(SRD_WS)}, s10 offen sc1 ; c:QAP
            s_mov_b64 exec, -1""")
            if o["stw"] in (1, 2):
                self.pt("st7"); e("s_waitcnt vmcnt(0)"); self.pt("ack7")
            e(f"{skip}:")
            if o["stw"] > 1: e("s_barrier")
            self.pt("st")
            issue(o["w1"])
        else:
            self.masks(0x03030303, 0x03030303)
            e(f"s_lshl_b32 s10, s3, 10\nv_add_u32 v{T+7}, s10, v{VL}")
            e.wait(xb)
            self.rws256(8, T, VR, AC1, BLO, BHI, PA, w1)
            e(f"ds_write_b128 v{T+7}, {vr(AC1,4)} offset:{L_T1}")
            wdma(o["wq1"], 16)
            e("s_waitcnt lgkmcnt(0)\ns_barrier")
            self.pt("t1")
            skip = self.only_wave(0)
            for i in range(8): e(f"ds_read_b128 {vr(VR+4*i,4)}, v{VL} offset:{L_T1+1024*i}")
            e(f"""v_lshrrev_b32 v{U}, 5, v0
            v_lshlrev_b32 v{U}, 14, v{U}
            v_and_b32 v{U+1}, 15, v0
            v_lshl_add_u32 v{U}, v{U+1}, 5, v{U}
            v_bfe_u32 v{U+1}, v0, 4, 1
            v_lshl_add_u32 v{U}, v{U+1}, 4, v{U}
            s_lshl_b32 s10, s4, 15
            s_lshl_b32 s11, s13, 9
            s_add_u32 s10, s10, s11
            s_add_u32 s10, s10, {QBP}
            s_sub_u32 s12, s2, 192
            s_lshr_b32 s13, s12, 3
            s_and_b32 s12, s12, 7
            s_waitcnt lgkmcnt(0)""")
            self.tree("v_add_f32", VR, 8, 4)
            e(f"buffer_store_dwordx4 {vr(VR,4)}, v{U}, {srd(SRD_WS)}, s10 offen sc1\ns_waitcnt vmcnt(0)")
            self.post_b(13, 12, U)
            e(f"{skip}:")
        variants = [pa] if pa == pb else [pa, pb]
        if kind == "Q":
            wdma(16, o["wq1"])
            self.pt("w")
        if len(variants) > 1: e(f"s_cmp_ge_u32 s3, 4\ns_cbranch_scc1 L_{kind}_B")
        tags0, vm0 = list(tags), e.vm
        for vi, nv in enumerate(variants):
            if vi: e(f"L_{kind}_B:")
            n = nv; cur[0] = nv; tags[:] = tags0; e.vm = vm0; seen.clear()
            kf, wearly = (o["kf_p"], o["w1"]) if kind == "P" else (o["kf_q"], o["wq0"])
            if kind == "Q":
                for k in range(wearly):
                    e(f"s_waitcnt vmcnt({wearly-1})"); issue(k + 1)
                slide(0, kf, wearly)
            else:
                slide(0, kf, wearly)
            e(f"""s_cmp_eq_u32 s3, 0
            s_cselect_b32 s13, 0, 0x40000000
            s_lshl_b32 s12, s{S_G}, 7
            s_add_u32 s12, s12, {FB}
            s_add_u32 s12, s12, s13
            v_lshlrev_b32 v{T+2}, 3, v0
            s_mov_b64 exec, 0xffff""")
            k1 = len(tags)
            fl = e.mem(f"buffer_load_dwordx2 {vr(T,2)}, v{T+2}, {srd(SRD_WS)}, s12 offen sc1 ; c:LFB")
            e("s_mov_b64 exec, -1")
            issue(kf + o["wk"])
            slide(kf, k1, o["wk"])
            e(f"""s_lshl_b32 s10, s{S_B}, 14
            s_lshl_b32 s11, s{S_G}, 11
            s_add_u32 s10, s10, s11
            s_add_u32 s10, s10, {QBP}
            s_add_u32 s10, s10, s13
            s_add_u32 s11, s10, 32768
            v_lshlrev_b32 v{TMP}, 5, v0""")
            e.wait(fl)
            top, done = e.lab("L_spin"), e.lab("L_ok")
            e(f"""s_cmp_lg_u32 s3, 0
            s_cbranch_scc1 {done}
            s_mov_b64 exec, 0xffff
            {top}:
            v_cmp_ne_u64 vcc, s[{TAG}:{TAG+1}], {vr(T,2)}
            s_cbranch_vccz {done}
            buffer_load_dwordx2 {vr(T,2)}, v{T+2}, {srd(SRD_WS)}, s12 offen sc1 ; c:LFB
            s_waitcnt vmcnt(0)""")
            self.spin_tail(top, done, o["sleep"])
            e("s_mov_b64 exec, -1")
            self.pt("qf")
            k2 = len(tags)
            QG = PA
            for k in range(4):
                qg = e.mem(f"buffer_load_dwordx4 {vr(QG+4*k,4)}, v{TMP}, {srd(SRD_WS)}, s{10+(k>>1)} offen offset:{16*(k&1)} sc1 ; c:LQB")
            k3 = min(k2, 4 * n)
            slide(k1, k3, o["wk"])
            skip = self.only_wave(0)
            e.wait(qg)
            for r in range(8): e(f"v_add_f32 v{QG+r}, v{QG+r}, v{QG+8+r}")
            for r in range(4): e(f"v_cvt_pk_bf16_f32 v{QG+r}, v{QG+2*r}, v{QG+2*r+1}")
            e(f"""v_mov_b32 v{T}, 0
            v_mov_b32 v{T+1}, 1
            ds_write_b128 v{VL}, {vr(QG,4)} offset:{L_Q}
            s_waitcnt lgkmcnt(0)
            ds_write_b32 v{T}, v{T+1} offset:{L_F}
            {skip}:""")
            kq = max(k3, min(o["kq"], 4 * n))
            slide(k3, kq, o["wk"])
            top, done = e.lab("L_spin"), e.lab("L_ok")
            e(f"""v_mov_b32 v{T}, 0
            s_mov_b32 s{S_SPIN}, {SPIN * 20}
            {top}:
            ds_read_b32 v{T+1}, v{T} offset:{L_F}
            ds_read_b128 {vr(QF,4)}, v{VK} offset:{L_Q}
            s_waitcnt lgkmcnt(0)
            v_cmp_eq_u32 vcc, 0, v{T+1}
            s_cbranch_vccz {done}""")
            self.spin_tail(top, done, 1)
            e(f"v_bfe_u32 v{T+5}, v0, 2, 2\nv_lshlrev_b32 v{T+5}, 5, v{T+5}\ns_lshl_b32 s10, s3, 2\nv_add_u32 v{T+6}, s10, v{T+5}")
            for z in range(0, 18, 4): e(f"v_mov_b32 v{PA+z}, 0\nv_mov_b32 v{PA+z+1}, 0")
            self.pt("q")
            SK = lambda k: D0 + 4 * k
            ahead = kq
            for i in range(n + 1):
                if i < n:
                    for j in range(4):
                        k = 4 * i + j
                        if k >= kq:
                            land(k); issue(k + 1 + (o["wk"] if k < 4 * n - 4 else o["wt"]))
                        elif j == 0 and o["cu"]:
                            issue(len(tags) + o["cu"])
                        e(f"v_mfma_f32_16x16x32_bf16 {vr(SK(k),4)}, {vr(KR+4*k,4)}, {vr(QF,4)}, 0")
                if i > 0:
                    ks = [SK(4 * (i - 1) + j) for j in range(4)]
                    self.quad_sum(ks)
                    self.max3_chain("f32", MX, ks if i == 1 else [MX] + ks)
            issue(4 * n + o["wt"])
            self.pt("k")
            self.swap_red("v_max_f32", MX, TMP, (16, 32))
            e(f"v_mul_f32 v{MX}, s{S_SC}, v{MX}\nds_write_b32 v{T+6}, v{MX} offset:{L_MAX}")
            for k in range(4 * n): e(f"v_fma_f32 v{SK(k)}, v{SK(k)}, s{S_SC}, -v{MX}")
            for k in range(4 * n): e(f"v_exp_f32 v{SK(k)}, v{SK(k)}")
            e(f"v_add_f32 v{LS}, v{SK(0)}, v{SK(1)}")
            for k in range(2, 4 * n): e(f"v_add_f32 v{LS}, v{LS}, v{SK(k)}")
            for k in range(0, 4 * n, 2): e(f"v_cvt_pk_bf16_f32 v{SK(k)}, v{SK(k)}, v{SK(k+1)}")
            self.swap_red("v_add_f32", LS, TMP, (16, 32))
            skip = e.lab("L_skip")
            e(f"""ds_write_b32 v{T+6}, v{LS} offset:{L_L}
            v_mov_b32 v{T}, 0
            v_mov_b32 v{T+1}, 1
            s_mov_b64 exec, 1
            ds_add_rtn_u32 v{T+2}, v{T}, v{T+1} offset:{L_F+4}
            s_waitcnt lgkmcnt(0)
            v_cmp_eq_u32 vcc, 7, v{T+2}
            s_mov_b64 exec, -1
            s_cbranch_vccz {skip}
            v_and_b32 v{T}, 3, v0
            v_lshlrev_b32 v{T}, 5, v{T}
            ds_read_b128 {vr(U,4)}, v{T} offset:{L_MAX}
            ds_read_b128 {vr(U+4,4)}, v{T} offset:{L_MAX+16}
            ds_read_b128 {vr(QF,4)}, v{T} offset:{L_L}
            ds_read_b128 {vr(AC0,4)}, v{T} offset:{L_L+16}
            v_mov_b32 v{T+3}, s{TAG+1}
            s_lshl_b32 s10, s{S_B}, 3
            s_add_u32 s10, s10, s{S_G}
            s_mul_i32 s10, s10, 12
            s_add_u32 s10, s10, s{S_SP}
            s_lshl_b32 s10, s10, 6
            s_add_u32 s10, s10, {BS}
            s_mov_b32 s11, 0xffffff00
            s_waitcnt lgkmcnt(0)""")
            self.max3_chain("f32", T + 2, range(U, U + 8))
            for r in range(8): e(f"v_sub_f32 v{U+r}, v{U+r}, v{T+2}")
            for r in range(8): e(f"v_exp_f32 v{U+r}, v{U+r}")
            e(f"v_mul_f32 v{T+1}, v{U}, v{QF}")
            for r in range(1, 8): e(f"v_fmac_f32 v{T+1}, v{U+r}, v{QF+r}")
            e(f"""v_bfi_b32 v{U+2}, s11, v{T+1}, v{T+3}
            v_bfi_b32 v{U}, s11, v{T+2}, v{T+3}
            v_mov_b32 v{U+1}, s{TAG}
            v_mov_b32 v{U+3}, s{TAG}
            s_mov_b64 exec, 15
            buffer_store_dwordx4 {vr(U,4)}, v{VL}, {srd(SRD_WS)}, s10 offen sc1 ; c:BST
            s_mov_b64 exec, -1
            {skip}:""")
            self.pt("p")
            for i in range(n):
                for j in range(4):
                    k = 4 * i + j; pk = SK(k & ~1); p = PA + 2 + 4 * j
                    sa, sb = (SEL + 2, SEL + 3) if k & 1 else (SEL, SEL + 1)
                    e(f"v_perm_b32 v{p}, v{pk}, v{pk}, v{sa}\nv_perm_b32 v{p+1}, v{pk}, v{pk}, v{sb}")
                if i == n - 1:
                    top, done = e.lab("L_spin"), e.lab("L_ok")
                    e(f"""v_mov_b32 v{T}, 0
                    v_lshrrev_b32 v{T+1}, 4, v0
                    v_lshlrev_b32 v{T+1}, 5, v{T+1}
                    s_lshl_b32 s10, s3, 2
                    v_add_u32 v{T+2}, s10, v{T+1}
                    {top}:
                    ds_read_b32 v{T+3}, v{T} offset:{L_F+4}
                    ds_read_b128 {vr(U,4)}, v{T+1} offset:{L_MAX}
                    ds_read_b128 {vr(U+4,4)}, v{T+1} offset:{L_MAX+16}
                    ds_read_b32 v{LS}, v{T+2} offset:{L_MAX}
                    s_waitcnt lgkmcnt(0)
                    v_cmp_ne_u32 vcc, 8, v{T+3}
                    s_cbranch_vccz {done}""")
                    self.spin_tail(top, done, 1)
                    self.max3_chain("f32", MX, range(U, U + 8))
                    e(f"v_sub_f32 v{LS}, v{LS}, v{MX}\nv_exp_f32 v{LS}, v{LS}")
                    e(f"""s_lshl_b32 s10, s3, 11
                    v_lshl_add_u32 v{T}, v0, 5, s10
                    s_lshl_b32 s10, s3, 8
                    v_and_b32 v{T+2}, 31, v0
                    v_lshl_add_u32 v{T+1}, v{T+2}, 3, s10
                    v_lshlrev_b32 v{T+2}, 2, v0
                    s_lshl_b32 s10, s{S_G}, 3
                    s_add_u32 s10, s10, s3
                    s_lshl_b32 s10, s10, 14
                    s_mul_i32 s11, s{S_B}, 12
                    s_add_u32 s11, s11, s{S_SP}
                    s_lshl_b32 s11, s11, 7
                    s_add_u32 s10, s10, s11
                    s_add_u32 s10, s10, {MB}""")
                for j in range(4):
                    k = 4 * i + j; p = PA + 2 + 4 * j
                    land(4 * n + k)
                    issue(4 * n + k + 1 + o["wv"])
                    e(f"v_mfma_f32_16x16x32_bf16 {vr(AC0,4)}, {vr(p,4)}, {vr(VR+4*k,4)}, {vr(AC0,4) if k else 0}")
                    e(f"v_mfma_f32_16x16x32_bf16 {vr(AC1,4)}, {vr(p-2,4)}, {vr(VR+4*k,4)}, {vr(AC1,4) if k else 0}")
            self.pt("v")
            for r in range(8): e(f"v_mul_f32 v{AC0+r}, v{AC0+r}, v{LS}")
            e(f"""ds_write_b128 v{T}, {vr(AC0,4)} offset:{L_RED}
            ds_write_b128 v{T}, {vr(AC1,4)} offset:{L_RED+16}
            s_waitcnt lgkmcnt(0)
            s_barrier""")
            for i in range(8): e(f"ds_read_b64 {vr(KR+2*i,2)}, v{T+1} offset:{L_RED+2048*i}")
            for i in range(0, 8, 2):
                e(f"s_waitcnt lgkmcnt({6-i})\nv_add_f32 v{KR+2*i}, v{KR+2*i}, v{KR+2*i+2}\nv_add_f32 v{KR+2*i+1}, v{KR+2*i+1}, v{KR+2*i+3}")
                if i == 2: e(f"v_add_f32 v{KR}, v{KR}, v{KR+4}\nv_add_f32 v{KR+1}, v{KR+1}, v{KR+5}")
                if i == 4: e(f"v_add_f32 v{KR}, v{KR}, v{KR+8}\nv_add_f32 v{KR+1}, v{KR+1}, v{KR+9}")
            e(f"""v_add_f32 v{KR}, v{KR}, v{KR+12}
            v_add_f32 v{KR+1}, v{KR+1}, v{KR+13}
            v_cvt_pk_bf16_f32 v{KR}, v{KR}, v{KR+1}
            v_min_u32 v{KR}, -2, v{KR}
            s_mov_b32 exec_hi, 0
            buffer_store_dword v{KR}, v{T+2}, {srd(SRD_WS)}, s10 offen sc1 ; c:MB1""")
            self.pt("end")
            if kind == "Q": e("s_mov_b64 exec, -1\ns_mov_b32 s4, s68\ns_cmp_lt_u32 s3, 4\ns_cbranch_scc1 L_ATAIL")
            self.stamp_out(100)
            e("s_endpgm")

    X_MAX, X_P, X_L, X_CNT = 0, 2048, 20480, 24576

    def row_addr(self, dst, t):
        self.e(f"""v_and_b32 v{t}, 3, v0
        v_lshlrev_b32 v{t}, 2, v{t}
        v_bfe_u32 v{t+1}, v0, 2, 2
        v_or_b32 v{t}, v{t}, v{t+1}
        v_lshrrev_b32 v{t+1}, 5, v0
        v_xor_b32 v{t}, v{t}, v{t+1}
        v_lshlrev_b32 v{t}, 4, v{t}
        v_and_b32 v{t+1}, 31, v0
        v_lshl_add_u32 v{dst}, v{t+1}, 10, v{t}""")

    X_AL = 22528

    def qk(self, rnd, S, FR, A, TA, creg):
        e = self.e
        seq = [(i, 2 * qp + q) for qp in range(2) for i in range(8) for q in range(2)]
        ks = lambda o: seq[o][0] + 8 * seq[o][1]
        qreg = lambda o: FR + 4 * o if o < 4 else creg(ks(o - 4))
        dst = qreg if rnd == 0 else (lambda o: FR + 16 + 4 * (o & 3))
        tg = {}
        e.ds_reset()
        def rd(o):
            if o & 1 == 0: e(f"v_xor_b32 v{TA+((o>>1)&1)}, {seq[o][0] << 5}, v{A}")
            tg[o] = e.ds(f"ds_read_b128 {vr(dst(o),4)}, v{TA+((o>>1)&1)} offset:{256*seq[o][1]}")
        for o in range(3): rd(o)
        for o in range(32):
            if o + 3 < 32: rd(o + 3)
            e.dswait(tg[o])
            c = creg(ks(o)) if rnd == 0 else dst(o)
            e(f"v_mfma_f32_32x32x16_bf16 {vr(S,16)}, {vr(c,4)}, {vr(qreg(o),4)}, {vr(S,16) if o else 0}")
            if rnd == 0 and o == 16: e("s_barrier")

    def stat_addr(self, d, t):
        self.e(f"""v_and_b32 v{d}, 15, v0
        v_lshlrev_b32 v{d}, 5, v{d}
        v_bfe_u32 v{t}, v0, 4, 1
        v_lshl_add_u32 v{d}, v{t}, 10, v{d}
        v_add_u32 v{d}, {X}, v{d}""")

    def softmax(self, rnd, S, P, M, LS, T, lw):
        e = self.e
        self.max3_chain("f32", T, range(S, S + 16))
        self.swap_red("v_max_f32", T, T + 1, (32,))
        e(f"""ds_write_b32 v{T+3}, v{T} offset:{self.X_MAX+16*rnd}
        s_waitcnt lgkmcnt(0)
        s_barrier
        ds_read_b128 {vr(P,4)}, v{T+2} offset:{self.X_MAX+16*rnd}""")
        if rnd == 0:
            e(f"""v_mov_b32 v{T}, {X+self.X_CNT}
            v_mov_b32 v{T+1}, 0
            ds_write2_b32 v{T}, v{T+1}, v{T+1} offset0:0 offset1:16
            ds_write2_b32 v{T}, v{T+1}, v{T+1} offset0:32 offset1:48""")
        e(f"""s_lshl_b32 s10, s{lw}, 11
        s_add_u32 s10, s10, {X+self.X_P+8192*rnd}
        v_lshl_add_u32 v{T+1}, v0, 4, s10
        s_waitcnt lgkmcnt(0)""")
        if rnd == 0:
            self.max3_chain("f32", M, range(P, P + 4))
            e(f"v_mul_f32 v{M}, s{S_SC}, v{M}")
        else:
            self.max3_chain("f32", T, range(P, P + 4))
            e(f"""v_mul_f32 v{T}, s{S_SC}, v{T}
            v_max_f32 v{T}, v{T}, v{M}
            v_sub_f32 v{M}, v{M}, v{T}
            v_exp_f32 v{P}, v{M}
            v_mov_b32 v{M}, v{T}
            v_mul_f32 v{LS}, v{LS}, v{P}""")
        for r in range(16): e(f"v_fma_f32 v{S+r}, v{S+r}, s{S_SC}, -v{M}")
        for r in range(16): e(f"v_exp_f32 v{S+r}, v{S+r}")
        for r in range(8): e(f"v_cvt_pk_bf16_f32 v{P+r}, v{S+2*r}, v{S+2*r+1}")
        e(f"ds_write_b128 v{T+1}, {vr(P,4)}\nds_write_b128 v{T+1}, {vr(P+4,4)} offset:1024")
        if rnd == 0:
            e("s_waitcnt lgkmcnt(0)\ns_barrier")
            self.tree("v_add_f32", S, 16, 1)
            e(f"v_mov_b32 v{LS}, v{S}")
        else:
            self.tree("v_add_f32", S, 16, 1)
            e(f"v_add_f32 v{S}, v{S}, v{LS}")
            self.swap_red("v_add_f32", S, T, (32,))
            e(f"ds_write_b32 v{T+3}, v{S} offset:{self.X_L}\ns_waitcnt lgkmcnt(0)\ns_barrier")

    VL, VW, TMP, SEL, BLO, BHI, T, U, W, G, WUV, AC0, AC1, PA, XR = 1, 2, 3, 4, 8, 9, 10, 16, 32, 96, 160, 224, 228, 232, 244
    A_CW, A_CR, A_MB = 13, 14, 15
    S_LW, S_PART, S_PRIV, S_MBJ = 5, 6, 7, 8

    def vw_addr(self):
        VW, T = self.VW, self.T
        self.e(f"""v_lshrrev_b32 v{VW}, 4, v0
        v_lshlrev_b32 v{VW}, 14, v{VW}
        v_and_b32 v{T+1}, 15, v0
        v_lshl_add_u32 v{VW}, v{T+1}, 4, v{VW}""")

    def tail_setup(self):
        VL, T, A_CW, A_CR, A_MB = self.VL, self.T, self.A_CW, self.A_CR, self.A_MB
        self.e(f"""v_lshlrev_b32 v{VL}, 4, v0
        s_lshl_b32 s{self.S_PRIV}, s3, 11
        s_lshl_b32 s{self.S_MBJ}, s4, 14
        s_add_u32 s{self.S_MBJ}, s{self.S_MBJ}, {MB}
        v_lshl_add_u32 v{A_CW}, v0, 2, s{self.S_PRIV}
        v_bfe_u32 v{A_CR}, v0, 3, 1
        v_lshlrev_b32 v{A_CR}, 7, v{A_CR}
        v_lshrrev_b32 v{T+1}, 4, v0
        v_lshl_add_u32 v{A_CR}, v{T+1}, 5, v{A_CR}
        v_add_u32 v{A_CR}, s{self.S_PRIV}, v{A_CR}
        v_lshrrev_b32 v{A_MB}, 5, v0
        v_lshlrev_b32 v{A_MB}, 17, v{A_MB}
        v_bfe_u32 v{T+1}, v0, 3, 1
        v_lshl_add_u32 v{A_MB}, v{T+1}, 14, v{A_MB}
        v_and_b32 v{T+1}, 7, v0
        v_lshl_add_u32 v{A_MB}, v{T+1}, 4, v{A_MB}""")
        self.selectors(self.SEL, self.BLO, self.BHI, self.TMP)

    def wload(self, s, t0=0, t1=16):
        e = self.e
        if "now" in self.x or t0 >= t1: return
        e(f"s_lshl_b32 s10, s4, 16\ns_lshl_b32 s11, s{self.S_LW}, 8\ns_add_u32 s10, s10, s11")
        if t0: e(f"s_add_u32 s10, s10, {1024 * t0}")
        for t in range(t0, t1):
            e.mem(f"buffer_load_dwordx4 {vr(self.W+4*t,4)}, v{self.VW}, {srd(s)}, s10 offen offset:{1024*(t&3)} nt")
            if t & 3 == 3: e("s_add_u32 s10, s10, 4096")

    def a_compute(self):
        e = self.e; e.vm = 0
        AC, AT, AQ, M, TA, T = 1, 2, 3, 4, 6, 8
        FR, S, O, PV = 16, 48, 64, 128
        e("L_AC:")
        self.role = "AC"
        self.pt("start")
        if self.o["cpf"]:
            here = e.lab("L_pc")
            e(f"""s_getpc_b64 s[10:11]
            {here}:
            s_sub_u32 s10, s10, {here}-{NAME}_kernel
            s_subb_u32 s11, s11, 0
            s_lshl_b32 s12, s3, 13
            v_lshl_add_u32 v{T+1}, v0, 7, s12""")
            for i in range(self.o["cpf"]):
                e(f"""v_cmp_gt_u32 vcc, L_END-{NAME}_kernel, v{T+1}
                s_and_saveexec_b64 s[12:13], vcc
                s_cbranch_execz L_cpf{i}
                global_load_dword v{254+i}, v{T+1}, s[10:11]
                L_cpf{i}:
                s_mov_b64 exec, -1
                v_add_u32 v{T+1}, 32768, v{T+1}""")
        e.L.append("; split")
        e(f"v_lshlrev_b32 v{T}, 4, v0\ns_waitcnt lgkmcnt(0)")
        self.epoch_load()
        self.mk_srd(SRD_WS, P_WS, WS_USED); self.mk_srd(SRD_D, P_BWO, 4 << 20); self.mk_srd(SRD_E, P_OUT, 4096)
        for r in range(4): e(f"v_mov_b32 v{FR+r}, -1")
        skip = e.lab("L_skip"); two = e.lab("L_two")
        e(f"""s_lshl_b32 s10, s4, 14
        s_lshl_b32 s11, s3, 12
        s_add_u32 s10, s10, s11
        s_add_u32 s10, s10, {MB}
        s_cmp_eq_u32 s3, 0
        s_cbranch_scc1 {two}
        s_cmp_eq_u32 s3, 3
        s_cbranch_scc1 {skip}
        s_cmp_ge_u32 s4, 32
        s_cbranch_scc1 {skip}
        buffer_store_dwordx4 {vr(FR,4)}, v{T}, {srd(SRD_WS)}, s10 offen offset:3072 sc1 ; c:CLR
        {two}:""")
        for i in range(3): e(f"buffer_store_dwordx4 {vr(FR,4)}, v{T}, {srd(SRD_WS)}, s10 offen offset:{1024*i} sc1 ; c:CLR")
        e(f"{skip}:")
        e(f"s_mov_b32 s{S_SC}, {f2u(SCALE):#x}\ns_mov_b32 s{S_SPIN}, {SPIN}")
        self.row_addr(AC, T + 1)
        e(f"""v_add_u32 v{AQ}, {X}, v{AC}
        s_lshl_b32 s10, s3, 15
        v_add_u32 v{AC}, s10, v{AC}
        v_lshrrev_b32 v{T+2}, 5, v0
        v_bfe_u32 v{T+1}, v0, 2, 2
        v_lshl_add_u32 v{T+3}, v{T+2}, 2, v{T+1}
        v_lshlrev_b32 v{AT}, 10, v{T+3}
        v_bfe_u32 v{T+3}, v0, 4, 1
        v_lshlrev_b32 v{T+3}, 1, v{T+3}
        v_bfe_u32 v{T+4}, v0, 1, 1
        v_or_b32 v{T+3}, v{T+3}, v{T+4}
        v_xor_b32 v{T+3}, v{T+3}, v{T+2}
        v_lshl_add_u32 v{T+3}, v{T+1}, 2, v{T+3}
        v_lshl_add_u32 v{AT}, v{T+3}, 4, v{AT}
        v_and_b32 v{T+3}, 1, v0
        v_lshl_add_u32 v{AT}, v{T+3}, 3, v{AT}
        s_lshl_b32 s10, s3, 8
        v_add_u32 v{AT}, s10, v{AT}""")
        self.epoch_tag()
        def tr_addr():
            for k in range(8):
                e(f"v_xor_b32 v{S+k}, {(2*k) << 4}, v{AT}")
                if k & 1: e(f"v_add_u32 v{S+k}, 8192, v{S+k}")
        def tr_step():
            for k in range(8): e(f"v_add_u32 v{S+k}, 65536, v{S+k}")
        def tr_ct(u, ct):
            for hh in range(2):
                last = e.ds(f"ds_read_b64_tr_b16 {vr(PV+16*(u&7)+4*ct+2*hh,2)}, v{S+2*ct+hh} offset:{32768*((u>>1)&1)+16384*(u&1)}")
            return last
        tr_addr()
        e(f"""s_and_b32 s9, s4, 7
        s_lshl_b32 s9, s9, 11
        s_add_u32 s9, s9, {FA}
        v_lshlrev_b32 v{FR+10}, 3, v0""")
        def qc_load():
            for i in range(3): e(f"buffer_load_dwordx2 {vr(FR+4+2*i,2)}, v{FR+10}, {srd(SRD_WS)}, s9 offen offset:{512*i} sc1 ; c:LQC")
        def q_load():
            for i in range(8): e(f"buffer_load_dwordx4 {vr(O+4*i,4)}, v{T}, {srd(SRD_WS)}, s{70+(i>>2)} offen offset:{1024*(i&3)} sc1 ; c:LQA")
        e(f"""s_lshr_b32 s70, s4, 5
        s_lshl_b32 s70, s70, 15
        s_lshl_b32 s71, s3, 13
        s_add_u32 s70, s70, s71
        s_add_u32 s70, s70, {QAP}
        s_add_u32 s71, s70, 4096""")
        qat = self.o["qat"]
        def flags_then_q():
            top, done = e.lab("L_spin"), e.lab("L_ok")
            e(f"""{top}:
            s_waitcnt vmcnt(0)
            v_cmp_ne_u64 vcc, s[{TAG}:{TAG+1}], {vr(FR+4,2)}
            v_cmp_ne_u64 s[12:13], s[{TAG}:{TAG+1}], {vr(FR+6,2)}
            s_or_b64 vcc, vcc, s[12:13]
        v_cmp_ne_u64 s[12:13], s[{TAG}:{TAG+1}], {vr(FR+8,2)}
        s_or_b64 vcc, vcc, s[12:13]
            s_cbranch_vccz {done}""")
            qc_load()
            self.spin_tail(top, done)
            self.pt("qc")
            q_load()
        for t in range(4):
            if t == 1: e("s_waitcnt vmcnt(0)")
            e("s_barrier")
            self.pt(f"t{t}")
            if t == 1:
                skip = self.only_wave(0)
                e("s_lshr_b32 s12, s4, 3\ns_and_b32 s13, s4, 7\ns_add_u32 s13, s13, 8")
                self.post_b(12, 13, FR)
                self.post_a(4, 1024, FR + 12)
                e(f"{skip}:")
            if t == self.o["fat"]: qc_load()
            if t == qat: flags_then_q()
            if t == 2: tr_step()
            e.ds_reset()
            for u in (2 * t, 2 * t + 1):
                for ct in range(4): tr_ct(u, ct)
            e("s_waitcnt lgkmcnt(0)")
        e("s_barrier")
        self.pt("half")
        if qat == 4: flags_then_q()
        e(f"""s_lshl_b32 s12, s3, 13
        s_add_u32 s12, s12, {X}
        s_and_b32 s13, s3, 1
        s_lshl_b32 s13, s13, 5
        v_xor_b32 v{T+1}, s13, v{T}
        v_add_u32 v{T+1}, s12, v{T+1}""")
        top, done = e.lab("L_spin"), e.lab("L_ok")
        e(f"{top}:\ns_waitcnt vmcnt(0)")
        self.max3_chain("u32", T + 2, range(O, O + 16)); self.max3_chain("u32", T + 3, range(O + 16, O + 32))
        e(f"v_max_u32 v{T+2}, v{T+2}, v{T+3}\nv_cmp_eq_u32 vcc, -1, v{T+2}\ns_cbranch_vccz {done}")
        self.pt("qr")
        q_load()
        self.spin_tail(top, done)
        self.pt("qd")
        for i in range(8):
            sw = ((i & 3) << 2) | (i >> 2)
            e(f"v_xor_b32 v{TA+(i&1)}, {sw << 4}, v{T+1}\nds_write_b128 v{TA+(i&1)}, {vr(O+4*i,4)} offset:{1024*i}")
        e("s_waitcnt lgkmcnt(0)\ns_barrier")
        self.pt("b1")
        e(f"v_add_u32 v{T}, {X+self.X_P}, v{T}")
        self.stat_addr(T + 3, T + 1)
        e(f"""s_lshl_b32 s10, s3, 7
        s_add_u32 s10, s10, {X+self.X_AL}
        v_and_b32 v{T+1}, 31, v0
        v_lshl_add_u32 v{AQ}, v{T+1}, 2, s10
        v_lshrrev_b32 v{T+1}, 5, v0
        v_lshl_add_u32 v{AC}, v{T+1}, 4, s10""")
        tr_addr()
        def pv(rnd):
            e.ds_reset()
            pt_ = [e.ds(f"ds_read_b128 {vr(FR+4*u,4)}, v{T} offset:{8192*rnd+1024*u}") for u in range(8)]
            for u in range(8):
                e.dswait(pt_[u])
                for ct in range(4):
                    e(f"v_mfma_f32_32x32x16_bf16 {vr(O+16*ct,16)}, {vr(FR+4*u,4)}, {vr(PV+16*u+4*ct,4)}, {vr(O+16*ct,16) if u or rnd else 0}")
        e("s_barrier\ns_barrier\ns_barrier")
        self.pt("bp0")
        pv(0)
        e("s_barrier")
        self.pt("bd")
        e.ds_reset()
        for u in range(8):
            if u == 4: tr_step()
            for ct in range(4): tr_ct(u, ct)
        e(f"""s_waitcnt lgkmcnt(0)
        s_barrier
        ds_read_b128 {vr(FR,4)}, v{T+3} offset:{self.X_MAX}
        ds_read_b128 {vr(FR+4,4)}, v{T+3} offset:{self.X_MAX+16}
        s_waitcnt lgkmcnt(0)""")
        self.max3_chain("f32", T + 1, range(FR, FR + 4))
        self.max3_chain("f32", M, [T + 1] + list(range(FR + 4, FR + 8)))
        e(f"""v_mul_f32 v{T+1}, s{S_SC}, v{T+1}
        v_mul_f32 v{M}, s{S_SC}, v{M}
        v_sub_f32 v{T+1}, v{T+1}, v{M}
        v_exp_f32 v{T+1}, v{T+1}
        ds_write_b32 v{AQ}, v{T+1}""")
        for q in range(4): e(f"ds_read_b128 {vr(S+4*q,4)}, v{AC} offset:{32*q}")
        e("s_waitcnt lgkmcnt(0)")
        for ct in range(4):
            for r in range(16): e(f"v_mul_f32 v{O+16*ct+r}, v{O+16*ct+r}, v{S+r}")
        e("s_barrier")
        self.pt("bp")
        pv(1)
        self.pt("pv")
        e(f"""v_lshrrev_b32 v{T}, 5, v0
        v_lshlrev_b32 v{T}, 18, v{T}
        v_bfe_u32 v{T+1}, v0, 4, 1
        v_lshl_add_u32 v{T}, v{T+1}, 16, v{T}
        v_and_b32 v{T+1}, 15, v0
        v_lshl_add_u32 v{T}, v{T+1}, 4, v{T}
        s_lshl_b32 s10, s4, 10
        s_lshl_b32 s11, s3, 8
        s_add_u32 s10, s10, s11
        s_add_u32 s10, s10, {AP}""")
        for r in range(16):
            d = FR + 2 * r
            e(f"v_cvt_pk_bf16_f32 v{d}, v{O+r}, v{O+16+r}\nv_cvt_pk_bf16_f32 v{d+1}, v{O+32+r}, v{O+48+r}")
            if r >= 3 and r & 1:
                k = FR + 2 * (r - 3)
                e(f"v_permlane16_swap_b32 v{k}, v{k+2}\nv_permlane16_swap_b32 v{k+1}, v{k+3}")
                e(f"buffer_store_dwordx4 {vr(k,4)}, v{T}, {srd(SRD_WS)}, s10 offen sc1 ; c:AP")
                e(f"s_add_u32 s10, s10, {65536 * (6 if (r - 3) & 2 else 2)}")
        k = FR + 28
        e(f"v_permlane16_swap_b32 v{k}, v{k+2}\nv_permlane16_swap_b32 v{k+1}, v{k+3}")
        e(f"buffer_store_dwordx4 {vr(k,4)}, v{T}, {srd(SRD_WS)}, s10 offen sc1 ; c:AP")
        skip = self.only_wave(0)
        e(f"""ds_read_b128 {vr(S,4)}, v{T+3} offset:{self.X_L}
        v_lshlrev_b32 v{T+1}, 3, v0
        s_lshl_b32 s10, s4, 8
        s_add_u32 s10, s10, {AST}
        s_waitcnt lgkmcnt(0)""")
        self.tree("v_add_f32", S, 4, 1)
        e(f"""v_mov_b32 v{S+1}, v{S}
        v_mov_b32 v{S}, v{M}
        s_mov_b32 exec_hi, 0
        buffer_store_dwordx2 {vr(S,2)}, v{T+1}, {srd(SRD_WS)}, s10 offen sc1
        s_mov_b64 exec, -1
        {skip}:
        s_mov_b32 s5, s3
        s_mov_b32 s6, 1""")
        skip = e.lab("L_skip")
        e(f"""v_mov_b32 v100, {X+self.X_CNT+64}
        v_mov_b32 v101, 1
        s_mov_b64 exec, 1
        s_waitcnt vmcnt(0)
        ds_add_rtn_u32 v102, v100, v101
        s_waitcnt lgkmcnt(0)
        v_cmp_eq_u32 vcc, 3, v102
        s_mov_b64 exec, -1
        s_cbranch_vccz {skip}""")
        if self.o["wb"]: e("buffer_wbl2 sc1\ns_waitcnt vmcnt(0)")
        self.post_a(4, 1536, 96)
        e(f"{skip}:")
        self.pt("b9")
        self.vw_addr()
        self.tail_setup()
        self.masks(0x03030303, 0x03030303)
        self.wload(SRD_D)
        self.lds_wait(X + self.X_CNT + 64, 100)
        e(f"""s_mov_b32 s{S_SPIN}, {SPIN * 20}
        v_lshlrev_b32 v{self.A_CW}, 2, v0
        v_subrev_u32 v{self.A_CR}, s{self.S_PRIV}, v{self.A_CR}
        s_cmp_eq_u32 s3, 0
        s_cbranch_scc1 L_BPRE
        v_mov_b32 v100, {X + self.X_CNT + 128}
        s_waitcnt vmcnt(0)""")
        top = e.lab("L_spin")
        XR = self.XR
        e(f"""{top}:
        ds_read_b32 v101, v100
        ds_read_b128 {vr(XR,4)}, v{self.A_CR} offset:1024
        ds_read_b128 {vr(XR+4,4)}, v{self.A_CR} offset:1040
        s_waitcnt lgkmcnt(0)
        v_cmp_ne_u32 vcc, 0, v101
        s_cbranch_vccnz L_CORE2
        s_sub_u32 s{S_SPIN}, s{S_SPIN}, 1
        s_cbranch_scc0 {top}
        s_branch L_CORE2
        L_BPRE:
        s_mov_b32 s{S_SPIN}, {SPIN}
        v_mov_b32 v100, {X + self.X_CNT + 128}
        v_mov_b32 v101, 1""")
        self.b_pre()

    def b_pre(self):
        e = self.e
        T, U, G, A_CW, S_PRIV, S_MBJ = self.T, self.U, 104, self.A_CW, self.S_PRIV, self.S_MBJ
        e(f"""v_bfe_u32 v{T}, v0, 4, 1
        v_mul_u32_u24 v{T}, 6144, v{T}
        v_and_b32 v{T+1}, 15, v0
        v_lshl_add_u32 v{T}, v{T+1}, 6, v{T}
        s_lshr_b32 s10, s4, 3
        s_mul_i32 s10, s10, 768
        s_bfe_u32 s11, s4, 0x20001
        s_lshl_b32 s11, s11, 4
        s_add_u32 s10, s10, s11
        s_add_u32 s10, s10, {BS}
        s_mov_b32 s12, 0x0fff0fff
        s_mov_b32 s13, 0
        v_mov_b32 v{U+5}, 0xff
        s_mov_b64 exec, s[12:13]""")
        top, done = e.lab("L_spin"), e.lab("L_ok")
        e(f"""{top}:
        buffer_load_dwordx4 {vr(U,4)}, v{T}, {srd(SRD_WS)}, s10 offen sc1
        s_waitcnt vmcnt(0)""")
        self.tag_check(U, 2, U + 4)
        e(f"v_cmp_ne_u32 vcc, 0, v{U+4}\ns_cbranch_vccz {done}")
        self.spin_tail(top, done, self.o["sl_bs"])
        e(f"s_mov_b64 exec, -1\nv_mov_b32 v{U+1}, v{U+2}")
        self.pt("bstat")
        e(f"""v_mov_b32 v{U+2}, 0xff800000
        v_cndmask_b32 v{U}, v{U+2}, v{U}, s[12:13]
        v_cndmask_b32 v{U+1}, 0, v{U+1}, s[12:13]
        v_mov_b32 v{U+2}, v{U}""")
        self.row_red("v_max_f32", U + 2, (1, 2, 4, 8))
        e(f"v_sub_f32 v{U}, v{U}, v{U+2}\nv_exp_f32 v{U}, v{U}\nv_mul_f32 v{U+1}, v{U}, v{U+1}")
        self.row_red("v_add_f32", U + 1, (1, 2, 4, 8))
        WG = 160
        e(f"""v_rcp_f32 v{U+1}, v{U+1}
        v_mul_f32 v{U}, v{U}, v{U+1}
        ds_write_b32 v{A_CW}, v{U} offset:1536
        v_lshrrev_b32 v{T}, 5, v0
        v_lshl_add_u32 v{T+1}, v{T}, 6, s{S_PRIV}
        v_mul_u32_u24 v{T}, 1536, v{T}
        v_and_b32 v{T+2}, 31, v0
        v_lshl_add_u32 v{T}, v{T+2}, 2, v{T}
        s_mov_b32 s12, 0xffff0000
        s_waitcnt lgkmcnt(0)""")
        for q in range(3): e(f"ds_read_b128 {vr(WG+4*q,4)}, v{T+1} offset:{1536+16*q}")
        top, done = e.lab("L_spin"), e.lab("L_ok")
        e(f"{top}:")
        self.pt("or")
        for sp in range(12): e(f"buffer_load_dword v{G+sp}, v{T}, {srd(SRD_WS)}, s{S_MBJ} offen offset:{128*sp} sc1 ; c:LMB")
        e("s_waitcnt vmcnt(0) lgkmcnt(0)")
        self.max3_chain("u32", T + 1, range(G, G + 12))
        e(f"v_cmp_eq_u32 vcc, -1, v{T+1}\ns_cbranch_vccz {done}")
        self.spin_tail(top, done, self.o["sl_bo"])
        self.pt("bo")
        for sp in range(12): e(f"v_lshlrev_b32 v{G+12+sp}, 16, v{G+sp}\nv_and_b32 v{G+sp}, s12, v{G+sp}")
        e(f"v_mul_f32 v{U}, v{G+12}, v{WG}\nv_mul_f32 v{U+1}, v{G}, v{WG}\nv_mul_f32 v{U+2}, v{G+13}, v{WG+1}\nv_mul_f32 v{U+3}, v{G+1}, v{WG+1}")
        for sp in range(2, 12):
            k = 2 * (sp & 1)
            e(f"v_fmac_f32 v{U+k}, v{G+12+sp}, v{WG+sp}\nv_fmac_f32 v{U+k+1}, v{G+sp}, v{WG+sp}")
        e(f"""v_add_f32 v{U}, v{U}, v{U+2}
        v_add_f32 v{U+1}, v{U+1}, v{U+3}
        v_cvt_pk_bf16_f32 v{U}, v{U}, v{U+1}
        ds_write_b32 v{A_CW}, v{U} offset:1024
        ds_write_b32 v100, v101
        s_branch L_CORE1""")

    def a_loader(self):
        e = self.e; e.vm = 0
        VL, VW, TMP, SEL, BLO, BHI, T, U, W, G, WUV, AC0, AC1, PA, XR = (self.VL, self.VW, self.TMP, self.SEL, self.BLO,
            self.BHI, self.T, self.U, self.W, self.G, self.WUV, self.AC0, self.AC1, self.PA, self.XR)
        S_LW, S_PART, S_PRIV, S_MBJ = self.S_LW, self.S_PART, self.S_PRIV, self.S_MBJ
        XO, S, FR, AQ, AC, TA, M = 232, 16, 224, 4, 5, 6, 8
        CNT = X + self.X_CNT
        creg = lambda ks: (W + 4 * ks) if ks < 16 else (WUV + 4 * (ks - 16))
        e("L_AL:")
        self.role = "AL"
        self.pt("start")
        e(f"""s_sub_u32 s{S_LW}, s3, 4
        s_and_b32 s10, s3, 1
        s_lshl_b32 s10, s10, 5
        v_lshlrev_b32 v{VL}, 4, v0
        v_xor_b32 v{T}, s10, v{VL}""")
        for i in range(8): e(f"v_xor_b32 v{XO+i}, {(((i & 3) << 2) | (i >> 2)) << 4}, v{T}")
        e(f"""s_lshl_b32 s66, s4, 18
        s_lshl_b32 s67, s{S_LW}, 13
        s_add_u32 s66, s66, s67
        s_waitcnt lgkmcnt(0)""")
        self.mk_srd(SRD_A, P_CKV, 16 << 20)
        dma = []
        def dma_tile(t):
            for r in range(8):
                if r & 3 == 0: e("s_mov_b32 m0, s67")
                last = e.mem(f"buffer_load_dwordx4 v{XO+r}, {srd(SRD_A)}, s66 offen offset:{1024*(r&3)} nt lds")
                if r == 3: e("s_add_u32 s66, s66, 4096\ns_add_u32 s67, s67, 4096")
                if r == 7: e(f"s_add_u32 s66, s66, 28672\ns_add_u32 s67, s67, {28672 if t != 3 else (28672 - 131072) & 0xffffffff:#x}")
            dma.append(last)
        a0 = self.o["a0"]
        dma_tile(0)
        e.L.append("; split")
        for t in range(1, a0): dma_tile(t)
        if self.stamps: self.mk_srd(SRD_WS, P_WS, WS_USED)
        self.row_addr(AC, T)
        e(f"""v_add_u32 v{AQ}, {X}, v{AC}
        s_lshl_b32 s10, s{S_LW}, 15
        v_add_u32 v{AC}, s10, v{AC}
        s_mov_b32 s{S_SC}, {f2u(SCALE):#x}""")
        for t in range(5):
            if t < 4: e.wait(dma[t])
            e("s_barrier")
            self.pt(f"bar{t}")
            while len(dma) < min(8, a0 + t + 1, 4 + t) or (t == 4 and len(dma) < 8): dma_tile(len(dma))
            self.pt(f"iss{t}")
            if t < 4:
                skip = self.only_wave(4 + t)
                for i in range(8):
                    e(f"v_xor_b32 v{TA+(i&1)}, {i << 5}, v{AC}")
                    for q in range(4): e(f"ds_read_b128 {vr(creg(i+8*q),4)}, v{TA+(i&1)} offset:{256*q}")
                    if i & 1: e("s_waitcnt lgkmcnt(4)")
                e(f"s_waitcnt lgkmcnt(0)\n{skip}:")
        self.stat_addr(T + 2, T + 3)
        e(f"s_lshl_b32 s10, s{S_LW}, 2\nv_add_u32 v{T+3}, s10, v{T+2}\ns_barrier")
        self.qk(0, S, FR, AQ, TA, creg)
        self.softmax(0, S, FR + 16, M, TMP, T, S_LW)
        e("s_waitcnt vmcnt(0)")
        self.pt("dma")
        e("s_barrier")
        self.qk(1, S, FR, AC, TA, creg)
        self.softmax(1, S, FR + 16, M, TMP, T, S_LW)
        pv = self.o["pv"]
        if pv:
            npt = self.o["pb"]; assert self.o["pa"] == npt
            self.mk_srd(SRD_B, P_BV, 32 << 20)
            e(f"""s_lshr_b32 s10, s4, 3
            s_lshl_b32 s10, s10, 1
            s_lshr_b32 s11, s{S_LW}, 1
            s_add_u32 s10, s10, s11
            s_lshl_b32 s10, s10, 21
            s_and_b32 s11, s4, 7
            s_mul_i32 s11, s11, {8 * npt}
            s_and_b32 s12, s{S_LW}, 1
            s_lshl_b32 s12, s12, 1
            s_add_u32 s12, s12, {self.o['pvw']}
            s_mul_i32 s12, s12, {npt}
            s_add_u32 s11, s11, s12
            s_add_u32 s11, s11, {npt - pv}
            s_lshl_b32 s11, s11, 12
            s_add_u32 s10, s10, s11
            s_add_u32 s11, s10, {4096 * npt}""")
            if self.o["pvwait"]: self.lds_wait(X + self.X_CNT + 64, T)
            k = 0
            for t in range(pv):
                for sr in (10, 11):
                    for j in range(4):
                        if k >= self.o["pvwin"]: e(f"s_waitcnt vmcnt({self.o['pvwin'] - 1})")
                        e(f"buffer_load_dwordx4 {vr(32 + 4 * k, 4)}, v{VL}, {srd(SRD_B)}, s{sr} offen offset:{1024 * j} nt"); k += 1
                    e(f"s_add_u32 s{sr}, s{sr}, 4096")
            e("s_waitcnt vmcnt(0)")
        self.pt("end")
        self.stamp_out(32)
        e("s_endpgm")

    def a_tail(self):
        e = self.e; e.vm = 0
        VL, VW, TMP, SEL, BLO, BHI, T, U, W, G, AC0, AC1, PA, XR = (self.VL, self.VW, self.TMP, self.SEL, self.BLO,
            self.BHI, self.T, self.U, self.W, self.G, self.AC0, self.AC1, self.PA, self.XR)
        S_LW, S_PART, S_PRIV, S_MBJ = self.S_LW, self.S_PART, self.S_PRIV, self.S_MBJ
        UV, GA, L_W = 96, 160, 32768
        e("L_ATAIL:")
        self.role = "Q"
        e(f"s_mov_b32 s{S_LW}, s3\ns_mov_b32 s{S_PART}, 0\ns_mov_b32 s{S_SPIN}, {SPIN}")
        self.vw_addr()
        self.tail_setup()
        e(f"""s_lshl_b32 s10, s3, 14
        s_add_u32 s10, s10, {L_W}
        v_add_u32 v{T}, s10, v{VL}
        v_add_u32 v{T+1}, 65536, v{T}""")
        e.ds_reset()
        for t in range(16): e.ds(f"ds_read_b128 {vr(UV+4*t,4)}, v{T} offset:{1024*t}")
        for t in range(16): e.ds(f"ds_read_b128 {vr(W+4*t,4)}, v{T+1} offset:{1024*t}")
        e("s_waitcnt lgkmcnt(0)\ns_barrier")
        self.pt('free')
        self.poll_a(1536, U)
        self.pt("apf")
        e.vm = 0
        e(f"""s_lshr_b32 s12, s4, 1
        s_lshl_b32 s10, s12, 3
        s_add_u32 s10, s10, {AST}
        v_lshlrev_b32 v{T}, 8, v0""")
        st = e.mem(f"buffer_load_dwordx2 {vr(U,2)}, v{T}, {srd(SRD_WS)}, s10 offen sc1")
        e(f"""s_lshl_b32 s10, s12, 16
        s_lshl_b32 s11, s{S_LW}, 8
        s_add_u32 s10, s10, s11
        s_add_u32 s10, s10, {AP}""")
        g = []
        for t in range(16):
            g.append(e.mem(f"buffer_load_dwordx4 {vr(GA+4*t,4)}, v{VW}, {srd(SRD_WS)}, s10 offen offset:{1024*(t&3)} sc1 ; c:LAP"))
            if t & 3 == 3: e("s_add_u32 s10, s10, 4096")
        self.masks(0x00030003, 0x03000300)
        e(f"""v_lshl_add_u32 v{T}, v0, 1, s{S_PRIV}
        v_lshrrev_b32 v{T+1}, 4, v0
        v_lshl_add_u32 v{T+1}, v{T+1}, 5, s{S_PRIV}""")
        e.wait(st)
        e(f"v_mov_b32 v{U+2}, v{U}")
        self.row_red("v_max_f32", U + 2, (1, 2, 4, 8)); self.swap_red("v_max_f32", U + 2, TMP, (16,))
        e(f"v_sub_f32 v{U}, v{U}, v{U+2}\nv_exp_f32 v{U}, v{U}\nv_mul_f32 v{U+1}, v{U}, v{U+1}")
        self.row_red("v_add_f32", U + 1, (1, 2, 4, 8)); self.swap_red("v_add_f32", U + 1, TMP, (16,))
        e(f"""v_rcp_f32 v{U+1}, v{U+1}
        v_mul_f32 v{U}, v{U}, v{U+1}
        v_cvt_pk_bf16_f32 v{U}, v{U}, v{U}
        ds_write_b16 v{T}, v{U}
        s_waitcnt lgkmcnt(0)
        ds_read_b128 {vr(XR,4)}, v{T+1}
        ds_read_b128 {vr(XR+4,4)}, v{T+1} offset:16
        v_lshrrev_b32 v{T}, 5, v0
        v_lshlrev_b32 v{T}, 8, v{T}
        v_and_b32 v{T+1}, 15, v0
        v_lshl_add_u32 v{T}, v{T+1}, 1, v{T}
        v_bfe_u32 v{T+1}, v0, 4, 1
        v_lshl_add_u32 v{T}, v{T+1}, 5, v{T}
        v_add_u32 v{T}, s{S_PRIV}, v{T}
        v_bfe_u32 v{T+1}, v0, 3, 1
        v_lshlrev_b32 v{T+1}, 8, v{T+1}
        v_lshrrev_b32 v{T+2}, 4, v0
        v_lshl_add_u32 v{T+1}, v{T+2}, 6, v{T+1}
        v_bfe_u32 v{T+2}, v0, 2, 1
        v_lshl_add_u32 v{T+1}, v{T+2}, 5, v{T+1}
        v_add_u32 v{T+1}, s{S_PRIV}, v{T+1}
        s_waitcnt lgkmcnt(0)""")
        self.rws256(16, XR, GA, AC0, BLO, BHI, PA, g)
        self.pt("lat")
        e(f"""v_cvt_pk_bf16_f32 v{U}, v{AC0}, v{AC0+1}
        v_cvt_pk_bf16_f32 v{U+1}, v{AC0+2}, v{AC0+3}
        ds_write_b16 v{T}, v{U} offset:256
        ds_write_b16_d16_hi v{T}, v{U} offset:320
        ds_write_b16 v{T}, v{U+1} offset:384
        ds_write_b16_d16_hi v{T}, v{U+1} offset:448
        s_waitcnt lgkmcnt(0)
        ds_read_b128 {vr(XR,4)}, v{T+1} offset:256
        ds_read_b128 {vr(XR+4,4)}, v{T+1} offset:272""")
        for z in (0, 1, 4, 5, 8, 9): e(f"v_mov_b32 v{PA+z}, 0")
        e(f"""v_bfe_u32 v{T}, v0, 3, 1
        v_lshlrev_b32 v{T}, 9, v{T}
        v_lshrrev_b32 v{T+1}, 5, v0
        v_lshl_add_u32 v{T}, v{T+1}, 8, v{T}
        v_and_b32 v{T+1}, 7, v0
        v_lshl_add_u32 v{T}, v{T+1}, 5, v{T}
        s_lshl_b32 s10, s{S_LW}, 10
        v_add_u32 v{T}, s10, v{T}
        s_waitcnt lgkmcnt(0)""")
        self.rws128(16, XR, UV, AC0, AC1, SEL, PA)
        RED = 16384
        e(f"""s_mov_b32 exec_lo, 0xff0000ff
        s_mov_b32 exec_hi, 0xff0000ff
        ds_write_b128 v{T}, {vr(AC0,4)} offset:{RED}
        ds_write_b128 v{T}, {vr(AC1,4)} offset:{RED+16}
        s_mov_b64 exec, -1
        v_lshlrev_b32 v{T}, 3, v0""")
        self.masks(0x03030303, 0x03030303)
        e("s_waitcnt lgkmcnt(0)\ns_barrier")
        for i in range(8): e(f"ds_read_b64 {vr(U+2*i,2)}, v{T} offset:{RED+512*i}")
        e("s_waitcnt lgkmcnt(0)")
        self.tree("v_add_f32", U, 8, 2)
        self.pt("ctx")
        A_CW, A_CR, A_MB = self.A_CW, self.A_CR, self.A_MB
        e(f"""v_cvt_pk_bf16_f32 v{U}, v{U}, v{U+1}
        ds_write_b32 v{A_CW}, v{U} offset:1024
        L_CORE1:
        ds_read_b128 {vr(XR,4)}, v{A_CR} offset:1024
        ds_read_b128 {vr(XR+4,4)}, v{A_CR} offset:1040
        L_CORE2:
        s_lshl_b32 s10, s{S_LW}, 15
        s_lshl_b32 s11, s4, 7
        s_add_u32 s10, s10, s11
        s_lshl_b32 s11, s{S_PART}, 18
        s_add_u32 s10, s10, s11
        s_add_u32 s10, s10, {MB+MB_2}
        s_waitcnt lgkmcnt(0)""")
        self.pt("cx")
        self.rws256(16, XR, W, AC0, BLO, BHI, PA)
        e(f"""v_cvt_pk_bf16_f32 v{AC1}, v{AC0}, v{AC0+1}
        v_cvt_pk_bf16_f32 v{AC1+1}, v{AC0+2}, v{AC0+3}
        v_min_u32 v{AC1}, -2, v{AC1}
        v_min_u32 v{AC1+1}, -2, v{AC1+1}
        v_mov_b32 v{AC1+2}, v{AC1}
        v_mov_b32 v{AC1+3}, v{AC1+1}
        v_permlane16_swap_b32 v{AC1}, v{AC1+2}
        v_permlane16_swap_b32 v{AC1+1}, v{AC1+3}
        s_mov_b32 exec_lo, 0xffff
        s_mov_b32 exec_hi, 0xffff
        buffer_store_dwordx4 {vr(AC1,4)}, v{A_MB}, {srd(SRD_WS)}, s10 offen sc1 ; c:MB2
        s_mov_b64 exec, -1""")
        self.pt("core")
        e(f"""s_lshr_b32 s10, s4, 4
        s_cmp_lg_u32 s10, s{S_PART}
        s_cbranch_scc1 L_FINDONE
        s_cmp_lg_u32 s{S_LW}, 0
        s_cbranch_scc1 L_FINDONE
        s_add_u32 s10, s{S_MBJ}, {MB_2}
        s_add_u32 s11, s10, 4096
        v_mov_b32 v{T}, 0x3f803f80
        v_perm_b32 v{PA+2}, v{T}, v{T}, v{SEL}
        v_perm_b32 v{PA+3}, v{T}, v{T}, v{SEL+1}""")
        for z in (0, 1, 4, 5): e(f"v_mov_b32 v{PA+z}, 0")
        top, done = e.lab("L_spin"), e.lab("L_ok")
        e(f"{top}:")
        self.pt("fr")
        for i in range(8): e(f"buffer_load_dwordx4 {vr(G+4*i,4)}, v{VL}, {srd(SRD_WS)}, s{10+(i>>2)} offen offset:{1024*(i&3)} sc1 ; c:LMB")
        for i in range(8):
            e(f"s_waitcnt vmcnt({7-i})")
            e(f"v_mfma_f32_16x16x32_bf16 {vr(AC0,4)}, {vr(PA+2,4)}, {vr(G+4*i,4)}, {vr(AC0,4) if i else 0}")
            e(f"v_mfma_f32_16x16x32_bf16 {vr(AC1,4)}, {vr(PA,4)}, {vr(G+4*i,4)}, {vr(AC1,4) if i else 0}")
            if i == 0: e(f"v_max3_u32 v{T}, v{G}, v{G+1}, v{G+2}\nv_max_u32 v{T}, v{T}, v{G+3}")
            else: e(f"v_max3_u32 v{T}, v{T}, v{G+4*i}, v{G+4*i+1}\nv_max3_u32 v{T}, v{T}, v{G+4*i+2}, v{G+4*i+3}")
        e(f"v_cmp_eq_u32 vcc, -1, v{T}\ns_cbranch_vccz {done}")
        self.spin_tail(top, done)
        self.pt("fp")
        for r in range(8): self.row_red("v_add_f32", AC0 + r, (8,))
        for r in range(4): e(f"v_cvt_pk_bf16_f32 v{G+r}, v{AC0+2*r}, v{AC0+2*r+1}")
        e(f"""s_bfe_u32 s10, s4, 0x10003
        s_lshl_b32 s10, s10, 11
        s_and_b32 s11, s4, 7
        s_lshl_b32 s11, s11, 7
        s_add_u32 s10, s10, s11
        s_lshl_b32 s11, s{S_PART}, 10
        s_add_u32 s10, s10, s11
        s_mov_b64 exec, 0xff
        buffer_store_dwordx4 {vr(G,4)}, v{VL}, {srd(SRD_E)}, s10 offen
        s_cmp_lg_u32 s4, 16
        s_cbranch_scc1 L_FINDONE
        s_mov_b64 exec, 1
        v_mov_b32 v{T}, s{TAG}
        s_mov_b32 s10, {EPOCH}
        buffer_store_dword v{T}, off, {srd(SRD_WS)}, s10
        L_FINDONE:""")
        self.pt("fin")
        self.stamp_out(16)
        e("s_endpgm")

    def build(self):
        e = self.e
        e("""s_cmp_ge_u32 s2, 256
        s_cbranch_scc1 L_END
        s_load_dwordx16 s[16:31], s[0:1], 0
        s_load_dwordx8 s[32:39], s[0:1], 64
        s_load_dwordx4 s[40:43], s[0:1], 96
        v_lshrrev_b32 v1, 6, v0
        v_and_b32 v0, 63, v0
        v_readfirstlane_b32 s3, v1
        s_sub_u32 s4, s2, 128""")
        tests = {"P": "s_cmp_lt_u32 s2, 128\ns_cbranch_scc1 L_P", "Q": "s_cmp_ge_u32 s2, 192\ns_cbranch_scc1 L_Q",
                 "L": "s_cmp_ge_u32 s5, 64\ns_cbranch_scc0 L_AL", "C": "s_cmp_lt_u32 s5, 64\ns_cbranch_scc1 L_AC"}
        order = self.o["order"]
        for r in order[1:]:
            if r == "L": e("s_cmp_ge_u32 s3, 4\ns_cselect_b32 s5, s4, 64")
            if r == "C": e("s_cmp_lt_u32 s3, 4\ns_cselect_b32 s5, s4, 64")
            e(tests[r])
        fn = {"P": lambda: self.bside("P"), "Q": lambda: (self.bside("Q"), self.a_tail()), "L": self.a_loader, "C": self.a_compute}
        marks = {}
        for r in order:
            i0 = len(e.L); fn[r](); marks[r] = (i0, len(e.L))
        if self.o["pack"]:
            heads, bodies = [], []
            for r in order:
                seg = e.L[marks[r][0]:marks[r][1]]
                k = seg.index("; split")
                heads += seg[:k] + [f"s_branch L_{r}_REST"]
                bodies += [f"L_{r}_REST:"] + seg[k + 1:]
            e.L = e.L[:marks[order[0]][0]] + heads + bodies
        e.L = [l for l in e.L if l != "; split"]
        e("L_END:\ns_endpgm")
        if "nobar" in self.x:
            i0 = e.L.index("L_P:"); i1 = e.L.index("L_AC:")
            e.L = e.L[:i0] + [l for l in e.L[i0:i1] if l != "s_barrier"] + e.L[i1:]
        if "nomath" in self.x:
            i0 = e.L.index("L_P:"); i1 = e.L.index("L_AC:")
            e.L = e.L[:i0] + [l for l in e.L[i0:i1] if not l.startswith(("v_mfma", "v_exp", "v_fma", "v_perm_", "v_add_f32", "v_mov_b32_dpp", "v_cvt", "v_max3"))] + e.L[i1:]
        if "noph1" in self.x:
            i0 = e.L.index("L_P:"); i1 = e.L.index("L_AC:")
            e.L = e.L[:i0] + [l for l in e.L[i0:i1] if not (l.startswith("buffer_load") and (srd(SRD_D) in l or srd(SRD_E) in l))] + e.L[i1:]
        for x in self.x:
            if x.startswith("c:"): e.L = [l for l in e.L if not l.endswith("; " + x)]
        for x in self.x:
            if x.startswith("m:"):
                tag, m = x[2:].split("=")
                e.L = [l.replace(" sc1", " " + m.replace("+", " ")) if l.endswith("; c:" + tag) else l for l in e.L]
            if x.startswith("allst="):
                m = x[6:].replace("+", " ")
                e.L = [l.replace(" sc1", " " + m if m else "") if l.startswith("buffer_store") else l for l in e.L]
        if "nost" in self.x:
            e.L = [l for l in e.L if not (l.startswith("buffer_store") and "sc1" in l)]
        if "nosc" in self.x:
            e.L = [l for l in e.L if not (l.startswith("buffer_load") and "sc1" in l)]
        if "noA" in self.x:
            for lab in ("L_AL:", "L_AC:"):
                i = e.L.index(lab); e.L.insert(i + 1, "s_endpgm")
        if "link" in self.x:
            e.L = [l.replace(", v1, s[48:51]", ", v2, s[48:51]") if l.startswith("buffer_load_dwordx4") and "lds" not in l else l for l in e.L]
        if self.o["wb"]: e.L = [l.replace(" sc1", "") if l.endswith("; c:AP") else l for l in e.L]
        body, npad = fix_hazards(e.L)
        out = [HEADER.rstrip(), "; @launch grid=(256,1,1) block=(512,1,1) lds=163840",
               '.amdgcn_target "amdgcn-amd-amdhsa--gfx950"', ".text", f".globl {NAME}_kernel", ".p2align 8",
               f".type {NAME}_kernel,@function", f"{NAME}_kernel:"]
        out += [("" if l.endswith(":") else "    ") + l for l in body]
        out += ['.section .rodata,"a"', ".p2align 6", f".amdhsa_kernel {NAME}_kernel",
                "  .amdhsa_next_free_vgpr 256", "  .amdhsa_next_free_sgpr 102", "  .amdhsa_accum_offset 256",
                "  .amdhsa_group_segment_fixed_size 0", "  .amdhsa_kernarg_size 112", "  .amdhsa_user_sgpr_count 2",
                "  .amdhsa_user_sgpr_kernarg_segment_ptr 1", "  .amdhsa_system_sgpr_workgroup_id_x 1",
                ".end_amdhsa_kernel"]
        return "\n".join(out) + "\n", npad

PTS = {"P": "start,xq,st,qf,q,k,v,end", "Q": "start,fin,w,free,end,core,apf,ctx",
       "AC": "start,fin,qd,b1,b9,core,pv,bo", "AL": "start,bar0,bar3,iss4,dma,x,y,end"}

if __name__ == "__main__":
    ap = argparse.ArgumentParser()
    ap.add_argument("out"); ap.add_argument("--stamps", action="store_true")
    ap.add_argument("--pts", action="append", default=[]); ap.add_argument("--x", default="")
    for k, v in DEFAULTS.items(): ap.add_argument("--" + k, type=int, default=v)
    ap.add_argument("--order", default="LPQC"); DEFAULTS["order"] = 0
    a = ap.parse_args()
    pts = {}
    if a.stamps:
        pts = {k: v.split(",") for k, v in PTS.items()}
        for p in a.pts:
            r, l = p.split(":"); pts[r] = l.split(",")
    s, npad = Gen({k: getattr(a, k) for k in DEFAULTS}, pts, set(a.x.split(","))).build()
    open(a.out, "w").write(s)
    print("wrote", a.out, "lines", s.count("\n"), "pads", npad)
```

```python
import sys, math, struct, argparse
from asmlib import Emit, fix_hazards

NAME = "concat_heads__compressed_kv_cla__gqa_block_cached__decode"
HEADER = open("cdna_kernels/%s.s.ref" % NAME).read().split("; Override launch")[0]

QBP = 0x000000
QAP = 0x020000
AST = 0x040000
BS  = 0x048000
FB  = 0x050000
EPOCH = 0x060000
FA  = 0x080000
MB  = 0x100000
MB_2 = 8192
AP  = 0x200000
XQ  = 0x400000
WS_USED = 0x500000
STAMPS = 0x800000

SCALE = math.log2(math.e) / math.sqrt(128.0)
def f2u(x): return struct.unpack("<I", struct.pack("<f", x))[0]

SRD_WS, SRD_A, SRD_B, SRD_C, SRD_D, SRD_E, SRD_F, SRD_G = 44, 48, 52, 56, 60, 64, 68, 96
P_AX, P_CKV, P_AWQ, P_WUK, P_WUV, P_AWO, P_BX, P_BK, P_BV, P_BWQ, P_BWO, P_OUT, P_DBG, P_WS = range(16, 44, 2)
S_SC, S_SPIN = 15, 14
MASK0 = 72
TAG = 94
ST0 = 16
SPIN = 20000
X = 131072

def srd(n): return f"s[{n}:{n+3}]"
def vr(a, n): return f"v[{a}:{a+n-1}]" if n > 1 else f"v{a}"

DEFAULTS = dict(pe=0, gate=-1, ps1=2, ps2=2, clr_at=-1, cpf=1, t1x=2, il=1, pack=0, pa=6, pb=6, qa=4, qat=3, fat=2, uvb=0, pv=0, pvw=4, pvwait=1, pvwin=4, ne=4, we=2, sl_bo=0, kq=12, cu=2, wsb=0, wt1=8, pf1=1, pfwin=6, stw=0, sl_ap=4, sl_xq0=0, sl_xq=2, sl_qa=4, sl_bs=8, np=6, uv0=16, wa=0, wb=0, wc=0, pf=4, pfw=0, pre_q=0, uv1=8, a0=3, t2w=0, wq1=2, kq1=4, sleep=0, pre_p=0, w1=2, kf_p=0, kf_q=12, wq0=8, wk=8, wt=10, wv=8)

class Gen:
    def __init__(self, opt, pts, x):
        self.o = opt; self.alt = pts; self.x = x; self.role = None
        self.stamps = bool(pts)
        self.e = Emit()

    def mk_srd(self, d, p, size):
        self.e(f"s_mov_b32 s{d}, s{p}\ns_mov_b32 s{d+1}, s{p+1}\ns_mov_b32 s{d+2}, {size:#x}\ns_mov_b32 s{d+3}, 0x20000")

    def pt(self, name, role=None):
        sel = self.alt.get(role or self.role)
        if sel and name in sel:
            i = sel.index(name); self.e(f"s_memrealtime s[{80+2*i}:{81+2*i}]" if i < 7 else "s_memrealtime s[100:101]")

    def stamp_out(self, t):
        if not self.stamps: return
        e = self.e
        if "dbg" in self.x:
            skip = e.lab("L_skip")
            e(f"""s_waitcnt lgkmcnt(0)
            s_and_b32 s10, s2, 127
            s_lshl_b32 s10, s10, 3
            s_add_u32 s10, s10, s3
            s_cmp_lg_u32 s10, 0
            s_cbranch_scc1 {skip}
            s_lshr_b32 s10, s2, 7
            s_lshl_b32 s10, s10, 5
            s_mov_b64 exec, 1""")
            for x in self.x:
                if x.startswith("hold"):
                    top = e.lab("L_hold")
                    e(f"""{top}:
                    s_memrealtime s[12:13]
                    s_waitcnt lgkmcnt(0)
                    s_sub_u32 s12, s12, s80
                    s_cmp_lt_u32 s12, {int(x[4:])}
                    s_cbranch_scc1 {top}""")
            self.mk_srd(SRD_A, P_DBG, 256)
            regs = [80, 82, 84, 86, 88, 90, 92, 100]
            for k in range(8):
                e(f"s_sub_u32 s11, s{regs[k]}, {'s80' if k else '0'}\nv_mov_b32 v{t+k}, s11")
            e(f"buffer_store_dwordx4 v[{t}:{t+3}], off, {srd(SRD_A)}, s10\nbuffer_store_dwordx4 v[{t+4}:{t+7}], off, {srd(SRD_A)}, s10 offset:16")
            e(f"{skip}:")
            return
        e("s_waitcnt lgkmcnt(0)\ns_mov_b64 exec, 1")
        e(f"s_lshl_b32 s4, s2, 3\ns_add_u32 s4, s4, s3\ns_lshl_b32 s4, s4, 6\ns_add_u32 s4, s4, {STAMPS}")
        e(f"s_mov_b32 s{SRD_WS+2}, 0x1000000")
        regs = list(range(80, 94)) + [100, 101]
        for i in range(4):
            for k in range(4): e(f"v_mov_b32 v{t+k}, s{regs[4*i+k]}")
            e(f"buffer_store_dwordx4 v[{t}:{t+3}], off, {srd(SRD_WS)}, s4 offset:{16*i}")
            e("s_nop 2")

    def selectors(self, sel, base_lo, base_hi, tmp):
        self.e(f"""v_and_b32 v{tmp}, 1, v0
        v_cmp_eq_u32 vcc, 1, v{tmp}
        v_mov_b32 v{base_lo}, 0x0c0c0100
        v_mov_b32 v{tmp}, 0x01000c0c
        v_cndmask_b32 v{base_lo}, v{base_lo}, v{tmp}, vcc
        v_add_u32 v{base_hi}, 0x0202, v{base_lo}
        v_mov_b32 v{tmp}, 0x03020c0c
        v_cndmask_b32 v{base_hi}, v{base_hi}, v{tmp}, vcc
        v_and_b32 v{tmp}, 2, v0
        v_cmp_eq_u32 vcc, 0, v{tmp}
        v_mov_b32 v{tmp}, 0x0c0c0c0c
        v_cndmask_b32 v{sel}, v{tmp}, v{base_lo}, vcc
        v_cndmask_b32 v{sel+1}, v{base_lo}, v{tmp}, vcc
        v_cndmask_b32 v{sel+2}, v{tmp}, v{base_hi}, vcc
        v_cndmask_b32 v{sel+3}, v{base_hi}, v{tmp}, vcc""")

    def masks(self, lo, hi):
        for j in range(4):
            self.e(f"s_mov_b32 s{MASK0+2*j}, {(lo << (2*j)):#x}\ns_mov_b32 s{MASK0+2*j+1}, {(hi << (2*j)):#x}")

    def rws256(self, nload, x, w, acc, base_lo, base_hi, t0, waits=None):
        e = self.e
        for t in range(nload):
            a = t0 + 2 + 4 * (t & 1)
            e(f"v_perm_b32 v{t0}, v{x+(t>>1)}, v{x+(t>>1)}, v{base_hi if t & 1 else base_lo}")
            for j in range(4): e(f"v_cndmask_b32 v{a+j}, 0, v{t0}, s[{MASK0+2*j}:{MASK0+2*j+1}]")
            if waits: e.wait(waits[t])
            e(f"v_mfma_f32_16x16x32_bf16 {vr(acc,4)}, {vr(a,4)}, {vr(w+4*t,4)}, {vr(acc,4) if t else 0}")

    def rws128(self, nload, x, w, acc0, acc1, sel, pa):
        e = self.e
        for t in range(nload):
            p = pa + 2 + 4 * (t & 1)
            sa, sb = (sel + 2, sel + 3) if t & 1 else (sel, sel + 1)
            e(f"v_perm_b32 v{p}, v{x+(t>>1)}, v{x+(t>>1)}, v{sa}\nv_perm_b32 v{p+1}, v{x+(t>>1)}, v{x+(t>>1)}, v{sb}")
            e(f"v_mfma_f32_16x16x32_bf16 {vr(acc0,4)}, {vr(p,4)}, {vr(w+4*t,4)}, {vr(acc0,4) if t else 0}")
            e(f"v_mfma_f32_16x16x32_bf16 {vr(acc1,4)}, {vr(p-2,4)}, {vr(w+4*t,4)}, {vr(acc1,4) if t else 0}")

    def quad_sum(self, ds):
        for r in range(4):
            for d in ds:
                q = f"quad_perm:[{r},{r},{r},{r}] row_mask:0xf bank_mask:0xf"
                self.e(f"v_mov_b32_dpp v{d}, v{d} {q}" if r == 0 else f"v_add_f32_dpp v{d}, v{d+r}, v{d} {q}")

    def swap_red(self, op, x, t, which):
        for s in which:
            self.e(f"v_mov_b32 v{t}, v{x}\nv_permlane{s}_swap_b32 v{x}, v{t}\n{op} v{x}, v{x}, v{t}")

    def row_red(self, op, x, rots):
        for r in rots:
            self.e(f"{op}_dpp v{x}, v{x}, v{x} row_ror:{r} row_mask:0xf bank_mask:0xf")

    def tree(self, op, base, n, width):
        st = 1
        while st < n:
            for i in range(0, n, 2 * st):
                for r in range(width): self.e(f"{op} v{base+width*i+r}, v{base+width*i+r}, v{base+width*(i+st)+r}")
            st *= 2

    def max3_chain(self, op, dst, regs):
        regs = list(regs)
        self.e(f"v_max3_{op} v{dst}, v{regs[0]}, v{regs[1]}, v{regs[2]}")
        regs = regs[3:]
        while len(regs) >= 2:
            self.e(f"v_max3_{op} v{dst}, v{dst}, v{regs[0]}, v{regs[1]}"); regs = regs[2:]
        if regs: self.e(f"v_max_{op} v{dst}, v{dst}, v{regs[0]}")

    def spin_tail(self, top, done, sleep=0):
        if sleep: self.e(f"s_sleep {sleep}")
        if "nodep" in self.x: self.e(f"{done}:"); return
        self.e(f"s_sub_u32 s{S_SPIN}, s{S_SPIN}, 1\ns_cbranch_scc0 {top}\n{done}:")

    def lds_wait(self, addr, t):
        e = self.e
        top, done = e.lab("L_spin"), e.lab("L_ok")
        e(f"""v_mov_b32 v{t}, {addr}
        s_mov_b32 s{S_SPIN}, {SPIN * 20}
        {top}:
        ds_read_b32 v{t+1}, v{t}
        s_waitcnt lgkmcnt(0)
        v_cmp_ne_u32 vcc, 4, v{t+1}
        s_cbranch_vccz {done}""")
        self.spin_tail(top, done, 2)

    def lds_inc(self, addr, t):
        self.e(f"""v_mov_b32 v{t}, {addr}
        v_mov_b32 v{t+1}, 1
        s_mov_b64 exec, 1
        ds_add_u32 v{t}, v{t+1}
        s_mov_b64 exec, -1""")

    def poll_loop(self, n, load, use, test, sets, name):
        e = self.e
        top, done = e.lab("L_spin"), e.lab("L_ok")
        if sets == 2:
            for i in range(n): load(0, i)
        e(f"{top}:")
        for k in range(sets):
            self.pt(name)
            for i in range(n): load((k + 1) % sets, i)
            for i in range(n):
                e(f"s_waitcnt vmcnt({(sets - 1) * n + n - 1 - i})"); use(k, i)
            test()
            e(f"s_cbranch_vccz {done}")
        self.spin_tail(top, done)

    def only_wave(self, w):
        skip = self.e.lab("L_skip")
        self.e(f"s_cmp_lg_u32 s3, {w}\ns_cbranch_scc1 {skip}")
        return skip

    def epoch_load(self):
        if self.o["wsb"]: self.e(f"s_add_u32 s{P_WS}, s{P_WS}, {self.o['wsb'] << 20:#x}\ns_addc_u32 s{P_WS+1}, s{P_WS+1}, 0")
        self.e(f"s_load_dword s{TAG}, s[{P_WS}:{P_WS+1}], {EPOCH:#x}")

    def epoch_tag(self):
        self.e(f"s_waitcnt lgkmcnt(0)\ns_add_u32 s{TAG}, s{TAG}, 1\ns_xor_b32 s{TAG+1}, s{TAG}, 0x5bd1e995")

    def post_b(self, sg, sslot, t):
        self.e(f"""v_mov_b32 v{t}, s{TAG}
        v_mov_b32 v{t+1}, s{TAG+1}
        s_lshl_b32 s10, s{sg}, 7
        s_lshl_b32 s11, s{sslot}, 3
        s_add_u32 s10, s10, s11
        s_add_u32 s10, s10, {FB}
        s_mov_b64 exec, 1
        buffer_store_dwordx2 {vr(t,2)}, off, {srd(SRD_WS)}, s10 sc1 ; c:FLAG
        s_mov_b64 exec, -1""")

    def post_a(self, sid, off, t):
        self.e(f"""v_lshlrev_b32 v{t+2}, 11, v0
        v_mov_b32 v{t}, s{TAG}
        v_mov_b32 v{t+1}, s{TAG+1}
        s_lshl_b32 s10, s{sid}, 3
        s_add_u32 s10, s10, {FA+off}
        s_mov_b64 exec, 0xff
        buffer_store_dwordx2 {vr(t,2)}, v{t+2}, {srd(SRD_WS)}, s10 offen sc1 ; c:FLAG
        s_mov_b64 exec, -1""")

    def poll_a(self, off, t):
        e = self.e
        top, done = e.lab("L_spin"), e.lab("L_ok")
        e(f"""s_and_b32 s10, s4, 7
        s_lshl_b32 s10, s10, 11
        s_add_u32 s10, s10, {FA+off}
        v_lshlrev_b32 v{t+2}, 3, v0
        {top}:
        buffer_load_dwordx2 {vr(t,2)}, v{t+2}, {srd(SRD_WS)}, s10 offen sc1
        s_waitcnt vmcnt(0)
        v_cmp_ne_u64 vcc, s[{TAG}:{TAG+1}], {vr(t,2)}
        s_cbranch_vccz {done}""")
        self.spin_tail(top, done, self.o["sl_ap"])

    def tag_check(self, g, n, t):
        e = self.e
        for i in range(n):
            e(f"v_xor_b32 v{t+2}, s{TAG+1}, v{g+2*i}\nv_xor_b32 v{g+2*i+1}, s{TAG}, v{g+2*i+1}")
            e(f"v_and_or_b32 v{g+2*i+1}, v{t+2}, v{t+1}, v{g+2*i+1}")
        e(f"v_or_b32 v{t}, v{g+1}, v{g+3}")
        for i in range(2, n, 2): e(f"v_or3_b32 v{t}, v{t}, v{g+2*i+1}, v{g+2*i+3}")

    def bside(self, kind):
        e = self.e; e.vm = 0; o = self.o
        tp = 4 * (o["pa"] + o["pb"])
        pa, pb = (o["pa"], o["pb"]) if kind == "P" else (o["qa"], (128 - 2 * tp) // 4 - o["qa"])
        n = max(pa, pb)
        VK, VL, TMP, SEL, BLO, BHI, QF, AC0, AC1, LS, MX = 1, 2, 3, 4, 8, 9, 10, 14, 18, 22, 23
        T = 24; D0 = 32; KR = 36; VR = 132; PA = 228; U = 246
        L_T1, L_Q, L_MAX, L_L, L_RED, L_T2, L_QA, L_W = 0, 8192, 9216, 9344, 16384, 32768, 40960, 32768
        S_KV, S_VV, S_G, S_B, S_SP = 5, 6, 7, 8, 9
        L_F = 9472
        e(f"L_{kind}:")
        self.role = kind
        if "no" + kind in self.x: e("s_endpgm")
        self.pt("start")
        e(f"""v_and_b32 v{T}, 3, v0
        v_lshrrev_b32 v{TMP}, 4, v0
        v_lshlrev_b32 v{T+1}, 6, v{TMP}
        v_lshl_add_u32 v{T+1}, v{T}, 4, v{T+1}
        v_bfe_u32 v{T}, v0, 2, 2
        v_lshl_add_u32 v{VK}, v{T}, 8, v{T+1}
        v_lshlrev_b32 v{VL}, 4, v0""")
        if kind == "P":
            e(f"""v_lshl_add_u32 v{T+6}, v{T}, 15, v{T+1}
            v_and_b32 v{T+4}, 15, v0
            v_lshlrev_b32 v{T+4}, 4, v{T+4}
            v_lshl_add_u32 v{T+4}, v{TMP}, 15, v{T+4}
            v_bfe_u32 v{T+5}, v0, 3, 1
            v_lshlrev_b32 v{T+5}, 10, v{T+5}
            v_lshl_add_u32 v{T+5}, v{TMP}, 3, v{T+5}
            s_lshr_b32 s10, s2, 3
            s_and_b32 s{S_SP}, s2, 7
            s_mul_i32 s11, s{S_SP}, {tp}
            s_lshr_b32 s13, s2, 2
            s_and_b32 s4, s2, 3""")
        else:
            e(f"""s_sub_u32 s4, s2, 192
            s_lshr_b32 s10, s4, 2
            s_and_b32 s4, s4, 3
            s_add_u32 s{S_SP}, s4, 8
            s_mul_i32 s11, s4, {4*(pa+pb)}
            s_add_u32 s11, s11, {8*tp}
            v_and_b32 v{T+4}, 15, v0
            v_lshlrev_b32 v{T+4}, 4, v{T+4}
            v_lshl_add_u32 v{T+4}, v{TMP}, 16, v{T+4}
            v_bfe_u32 v{T+5}, v0, 3, 1
            v_lshlrev_b32 v{T+5}, 10, v{T+5}
            v_lshl_add_u32 v{T+5}, v{TMP}, 4, v{T+5}
            s_sub_u32 s13, s2, 192
            s_and_b32 s4, s13, 1
            s_lshr_b32 s13, s13, 1
            s_xor_b32 s13, s13, {o["t1x"]}""")
        il = o["il"]
        if not il:
            e(f"""s_mul_i32 s12, s3, {pb}
            s_min_u32 s{S_G}, s3, 4
            s_mul_i32 s{S_G}, s{S_G}, {pa-pb}
            s_add_u32 s12, s12, s{S_G}
            s_add_u32 s11, s11, s12
            s_lshl_b32 s11, s11, 12""")
        else:
            e(f"s_lshl_b32 s11, s11, 12\ns_lshl_b32 s12, s3, 10\ns_add_u32 s11, s11, s12")
        e(f"""s_and_b32 s{S_G}, s10, 7
        s_lshr_b32 s{S_B}, s10, 3
        s_lshl_b32 s10, s10, 21
        s_add_u32 s{S_KV}, s10, s11
        s_mov_b32 s{S_VV}, s{S_KV}""")
        sh = 7 if kind == "P" else 8
        e(f"""s_lshl_b32 s10, s4, {sh}
        s_lshl_b32 s11, s3, {sh-3}
        s_add_u32 s10, s10, s11
        s_lshl_b32 s11, s10, 1
        s_lshl_b32 s10, s10, 13
        s_lshl_b32 s12, s13, 8
        s_add_u32 s10, s10, s12""")
        e("s_waitcnt lgkmcnt(0)")
        self.epoch_load()
        tags = []; cur = [min(pa, pb)]
        def issue(upto):
            n = cur[0]
            while len(tags) < min(upto, 8 * n):
                x = len(tags); k = x % (4 * n); j = k & 3
                r, v, sd, so = (KR, VK, SRD_A, S_KV) if x < 4 * n else (VR, VL, SRD_B, S_VV)
                tags.append(e.mem(f"buffer_load_dwordx4 {vr(r+4*k,4)}, v{v}, {srd(sd)}, s{so} offen offset:{0 if il else 1024*j} nt"))
                if not il:
                    if j == 3: e(f"s_add_u32 s{so}, s{so}, 4096")
                else:
                    nm = 4 * min(pa, pb)
                    step = 8192 if k < nm - 1 else 4096
                    if k == nm - 1: step = 8192 - (4096 if pb > pa else 0)
                    if k < 4 * n - 1: e(f"s_add_u32 s{so}, s{so}, {step}")
        seen = set()
        def land(k):
            e.wait(tags[k])
            if k not in seen: seen.add(k); self.pt(f"l{k}")
        def slide(k0, k1, w):
            for k in range(k0, k1):
                land(k); issue(k + 1 + w)
        self.mk_srd(SRD_WS, P_WS, WS_USED)
        if kind == "P":
            self.mk_srd(SRD_C, P_AX, 2048); self.mk_srd(SRD_D, P_AWQ, 4 << 20)
            e(f"""v_lshlrev_b32 v{LS}, 15, v{TMP}
            v_and_b32 v{U+5}, 15, v0
            v_lshl_add_u32 v{LS}, v{U+5}, 4, v{LS}""")
            skip = self.only_wave(7)
            e(f"""s_lshl_b32 s12, s2, 8
            s_add_u32 s12, s12, {QAP}""")
            for r in range(4): e(f"v_mov_b32 v{U+r}, -1")
            e(f"""s_mov_b32 exec_hi, 0
            buffer_store_dwordx4 {vr(U,4)}, v{LS}, {srd(SRD_WS)}, s12 offen sc1 ; c:QCLR
            s_mov_b64 exec, -1
            {skip}:""")
            def four(slot, voff, s):
                e("s_mov_b32 s12, s10")
                r = []
                for t in range(4):
                    r.append(e.mem(f"buffer_load_dwordx4 {vr(VR+4*(slot+t),4)}, v{voff}, {srd(s)}, s12 offen nt"))
                    if t < 3: e("s_add_u32 s12, s12, 8192")
                return r
            xa = e.mem(f"buffer_load_dwordx2 {vr(T,2)}, v{T+5}, {srd(SRD_C)}, s11 offen")
            w2 = four(0, T + 4, SRD_D)
            self.mk_srd(SRD_E, P_WUK, 4 << 20)
            if o["t2w"] >= 0: e.wait(w2[o["t2w"]])
            w3 = four(4, T + 6, SRD_E)
        else:
            self.mk_srd(SRD_C, P_BX, 2048); self.mk_srd(SRD_D, P_BWQ, 4 << 20)
            xb = e.mem(f"buffer_load_dwordx4 {vr(T,4)}, v{T+5}, {srd(SRD_C)}, s11 offen")
            w1 = []
            for t in range(8):
                if t >= o["wt1"]: e.wait(w1[t - o["wt1"]])
                w1.append(e.mem(f"buffer_load_dwordx4 {vr(VR+4*t,4)}, v{T+4}, {srd(SRD_D)}, s10 offen nt"))
                if t < 7: e("s_add_u32 s10, s10, 8192")
            self.mk_srd(SRD_E, P_OUT, 4096)
            e(f"""v_lshrrev_b32 v{T+6}, 3, v0
            v_lshlrev_b32 v{T+6}, 17, v{T+6}
            v_and_b32 v{U}, 7, v0
            v_lshl_add_u32 v{T+6}, v{U}, 4, v{T+6}
            v_and_b32 v{U}, 15, v0
            v_lshlrev_b32 v{U}, 4, v{U}
            v_lshl_add_u32 v{U}, v{TMP}, 14, v{U}
            s_sub_u32 s68, s2, 192
            s_cmp_lt_u32 s3, 4
            s_cselect_b32 s{SRD_C}, s{P_WUV}, s{P_AWO}
            s_cselect_b32 s{SRD_C+1}, s{P_WUV+1}, s{P_AWO+1}
            s_mov_b32 s{SRD_C+2}, 0x400000
            s_movk_i32 s69, 1024
            s_cselect_b32 s69, 8192, s69
            s_cselect_b64 vcc, -1, 0
            v_cndmask_b32 v{T+6}, v{U}, v{T+6}, vcc
            s_lshl_b32 s10, s3, 20
            s_lshl_b32 s11, s68, 7
            s_add_u32 s10, s10, s11
            s_lshl_b32 s11, s68, 16
            s_and_b32 s12, s3, 3
            s_lshl_b32 s12, s12, 8
            s_add_u32 s11, s11, s12
            s_cmp_lt_u32 s3, 4
            s_cselect_b32 s70, s10, s11
            s_lshl_b32 s71, s3, 14
            s_add_u32 s71, s71, {L_W}""")
            wd = []
            def wdma(upto, w):
                while len(wd) < upto:
                    e(f"s_waitcnt vmcnt({w-1})\ns_mov_b32 m0, s71")
                    wd.append(e.mem(f"buffer_load_dwordx4 v{T+6}, {srd(SRD_C)}, s70 offen nt lds"))
                    e("s_add_u32 s70, s70, s69\ns_add_u32 s71, s71, 1024")
        self.mk_srd(SRD_A, P_BK, 32 << 20); self.mk_srd(SRD_B, P_BV, 32 << 20)
        e.L.append("; split")
        if kind == "P": issue(o["pre_p"])
        e(f"s_mov_b32 s{S_SC}, {f2u(SCALE):#x}\ns_mov_b32 s{S_SPIN}, {SPIN}")
        self.selectors(SEL, BLO, BHI, TMP)
        e(f"v_mov_b32 v{AC0}, 0\nv_mov_b32 v{AC0+1}, 0\nds_write_b64 v{AC0}, {vr(AC0,2)} offset:{L_F}")
        self.epoch_tag()
        if kind == "P":
            self.masks(0x03030303, 0x03030303)
            skip = self.only_wave(7)
            e(f"s_waitcnt vmcnt({e.vm})")
            self.post_a(2, 0, U)
            e(f"{skip}:")
            e(f"s_lshl_b32 s10, s3, 10\nv_add_u32 v{T+7}, s10, v{VL}")
            e.wait(xa)
            self.rws256(4, T, VR, AC0, BLO, BHI, PA, w2)
            self.pt("t2")
            e(f"ds_write_b128 v{T+7}, {vr(AC0,4)} offset:{L_T2}\ns_waitcnt lgkmcnt(0)\ns_barrier")
            XT = VR + 48
            skip = self.only_wave(0)
            for i in range(8): e(f"ds_read_b128 {vr(XT+4*i,4)}, v{VL} offset:{L_T2+1024*i}")
            e(f"""v_mov_b32 v{U+1}, s{TAG+1}
            s_lshl_b32 s10, s2, 11
            s_add_u32 s10, s10, {XQ}
            s_mov_b32 s11, 0xffffff00
            s_waitcnt lgkmcnt(0)""")
            self.tree("v_add_f32", XT, 8, 4)
            for r in range(4): e(f"v_bfi_b32 v{XT+8+2*r}, s11, v{XT+r}, v{U+1}\nv_mov_b32 v{XT+9+2*r}, s{TAG}")
            e(f"buffer_store_dwordx4 {vr(XT+8,4)}, v{VL}, {srd(SRD_WS)}, s10 offen sc1 ; c:XQ")
            e(f"buffer_store_dwordx4 {vr(XT+12,4)}, v{VL}, {srd(SRD_WS)}, s10 offen offset:1024 sc1 ; c:XQ")
            e(f"{skip}:")
            self.pt("xq")
            for i in range(o["pe"]):
                if i >= o["we"]: e(f"s_waitcnt vmcnt({o['we']-1})")
                issue(len(tags) + 1)
            skip, other = e.lab("L_skip"), e.lab("L_other")
            top, done = e.lab("L_spin"), e.lab("L_ok")
            e(f"""s_lshr_b32 s10, s3, 1
            s_cmp_lg_u32 s10, 2
            s_cbranch_scc1 {other}
            s_lshl_b32 s10, s13, 13
            s_and_b32 s12, s3, 1
            s_lshl_b32 s11, s12, 10
            s_add_u32 s10, s10, s11
            s_add_u32 s10, s10, {XQ}
            s_add_u32 s11, s10, 4096
            v_mov_b32 v{U+1}, 0xff
            v_lshrrev_b32 v{U+3}, 5, v0
            v_lshlrev_b32 v{U+3}, 8, v{U+3}
            v_and_b32 v{U+4}, 15, v0
            v_lshl_add_u32 v{U+3}, v{U+4}, 4, v{U+3}
            v_bfe_u32 v{U+4}, v0, 4, 1
            v_lshl_add_u32 v{U+3}, v{U+4}, 3, v{U+3}
            s_lshl_b32 s12, s12, 2
            v_add_u32 v{U+3}, s12, v{U+3}""")
            if o["sl_xq0"]: e(f"s_sleep {o['sl_xq0']}")
            e(f"{top}:")
            for i in range(4): e(f"buffer_load_dwordx4 {vr(VR+4*i,4)}, v{VL}, {srd(SRD_WS)}, s{10+(i>>1)} offen offset:{2048*(i&1)} sc1 ; c:LXQ")
            e("s_waitcnt vmcnt(0)")
            self.tag_check(VR, 8, U)
            e(f"v_cmp_ne_u32 vcc, 0, v{U}\ns_cbranch_vccz {done}")
            self.spin_tail(top, done, o["sl_xq"])
            for i in range(8): e(f"v_and_b32 v{VR+2*i}, 0xffffff00, v{VR+2*i}")
            e(f"""v_add_f32 v{VR}, v{VR}, v{VR+4}
            v_add_f32 v{VR+2}, v{VR+2}, v{VR+6}
            v_add_f32 v{VR+8}, v{VR+8}, v{VR+12}
            v_add_f32 v{VR+10}, v{VR+10}, v{VR+14}
            v_add_f32 v{VR}, v{VR}, v{VR+8}
            v_add_f32 v{VR+2}, v{VR+2}, v{VR+10}
            v_cvt_pk_bf16_f32 v{VR}, v{VR}, v{VR+2}
            ds_write_b32 v{U+3}, v{VR} offset:{L_QA}""")
            ne, we = o["ne"], o["we"]
            vm0, L0 = e.vm, len(e.L)
            issue(len(tags) + ne)
            body = e.L[L0:]
            e(f"s_branch {skip}\n{other}:")
            cnt = 0
            for l in body:
                if l.startswith("buffer_load"):
                    if cnt >= we: e(f"s_waitcnt vmcnt({we-1})")
                    cnt += 1
                e(l)
            e(f"""{skip}:
            v_bfe_u32 v{U}, v0, 2, 1
            v_lshlrev_b32 v{U}, 8, v{U}
            v_and_b32 v{U+2}, 0xf0, v{VK}
            v_add_u32 v{U+1}, v{U}, v{U+2}
            v_lshrrev_b32 v{U+2}, 4, v0
            v_lshl_add_u32 v{U}, v{U+2}, 3, v{U}
            s_lshl_b32 s11, s3, 5
            v_add_u32 v{U}, s11, v{U}
            s_waitcnt lgkmcnt(0)
            s_barrier
            ds_read_b128 {vr(QF,4)}, v{U+1} offset:{L_QA}
            s_waitcnt lgkmcnt(0)""")
            self.pt("qa")
            e.wait(w3[3])
            for t in range(4): e(f"v_mfma_f32_16x16x32_bf16 {vr(VR+4*t,4)}, {vr(VR+16+4*t,4)}, {vr(QF,4)}, 0")
            self.quad_sum([VR + 4 * t for t in range(4)])
            e(f"""v_cvt_pk_bf16_f32 v{AC0}, v{VR}, v{VR+4}
            v_cvt_pk_bf16_f32 v{AC0+1}, v{VR+8}, v{VR+12}
            s_mov_b32 exec_lo, 0x00110011
            s_mov_b32 exec_hi, 0x00110011
            ds_write_b64 v{U}, {vr(AC0,2)} offset:{L_QA+512}
            s_mov_b64 exec, -1
            s_waitcnt lgkmcnt(0)
            s_barrier""")
            skip = self.only_wave(7)
            e(f"""ds_read_b128 {vr(AC0,4)}, v{VL} offset:{L_QA+512}
            s_lshl_b32 s10, s2, 8
            s_add_u32 s10, s10, {QAP}
            s_waitcnt lgkmcnt(0)""")
            for r in range(4): e(f"v_min_u32 v{AC0+r}, -2, v{AC0+r}")
            e(f"""s_mov_b32 exec_hi, 0
            buffer_store_dwordx4 {vr(AC0,4)}, v{LS}, {srd(SRD_WS)}, s10 offen sc1 ; c:QAP
            s_mov_b64 exec, -1""")
            if o["stw"] in (1, 2):
                self.pt("st7"); e("s_waitcnt vmcnt(0)"); self.pt("ack7")
            e(f"{skip}:")
            if o["stw"] > 1: e("s_barrier")
            self.pt("st")
            issue(o["w1"])
        else:
            self.masks(0x03030303, 0x03030303)
            e(f"s_lshl_b32 s10, s3, 10\nv_add_u32 v{T+7}, s10, v{VL}")
            e.wait(xb)
            self.rws256(8, T, VR, AC1, BLO, BHI, PA, w1)
            e(f"ds_write_b128 v{T+7}, {vr(AC1,4)} offset:{L_T1}")
            wdma(o["wq1"], 16)
            e("s_waitcnt lgkmcnt(0)\ns_barrier")
            self.pt("t1")
            skip = self.only_wave(0)
            for i in range(8): e(f"ds_read_b128 {vr(VR+4*i,4)}, v{VL} offset:{L_T1+1024*i}")
            e(f"""v_lshrrev_b32 v{U}, 5, v0
            v_lshlrev_b32 v{U}, 14, v{U}
            v_and_b32 v{U+1}, 15, v0
            v_lshl_add_u32 v{U}, v{U+1}, 5, v{U}
            v_bfe_u32 v{U+1}, v0, 4, 1
            v_lshl_add_u32 v{U}, v{U+1}, 4, v{U}
            s_lshl_b32 s10, s4, 15
            s_lshl_b32 s11, s13, 9
            s_add_u32 s10, s10, s11
            s_add_u32 s10, s10, {QBP}
            s_sub_u32 s12, s2, 192
            s_lshr_b32 s13, s12, 3
            s_and_b32 s12, s12, 7
            s_waitcnt lgkmcnt(0)""")
            self.tree("v_add_f32", VR, 8, 4)
            e(f"buffer_store_dwordx4 {vr(VR,4)}, v{U}, {srd(SRD_WS)}, s10 offen sc1\ns_waitcnt vmcnt(0)")
            self.post_b(13, 12, U)
            e(f"{skip}:")
        variants = [pa] if pa == pb else [pa, pb]
        if kind == "Q":
            wdma(16, o["wq1"])
            self.pt("w")
        if len(variants) > 1: e(f"s_cmp_ge_u32 s3, 4\ns_cbranch_scc1 L_{kind}_B")
        tags0, vm0 = list(tags), e.vm
        for vi, nv in enumerate(variants):
            if vi: e(f"L_{kind}_B:")
            n = nv; cur[0] = nv; tags[:] = tags0; e.vm = vm0; seen.clear()
            kf, wearly = (o["kf_p"], o["w1"]) if kind == "P" else (o["kf_q"], o["wq0"])
            if kind == "Q":
                for k in range(wearly):
                    e(f"s_waitcnt vmcnt({wearly-1})"); issue(k + 1)
                slide(0, kf, wearly)
            else:
                slide(0, kf, wearly)
            e(f"""s_cmp_eq_u32 s3, 0
            s_cselect_b32 s13, 0, 0x40000000
            s_lshl_b32 s12, s{S_G}, 7
            s_add_u32 s12, s12, {FB}
            s_add_u32 s12, s12, s13
            v_lshlrev_b32 v{T+2}, 3, v0
            s_mov_b64 exec, 0xffff""")
            k1 = len(tags)
            fl = e.mem(f"buffer_load_dwordx2 {vr(T,2)}, v{T+2}, {srd(SRD_WS)}, s12 offen sc1 ; c:LFB")
            e("s_mov_b64 exec, -1")
            issue(kf + o["wk"])
            slide(kf, k1, o["wk"])
            e(f"""s_lshl_b32 s10, s{S_B}, 14
            s_lshl_b32 s11, s{S_G}, 11
            s_add_u32 s10, s10, s11
            s_add_u32 s10, s10, {QBP}
            s_add_u32 s10, s10, s13
            s_add_u32 s11, s10, 32768
            v_lshlrev_b32 v{TMP}, 5, v0""")
            e.wait(fl)
            top, done = e.lab("L_spin"), e.lab("L_ok")
            e(f"""s_cmp_lg_u32 s3, 0
            s_cbranch_scc1 {done}
            s_mov_b64 exec, 0xffff
            {top}:
            v_cmp_ne_u64 vcc, s[{TAG}:{TAG+1}], {vr(T,2)}
            s_cbranch_vccz {done}
            buffer_load_dwordx2 {vr(T,2)}, v{T+2}, {srd(SRD_WS)}, s12 offen sc1 ; c:LFB
            s_waitcnt vmcnt(0)""")
            self.spin_tail(top, done, o["sleep"])
            e("s_mov_b64 exec, -1")
            self.pt("qf")
            k2 = len(tags)
            QG = PA
            for k in range(4):
                qg = e.mem(f"buffer_load_dwordx4 {vr(QG+4*k,4)}, v{TMP}, {srd(SRD_WS)}, s{10+(k>>1)} offen offset:{16*(k&1)} sc1 ; c:LQB")
            k3 = min(k2, 4 * n)
            slide(k1, k3, o["wk"])
            skip = self.only_wave(0)
            e.wait(qg)
            for r in range(8): e(f"v_add_f32 v{QG+r}, v{QG+r}, v{QG+8+r}")
            for r in range(4): e(f"v_cvt_pk_bf16_f32 v{QG+r}, v{QG+2*r}, v{QG+2*r+1}")
            e(f"""v_mov_b32 v{T}, 0
            v_mov_b32 v{T+1}, 1
            ds_write_b128 v{VL}, {vr(QG,4)} offset:{L_Q}
            s_waitcnt lgkmcnt(0)
            ds_write_b32 v{T}, v{T+1} offset:{L_F}
            {skip}:""")
            kq = max(k3, min(o["kq"], 4 * n))
            slide(k3, kq, o["wk"])
            top, done = e.lab("L_spin"), e.lab("L_ok")
            e(f"""v_mov_b32 v{T}, 0
            s_mov_b32 s{S_SPIN}, {SPIN * 20}
            {top}:
            ds_read_b32 v{T+1}, v{T} offset:{L_F}
            ds_read_b128 {vr(QF,4)}, v{VK} offset:{L_Q}
            s_waitcnt lgkmcnt(0)
            v_cmp_eq_u32 vcc, 0, v{T+1}
            s_cbranch_vccz {done}""")
            self.spin_tail(top, done, 1)
            e(f"v_bfe_u32 v{T+5}, v0, 2, 2\nv_lshlrev_b32 v{T+5}, 5, v{T+5}\ns_lshl_b32 s10, s3, 2\nv_add_u32 v{T+6}, s10, v{T+5}")
            for z in range(0, 18, 4): e(f"v_mov_b32 v{PA+z}, 0\nv_mov_b32 v{PA+z+1}, 0")
            self.pt("q")
            SK = lambda k: D0 + 4 * k
            ahead = kq
            for i in range(n + 1):
                if i < n:
                    for j in range(4):
                        k = 4 * i + j
                        if k >= kq:
                            land(k); issue(k + 1 + (o["wk"] if k < 4 * n - 4 else o["wt"]))
                        elif j == 0 and o["cu"]:
                            issue(len(tags) + o["cu"])
                        e(f"v_mfma_f32_16x16x32_bf16 {vr(SK(k),4)}, {vr(KR+4*k,4)}, {vr(QF,4)}, 0")
                if i > 0:
                    ks = [SK(4 * (i - 1) + j) for j in range(4)]
                    self.quad_sum(ks)
                    self.max3_chain("f32", MX, ks if i == 1 else [MX] + ks)
            issue(4 * n + o["wt"])
            self.pt("k")
            self.swap_red("v_max_f32", MX, TMP, (16, 32))
            e(f"v_mul_f32 v{MX}, s{S_SC}, v{MX}\nds_write_b32 v{T+6}, v{MX} offset:{L_MAX}")
            for k in range(4 * n): e(f"v_fma_f32 v{SK(k)}, v{SK(k)}, s{S_SC}, -v{MX}")
            for k in range(4 * n): e(f"v_exp_f32 v{SK(k)}, v{SK(k)}")
            e(f"v_add_f32 v{LS}, v{SK(0)}, v{SK(1)}")
            for k in range(2, 4 * n): e(f"v_add_f32 v{LS}, v{LS}, v{SK(k)}")
            for k in range(0, 4 * n, 2): e(f"v_cvt_pk_bf16_f32 v{SK(k)}, v{SK(k)}, v{SK(k+1)}")
            self.swap_red("v_add_f32", LS, TMP, (16, 32))
            skip = e.lab("L_skip")
            e(f"""ds_write_b32 v{T+6}, v{LS} offset:{L_L}
            v_mov_b32 v{T}, 0
            v_mov_b32 v{T+1}, 1
            s_mov_b64 exec, 1
            ds_add_rtn_u32 v{T+2}, v{T}, v{T+1} offset:{L_F+4}
            s_waitcnt lgkmcnt(0)
            v_cmp_eq_u32 vcc, 7, v{T+2}
            s_mov_b64 exec, -1
            s_cbranch_vccz {skip}
            v_and_b32 v{T}, 3, v0
            v_lshlrev_b32 v{T}, 5, v{T}
            ds_read_b128 {vr(U,4)}, v{T} offset:{L_MAX}
            ds_read_b128 {vr(U+4,4)}, v{T} offset:{L_MAX+16}
            ds_read_b128 {vr(QF,4)}, v{T} offset:{L_L}
            ds_read_b128 {vr(AC0,4)}, v{T} offset:{L_L+16}
            v_mov_b32 v{T+3}, s{TAG+1}
            s_lshl_b32 s10, s{S_B}, 3
            s_add_u32 s10, s10, s{S_G}
            s_mul_i32 s10, s10, 12
            s_add_u32 s10, s10, s{S_SP}
            s_lshl_b32 s10, s10, 6
            s_add_u32 s10, s10, {BS}
            s_mov_b32 s11, 0xffffff00
            s_waitcnt lgkmcnt(0)""")
            self.max3_chain("f32", T + 2, range(U, U + 8))
            for r in range(8): e(f"v_sub_f32 v{U+r}, v{U+r}, v{T+2}")
            for r in range(8): e(f"v_exp_f32 v{U+r}, v{U+r}")
            e(f"v_mul_f32 v{T+1}, v{U}, v{QF}")
            for r in range(1, 8): e(f"v_fmac_f32 v{T+1}, v{U+r}, v{QF+r}")
            e(f"""v_bfi_b32 v{U+2}, s11, v{T+1}, v{T+3}
            v_bfi_b32 v{U}, s11, v{T+2}, v{T+3}
            v_mov_b32 v{U+1}, s{TAG}
            v_mov_b32 v{U+3}, s{TAG}
            s_mov_b64 exec, 15
            buffer_store_dwordx4 {vr(U,4)}, v{VL}, {srd(SRD_WS)}, s10 offen sc1 ; c:BST
            s_mov_b64 exec, -1
            {skip}:""")
            self.pt("p")
            for i in range(n):
                for j in range(4):
                    k = 4 * i + j; pk = SK(k & ~1); p = PA + 2 + 4 * j
                    sa, sb = (SEL + 2, SEL + 3) if k & 1 else (SEL, SEL + 1)
                    e(f"v_perm_b32 v{p}, v{pk}, v{pk}, v{sa}\nv_perm_b32 v{p+1}, v{pk}, v{pk}, v{sb}")
                if i == n - 1:
                    top, done = e.lab("L_spin"), e.lab("L_ok")
                    e(f"""v_mov_b32 v{T}, 0
                    v_lshrrev_b32 v{T+1}, 4, v0
                    v_lshlrev_b32 v{T+1}, 5, v{T+1}
                    s_lshl_b32 s10, s3, 2
                    v_add_u32 v{T+2}, s10, v{T+1}
                    {top}:
                    ds_read_b32 v{T+3}, v{T} offset:{L_F+4}
                    ds_read_b128 {vr(U,4)}, v{T+1} offset:{L_MAX}
                    ds_read_b128 {vr(U+4,4)}, v{T+1} offset:{L_MAX+16}
                    ds_read_b32 v{LS}, v{T+2} offset:{L_MAX}
                    s_waitcnt lgkmcnt(0)
                    v_cmp_ne_u32 vcc, 8, v{T+3}
                    s_cbranch_vccz {done}""")
                    self.spin_tail(top, done, 1)
                    self.max3_chain("f32", MX, range(U, U + 8))
                    e(f"v_sub_f32 v{LS}, v{LS}, v{MX}\nv_exp_f32 v{LS}, v{LS}")
                    e(f"""s_lshl_b32 s10, s3, 11
                    v_lshl_add_u32 v{T}, v0, 5, s10
                    s_lshl_b32 s10, s3, 8
                    v_and_b32 v{T+2}, 31, v0
                    v_lshl_add_u32 v{T+1}, v{T+2}, 3, s10
                    v_lshlrev_b32 v{T+2}, 2, v0
                    s_lshl_b32 s10, s{S_G}, 2
                    s_lshr_b32 s11, s3, 1
                    s_add_u32 s10, s10, s11
                    s_lshl_b32 s10, s10, 15
                    s_mul_i32 s11, s{S_B}, 24
                    s_add_u32 s11, s11, s{S_SP}
                    s_add_u32 s11, s11, s{S_SP}
                    s_and_b32 s12, s3, 1
                    s_add_u32 s11, s11, s12
                    s_lshl_b32 s11, s11, 7
                    s_add_u32 s10, s10, s11
                    s_add_u32 s10, s10, {MB}""")
                for j in range(4):
                    k = 4 * i + j; p = PA + 2 + 4 * j
                    land(4 * n + k)
                    issue(4 * n + k + 1 + o["wv"])
                    e(f"v_mfma_f32_16x16x32_bf16 {vr(AC0,4)}, {vr(p,4)}, {vr(VR+4*k,4)}, {vr(AC0,4) if k else 0}")
                    e(f"v_mfma_f32_16x16x32_bf16 {vr(AC1,4)}, {vr(p-2,4)}, {vr(VR+4*k,4)}, {vr(AC1,4) if k else 0}")
            self.pt("v")
            for r in range(8): e(f"v_mul_f32 v{AC0+r}, v{AC0+r}, v{LS}")
            e(f"""ds_write_b128 v{T}, {vr(AC0,4)} offset:{L_RED}
            ds_write_b128 v{T}, {vr(AC1,4)} offset:{L_RED+16}
            s_waitcnt lgkmcnt(0)
            s_barrier""")
            for i in range(8): e(f"ds_read_b64 {vr(KR+2*i,2)}, v{T+1} offset:{L_RED+2048*i}")
            for i in range(0, 8, 2):
                e(f"s_waitcnt lgkmcnt({6-i})\nv_add_f32 v{KR+2*i}, v{KR+2*i}, v{KR+2*i+2}\nv_add_f32 v{KR+2*i+1}, v{KR+2*i+1}, v{KR+2*i+3}")
                if i == 2: e(f"v_add_f32 v{KR}, v{KR}, v{KR+4}\nv_add_f32 v{KR+1}, v{KR+1}, v{KR+5}")
                if i == 4: e(f"v_add_f32 v{KR}, v{KR}, v{KR+8}\nv_add_f32 v{KR+1}, v{KR+1}, v{KR+9}")
            e(f"""v_add_f32 v{KR}, v{KR}, v{KR+12}
            v_add_f32 v{KR+1}, v{KR+1}, v{KR+13}
            v_cvt_pk_bf16_f32 v{KR}, v{KR}, v{KR+1}
            v_min_u32 v{KR}, -2, v{KR}
            s_mov_b32 exec_hi, 0
            buffer_store_dword v{KR}, v{T+2}, {srd(SRD_WS)}, s10 offen sc1 ; c:MB1""")
            self.pt("end")
            if kind == "Q": e("s_mov_b64 exec, -1\ns_mov_b32 s4, s68\ns_cmp_lt_u32 s3, 4\ns_cbranch_scc1 L_ATAIL")
            self.stamp_out(100)
            e("s_endpgm")

    X_MAX, X_P, X_L, X_CNT = 0, 2048, 20480, 24576

    def row_addr(self, dst, t):
        self.e(f"""v_and_b32 v{t}, 3, v0
        v_lshlrev_b32 v{t}, 2, v{t}
        v_bfe_u32 v{t+1}, v0, 2, 2
        v_or_b32 v{t}, v{t}, v{t+1}
        v_lshrrev_b32 v{t+1}, 5, v0
        v_xor_b32 v{t}, v{t}, v{t+1}
        v_lshlrev_b32 v{t}, 4, v{t}
        v_and_b32 v{t+1}, 31, v0
        v_lshl_add_u32 v{dst}, v{t+1}, 10, v{t}""")

    X_AL = 22528

    def qk(self, rnd, S, FR, A, TA, creg):
        e = self.e
        seq = [(i, 2 * qp + q) for qp in range(2) for i in range(8) for q in range(2)]
        ks = lambda o: seq[o][0] + 8 * seq[o][1]
        qreg = lambda o: FR + 4 * o if o < 4 else creg(ks(o - 4))
        dst = qreg if rnd == 0 else (lambda o: FR + 16 + 4 * (o & 3))
        tg = {}
        e.ds_reset()
        def rd(o):
            if o & 1 == 0: e(f"v_xor_b32 v{TA+((o>>1)&1)}, {seq[o][0] << 5}, v{A}")
            tg[o] = e.ds(f"ds_read_b128 {vr(dst(o),4)}, v{TA+((o>>1)&1)} offset:{256*seq[o][1]}")
        for o in range(3): rd(o)
        for o in range(32):
            if o + 3 < 32: rd(o + 3)
            e.dswait(tg[o])
            c = creg(ks(o)) if rnd == 0 else dst(o)
            e(f"v_mfma_f32_32x32x16_bf16 {vr(S,16)}, {vr(c,4)}, {vr(qreg(o),4)}, {vr(S,16) if o else 0}")
            if rnd == 0 and o == 16: e("s_barrier")

    def stat_addr(self, d, t):
        self.e(f"""v_and_b32 v{d}, 15, v0
        v_lshlrev_b32 v{d}, 5, v{d}
        v_bfe_u32 v{t}, v0, 4, 1
        v_lshl_add_u32 v{d}, v{t}, 10, v{d}
        v_add_u32 v{d}, {X}, v{d}""")

    def softmax(self, rnd, S, P, M, LS, T, lw):
        e = self.e
        self.max3_chain("f32", T, range(S, S + 16))
        self.swap_red("v_max_f32", T, T + 1, (32,))
        e(f"""ds_write_b32 v{T+3}, v{T} offset:{self.X_MAX+16*rnd}
        s_waitcnt lgkmcnt(0)
        s_barrier
        ds_read_b128 {vr(P,4)}, v{T+2} offset:{self.X_MAX+16*rnd}""")
        if rnd == 0:
            e(f"""v_mov_b32 v{T}, {X+self.X_CNT}
            v_mov_b32 v{T+1}, 0
            ds_write2_b32 v{T}, v{T+1}, v{T+1} offset0:0 offset1:16
            ds_write2_b32 v{T}, v{T+1}, v{T+1} offset0:32 offset1:48""")
        e(f"""s_lshl_b32 s10, s{lw}, 11
        s_add_u32 s10, s10, {X+self.X_P+8192*rnd}
        v_lshl_add_u32 v{T+1}, v0, 4, s10
        s_waitcnt lgkmcnt(0)""")
        if rnd == 0:
            self.max3_chain("f32", M, range(P, P + 4))
            e(f"v_mul_f32 v{M}, s{S_SC}, v{M}")
        else:
            self.max3_chain("f32", T, range(P, P + 4))
            e(f"""v_mul_f32 v{T}, s{S_SC}, v{T}
            v_max_f32 v{T}, v{T}, v{M}
            v_sub_f32 v{M}, v{M}, v{T}
            v_exp_f32 v{P}, v{M}
            v_mov_b32 v{M}, v{T}
            v_mul_f32 v{LS}, v{LS}, v{P}""")
        for r in range(16): e(f"v_fma_f32 v{S+r}, v{S+r}, s{S_SC}, -v{M}")
        for r in range(16): e(f"v_exp_f32 v{S+r}, v{S+r}")
        for r in range(8): e(f"v_cvt_pk_bf16_f32 v{P+r}, v{S+2*r}, v{S+2*r+1}")
        e(f"ds_write_b128 v{T+1}, {vr(P,4)}\nds_write_b128 v{T+1}, {vr(P+4,4)} offset:1024")
        if rnd == 0:
            e("s_waitcnt lgkmcnt(0)\ns_barrier")
            self.tree("v_add_f32", S, 16, 1)
            e(f"v_mov_b32 v{LS}, v{S}")
        else:
            self.tree("v_add_f32", S, 16, 1)
            e(f"v_add_f32 v{S}, v{S}, v{LS}")
            self.swap_red("v_add_f32", S, T, (32,))
            e(f"ds_write_b32 v{T+3}, v{S} offset:{self.X_L}\ns_waitcnt lgkmcnt(0)\ns_barrier")

    VL, VW, TMP, SEL, BLO, BHI, T, U, W, G, WUV, AC0, AC1, PA, XR = 1, 2, 3, 4, 8, 9, 10, 16, 32, 96, 160, 224, 228, 232, 244
    A_CW, A_CR, A_MB = 13, 14, 15
    S_LW, S_PART, S_PRIV, S_MBJ = 5, 6, 7, 8

    def vw_addr(self):
        VW, T = self.VW, self.T
        self.e(f"""v_lshrrev_b32 v{VW}, 4, v0
        v_lshlrev_b32 v{VW}, 14, v{VW}
        v_and_b32 v{T+1}, 15, v0
        v_lshl_add_u32 v{VW}, v{T+1}, 4, v{VW}""")

    def tail_setup(self):
        VL, T, A_CW, A_CR, A_MB = self.VL, self.T, self.A_CW, self.A_CR, self.A_MB
        self.e(f"""v_lshlrev_b32 v{VL}, 4, v0
        s_lshl_b32 s{self.S_PRIV}, s3, 11
        s_lshl_b32 s{self.S_MBJ}, s4, 14
        s_add_u32 s{self.S_MBJ}, s{self.S_MBJ}, {MB}
        v_lshl_add_u32 v{A_CW}, v0, 2, s{self.S_PRIV}
        v_bfe_u32 v{A_CR}, v0, 3, 1
        v_lshlrev_b32 v{A_CR}, 7, v{A_CR}
        v_lshrrev_b32 v{T+1}, 4, v0
        v_lshl_add_u32 v{A_CR}, v{T+1}, 5, v{A_CR}
        v_add_u32 v{A_CR}, s{self.S_PRIV}, v{A_CR}
        v_lshrrev_b32 v{A_MB}, 5, v0
        v_lshlrev_b32 v{A_MB}, 17, v{A_MB}
        v_bfe_u32 v{T+1}, v0, 3, 1
        v_lshl_add_u32 v{A_MB}, v{T+1}, 14, v{A_MB}
        v_and_b32 v{T+1}, 7, v0
        v_lshl_add_u32 v{A_MB}, v{T+1}, 4, v{A_MB}""")
        self.selectors(self.SEL, self.BLO, self.BHI, self.TMP)

    def core_selectors(self):
        e = self.e
        e(f"v_mov_b32 v{self.TMP}, 0x0c0c0c0c")
        for h, base in enumerate((self.BLO, self.BHI)):
            for j in range(4): e(f"v_cndmask_b32 v{208+4*h+j}, v{self.TMP}, v{base}, s[{MASK0+2*j}:{MASK0+2*j+1}]")

    def wload(self, s, t0=0, t1=16):
        e = self.e
        if "now" in self.x or t0 >= t1: return
        e(f"s_lshl_b32 s10, s4, 16\ns_lshl_b32 s11, s{self.S_LW}, 8\ns_add_u32 s10, s10, s11")
        if t0: e(f"s_add_u32 s10, s10, {1024 * t0}")
        for t in range(t0, t1):
            e.mem(f"buffer_load_dwordx4 {vr(self.W+4*t,4)}, v{self.VW}, {srd(s)}, s10 offen offset:{1024*(t&3)} nt")
            if t & 3 == 3: e("s_add_u32 s10, s10, 4096")

    def a_compute(self):
        e = self.e; e.vm = 0
        AC, AT, AQ, M, TA, T = 1, 2, 3, 4, 6, 8
        FR, S, O, PV = 16, 48, 64, 128
        e("L_AC:")
        self.role = "AC"
        self.pt("start")
        if self.o["cpf"]:
            here = e.lab("L_pc")
            e(f"""s_getpc_b64 s[10:11]
            {here}:
            s_sub_u32 s10, s10, {here}-{NAME}_kernel
            s_subb_u32 s11, s11, 0
            s_lshl_b32 s12, s3, 13
            v_lshl_add_u32 v{T+1}, v0, 7, s12""")
            for i in range(self.o["cpf"]):
                e(f"""v_cmp_gt_u32 vcc, L_END-{NAME}_kernel, v{T+1}
                s_and_saveexec_b64 s[12:13], vcc
                s_cbranch_execz L_cpf{i}
                global_load_dword v{254+i}, v{T+1}, s[10:11]
                L_cpf{i}:
                s_mov_b64 exec, -1
                v_add_u32 v{T+1}, 32768, v{T+1}""")
        e.L.append("; split")
        e(f"v_lshlrev_b32 v{T}, 4, v0\ns_waitcnt lgkmcnt(0)")
        self.epoch_load()
        self.mk_srd(SRD_WS, P_WS, WS_USED); self.mk_srd(SRD_D, P_BWO, 4 << 20); self.mk_srd(SRD_E, P_OUT, 4096)
        for r in range(4): e(f"v_mov_b32 v{FR+r}, -1")
        def clears():
            skip = e.lab("L_skip"); two = e.lab("L_two")
            e(f"""s_and_b32 s10, s4, 62
            s_lshl_b32 s10, s10, 14
            s_and_b32 s11, s4, 1
            s_mul_i32 s11, s11, 3072
            s_add_u32 s10, s10, s11
            s_add_u32 s10, s10, {MB}
            s_cmp_eq_u32 s3, 0
            s_cbranch_scc1 {two}
            s_cmp_eq_u32 s3, 1
            s_cbranch_scc1 {skip}
            s_cmp_ge_u32 s4, 32
            s_cbranch_scc1 {skip}
            s_lshl_b32 s10, s4, 14
            s_lshl_b32 s11, s3, 12
            s_add_u32 s10, s10, s11
            s_add_u32 s10, s10, {MB}
            buffer_store_dwordx4 {vr(FR,4)}, v{T}, {srd(SRD_WS)}, s10 offen offset:3072 sc1 ; c:CLR
            {two}:""")
            for i in range(3): e(f"buffer_store_dwordx4 {vr(FR,4)}, v{T}, {srd(SRD_WS)}, s10 offen offset:{1024*i} sc1 ; c:CLR")
            e(f"{skip}:")
        cat = self.o["clr_at"]
        if cat < 0: clears()
        e(f"s_mov_b32 s{S_SC}, {f2u(SCALE):#x}\ns_mov_b32 s{S_SPIN}, {SPIN}")
        self.row_addr(AC, T + 1)
        e(f"""v_add_u32 v{AQ}, {X}, v{AC}
        s_lshl_b32 s10, s3, 15
        v_add_u32 v{AC}, s10, v{AC}
        v_lshrrev_b32 v{T+2}, 5, v0
        v_bfe_u32 v{T+1}, v0, 2, 2
        v_lshl_add_u32 v{T+3}, v{T+2}, 2, v{T+1}
        v_lshlrev_b32 v{AT}, 10, v{T+3}
        v_bfe_u32 v{T+3}, v0, 4, 1
        v_lshlrev_b32 v{T+3}, 1, v{T+3}
        v_bfe_u32 v{T+4}, v0, 1, 1
        v_or_b32 v{T+3}, v{T+3}, v{T+4}
        v_xor_b32 v{T+3}, v{T+3}, v{T+2}
        v_lshl_add_u32 v{T+3}, v{T+1}, 2, v{T+3}
        v_lshl_add_u32 v{AT}, v{T+3}, 4, v{AT}
        v_and_b32 v{T+3}, 1, v0
        v_lshl_add_u32 v{AT}, v{T+3}, 3, v{AT}
        s_lshl_b32 s10, s3, 8
        v_add_u32 v{AT}, s10, v{AT}""")
        self.epoch_tag()
        def tr_addr():
            for k in range(8):
                e(f"v_xor_b32 v{S+k}, {(2*k) << 4}, v{AT}")
                if k & 1: e(f"v_add_u32 v{S+k}, 8192, v{S+k}")
        def tr_step():
            for k in range(8): e(f"v_add_u32 v{S+k}, 65536, v{S+k}")
        def tr_ct(u, ct):
            for hh in range(2):
                last = e.ds(f"ds_read_b64_tr_b16 {vr(PV+16*(u&7)+4*ct+2*hh,2)}, v{S+2*ct+hh} offset:{32768*((u>>1)&1)+16384*(u&1)}")
            return last
        tr_addr()
        e(f"""s_and_b32 s9, s4, 7
        s_lshl_b32 s9, s9, 11
        s_add_u32 s9, s9, {FA}
        v_lshlrev_b32 v{FR+10}, 3, v0""")
        def qc_load():
            for i in range(3): e(f"buffer_load_dwordx2 {vr(FR+4+2*i,2)}, v{FR+10}, {srd(SRD_WS)}, s9 offen offset:{512*i} sc1 ; c:LQC")
        def q_load():
            for i in range(8): e(f"buffer_load_dwordx4 {vr(O+4*i,4)}, v{T}, {srd(SRD_WS)}, s{70+(i>>2)} offen offset:{1024*(i&3)} sc1 ; c:LQA")
        e(f"""s_lshr_b32 s70, s4, 5
        s_lshl_b32 s70, s70, 15
        s_lshl_b32 s71, s3, 13
        s_add_u32 s70, s70, s71
        s_add_u32 s70, s70, {QAP}
        s_add_u32 s71, s70, 4096""")
        qat = self.o["qat"]
        def flags_then_q():
            top, done = e.lab("L_spin"), e.lab("L_ok")
            e(f"""{top}:
            s_waitcnt vmcnt(0)
            v_cmp_ne_u64 vcc, s[{TAG}:{TAG+1}], {vr(FR+4,2)}
            v_cmp_ne_u64 s[12:13], s[{TAG}:{TAG+1}], {vr(FR+6,2)}
            s_or_b64 vcc, vcc, s[12:13]
        v_cmp_ne_u64 s[12:13], s[{TAG}:{TAG+1}], {vr(FR+8,2)}
        s_or_b64 vcc, vcc, s[12:13]
            s_cbranch_vccz {done}""")
            qc_load()
            self.spin_tail(top, done)
            self.pt("qc")
            q_load()
        for t in range(4):
            if t == cat + 2: e("s_waitcnt vmcnt(0)")
            e("s_barrier")
            self.pt(f"t{t}")
            if t == cat: clears()
            if t == cat + 2:
                skip = self.only_wave(0)
                e("s_lshr_b32 s12, s4, 3\ns_and_b32 s13, s4, 7\ns_add_u32 s13, s13, 8")
                self.post_b(12, 13, FR)
                self.post_a(4, 1024, FR + 12)
                e(f"{skip}:")
            if t == self.o["fat"]: qc_load()
            if t == qat: flags_then_q()
            if t == 2: tr_step()
            e.ds_reset()
            for u in (2 * t, 2 * t + 1):
                for ct in range(4): tr_ct(u, ct)
            e("s_waitcnt lgkmcnt(0)")
        e("s_barrier")
        self.pt("half")
        if qat == 4: flags_then_q()
        e(f"""s_lshl_b32 s12, s3, 13
        s_add_u32 s12, s12, {X}
        s_and_b32 s13, s3, 1
        s_lshl_b32 s13, s13, 5
        v_xor_b32 v{T+1}, s13, v{T}
        v_add_u32 v{T+1}, s12, v{T+1}""")
        top, done = e.lab("L_spin"), e.lab("L_ok")
        e(f"{top}:\ns_waitcnt vmcnt(0)")
        self.max3_chain("u32", T + 2, range(O, O + 16)); self.max3_chain("u32", T + 3, range(O + 16, O + 32))
        e(f"v_max_u32 v{T+2}, v{T+2}, v{T+3}\nv_cmp_eq_u32 vcc, -1, v{T+2}\ns_cbranch_vccz {done}")
        self.pt("qr")
        q_load()
        self.spin_tail(top, done)
        self.pt("qd")
        for i in range(8):
            sw = ((i & 3) << 2) | (i >> 2)
            e(f"v_xor_b32 v{TA+(i&1)}, {sw << 4}, v{T+1}\nds_write_b128 v{TA+(i&1)}, {vr(O+4*i,4)} offset:{1024*i}")
        e("s_waitcnt lgkmcnt(0)\ns_barrier")
        self.pt("b1")
        e(f"v_add_u32 v{T}, {X+self.X_P}, v{T}")
        self.stat_addr(T + 3, T + 1)
        e(f"""s_lshl_b32 s10, s3, 7
        s_add_u32 s10, s10, {X+self.X_AL}
        v_and_b32 v{T+1}, 31, v0
        v_lshl_add_u32 v{AQ}, v{T+1}, 2, s10
        v_lshrrev_b32 v{T+1}, 5, v0
        v_lshl_add_u32 v{AC}, v{T+1}, 4, s10""")
        tr_addr()
        def pv(rnd):
            e.ds_reset()
            pt_ = [e.ds(f"ds_read_b128 {vr(FR+4*u,4)}, v{T} offset:{8192*rnd+1024*u}") for u in range(8)]
            for u in range(8):
                e.dswait(pt_[u])
                for ct in range(4):
                    e(f"v_mfma_f32_32x32x16_bf16 {vr(O+16*ct,16)}, {vr(FR+4*u,4)}, {vr(PV+16*u+4*ct,4)}, {vr(O+16*ct,16) if u or rnd else 0}")
        e("s_barrier\ns_barrier\ns_barrier")
        self.pt("bp0")
        pv(0)
        e("s_barrier")
        self.pt("bd")
        e.ds_reset()
        for u in range(8):
            if u == 4: tr_step()
            for ct in range(4): tr_ct(u, ct)
        e(f"""s_waitcnt lgkmcnt(0)
        s_barrier
        ds_read_b128 {vr(FR,4)}, v{T+3} offset:{self.X_MAX}
        ds_read_b128 {vr(FR+4,4)}, v{T+3} offset:{self.X_MAX+16}
        s_waitcnt lgkmcnt(0)""")
        self.max3_chain("f32", T + 1, range(FR, FR + 4))
        self.max3_chain("f32", M, [T + 1] + list(range(FR + 4, FR + 8)))
        e(f"""v_mul_f32 v{T+1}, s{S_SC}, v{T+1}
        v_mul_f32 v{M}, s{S_SC}, v{M}
        v_sub_f32 v{T+1}, v{T+1}, v{M}
        v_exp_f32 v{T+1}, v{T+1}
        ds_write_b32 v{AQ}, v{T+1}""")
        for q in range(4): e(f"ds_read_b128 {vr(S+4*q,4)}, v{AC} offset:{32*q}")
        e("s_waitcnt lgkmcnt(0)")
        for ct in range(4):
            for r in range(16): e(f"v_mul_f32 v{O+16*ct+r}, v{O+16*ct+r}, v{S+r}")
        e("s_barrier")
        self.pt("bp")
        pv(1)
        self.pt("pv")
        e(f"""v_lshrrev_b32 v{T}, 5, v0
        v_lshlrev_b32 v{T}, 18, v{T}
        v_bfe_u32 v{T+1}, v0, 4, 1
        v_lshl_add_u32 v{T}, v{T+1}, 16, v{T}
        v_and_b32 v{T+1}, 15, v0
        v_lshl_add_u32 v{T}, v{T+1}, 4, v{T}
        s_lshl_b32 s10, s4, 10
        s_lshl_b32 s11, s3, 8
        s_add_u32 s10, s10, s11
        s_add_u32 s10, s10, {AP}""")
        for r in range(16):
            d = FR + 2 * r
            e(f"v_cvt_pk_bf16_f32 v{d}, v{O+r}, v{O+16+r}\nv_cvt_pk_bf16_f32 v{d+1}, v{O+32+r}, v{O+48+r}")
            if r >= 3 and r & 1:
                k = FR + 2 * (r - 3)
                e(f"v_permlane16_swap_b32 v{k}, v{k+2}\nv_permlane16_swap_b32 v{k+1}, v{k+3}")
                e(f"buffer_store_dwordx4 {vr(k,4)}, v{T}, {srd(SRD_WS)}, s10 offen sc1 ; c:AP")
                e(f"s_add_u32 s10, s10, {65536 * (6 if (r - 3) & 2 else 2)}")
        k = FR + 28
        e(f"v_permlane16_swap_b32 v{k}, v{k+2}\nv_permlane16_swap_b32 v{k+1}, v{k+3}")
        e(f"buffer_store_dwordx4 {vr(k,4)}, v{T}, {srd(SRD_WS)}, s10 offen sc1 ; c:AP")
        skip = self.only_wave(0)
        e(f"""ds_read_b128 {vr(S,4)}, v{T+3} offset:{self.X_L}
        v_lshlrev_b32 v{T+1}, 3, v0
        s_lshl_b32 s10, s4, 8
        s_add_u32 s10, s10, {AST}
        s_waitcnt lgkmcnt(0)""")
        self.tree("v_add_f32", S, 4, 1)
        e(f"""v_mov_b32 v{S+1}, v{S}
        v_mov_b32 v{S}, v{M}
        s_mov_b32 exec_hi, 0
        buffer_store_dwordx2 {vr(S,2)}, v{T+1}, {srd(SRD_WS)}, s10 offen sc1
        s_mov_b64 exec, -1
        {skip}:
        s_mov_b32 s5, s3
        s_mov_b32 s6, 1""")
        skip = e.lab("L_skip")
        e(f"""v_mov_b32 v100, {X+self.X_CNT+64}
        v_mov_b32 v101, 1
        s_mov_b64 exec, 1
        s_waitcnt vmcnt(0)
        ds_add_rtn_u32 v102, v100, v101
        s_waitcnt lgkmcnt(0)
        v_cmp_eq_u32 vcc, 3, v102
        s_mov_b64 exec, -1
        s_cbranch_vccz {skip}""")
        if self.o["wb"]: e("buffer_wbl2 sc1\ns_waitcnt vmcnt(0)")
        self.post_a(4, 1536, 96)
        e(f"{skip}:")
        self.pt("b9")
        self.vw_addr()
        self.tail_setup()
        self.masks(0x03030303, 0x03030303)
        self.core_selectors()
        self.wload(SRD_D)
        self.lds_wait(X + self.X_CNT + 64, 100)
        e(f"""s_mov_b32 s{S_SPIN}, {SPIN * 20}
        v_lshlrev_b32 v{self.A_CW}, 2, v0
        v_subrev_u32 v{self.A_CR}, s{self.S_PRIV}, v{self.A_CR}
        s_cmp_eq_u32 s3, 0
        s_cbranch_scc1 L_BPRE
        v_mov_b32 v100, {X + self.X_CNT + 128}
        s_waitcnt vmcnt(0)""")
        top = e.lab("L_spin")
        XR = self.XR
        e(f"""{top}:
        ds_read_b32 v101, v100
        ds_read_b128 {vr(XR,4)}, v{self.A_CR} offset:1024
        ds_read_b128 {vr(XR+4,4)}, v{self.A_CR} offset:1040
        s_waitcnt lgkmcnt(0)
        v_cmp_ne_u32 vcc, 0, v101
        s_cbranch_vccnz L_CORE2
        s_sub_u32 s{S_SPIN}, s{S_SPIN}, 1
        s_cbranch_scc0 {top}
        s_branch L_CORE2
        L_BPRE:
        s_mov_b32 s{S_SPIN}, {SPIN}
        v_mov_b32 v100, {X + self.X_CNT + 128}
        v_mov_b32 v101, 1""")
        self.b_pre()

    def b_pre(self):
        e = self.e
        T, U, G, A_CW, S_PRIV, S_MBJ = self.T, self.U, 104, self.A_CW, self.S_PRIV, self.S_MBJ
        e(f"""v_bfe_u32 v{T}, v0, 4, 1
        v_mul_u32_u24 v{T}, 6144, v{T}
        v_and_b32 v{T+1}, 15, v0
        v_lshl_add_u32 v{T}, v{T+1}, 6, v{T}
        s_lshr_b32 s10, s4, 3
        s_mul_i32 s10, s10, 768
        s_bfe_u32 s11, s4, 0x20001
        s_lshl_b32 s11, s11, 4
        s_add_u32 s10, s10, s11
        s_add_u32 s10, s10, {BS}
        s_mov_b32 s12, 0x0fff0fff
        s_mov_b32 s13, 0
        v_mov_b32 v{U+5}, 0xff
        s_mov_b64 exec, s[12:13]""")
        top, done = e.lab("L_spin"), e.lab("L_ok")
        e(f"""{top}:
        buffer_load_dwordx4 {vr(U,4)}, v{T}, {srd(SRD_WS)}, s10 offen sc1
        s_waitcnt vmcnt(0)""")
        self.tag_check(U, 2, U + 4)
        e(f"v_cmp_ne_u32 vcc, 0, v{U+4}\ns_cbranch_vccz {done}")
        self.spin_tail(top, done, self.o["sl_bs"])
        e(f"s_mov_b64 exec, -1\nv_and_b32 v{U+1}, 0xffffff00, v{U+2}\nv_and_b32 v{U}, 0xffffff00, v{U}")
        self.pt("bstat")
        e(f"""v_mov_b32 v{U+2}, 0xff800000
        v_cndmask_b32 v{U}, v{U+2}, v{U}, s[12:13]
        v_cndmask_b32 v{U+1}, 0, v{U+1}, s[12:13]
        v_mov_b32 v{U+2}, v{U}""")
        self.row_red("v_max_f32", U + 2, (1, 2, 4, 8))
        e(f"v_sub_f32 v{U}, v{U}, v{U+2}\nv_exp_f32 v{U}, v{U}\nv_mul_f32 v{U+1}, v{U}, v{U+1}")
        self.row_red("v_add_f32", U + 1, (1, 2, 4, 8))
        WA, AC0, XR, BLO, BHI = 160, self.AC0, self.XR, self.BLO, self.BHI
        e(f"""v_rcp_f32 v{U+1}, v{U+1}
        v_mul_f32 v{U}, v{U}, v{U+1}
        v_cvt_pk_bf16_f32 v{U}, v{U}, v{U}
        v_bfe_u32 v{T}, v0, 4, 1
        v_mul_u32_u24 v{T}, 24, v{T}
        v_and_b32 v{T+1}, 15, v0
        v_lshl_add_u32 v{T}, v{T+1}, 1, v{T}
        v_lshrrev_b32 v{T+2}, 4, v0
        v_mul_u32_u24 v{T+2}, 12, v{T+2}
        s_mov_b64 exec, s[12:13]
        ds_write_b16 v{T}, v{U} offset:1536
        s_mov_b64 exec, -1
        ds_read_b32 v{XR}, v{T+2} offset:1536
        ds_read_b32 v{XR+1}, v{T+2} offset:1540
        ds_read_b32 v{XR+2}, v{T+2} offset:1544
        v_lshlrev_b32 v{T}, 7, v{T+2}
        v_lshl_add_u32 v{T}, v{T+1}, 4, v{T}
        s_and_b32 s10, s4, 62
        s_lshl_b32 s10, s10, 14
        s_add_u32 s10, s10, {MB}
        v_lshrrev_b32 v{T+2}, 5, v0
        v_lshlrev_b32 v{T+2}, 7, v{T+2}
        v_and_b32 v{T+1}, 7, v0
        v_lshl_add_u32 v{T+2}, v{T+1}, 4, v{T+2}
        v_bfe_u32 v{T+1}, v0, 4, 1
        v_lshl_add_u32 v{T+2}, v{T+1}, 3, v{T+2}
        s_and_b32 s11, s4, 1
        s_lshl_b32 s11, s11, 3
        s_lshl_b32 s12, 0x00ff00ff, s11
        s_mov_b32 s13, s12
        s_mov_b32 s70, 0x00030003
        s_mov_b32 s71, 0x03000300
        s_waitcnt lgkmcnt(0)""")
        for t in range(6): e(f"v_perm_b32 v{U+t}, v{XR+(t>>1)}, v{XR+(t>>1)}, v{BHI if t & 1 else BLO}")
        for j in range(4):
            for t in range(6): e(f"v_cndmask_b32 v{WA+4*t+j}, 0, v{U+t}, s[70:71]")
            if j < 3: e("s_lshl_b32 s70, s70, 2\ns_lshl_b32 s71, s71, 2")
        def chain(g, t):
            if t == 0: e(f"v_max3_u32 v{T+1}, v{g}, v{g+1}, v{g+2}\nv_max_u32 v{T+1}, v{T+1}, v{g+3}")
            else: e(f"v_max3_u32 v{T+1}, v{T+1}, v{g}, v{g+1}\nv_max3_u32 v{T+1}, v{T+1}, v{g+2}, v{g+3}")
        def use(k, t):
            g = G + 24 * k + 4 * t
            e(f"v_mfma_f32_16x16x32_bf16 {vr(AC0,4)}, {vr(WA+4*t,4)}, {vr(g,4)}, {vr(AC0,4) if t else 0}"); chain(g, t)
        if self.o["gate"] >= 0:
            top, done = e.lab("L_spin"), e.lab("L_ok")
            e(f"{top}:")
            for t in range(6): e(f"buffer_load_dword v{G+t}, v{T}, {srd(SRD_WS)}, s10 offen offset:{256*t} sc1 ; c:LMB")
            e("s_mov_b32 s70, 0")
            for t in range(6):
                e(f"""s_waitcnt vmcnt({5-t})
                v_cmp_eq_u32 vcc, -1, v{G+t}
                s_and_b64 vcc, vcc, s[12:13]
                s_bcnt1_i32_b64 s71, vcc
                s_add_u32 s70, s70, s71""")
            e(f"s_cmp_le_u32 s70, {8 * self.o['gate']}\ns_cbranch_scc1 {done}")
            self.spin_tail(top, done, self.o["sl_bo"])
        self.poll_loop(6, lambda k, t: e(f"buffer_load_dwordx4 {vr(G+24*k+4*t,4)}, v{T}, {srd(SRD_WS)}, s10 offen offset:{256*t} sc1 ; c:LMB"),
                       use, lambda: e(f"v_cmp_eq_u32 vcc, -1, v{T+1}\ns_and_b64 vcc, vcc, s[12:13]"), self.o["ps1"], "or")
        self.pt("bo")
        e(f"""s_mov_b64 exec, s[12:13]
        v_cvt_pk_bf16_f32 v{U}, v{AC0}, v{AC0+1}
        v_cvt_pk_bf16_f32 v{U+1}, v{AC0+2}, v{AC0+3}
        ds_write_b64 v{T+2}, {vr(U,2)} offset:1024
        s_mov_b64 exec, -1
        ds_write_b32 v100, v101
        s_branch L_CORE1""")

    def a_loader(self):
        e = self.e; e.vm = 0
        VL, VW, TMP, SEL, BLO, BHI, T, U, W, G, WUV, AC0, AC1, PA, XR = (self.VL, self.VW, self.TMP, self.SEL, self.BLO,
            self.BHI, self.T, self.U, self.W, self.G, self.WUV, self.AC0, self.AC1, self.PA, self.XR)
        S_LW, S_PART, S_PRIV, S_MBJ = self.S_LW, self.S_PART, self.S_PRIV, self.S_MBJ
        XO, S, FR, AQ, AC, TA, M = 232, 16, 224, 4, 5, 6, 8
        CNT = X + self.X_CNT
        creg = lambda ks: (W + 4 * ks) if ks < 16 else (WUV + 4 * (ks - 16))
        e("L_AL:")
        self.role = "AL"
        self.pt("start")
        e(f"""s_sub_u32 s{S_LW}, s3, 4
        s_and_b32 s10, s3, 1
        s_lshl_b32 s10, s10, 5
        v_lshlrev_b32 v{VL}, 4, v0
        v_xor_b32 v{T}, s10, v{VL}""")
        for i in range(8): e(f"v_xor_b32 v{XO+i}, {(((i & 3) << 2) | (i >> 2)) << 4}, v{T}")
        e(f"""s_lshl_b32 s66, s4, 18
        s_lshl_b32 s67, s{S_LW}, 13
        s_add_u32 s66, s66, s67
        s_waitcnt lgkmcnt(0)""")
        self.mk_srd(SRD_A, P_CKV, 16 << 20)
        dma = []
        def dma_tile(t):
            for r in range(8):
                if r & 3 == 0: e("s_mov_b32 m0, s67")
                last = e.mem(f"buffer_load_dwordx4 v{XO+r}, {srd(SRD_A)}, s66 offen offset:{1024*(r&3)} nt lds")
                if r == 3: e("s_add_u32 s66, s66, 4096\ns_add_u32 s67, s67, 4096")
                if r == 7: e(f"s_add_u32 s66, s66, 28672\ns_add_u32 s67, s67, {28672 if t != 3 else (28672 - 131072) & 0xffffffff:#x}")
            dma.append(last)
        a0 = self.o["a0"]
        dma_tile(0)
        e.L.append("; split")
        for t in range(1, a0): dma_tile(t)
        if self.stamps: self.mk_srd(SRD_WS, P_WS, WS_USED)
        self.row_addr(AC, T)
        e(f"""v_add_u32 v{AQ}, {X}, v{AC}
        s_lshl_b32 s10, s{S_LW}, 15
        v_add_u32 v{AC}, s10, v{AC}
        s_mov_b32 s{S_SC}, {f2u(SCALE):#x}""")
        for t in range(5):
            if t < 4: e.wait(dma[t])
            e("s_barrier")
            self.pt(f"bar{t}")
            while len(dma) < min(8, a0 + t + 1, 4 + t) or (t == 4 and len(dma) < 8): dma_tile(len(dma))
            self.pt(f"iss{t}")
            if t < 4:
                skip = self.only_wave(4 + t)
                for i in range(8):
                    e(f"v_xor_b32 v{TA+(i&1)}, {i << 5}, v{AC}")
                    for q in range(4): e(f"ds_read_b128 {vr(creg(i+8*q),4)}, v{TA+(i&1)} offset:{256*q}")
                    if i & 1: e("s_waitcnt lgkmcnt(4)")
                e(f"s_waitcnt lgkmcnt(0)\n{skip}:")
        self.stat_addr(T + 2, T + 3)
        e(f"s_lshl_b32 s10, s{S_LW}, 2\nv_add_u32 v{T+3}, s10, v{T+2}\ns_barrier")
        self.qk(0, S, FR, AQ, TA, creg)
        self.softmax(0, S, FR + 16, M, TMP, T, S_LW)
        e("s_waitcnt vmcnt(0)")
        self.pt("dma")
        e("s_barrier")
        self.qk(1, S, FR, AC, TA, creg)
        self.softmax(1, S, FR + 16, M, TMP, T, S_LW)
        pv = self.o["pv"]
        if pv:
            npt = self.o["pb"]; assert self.o["pa"] == npt
            self.mk_srd(SRD_B, P_BV, 32 << 20)
            e(f"""s_lshr_b32 s10, s4, 3
            s_lshl_b32 s10, s10, 1
            s_lshr_b32 s11, s{S_LW}, 1
            s_add_u32 s10, s10, s11
            s_lshl_b32 s10, s10, 21
            s_and_b32 s11, s4, 7
            s_mul_i32 s11, s11, {8 * npt}
            s_and_b32 s12, s{S_LW}, 1
            s_lshl_b32 s12, s12, 1
            s_add_u32 s12, s12, {self.o['pvw']}
            s_mul_i32 s12, s12, {npt}
            s_add_u32 s11, s11, s12
            s_add_u32 s11, s11, {npt - pv}
            s_lshl_b32 s11, s11, 12
            s_add_u32 s10, s10, s11
            s_add_u32 s11, s10, {4096 * npt}""")
            if self.o["pvwait"]: self.lds_wait(X + self.X_CNT + 64, T)
            k = 0
            for t in range(pv):
                for sr in (10, 11):
                    for j in range(4):
                        if k >= self.o["pvwin"]: e(f"s_waitcnt vmcnt({self.o['pvwin'] - 1})")
                        e(f"buffer_load_dwordx4 {vr(32 + 4 * k, 4)}, v{VL}, {srd(SRD_B)}, s{sr} offen offset:{1024 * j} nt"); k += 1
                    e(f"s_add_u32 s{sr}, s{sr}, 4096")
            e("s_waitcnt vmcnt(0)")
        self.pt("end")
        self.stamp_out(32)
        e("s_endpgm")

    def a_tail(self):
        e = self.e; e.vm = 0
        VL, VW, TMP, SEL, BLO, BHI, T, U, W, G, AC0, AC1, PA, XR = (self.VL, self.VW, self.TMP, self.SEL, self.BLO,
            self.BHI, self.T, self.U, self.W, self.G, self.AC0, self.AC1, self.PA, self.XR)
        S_LW, S_PART, S_PRIV, S_MBJ = self.S_LW, self.S_PART, self.S_PRIV, self.S_MBJ
        UV, GA, L_W = 96, 160, 32768
        e("L_ATAIL:")
        self.role = "Q"
        e(f"s_mov_b32 s{S_LW}, s3\ns_mov_b32 s{S_PART}, 0\ns_mov_b32 s{S_SPIN}, {SPIN}")
        self.vw_addr()
        self.tail_setup()
        e(f"""s_lshl_b32 s10, s3, 14
        s_add_u32 s10, s10, {L_W}
        v_add_u32 v{T}, s10, v{VL}
        v_add_u32 v{T+1}, 65536, v{T}""")
        e.ds_reset()
        for t in range(16): e.ds(f"ds_read_b128 {vr(UV+4*t,4)}, v{T} offset:{1024*t}")
        for t in range(16): e.ds(f"ds_read_b128 {vr(W+4*t,4)}, v{T+1} offset:{1024*t}")
        e("s_waitcnt lgkmcnt(0)\ns_barrier")
        self.pt('free')
        self.poll_a(1536, U)
        self.pt("apf")
        e.vm = 0
        e(f"""s_lshr_b32 s12, s4, 1
        s_lshl_b32 s10, s12, 3
        s_add_u32 s10, s10, {AST}
        v_lshlrev_b32 v{T}, 8, v0""")
        st = e.mem(f"buffer_load_dwordx2 {vr(U,2)}, v{T}, {srd(SRD_WS)}, s10 offen sc1")
        e(f"""s_lshl_b32 s10, s12, 16
        s_lshl_b32 s11, s{S_LW}, 8
        s_add_u32 s10, s10, s11
        s_add_u32 s10, s10, {AP}""")
        g = []
        for t in range(16):
            g.append(e.mem(f"buffer_load_dwordx4 {vr(GA+4*t,4)}, v{VW}, {srd(SRD_WS)}, s10 offen offset:{1024*(t&3)} sc1 ; c:LAP"))
            if t & 3 == 3: e("s_add_u32 s10, s10, 4096")
        self.masks(0x00030003, 0x03000300)
        e(f"""v_lshl_add_u32 v{T}, v0, 1, s{S_PRIV}
        v_lshrrev_b32 v{T+1}, 4, v0
        v_lshl_add_u32 v{T+1}, v{T+1}, 5, s{S_PRIV}""")
        e.wait(st)
        e(f"v_mov_b32 v{U+2}, v{U}")
        self.row_red("v_max_f32", U + 2, (1, 2, 4, 8)); self.swap_red("v_max_f32", U + 2, TMP, (16,))
        e(f"v_sub_f32 v{U}, v{U}, v{U+2}\nv_exp_f32 v{U}, v{U}\nv_mul_f32 v{U+1}, v{U}, v{U+1}")
        self.row_red("v_add_f32", U + 1, (1, 2, 4, 8)); self.swap_red("v_add_f32", U + 1, TMP, (16,))
        e(f"""v_rcp_f32 v{U+1}, v{U+1}
        v_mul_f32 v{U}, v{U}, v{U+1}
        v_cvt_pk_bf16_f32 v{U}, v{U}, v{U}
        ds_write_b16 v{T}, v{U}
        s_waitcnt lgkmcnt(0)
        ds_read_b128 {vr(XR,4)}, v{T+1}
        ds_read_b128 {vr(XR+4,4)}, v{T+1} offset:16
        v_lshrrev_b32 v{T}, 5, v0
        v_lshlrev_b32 v{T}, 8, v{T}
        v_and_b32 v{T+1}, 15, v0
        v_lshl_add_u32 v{T}, v{T+1}, 1, v{T}
        v_bfe_u32 v{T+1}, v0, 4, 1
        v_lshl_add_u32 v{T}, v{T+1}, 5, v{T}
        v_add_u32 v{T}, s{S_PRIV}, v{T}
        v_bfe_u32 v{T+1}, v0, 3, 1
        v_lshlrev_b32 v{T+1}, 8, v{T+1}
        v_lshrrev_b32 v{T+2}, 4, v0
        v_lshl_add_u32 v{T+1}, v{T+2}, 6, v{T+1}
        v_bfe_u32 v{T+2}, v0, 2, 1
        v_lshl_add_u32 v{T+1}, v{T+2}, 5, v{T+1}
        v_add_u32 v{T+1}, s{S_PRIV}, v{T+1}
        s_waitcnt lgkmcnt(0)""")
        self.rws256(16, XR, GA, AC0, BLO, BHI, PA, g)
        self.pt("lat")
        e(f"""v_cvt_pk_bf16_f32 v{U}, v{AC0}, v{AC0+1}
        v_cvt_pk_bf16_f32 v{U+1}, v{AC0+2}, v{AC0+3}
        ds_write_b16 v{T}, v{U} offset:256
        ds_write_b16_d16_hi v{T}, v{U} offset:320
        ds_write_b16 v{T}, v{U+1} offset:384
        ds_write_b16_d16_hi v{T}, v{U+1} offset:448
        s_waitcnt lgkmcnt(0)
        ds_read_b128 {vr(XR,4)}, v{T+1} offset:256
        ds_read_b128 {vr(XR+4,4)}, v{T+1} offset:272""")
        for z in (0, 1, 4, 5, 8, 9): e(f"v_mov_b32 v{PA+z}, 0")
        e(f"""v_bfe_u32 v{T}, v0, 3, 1
        v_lshlrev_b32 v{T}, 9, v{T}
        v_lshrrev_b32 v{T+1}, 5, v0
        v_lshl_add_u32 v{T}, v{T+1}, 8, v{T}
        v_and_b32 v{T+1}, 7, v0
        v_lshl_add_u32 v{T}, v{T+1}, 5, v{T}
        s_lshl_b32 s10, s{S_LW}, 10
        v_add_u32 v{T}, s10, v{T}
        s_waitcnt lgkmcnt(0)""")
        self.rws128(16, XR, UV, AC0, AC1, SEL, PA)
        RED = 16384
        e(f"""s_mov_b32 exec_lo, 0xff0000ff
        s_mov_b32 exec_hi, 0xff0000ff
        ds_write_b128 v{T}, {vr(AC0,4)} offset:{RED}
        ds_write_b128 v{T}, {vr(AC1,4)} offset:{RED+16}
        s_mov_b64 exec, -1
        v_lshlrev_b32 v{T}, 3, v0""")
        self.masks(0x03030303, 0x03030303)
        self.core_selectors()
        e("s_waitcnt lgkmcnt(0)\ns_barrier")
        for i in range(8): e(f"ds_read_b64 {vr(U+2*i,2)}, v{T} offset:{RED+512*i}")
        e("s_waitcnt lgkmcnt(0)")
        self.tree("v_add_f32", U, 8, 2)
        self.pt("ctx")
        A_CW, A_CR, A_MB = self.A_CW, self.A_CR, self.A_MB
        e(f"""v_cvt_pk_bf16_f32 v{U}, v{U}, v{U+1}
        ds_write_b32 v{A_CW}, v{U} offset:1024
        L_CORE1:
        ds_read_b128 {vr(XR,4)}, v{A_CR} offset:1024
        ds_read_b128 {vr(XR+4,4)}, v{A_CR} offset:1040
        L_CORE2:
        s_lshl_b32 s10, s{S_LW}, 15
        s_lshl_b32 s11, s4, 7
        s_add_u32 s10, s10, s11
        s_lshl_b32 s11, s{S_PART}, 18
        s_add_u32 s10, s10, s11
        s_add_u32 s10, s10, {MB+MB_2}
        s_waitcnt lgkmcnt(0)""")
        self.pt("cx")
        CS = 208
        for t in range(16):
            a = PA + 2 + 4 * (t & 1)
            for j in range(4): e(f"v_perm_b32 v{a+j}, v{XR+(t>>1)}, v{XR+(t>>1)}, v{CS+4*(t&1)+j}")
            e(f"v_mfma_f32_16x16x32_bf16 {vr(AC0,4)}, {vr(a,4)}, {vr(W+4*t,4)}, {vr(AC0,4) if t else 0}")
        e(f"""v_cvt_pk_bf16_f32 v{AC1}, v{AC0}, v{AC0+1}
        v_cvt_pk_bf16_f32 v{AC1+1}, v{AC0+2}, v{AC0+3}
        v_min_u32 v{AC1}, -2, v{AC1}
        v_min_u32 v{AC1+1}, -2, v{AC1+1}
        v_mov_b32 v{AC1+2}, v{AC1}
        v_mov_b32 v{AC1+3}, v{AC1+1}
        v_permlane16_swap_b32 v{AC1}, v{AC1+2}
        v_permlane16_swap_b32 v{AC1+1}, v{AC1+3}
        s_mov_b32 exec_lo, 0xffff
        s_mov_b32 exec_hi, 0xffff
        buffer_store_dwordx4 {vr(AC1,4)}, v{A_MB}, {srd(SRD_WS)}, s10 offen sc1 ; c:MB2
        s_mov_b64 exec, -1""")
        self.pt("core")
        e(f"""s_lshr_b32 s10, s4, 4
        s_cmp_lg_u32 s10, s{S_PART}
        s_cbranch_scc1 L_FINDONE
        s_cmp_lg_u32 s{S_LW}, 0
        s_cbranch_scc1 L_FINDONE
        s_add_u32 s10, s{S_MBJ}, {MB_2}
        s_add_u32 s11, s10, 4096
        v_mov_b32 v{T}, 0x3f803f80
        v_perm_b32 v{PA+2}, v{T}, v{T}, v{SEL}
        v_perm_b32 v{PA+3}, v{T}, v{T}, v{SEL+1}""")
        for z in (0, 1, 4, 5): e(f"v_mov_b32 v{PA+z}, 0")
        def use(k, i):
            g = G + 32 * k + 4 * i
            e(f"v_mfma_f32_16x16x32_bf16 {vr(AC0,4)}, {vr(PA+2,4)}, {vr(g,4)}, {vr(AC0,4) if i else 0}")
            e(f"v_mfma_f32_16x16x32_bf16 {vr(AC1,4)}, {vr(PA,4)}, {vr(g,4)}, {vr(AC1,4) if i else 0}")
            if i == 0: e(f"v_max3_u32 v{T}, v{g}, v{g+1}, v{g+2}\nv_max_u32 v{T}, v{T}, v{g+3}")
            else: e(f"v_max3_u32 v{T}, v{T}, v{g}, v{g+1}\nv_max3_u32 v{T}, v{T}, v{g+2}, v{g+3}")
        self.poll_loop(8, lambda k, i: e(f"buffer_load_dwordx4 {vr(G+32*k+4*i,4)}, v{VL}, {srd(SRD_WS)}, s{10+(i>>2)} offen offset:{1024*(i&3)} sc1 ; c:LMB"),
                       use, lambda: e(f"v_cmp_eq_u32 vcc, -1, v{T}"), self.o["ps2"], "fr")
        self.pt("fp")
        for r in range(8): self.row_red("v_add_f32", AC0 + r, (8,))
        for r in range(4): e(f"v_cvt_pk_bf16_f32 v{U+r}, v{AC0+2*r}, v{AC0+2*r+1}")
        e(f"""s_bfe_u32 s10, s4, 0x10003
        s_lshl_b32 s10, s10, 11
        s_and_b32 s11, s4, 7
        s_lshl_b32 s11, s11, 7
        s_add_u32 s10, s10, s11
        s_lshl_b32 s11, s{S_PART}, 10
        s_add_u32 s10, s10, s11
        s_mov_b64 exec, 0xff
        buffer_store_dwordx4 {vr(U,4)}, v{VL}, {srd(SRD_E)}, s10 offen
        s_cmp_lg_u32 s4, 16
        s_cbranch_scc1 L_FINDONE
        s_mov_b64 exec, 1
        v_mov_b32 v{T}, s{TAG}
        s_mov_b32 s10, {EPOCH}
        buffer_store_dword v{T}, off, {srd(SRD_WS)}, s10
        L_FINDONE:""")
        self.pt("fin")
        self.stamp_out(16)
        e("s_endpgm")

    def build(self):
        e = self.e
        e("""s_cmp_ge_u32 s2, 256
        s_cbranch_scc1 L_END
        s_load_dwordx16 s[16:31], s[0:1], 0
        s_load_dwordx8 s[32:39], s[0:1], 64
        s_load_dwordx4 s[40:43], s[0:1], 96
        v_lshrrev_b32 v1, 6, v0
        v_and_b32 v0, 63, v0
        v_readfirstlane_b32 s3, v1
        s_sub_u32 s4, s2, 128""")
        tests = {"P": "s_cmp_lt_u32 s2, 128\ns_cbranch_scc1 L_P", "Q": "s_cmp_ge_u32 s2, 192\ns_cbranch_scc1 L_Q",
                 "L": "s_cmp_ge_u32 s5, 64\ns_cbranch_scc0 L_AL", "C": "s_cmp_lt_u32 s5, 64\ns_cbranch_scc1 L_AC"}
        order = self.o["order"]
        for r in order[1:]:
            if r == "L": e("s_cmp_ge_u32 s3, 4\ns_cselect_b32 s5, s4, 64")
            if r == "C": e("s_cmp_lt_u32 s3, 4\ns_cselect_b32 s5, s4, 64")
            e(tests[r])
        fn = {"P": lambda: self.bside("P"), "Q": lambda: (self.bside("Q"), self.a_tail()), "L": self.a_loader, "C": self.a_compute}
        marks = {}
        for r in order:
            i0 = len(e.L); fn[r](); marks[r] = (i0, len(e.L))
        if self.o["pack"]:
            heads, bodies = [], []
            for r in order:
                seg = e.L[marks[r][0]:marks[r][1]]
                k = seg.index("; split")
                heads += seg[:k] + [f"s_branch L_{r}_REST"]
                bodies += [f"L_{r}_REST:"] + seg[k + 1:]
            e.L = e.L[:marks[order[0]][0]] + heads + bodies
        e.L = [l for l in e.L if l != "; split"]
        e("L_END:\ns_endpgm")
        if "nobar" in self.x:
            i0 = e.L.index("L_P:"); i1 = e.L.index("L_AC:")
            e.L = e.L[:i0] + [l for l in e.L[i0:i1] if l != "s_barrier"] + e.L[i1:]
        if "nomath" in self.x:
            i0 = e.L.index("L_P:"); i1 = e.L.index("L_AC:")
            e.L = e.L[:i0] + [l for l in e.L[i0:i1] if not l.startswith(("v_mfma", "v_exp", "v_fma", "v_perm_", "v_add_f32", "v_mov_b32_dpp", "v_cvt", "v_max3"))] + e.L[i1:]
        if "noph1" in self.x:
            i0 = e.L.index("L_P:"); i1 = e.L.index("L_AC:")
            e.L = e.L[:i0] + [l for l in e.L[i0:i1] if not (l.startswith("buffer_load") and (srd(SRD_D) in l or srd(SRD_E) in l))] + e.L[i1:]
        for x in self.x:
            if x.startswith("c:"): e.L = [l for l in e.L if not l.endswith("; " + x)]
        for x in self.x:
            if x.startswith("m:"):
                tag, m = x[2:].split("=")
                e.L = [l.replace(" sc1", " " + m.replace("+", " ")) if l.endswith("; c:" + tag) else l for l in e.L]
            if x.startswith("allst="):
                m = x[6:].replace("+", " ")
                e.L = [l.replace(" sc1", " " + m if m else "") if l.startswith("buffer_store") else l for l in e.L]
        if "nost" in self.x:
            e.L = [l for l in e.L if not (l.startswith("buffer_store") and "sc1" in l)]
        if "nosc" in self.x:
            e.L = [l for l in e.L if not (l.startswith("buffer_load") and "sc1" in l)]
        if "noA" in self.x:
            for lab in ("L_AL:", "L_AC:"):
                i = e.L.index(lab); e.L.insert(i + 1, "s_endpgm")
        if "link" in self.x:
            e.L = [l.replace(", v1, s[48:51]", ", v2, s[48:51]") if l.startswith("buffer_load_dwordx4") and "lds" not in l else l for l in e.L]
        if self.o["wb"]: e.L = [l.replace(" sc1", "") if l.endswith("; c:AP") else l for l in e.L]
        body, npad = fix_hazards(e.L)
        out = [HEADER.rstrip(), "; @launch grid=(256,1,1) block=(512,1,1) lds=163840",
               '.amdgcn_target "amdgcn-amd-amdhsa--gfx950"', ".text", f".globl {NAME}_kernel", ".p2align 8",
               f".type {NAME}_kernel,@function", f"{NAME}_kernel:"]
        out += [("" if l.endswith(":") else "    ") + l for l in body]
        out += ['.section .rodata,"a"', ".p2align 6", f".amdhsa_kernel {NAME}_kernel",
                "  .amdhsa_next_free_vgpr 256", "  .amdhsa_next_free_sgpr 102", "  .amdhsa_accum_offset 256",
                "  .amdhsa_group_segment_fixed_size 0", "  .amdhsa_kernarg_size 112", "  .amdhsa_user_sgpr_count 2",
                "  .amdhsa_user_sgpr_kernarg_segment_ptr 1", "  .amdhsa_system_sgpr_workgroup_id_x 1",
                ".end_amdhsa_kernel"]
        return "\n".join(out) + "\n", npad

PTS = {"P": "start,xq,st,qf,q,k,v,end", "Q": "start,fin,w,free,end,core,apf,ctx",
       "AC": "start,fin,qd,b1,b9,core,pv,bo", "AL": "start,bar0,bar3,iss4,dma,x,y,end"}

if __name__ == "__main__":
    ap = argparse.ArgumentParser()
    ap.add_argument("out"); ap.add_argument("--stamps", action="store_true")
    ap.add_argument("--pts", action="append", default=[]); ap.add_argument("--x", default="")
    for k, v in DEFAULTS.items(): ap.add_argument("--" + k, type=int, default=v)
    ap.add_argument("--order", default="LPQC"); DEFAULTS["order"] = 0
    a = ap.parse_args()
    pts = {}
    if a.stamps:
        pts = {k: v.split(",") for k, v in PTS.items()}
        for p in a.pts:
            r, l = p.split(":"); pts[r] = l.split(",")
    s, npad = Gen({k: getattr(a, k) for k in DEFAULTS}, pts, set(a.x.split(","))).build()
    open(a.out, "w").write(s)
    print("wrote", a.out, "lines", s.count("\n"), "pads", npad)
```

```python
import sys, math, struct, argparse
from asmlib import Emit, fix_hazards

NAME = "concat_heads__compressed_kv_cla__gqa_block_cached__decode"
HEADER = open("cdna_kernels/%s.s.ref" % NAME).read().split("; Override launch")[0]

QBP = 0x000000
QAP = 0x020000
AST = 0x040000
BS  = 0x048000
FB  = 0x050000
EPOCH = 0x060000
FA  = 0x080000
MB  = 0x100000
MB_2 = 8192
AP  = 0x200000
XQ  = 0x400000
WS_USED = 0x500000
STAMPS = 0x800000

SCALE = math.log2(math.e) / math.sqrt(128.0)
def f2u(x): return struct.unpack("<I", struct.pack("<f", x))[0]

SRD_WS, SRD_A, SRD_B, SRD_C, SRD_D, SRD_E, SRD_F, SRD_G = 44, 48, 52, 56, 60, 64, 68, 96
P_AX, P_CKV, P_AWQ, P_WUK, P_WUV, P_AWO, P_BX, P_BK, P_BV, P_BWQ, P_BWO, P_OUT, P_DBG, P_WS = range(16, 44, 2)
S_SC, S_SPIN = 15, 14
MASK0 = 72
TAG = 94
ST0 = 16
SPIN = 20000
X = 131072

def srd(n): return f"s[{n}:{n+3}]"
def vr(a, n): return f"v[{a}:{a+n-1}]" if n > 1 else f"v{a}"

DEFAULTS = dict(f1=1, pe=0, gate=-1, ps1=2, ps2=2, clr_at=-1, cpf=1, t1x=2, il=1, pack=0, pa=6, pb=6, qa=4, qat=3, fat=2, uvb=0, pv=0, pvw=4, pvwait=1, pvwin=4, ne=4, we=2, sl_bo=0, kq=12, cu=2, wsb=0, wt1=8, pf1=1, pfwin=6, stw=0, sl_ap=4, sl_xq0=0, sl_xq=2, sl_qa=4, sl_bs=8, np=6, uv0=16, wa=0, wb=0, wc=0, pf=4, pfw=0, pre_q=0, uv1=8, a0=3, t2w=0, wq1=2, kq1=4, sleep=0, pre_p=0, w1=2, kf_p=0, kf_q=12, wq0=8, wk=8, wt=10, wv=8)

class Gen:
    def __init__(self, opt, pts, x):
        self.o = opt; self.alt = pts; self.x = x; self.role = None
        self.stamps = bool(pts)
        self.e = Emit()

    def mk_srd(self, d, p, size):
        self.e(f"s_mov_b32 s{d}, s{p}\ns_mov_b32 s{d+1}, s{p+1}\ns_mov_b32 s{d+2}, {size:#x}\ns_mov_b32 s{d+3}, 0x20000")

    def pt(self, name, role=None):
        sel = self.alt.get(role or self.role)
        if sel and name in sel:
            i = sel.index(name); self.e(f"s_memrealtime s[{80+2*i}:{81+2*i}]" if i < 7 else "s_memrealtime s[100:101]")

    def stamp_out(self, t):
        if not self.stamps: return
        e = self.e
        if "dbg" in self.x:
            skip = e.lab("L_skip")
            e(f"""s_waitcnt lgkmcnt(0)
            s_and_b32 s10, s2, 127
            s_lshl_b32 s10, s10, 3
            s_add_u32 s10, s10, s3
            s_cmp_lg_u32 s10, 0
            s_cbranch_scc1 {skip}
            s_lshr_b32 s10, s2, 7
            s_lshl_b32 s10, s10, 5
            s_mov_b64 exec, 1""")
            for x in self.x:
                if x.startswith("hold"):
                    top = e.lab("L_hold")
                    e(f"""{top}:
                    s_memrealtime s[12:13]
                    s_waitcnt lgkmcnt(0)
                    s_sub_u32 s12, s12, s80
                    s_cmp_lt_u32 s12, {int(x[4:])}
                    s_cbranch_scc1 {top}""")
            self.mk_srd(SRD_A, P_DBG, 256)
            regs = [80, 82, 84, 86, 88, 90, 92, 100]
            for k in range(8):
                e(f"s_sub_u32 s11, s{regs[k]}, {'s80' if k else '0'}\nv_mov_b32 v{t+k}, s11")
            e(f"buffer_store_dwordx4 v[{t}:{t+3}], off, {srd(SRD_A)}, s10\nbuffer_store_dwordx4 v[{t+4}:{t+7}], off, {srd(SRD_A)}, s10 offset:16")
            e(f"{skip}:")
            return
        e("s_waitcnt lgkmcnt(0)\ns_mov_b64 exec, 1")
        e(f"s_lshl_b32 s4, s2, 3\ns_add_u32 s4, s4, s3\ns_lshl_b32 s4, s4, 6\ns_add_u32 s4, s4, {STAMPS}")
        e(f"s_mov_b32 s{SRD_WS+2}, 0x1000000")
        regs = list(range(80, 94)) + [100, 101]
        for i in range(4):
            for k in range(4): e(f"v_mov_b32 v{t+k}, s{regs[4*i+k]}")
            e(f"buffer_store_dwordx4 v[{t}:{t+3}], off, {srd(SRD_WS)}, s4 offset:{16*i}")
            e("s_nop 2")

    def selectors(self, sel, base_lo, base_hi, tmp):
        self.e(f"""v_and_b32 v{tmp}, 1, v0
        v_cmp_eq_u32 vcc, 1, v{tmp}
        v_mov_b32 v{base_lo}, 0x0c0c0100
        v_mov_b32 v{tmp}, 0x01000c0c
        v_cndmask_b32 v{base_lo}, v{base_lo}, v{tmp}, vcc
        v_add_u32 v{base_hi}, 0x0202, v{base_lo}
        v_mov_b32 v{tmp}, 0x03020c0c
        v_cndmask_b32 v{base_hi}, v{base_hi}, v{tmp}, vcc
        v_and_b32 v{tmp}, 2, v0
        v_cmp_eq_u32 vcc, 0, v{tmp}
        v_mov_b32 v{tmp}, 0x0c0c0c0c
        v_cndmask_b32 v{sel}, v{tmp}, v{base_lo}, vcc
        v_cndmask_b32 v{sel+1}, v{base_lo}, v{tmp}, vcc
        v_cndmask_b32 v{sel+2}, v{tmp}, v{base_hi}, vcc
        v_cndmask_b32 v{sel+3}, v{base_hi}, v{tmp}, vcc""")

    def masks(self, lo, hi):
        for j in range(4):
            self.e(f"s_mov_b32 s{MASK0+2*j}, {(lo << (2*j)):#x}\ns_mov_b32 s{MASK0+2*j+1}, {(hi << (2*j)):#x}")

    def rws256(self, nload, x, w, acc, base_lo, base_hi, t0, waits=None):
        e = self.e
        for t in range(nload):
            a = t0 + 2 + 4 * (t & 1)
            e(f"v_perm_b32 v{t0}, v{x+(t>>1)}, v{x+(t>>1)}, v{base_hi if t & 1 else base_lo}")
            for j in range(4): e(f"v_cndmask_b32 v{a+j}, 0, v{t0}, s[{MASK0+2*j}:{MASK0+2*j+1}]")
            if waits: e.wait(waits[t])
            e(f"v_mfma_f32_16x16x32_bf16 {vr(acc,4)}, {vr(a,4)}, {vr(w+4*t,4)}, {vr(acc,4) if t else 0}")

    def rws128(self, nload, x, w, acc0, acc1, sel, pa):
        e = self.e
        for t in range(nload):
            p = pa + 2 + 4 * (t & 1)
            sa, sb = (sel + 2, sel + 3) if t & 1 else (sel, sel + 1)
            e(f"v_perm_b32 v{p}, v{x+(t>>1)}, v{x+(t>>1)}, v{sa}\nv_perm_b32 v{p+1}, v{x+(t>>1)}, v{x+(t>>1)}, v{sb}")
            e(f"v_mfma_f32_16x16x32_bf16 {vr(acc0,4)}, {vr(p,4)}, {vr(w+4*t,4)}, {vr(acc0,4) if t else 0}")
            e(f"v_mfma_f32_16x16x32_bf16 {vr(acc1,4)}, {vr(p-2,4)}, {vr(w+4*t,4)}, {vr(acc1,4) if t else 0}")

    def quad_sum(self, ds):
        for r in range(4):
            for d in ds:
                q = f"quad_perm:[{r},{r},{r},{r}] row_mask:0xf bank_mask:0xf"
                self.e(f"v_mov_b32_dpp v{d}, v{d} {q}" if r == 0 else f"v_add_f32_dpp v{d}, v{d+r}, v{d} {q}")

    def swap_red(self, op, x, t, which):
        for s in which:
            self.e(f"v_mov_b32 v{t}, v{x}\nv_permlane{s}_swap_b32 v{x}, v{t}\n{op} v{x}, v{x}, v{t}")

    def row_red(self, op, x, rots):
        for r in rots:
            self.e(f"{op}_dpp v{x}, v{x}, v{x} row_ror:{r} row_mask:0xf bank_mask:0xf")

    def tree(self, op, base, n, width):
        st = 1
        while st < n:
            for i in range(0, n, 2 * st):
                for r in range(width): self.e(f"{op} v{base+width*i+r}, v{base+width*i+r}, v{base+width*(i+st)+r}")
            st *= 2

    def max3_chain(self, op, dst, regs):
        regs = list(regs)
        self.e(f"v_max3_{op} v{dst}, v{regs[0]}, v{regs[1]}, v{regs[2]}")
        regs = regs[3:]
        while len(regs) >= 2:
            self.e(f"v_max3_{op} v{dst}, v{dst}, v{regs[0]}, v{regs[1]}"); regs = regs[2:]
        if regs: self.e(f"v_max_{op} v{dst}, v{dst}, v{regs[0]}")

    def spin_tail(self, top, done, sleep=0):
        if sleep: self.e(f"s_sleep {sleep}")
        if "nodep" in self.x: self.e(f"{done}:"); return
        self.e(f"s_sub_u32 s{S_SPIN}, s{S_SPIN}, 1\ns_cbranch_scc0 {top}\n{done}:")

    def lds_wait(self, addr, t):
        e = self.e
        top, done = e.lab("L_spin"), e.lab("L_ok")
        e(f"""v_mov_b32 v{t}, {addr}
        s_mov_b32 s{S_SPIN}, {SPIN * 20}
        {top}:
        ds_read_b32 v{t+1}, v{t}
        s_waitcnt lgkmcnt(0)
        v_cmp_ne_u32 vcc, 4, v{t+1}
        s_cbranch_vccz {done}""")
        self.spin_tail(top, done, 2)

    def lds_inc(self, addr, t):
        self.e(f"""v_mov_b32 v{t}, {addr}
        v_mov_b32 v{t+1}, 1
        s_mov_b64 exec, 1
        ds_add_u32 v{t}, v{t+1}
        s_mov_b64 exec, -1""")

    def poll_loop(self, n, load, use, test, sets, name):
        e = self.e
        top, done = e.lab("L_spin"), e.lab("L_ok")
        if sets == 2:
            for i in range(n): load(0, i)
        e(f"{top}:")
        for k in range(sets):
            self.pt(name)
            for i in range(n): load((k + 1) % sets, i)
            for i in range(n):
                e(f"s_waitcnt vmcnt({(sets - 1) * n + n - 1 - i})"); use(k, i)
            test()
            e(f"s_cbranch_vccz {done}")
        self.spin_tail(top, done)

    def only_wave(self, w):
        skip = self.e.lab("L_skip")
        self.e(f"s_cmp_lg_u32 s3, {w}\ns_cbranch_scc1 {skip}")
        return skip

    def epoch_load(self):
        if self.o["wsb"]: self.e(f"s_add_u32 s{P_WS}, s{P_WS}, {self.o['wsb'] << 20:#x}\ns_addc_u32 s{P_WS+1}, s{P_WS+1}, 0")
        self.e(f"s_load_dword s{TAG}, s[{P_WS}:{P_WS+1}], {EPOCH:#x}")

    def epoch_tag(self):
        self.e(f"s_waitcnt lgkmcnt(0)\ns_add_u32 s{TAG}, s{TAG}, 1\ns_xor_b32 s{TAG+1}, s{TAG}, 0x5bd1e995")

    def post_b(self, sg, sslot, t):
        self.e(f"""v_mov_b32 v{t}, s{TAG}
        v_mov_b32 v{t+1}, s{TAG+1}
        s_lshl_b32 s10, s{sg}, 7
        s_lshl_b32 s11, s{sslot}, 3
        s_add_u32 s10, s10, s11
        s_add_u32 s10, s10, {FB}
        s_mov_b64 exec, 1
        buffer_store_dwordx2 {vr(t,2)}, off, {srd(SRD_WS)}, s10 sc1 ; c:FLAG
        s_mov_b64 exec, -1""")

    def post_a(self, sid, off, t):
        self.e(f"""v_lshlrev_b32 v{t+2}, 11, v0
        v_mov_b32 v{t}, s{TAG}
        v_mov_b32 v{t+1}, s{TAG+1}
        s_lshl_b32 s10, s{sid}, 3
        s_add_u32 s10, s10, {FA+off}
        s_mov_b64 exec, 0xff
        buffer_store_dwordx2 {vr(t,2)}, v{t+2}, {srd(SRD_WS)}, s10 offen sc1 ; c:FLAG
        s_mov_b64 exec, -1""")

    def poll_a(self, off, t):
        e = self.e
        top, done = e.lab("L_spin"), e.lab("L_ok")
        e(f"""s_and_b32 s10, s4, 7
        s_lshl_b32 s10, s10, 11
        s_add_u32 s10, s10, {FA+off}
        v_lshlrev_b32 v{t+2}, 3, v0
        {top}:
        buffer_load_dwordx2 {vr(t,2)}, v{t+2}, {srd(SRD_WS)}, s10 offen sc1
        s_waitcnt vmcnt(0)
        v_cmp_ne_u64 vcc, s[{TAG}:{TAG+1}], {vr(t,2)}
        s_cbranch_vccz {done}""")
        self.spin_tail(top, done, self.o["sl_ap"])

    def tag_check(self, g, n, t):
        e = self.e
        for i in range(n):
            e(f"v_xor_b32 v{t+2}, s{TAG+1}, v{g+2*i}\nv_xor_b32 v{g+2*i+1}, s{TAG}, v{g+2*i+1}")
            e(f"v_and_or_b32 v{g+2*i+1}, v{t+2}, v{t+1}, v{g+2*i+1}")
        e(f"v_or_b32 v{t}, v{g+1}, v{g+3}")
        for i in range(2, n, 2): e(f"v_or3_b32 v{t}, v{t}, v{g+2*i+1}, v{g+2*i+3}")

    def bside(self, kind):
        e = self.e; e.vm = 0; o = self.o
        tp = 4 * (o["pa"] + o["pb"])
        pa, pb = (o["pa"], o["pb"]) if kind == "P" else (o["qa"], (128 - 2 * tp) // 4 - o["qa"])
        n = max(pa, pb)
        VK, VL, TMP, SEL, BLO, BHI, QF, AC0, AC1, LS, MX = 1, 2, 3, 4, 8, 9, 10, 14, 18, 22, 23
        T = 24; D0 = 32; KR = 36; VR = 132; PA = 228; U = 246
        L_T1, L_Q, L_MAX, L_L, L_RED, L_T2, L_QA, L_W = 0, 8192, 9216, 9344, 16384, 32768, 40960, 32768
        S_KV, S_VV, S_G, S_B, S_SP = 5, 6, 7, 8, 9
        L_F = 9472
        e(f"L_{kind}:")
        self.role = kind
        if "no" + kind in self.x: e("s_endpgm")
        self.pt("start")
        e(f"""v_and_b32 v{T}, 3, v0
        v_lshrrev_b32 v{TMP}, 4, v0
        v_lshlrev_b32 v{T+1}, 6, v{TMP}
        v_lshl_add_u32 v{T+1}, v{T}, 4, v{T+1}
        v_bfe_u32 v{T}, v0, 2, 2
        v_lshl_add_u32 v{VK}, v{T}, 8, v{T+1}
        v_lshlrev_b32 v{VL}, 4, v0""")
        if kind == "P":
            e(f"""v_lshl_add_u32 v{T+6}, v{T}, 15, v{T+1}
            v_and_b32 v{T+4}, 15, v0
            v_lshlrev_b32 v{T+4}, 4, v{T+4}
            v_lshl_add_u32 v{T+4}, v{TMP}, 15, v{T+4}
            v_bfe_u32 v{T+5}, v0, 3, 1
            v_lshlrev_b32 v{T+5}, 10, v{T+5}
            v_lshl_add_u32 v{T+5}, v{TMP}, 3, v{T+5}
            s_lshr_b32 s10, s2, 3
            s_and_b32 s{S_SP}, s2, 7
            s_mul_i32 s11, s{S_SP}, {tp}
            s_lshr_b32 s13, s2, 2
            s_and_b32 s4, s2, 3""")
        else:
            e(f"""s_sub_u32 s4, s2, 192
            s_lshr_b32 s10, s4, 2
            s_and_b32 s4, s4, 3
            s_add_u32 s{S_SP}, s4, 8
            s_mul_i32 s11, s4, {4*(pa+pb)}
            s_add_u32 s11, s11, {8*tp}
            v_and_b32 v{T+4}, 15, v0
            v_lshlrev_b32 v{T+4}, 4, v{T+4}
            v_lshl_add_u32 v{T+4}, v{TMP}, 16, v{T+4}
            v_bfe_u32 v{T+5}, v0, 3, 1
            v_lshlrev_b32 v{T+5}, 10, v{T+5}
            v_lshl_add_u32 v{T+5}, v{TMP}, 4, v{T+5}
            s_sub_u32 s13, s2, 192
            s_and_b32 s4, s13, 1
            s_lshr_b32 s13, s13, 1
            s_xor_b32 s13, s13, {o["t1x"]}""")
        il = o["il"]
        il2 = (il >> 1) & (1 if kind == "P" else 2) and pa == pb
        if not il:
            e(f"""s_mul_i32 s12, s3, {pb}
            s_min_u32 s{S_G}, s3, 4
            s_mul_i32 s{S_G}, s{S_G}, {pa-pb}
            s_add_u32 s12, s12, s{S_G}
            s_add_u32 s11, s11, s12
            s_lshl_b32 s11, s11, 12""")
        else:
            if il2:
                e(f"s_lshl_b32 s11, s{S_SP}, 13")
                if kind == "Q": e(f"s_add_u32 s11, s11, {8 * tp * 4096 - 8 * 8192}")
            else: e("s_lshl_b32 s11, s11, 12")
            e("s_lshl_b32 s12, s3, 10\ns_add_u32 s11, s11, s12")
        e(f"""s_and_b32 s{S_G}, s10, 7
        s_lshr_b32 s{S_B}, s10, 3
        s_lshl_b32 s10, s10, 21
        s_add_u32 s{S_KV}, s10, s11
        s_mov_b32 s{S_VV}, s{S_KV}""")
        sh = 7 if kind == "P" else 8
        e(f"""s_lshl_b32 s10, s4, {sh}
        s_lshl_b32 s11, s3, {sh-3}
        s_add_u32 s10, s10, s11
        s_lshl_b32 s11, s10, 1
        s_lshl_b32 s10, s10, 13
        s_lshl_b32 s12, s13, 8
        s_add_u32 s10, s10, s12""")
        e("s_waitcnt lgkmcnt(0)")
        self.epoch_load()
        tags = []; cur = [min(pa, pb)]
        def issue(upto):
            n = cur[0]
            while len(tags) < min(upto, 8 * n):
                x = len(tags); k = x % (4 * n); j = k & 3
                r, v, sd, so = (KR, VK, SRD_A, S_KV) if x < 4 * n else (VR, VL, SRD_B, S_VV)
                tags.append(e.mem(f"buffer_load_dwordx4 {vr(r+4*k,4)}, v{v}, {srd(sd)}, s{so} offen offset:{0 if il else 1024*j} nt"))
                if not il:
                    if j == 3: e(f"s_add_u32 s{so}, s{so}, 4096")
                else:
                    nm = 4 * min(pa, pb)
                    step = 8192 if k < nm - 1 else 4096
                    if k == nm - 1: step = 8192 - (4096 if pb > pa else 0)
                    if il2: step = 65536 if kind == "P" else 32768
                    if k < 4 * n - 1: e(f"s_add_u32 s{so}, s{so}, {step}")
        seen = set()
        def land(k):
            e.wait(tags[k])
            if k not in seen: seen.add(k); self.pt(f"l{k}")
        def slide(k0, k1, w):
            for k in range(k0, k1):
                land(k); issue(k + 1 + w)
        self.mk_srd(SRD_WS, P_WS, WS_USED)
        if kind == "P":
            self.mk_srd(SRD_C, P_AX, 2048); self.mk_srd(SRD_D, P_AWQ, 4 << 20)
            e(f"""v_lshlrev_b32 v{LS}, 15, v{TMP}
            v_and_b32 v{U+5}, 15, v0
            v_lshl_add_u32 v{LS}, v{U+5}, 4, v{LS}""")
            skip = self.only_wave(7)
            e(f"""s_lshl_b32 s12, s2, 8
            s_add_u32 s12, s12, {QAP}""")
            for r in range(4): e(f"v_mov_b32 v{U+r}, -1")
            e(f"""s_mov_b32 exec_hi, 0
            buffer_store_dwordx4 {vr(U,4)}, v{LS}, {srd(SRD_WS)}, s12 offen sc1 ; c:QCLR
            s_mov_b64 exec, -1
            {skip}:""")
            def four(slot, voff, s):
                e("s_mov_b32 s12, s10")
                r = []
                for t in range(4):
                    r.append(e.mem(f"buffer_load_dwordx4 {vr(VR+4*(slot+t),4)}, v{voff}, {srd(s)}, s12 offen nt"))
                    if t < 3: e("s_add_u32 s12, s12, 8192")
                return r
            xa = e.mem(f"buffer_load_dwordx2 {vr(T,2)}, v{T+5}, {srd(SRD_C)}, s11 offen")
            w2 = four(0, T + 4, SRD_D)
            self.mk_srd(SRD_E, P_WUK, 4 << 20)
            if o["t2w"] >= 0: e.wait(w2[o["t2w"]])
            w3 = four(4, T + 6, SRD_E)
        else:
            self.mk_srd(SRD_C, P_BX, 2048); self.mk_srd(SRD_D, P_BWQ, 4 << 20)
            xb = e.mem(f"buffer_load_dwordx4 {vr(T,4)}, v{T+5}, {srd(SRD_C)}, s11 offen")
            w1 = []
            for t in range(8):
                if t >= o["wt1"]: e.wait(w1[t - o["wt1"]])
                w1.append(e.mem(f"buffer_load_dwordx4 {vr(VR+4*t,4)}, v{T+4}, {srd(SRD_D)}, s10 offen nt"))
                if t < 7: e("s_add_u32 s10, s10, 8192")
            self.mk_srd(SRD_E, P_OUT, 4096)
            e(f"""v_lshrrev_b32 v{T+6}, 3, v0
            v_lshlrev_b32 v{T+6}, 17, v{T+6}
            v_and_b32 v{U}, 7, v0
            v_lshl_add_u32 v{T+6}, v{U}, 4, v{T+6}
            v_and_b32 v{U}, 15, v0
            v_lshlrev_b32 v{U}, 4, v{U}
            v_lshl_add_u32 v{U}, v{TMP}, 14, v{U}
            s_sub_u32 s68, s2, 192
            s_cmp_lt_u32 s3, 4
            s_cselect_b32 s{SRD_C}, s{P_WUV}, s{P_AWO}
            s_cselect_b32 s{SRD_C+1}, s{P_WUV+1}, s{P_AWO+1}
            s_mov_b32 s{SRD_C+2}, 0x400000
            s_movk_i32 s69, 1024
            s_cselect_b32 s69, 8192, s69
            s_cselect_b64 vcc, -1, 0
            v_cndmask_b32 v{T+6}, v{U}, v{T+6}, vcc
            s_lshl_b32 s10, s3, 20
            s_lshl_b32 s11, s68, 7
            s_add_u32 s10, s10, s11
            s_lshl_b32 s11, s68, 16
            s_and_b32 s12, s3, 3
            s_lshl_b32 s12, s12, 8
            s_add_u32 s11, s11, s12
            s_cmp_lt_u32 s3, 4
            s_cselect_b32 s70, s10, s11
            s_lshl_b32 s71, s3, 14
            s_add_u32 s71, s71, {L_W}""")
            wd = []
            def wdma(upto, w):
                while len(wd) < upto:
                    e(f"s_waitcnt vmcnt({w-1})\ns_mov_b32 m0, s71")
                    wd.append(e.mem(f"buffer_load_dwordx4 v{T+6}, {srd(SRD_C)}, s70 offen nt lds"))
                    e("s_add_u32 s70, s70, s69\ns_add_u32 s71, s71, 1024")
        self.mk_srd(SRD_A, P_BK, 32 << 20); self.mk_srd(SRD_B, P_BV, 32 << 20)
        e.L.append("; split")
        if kind == "P": issue(o["pre_p"])
        e(f"s_mov_b32 s{S_SC}, {f2u(SCALE):#x}\ns_mov_b32 s{S_SPIN}, {SPIN}")
        self.selectors(SEL, BLO, BHI, TMP)
        e(f"v_mov_b32 v{AC0}, 0\nv_mov_b32 v{AC0+1}, 0\nds_write_b64 v{AC0}, {vr(AC0,2)} offset:{L_F}")
        self.epoch_tag()
        if kind == "P":
            self.masks(0x03030303, 0x03030303)
            skip = self.only_wave(7)
            e(f"s_waitcnt vmcnt({e.vm})")
            self.post_a(2, 0, U)
            e(f"{skip}:")
            e(f"s_lshl_b32 s10, s3, 10\nv_add_u32 v{T+7}, s10, v{VL}")
            e.wait(xa)
            self.rws256(4, T, VR, AC0, BLO, BHI, PA, w2)
            self.pt("t2")
            e(f"ds_write_b128 v{T+7}, {vr(AC0,4)} offset:{L_T2}\ns_waitcnt lgkmcnt(0)\ns_barrier")
            XT = VR + 48
            skip = self.only_wave(0)
            for i in range(8): e(f"ds_read_b128 {vr(XT+4*i,4)}, v{VL} offset:{L_T2+1024*i}")
            e(f"""v_mov_b32 v{U+1}, s{TAG+1}
            s_lshl_b32 s10, s2, 11
            s_add_u32 s10, s10, {XQ}
            s_mov_b32 s11, 0xffffff00
            s_waitcnt lgkmcnt(0)""")
            self.tree("v_add_f32", XT, 8, 4)
            for r in range(4): e(f"v_bfi_b32 v{XT+8+2*r}, s11, v{XT+r}, v{U+1}\nv_mov_b32 v{XT+9+2*r}, s{TAG}")
            e(f"buffer_store_dwordx4 {vr(XT+8,4)}, v{VL}, {srd(SRD_WS)}, s10 offen sc1 ; c:XQ")
            e(f"buffer_store_dwordx4 {vr(XT+12,4)}, v{VL}, {srd(SRD_WS)}, s10 offen offset:1024 sc1 ; c:XQ")
            e(f"{skip}:")
            self.pt("xq")
            for i in range(o["pe"]):
                if i >= o["we"]: e(f"s_waitcnt vmcnt({o['we']-1})")
                issue(len(tags) + 1)
            skip, other = e.lab("L_skip"), e.lab("L_other")
            top, done = e.lab("L_spin"), e.lab("L_ok")
            e(f"""s_lshr_b32 s10, s3, 1
            s_cmp_lg_u32 s10, 2
            s_cbranch_scc1 {other}
            s_lshl_b32 s10, s13, 13
            s_and_b32 s12, s3, 1
            s_lshl_b32 s11, s12, 10
            s_add_u32 s10, s10, s11
            s_add_u32 s10, s10, {XQ}
            s_add_u32 s11, s10, 4096
            v_mov_b32 v{U+1}, 0xff
            v_lshrrev_b32 v{U+3}, 5, v0
            v_lshlrev_b32 v{U+3}, 8, v{U+3}
            v_and_b32 v{U+4}, 15, v0
            v_lshl_add_u32 v{U+3}, v{U+4}, 4, v{U+3}
            v_bfe_u32 v{U+4}, v0, 4, 1
            v_lshl_add_u32 v{U+3}, v{U+4}, 3, v{U+3}
            s_lshl_b32 s12, s12, 2
            v_add_u32 v{U+3}, s12, v{U+3}""")
            if o["sl_xq0"]: e(f"s_sleep {o['sl_xq0']}")
            e(f"{top}:")
            for i in range(4): e(f"buffer_load_dwordx4 {vr(VR+4*i,4)}, v{VL}, {srd(SRD_WS)}, s{10+(i>>1)} offen offset:{2048*(i&1)} sc1 ; c:LXQ")
            e("s_waitcnt vmcnt(0)")
            self.tag_check(VR, 8, U)
            e(f"v_cmp_ne_u32 vcc, 0, v{U}\ns_cbranch_vccz {done}")
            self.spin_tail(top, done, o["sl_xq"])
            for i in range(8): e(f"v_and_b32 v{VR+2*i}, 0xffffff00, v{VR+2*i}")
            e(f"""v_add_f32 v{VR}, v{VR}, v{VR+4}
            v_add_f32 v{VR+2}, v{VR+2}, v{VR+6}
            v_add_f32 v{VR+8}, v{VR+8}, v{VR+12}
            v_add_f32 v{VR+10}, v{VR+10}, v{VR+14}
            v_add_f32 v{VR}, v{VR}, v{VR+8}
            v_add_f32 v{VR+2}, v{VR+2}, v{VR+10}
            v_cvt_pk_bf16_f32 v{VR}, v{VR}, v{VR+2}
            ds_write_b32 v{U+3}, v{VR} offset:{L_QA}""")
            ne, we = o["ne"], o["we"]
            vm0, L0 = e.vm, len(e.L)
            issue(len(tags) + ne)
            body = e.L[L0:]
            e(f"s_branch {skip}\n{other}:")
            cnt = 0
            for l in body:
                if l.startswith("buffer_load"):
                    if cnt >= we: e(f"s_waitcnt vmcnt({we-1})")
                    cnt += 1
                e(l)
            e(f"""{skip}:
            v_bfe_u32 v{U}, v0, 2, 1
            v_lshlrev_b32 v{U}, 8, v{U}
            v_and_b32 v{U+2}, 0xf0, v{VK}
            v_add_u32 v{U+1}, v{U}, v{U+2}
            v_lshrrev_b32 v{U+2}, 4, v0
            v_lshl_add_u32 v{U}, v{U+2}, 3, v{U}
            s_lshl_b32 s11, s3, 5
            v_add_u32 v{U}, s11, v{U}
            s_waitcnt lgkmcnt(0)
            s_barrier
            ds_read_b128 {vr(QF,4)}, v{U+1} offset:{L_QA}
            s_waitcnt lgkmcnt(0)""")
            self.pt("qa")
            e.wait(w3[3])
            for t in range(4): e(f"v_mfma_f32_16x16x32_bf16 {vr(VR+4*t,4)}, {vr(VR+16+4*t,4)}, {vr(QF,4)}, 0")
            self.quad_sum([VR + 4 * t for t in range(4)])
            e(f"""v_cvt_pk_bf16_f32 v{AC0}, v{VR}, v{VR+4}
            v_cvt_pk_bf16_f32 v{AC0+1}, v{VR+8}, v{VR+12}
            s_mov_b32 exec_lo, 0x00110011
            s_mov_b32 exec_hi, 0x00110011
            ds_write_b64 v{U}, {vr(AC0,2)} offset:{L_QA+512}
            s_mov_b64 exec, -1
            s_waitcnt lgkmcnt(0)
            s_barrier""")
            skip = self.only_wave(7)
            e(f"""ds_read_b128 {vr(AC0,4)}, v{VL} offset:{L_QA+512}
            s_lshl_b32 s10, s2, 8
            s_add_u32 s10, s10, {QAP}
            s_waitcnt lgkmcnt(0)""")
            for r in range(4): e(f"v_min_u32 v{AC0+r}, -2, v{AC0+r}")
            e(f"""s_mov_b32 exec_hi, 0
            buffer_store_dwordx4 {vr(AC0,4)}, v{LS}, {srd(SRD_WS)}, s10 offen sc1 ; c:QAP
            s_mov_b64 exec, -1""")
            if o["stw"] in (1, 2):
                self.pt("st7"); e("s_waitcnt vmcnt(0)"); self.pt("ack7")
            e(f"{skip}:")
            if o["stw"] > 1: e("s_barrier")
            self.pt("st")
            issue(o["w1"])
        else:
            self.masks(0x03030303, 0x03030303)
            e(f"s_lshl_b32 s10, s3, 10\nv_add_u32 v{T+7}, s10, v{VL}")
            e.wait(xb)
            self.rws256(8, T, VR, AC1, BLO, BHI, PA, w1)
            e(f"ds_write_b128 v{T+7}, {vr(AC1,4)} offset:{L_T1}")
            wdma(o["wq1"], 16)
            e("s_waitcnt lgkmcnt(0)\ns_barrier")
            self.pt("t1")
            skip = self.only_wave(0)
            for i in range(8): e(f"ds_read_b128 {vr(VR+4*i,4)}, v{VL} offset:{L_T1+1024*i}")
            e(f"""v_lshrrev_b32 v{U}, 5, v0
            v_lshlrev_b32 v{U}, 14, v{U}
            v_and_b32 v{U+1}, 15, v0
            v_lshl_add_u32 v{U}, v{U+1}, 5, v{U}
            v_bfe_u32 v{U+1}, v0, 4, 1
            v_lshl_add_u32 v{U}, v{U+1}, 4, v{U}
            s_lshl_b32 s10, s4, 15
            s_lshl_b32 s11, s13, 9
            s_add_u32 s10, s10, s11
            s_add_u32 s10, s10, {QBP}
            s_sub_u32 s12, s2, 192
            s_lshr_b32 s13, s12, 3
            s_and_b32 s12, s12, 7
            s_waitcnt lgkmcnt(0)""")
            self.tree("v_add_f32", VR, 8, 4)
            e(f"buffer_store_dwordx4 {vr(VR,4)}, v{U}, {srd(SRD_WS)}, s10 offen sc1\ns_waitcnt vmcnt(0)")
            self.post_b(13, 12, U)
            e(f"{skip}:")
        variants = [pa] if pa == pb else [pa, pb]
        if kind == "Q":
            wdma(16, o["wq1"])
            self.pt("w")
        if len(variants) > 1: e(f"s_cmp_ge_u32 s3, 4\ns_cbranch_scc1 L_{kind}_B")
        tags0, vm0 = list(tags), e.vm
        for vi, nv in enumerate(variants):
            if vi: e(f"L_{kind}_B:")
            n = nv; cur[0] = nv; tags[:] = tags0; e.vm = vm0; seen.clear()
            kf, wearly = (o["kf_p"], o["w1"]) if kind == "P" else (o["kf_q"], o["wq0"])
            if kind == "Q":
                for k in range(wearly):
                    e(f"s_waitcnt vmcnt({wearly-1})"); issue(k + 1)
                slide(0, kf, wearly)
            else:
                slide(0, kf, wearly)
            e(f"""s_cmp_eq_u32 s3, 0
            s_cselect_b32 s13, 0, 0x40000000
            s_lshl_b32 s12, s{S_G}, 7
            s_add_u32 s12, s12, {FB}
            s_add_u32 s12, s12, s13
            v_lshlrev_b32 v{T+2}, 3, v0
            s_mov_b64 exec, 0xffff""")
            k1 = len(tags)
            fl = e.mem(f"buffer_load_dwordx2 {vr(T,2)}, v{T+2}, {srd(SRD_WS)}, s12 offen sc1 ; c:LFB")
            e("s_mov_b64 exec, -1")
            issue(kf + o["wk"])
            slide(kf, k1, o["wk"])
            e(f"""s_lshl_b32 s10, s{S_B}, 14
            s_lshl_b32 s11, s{S_G}, 11
            s_add_u32 s10, s10, s11
            s_add_u32 s10, s10, {QBP}
            s_add_u32 s10, s10, s13
            s_add_u32 s11, s10, 32768
            v_lshlrev_b32 v{TMP}, 5, v0""")
            e.wait(fl)
            top, done = e.lab("L_spin"), e.lab("L_ok")
            e(f"""s_cmp_lg_u32 s3, 0
            s_cbranch_scc1 {done}
            s_mov_b64 exec, 0xffff
            {top}:
            v_cmp_ne_u64 vcc, s[{TAG}:{TAG+1}], {vr(T,2)}
            s_cbranch_vccz {done}
            buffer_load_dwordx2 {vr(T,2)}, v{T+2}, {srd(SRD_WS)}, s12 offen sc1 ; c:LFB
            s_waitcnt vmcnt(0)""")
            self.spin_tail(top, done, o["sleep"])
            e("s_mov_b64 exec, -1")
            self.pt("qf")
            k2 = len(tags)
            QG = PA
            for k in range(4):
                qg = e.mem(f"buffer_load_dwordx4 {vr(QG+4*k,4)}, v{TMP}, {srd(SRD_WS)}, s{10+(k>>1)} offen offset:{16*(k&1)} sc1 ; c:LQB")
            k3 = min(k2, 4 * n)
            slide(k1, k3, o["wk"])
            skip = self.only_wave(0)
            e.wait(qg)
            for r in range(8): e(f"v_add_f32 v{QG+r}, v{QG+r}, v{QG+8+r}")
            for r in range(4): e(f"v_cvt_pk_bf16_f32 v{QG+r}, v{QG+2*r}, v{QG+2*r+1}")
            e(f"""v_mov_b32 v{T}, 0
            v_mov_b32 v{T+1}, 1
            ds_write_b128 v{VL}, {vr(QG,4)} offset:{L_Q}
            s_waitcnt lgkmcnt(0)
            ds_write_b32 v{T}, v{T+1} offset:{L_F}
            {skip}:""")
            kq = max(k3, min(o["kq"], 4 * n))
            slide(k3, kq, o["wk"])
            top, done = e.lab("L_spin"), e.lab("L_ok")
            e(f"""v_mov_b32 v{T}, 0
            s_mov_b32 s{S_SPIN}, {SPIN * 20}
            {top}:
            ds_read_b32 v{T+1}, v{T} offset:{L_F}
            ds_read_b128 {vr(QF,4)}, v{VK} offset:{L_Q}
            s_waitcnt lgkmcnt(0)
            v_cmp_eq_u32 vcc, 0, v{T+1}
            s_cbranch_vccz {done}""")
            self.spin_tail(top, done, 1)
            e(f"v_bfe_u32 v{T+5}, v0, 2, 2\nv_lshlrev_b32 v{T+5}, 5, v{T+5}\ns_lshl_b32 s10, s3, 2\nv_add_u32 v{T+6}, s10, v{T+5}")
            for z in range(0, 18, 4): e(f"v_mov_b32 v{PA+z}, 0\nv_mov_b32 v{PA+z+1}, 0")
            self.pt("q")
            SK = lambda k: D0 + 4 * k
            ahead = kq
            for i in range(n + 1):
                if i < n:
                    for j in range(4):
                        k = 4 * i + j
                        if k >= kq:
                            land(k); issue(k + 1 + (o["wk"] if k < 4 * n - 4 else o["wt"]))
                        elif j == 0 and o["cu"]:
                            issue(len(tags) + o["cu"])
                        e(f"v_mfma_f32_16x16x32_bf16 {vr(SK(k),4)}, {vr(KR+4*k,4)}, {vr(QF,4)}, 0")
                if i > 0:
                    ks = [SK(4 * (i - 1) + j) for j in range(4)]
                    self.quad_sum(ks)
                    self.max3_chain("f32", MX, ks if i == 1 else [MX] + ks)
            issue(4 * n + o["wt"])
            self.pt("k")
            self.swap_red("v_max_f32", MX, TMP, (16, 32))
            e(f"v_mul_f32 v{MX}, s{S_SC}, v{MX}\nds_write_b32 v{T+6}, v{MX} offset:{L_MAX}")
            for k in range(4 * n): e(f"v_fma_f32 v{SK(k)}, v{SK(k)}, s{S_SC}, -v{MX}")
            for k in range(4 * n): e(f"v_exp_f32 v{SK(k)}, v{SK(k)}")
            e(f"v_add_f32 v{LS}, v{SK(0)}, v{SK(1)}")
            for k in range(2, 4 * n): e(f"v_add_f32 v{LS}, v{LS}, v{SK(k)}")
            for k in range(0, 4 * n, 2): e(f"v_cvt_pk_bf16_f32 v{SK(k)}, v{SK(k)}, v{SK(k+1)}")
            self.swap_red("v_add_f32", LS, TMP, (16, 32))
            skip = e.lab("L_skip")
            e(f"""ds_write_b32 v{T+6}, v{LS} offset:{L_L}
            v_mov_b32 v{T}, 0
            v_mov_b32 v{T+1}, 1
            s_mov_b64 exec, 1
            ds_add_rtn_u32 v{T+2}, v{T}, v{T+1} offset:{L_F+4}
            s_waitcnt lgkmcnt(0)
            v_cmp_eq_u32 vcc, 7, v{T+2}
            s_mov_b64 exec, -1
            s_cbranch_vccz {skip}
            v_and_b32 v{T}, 3, v0
            v_lshlrev_b32 v{T}, 5, v{T}
            ds_read_b128 {vr(U,4)}, v{T} offset:{L_MAX}
            ds_read_b128 {vr(U+4,4)}, v{T} offset:{L_MAX+16}
            ds_read_b128 {vr(QF,4)}, v{T} offset:{L_L}
            ds_read_b128 {vr(AC0,4)}, v{T} offset:{L_L+16}
            v_mov_b32 v{T+3}, s{TAG+1}
            s_lshl_b32 s10, s{S_B}, 3
            s_add_u32 s10, s10, s{S_G}
            s_mul_i32 s10, s10, 12
            s_add_u32 s10, s10, s{S_SP}
            s_lshl_b32 s10, s10, 6
            s_add_u32 s10, s10, {BS}
            s_mov_b32 s11, 0xffffff00
            s_waitcnt lgkmcnt(0)""")
            self.max3_chain("f32", T + 2, range(U, U + 8))
            for r in range(8): e(f"v_sub_f32 v{U+r}, v{U+r}, v{T+2}")
            for r in range(8): e(f"v_exp_f32 v{U+r}, v{U+r}")
            e(f"v_mul_f32 v{T+1}, v{U}, v{QF}")
            for r in range(1, 8): e(f"v_fmac_f32 v{T+1}, v{U+r}, v{QF+r}")
            e(f"""v_bfi_b32 v{U+2}, s11, v{T+1}, v{T+3}
            v_bfi_b32 v{U}, s11, v{T+2}, v{T+3}
            v_mov_b32 v{U+1}, s{TAG}
            v_mov_b32 v{U+3}, s{TAG}
            s_mov_b64 exec, 15
            buffer_store_dwordx4 {vr(U,4)}, v{VL}, {srd(SRD_WS)}, s10 offen sc1 ; c:BST
            s_mov_b64 exec, -1
            {skip}:""")
            self.pt("p")
            for i in range(n):
                for j in range(4):
                    k = 4 * i + j; pk = SK(k & ~1); p = PA + 2 + 4 * j
                    sa, sb = (SEL + 2, SEL + 3) if k & 1 else (SEL, SEL + 1)
                    e(f"v_perm_b32 v{p}, v{pk}, v{pk}, v{sa}\nv_perm_b32 v{p+1}, v{pk}, v{pk}, v{sb}")
                if i == n - 1:
                    top, done = e.lab("L_spin"), e.lab("L_ok")
                    e(f"""v_mov_b32 v{T}, 0
                    v_lshrrev_b32 v{T+1}, 4, v0
                    v_lshlrev_b32 v{T+1}, 5, v{T+1}
                    s_lshl_b32 s10, s3, 2
                    v_add_u32 v{T+2}, s10, v{T+1}
                    {top}:
                    ds_read_b32 v{T+3}, v{T} offset:{L_F+4}
                    ds_read_b128 {vr(U,4)}, v{T+1} offset:{L_MAX}
                    ds_read_b128 {vr(U+4,4)}, v{T+1} offset:{L_MAX+16}
                    ds_read_b32 v{LS}, v{T+2} offset:{L_MAX}
                    s_waitcnt lgkmcnt(0)
                    v_cmp_ne_u32 vcc, 8, v{T+3}
                    s_cbranch_vccz {done}""")
                    self.spin_tail(top, done, 1)
                    self.max3_chain("f32", MX, range(U, U + 8))
                    e(f"v_sub_f32 v{LS}, v{LS}, v{MX}\nv_exp_f32 v{LS}, v{LS}")
                    e(f"""s_lshl_b32 s10, s3, 11
                    v_lshl_add_u32 v{T}, v0, 5, s10
                    s_lshl_b32 s10, s3, 8
                    v_and_b32 v{T+2}, 31, v0
                    v_lshl_add_u32 v{T+1}, v{T+2}, 3, s10
                    v_lshlrev_b32 v{T+2}, 2, v0
                    s_lshl_b32 s10, s{S_G}, 2
                    s_lshr_b32 s11, s3, 1
                    s_add_u32 s10, s10, s11
                    s_lshl_b32 s10, s10, 15
                    s_mul_i32 s11, s{S_B}, 24
                    s_add_u32 s11, s11, s{S_SP}
                    s_add_u32 s11, s11, s{S_SP}
                    s_and_b32 s12, s3, 1
                    s_add_u32 s11, s11, s12
                    s_lshl_b32 s11, s11, 7
                    s_add_u32 s10, s10, s11
                    s_add_u32 s10, s10, {MB}""")
                for j in range(4):
                    k = 4 * i + j; p = PA + 2 + 4 * j
                    land(4 * n + k)
                    issue(4 * n + k + 1 + o["wv"])
                    e(f"v_mfma_f32_16x16x32_bf16 {vr(AC0,4)}, {vr(p,4)}, {vr(VR+4*k,4)}, {vr(AC0,4) if k else 0}")
                    e(f"v_mfma_f32_16x16x32_bf16 {vr(AC1,4)}, {vr(p-2,4)}, {vr(VR+4*k,4)}, {vr(AC1,4) if k else 0}")
            self.pt("v")
            for r in range(8): e(f"v_mul_f32 v{AC0+r}, v{AC0+r}, v{LS}")
            e(f"""ds_write_b128 v{T}, {vr(AC0,4)} offset:{L_RED}
            ds_write_b128 v{T}, {vr(AC1,4)} offset:{L_RED+16}
            s_waitcnt lgkmcnt(0)
            s_barrier""")
            for i in range(8): e(f"ds_read_b64 {vr(KR+2*i,2)}, v{T+1} offset:{L_RED+2048*i}")
            for i in range(0, 8, 2):
                e(f"s_waitcnt lgkmcnt({6-i})\nv_add_f32 v{KR+2*i}, v{KR+2*i}, v{KR+2*i+2}\nv_add_f32 v{KR+2*i+1}, v{KR+2*i+1}, v{KR+2*i+3}")
                if i == 2: e(f"v_add_f32 v{KR}, v{KR}, v{KR+4}\nv_add_f32 v{KR+1}, v{KR+1}, v{KR+5}")
                if i == 4: e(f"v_add_f32 v{KR}, v{KR}, v{KR+8}\nv_add_f32 v{KR+1}, v{KR+1}, v{KR+9}")
            e(f"""v_add_f32 v{KR}, v{KR}, v{KR+12}
            v_add_f32 v{KR+1}, v{KR+1}, v{KR+13}
            v_cvt_pk_bf16_f32 v{KR}, v{KR}, v{KR+1}
            v_min_u32 v{KR}, -2, v{KR}
            s_mov_b32 exec_hi, 0
            buffer_store_dword v{KR}, v{T+2}, {srd(SRD_WS)}, s10 offen sc1 ; c:MB1""")
            self.pt("end")
            if kind == "Q": e("s_mov_b64 exec, -1\ns_mov_b32 s4, s68\ns_cmp_lt_u32 s3, 4\ns_cbranch_scc1 L_ATAIL")
            self.stamp_out(100)
            e("s_endpgm")

    X_MAX, X_P, X_L, X_CNT = 0, 2048, 20480, 24576

    def row_addr(self, dst, t):
        self.e(f"""v_and_b32 v{t}, 3, v0
        v_lshlrev_b32 v{t}, 2, v{t}
        v_bfe_u32 v{t+1}, v0, 2, 2
        v_or_b32 v{t}, v{t}, v{t+1}
        v_lshrrev_b32 v{t+1}, 5, v0
        v_xor_b32 v{t}, v{t}, v{t+1}
        v_lshlrev_b32 v{t}, 4, v{t}
        v_and_b32 v{t+1}, 31, v0
        v_lshl_add_u32 v{dst}, v{t+1}, 10, v{t}""")

    X_AL = 22528

    def qk(self, rnd, S, FR, A, TA, creg):
        e = self.e
        seq = [(i, 2 * qp + q) for qp in range(2) for i in range(8) for q in range(2)]
        ks = lambda o: seq[o][0] + 8 * seq[o][1]
        qreg = lambda o: FR + 4 * o if o < 4 else creg(ks(o - 4))
        dst = qreg if rnd == 0 else (lambda o: FR + 16 + 4 * (o & 3))
        tg = {}
        e.ds_reset()
        def rd(o):
            if o & 1 == 0: e(f"v_xor_b32 v{TA+((o>>1)&1)}, {seq[o][0] << 5}, v{A}")
            tg[o] = e.ds(f"ds_read_b128 {vr(dst(o),4)}, v{TA+((o>>1)&1)} offset:{256*seq[o][1]}")
        for o in range(3): rd(o)
        for o in range(32):
            if o + 3 < 32: rd(o + 3)
            e.dswait(tg[o])
            c = creg(ks(o)) if rnd == 0 else dst(o)
            e(f"v_mfma_f32_32x32x16_bf16 {vr(S,16)}, {vr(c,4)}, {vr(qreg(o),4)}, {vr(S,16) if o else 0}")
            if rnd == 0 and o == 16: e("s_barrier")

    def stat_addr(self, d, t):
        self.e(f"""v_and_b32 v{d}, 15, v0
        v_lshlrev_b32 v{d}, 5, v{d}
        v_bfe_u32 v{t}, v0, 4, 1
        v_lshl_add_u32 v{d}, v{t}, 10, v{d}
        v_add_u32 v{d}, {X}, v{d}""")

    def softmax(self, rnd, S, P, M, LS, T, lw):
        e = self.e
        self.max3_chain("f32", T, range(S, S + 16))
        self.swap_red("v_max_f32", T, T + 1, (32,))
        e(f"""ds_write_b32 v{T+3}, v{T} offset:{self.X_MAX+16*rnd}
        s_waitcnt lgkmcnt(0)
        s_barrier
        ds_read_b128 {vr(P,4)}, v{T+2} offset:{self.X_MAX+16*rnd}""")
        if rnd == 0:
            e(f"""v_mov_b32 v{T}, {X+self.X_CNT}
            v_mov_b32 v{T+1}, 0
            ds_write2_b32 v{T}, v{T+1}, v{T+1} offset0:0 offset1:16
            ds_write2_b32 v{T}, v{T+1}, v{T+1} offset0:32 offset1:48""")
        e(f"""s_lshl_b32 s10, s{lw}, 11
        s_add_u32 s10, s10, {X+self.X_P+8192*rnd}
        v_lshl_add_u32 v{T+1}, v0, 4, s10
        s_waitcnt lgkmcnt(0)""")
        if rnd == 0:
            self.max3_chain("f32", M, range(P, P + 4))
            e(f"v_mul_f32 v{M}, s{S_SC}, v{M}")
        else:
            self.max3_chain("f32", T, range(P, P + 4))
            e(f"""v_mul_f32 v{T}, s{S_SC}, v{T}
            v_max_f32 v{T}, v{T}, v{M}
            v_sub_f32 v{M}, v{M}, v{T}
            v_exp_f32 v{P}, v{M}
            v_mov_b32 v{M}, v{T}
            v_mul_f32 v{LS}, v{LS}, v{P}""")
        for r in range(16): e(f"v_fma_f32 v{S+r}, v{S+r}, s{S_SC}, -v{M}")
        for r in range(16): e(f"v_exp_f32 v{S+r}, v{S+r}")
        for r in range(8): e(f"v_cvt_pk_bf16_f32 v{P+r}, v{S+2*r}, v{S+2*r+1}")
        e(f"ds_write_b128 v{T+1}, {vr(P,4)}\nds_write_b128 v{T+1}, {vr(P+4,4)} offset:1024")
        if rnd == 0:
            e("s_waitcnt lgkmcnt(0)\ns_barrier")
            self.tree("v_add_f32", S, 16, 1)
            e(f"v_mov_b32 v{LS}, v{S}")
        else:
            self.tree("v_add_f32", S, 16, 1)
            e(f"v_add_f32 v{S}, v{S}, v{LS}")
            self.swap_red("v_add_f32", S, T, (32,))
            e(f"ds_write_b32 v{T+3}, v{S} offset:{self.X_L}\ns_waitcnt lgkmcnt(0)\ns_barrier")

    VL, VW, TMP, SEL, BLO, BHI, T, U, W, G, WUV, AC0, AC1, PA, XR = 1, 2, 3, 4, 8, 9, 10, 16, 32, 96, 160, 224, 228, 232, 244
    A_CW, A_CR, A_MB = 13, 14, 15
    S_LW, S_PART, S_PRIV, S_MBJ = 5, 6, 7, 8

    def vw_addr(self):
        VW, T = self.VW, self.T
        self.e(f"""v_lshrrev_b32 v{VW}, 4, v0
        v_lshlrev_b32 v{VW}, 14, v{VW}
        v_and_b32 v{T+1}, 15, v0
        v_lshl_add_u32 v{VW}, v{T+1}, 4, v{VW}""")

    def tail_setup(self):
        VL, T, A_CW, A_CR, A_MB = self.VL, self.T, self.A_CW, self.A_CR, self.A_MB
        self.e(f"""v_lshlrev_b32 v{VL}, 4, v0
        s_lshl_b32 s{self.S_PRIV}, s3, 11
        s_lshl_b32 s{self.S_MBJ}, s4, 14
        s_add_u32 s{self.S_MBJ}, s{self.S_MBJ}, {MB}
        v_lshl_add_u32 v{A_CW}, v0, 2, s{self.S_PRIV}
        v_bfe_u32 v{A_CR}, v0, 3, 1
        v_lshlrev_b32 v{A_CR}, 7, v{A_CR}
        v_lshrrev_b32 v{T+1}, 4, v0
        v_lshl_add_u32 v{A_CR}, v{T+1}, 5, v{A_CR}
        v_add_u32 v{A_CR}, s{self.S_PRIV}, v{A_CR}
        v_lshrrev_b32 v{A_MB}, 5, v0
        v_lshlrev_b32 v{A_MB}, 17, v{A_MB}
        v_bfe_u32 v{T+1}, v0, 3, 1
        v_lshl_add_u32 v{A_MB}, v{T+1}, 14, v{A_MB}
        v_and_b32 v{T+1}, 7, v0
        v_lshl_add_u32 v{A_MB}, v{T+1}, 4, v{A_MB}""")
        self.selectors(self.SEL, self.BLO, self.BHI, self.TMP)

    def core_selectors(self):
        e = self.e
        e(f"v_mov_b32 v{self.TMP}, 0x0c0c0c0c")
        for h, base in enumerate((self.BLO, self.BHI)):
            for j in range(4): e(f"v_cndmask_b32 v{208+4*h+j}, v{self.TMP}, v{base}, s[{MASK0+2*j}:{MASK0+2*j+1}]")

    def wload(self, s, t0=0, t1=16):
        e = self.e
        if "now" in self.x or t0 >= t1: return
        e(f"s_lshl_b32 s10, s4, 16\ns_lshl_b32 s11, s{self.S_LW}, 8\ns_add_u32 s10, s10, s11")
        if t0: e(f"s_add_u32 s10, s10, {1024 * t0}")
        for t in range(t0, t1):
            e.mem(f"buffer_load_dwordx4 {vr(self.W+4*t,4)}, v{self.VW}, {srd(s)}, s10 offen offset:{1024*(t&3)} nt")
            if t & 3 == 3: e("s_add_u32 s10, s10, 4096")

    def a_compute(self):
        e = self.e; e.vm = 0
        AC, AT, AQ, M, TA, T = 1, 2, 3, 4, 6, 8
        FR, S, O, PV = 16, 48, 64, 128
        e("L_AC:")
        self.role = "AC"
        self.pt("start")
        if self.o["cpf"]:
            here = e.lab("L_pc")
            e(f"""s_getpc_b64 s[10:11]
            {here}:
            s_sub_u32 s10, s10, {here}-{NAME}_kernel
            s_subb_u32 s11, s11, 0
            s_lshl_b32 s12, s3, 13
            v_lshl_add_u32 v{T+1}, v0, 7, s12""")
            for i in range(self.o["cpf"]):
                e(f"""v_cmp_gt_u32 vcc, L_END-{NAME}_kernel, v{T+1}
                s_and_saveexec_b64 s[12:13], vcc
                s_cbranch_execz L_cpf{i}
                global_load_dword v{254+i}, v{T+1}, s[10:11]
                L_cpf{i}:
                s_mov_b64 exec, -1
                v_add_u32 v{T+1}, 32768, v{T+1}""")
        e.L.append("; split")
        e(f"v_lshlrev_b32 v{T}, 4, v0\ns_waitcnt lgkmcnt(0)")
        self.epoch_load()
        self.mk_srd(SRD_WS, P_WS, WS_USED); self.mk_srd(SRD_D, P_BWO, 4 << 20); self.mk_srd(SRD_E, P_OUT, 4096)
        for r in range(4): e(f"v_mov_b32 v{FR+r}, -1")
        def clears():
            skip = e.lab("L_skip"); two = e.lab("L_two")
            e(f"""s_and_b32 s10, s4, 62
            s_lshl_b32 s10, s10, 14
            s_and_b32 s11, s4, 1
            s_mul_i32 s11, s11, 3072
            s_add_u32 s10, s10, s11
            s_add_u32 s10, s10, {MB}
            s_cmp_eq_u32 s3, 0
            s_cbranch_scc1 {two}
            s_cmp_eq_u32 s3, 1
            s_cbranch_scc1 {skip}
            s_cmp_ge_u32 s4, 32
            s_cbranch_scc1 {skip}
            s_lshl_b32 s10, s4, 14
            s_lshl_b32 s11, s3, 12
            s_add_u32 s10, s10, s11
            s_add_u32 s10, s10, {MB}
            buffer_store_dwordx4 {vr(FR,4)}, v{T}, {srd(SRD_WS)}, s10 offen offset:3072 sc1 ; c:CLR
            {two}:""")
            for i in range(3): e(f"buffer_store_dwordx4 {vr(FR,4)}, v{T}, {srd(SRD_WS)}, s10 offen offset:{1024*i} sc1 ; c:CLR")
            e(f"{skip}:")
        cat = self.o["clr_at"]
        if cat < 0: clears()
        e(f"s_mov_b32 s{S_SC}, {f2u(SCALE):#x}\ns_mov_b32 s{S_SPIN}, {SPIN}")
        self.row_addr(AC, T + 1)
        e(f"""v_add_u32 v{AQ}, {X}, v{AC}
        s_lshl_b32 s10, s3, 15
        v_add_u32 v{AC}, s10, v{AC}
        v_lshrrev_b32 v{T+2}, 5, v0
        v_bfe_u32 v{T+1}, v0, 2, 2
        v_lshl_add_u32 v{T+3}, v{T+2}, 2, v{T+1}
        v_lshlrev_b32 v{AT}, 10, v{T+3}
        v_bfe_u32 v{T+3}, v0, 4, 1
        v_lshlrev_b32 v{T+3}, 1, v{T+3}
        v_bfe_u32 v{T+4}, v0, 1, 1
        v_or_b32 v{T+3}, v{T+3}, v{T+4}
        v_xor_b32 v{T+3}, v{T+3}, v{T+2}
        v_lshl_add_u32 v{T+3}, v{T+1}, 2, v{T+3}
        v_lshl_add_u32 v{AT}, v{T+3}, 4, v{AT}
        v_and_b32 v{T+3}, 1, v0
        v_lshl_add_u32 v{AT}, v{T+3}, 3, v{AT}
        s_lshl_b32 s10, s3, 8
        v_add_u32 v{AT}, s10, v{AT}""")
        self.epoch_tag()
        def tr_addr():
            for k in range(8):
                e(f"v_xor_b32 v{S+k}, {(2*k) << 4}, v{AT}")
                if k & 1: e(f"v_add_u32 v{S+k}, 8192, v{S+k}")
        def tr_step():
            for k in range(8): e(f"v_add_u32 v{S+k}, 65536, v{S+k}")
        def tr_ct(u, ct):
            for hh in range(2):
                last = e.ds(f"ds_read_b64_tr_b16 {vr(PV+16*(u&7)+4*ct+2*hh,2)}, v{S+2*ct+hh} offset:{32768*((u>>1)&1)+16384*(u&1)}")
            return last
        tr_addr()
        e(f"""s_and_b32 s9, s4, 7
        s_lshl_b32 s9, s9, 11
        s_add_u32 s9, s9, {FA}
        v_lshlrev_b32 v{FR+10}, 3, v0""")
        def qc_load():
            for i in range(3): e(f"buffer_load_dwordx2 {vr(FR+4+2*i,2)}, v{FR+10}, {srd(SRD_WS)}, s9 offen offset:{512*i} sc1 ; c:LQC")
        def q_load():
            for i in range(8): e(f"buffer_load_dwordx4 {vr(O+4*i,4)}, v{T}, {srd(SRD_WS)}, s{70+(i>>2)} offen offset:{1024*(i&3)} sc1 ; c:LQA")
        e(f"""s_lshr_b32 s70, s4, 5
        s_lshl_b32 s70, s70, 15
        s_lshl_b32 s71, s3, 13
        s_add_u32 s70, s70, s71
        s_add_u32 s70, s70, {QAP}
        s_add_u32 s71, s70, 4096""")
        qat = self.o["qat"]
        def flags_then_q():
            top, done = e.lab("L_spin"), e.lab("L_ok")
            e(f"""{top}:
            s_waitcnt vmcnt(0)
            v_cmp_ne_u64 vcc, s[{TAG}:{TAG+1}], {vr(FR+4,2)}
            v_cmp_ne_u64 s[12:13], s[{TAG}:{TAG+1}], {vr(FR+6,2)}
            s_or_b64 vcc, vcc, s[12:13]
        v_cmp_ne_u64 s[12:13], s[{TAG}:{TAG+1}], {vr(FR+8,2)}
        s_or_b64 vcc, vcc, s[12:13]
            s_cbranch_vccz {done}""")
            qc_load()
            self.spin_tail(top, done)
            self.pt("qc")
            q_load()
        for t in range(4):
            if t == cat + 2: e("s_waitcnt vmcnt(0)")
            e("s_barrier")
            self.pt(f"t{t}")
            if t == cat: clears()
            if t == cat + 2:
                skip = self.only_wave(0)
                e("s_lshr_b32 s12, s4, 3\ns_and_b32 s13, s4, 7\ns_add_u32 s13, s13, 8")
                self.post_b(12, 13, FR)
                self.post_a(4, 1024, FR + 12)
                e(f"{skip}:")
            if t == self.o["fat"]: qc_load()
            if t == qat: flags_then_q()
            if t == 2: tr_step()
            e.ds_reset()
            for u in (2 * t, 2 * t + 1):
                for ct in range(4): tr_ct(u, ct)
            e("s_waitcnt lgkmcnt(0)")
        e("s_barrier")
        self.pt("half")
        if qat == 4: flags_then_q()
        e(f"""s_lshl_b32 s12, s3, 13
        s_add_u32 s12, s12, {X}
        s_and_b32 s13, s3, 1
        s_lshl_b32 s13, s13, 5
        v_xor_b32 v{T+1}, s13, v{T}
        v_add_u32 v{T+1}, s12, v{T+1}""")
        top, done = e.lab("L_spin"), e.lab("L_ok")
        e(f"{top}:\ns_waitcnt vmcnt(0)")
        self.max3_chain("u32", T + 2, range(O, O + 16)); self.max3_chain("u32", T + 3, range(O + 16, O + 32))
        e(f"v_max_u32 v{T+2}, v{T+2}, v{T+3}\nv_cmp_eq_u32 vcc, -1, v{T+2}\ns_cbranch_vccz {done}")
        self.pt("qr")
        q_load()
        self.spin_tail(top, done)
        self.pt("qd")
        for i in range(8):
            sw = ((i & 3) << 2) | (i >> 2)
            e(f"v_xor_b32 v{TA+(i&1)}, {sw << 4}, v{T+1}\nds_write_b128 v{TA+(i&1)}, {vr(O+4*i,4)} offset:{1024*i}")
        e("s_waitcnt lgkmcnt(0)\ns_barrier")
        self.pt("b1")
        e(f"v_add_u32 v{T}, {X+self.X_P}, v{T}")
        self.stat_addr(T + 3, T + 1)
        e(f"""s_lshl_b32 s10, s3, 7
        s_add_u32 s10, s10, {X+self.X_AL}
        v_and_b32 v{T+1}, 31, v0
        v_lshl_add_u32 v{AQ}, v{T+1}, 2, s10
        v_lshrrev_b32 v{T+1}, 5, v0
        v_lshl_add_u32 v{AC}, v{T+1}, 4, s10""")
        tr_addr()
        def pv(rnd):
            e.ds_reset()
            pt_ = [e.ds(f"ds_read_b128 {vr(FR+4*u,4)}, v{T} offset:{8192*rnd+1024*u}") for u in range(8)]
            for u in range(8):
                e.dswait(pt_[u])
                for ct in range(4):
                    e(f"v_mfma_f32_32x32x16_bf16 {vr(O+16*ct,16)}, {vr(FR+4*u,4)}, {vr(PV+16*u+4*ct,4)}, {vr(O+16*ct,16) if u or rnd else 0}")
        e("s_barrier\ns_barrier\ns_barrier")
        self.pt("bp0")
        pv(0)
        e("s_barrier")
        self.pt("bd")
        e.ds_reset()
        for u in range(8):
            if u == 4: tr_step()
            for ct in range(4): tr_ct(u, ct)
        e(f"""s_waitcnt lgkmcnt(0)
        s_barrier
        ds_read_b128 {vr(FR,4)}, v{T+3} offset:{self.X_MAX}
        ds_read_b128 {vr(FR+4,4)}, v{T+3} offset:{self.X_MAX+16}
        s_waitcnt lgkmcnt(0)""")
        self.max3_chain("f32", T + 1, range(FR, FR + 4))
        self.max3_chain("f32", M, [T + 1] + list(range(FR + 4, FR + 8)))
        e(f"""v_mul_f32 v{T+1}, s{S_SC}, v{T+1}
        v_mul_f32 v{M}, s{S_SC}, v{M}
        v_sub_f32 v{T+1}, v{T+1}, v{M}
        v_exp_f32 v{T+1}, v{T+1}
        ds_write_b32 v{AQ}, v{T+1}""")
        for q in range(4): e(f"ds_read_b128 {vr(S+4*q,4)}, v{AC} offset:{32*q}")
        e("s_waitcnt lgkmcnt(0)")
        for ct in range(4):
            for r in range(16): e(f"v_mul_f32 v{O+16*ct+r}, v{O+16*ct+r}, v{S+r}")
        e("s_barrier")
        self.pt("bp")
        pv(1)
        self.pt("pv")
        e(f"""v_lshrrev_b32 v{T}, 5, v0
        v_lshlrev_b32 v{T}, 18, v{T}
        v_bfe_u32 v{T+1}, v0, 4, 1
        v_lshl_add_u32 v{T}, v{T+1}, 16, v{T}
        v_and_b32 v{T+1}, 15, v0
        v_lshl_add_u32 v{T}, v{T+1}, 4, v{T}
        s_lshl_b32 s10, s4, 10
        s_lshl_b32 s11, s3, 8
        s_add_u32 s10, s10, s11
        s_add_u32 s10, s10, {AP}""")
        for r in range(16):
            d = FR + 2 * r
            e(f"v_cvt_pk_bf16_f32 v{d}, v{O+r}, v{O+16+r}\nv_cvt_pk_bf16_f32 v{d+1}, v{O+32+r}, v{O+48+r}")
            if r >= 3 and r & 1:
                k = FR + 2 * (r - 3)
                e(f"v_permlane16_swap_b32 v{k}, v{k+2}\nv_permlane16_swap_b32 v{k+1}, v{k+3}")
                e(f"buffer_store_dwordx4 {vr(k,4)}, v{T}, {srd(SRD_WS)}, s10 offen sc1 ; c:AP")
                e(f"s_add_u32 s10, s10, {65536 * (6 if (r - 3) & 2 else 2)}")
        k = FR + 28
        e(f"v_permlane16_swap_b32 v{k}, v{k+2}\nv_permlane16_swap_b32 v{k+1}, v{k+3}")
        e(f"buffer_store_dwordx4 {vr(k,4)}, v{T}, {srd(SRD_WS)}, s10 offen sc1 ; c:AP")
        skip = self.only_wave(0)
        e(f"""ds_read_b128 {vr(S,4)}, v{T+3} offset:{self.X_L}
        v_lshlrev_b32 v{T+1}, 3, v0
        s_lshl_b32 s10, s4, 8
        s_add_u32 s10, s10, {AST}
        s_waitcnt lgkmcnt(0)""")
        self.tree("v_add_f32", S, 4, 1)
        e(f"""v_mov_b32 v{S+1}, v{S}
        v_mov_b32 v{S}, v{M}
        s_mov_b32 exec_hi, 0
        buffer_store_dwordx2 {vr(S,2)}, v{T+1}, {srd(SRD_WS)}, s10 offen sc1
        s_mov_b64 exec, -1
        {skip}:
        s_mov_b32 s5, s3
        s_mov_b32 s6, 1""")
        skip = e.lab("L_skip")
        e(f"""v_mov_b32 v100, {X+self.X_CNT+64}
        v_mov_b32 v101, 1
        s_mov_b64 exec, 1
        s_waitcnt vmcnt(0)
        ds_add_rtn_u32 v102, v100, v101
        s_waitcnt lgkmcnt(0)
        v_cmp_eq_u32 vcc, 3, v102
        s_mov_b64 exec, -1
        s_cbranch_vccz {skip}""")
        if self.o["wb"]: e("buffer_wbl2 sc1\ns_waitcnt vmcnt(0)")
        self.post_a(4, 1536, 96)
        e(f"{skip}:")
        self.pt("b9")
        self.vw_addr()
        self.tail_setup()
        self.masks(0x03030303, 0x03030303)
        self.core_selectors()
        self.wload(SRD_D)
        self.lds_wait(X + self.X_CNT + 64, 100)
        e(f"""s_mov_b32 s{S_SPIN}, {SPIN * 20}
        v_lshlrev_b32 v{self.A_CW}, 2, v0
        v_subrev_u32 v{self.A_CR}, s{self.S_PRIV}, v{self.A_CR}
        s_cmp_eq_u32 s3, 0
        s_cbranch_scc1 L_BPRE
        v_mov_b32 v100, {X + self.X_CNT + 128}
        s_waitcnt vmcnt(0)""")
        top = e.lab("L_spin")
        XR = self.XR
        e(f"""{top}:
        ds_read_b32 v101, v100
        ds_read_b128 {vr(XR,4)}, v{self.A_CR} offset:1024
        ds_read_b128 {vr(XR+4,4)}, v{self.A_CR} offset:1040
        s_waitcnt lgkmcnt(0)
        v_cmp_ne_u32 vcc, 0, v101
        s_cbranch_vccnz L_CORE2
        s_sub_u32 s{S_SPIN}, s{S_SPIN}, 1
        s_cbranch_scc0 {top}
        s_branch L_CORE2
        L_BPRE:
        s_mov_b32 s{S_SPIN}, {SPIN}
        v_mov_b32 v100, {X + self.X_CNT + 128}
        v_mov_b32 v101, 1""")
        self.b_pre()

    def b_pre(self):
        e = self.e
        T, U, G, A_CW, S_PRIV, S_MBJ = self.T, self.U, 104, self.A_CW, self.S_PRIV, self.S_MBJ
        e(f"""v_bfe_u32 v{T}, v0, 4, 1
        v_mul_u32_u24 v{T}, 6144, v{T}
        v_and_b32 v{T+1}, 15, v0
        v_lshl_add_u32 v{T}, v{T+1}, 6, v{T}
        s_lshr_b32 s10, s4, 3
        s_mul_i32 s10, s10, 768
        s_bfe_u32 s11, s4, 0x20001
        s_lshl_b32 s11, s11, 4
        s_add_u32 s10, s10, s11
        s_add_u32 s10, s10, {BS}
        s_mov_b32 s12, 0x0fff0fff
        s_mov_b32 s13, 0
        v_mov_b32 v{U+5}, 0xff
        s_mov_b64 exec, s[12:13]""")
        top, done = e.lab("L_spin"), e.lab("L_ok")
        e(f"""{top}:
        buffer_load_dwordx4 {vr(U,4)}, v{T}, {srd(SRD_WS)}, s10 offen sc1
        s_waitcnt vmcnt(0)""")
        self.tag_check(U, 2, U + 4)
        e(f"v_cmp_ne_u32 vcc, 0, v{U+4}\ns_cbranch_vccz {done}")
        self.spin_tail(top, done, self.o["sl_bs"])
        e(f"s_mov_b64 exec, -1\nv_and_b32 v{U+1}, 0xffffff00, v{U+2}\nv_and_b32 v{U}, 0xffffff00, v{U}")
        self.pt("bstat")
        e(f"""v_mov_b32 v{U+2}, 0xff800000
        v_cndmask_b32 v{U}, v{U+2}, v{U}, s[12:13]
        v_cndmask_b32 v{U+1}, 0, v{U+1}, s[12:13]
        v_mov_b32 v{U+2}, v{U}""")
        self.row_red("v_max_f32", U + 2, (1, 2, 4, 8))
        e(f"v_sub_f32 v{U}, v{U}, v{U+2}\nv_exp_f32 v{U}, v{U}\nv_mul_f32 v{U+1}, v{U}, v{U+1}")
        self.row_red("v_add_f32", U + 1, (1, 2, 4, 8))
        WA, AC0, XR, BLO, BHI = 160, self.AC0, self.XR, self.BLO, self.BHI
        e(f"""v_rcp_f32 v{U+1}, v{U+1}
        v_mul_f32 v{U}, v{U}, v{U+1}
        v_cvt_pk_bf16_f32 v{U}, v{U}, v{U}
        v_bfe_u32 v{T}, v0, 4, 1
        v_mul_u32_u24 v{T}, 24, v{T}
        v_and_b32 v{T+1}, 15, v0
        v_lshl_add_u32 v{T}, v{T+1}, 1, v{T}
        v_lshrrev_b32 v{T+2}, 4, v0
        v_mul_u32_u24 v{T+2}, 12, v{T+2}
        s_mov_b64 exec, s[12:13]
        ds_write_b16 v{T}, v{U} offset:1536
        s_mov_b64 exec, -1
        ds_read_b32 v{XR}, v{T+2} offset:1536
        ds_read_b32 v{XR+1}, v{T+2} offset:1540
        ds_read_b32 v{XR+2}, v{T+2} offset:1544
        v_lshlrev_b32 v{T}, 7, v{T+2}
        v_lshl_add_u32 v{T}, v{T+1}, 4, v{T}
        s_and_b32 s10, s4, 62
        s_lshl_b32 s10, s10, 14
        s_add_u32 s10, s10, {MB}
        v_lshrrev_b32 v{T+2}, 5, v0
        v_lshlrev_b32 v{T+2}, 7, v{T+2}
        v_and_b32 v{T+1}, 7, v0
        v_lshl_add_u32 v{T+2}, v{T+1}, 4, v{T+2}
        v_bfe_u32 v{T+1}, v0, 4, 1
        v_lshl_add_u32 v{T+2}, v{T+1}, 3, v{T+2}
        s_and_b32 s11, s4, 1
        s_lshl_b32 s11, s11, 3
        s_lshl_b32 s12, 0x00ff00ff, s11
        s_mov_b32 s13, s12
        s_mov_b32 s70, 0x00030003
        s_mov_b32 s71, 0x03000300
        s_waitcnt lgkmcnt(0)""")
        for t in range(6): e(f"v_perm_b32 v{U+t}, v{XR+(t>>1)}, v{XR+(t>>1)}, v{BHI if t & 1 else BLO}")
        for j in range(4):
            for t in range(6): e(f"v_cndmask_b32 v{WA+4*t+j}, 0, v{U+t}, s[70:71]")
            if j < 3: e("s_lshl_b32 s70, s70, 2\ns_lshl_b32 s71, s71, 2")
        def chain(g, t):
            if t == 0: e(f"v_max3_u32 v{T+1}, v{g}, v{g+1}, v{g+2}\nv_max_u32 v{T+1}, v{T+1}, v{g+3}")
            else: e(f"v_max3_u32 v{T+1}, v{T+1}, v{g}, v{g+1}\nv_max3_u32 v{T+1}, v{T+1}, v{g+2}, v{g+3}")
        def use(k, t):
            g = G + 24 * k + 4 * t
            e(f"v_mfma_f32_16x16x32_bf16 {vr(AC0,4)}, {vr(WA+4*t,4)}, {vr(g,4)}, {vr(AC0,4) if t else 0}"); chain(g, t)
        if self.o["gate"] >= 0:
            top, done = e.lab("L_spin"), e.lab("L_ok")
            e(f"{top}:")
            for t in range(6): e(f"buffer_load_dword v{G+t}, v{T}, {srd(SRD_WS)}, s10 offen offset:{256*t} sc1 ; c:LMB")
            e("s_mov_b32 s70, 0")
            for t in range(6):
                e(f"""s_waitcnt vmcnt({5-t})
                v_cmp_eq_u32 vcc, -1, v{G+t}
                s_and_b64 vcc, vcc, s[12:13]
                s_bcnt1_i32_b64 s71, vcc
                s_add_u32 s70, s70, s71""")
            e(f"s_cmp_le_u32 s70, {8 * self.o['gate']}\ns_cbranch_scc1 {done}")
            self.spin_tail(top, done, self.o["sl_bo"])
        self.poll_loop(6, lambda k, t: e(f"buffer_load_dwordx4 {vr(G+24*k+4*t,4)}, v{T}, {srd(SRD_WS)}, s10 offen offset:{256*t} sc1 ; c:LMB"),
                       use, lambda: e(f"v_cmp_eq_u32 vcc, -1, v{T+1}\ns_and_b64 vcc, vcc, s[12:13]"), self.o["ps1"], "or")
        self.pt("bo")
        e(f"""s_mov_b64 exec, s[12:13]
        v_cvt_pk_bf16_f32 v{U}, v{AC0}, v{AC0+1}
        v_cvt_pk_bf16_f32 v{U+1}, v{AC0+2}, v{AC0+3}
        ds_write_b64 v{T+2}, {vr(U,2)} offset:1024
        s_mov_b64 exec, -1
        ds_write_b32 v100, v101
        s_branch L_CORE1""")

    def a_loader(self):
        e = self.e; e.vm = 0
        VL, VW, TMP, SEL, BLO, BHI, T, U, W, G, WUV, AC0, AC1, PA, XR = (self.VL, self.VW, self.TMP, self.SEL, self.BLO,
            self.BHI, self.T, self.U, self.W, self.G, self.WUV, self.AC0, self.AC1, self.PA, self.XR)
        S_LW, S_PART, S_PRIV, S_MBJ = self.S_LW, self.S_PART, self.S_PRIV, self.S_MBJ
        XO, S, FR, AQ, AC, TA, M = 232, 16, 224, 4, 5, 6, 8
        CNT = X + self.X_CNT
        creg = lambda ks: (W + 4 * ks) if ks < 16 else (WUV + 4 * (ks - 16))
        e("L_AL:")
        self.role = "AL"
        self.pt("start")
        e(f"""s_sub_u32 s{S_LW}, s3, 4
        s_and_b32 s10, s3, 1
        s_lshl_b32 s10, s10, 5
        v_lshlrev_b32 v{VL}, 4, v0
        v_xor_b32 v{T}, s10, v{VL}""")
        for i in range(8): e(f"v_xor_b32 v{XO+i}, {(((i & 3) << 2) | (i >> 2)) << 4}, v{T}")
        e(f"""s_lshl_b32 s66, s4, 18
        s_lshl_b32 s67, s{S_LW}, 13
        s_add_u32 s66, s66, s67
        s_waitcnt lgkmcnt(0)""")
        self.mk_srd(SRD_A, P_CKV, 16 << 20)
        dma = []
        def dma_tile(t):
            for r in range(8):
                if r & 3 == 0: e("s_mov_b32 m0, s67")
                last = e.mem(f"buffer_load_dwordx4 v{XO+r}, {srd(SRD_A)}, s66 offen offset:{1024*(r&3)} nt lds")
                if r == 3: e("s_add_u32 s66, s66, 4096\ns_add_u32 s67, s67, 4096")
                if r == 7: e(f"s_add_u32 s66, s66, 28672\ns_add_u32 s67, s67, {28672 if t != 3 else (28672 - 131072) & 0xffffffff:#x}")
            dma.append(last)
        a0 = self.o["a0"]
        dma_tile(0)
        e.L.append("; split")
        for t in range(1, a0): dma_tile(t)
        if self.stamps: self.mk_srd(SRD_WS, P_WS, WS_USED)
        self.row_addr(AC, T)
        e(f"""v_add_u32 v{AQ}, {X}, v{AC}
        s_lshl_b32 s10, s{S_LW}, 15
        v_add_u32 v{AC}, s10, v{AC}
        s_mov_b32 s{S_SC}, {f2u(SCALE):#x}""")
        for t in range(5):
            if t < 4: e.wait(dma[t])
            e("s_barrier")
            self.pt(f"bar{t}")
            while len(dma) < min(8, a0 + t + 1, 4 + t) or (t == 4 and len(dma) < 8): dma_tile(len(dma))
            self.pt(f"iss{t}")
            if t < 4:
                skip = self.only_wave(4 + t)
                for i in range(8):
                    e(f"v_xor_b32 v{TA+(i&1)}, {i << 5}, v{AC}")
                    for q in range(4): e(f"ds_read_b128 {vr(creg(i+8*q),4)}, v{TA+(i&1)} offset:{256*q}")
                    if i & 1: e("s_waitcnt lgkmcnt(4)")
                e(f"s_waitcnt lgkmcnt(0)\n{skip}:")
        self.stat_addr(T + 2, T + 3)
        e(f"s_lshl_b32 s10, s{S_LW}, 2\nv_add_u32 v{T+3}, s10, v{T+2}\ns_barrier")
        self.qk(0, S, FR, AQ, TA, creg)
        self.softmax(0, S, FR + 16, M, TMP, T, S_LW)
        e("s_waitcnt vmcnt(0)")
        self.pt("dma")
        e("s_barrier")
        self.qk(1, S, FR, AC, TA, creg)
        self.softmax(1, S, FR + 16, M, TMP, T, S_LW)
        pv = self.o["pv"]
        if pv:
            npt = self.o["pb"]; assert self.o["pa"] == npt
            self.mk_srd(SRD_B, P_BV, 32 << 20)
            e(f"""s_lshr_b32 s10, s4, 3
            s_lshl_b32 s10, s10, 1
            s_lshr_b32 s11, s{S_LW}, 1
            s_add_u32 s10, s10, s11
            s_lshl_b32 s10, s10, 21
            s_and_b32 s11, s4, 7
            s_mul_i32 s11, s11, {8 * npt}
            s_and_b32 s12, s{S_LW}, 1
            s_lshl_b32 s12, s12, 1
            s_add_u32 s12, s12, {self.o['pvw']}
            s_mul_i32 s12, s12, {npt}
            s_add_u32 s11, s11, s12
            s_add_u32 s11, s11, {npt - pv}
            s_lshl_b32 s11, s11, 12
            s_add_u32 s10, s10, s11
            s_add_u32 s11, s10, {4096 * npt}""")
            if self.o["pvwait"]: self.lds_wait(X + self.X_CNT + 64, T)
            k = 0
            for t in range(pv):
                for sr in (10, 11):
                    for j in range(4):
                        if k >= self.o["pvwin"]: e(f"s_waitcnt vmcnt({self.o['pvwin'] - 1})")
                        e(f"buffer_load_dwordx4 {vr(32 + 4 * k, 4)}, v{VL}, {srd(SRD_B)}, s{sr} offen offset:{1024 * j} nt"); k += 1
                    e(f"s_add_u32 s{sr}, s{sr}, 4096")
            e("s_waitcnt vmcnt(0)")
        self.pt("end")
        self.stamp_out(32)
        e("s_endpgm")

    def a_tail(self):
        e = self.e; e.vm = 0
        VL, VW, TMP, SEL, BLO, BHI, T, U, W, G, AC0, AC1, PA, XR = (self.VL, self.VW, self.TMP, self.SEL, self.BLO,
            self.BHI, self.T, self.U, self.W, self.G, self.AC0, self.AC1, self.PA, self.XR)
        S_LW, S_PART, S_PRIV, S_MBJ = self.S_LW, self.S_PART, self.S_PRIV, self.S_MBJ
        UV, GA, L_W = 96, 160, 32768
        e("L_ATAIL:")
        self.role = "Q"
        e(f"s_mov_b32 s{S_LW}, s3\ns_mov_b32 s{S_PART}, 0\ns_mov_b32 s{S_SPIN}, {SPIN}")
        e(f"""s_cmp_eq_u32 s3, 0
        s_cselect_b32 s69, 0, 0x40000000
        s_and_b32 s70, s4, 7
        s_lshl_b32 s70, s70, 11
        s_add_u32 s70, s70, {FA + 1536}
        s_add_u32 s70, s70, s69
        v_lshlrev_b32 v{U+2}, 3, v0""")
        if self.o["f1"]: e(f"buffer_load_dwordx2 {vr(U,2)}, v{U+2}, {srd(SRD_WS)}, s70 offen sc1")
        self.vw_addr()
        self.tail_setup()
        e(f"""s_lshl_b32 s10, s3, 14
        s_add_u32 s10, s10, {L_W}
        v_add_u32 v{T}, s10, v{VL}
        v_add_u32 v{T+1}, 65536, v{T}""")
        e.ds_reset()
        for t in range(16): e.ds(f"ds_read_b128 {vr(UV+4*t,4)}, v{T} offset:{1024*t}")
        for t in range(16): e.ds(f"ds_read_b128 {vr(W+4*t,4)}, v{T+1} offset:{1024*t}")
        top, done = e.lab("L_spin"), e.lab("L_ok")
        e(f"s_cmp_lg_u32 s3, 0\ns_cbranch_scc1 {done}")
        if not self.o["f1"]: e(f"buffer_load_dwordx2 {vr(U,2)}, v{U+2}, {srd(SRD_WS)}, s70 offen sc1")
        e(f"""{top}:
        s_waitcnt vmcnt(0)
        v_cmp_ne_u64 vcc, s[{TAG}:{TAG+1}], {vr(U,2)}
        s_cbranch_vccz {done}""")
        if self.o["sl_ap"]: e(f"s_sleep {self.o['sl_ap']}")
        e(f"buffer_load_dwordx2 {vr(U,2)}, v{U+2}, {srd(SRD_WS)}, s70 offen sc1")
        self.spin_tail(top, done)
        e("s_waitcnt vmcnt(0) lgkmcnt(0)\ns_barrier")
        self.pt("apf")
        e.vm = 0
        e(f"""s_lshr_b32 s12, s4, 1
        s_lshl_b32 s10, s12, 3
        s_add_u32 s10, s10, {AST}
        v_lshlrev_b32 v{T}, 8, v0""")
        st = e.mem(f"buffer_load_dwordx2 {vr(U,2)}, v{T}, {srd(SRD_WS)}, s10 offen sc1")
        e(f"""s_lshl_b32 s10, s12, 16
        s_lshl_b32 s11, s{S_LW}, 8
        s_add_u32 s10, s10, s11
        s_add_u32 s10, s10, {AP}""")
        g = []
        for t in range(16):
            g.append(e.mem(f"buffer_load_dwordx4 {vr(GA+4*t,4)}, v{VW}, {srd(SRD_WS)}, s10 offen offset:{1024*(t&3)} sc1 ; c:LAP"))
            if t & 3 == 3: e("s_add_u32 s10, s10, 4096")
        self.masks(0x00030003, 0x03000300)
        e(f"""v_lshl_add_u32 v{T}, v0, 1, s{S_PRIV}
        v_lshrrev_b32 v{T+1}, 4, v0
        v_lshl_add_u32 v{T+1}, v{T+1}, 5, s{S_PRIV}""")
        e.wait(st)
        e(f"v_mov_b32 v{U+2}, v{U}")
        self.row_red("v_max_f32", U + 2, (1, 2, 4, 8)); self.swap_red("v_max_f32", U + 2, TMP, (16,))
        e(f"v_sub_f32 v{U}, v{U}, v{U+2}\nv_exp_f32 v{U}, v{U}\nv_mul_f32 v{U+1}, v{U}, v{U+1}")
        self.row_red("v_add_f32", U + 1, (1, 2, 4, 8)); self.swap_red("v_add_f32", U + 1, TMP, (16,))
        e(f"""v_rcp_f32 v{U+1}, v{U+1}
        v_mul_f32 v{U}, v{U}, v{U+1}
        v_cvt_pk_bf16_f32 v{U}, v{U}, v{U}
        ds_write_b16 v{T}, v{U}
        s_waitcnt lgkmcnt(0)
        ds_read_b128 {vr(XR,4)}, v{T+1}
        ds_read_b128 {vr(XR+4,4)}, v{T+1} offset:16
        v_lshrrev_b32 v{T}, 5, v0
        v_lshlrev_b32 v{T}, 8, v{T}
        v_and_b32 v{T+1}, 15, v0
        v_lshl_add_u32 v{T}, v{T+1}, 1, v{T}
        v_bfe_u32 v{T+1}, v0, 4, 1
        v_lshl_add_u32 v{T}, v{T+1}, 5, v{T}
        v_add_u32 v{T}, s{S_PRIV}, v{T}
        v_bfe_u32 v{T+1}, v0, 3, 1
        v_lshlrev_b32 v{T+1}, 8, v{T+1}
        v_lshrrev_b32 v{T+2}, 4, v0
        v_lshl_add_u32 v{T+1}, v{T+2}, 6, v{T+1}
        v_bfe_u32 v{T+2}, v0, 2, 1
        v_lshl_add_u32 v{T+1}, v{T+2}, 5, v{T+1}
        v_add_u32 v{T+1}, s{S_PRIV}, v{T+1}
        s_waitcnt lgkmcnt(0)""")
        self.rws256(16, XR, GA, AC0, BLO, BHI, PA, g)
        self.pt("lat")
        e(f"""v_cvt_pk_bf16_f32 v{U}, v{AC0}, v{AC0+1}
        v_cvt_pk_bf16_f32 v{U+1}, v{AC0+2}, v{AC0+3}
        ds_write_b16 v{T}, v{U} offset:256
        ds_write_b16_d16_hi v{T}, v{U} offset:320
        ds_write_b16 v{T}, v{U+1} offset:384
        ds_write_b16_d16_hi v{T}, v{U+1} offset:448
        s_waitcnt lgkmcnt(0)
        ds_read_b128 {vr(XR,4)}, v{T+1} offset:256
        ds_read_b128 {vr(XR+4,4)}, v{T+1} offset:272""")
        for z in (0, 1, 4, 5, 8, 9): e(f"v_mov_b32 v{PA+z}, 0")
        e(f"""v_bfe_u32 v{T}, v0, 3, 1
        v_lshlrev_b32 v{T}, 9, v{T}
        v_lshrrev_b32 v{T+1}, 5, v0
        v_lshl_add_u32 v{T}, v{T+1}, 8, v{T}
        v_and_b32 v{T+1}, 7, v0
        v_lshl_add_u32 v{T}, v{T+1}, 5, v{T}
        s_lshl_b32 s10, s{S_LW}, 10
        v_add_u32 v{T}, s10, v{T}
        s_waitcnt lgkmcnt(0)""")
        self.rws128(16, XR, UV, AC0, AC1, SEL, PA)
        RED = 16384
        e(f"""s_mov_b32 exec_lo, 0xff0000ff
        s_mov_b32 exec_hi, 0xff0000ff
        ds_write_b128 v{T}, {vr(AC0,4)} offset:{RED}
        ds_write_b128 v{T}, {vr(AC1,4)} offset:{RED+16}
        s_mov_b64 exec, -1
        v_lshlrev_b32 v{T}, 3, v0""")
        self.masks(0x03030303, 0x03030303)
        self.core_selectors()
        e("s_waitcnt lgkmcnt(0)\ns_barrier")
        for i in range(8): e(f"ds_read_b64 {vr(U+2*i,2)}, v{T} offset:{RED+512*i}")
        e("s_waitcnt lgkmcnt(0)")
        self.tree("v_add_f32", U, 8, 2)
        self.pt("ctx")
        A_CW, A_CR, A_MB = self.A_CW, self.A_CR, self.A_MB
        e(f"""v_cvt_pk_bf16_f32 v{U}, v{U}, v{U+1}
        ds_write_b32 v{A_CW}, v{U} offset:1024
        L_CORE1:
        ds_read_b128 {vr(XR,4)}, v{A_CR} offset:1024
        ds_read_b128 {vr(XR+4,4)}, v{A_CR} offset:1040
        L_CORE2:
        s_lshl_b32 s10, s{S_LW}, 15
        s_lshl_b32 s11, s4, 7
        s_add_u32 s10, s10, s11
        s_lshl_b32 s11, s{S_PART}, 18
        s_add_u32 s10, s10, s11
        s_add_u32 s10, s10, {MB+MB_2}
        s_waitcnt lgkmcnt(0)""")
        self.pt("cx")
        CS = 208
        for t in range(16):
            a = PA + 2 + 4 * (t & 1)
            for j in range(4): e(f"v_perm_b32 v{a+j}, v{XR+(t>>1)}, v{XR+(t>>1)}, v{CS+4*(t&1)+j}")
            e(f"v_mfma_f32_16x16x32_bf16 {vr(AC0,4)}, {vr(a,4)}, {vr(W+4*t,4)}, {vr(AC0,4) if t else 0}")
        e(f"""v_cvt_pk_bf16_f32 v{AC1}, v{AC0}, v{AC0+1}
        v_cvt_pk_bf16_f32 v{AC1+1}, v{AC0+2}, v{AC0+3}
        v_min_u32 v{AC1}, -2, v{AC1}
        v_min_u32 v{AC1+1}, -2, v{AC1+1}
        v_mov_b32 v{AC1+2}, v{AC1}
        v_mov_b32 v{AC1+3}, v{AC1+1}
        v_permlane16_swap_b32 v{AC1}, v{AC1+2}
        v_permlane16_swap_b32 v{AC1+1}, v{AC1+3}
        s_mov_b32 exec_lo, 0xffff
        s_mov_b32 exec_hi, 0xffff
        buffer_store_dwordx4 {vr(AC1,4)}, v{A_MB}, {srd(SRD_WS)}, s10 offen sc1 ; c:MB2
        s_mov_b64 exec, -1""")
        self.pt("core")
        e(f"""s_lshr_b32 s10, s4, 4
        s_cmp_lg_u32 s10, s{S_PART}
        s_cbranch_scc1 L_FINDONE
        s_cmp_lg_u32 s{S_LW}, 0
        s_cbranch_scc1 L_FINDONE
        s_add_u32 s10, s{S_MBJ}, {MB_2}
        s_add_u32 s11, s10, 4096
        v_mov_b32 v{T}, 0x3f803f80
        v_perm_b32 v{PA+2}, v{T}, v{T}, v{SEL}
        v_perm_b32 v{PA+3}, v{T}, v{T}, v{SEL+1}""")
        for z in (0, 1, 4, 5): e(f"v_mov_b32 v{PA+z}, 0")
        def use(k, i):
            g = G + 32 * k + 4 * i
            e(f"v_mfma_f32_16x16x32_bf16 {vr(AC0,4)}, {vr(PA+2,4)}, {vr(g,4)}, {vr(AC0,4) if i else 0}")
            e(f"v_mfma_f32_16x16x32_bf16 {vr(AC1,4)}, {vr(PA,4)}, {vr(g,4)}, {vr(AC1,4) if i else 0}")
            if i == 0: e(f"v_max3_u32 v{T}, v{g}, v{g+1}, v{g+2}\nv_max_u32 v{T}, v{T}, v{g+3}")
            else: e(f"v_max3_u32 v{T}, v{T}, v{g}, v{g+1}\nv_max3_u32 v{T}, v{T}, v{g+2}, v{g+3}")
        self.poll_loop(8, lambda k, i: e(f"buffer_load_dwordx4 {vr(G+32*k+4*i,4)}, v{VL}, {srd(SRD_WS)}, s{10+(i>>2)} offen offset:{1024*(i&3)} sc1 ; c:LMB"),
                       use, lambda: e(f"v_cmp_eq_u32 vcc, -1, v{T}"), self.o["ps2"], "fr")
        self.pt("fp")
        for r in range(8): self.row_red("v_add_f32", AC0 + r, (8,))
        for r in range(4): e(f"v_cvt_pk_bf16_f32 v{U+r}, v{AC0+2*r}, v{AC0+2*r+1}")
        e(f"""s_bfe_u32 s10, s4, 0x10003
        s_lshl_b32 s10, s10, 11
        s_and_b32 s11, s4, 7
        s_lshl_b32 s11, s11, 7
        s_add_u32 s10, s10, s11
        s_lshl_b32 s11, s{S_PART}, 10
        s_add_u32 s10, s10, s11
        s_mov_b64 exec, 0xff
        buffer_store_dwordx4 {vr(U,4)}, v{VL}, {srd(SRD_E)}, s10 offen
        s_cmp_lg_u32 s4, 16
        s_cbranch_scc1 L_FINDONE
        s_mov_b64 exec, 1
        v_mov_b32 v{T}, s{TAG}
        s_mov_b32 s10, {EPOCH}
        buffer_store_dword v{T}, off, {srd(SRD_WS)}, s10
        L_FINDONE:""")
        self.pt("fin")
        self.stamp_out(16)
        e("s_endpgm")

    def build(self):
        e = self.e
        e("""s_cmp_ge_u32 s2, 256
        s_cbranch_scc1 L_END
        s_load_dwordx16 s[16:31], s[0:1], 0
        s_load_dwordx8 s[32:39], s[0:1], 64
        s_load_dwordx4 s[40:43], s[0:1], 96
        v_lshrrev_b32 v1, 6, v0
        v_and_b32 v0, 63, v0
        v_readfirstlane_b32 s3, v1
        s_sub_u32 s4, s2, 128""")
        tests = {"P": "s_cmp_lt_u32 s2, 128\ns_cbranch_scc1 L_P", "Q": "s_cmp_ge_u32 s2, 192\ns_cbranch_scc1 L_Q",
                 "L": "s_cmp_ge_u32 s5, 64\ns_cbranch_scc0 L_AL", "C": "s_cmp_lt_u32 s5, 64\ns_cbranch_scc1 L_AC"}
        order = self.o["order"]
        for r in order[1:]:
            if r == "L": e("s_cmp_ge_u32 s3, 4\ns_cselect_b32 s5, s4, 64")
            if r == "C": e("s_cmp_lt_u32 s3, 4\ns_cselect_b32 s5, s4, 64")
            e(tests[r])
        fn = {"P": lambda: self.bside("P"), "Q": lambda: (self.bside("Q"), self.a_tail()), "L": self.a_loader, "C": self.a_compute}
        marks = {}
        for r in order:
            i0 = len(e.L); fn[r](); marks[r] = (i0, len(e.L))
        if self.o["pack"]:
            heads, bodies = [], []
            for r in order:
                seg = e.L[marks[r][0]:marks[r][1]]
                k = seg.index("; split")
                heads += seg[:k] + [f"s_branch L_{r}_REST"]
                bodies += [f"L_{r}_REST:"] + seg[k + 1:]
            e.L = e.L[:marks[order[0]][0]] + heads + bodies
        e.L = [l for l in e.L if l != "; split"]
        e("L_END:\ns_endpgm")
        if "nobar" in self.x:
            i0 = e.L.index("L_P:"); i1 = e.L.index("L_AC:")
            e.L = e.L[:i0] + [l for l in e.L[i0:i1] if l != "s_barrier"] + e.L[i1:]
        if "nomath" in self.x:
            i0 = e.L.index("L_P:"); i1 = e.L.index("L_AC:")
            e.L = e.L[:i0] + [l for l in e.L[i0:i1] if not l.startswith(("v_mfma", "v_exp", "v_fma", "v_perm_", "v_add_f32", "v_mov_b32_dpp", "v_cvt", "v_max3"))] + e.L[i1:]
        if "noph1" in self.x:
            i0 = e.L.index("L_P:"); i1 = e.L.index("L_AC:")
            e.L = e.L[:i0] + [l for l in e.L[i0:i1] if not (l.startswith("buffer_load") and (srd(SRD_D) in l or srd(SRD_E) in l))] + e.L[i1:]
        for x in self.x:
            if x.startswith("c:"): e.L = [l for l in e.L if not l.endswith("; " + x)]
        for x in self.x:
            if x.startswith("m:"):
                tag, m = x[2:].split("=")
                e.L = [l.replace(" sc1", " " + m.replace("+", " ")) if l.endswith("; c:" + tag) else l for l in e.L]
            if x.startswith("allst="):
                m = x[6:].replace("+", " ")
                e.L = [l.replace(" sc1", " " + m if m else "") if l.startswith("buffer_store") else l for l in e.L]
        if "nost" in self.x:
            e.L = [l for l in e.L if not (l.startswith("buffer_store") and "sc1" in l)]
        if "nosc" in self.x:
            e.L = [l for l in e.L if not (l.startswith("buffer_load") and "sc1" in l)]
        if "noA" in self.x:
            for lab in ("L_AL:", "L_AC:"):
                i = e.L.index(lab); e.L.insert(i + 1, "s_endpgm")
        if "link" in self.x:
            e.L = [l.replace(", v1, s[48:51]", ", v2, s[48:51]") if l.startswith("buffer_load_dwordx4") and "lds" not in l else l for l in e.L]
        if self.o["wb"]: e.L = [l.replace(" sc1", "") if l.endswith("; c:AP") else l for l in e.L]
        body, npad = fix_hazards(e.L)
        out = [HEADER.rstrip(), "; @launch grid=(256,1,1) block=(512,1,1) lds=163840",
               '.amdgcn_target "amdgcn-amd-amdhsa--gfx950"', ".text", f".globl {NAME}_kernel", ".p2align 8",
               f".type {NAME}_kernel,@function", f"{NAME}_kernel:"]
        out += [("" if l.endswith(":") else "    ") + l for l in body]
        out += ['.section .rodata,"a"', ".p2align 6", f".amdhsa_kernel {NAME}_kernel",
                "  .amdhsa_next_free_vgpr 256", "  .amdhsa_next_free_sgpr 102", "  .amdhsa_accum_offset 256",
                "  .amdhsa_group_segment_fixed_size 0", "  .amdhsa_kernarg_size 112", "  .amdhsa_user_sgpr_count 2",
                "  .amdhsa_user_sgpr_kernarg_segment_ptr 1", "  .amdhsa_system_sgpr_workgroup_id_x 1",
                ".end_amdhsa_kernel"]
        return "\n".join(out) + "\n", npad

PTS = {"P": "start,xq,st,qf,q,k,v,end", "Q": "start,fin,w,free,end,core,apf,ctx",
       "AC": "start,fin,qd,b1,b9,core,pv,bo", "AL": "start,bar0,bar3,iss4,dma,x,y,end"}

if __name__ == "__main__":
    ap = argparse.ArgumentParser()
    ap.add_argument("out"); ap.add_argument("--stamps", action="store_true")
    ap.add_argument("--pts", action="append", default=[]); ap.add_argument("--x", default="")
    for k, v in DEFAULTS.items(): ap.add_argument("--" + k, type=int, default=v)
    ap.add_argument("--order", default="LPQC"); DEFAULTS["order"] = 0
    a = ap.parse_args()
    pts = {}
    if a.stamps:
        pts = {k: v.split(",") for k, v in PTS.items()}
        for p in a.pts:
            r, l = p.split(":"); pts[r] = l.split(",")
    s, npad = Gen({k: getattr(a, k) for k in DEFAULTS}, pts, set(a.x.split(","))).build()
    open(a.out, "w").write(s)
    print("wrote", a.out, "lines", s.count("\n"), "pads", npad)
```

```python
import sys, math, struct, argparse
from asmlib import Emit, fix_hazards

NAME = "concat_heads__compressed_kv_cla__gqa_block_cached__decode"
HEADER = open("cdna_kernels/%s.s.ref" % NAME).read().split("; Override launch")[0]

QBP = 0x000000
QAP = 0x020000
AST = 0x040000
BS  = 0x048000
FB  = 0x050000
EPOCH = 0x060000
FA  = 0x080000
MB  = 0x100000
MB_2 = 8192
AP  = 0x200000
XQ  = 0x400000
WS_USED = 0x500000
STAMPS = 0x800000

SCALE = math.log2(math.e) / math.sqrt(128.0)
def f2u(x): return struct.unpack("<I", struct.pack("<f", x))[0]

SRD_WS, SRD_A, SRD_B, SRD_C, SRD_D, SRD_E, SRD_F, SRD_G = 44, 48, 52, 56, 60, 64, 68, 96
P_AX, P_CKV, P_AWQ, P_WUK, P_WUV, P_AWO, P_BX, P_BK, P_BV, P_BWQ, P_BWO, P_OUT, P_DBG, P_WS = range(16, 44, 2)
S_SC, S_SPIN = 15, 14
MASK0 = 72
TAG = 94
ST0 = 16
SPIN = 20000
X = 131072

def srd(n): return f"s[{n}:{n+3}]"
def vr(a, n): return f"v[{a}:{a+n-1}]" if n > 1 else f"v{a}"

DEFAULTS = dict(fw=2, rep=8, late=0, f1=1, pe=0, gate=-1, ps1=2, ps2=2, clr_at=-1, cpf=1, t1x=2, il=1, pack=0, pa=6, pb=6, qa=4, qat=3, fat=2, uvb=0, pv=0, pvw=4, pvwait=1, pvwin=4, ne=4, we=2, sl_bo=0, kq=12, cu=2, wsb=0, wt1=8, pf1=1, pfwin=6, stw=0, sl_ap=4, sl_xq0=0, sl_xq=2, sl_qa=4, sl_bs=8, np=6, uv0=16, wa=0, wb=0, wc=0, pf=4, pfw=0, pre_q=0, uv1=8, a0=3, t2w=0, wq1=2, kq1=4, sleep=0, pre_p=0, w1=2, kf_p=0, kf_q=12, wq0=8, wk=8, wt=10, wv=8)

class Gen:
    def __init__(self, opt, pts, x):
        self.o = opt; self.alt = pts; self.x = x; self.role = None
        self.stamps = bool(pts)
        self.e = Emit()

    def mk_srd(self, d, p, size):
        self.e(f"s_mov_b32 s{d}, s{p}\ns_mov_b32 s{d+1}, s{p+1}\ns_mov_b32 s{d+2}, {size:#x}\ns_mov_b32 s{d+3}, 0x20000")

    def pt(self, name, role=None):
        sel = self.alt.get(role or self.role)
        if sel and name in sel:
            i = sel.index(name); self.e(f"s_memrealtime s[{80+2*i}:{81+2*i}]" if i < 7 else "s_memrealtime s[100:101]")

    def stamp_out(self, t):
        if not self.stamps: return
        e = self.e
        if "dbg" in self.x:
            skip = e.lab("L_skip")
            e(f"""s_waitcnt lgkmcnt(0)
            s_and_b32 s10, s2, 127
            s_lshl_b32 s10, s10, 3
            s_add_u32 s10, s10, s3
            s_cmp_lg_u32 s10, 0
            s_cbranch_scc1 {skip}
            s_lshr_b32 s10, s2, 7
            s_lshl_b32 s10, s10, 5
            s_mov_b64 exec, 1""")
            for x in self.x:
                if x.startswith("hold"):
                    top = e.lab("L_hold")
                    e(f"""{top}:
                    s_memrealtime s[12:13]
                    s_waitcnt lgkmcnt(0)
                    s_sub_u32 s12, s12, s80
                    s_cmp_lt_u32 s12, {int(x[4:])}
                    s_cbranch_scc1 {top}""")
            self.mk_srd(SRD_A, P_DBG, 256)
            regs = [80, 82, 84, 86, 88, 90, 92, 100]
            for k in range(8):
                e(f"s_sub_u32 s11, s{regs[k]}, {'s80' if k else '0'}\nv_mov_b32 v{t+k}, s11")
            e(f"buffer_store_dwordx4 v[{t}:{t+3}], off, {srd(SRD_A)}, s10\nbuffer_store_dwordx4 v[{t+4}:{t+7}], off, {srd(SRD_A)}, s10 offset:16")
            e(f"{skip}:")
            return
        e("s_waitcnt lgkmcnt(0)\ns_mov_b64 exec, 1")
        e(f"s_lshl_b32 s4, s2, 3\ns_add_u32 s4, s4, s3\ns_lshl_b32 s4, s4, 6\ns_add_u32 s4, s4, {STAMPS}")
        e(f"s_mov_b32 s{SRD_WS+2}, 0x1000000")
        regs = list(range(80, 94)) + [100, 101]
        for i in range(4):
            for k in range(4): e(f"v_mov_b32 v{t+k}, s{regs[4*i+k]}")
            e(f"buffer_store_dwordx4 v[{t}:{t+3}], off, {srd(SRD_WS)}, s4 offset:{16*i}")
            e("s_nop 2")

    def selectors(self, sel, base_lo, base_hi, tmp):
        self.e(f"""v_and_b32 v{tmp}, 1, v0
        v_cmp_eq_u32 vcc, 1, v{tmp}
        v_mov_b32 v{base_lo}, 0x0c0c0100
        v_mov_b32 v{tmp}, 0x01000c0c
        v_cndmask_b32 v{base_lo}, v{base_lo}, v{tmp}, vcc
        v_add_u32 v{base_hi}, 0x0202, v{base_lo}
        v_mov_b32 v{tmp}, 0x03020c0c
        v_cndmask_b32 v{base_hi}, v{base_hi}, v{tmp}, vcc
        v_and_b32 v{tmp}, 2, v0
        v_cmp_eq_u32 vcc, 0, v{tmp}
        v_mov_b32 v{tmp}, 0x0c0c0c0c
        v_cndmask_b32 v{sel}, v{tmp}, v{base_lo}, vcc
        v_cndmask_b32 v{sel+1}, v{base_lo}, v{tmp}, vcc
        v_cndmask_b32 v{sel+2}, v{tmp}, v{base_hi}, vcc
        v_cndmask_b32 v{sel+3}, v{base_hi}, v{tmp}, vcc""")

    def masks(self, lo, hi):
        for j in range(4):
            self.e(f"s_mov_b32 s{MASK0+2*j}, {(lo << (2*j)):#x}\ns_mov_b32 s{MASK0+2*j+1}, {(hi << (2*j)):#x}")

    def rws256(self, nload, x, w, acc, base_lo, base_hi, t0, waits=None):
        e = self.e
        for t in range(nload):
            a = t0 + 2 + 4 * (t & 1)
            e(f"v_perm_b32 v{t0}, v{x+(t>>1)}, v{x+(t>>1)}, v{base_hi if t & 1 else base_lo}")
            for j in range(4): e(f"v_cndmask_b32 v{a+j}, 0, v{t0}, s[{MASK0+2*j}:{MASK0+2*j+1}]")
            if waits: e.wait(waits[t])
            e(f"v_mfma_f32_16x16x32_bf16 {vr(acc,4)}, {vr(a,4)}, {vr(w+4*t,4)}, {vr(acc,4) if t else 0}")

    def rws128(self, nload, x, w, acc0, acc1, sel, pa):
        e = self.e
        for t in range(nload):
            p = pa + 2 + 4 * (t & 1)
            sa, sb = (sel + 2, sel + 3) if t & 1 else (sel, sel + 1)
            e(f"v_perm_b32 v{p}, v{x+(t>>1)}, v{x+(t>>1)}, v{sa}\nv_perm_b32 v{p+1}, v{x+(t>>1)}, v{x+(t>>1)}, v{sb}")
            e(f"v_mfma_f32_16x16x32_bf16 {vr(acc0,4)}, {vr(p,4)}, {vr(w+4*t,4)}, {vr(acc0,4) if t else 0}")
            e(f"v_mfma_f32_16x16x32_bf16 {vr(acc1,4)}, {vr(p-2,4)}, {vr(w+4*t,4)}, {vr(acc1,4) if t else 0}")

    def quad_sum(self, ds):
        for r in range(4):
            for d in ds:
                q = f"quad_perm:[{r},{r},{r},{r}] row_mask:0xf bank_mask:0xf"
                self.e(f"v_mov_b32_dpp v{d}, v{d} {q}" if r == 0 else f"v_add_f32_dpp v{d}, v{d+r}, v{d} {q}")

    def swap_red(self, op, x, t, which):
        for s in which:
            self.e(f"v_mov_b32 v{t}, v{x}\nv_permlane{s}_swap_b32 v{x}, v{t}\n{op} v{x}, v{x}, v{t}")

    def row_red(self, op, x, rots):
        for r in rots:
            self.e(f"{op}_dpp v{x}, v{x}, v{x} row_ror:{r} row_mask:0xf bank_mask:0xf")

    def tree(self, op, base, n, width):
        st = 1
        while st < n:
            for i in range(0, n, 2 * st):
                for r in range(width): self.e(f"{op} v{base+width*i+r}, v{base+width*i+r}, v{base+width*(i+st)+r}")
            st *= 2

    def max3_chain(self, op, dst, regs):
        regs = list(regs)
        self.e(f"v_max3_{op} v{dst}, v{regs[0]}, v{regs[1]}, v{regs[2]}")
        regs = regs[3:]
        while len(regs) >= 2:
            self.e(f"v_max3_{op} v{dst}, v{dst}, v{regs[0]}, v{regs[1]}"); regs = regs[2:]
        if regs: self.e(f"v_max_{op} v{dst}, v{dst}, v{regs[0]}")

    def spin_tail(self, top, done, sleep=0):
        if sleep: self.e(f"s_sleep {sleep}")
        if "nodep" in self.x: self.e(f"{done}:"); return
        self.e(f"s_sub_u32 s{S_SPIN}, s{S_SPIN}, 1\ns_cbranch_scc0 {top}\n{done}:")

    def lds_wait(self, addr, t, n=4):
        e = self.e
        top, done = e.lab("L_spin"), e.lab("L_ok")
        e(f"""v_mov_b32 v{t}, {addr}
        s_mov_b32 s{S_SPIN}, {SPIN * 20}
        {top}:
        ds_read_b32 v{t+1}, v{t}
        s_waitcnt lgkmcnt(0)
        v_cmp_ne_u32 vcc, {n}, v{t+1}
        s_cbranch_vccz {done}""")
        self.spin_tail(top, done, 2)

    def lds_inc(self, addr, t):
        self.e(f"""v_mov_b32 v{t}, {addr}
        v_mov_b32 v{t+1}, 1
        s_mov_b64 exec, 1
        ds_add_u32 v{t}, v{t+1}
        s_mov_b64 exec, -1""")

    def poll_loop(self, n, load, use, test, sets, name):
        e = self.e
        top, done = e.lab("L_spin"), e.lab("L_ok")
        if sets == 2:
            for i in range(n): load(0, i)
        e(f"{top}:")
        for k in range(sets):
            self.pt(name)
            for i in range(n): load((k + 1) % sets, i)
            for i in range(n):
                e(f"s_waitcnt vmcnt({(sets - 1) * n + n - 1 - i})"); use(k, i)
            test()
            e(f"s_cbranch_vccz {done}")
        self.spin_tail(top, done)

    def only_wave(self, w):
        skip = self.e.lab("L_skip")
        self.e(f"s_cmp_lg_u32 s3, {w}\ns_cbranch_scc1 {skip}")
        return skip

    def epoch_load(self):
        if self.o["wsb"]: self.e(f"s_add_u32 s{P_WS}, s{P_WS}, {self.o['wsb'] << 20:#x}\ns_addc_u32 s{P_WS+1}, s{P_WS+1}, 0")
        self.e(f"s_load_dword s{TAG}, s[{P_WS}:{P_WS+1}], {EPOCH:#x}")

    def epoch_tag(self):
        self.e(f"s_waitcnt lgkmcnt(0)\ns_add_u32 s{TAG}, s{TAG}, 1\ns_xor_b32 s{TAG+1}, s{TAG}, 0x5bd1e995")

    def post_b(self, sg, sslot, t):
        self.e(f"""v_mov_b32 v{t}, s{TAG}
        v_mov_b32 v{t+1}, s{TAG+1}
        s_lshl_b32 s10, s{sg}, 7
        s_lshl_b32 s11, s{sslot}, 3
        s_add_u32 s10, s10, s11
        s_add_u32 s10, s10, {FB}
        s_mov_b64 exec, 1
        buffer_store_dwordx2 {vr(t,2)}, off, {srd(SRD_WS)}, s10 sc1 ; c:FLAG
        s_mov_b64 exec, -1""")

    def post_a(self, sid, off, t):
        self.e(f"""v_lshlrev_b32 v{t+2}, 11, v0
        v_mov_b32 v{t}, s{TAG}
        v_mov_b32 v{t+1}, s{TAG+1}
        s_lshl_b32 s10, s{sid}, 3
        s_add_u32 s10, s10, {FA+off}
        s_mov_b64 exec, {(1 << self.o["rep"]) - 1}
        buffer_store_dwordx2 {vr(t,2)}, v{t+2}, {srd(SRD_WS)}, s10 offen sc1 ; c:FLAG
        s_mov_b64 exec, -1""")

    def poll_a(self, off, t):
        e = self.e
        top, done = e.lab("L_spin"), e.lab("L_ok")
        e(f"""s_and_b32 s10, s4, 7
        s_lshl_b32 s10, s10, 11
        s_add_u32 s10, s10, {FA+off}
        v_lshlrev_b32 v{t+2}, 3, v0
        {top}:
        buffer_load_dwordx2 {vr(t,2)}, v{t+2}, {srd(SRD_WS)}, s10 offen sc1
        s_waitcnt vmcnt(0)
        v_cmp_ne_u64 vcc, s[{TAG}:{TAG+1}], {vr(t,2)}
        s_cbranch_vccz {done}""")
        self.spin_tail(top, done, self.o["sl_ap"])

    def tag_check(self, g, n, t):
        e = self.e
        for i in range(n):
            e(f"v_xor_b32 v{t+2}, s{TAG+1}, v{g+2*i}\nv_xor_b32 v{g+2*i+1}, s{TAG}, v{g+2*i+1}")
            e(f"v_and_or_b32 v{g+2*i+1}, v{t+2}, v{t+1}, v{g+2*i+1}")
        e(f"v_or_b32 v{t}, v{g+1}, v{g+3}")
        for i in range(2, n, 2): e(f"v_or3_b32 v{t}, v{t}, v{g+2*i+1}, v{g+2*i+3}")

    def bside(self, kind):
        e = self.e; e.vm = 0; o = self.o
        tp = 4 * (o["pa"] + o["pb"])
        pa, pb = (o["pa"], o["pb"]) if kind == "P" else (o["qa"], (128 - 2 * tp) // 4 - o["qa"])
        n = max(pa, pb)
        VK, VL, TMP, SEL, BLO, BHI, QF, AC0, AC1, LS, MX = 1, 2, 3, 4, 8, 9, 10, 14, 18, 22, 23
        T = 24; D0 = 32; KR = 36; VR = 132; PA = 228; U = 246
        L_T1, L_Q, L_MAX, L_L, L_RED, L_T2, L_QA, L_W = 0, 8192, 9216, 9344, 16384, 32768, 40960, 32768
        S_KV, S_VV, S_G, S_B, S_SP = 5, 6, 7, 8, 9
        L_F = 9472
        e(f"L_{kind}:")
        self.role = kind
        if "no" + kind in self.x: e("s_endpgm")
        self.pt("start")
        e(f"""v_and_b32 v{T}, 3, v0
        v_lshrrev_b32 v{TMP}, 4, v0
        v_lshlrev_b32 v{T+1}, 6, v{TMP}
        v_lshl_add_u32 v{T+1}, v{T}, 4, v{T+1}
        v_bfe_u32 v{T}, v0, 2, 2
        v_lshl_add_u32 v{VK}, v{T}, 8, v{T+1}
        v_lshlrev_b32 v{VL}, 4, v0""")
        if kind == "P":
            e(f"""v_lshl_add_u32 v{T+6}, v{T}, 15, v{T+1}
            v_and_b32 v{T+4}, 15, v0
            v_lshlrev_b32 v{T+4}, 4, v{T+4}
            v_lshl_add_u32 v{T+4}, v{TMP}, 15, v{T+4}
            v_bfe_u32 v{T+5}, v0, 3, 1
            v_lshlrev_b32 v{T+5}, 10, v{T+5}
            v_lshl_add_u32 v{T+5}, v{TMP}, 3, v{T+5}
            s_lshr_b32 s10, s2, 3
            s_and_b32 s{S_SP}, s2, 7
            s_mul_i32 s11, s{S_SP}, {tp}
            s_lshr_b32 s13, s2, 2
            s_and_b32 s4, s2, 3""")
        else:
            e(f"""s_sub_u32 s4, s2, 192
            s_lshr_b32 s10, s4, 2
            s_and_b32 s4, s4, 3
            s_add_u32 s{S_SP}, s4, 8
            s_mul_i32 s11, s4, {4*(pa+pb)}
            s_add_u32 s11, s11, {8*tp}
            v_and_b32 v{T+4}, 15, v0
            v_lshlrev_b32 v{T+4}, 4, v{T+4}
            v_lshl_add_u32 v{T+4}, v{TMP}, 16, v{T+4}
            v_bfe_u32 v{T+5}, v0, 3, 1
            v_lshlrev_b32 v{T+5}, 10, v{T+5}
            v_lshl_add_u32 v{T+5}, v{TMP}, 4, v{T+5}
            s_sub_u32 s13, s2, 192
            s_and_b32 s4, s13, 1
            s_lshr_b32 s13, s13, 1
            s_xor_b32 s13, s13, {o["t1x"]}""")
        il = o["il"]
        il2 = (il >> 1) & (1 if kind == "P" else 2) and pa == pb
        if not il:
            e(f"""s_mul_i32 s12, s3, {pb}
            s_min_u32 s{S_G}, s3, 4
            s_mul_i32 s{S_G}, s{S_G}, {pa-pb}
            s_add_u32 s12, s12, s{S_G}
            s_add_u32 s11, s11, s12
            s_lshl_b32 s11, s11, 12""")
        else:
            if il2:
                e(f"s_lshl_b32 s11, s{S_SP}, 13")
                if kind == "Q": e(f"s_add_u32 s11, s11, {8 * tp * 4096 - 8 * 8192}")
            else: e("s_lshl_b32 s11, s11, 12")
            e("s_lshl_b32 s12, s3, 10\ns_add_u32 s11, s11, s12")
        e(f"""s_and_b32 s{S_G}, s10, 7
        s_lshr_b32 s{S_B}, s10, 3
        s_lshl_b32 s10, s10, 21
        s_add_u32 s{S_KV}, s10, s11
        s_mov_b32 s{S_VV}, s{S_KV}""")
        sh = 7 if kind == "P" else 8
        e(f"""s_lshl_b32 s10, s4, {sh}
        s_lshl_b32 s11, s3, {sh-3}
        s_add_u32 s10, s10, s11
        s_lshl_b32 s11, s10, 1
        s_lshl_b32 s10, s10, 13
        s_lshl_b32 s12, s13, 8
        s_add_u32 s10, s10, s12""")
        e("s_waitcnt lgkmcnt(0)")
        self.epoch_load()
        tags = []; cur = [min(pa, pb)]
        def issue(upto):
            n = cur[0]
            while len(tags) < min(upto, 8 * n):
                x = len(tags); k = x % (4 * n); j = k & 3
                r, v, sd, so = (KR, VK, SRD_A, S_KV) if x < 4 * n else (VR, VL, SRD_B, S_VV)
                tags.append(e.mem(f"buffer_load_dwordx4 {vr(r+4*k,4)}, v{v}, {srd(sd)}, s{so} offen offset:{0 if il else 1024*j} nt"))
                if not il:
                    if j == 3: e(f"s_add_u32 s{so}, s{so}, 4096")
                else:
                    nm = 4 * min(pa, pb)
                    step = 8192 if k < nm - 1 else 4096
                    if k == nm - 1: step = 8192 - (4096 if pb > pa else 0)
                    if il2: step = 65536 if kind == "P" else 32768
                    if k < 4 * n - 1: e(f"s_add_u32 s{so}, s{so}, {step}")
        seen = set()
        def land(k):
            e.wait(tags[k])
            if k not in seen: seen.add(k); self.pt(f"l{k}")
        def slide(k0, k1, w):
            for k in range(k0, k1):
                land(k); issue(k + 1 + w)
        self.mk_srd(SRD_WS, P_WS, WS_USED)
        if kind == "P":
            self.mk_srd(SRD_C, P_AX, 2048); self.mk_srd(SRD_D, P_AWQ, 4 << 20)
            e(f"""v_lshlrev_b32 v{LS}, 15, v{TMP}
            v_and_b32 v{U+5}, 15, v0
            v_lshl_add_u32 v{LS}, v{U+5}, 4, v{LS}""")
            skip = self.only_wave(7)
            e(f"""s_lshl_b32 s12, s2, 8
            s_add_u32 s12, s12, {QAP}""")
            for r in range(4): e(f"v_mov_b32 v{U+r}, -1")
            e(f"""s_mov_b32 exec_hi, 0
            buffer_store_dwordx4 {vr(U,4)}, v{LS}, {srd(SRD_WS)}, s12 offen sc1 ; c:QCLR
            s_mov_b64 exec, -1
            {skip}:""")
            def four(slot, voff, s):
                e("s_mov_b32 s12, s10")
                r = []
                for t in range(4):
                    r.append(e.mem(f"buffer_load_dwordx4 {vr(VR+4*(slot+t),4)}, v{voff}, {srd(s)}, s12 offen nt"))
                    if t < 3: e("s_add_u32 s12, s12, 8192")
                return r
            xa = e.mem(f"buffer_load_dwordx2 {vr(T,2)}, v{T+5}, {srd(SRD_C)}, s11 offen")
            w2 = four(0, T + 4, SRD_D)
            self.mk_srd(SRD_E, P_WUK, 4 << 20)
            if o["t2w"] >= 0: e.wait(w2[o["t2w"]])
            w3 = four(4, T + 6, SRD_E)
        else:
            self.mk_srd(SRD_C, P_BX, 2048); self.mk_srd(SRD_D, P_BWQ, 4 << 20)
            xb = e.mem(f"buffer_load_dwordx4 {vr(T,4)}, v{T+5}, {srd(SRD_C)}, s11 offen")
            w1 = []
            for t in range(8):
                if t >= o["wt1"]: e.wait(w1[t - o["wt1"]])
                w1.append(e.mem(f"buffer_load_dwordx4 {vr(VR+4*t,4)}, v{T+4}, {srd(SRD_D)}, s10 offen nt"))
                if t < 7: e("s_add_u32 s10, s10, 8192")
            self.mk_srd(SRD_E, P_OUT, 4096)
            e(f"""v_lshrrev_b32 v{T+6}, 3, v0
            v_lshlrev_b32 v{T+6}, 17, v{T+6}
            v_and_b32 v{U}, 7, v0
            v_lshl_add_u32 v{T+6}, v{U}, 4, v{T+6}
            v_and_b32 v{U}, 15, v0
            v_lshlrev_b32 v{U}, 4, v{U}
            v_lshl_add_u32 v{U}, v{TMP}, 14, v{U}
            s_sub_u32 s68, s2, 192
            s_cmp_lt_u32 s3, 4
            s_cselect_b32 s{SRD_C}, s{P_WUV}, s{P_AWO}
            s_cselect_b32 s{SRD_C+1}, s{P_WUV+1}, s{P_AWO+1}
            s_mov_b32 s{SRD_C+2}, 0x400000
            s_movk_i32 s69, 1024
            s_cselect_b32 s69, 8192, s69
            s_cselect_b64 vcc, -1, 0
            v_cndmask_b32 v{T+6}, v{U}, v{T+6}, vcc
            s_lshl_b32 s10, s3, 20
            s_lshl_b32 s11, s68, 7
            s_add_u32 s10, s10, s11
            s_lshl_b32 s11, s68, 16
            s_and_b32 s12, s3, 3
            s_lshl_b32 s12, s12, 8
            s_add_u32 s11, s11, s12
            s_cmp_lt_u32 s3, 4
            s_cselect_b32 s70, s10, s11
            s_lshl_b32 s71, s3, 14
            s_add_u32 s71, s71, {L_W}""")
            wd = []
            def wdma(upto, w):
                while len(wd) < upto:
                    e(f"s_waitcnt vmcnt({w-1})\ns_mov_b32 m0, s71")
                    wd.append(e.mem(f"buffer_load_dwordx4 v{T+6}, {srd(SRD_C)}, s70 offen nt lds"))
                    e("s_add_u32 s70, s70, s69\ns_add_u32 s71, s71, 1024")
        self.mk_srd(SRD_A, P_BK, 32 << 20); self.mk_srd(SRD_B, P_BV, 32 << 20)
        e.L.append("; split")
        if kind == "P": issue(o["pre_p"])
        e(f"s_mov_b32 s{S_SC}, {f2u(SCALE):#x}\ns_mov_b32 s{S_SPIN}, {SPIN}")
        self.selectors(SEL, BLO, BHI, TMP)
        e(f"v_mov_b32 v{AC0}, 0\nv_mov_b32 v{AC0+1}, 0\nds_write_b64 v{AC0}, {vr(AC0,2)} offset:{L_F}")
        self.epoch_tag()
        if kind == "P":
            self.masks(0x03030303, 0x03030303)
            skip = self.only_wave(7)
            e(f"s_waitcnt vmcnt({e.vm})")
            self.post_a(2, 0, U)
            e(f"{skip}:")
            e(f"s_lshl_b32 s10, s3, 10\nv_add_u32 v{T+7}, s10, v{VL}")
            e.wait(xa)
            self.rws256(4, T, VR, AC0, BLO, BHI, PA, w2)
            self.pt("t2")
            e(f"ds_write_b128 v{T+7}, {vr(AC0,4)} offset:{L_T2}\ns_waitcnt lgkmcnt(0)\ns_barrier")
            XT = VR + 48
            skip = self.only_wave(0)
            for i in range(8): e(f"ds_read_b128 {vr(XT+4*i,4)}, v{VL} offset:{L_T2+1024*i}")
            e(f"""v_mov_b32 v{U+1}, s{TAG+1}
            s_lshl_b32 s10, s2, 11
            s_add_u32 s10, s10, {XQ}
            s_mov_b32 s11, 0xffffff00
            s_waitcnt lgkmcnt(0)""")
            self.tree("v_add_f32", XT, 8, 4)
            for r in range(4): e(f"v_bfi_b32 v{XT+8+2*r}, s11, v{XT+r}, v{U+1}\nv_mov_b32 v{XT+9+2*r}, s{TAG}")
            e(f"buffer_store_dwordx4 {vr(XT+8,4)}, v{VL}, {srd(SRD_WS)}, s10 offen sc1 ; c:XQ")
            e(f"buffer_store_dwordx4 {vr(XT+12,4)}, v{VL}, {srd(SRD_WS)}, s10 offen offset:1024 sc1 ; c:XQ")
            e(f"{skip}:")
            self.pt("xq")
            for i in range(o["pe"]):
                if i >= o["we"]: e(f"s_waitcnt vmcnt({o['we']-1})")
                issue(len(tags) + 1)
            skip, other = e.lab("L_skip"), e.lab("L_other")
            top, done = e.lab("L_spin"), e.lab("L_ok")
            e(f"""s_lshr_b32 s10, s3, 1
            s_cmp_lg_u32 s10, 2
            s_cbranch_scc1 {other}
            s_lshl_b32 s10, s13, 13
            s_and_b32 s12, s3, 1
            s_lshl_b32 s11, s12, 10
            s_add_u32 s10, s10, s11
            s_add_u32 s10, s10, {XQ}
            s_add_u32 s11, s10, 4096
            v_mov_b32 v{U+1}, 0xff
            v_lshrrev_b32 v{U+3}, 5, v0
            v_lshlrev_b32 v{U+3}, 8, v{U+3}
            v_and_b32 v{U+4}, 15, v0
            v_lshl_add_u32 v{U+3}, v{U+4}, 4, v{U+3}
            v_bfe_u32 v{U+4}, v0, 4, 1
            v_lshl_add_u32 v{U+3}, v{U+4}, 3, v{U+3}
            s_lshl_b32 s12, s12, 2
            v_add_u32 v{U+3}, s12, v{U+3}""")
            if o["sl_xq0"]: e(f"s_sleep {o['sl_xq0']}")
            e(f"{top}:")
            for i in range(4): e(f"buffer_load_dwordx4 {vr(VR+4*i,4)}, v{VL}, {srd(SRD_WS)}, s{10+(i>>1)} offen offset:{2048*(i&1)} sc1 ; c:LXQ")
            e("s_waitcnt vmcnt(0)")
            self.tag_check(VR, 8, U)
            e(f"v_cmp_ne_u32 vcc, 0, v{U}\ns_cbranch_vccz {done}")
            self.spin_tail(top, done, o["sl_xq"])
            for i in range(8): e(f"v_and_b32 v{VR+2*i}, 0xffffff00, v{VR+2*i}")
            e(f"""v_add_f32 v{VR}, v{VR}, v{VR+4}
            v_add_f32 v{VR+2}, v{VR+2}, v{VR+6}
            v_add_f32 v{VR+8}, v{VR+8}, v{VR+12}
            v_add_f32 v{VR+10}, v{VR+10}, v{VR+14}
            v_add_f32 v{VR}, v{VR}, v{VR+8}
            v_add_f32 v{VR+2}, v{VR+2}, v{VR+10}
            v_cvt_pk_bf16_f32 v{VR}, v{VR}, v{VR+2}
            ds_write_b32 v{U+3}, v{VR} offset:{L_QA}""")
            ne, we = o["ne"], o["we"]
            vm0, L0 = e.vm, len(e.L)
            issue(len(tags) + ne)
            body = e.L[L0:]
            e(f"s_branch {skip}\n{other}:")
            cnt = 0
            for l in body:
                if l.startswith("buffer_load"):
                    if cnt >= we: e(f"s_waitcnt vmcnt({we-1})")
                    cnt += 1
                e(l)
            e(f"""{skip}:
            v_bfe_u32 v{U}, v0, 2, 1
            v_lshlrev_b32 v{U}, 8, v{U}
            v_and_b32 v{U+2}, 0xf0, v{VK}
            v_add_u32 v{U+1}, v{U}, v{U+2}
            v_lshrrev_b32 v{U+2}, 4, v0
            v_lshl_add_u32 v{U}, v{U+2}, 3, v{U}
            s_lshl_b32 s11, s3, 5
            v_add_u32 v{U}, s11, v{U}
            s_waitcnt lgkmcnt(0)
            s_barrier
            ds_read_b128 {vr(QF,4)}, v{U+1} offset:{L_QA}
            s_waitcnt lgkmcnt(0)""")
            self.pt("qa")
            e.wait(w3[3])
            for t in range(4): e(f"v_mfma_f32_16x16x32_bf16 {vr(VR+4*t,4)}, {vr(VR+16+4*t,4)}, {vr(QF,4)}, 0")
            self.quad_sum([VR + 4 * t for t in range(4)])
            e(f"""v_cvt_pk_bf16_f32 v{AC0}, v{VR}, v{VR+4}
            v_cvt_pk_bf16_f32 v{AC0+1}, v{VR+8}, v{VR+12}
            s_mov_b32 exec_lo, 0x00110011
            s_mov_b32 exec_hi, 0x00110011
            ds_write_b64 v{U}, {vr(AC0,2)} offset:{L_QA+512}
            s_mov_b64 exec, -1
            s_waitcnt lgkmcnt(0)
            s_barrier""")
            skip = self.only_wave(7)
            e(f"""ds_read_b128 {vr(AC0,4)}, v{VL} offset:{L_QA+512}
            s_lshl_b32 s10, s2, 8
            s_add_u32 s10, s10, {QAP}
            s_waitcnt lgkmcnt(0)""")
            for r in range(4): e(f"v_min_u32 v{AC0+r}, -2, v{AC0+r}")
            e(f"""s_mov_b32 exec_hi, 0
            buffer_store_dwordx4 {vr(AC0,4)}, v{LS}, {srd(SRD_WS)}, s10 offen sc1 ; c:QAP
            s_mov_b64 exec, -1""")
            if o["stw"] in (1, 2):
                self.pt("st7"); e("s_waitcnt vmcnt(0)"); self.pt("ack7")
            e(f"{skip}:")
            if o["stw"] > 1: e("s_barrier")
            self.pt("st")
            issue(o["w1"])
        else:
            self.masks(0x03030303, 0x03030303)
            e(f"s_lshl_b32 s10, s3, 10\nv_add_u32 v{T+7}, s10, v{VL}")
            e.wait(xb)
            self.rws256(8, T, VR, AC1, BLO, BHI, PA, w1)
            e(f"ds_write_b128 v{T+7}, {vr(AC1,4)} offset:{L_T1}")
            wdma(o["wq1"], 16)
            e("s_waitcnt lgkmcnt(0)\ns_barrier")
            self.pt("t1")
            skip = self.only_wave(0)
            for i in range(8): e(f"ds_read_b128 {vr(VR+4*i,4)}, v{VL} offset:{L_T1+1024*i}")
            e(f"""v_lshrrev_b32 v{U}, 5, v0
            v_lshlrev_b32 v{U}, 14, v{U}
            v_and_b32 v{U+1}, 15, v0
            v_lshl_add_u32 v{U}, v{U+1}, 5, v{U}
            v_bfe_u32 v{U+1}, v0, 4, 1
            v_lshl_add_u32 v{U}, v{U+1}, 4, v{U}
            s_lshl_b32 s10, s4, 15
            s_lshl_b32 s11, s13, 9
            s_add_u32 s10, s10, s11
            s_add_u32 s10, s10, {QBP}
            s_sub_u32 s12, s2, 192
            s_lshr_b32 s13, s12, 3
            s_and_b32 s12, s12, 7
            s_waitcnt lgkmcnt(0)""")
            self.tree("v_add_f32", VR, 8, 4)
            e(f"buffer_store_dwordx4 {vr(VR,4)}, v{U}, {srd(SRD_WS)}, s10 offen sc1\ns_waitcnt vmcnt(0)")
            self.post_b(13, 12, U)
            e(f"{skip}:")
        variants = [pa] if pa == pb else [pa, pb]
        if kind == "Q":
            wdma(16, o["wq1"])
            self.pt("w")
        if len(variants) > 1: e(f"s_cmp_ge_u32 s3, 4\ns_cbranch_scc1 L_{kind}_B")
        tags0, vm0 = list(tags), e.vm
        for vi, nv in enumerate(variants):
            if vi: e(f"L_{kind}_B:")
            n = nv; cur[0] = nv; tags[:] = tags0; e.vm = vm0; seen.clear()
            kf, wearly = (o["kf_p"], o["w1"]) if kind == "P" else (o["kf_q"], o["wq0"])
            if kind == "Q":
                for k in range(wearly):
                    e(f"s_waitcnt vmcnt({wearly-1})"); issue(k + 1)
                slide(0, kf, wearly)
            else:
                slide(0, kf, wearly)
            e(f"""s_cmp_eq_u32 s3, 0
            s_cselect_b32 s13, 0, 0x40000000
            s_lshl_b32 s12, s{S_G}, 7
            s_add_u32 s12, s12, {FB}
            s_add_u32 s12, s12, s13
            v_lshlrev_b32 v{T+2}, 3, v0
            s_mov_b64 exec, 0xffff""")
            k1 = len(tags)
            fl = e.mem(f"buffer_load_dwordx2 {vr(T,2)}, v{T+2}, {srd(SRD_WS)}, s12 offen sc1 ; c:LFB")
            e("s_mov_b64 exec, -1")
            issue(kf + o["wk"])
            slide(kf, k1, o["wk"])
            e(f"""s_lshl_b32 s10, s{S_B}, 14
            s_lshl_b32 s11, s{S_G}, 11
            s_add_u32 s10, s10, s11
            s_add_u32 s10, s10, {QBP}
            s_add_u32 s10, s10, s13
            s_add_u32 s11, s10, 32768
            v_lshlrev_b32 v{TMP}, 5, v0""")
            e.wait(fl)
            top, done = e.lab("L_spin"), e.lab("L_ok")
            e(f"""s_cmp_lg_u32 s3, 0
            s_cbranch_scc1 {done}
            s_mov_b64 exec, 0xffff
            {top}:
            v_cmp_ne_u64 vcc, s[{TAG}:{TAG+1}], {vr(T,2)}
            s_cbranch_vccz {done}
            buffer_load_dwordx2 {vr(T,2)}, v{T+2}, {srd(SRD_WS)}, s12 offen sc1 ; c:LFB
            s_waitcnt vmcnt(0)""")
            self.spin_tail(top, done, o["sleep"])
            e("s_mov_b64 exec, -1")
            self.pt("qf")
            k2 = len(tags)
            QG = PA
            for k in range(4):
                qg = e.mem(f"buffer_load_dwordx4 {vr(QG+4*k,4)}, v{TMP}, {srd(SRD_WS)}, s{10+(k>>1)} offen offset:{16*(k&1)} sc1 ; c:LQB")
            k3 = min(k2, 4 * n)
            slide(k1, k3, o["wk"])
            skip = self.only_wave(0)
            e.wait(qg)
            for r in range(8): e(f"v_add_f32 v{QG+r}, v{QG+r}, v{QG+8+r}")
            for r in range(4): e(f"v_cvt_pk_bf16_f32 v{QG+r}, v{QG+2*r}, v{QG+2*r+1}")
            e(f"""v_mov_b32 v{T}, 0
            v_mov_b32 v{T+1}, 1
            ds_write_b128 v{VL}, {vr(QG,4)} offset:{L_Q}
            s_waitcnt lgkmcnt(0)
            ds_write_b32 v{T}, v{T+1} offset:{L_F}
            {skip}:""")
            kq = max(k3, min(o["kq"], 4 * n))
            slide(k3, kq, o["wk"])
            top, done = e.lab("L_spin"), e.lab("L_ok")
            e(f"""v_mov_b32 v{T}, 0
            s_mov_b32 s{S_SPIN}, {SPIN * 20}
            {top}:
            ds_read_b32 v{T+1}, v{T} offset:{L_F}
            ds_read_b128 {vr(QF,4)}, v{VK} offset:{L_Q}
            s_waitcnt lgkmcnt(0)
            v_cmp_eq_u32 vcc, 0, v{T+1}
            s_cbranch_vccz {done}""")
            self.spin_tail(top, done, 1)
            e(f"v_bfe_u32 v{T+5}, v0, 2, 2\nv_lshlrev_b32 v{T+5}, 5, v{T+5}\ns_lshl_b32 s10, s3, 2\nv_add_u32 v{T+6}, s10, v{T+5}")
            for z in range(0, 18, 4): e(f"v_mov_b32 v{PA+z}, 0\nv_mov_b32 v{PA+z+1}, 0")
            self.pt("q")
            SK = lambda k: D0 + 4 * k
            ahead = kq
            for i in range(n + 1):
                if i < n:
                    for j in range(4):
                        k = 4 * i + j
                        if k >= kq:
                            land(k); issue(k + 1 + (o["wk"] if k < 4 * n - 4 else o["wt"]))
                        elif j == 0 and o["cu"]:
                            issue(len(tags) + o["cu"])
                        e(f"v_mfma_f32_16x16x32_bf16 {vr(SK(k),4)}, {vr(KR+4*k,4)}, {vr(QF,4)}, 0")
                if i > 0:
                    ks = [SK(4 * (i - 1) + j) for j in range(4)]
                    self.quad_sum(ks)
                    self.max3_chain("f32", MX, ks if i == 1 else [MX] + ks)
            issue(4 * n + o["wt"])
            self.pt("k")
            self.swap_red("v_max_f32", MX, TMP, (16, 32))
            e(f"v_mul_f32 v{MX}, s{S_SC}, v{MX}\nds_write_b32 v{T+6}, v{MX} offset:{L_MAX}")
            for k in range(4 * n): e(f"v_fma_f32 v{SK(k)}, v{SK(k)}, s{S_SC}, -v{MX}")
            for k in range(4 * n): e(f"v_exp_f32 v{SK(k)}, v{SK(k)}")
            e(f"v_add_f32 v{LS}, v{SK(0)}, v{SK(1)}")
            for k in range(2, 4 * n): e(f"v_add_f32 v{LS}, v{LS}, v{SK(k)}")
            for k in range(0, 4 * n, 2): e(f"v_cvt_pk_bf16_f32 v{SK(k)}, v{SK(k)}, v{SK(k+1)}")
            self.swap_red("v_add_f32", LS, TMP, (16, 32))
            skip = e.lab("L_skip")
            e(f"""ds_write_b32 v{T+6}, v{LS} offset:{L_L}
            v_mov_b32 v{T}, 0
            v_mov_b32 v{T+1}, 1
            s_mov_b64 exec, 1
            ds_add_rtn_u32 v{T+2}, v{T}, v{T+1} offset:{L_F+4}
            s_waitcnt lgkmcnt(0)
            v_cmp_eq_u32 vcc, 7, v{T+2}
            s_mov_b64 exec, -1
            s_cbranch_vccz {skip}
            v_and_b32 v{T}, 3, v0
            v_lshlrev_b32 v{T}, 5, v{T}
            ds_read_b128 {vr(U,4)}, v{T} offset:{L_MAX}
            ds_read_b128 {vr(U+4,4)}, v{T} offset:{L_MAX+16}
            ds_read_b128 {vr(QF,4)}, v{T} offset:{L_L}
            ds_read_b128 {vr(AC0,4)}, v{T} offset:{L_L+16}
            v_mov_b32 v{T+3}, s{TAG+1}
            s_lshl_b32 s10, s{S_B}, 3
            s_add_u32 s10, s10, s{S_G}
            s_mul_i32 s10, s10, 12
            s_add_u32 s10, s10, s{S_SP}
            s_lshl_b32 s10, s10, 6
            s_add_u32 s10, s10, {BS}
            s_mov_b32 s11, 0xffffff00
            s_waitcnt lgkmcnt(0)""")
            self.max3_chain("f32", T + 2, range(U, U + 8))
            for r in range(8): e(f"v_sub_f32 v{U+r}, v{U+r}, v{T+2}")
            for r in range(8): e(f"v_exp_f32 v{U+r}, v{U+r}")
            e(f"v_mul_f32 v{T+1}, v{U}, v{QF}")
            for r in range(1, 8): e(f"v_fmac_f32 v{T+1}, v{U+r}, v{QF+r}")
            e(f"""v_bfi_b32 v{U+2}, s11, v{T+1}, v{T+3}
            v_bfi_b32 v{U}, s11, v{T+2}, v{T+3}
            v_mov_b32 v{U+1}, s{TAG}
            v_mov_b32 v{U+3}, s{TAG}
            s_mov_b64 exec, 15
            buffer_store_dwordx4 {vr(U,4)}, v{VL}, {srd(SRD_WS)}, s10 offen sc1 ; c:BST
            s_mov_b64 exec, -1
            {skip}:""")
            self.pt("p")
            for i in range(n):
                for j in range(4):
                    k = 4 * i + j; pk = SK(k & ~1); p = PA + 2 + 4 * j
                    sa, sb = (SEL + 2, SEL + 3) if k & 1 else (SEL, SEL + 1)
                    e(f"v_perm_b32 v{p}, v{pk}, v{pk}, v{sa}\nv_perm_b32 v{p+1}, v{pk}, v{pk}, v{sb}")
                if i == n - 1:
                    top, done = e.lab("L_spin"), e.lab("L_ok")
                    e(f"""v_mov_b32 v{T}, 0
                    v_lshrrev_b32 v{T+1}, 4, v0
                    v_lshlrev_b32 v{T+1}, 5, v{T+1}
                    s_lshl_b32 s10, s3, 2
                    v_add_u32 v{T+2}, s10, v{T+1}
                    {top}:
                    ds_read_b32 v{T+3}, v{T} offset:{L_F+4}
                    ds_read_b128 {vr(U,4)}, v{T+1} offset:{L_MAX}
                    ds_read_b128 {vr(U+4,4)}, v{T+1} offset:{L_MAX+16}
                    ds_read_b32 v{LS}, v{T+2} offset:{L_MAX}
                    s_waitcnt lgkmcnt(0)
                    v_cmp_ne_u32 vcc, 8, v{T+3}
                    s_cbranch_vccz {done}""")
                    self.spin_tail(top, done, 1)
                    self.max3_chain("f32", MX, range(U, U + 8))
                    e(f"v_sub_f32 v{LS}, v{LS}, v{MX}\nv_exp_f32 v{LS}, v{LS}")
                    e(f"""s_lshl_b32 s10, s3, 11
                    v_lshl_add_u32 v{T}, v0, 5, s10
                    s_lshl_b32 s10, s3, 8
                    v_and_b32 v{T+2}, 31, v0
                    v_lshl_add_u32 v{T+1}, v{T+2}, 3, s10
                    v_lshlrev_b32 v{T+2}, 2, v0
                    s_lshl_b32 s10, s{S_G}, 2
                    s_lshr_b32 s11, s3, 1
                    s_add_u32 s10, s10, s11
                    s_lshl_b32 s10, s10, 15
                    s_mul_i32 s11, s{S_B}, 24
                    s_add_u32 s11, s11, s{S_SP}
                    s_add_u32 s11, s11, s{S_SP}
                    s_and_b32 s12, s3, 1
                    s_add_u32 s11, s11, s12
                    s_lshl_b32 s11, s11, 7
                    s_add_u32 s10, s10, s11
                    s_add_u32 s10, s10, {MB}""")
                for j in range(4):
                    k = 4 * i + j; p = PA + 2 + 4 * j
                    land(4 * n + k)
                    issue(4 * n + k + 1 + o["wv"])
                    e(f"v_mfma_f32_16x16x32_bf16 {vr(AC0,4)}, {vr(p,4)}, {vr(VR+4*k,4)}, {vr(AC0,4) if k else 0}")
                    e(f"v_mfma_f32_16x16x32_bf16 {vr(AC1,4)}, {vr(p-2,4)}, {vr(VR+4*k,4)}, {vr(AC1,4) if k else 0}")
            self.pt("v")
            for r in range(8): e(f"v_mul_f32 v{AC0+r}, v{AC0+r}, v{LS}")
            e(f"""ds_write_b128 v{T}, {vr(AC0,4)} offset:{L_RED}
            ds_write_b128 v{T}, {vr(AC1,4)} offset:{L_RED+16}
            s_waitcnt lgkmcnt(0)
            s_barrier""")
            for i in range(8): e(f"ds_read_b64 {vr(KR+2*i,2)}, v{T+1} offset:{L_RED+2048*i}")
            for i in range(0, 8, 2):
                e(f"s_waitcnt lgkmcnt({6-i})\nv_add_f32 v{KR+2*i}, v{KR+2*i}, v{KR+2*i+2}\nv_add_f32 v{KR+2*i+1}, v{KR+2*i+1}, v{KR+2*i+3}")
                if i == 2: e(f"v_add_f32 v{KR}, v{KR}, v{KR+4}\nv_add_f32 v{KR+1}, v{KR+1}, v{KR+5}")
                if i == 4: e(f"v_add_f32 v{KR}, v{KR}, v{KR+8}\nv_add_f32 v{KR+1}, v{KR+1}, v{KR+9}")
            e(f"""v_add_f32 v{KR}, v{KR}, v{KR+12}
            v_add_f32 v{KR+1}, v{KR+1}, v{KR+13}
            v_cvt_pk_bf16_f32 v{KR}, v{KR}, v{KR+1}
            v_min_u32 v{KR}, -2, v{KR}
            s_mov_b32 exec_hi, 0
            buffer_store_dword v{KR}, v{T+2}, {srd(SRD_WS)}, s10 offen sc1 ; c:MB1""")
            self.pt("end")
            if kind == "Q": e("s_mov_b64 exec, -1\ns_mov_b32 s4, s68\ns_cmp_lt_u32 s3, 4\ns_cbranch_scc1 L_ATAIL")
            self.stamp_out(100)
            e("s_endpgm")

    X_MAX, X_P, X_L, X_CNT = 0, 2048, 20480, 24576

    def row_addr(self, dst, t):
        self.e(f"""v_and_b32 v{t}, 3, v0
        v_lshlrev_b32 v{t}, 2, v{t}
        v_bfe_u32 v{t+1}, v0, 2, 2
        v_or_b32 v{t}, v{t}, v{t+1}
        v_lshrrev_b32 v{t+1}, 5, v0
        v_xor_b32 v{t}, v{t}, v{t+1}
        v_lshlrev_b32 v{t}, 4, v{t}
        v_and_b32 v{t+1}, 31, v0
        v_lshl_add_u32 v{dst}, v{t+1}, 10, v{t}""")

    X_AL = 22528

    def qk(self, rnd, S, FR, A, TA, creg):
        e = self.e
        seq = [(i, 2 * qp + q) for qp in range(2) for i in range(8) for q in range(2)]
        ks = lambda o: seq[o][0] + 8 * seq[o][1]
        qreg = lambda o: FR + 4 * o if o < 4 else creg(ks(o - 4))
        dst = qreg if rnd == 0 else (lambda o: FR + 16 + 4 * (o & 3))
        tg = {}
        e.ds_reset()
        def rd(o):
            if o & 1 == 0: e(f"v_xor_b32 v{TA+((o>>1)&1)}, {seq[o][0] << 5}, v{A}")
            tg[o] = e.ds(f"ds_read_b128 {vr(dst(o),4)}, v{TA+((o>>1)&1)} offset:{256*seq[o][1]}")
        for o in range(3): rd(o)
        for o in range(32):
            if o + 3 < 32: rd(o + 3)
            e.dswait(tg[o])
            c = creg(ks(o)) if rnd == 0 else dst(o)
            e(f"v_mfma_f32_32x32x16_bf16 {vr(S,16)}, {vr(c,4)}, {vr(qreg(o),4)}, {vr(S,16) if o else 0}")
            if rnd == 0 and o == 16: e("s_barrier")

    def stat_addr(self, d, t):
        self.e(f"""v_and_b32 v{d}, 15, v0
        v_lshlrev_b32 v{d}, 5, v{d}
        v_bfe_u32 v{t}, v0, 4, 1
        v_lshl_add_u32 v{d}, v{t}, 10, v{d}
        v_add_u32 v{d}, {X}, v{d}""")

    def softmax(self, rnd, S, P, M, LS, T, lw):
        e = self.e
        self.max3_chain("f32", T, range(S, S + 16))
        self.swap_red("v_max_f32", T, T + 1, (32,))
        e(f"""ds_write_b32 v{T+3}, v{T} offset:{self.X_MAX+16*rnd}
        s_waitcnt lgkmcnt(0)
        s_barrier
        ds_read_b128 {vr(P,4)}, v{T+2} offset:{self.X_MAX+16*rnd}""")
        if rnd == 0:
            e(f"""v_mov_b32 v{T}, {X+self.X_CNT}
            v_mov_b32 v{T+1}, 0
            ds_write2_b32 v{T}, v{T+1}, v{T+1} offset0:0 offset1:16
            ds_write2_b32 v{T}, v{T+1}, v{T+1} offset0:32 offset1:48""")
        e(f"""s_lshl_b32 s10, s{lw}, 11
        s_add_u32 s10, s10, {X+self.X_P+8192*rnd}
        v_lshl_add_u32 v{T+1}, v0, 4, s10
        s_waitcnt lgkmcnt(0)""")
        if rnd == 0:
            self.max3_chain("f32", M, range(P, P + 4))
            e(f"v_mul_f32 v{M}, s{S_SC}, v{M}")
        else:
            self.max3_chain("f32", T, range(P, P + 4))
            e(f"""v_mul_f32 v{T}, s{S_SC}, v{T}
            v_max_f32 v{T}, v{T}, v{M}
            v_sub_f32 v{M}, v{M}, v{T}
            v_exp_f32 v{P}, v{M}
            v_mov_b32 v{M}, v{T}
            v_mul_f32 v{LS}, v{LS}, v{P}""")
        for r in range(16): e(f"v_fma_f32 v{S+r}, v{S+r}, s{S_SC}, -v{M}")
        for r in range(16): e(f"v_exp_f32 v{S+r}, v{S+r}")
        for r in range(8): e(f"v_cvt_pk_bf16_f32 v{P+r}, v{S+2*r}, v{S+2*r+1}")
        e(f"ds_write_b128 v{T+1}, {vr(P,4)}\nds_write_b128 v{T+1}, {vr(P+4,4)} offset:1024")
        if rnd == 0:
            e("s_waitcnt lgkmcnt(0)\ns_barrier")
            self.tree("v_add_f32", S, 16, 1)
            e(f"v_mov_b32 v{LS}, v{S}")
        else:
            self.tree("v_add_f32", S, 16, 1)
            e(f"v_add_f32 v{S}, v{S}, v{LS}")
            self.swap_red("v_add_f32", S, T, (32,))
            e(f"ds_write_b32 v{T+3}, v{S} offset:{self.X_L}\ns_waitcnt lgkmcnt(0)\ns_barrier")

    VL, VW, TMP, SEL, BLO, BHI, T, U, W, G, WUV, AC0, AC1, PA, XR = 1, 2, 3, 4, 8, 9, 10, 16, 32, 96, 160, 224, 228, 232, 244
    A_CW, A_CR, A_MB = 13, 14, 15
    S_LW, S_PART, S_PRIV, S_MBJ = 5, 6, 7, 8

    def vw_addr(self):
        VW, T = self.VW, self.T
        self.e(f"""v_lshrrev_b32 v{VW}, 4, v0
        v_lshlrev_b32 v{VW}, 14, v{VW}
        v_and_b32 v{T+1}, 15, v0
        v_lshl_add_u32 v{VW}, v{T+1}, 4, v{VW}""")

    def tail_setup(self):
        VL, T, A_CW, A_CR, A_MB = self.VL, self.T, self.A_CW, self.A_CR, self.A_MB
        self.e(f"""v_lshlrev_b32 v{VL}, 4, v0
        s_lshl_b32 s{self.S_PRIV}, s3, 11
        s_lshl_b32 s{self.S_MBJ}, s4, 14
        s_add_u32 s{self.S_MBJ}, s{self.S_MBJ}, {MB}
        v_lshl_add_u32 v{A_CW}, v0, 2, s{self.S_PRIV}
        v_bfe_u32 v{A_CR}, v0, 3, 1
        v_lshlrev_b32 v{A_CR}, 7, v{A_CR}
        v_lshrrev_b32 v{T+1}, 4, v0
        v_lshl_add_u32 v{A_CR}, v{T+1}, 5, v{A_CR}
        v_add_u32 v{A_CR}, s{self.S_PRIV}, v{A_CR}
        v_lshrrev_b32 v{A_MB}, 5, v0
        v_lshlrev_b32 v{A_MB}, 17, v{A_MB}
        v_bfe_u32 v{T+1}, v0, 3, 1
        v_lshl_add_u32 v{A_MB}, v{T+1}, 14, v{A_MB}
        v_and_b32 v{T+1}, 7, v0
        v_lshl_add_u32 v{A_MB}, v{T+1}, 4, v{A_MB}""")
        self.selectors(self.SEL, self.BLO, self.BHI, self.TMP)

    def core_selectors(self):
        e = self.e
        e(f"v_mov_b32 v{self.TMP}, 0x0c0c0c0c")
        for h, base in enumerate((self.BLO, self.BHI)):
            for j in range(4): e(f"v_cndmask_b32 v{208+4*h+j}, v{self.TMP}, v{base}, s[{MASK0+2*j}:{MASK0+2*j+1}]")

    def wload(self, s, t0=0, t1=16):
        e = self.e
        if "now" in self.x or t0 >= t1: return
        e(f"s_lshl_b32 s10, s4, 16\ns_lshl_b32 s11, s{self.S_LW}, 8\ns_add_u32 s10, s10, s11")
        if t0: e(f"s_add_u32 s10, s10, {1024 * t0}")
        for t in range(t0, t1):
            e.mem(f"buffer_load_dwordx4 {vr(self.W+4*t,4)}, v{self.VW}, {srd(s)}, s10 offen offset:{1024*(t&3)} nt")
            if t & 3 == 3: e("s_add_u32 s10, s10, 4096")

    def a_compute(self):
        e = self.e; e.vm = 0
        AC, AT, AQ, M, TA, T = 1, 2, 3, 4, 6, 8
        FR, S, O, PV = 16, 48, 64, 128
        e("L_AC:")
        self.role = "AC"
        self.pt("start")
        if self.o["cpf"]:
            here = e.lab("L_pc")
            e(f"""s_getpc_b64 s[10:11]
            {here}:
            s_sub_u32 s10, s10, {here}-{NAME}_kernel
            s_subb_u32 s11, s11, 0
            s_lshl_b32 s12, s3, 13
            v_lshl_add_u32 v{T+1}, v0, 7, s12""")
            for i in range(self.o["cpf"]):
                e(f"""v_cmp_gt_u32 vcc, L_END-{NAME}_kernel, v{T+1}
                s_and_saveexec_b64 s[12:13], vcc
                s_cbranch_execz L_cpf{i}
                global_load_dword v{254+i}, v{T+1}, s[10:11]
                L_cpf{i}:
                s_mov_b64 exec, -1
                v_add_u32 v{T+1}, 32768, v{T+1}""")
        e.L.append("; split")
        e(f"v_lshlrev_b32 v{T}, 4, v0\ns_waitcnt lgkmcnt(0)")
        self.epoch_load()
        self.mk_srd(SRD_WS, P_WS, WS_USED); self.mk_srd(SRD_D, P_BWO, 4 << 20); self.mk_srd(SRD_E, P_OUT, 4096)
        for r in range(4): e(f"v_mov_b32 v{FR+r}, -1")
        def clears():
            skip = e.lab("L_skip"); two = e.lab("L_two")
            e(f"""s_and_b32 s10, s4, 62
            s_lshl_b32 s10, s10, 14
            s_and_b32 s11, s4, 1
            s_mul_i32 s11, s11, 3072
            s_add_u32 s10, s10, s11
            s_add_u32 s10, s10, {MB}
            s_cmp_eq_u32 s3, 0
            s_cbranch_scc1 {two}
            s_cmp_eq_u32 s3, 1
            s_cbranch_scc1 {skip}
            s_cmp_ge_u32 s4, 32
            s_cbranch_scc1 {skip}
            s_lshl_b32 s10, s4, 14
            s_lshl_b32 s11, s3, 12
            s_add_u32 s10, s10, s11
            s_add_u32 s10, s10, {MB}
            buffer_store_dwordx4 {vr(FR,4)}, v{T}, {srd(SRD_WS)}, s10 offen offset:3072 sc1 ; c:CLR
            {two}:""")
            for i in range(3): e(f"buffer_store_dwordx4 {vr(FR,4)}, v{T}, {srd(SRD_WS)}, s10 offen offset:{1024*i} sc1 ; c:CLR")
            e(f"{skip}:")
        cat = self.o["clr_at"]
        if cat < 0: clears()
        e(f"s_mov_b32 s{S_SC}, {f2u(SCALE):#x}\ns_mov_b32 s{S_SPIN}, {SPIN}")
        self.row_addr(AC, T + 1)
        e(f"""v_add_u32 v{AQ}, {X}, v{AC}
        s_lshl_b32 s10, s3, 15
        v_add_u32 v{AC}, s10, v{AC}
        v_lshrrev_b32 v{T+2}, 5, v0
        v_bfe_u32 v{T+1}, v0, 2, 2
        v_lshl_add_u32 v{T+3}, v{T+2}, 2, v{T+1}
        v_lshlrev_b32 v{AT}, 10, v{T+3}
        v_bfe_u32 v{T+3}, v0, 4, 1
        v_lshlrev_b32 v{T+3}, 1, v{T+3}
        v_bfe_u32 v{T+4}, v0, 1, 1
        v_or_b32 v{T+3}, v{T+3}, v{T+4}
        v_xor_b32 v{T+3}, v{T+3}, v{T+2}
        v_lshl_add_u32 v{T+3}, v{T+1}, 2, v{T+3}
        v_lshl_add_u32 v{AT}, v{T+3}, 4, v{AT}
        v_and_b32 v{T+3}, 1, v0
        v_lshl_add_u32 v{AT}, v{T+3}, 3, v{AT}
        s_lshl_b32 s10, s3, 8
        v_add_u32 v{AT}, s10, v{AT}""")
        self.epoch_tag()
        def tr_addr():
            for k in range(8):
                e(f"v_xor_b32 v{S+k}, {(2*k) << 4}, v{AT}")
                if k & 1: e(f"v_add_u32 v{S+k}, 8192, v{S+k}")
        def tr_step():
            for k in range(8): e(f"v_add_u32 v{S+k}, 65536, v{S+k}")
        def tr_ct(u, ct):
            for hh in range(2):
                last = e.ds(f"ds_read_b64_tr_b16 {vr(PV+16*(u&7)+4*ct+2*hh,2)}, v{S+2*ct+hh} offset:{32768*((u>>1)&1)+16384*(u&1)}")
            return last
        tr_addr()
        e(f"""s_and_b32 s9, s4, {self.o["rep"] - 1}
        s_lshl_b32 s9, s9, 11
        s_add_u32 s9, s9, {FA}
        v_lshlrev_b32 v{FR+10}, 3, v0""")
        def qc_load():
            for i in range(3): e(f"buffer_load_dwordx2 {vr(FR+4+2*i,2)}, v{FR+10}, {srd(SRD_WS)}, s9 offen offset:{512*i} sc1 ; c:LQC")
        def q_load():
            for i in range(8): e(f"buffer_load_dwordx4 {vr(O+4*i,4)}, v{T}, {srd(SRD_WS)}, s{70+(i>>2)} offen offset:{1024*(i&3)} sc1 ; c:LQA")
        e(f"""s_lshr_b32 s70, s4, 5
        s_lshl_b32 s70, s70, 15
        s_lshl_b32 s71, s3, 13
        s_add_u32 s70, s70, s71
        s_add_u32 s70, s70, {QAP}
        s_add_u32 s71, s70, 4096""")
        qat = self.o["qat"]
        def flags():
            top, done = e.lab("L_spin"), e.lab("L_ok")
            e(f"""s_cmp_lg_u32 s3, 0
            s_cbranch_scc1 {done}
            {top}:
            s_waitcnt vmcnt(0)
            v_cmp_ne_u64 vcc, s[{TAG}:{TAG+1}], {vr(FR+4,2)}
            v_cmp_ne_u64 s[12:13], s[{TAG}:{TAG+1}], {vr(FR+6,2)}
            s_or_b64 vcc, vcc, s[12:13]
            v_cmp_ne_u64 s[12:13], s[{TAG}:{TAG+1}], {vr(FR+8,2)}
            s_or_b64 vcc, vcc, s[12:13]
            s_cbranch_vccz {done}""")
            qc_load()
            self.spin_tail(top, done)
        for t in range(4):
            if t == 1: e("s_waitcnt vmcnt(0)")
            e("s_barrier")
            self.pt(f"t{t}")
            if t == 1:
                skip = self.only_wave(0)
                e("s_lshr_b32 s12, s4, 3\ns_and_b32 s13, s4, 7\ns_add_u32 s13, s13, 8")
                self.post_b(12, 13, FR)
                self.post_a(4, 1024, FR + 12)
                e(f"{skip}:")
            if t == self.o["fat"]:
                skip = self.only_wave(0); qc_load(); e(f"{skip}:")
            if t == 2: tr_step()
            e.ds_reset()
            for u in (2 * t, 2 * t + 1):
                for ct in range(4): tr_ct(u, ct)
            e("s_waitcnt lgkmcnt(0)")
        if self.o["late"]: e("s_barrier")
        flags()
        e("s_barrier")
        self.pt("half")
        q_load()
        e(f"""s_lshl_b32 s12, s3, 13
        s_add_u32 s12, s12, {X}
        s_and_b32 s13, s3, 1
        s_lshl_b32 s13, s13, 5
        v_xor_b32 v{T+1}, s13, v{T}
        v_add_u32 v{T+1}, s12, v{T+1}""")
        top, done = e.lab("L_spin"), e.lab("L_ok")
        e(f"{top}:\ns_waitcnt vmcnt(0)")
        self.max3_chain("u32", T + 2, range(O, O + 16)); self.max3_chain("u32", T + 3, range(O + 16, O + 32))
        e(f"v_max_u32 v{T+2}, v{T+2}, v{T+3}\nv_cmp_eq_u32 vcc, -1, v{T+2}\ns_cbranch_vccz {done}")
        self.pt("qr")
        q_load()
        self.spin_tail(top, done)
        self.pt("qd")
        for i in range(8):
            sw = ((i & 3) << 2) | (i >> 2)
            e(f"v_xor_b32 v{TA+(i&1)}, {sw << 4}, v{T+1}\nds_write_b128 v{TA+(i&1)}, {vr(O+4*i,4)} offset:{1024*i}")
        e("s_waitcnt lgkmcnt(0)\ns_barrier")
        self.pt("b1")
        e(f"v_add_u32 v{T}, {X+self.X_P}, v{T}")
        self.stat_addr(T + 3, T + 1)
        e(f"""s_lshl_b32 s10, s3, 7
        s_add_u32 s10, s10, {X+self.X_AL}
        v_and_b32 v{T+1}, 31, v0
        v_lshl_add_u32 v{AQ}, v{T+1}, 2, s10
        v_lshrrev_b32 v{T+1}, 5, v0
        v_lshl_add_u32 v{AC}, v{T+1}, 4, s10""")
        tr_addr()
        def pv(rnd):
            e.ds_reset()
            pt_ = [e.ds(f"ds_read_b128 {vr(FR+4*u,4)}, v{T} offset:{8192*rnd+1024*u}") for u in range(8)]
            for u in range(8):
                e.dswait(pt_[u])
                for ct in range(4):
                    e(f"v_mfma_f32_32x32x16_bf16 {vr(O+16*ct,16)}, {vr(FR+4*u,4)}, {vr(PV+16*u+4*ct,4)}, {vr(O+16*ct,16) if u or rnd else 0}")
        e("s_barrier\ns_barrier\ns_barrier")
        self.pt("bp0")
        pv(0)
        e("s_barrier")
        self.pt("bd")
        e.ds_reset()
        for u in range(8):
            if u == 4: tr_step()
            for ct in range(4): tr_ct(u, ct)
        e(f"""s_waitcnt lgkmcnt(0)
        s_barrier
        ds_read_b128 {vr(FR,4)}, v{T+3} offset:{self.X_MAX}
        ds_read_b128 {vr(FR+4,4)}, v{T+3} offset:{self.X_MAX+16}
        s_waitcnt lgkmcnt(0)""")
        self.max3_chain("f32", T + 1, range(FR, FR + 4))
        self.max3_chain("f32", M, [T + 1] + list(range(FR + 4, FR + 8)))
        e(f"""v_mul_f32 v{T+1}, s{S_SC}, v{T+1}
        v_mul_f32 v{M}, s{S_SC}, v{M}
        v_sub_f32 v{T+1}, v{T+1}, v{M}
        v_exp_f32 v{T+1}, v{T+1}
        ds_write_b32 v{AQ}, v{T+1}""")
        for q in range(4): e(f"ds_read_b128 {vr(S+4*q,4)}, v{AC} offset:{32*q}")
        e("s_waitcnt lgkmcnt(0)")
        for ct in range(4):
            for r in range(16): e(f"v_mul_f32 v{O+16*ct+r}, v{O+16*ct+r}, v{S+r}")
        e("s_barrier")
        self.pt("bp")
        pv(1)
        self.pt("pv")
        e(f"""v_lshrrev_b32 v{T}, 5, v0
        v_lshlrev_b32 v{T}, 18, v{T}
        v_bfe_u32 v{T+1}, v0, 4, 1
        v_lshl_add_u32 v{T}, v{T+1}, 16, v{T}
        v_and_b32 v{T+1}, 15, v0
        v_lshl_add_u32 v{T}, v{T+1}, 4, v{T}
        s_lshl_b32 s10, s4, 10
        s_lshl_b32 s11, s3, 8
        s_add_u32 s10, s10, s11
        s_add_u32 s10, s10, {AP}""")
        for r in range(16):
            d = FR + 2 * r
            e(f"v_cvt_pk_bf16_f32 v{d}, v{O+r}, v{O+16+r}\nv_cvt_pk_bf16_f32 v{d+1}, v{O+32+r}, v{O+48+r}")
            if r >= 3 and r & 1:
                k = FR + 2 * (r - 3)
                e(f"v_permlane16_swap_b32 v{k}, v{k+2}\nv_permlane16_swap_b32 v{k+1}, v{k+3}")
                e(f"buffer_store_dwordx4 {vr(k,4)}, v{T}, {srd(SRD_WS)}, s10 offen sc1 ; c:AP")
                e(f"s_add_u32 s10, s10, {65536 * (6 if (r - 3) & 2 else 2)}")
        k = FR + 28
        e(f"v_permlane16_swap_b32 v{k}, v{k+2}\nv_permlane16_swap_b32 v{k+1}, v{k+3}")
        e(f"buffer_store_dwordx4 {vr(k,4)}, v{T}, {srd(SRD_WS)}, s10 offen sc1 ; c:AP")
        skip = self.only_wave(0)
        e(f"""ds_read_b128 {vr(S,4)}, v{T+3} offset:{self.X_L}
        v_lshlrev_b32 v{T+1}, 3, v0
        s_lshl_b32 s10, s4, 8
        s_add_u32 s10, s10, {AST}
        s_waitcnt lgkmcnt(0)""")
        self.tree("v_add_f32", S, 4, 1)
        e(f"""v_mov_b32 v{S+1}, v{S}
        v_mov_b32 v{S}, v{M}
        s_mov_b32 exec_hi, 0
        buffer_store_dwordx2 {vr(S,2)}, v{T+1}, {srd(SRD_WS)}, s10 offen sc1
        s_mov_b64 exec, -1
        {skip}:
        s_mov_b32 s5, s3
        s_mov_b32 s6, 1""")
        skip = e.lab("L_skip")
        e(f"""v_mov_b32 v100, {X+self.X_CNT+64}
        v_mov_b32 v101, 1
        s_mov_b64 exec, 1
        s_waitcnt vmcnt(0)
        ds_add_rtn_u32 v102, v100, v101
        s_waitcnt lgkmcnt(0)
        v_cmp_eq_u32 vcc, 3, v102
        s_mov_b64 exec, -1
        s_cbranch_vccz {skip}""")
        if self.o["wb"]: e("buffer_wbl2 sc1\ns_waitcnt vmcnt(0)")
        self.post_a(4, 1536, 96)
        if self.o["fw"]:
            if self.o["fw"] == 2: e("s_waitcnt vmcnt(0)")
            self.lds_inc(X + self.X_CNT + 64, 100)
        e(f"{skip}:")
        self.pt("b9")
        self.vw_addr()
        self.tail_setup()
        self.masks(0x03030303, 0x03030303)
        self.core_selectors()
        if self.o["fw"]:
            self.lds_wait(X + self.X_CNT + 64, 100, 5)
            self.wload(SRD_D)
        else:
            self.wload(SRD_D)
            self.lds_wait(X + self.X_CNT + 64, 100)
        e(f"""s_mov_b32 s{S_SPIN}, {SPIN * 20}
        v_lshlrev_b32 v{self.A_CW}, 2, v0
        v_subrev_u32 v{self.A_CR}, s{self.S_PRIV}, v{self.A_CR}
        s_cmp_eq_u32 s3, 0
        s_cbranch_scc1 L_BPRE
        v_mov_b32 v100, {X + self.X_CNT + 128}
        s_waitcnt vmcnt(0)""")
        top = e.lab("L_spin")
        XR = self.XR
        e(f"""{top}:
        ds_read_b32 v101, v100
        ds_read_b128 {vr(XR,4)}, v{self.A_CR} offset:1024
        ds_read_b128 {vr(XR+4,4)}, v{self.A_CR} offset:1040
        s_waitcnt lgkmcnt(0)
        v_cmp_ne_u32 vcc, 0, v101
        s_cbranch_vccnz L_CORE2
        s_sub_u32 s{S_SPIN}, s{S_SPIN}, 1
        s_cbranch_scc0 {top}
        s_branch L_CORE2
        L_BPRE:
        s_mov_b32 s{S_SPIN}, {SPIN}
        v_mov_b32 v100, {X + self.X_CNT + 128}
        v_mov_b32 v101, 1""")
        self.b_pre()

    def b_pre(self):
        e = self.e
        T, U, G, A_CW, S_PRIV, S_MBJ = self.T, self.U, 104, self.A_CW, self.S_PRIV, self.S_MBJ
        e(f"""v_bfe_u32 v{T}, v0, 4, 1
        v_mul_u32_u24 v{T}, 6144, v{T}
        v_and_b32 v{T+1}, 15, v0
        v_lshl_add_u32 v{T}, v{T+1}, 6, v{T}
        s_lshr_b32 s10, s4, 3
        s_mul_i32 s10, s10, 768
        s_bfe_u32 s11, s4, 0x20001
        s_lshl_b32 s11, s11, 4
        s_add_u32 s10, s10, s11
        s_add_u32 s10, s10, {BS}
        s_mov_b32 s12, 0x0fff0fff
        s_mov_b32 s13, 0
        v_mov_b32 v{U+5}, 0xff
        s_mov_b64 exec, s[12:13]""")
        top, done = e.lab("L_spin"), e.lab("L_ok")
        e(f"""{top}:
        buffer_load_dwordx4 {vr(U,4)}, v{T}, {srd(SRD_WS)}, s10 offen sc1
        s_waitcnt vmcnt(0)""")
        self.tag_check(U, 2, U + 4)
        e(f"v_cmp_ne_u32 vcc, 0, v{U+4}\ns_cbranch_vccz {done}")
        self.spin_tail(top, done, self.o["sl_bs"])
        e(f"s_mov_b64 exec, -1\nv_and_b32 v{U+1}, 0xffffff00, v{U+2}\nv_and_b32 v{U}, 0xffffff00, v{U}")
        self.pt("bstat")
        e(f"""v_mov_b32 v{U+2}, 0xff800000
        v_cndmask_b32 v{U}, v{U+2}, v{U}, s[12:13]
        v_cndmask_b32 v{U+1}, 0, v{U+1}, s[12:13]
        v_mov_b32 v{U+2}, v{U}""")
        self.row_red("v_max_f32", U + 2, (1, 2, 4, 8))
        e(f"v_sub_f32 v{U}, v{U}, v{U+2}\nv_exp_f32 v{U}, v{U}\nv_mul_f32 v{U+1}, v{U}, v{U+1}")
        self.row_red("v_add_f32", U + 1, (1, 2, 4, 8))
        WA, AC0, XR, BLO, BHI = 160, self.AC0, self.XR, self.BLO, self.BHI
        e(f"""v_rcp_f32 v{U+1}, v{U+1}
        v_mul_f32 v{U}, v{U}, v{U+1}
        v_cvt_pk_bf16_f32 v{U}, v{U}, v{U}
        v_bfe_u32 v{T}, v0, 4, 1
        v_mul_u32_u24 v{T}, 24, v{T}
        v_and_b32 v{T+1}, 15, v0
        v_lshl_add_u32 v{T}, v{T+1}, 1, v{T}
        v_lshrrev_b32 v{T+2}, 4, v0
        v_mul_u32_u24 v{T+2}, 12, v{T+2}
        s_mov_b64 exec, s[12:13]
        ds_write_b16 v{T}, v{U} offset:1536
        s_mov_b64 exec, -1
        ds_read_b32 v{XR}, v{T+2} offset:1536
        ds_read_b32 v{XR+1}, v{T+2} offset:1540
        ds_read_b32 v{XR+2}, v{T+2} offset:1544
        v_lshlrev_b32 v{T}, 7, v{T+2}
        v_lshl_add_u32 v{T}, v{T+1}, 4, v{T}
        s_and_b32 s10, s4, 62
        s_lshl_b32 s10, s10, 14
        s_add_u32 s10, s10, {MB}
        v_lshrrev_b32 v{T+2}, 5, v0
        v_lshlrev_b32 v{T+2}, 7, v{T+2}
        v_and_b32 v{T+1}, 7, v0
        v_lshl_add_u32 v{T+2}, v{T+1}, 4, v{T+2}
        v_bfe_u32 v{T+1}, v0, 4, 1
        v_lshl_add_u32 v{T+2}, v{T+1}, 3, v{T+2}
        s_and_b32 s11, s4, 1
        s_lshl_b32 s11, s11, 3
        s_lshl_b32 s12, 0x00ff00ff, s11
        s_mov_b32 s13, s12
        s_mov_b32 s70, 0x00030003
        s_mov_b32 s71, 0x03000300
        s_waitcnt lgkmcnt(0)""")
        for t in range(6): e(f"v_perm_b32 v{U+t}, v{XR+(t>>1)}, v{XR+(t>>1)}, v{BHI if t & 1 else BLO}")
        for j in range(4):
            for t in range(6): e(f"v_cndmask_b32 v{WA+4*t+j}, 0, v{U+t}, s[70:71]")
            if j < 3: e("s_lshl_b32 s70, s70, 2\ns_lshl_b32 s71, s71, 2")
        def chain(g, t):
            if t == 0: e(f"v_max3_u32 v{T+1}, v{g}, v{g+1}, v{g+2}\nv_max_u32 v{T+1}, v{T+1}, v{g+3}")
            else: e(f"v_max3_u32 v{T+1}, v{T+1}, v{g}, v{g+1}\nv_max3_u32 v{T+1}, v{T+1}, v{g+2}, v{g+3}")
        def use(k, t):
            g = G + 24 * k + 4 * t
            e(f"v_mfma_f32_16x16x32_bf16 {vr(AC0,4)}, {vr(WA+4*t,4)}, {vr(g,4)}, {vr(AC0,4) if t else 0}"); chain(g, t)
        if self.o["gate"] >= 0:
            top, done = e.lab("L_spin"), e.lab("L_ok")
            e(f"{top}:")
            for t in range(6): e(f"buffer_load_dword v{G+t}, v{T}, {srd(SRD_WS)}, s10 offen offset:{256*t} sc1 ; c:LMB")
            e("s_mov_b32 s70, 0")
            for t in range(6):
                e(f"""s_waitcnt vmcnt({5-t})
                v_cmp_eq_u32 vcc, -1, v{G+t}
                s_and_b64 vcc, vcc, s[12:13]
                s_bcnt1_i32_b64 s71, vcc
                s_add_u32 s70, s70, s71""")
            e(f"s_cmp_le_u32 s70, {8 * self.o['gate']}\ns_cbranch_scc1 {done}")
            self.spin_tail(top, done, self.o["sl_bo"])
        self.poll_loop(6, lambda k, t: e(f"buffer_load_dwordx4 {vr(G+24*k+4*t,4)}, v{T}, {srd(SRD_WS)}, s10 offen offset:{256*t} sc1 ; c:LMB"),
                       use, lambda: e(f"v_cmp_eq_u32 vcc, -1, v{T+1}\ns_and_b64 vcc, vcc, s[12:13]"), self.o["ps1"], "or")
        self.pt("bo")
        e(f"""s_mov_b64 exec, s[12:13]
        v_cvt_pk_bf16_f32 v{U}, v{AC0}, v{AC0+1}
        v_cvt_pk_bf16_f32 v{U+1}, v{AC0+2}, v{AC0+3}
        ds_write_b64 v{T+2}, {vr(U,2)} offset:1024
        s_mov_b64 exec, -1
        ds_write_b32 v100, v101
        s_branch L_CORE1""")

    def a_loader(self):
        e = self.e; e.vm = 0
        VL, VW, TMP, SEL, BLO, BHI, T, U, W, G, WUV, AC0, AC1, PA, XR = (self.VL, self.VW, self.TMP, self.SEL, self.BLO,
            self.BHI, self.T, self.U, self.W, self.G, self.WUV, self.AC0, self.AC1, self.PA, self.XR)
        S_LW, S_PART, S_PRIV, S_MBJ = self.S_LW, self.S_PART, self.S_PRIV, self.S_MBJ
        XO, S, FR, AQ, AC, TA, M = 232, 16, 224, 4, 5, 6, 8
        CNT = X + self.X_CNT
        creg = lambda ks: (W + 4 * ks) if ks < 16 else (WUV + 4 * (ks - 16))
        e("L_AL:")
        self.role = "AL"
        self.pt("start")
        e(f"""s_sub_u32 s{S_LW}, s3, 4
        s_and_b32 s10, s3, 1
        s_lshl_b32 s10, s10, 5
        v_lshlrev_b32 v{VL}, 4, v0
        v_xor_b32 v{T}, s10, v{VL}""")
        for i in range(8): e(f"v_xor_b32 v{XO+i}, {(((i & 3) << 2) | (i >> 2)) << 4}, v{T}")
        e(f"""s_lshl_b32 s66, s4, 18
        s_lshl_b32 s67, s{S_LW}, 13
        s_add_u32 s66, s66, s67
        s_waitcnt lgkmcnt(0)""")
        self.mk_srd(SRD_A, P_CKV, 16 << 20)
        dma = []
        def dma_tile(t):
            for r in range(8):
                if r & 3 == 0: e("s_mov_b32 m0, s67")
                last = e.mem(f"buffer_load_dwordx4 v{XO+r}, {srd(SRD_A)}, s66 offen offset:{1024*(r&3)} nt lds")
                if r == 3: e("s_add_u32 s66, s66, 4096\ns_add_u32 s67, s67, 4096")
                if r == 7: e(f"s_add_u32 s66, s66, 28672\ns_add_u32 s67, s67, {28672 if t != 3 else (28672 - 131072) & 0xffffffff:#x}")
            dma.append(last)
        a0 = self.o["a0"]
        dma_tile(0)
        e.L.append("; split")
        for t in range(1, a0): dma_tile(t)
        if self.stamps: self.mk_srd(SRD_WS, P_WS, WS_USED)
        self.row_addr(AC, T)
        e(f"""v_add_u32 v{AQ}, {X}, v{AC}
        s_lshl_b32 s10, s{S_LW}, 15
        v_add_u32 v{AC}, s10, v{AC}
        s_mov_b32 s{S_SC}, {f2u(SCALE):#x}""")
        for t in range(5):
            if t < 4: e.wait(dma[t])
            e("s_barrier")
            self.pt(f"bar{t}")
            while len(dma) < min(8, a0 + t + 1, 4 + t) or (t == 4 and len(dma) < 8): dma_tile(len(dma))
            self.pt(f"iss{t}")
            if t < 4:
                skip = self.only_wave(4 + t)
                for i in range(8):
                    e(f"v_xor_b32 v{TA+(i&1)}, {i << 5}, v{AC}")
                    for q in range(4): e(f"ds_read_b128 {vr(creg(i+8*q),4)}, v{TA+(i&1)} offset:{256*q}")
                    if i & 1: e("s_waitcnt lgkmcnt(4)")
                e(f"s_waitcnt lgkmcnt(0)\n{skip}:")
        self.stat_addr(T + 2, T + 3)
        if self.o["late"]: e("s_barrier")
        e(f"s_lshl_b32 s10, s{S_LW}, 2\nv_add_u32 v{T+3}, s10, v{T+2}\ns_barrier")
        self.qk(0, S, FR, AQ, TA, creg)
        self.softmax(0, S, FR + 16, M, TMP, T, S_LW)
        e("s_waitcnt vmcnt(0)")
        self.pt("dma")
        e("s_barrier")
        self.qk(1, S, FR, AC, TA, creg)
        self.softmax(1, S, FR + 16, M, TMP, T, S_LW)
        pv = self.o["pv"]
        if pv:
            npt = self.o["pb"]; assert self.o["pa"] == npt
            self.mk_srd(SRD_B, P_BV, 32 << 20)
            e(f"""s_lshr_b32 s10, s4, 3
            s_lshl_b32 s10, s10, 1
            s_lshr_b32 s11, s{S_LW}, 1
            s_add_u32 s10, s10, s11
            s_lshl_b32 s10, s10, 21
            s_and_b32 s11, s4, 7
            s_mul_i32 s11, s11, {8 * npt}
            s_and_b32 s12, s{S_LW}, 1
            s_lshl_b32 s12, s12, 1
            s_add_u32 s12, s12, {self.o['pvw']}
            s_mul_i32 s12, s12, {npt}
            s_add_u32 s11, s11, s12
            s_add_u32 s11, s11, {npt - pv}
            s_lshl_b32 s11, s11, 12
            s_add_u32 s10, s10, s11
            s_add_u32 s11, s10, {4096 * npt}""")
            if self.o["pvwait"]: self.lds_wait(X + self.X_CNT + 64, T)
            k = 0
            for t in range(pv):
                for sr in (10, 11):
                    for j in range(4):
                        if k >= self.o["pvwin"]: e(f"s_waitcnt vmcnt({self.o['pvwin'] - 1})")
                        e(f"buffer_load_dwordx4 {vr(32 + 4 * k, 4)}, v{VL}, {srd(SRD_B)}, s{sr} offen offset:{1024 * j} nt"); k += 1
                    e(f"s_add_u32 s{sr}, s{sr}, 4096")
            e("s_waitcnt vmcnt(0)")
        self.pt("end")
        self.stamp_out(32)
        e("s_endpgm")

    def a_tail(self):
        e = self.e; e.vm = 0
        VL, VW, TMP, SEL, BLO, BHI, T, U, W, G, AC0, AC1, PA, XR = (self.VL, self.VW, self.TMP, self.SEL, self.BLO,
            self.BHI, self.T, self.U, self.W, self.G, self.AC0, self.AC1, self.PA, self.XR)
        S_LW, S_PART, S_PRIV, S_MBJ = self.S_LW, self.S_PART, self.S_PRIV, self.S_MBJ
        UV, GA, L_W = 96, 160, 32768
        e("L_ATAIL:")
        self.role = "Q"
        e(f"s_mov_b32 s{S_LW}, s3\ns_mov_b32 s{S_PART}, 0\ns_mov_b32 s{S_SPIN}, {SPIN}")
        e(f"""s_cmp_eq_u32 s3, 0
        s_cselect_b32 s69, 0, 0x40000000
        s_and_b32 s70, s4, {self.o["rep"] - 1}
        s_lshl_b32 s70, s70, 11
        s_add_u32 s70, s70, {FA + 1536}
        s_add_u32 s70, s70, s69
        v_lshlrev_b32 v{U+2}, 3, v0""")
        if self.o["f1"]: e(f"buffer_load_dwordx2 {vr(U,2)}, v{U+2}, {srd(SRD_WS)}, s70 offen sc1")
        self.vw_addr()
        self.tail_setup()
        e(f"""s_lshl_b32 s10, s3, 14
        s_add_u32 s10, s10, {L_W}
        v_add_u32 v{T}, s10, v{VL}
        v_add_u32 v{T+1}, 65536, v{T}""")
        e.ds_reset()
        for t in range(16): e.ds(f"ds_read_b128 {vr(UV+4*t,4)}, v{T} offset:{1024*t}")
        for t in range(16): e.ds(f"ds_read_b128 {vr(W+4*t,4)}, v{T+1} offset:{1024*t}")
        top, done = e.lab("L_spin"), e.lab("L_ok")
        e(f"s_cmp_lg_u32 s3, 0\ns_cbranch_scc1 {done}")
        if not self.o["f1"]: e(f"buffer_load_dwordx2 {vr(U,2)}, v{U+2}, {srd(SRD_WS)}, s70 offen sc1")
        e(f"""{top}:
        s_waitcnt vmcnt(0)
        v_cmp_ne_u64 vcc, s[{TAG}:{TAG+1}], {vr(U,2)}
        s_cbranch_vccz {done}""")
        if self.o["sl_ap"]: e(f"s_sleep {self.o['sl_ap']}")
        e(f"buffer_load_dwordx2 {vr(U,2)}, v{U+2}, {srd(SRD_WS)}, s70 offen sc1")
        self.spin_tail(top, done)
        e("s_waitcnt vmcnt(0) lgkmcnt(0)\ns_barrier")
        self.pt("apf")
        e.vm = 0
        e(f"""s_lshr_b32 s12, s4, 1
        s_lshl_b32 s10, s12, 3
        s_add_u32 s10, s10, {AST}
        v_lshlrev_b32 v{T}, 8, v0""")
        st = e.mem(f"buffer_load_dwordx2 {vr(U,2)}, v{T}, {srd(SRD_WS)}, s10 offen sc1")
        e(f"""s_lshl_b32 s10, s12, 16
        s_lshl_b32 s11, s{S_LW}, 8
        s_add_u32 s10, s10, s11
        s_add_u32 s10, s10, {AP}""")
        g = []
        for t in range(16):
            g.append(e.mem(f"buffer_load_dwordx4 {vr(GA+4*t,4)}, v{VW}, {srd(SRD_WS)}, s10 offen offset:{1024*(t&3)} sc1 ; c:LAP"))
            if t & 3 == 3: e("s_add_u32 s10, s10, 4096")
        self.masks(0x00030003, 0x03000300)
        e(f"""v_lshl_add_u32 v{T}, v0, 1, s{S_PRIV}
        v_lshrrev_b32 v{T+1}, 4, v0
        v_lshl_add_u32 v{T+1}, v{T+1}, 5, s{S_PRIV}""")
        e.wait(st)
        e(f"v_mov_b32 v{U+2}, v{U}")
        self.row_red("v_max_f32", U + 2, (1, 2, 4, 8)); self.swap_red("v_max_f32", U + 2, TMP, (16,))
        e(f"v_sub_f32 v{U}, v{U}, v{U+2}\nv_exp_f32 v{U}, v{U}\nv_mul_f32 v{U+1}, v{U}, v{U+1}")
        self.row_red("v_add_f32", U + 1, (1, 2, 4, 8)); self.swap_red("v_add_f32", U + 1, TMP, (16,))
        e(f"""v_rcp_f32 v{U+1}, v{U+1}
        v_mul_f32 v{U}, v{U}, v{U+1}
        v_cvt_pk_bf16_f32 v{U}, v{U}, v{U}
        ds_write_b16 v{T}, v{U}
        s_waitcnt lgkmcnt(0)
        ds_read_b128 {vr(XR,4)}, v{T+1}
        ds_read_b128 {vr(XR+4,4)}, v{T+1} offset:16
        v_lshrrev_b32 v{T}, 5, v0
        v_lshlrev_b32 v{T}, 8, v{T}
        v_and_b32 v{T+1}, 15, v0
        v_lshl_add_u32 v{T}, v{T+1}, 1, v{T}
        v_bfe_u32 v{T+1}, v0, 4, 1
        v_lshl_add_u32 v{T}, v{T+1}, 5, v{T}
        v_add_u32 v{T}, s{S_PRIV}, v{T}
        v_bfe_u32 v{T+1}, v0, 3, 1
        v_lshlrev_b32 v{T+1}, 8, v{T+1}
        v_lshrrev_b32 v{T+2}, 4, v0
        v_lshl_add_u32 v{T+1}, v{T+2}, 6, v{T+1}
        v_bfe_u32 v{T+2}, v0, 2, 1
        v_lshl_add_u32 v{T+1}, v{T+2}, 5, v{T+1}
        v_add_u32 v{T+1}, s{S_PRIV}, v{T+1}
        s_waitcnt lgkmcnt(0)""")
        self.rws256(16, XR, GA, AC0, BLO, BHI, PA, g)
        self.pt("lat")
        e(f"""v_cvt_pk_bf16_f32 v{U}, v{AC0}, v{AC0+1}
        v_cvt_pk_bf16_f32 v{U+1}, v{AC0+2}, v{AC0+3}
        ds_write_b16 v{T}, v{U} offset:256
        ds_write_b16_d16_hi v{T}, v{U} offset:320
        ds_write_b16 v{T}, v{U+1} offset:384
        ds_write_b16_d16_hi v{T}, v{U+1} offset:448
        s_waitcnt lgkmcnt(0)
        ds_read_b128 {vr(XR,4)}, v{T+1} offset:256
        ds_read_b128 {vr(XR+4,4)}, v{T+1} offset:272""")
        for z in (0, 1, 4, 5, 8, 9): e(f"v_mov_b32 v{PA+z}, 0")
        e(f"""v_bfe_u32 v{T}, v0, 3, 1
        v_lshlrev_b32 v{T}, 9, v{T}
        v_lshrrev_b32 v{T+1}, 5, v0
        v_lshl_add_u32 v{T}, v{T+1}, 8, v{T}
        v_and_b32 v{T+1}, 7, v0
        v_lshl_add_u32 v{T}, v{T+1}, 5, v{T}
        s_lshl_b32 s10, s{S_LW}, 10
        v_add_u32 v{T}, s10, v{T}
        s_waitcnt lgkmcnt(0)""")
        self.rws128(16, XR, UV, AC0, AC1, SEL, PA)
        RED = 16384
        e(f"""s_mov_b32 exec_lo, 0xff0000ff
        s_mov_b32 exec_hi, 0xff0000ff
        ds_write_b128 v{T}, {vr(AC0,4)} offset:{RED}
        ds_write_b128 v{T}, {vr(AC1,4)} offset:{RED+16}
        s_mov_b64 exec, -1
        v_lshlrev_b32 v{T}, 3, v0""")
        self.masks(0x03030303, 0x03030303)
        self.core_selectors()
        e("s_waitcnt lgkmcnt(0)\ns_barrier")
        for i in range(8): e(f"ds_read_b64 {vr(U+2*i,2)}, v{T} offset:{RED+512*i}")
        e("s_waitcnt lgkmcnt(0)")
        self.tree("v_add_f32", U, 8, 2)
        self.pt("ctx")
        A_CW, A_CR, A_MB = self.A_CW, self.A_CR, self.A_MB
        e(f"""v_cvt_pk_bf16_f32 v{U}, v{U}, v{U+1}
        ds_write_b32 v{A_CW}, v{U} offset:1024
        L_CORE1:
        ds_read_b128 {vr(XR,4)}, v{A_CR} offset:1024
        ds_read_b128 {vr(XR+4,4)}, v{A_CR} offset:1040
        L_CORE2:
        s_lshl_b32 s10, s{S_LW}, 15
        s_lshl_b32 s11, s4, 7
        s_add_u32 s10, s10, s11
        s_lshl_b32 s11, s{S_PART}, 18
        s_add_u32 s10, s10, s11
        s_add_u32 s10, s10, {MB+MB_2}
        s_waitcnt lgkmcnt(0)""")
        self.pt("cx")
        CS = 208
        for t in range(16):
            a = PA + 2 + 4 * (t & 1)
            for j in range(4): e(f"v_perm_b32 v{a+j}, v{XR+(t>>1)}, v{XR+(t>>1)}, v{CS+4*(t&1)+j}")
            e(f"v_mfma_f32_16x16x32_bf16 {vr(AC0,4)}, {vr(a,4)}, {vr(W+4*t,4)}, {vr(AC0,4) if t else 0}")
        e(f"""v_cvt_pk_bf16_f32 v{AC1}, v{AC0}, v{AC0+1}
        v_cvt_pk_bf16_f32 v{AC1+1}, v{AC0+2}, v{AC0+3}
        v_min_u32 v{AC1}, -2, v{AC1}
        v_min_u32 v{AC1+1}, -2, v{AC1+1}
        v_mov_b32 v{AC1+2}, v{AC1}
        v_mov_b32 v{AC1+3}, v{AC1+1}
        v_permlane16_swap_b32 v{AC1}, v{AC1+2}
        v_permlane16_swap_b32 v{AC1+1}, v{AC1+3}
        s_mov_b32 exec_lo, 0xffff
        s_mov_b32 exec_hi, 0xffff
        buffer_store_dwordx4 {vr(AC1,4)}, v{A_MB}, {srd(SRD_WS)}, s10 offen sc1 ; c:MB2
        s_mov_b64 exec, -1""")
        self.pt("core")
        e(f"""s_lshr_b32 s10, s4, 4
        s_cmp_lg_u32 s10, s{S_PART}
        s_cbranch_scc1 L_FINDONE
        s_cmp_lg_u32 s{S_LW}, 0
        s_cbranch_scc1 L_FINDONE
        s_add_u32 s10, s{S_MBJ}, {MB_2}
        s_add_u32 s11, s10, 4096
        v_mov_b32 v{T}, 0x3f803f80
        v_perm_b32 v{PA+2}, v{T}, v{T}, v{SEL}
        v_perm_b32 v{PA+3}, v{T}, v{T}, v{SEL+1}""")
        for z in (0, 1, 4, 5): e(f"v_mov_b32 v{PA+z}, 0")
        def use(k, i):
            g = G + 32 * k + 4 * i
            e(f"v_mfma_f32_16x16x32_bf16 {vr(AC0,4)}, {vr(PA+2,4)}, {vr(g,4)}, {vr(AC0,4) if i else 0}")
            e(f"v_mfma_f32_16x16x32_bf16 {vr(AC1,4)}, {vr(PA,4)}, {vr(g,4)}, {vr(AC1,4) if i else 0}")
            if i == 0: e(f"v_max3_u32 v{T}, v{g}, v{g+1}, v{g+2}\nv_max_u32 v{T}, v{T}, v{g+3}")
            else: e(f"v_max3_u32 v{T}, v{T}, v{g}, v{g+1}\nv_max3_u32 v{T}, v{T}, v{g+2}, v{g+3}")
        self.poll_loop(8, lambda k, i: e(f"buffer_load_dwordx4 {vr(G+32*k+4*i,4)}, v{VL}, {srd(SRD_WS)}, s{10+(i>>2)} offen offset:{1024*(i&3)} sc1 ; c:LMB"),
                       use, lambda: e(f"v_cmp_eq_u32 vcc, -1, v{T}"), self.o["ps2"], "fr")
        self.pt("fp")
        for r in range(8): self.row_red("v_add_f32", AC0 + r, (8,))
        for r in range(4): e(f"v_cvt_pk_bf16_f32 v{U+r}, v{AC0+2*r}, v{AC0+2*r+1}")
        e(f"""s_bfe_u32 s10, s4, 0x10003
        s_lshl_b32 s10, s10, 11
        s_and_b32 s11, s4, 7
        s_lshl_b32 s11, s11, 7
        s_add_u32 s10, s10, s11
        s_lshl_b32 s11, s{S_PART}, 10
        s_add_u32 s10, s10, s11
        s_mov_b64 exec, 0xff
        buffer_store_dwordx4 {vr(U,4)}, v{VL}, {srd(SRD_E)}, s10 offen
        s_cmp_lg_u32 s4, 16
        s_cbranch_scc1 L_FINDONE
        s_mov_b64 exec, 1
        v_mov_b32 v{T}, s{TAG}
        s_mov_b32 s10, {EPOCH}
        buffer_store_dword v{T}, off, {srd(SRD_WS)}, s10
        L_FINDONE:""")
        self.pt("fin")
        self.stamp_out(16)
        e("s_endpgm")

    def build(self):
        e = self.e
        e("""s_cmp_ge_u32 s2, 256
        s_cbranch_scc1 L_END
        s_load_dwordx16 s[16:31], s[0:1], 0
        s_load_dwordx8 s[32:39], s[0:1], 64
        s_load_dwordx4 s[40:43], s[0:1], 96
        v_lshrrev_b32 v1, 6, v0
        v_and_b32 v0, 63, v0
        v_readfirstlane_b32 s3, v1
        s_sub_u32 s4, s2, 128""")
        tests = {"P": "s_cmp_lt_u32 s2, 128\ns_cbranch_scc1 L_P", "Q": "s_cmp_ge_u32 s2, 192\ns_cbranch_scc1 L_Q",
                 "L": "s_cmp_ge_u32 s5, 64\ns_cbranch_scc0 L_AL", "C": "s_cmp_lt_u32 s5, 64\ns_cbranch_scc1 L_AC"}
        order = self.o["order"]
        for r in order[1:]:
            if r == "L": e("s_cmp_ge_u32 s3, 4\ns_cselect_b32 s5, s4, 64")
            if r == "C": e("s_cmp_lt_u32 s3, 4\ns_cselect_b32 s5, s4, 64")
            e(tests[r])
        fn = {"P": lambda: self.bside("P"), "Q": lambda: (self.bside("Q"), self.a_tail()), "L": self.a_loader, "C": self.a_compute}
        marks = {}
        for r in order:
            i0 = len(e.L); fn[r](); marks[r] = (i0, len(e.L))
        if self.o["pack"]:
            heads, bodies = [], []
            for r in order:
                seg = e.L[marks[r][0]:marks[r][1]]
                k = seg.index("; split")
                heads += seg[:k] + [f"s_branch L_{r}_REST"]
                bodies += [f"L_{r}_REST:"] + seg[k + 1:]
            e.L = e.L[:marks[order[0]][0]] + heads + bodies
        e.L = [l for l in e.L if l != "; split"]
        e("L_END:\ns_endpgm")
        if "nobar" in self.x:
            i0 = e.L.index("L_P:"); i1 = e.L.index("L_AC:")
            e.L = e.L[:i0] + [l for l in e.L[i0:i1] if l != "s_barrier"] + e.L[i1:]
        if "nomath" in self.x:
            i0 = e.L.index("L_P:"); i1 = e.L.index("L_AC:")
            e.L = e.L[:i0] + [l for l in e.L[i0:i1] if not l.startswith(("v_mfma", "v_exp", "v_fma", "v_perm_", "v_add_f32", "v_mov_b32_dpp", "v_cvt", "v_max3"))] + e.L[i1:]
        if "noph1" in self.x:
            i0 = e.L.index("L_P:"); i1 = e.L.index("L_AC:")
            e.L = e.L[:i0] + [l for l in e.L[i0:i1] if not (l.startswith("buffer_load") and (srd(SRD_D) in l or srd(SRD_E) in l))] + e.L[i1:]
        for x in self.x:
            if x.startswith("c:"): e.L = [l for l in e.L if not l.endswith("; " + x)]
        for x in self.x:
            if x.startswith("m:"):
                tag, m = x[2:].split("=")
                e.L = [l.replace(" sc1", " " + m.replace("+", " ")) if l.endswith("; c:" + tag) else l for l in e.L]
            if x.startswith("allst="):
                m = x[6:].replace("+", " ")
                e.L = [l.replace(" sc1", " " + m if m else "") if l.startswith("buffer_store") else l for l in e.L]
        if "nost" in self.x:
            e.L = [l for l in e.L if not (l.startswith("buffer_store") and "sc1" in l)]
        if "nosc" in self.x:
            e.L = [l for l in e.L if not (l.startswith("buffer_load") and "sc1" in l)]
        if "noA" in self.x:
            for lab in ("L_AL:", "L_AC:"):
                i = e.L.index(lab); e.L.insert(i + 1, "s_endpgm")
        if "link" in self.x:
            e.L = [l.replace(", v1, s[48:51]", ", v2, s[48:51]") if l.startswith("buffer_load_dwordx4") and "lds" not in l else l for l in e.L]
        if self.o["wb"]: e.L = [l.replace(" sc1", "") if l.endswith("; c:AP") else l for l in e.L]
        body, npad = fix_hazards(e.L)
        out = [HEADER.rstrip(), "; @launch grid=(256,1,1) block=(512,1,1) lds=163840",
               '.amdgcn_target "amdgcn-amd-amdhsa--gfx950"', ".text", f".globl {NAME}_kernel", ".p2align 8",
               f".type {NAME}_kernel,@function", f"{NAME}_kernel:"]
        out += [("" if l.endswith(":") else "    ") + l for l in body]
        out += ['.section .rodata,"a"', ".p2align 6", f".amdhsa_kernel {NAME}_kernel",
                "  .amdhsa_next_free_vgpr 256", "  .amdhsa_next_free_sgpr 102", "  .amdhsa_accum_offset 256",
                "  .amdhsa_group_segment_fixed_size 0", "  .amdhsa_kernarg_size 112", "  .amdhsa_user_sgpr_count 2",
                "  .amdhsa_user_sgpr_kernarg_segment_ptr 1", "  .amdhsa_system_sgpr_workgroup_id_x 1",
                ".end_amdhsa_kernel"]
        return "\n".join(out) + "\n", npad

PTS = {"P": "start,xq,st,qf,q,k,v,end", "Q": "start,fin,w,free,end,core,apf,ctx",
       "AC": "start,fin,qd,b1,b9,core,pv,bo", "AL": "start,bar0,bar3,iss4,dma,x,y,end"}

if __name__ == "__main__":
    ap = argparse.ArgumentParser()
    ap.add_argument("out"); ap.add_argument("--stamps", action="store_true")
    ap.add_argument("--pts", action="append", default=[]); ap.add_argument("--x", default="")
    for k, v in DEFAULTS.items(): ap.add_argument("--" + k, type=int, default=v)
    ap.add_argument("--order", default="LPQC"); DEFAULTS["order"] = 0
    a = ap.parse_args()
    pts = {}
    if a.stamps:
        pts = {k: v.split(",") for k, v in PTS.items()}
        for p in a.pts:
            r, l = p.split(":"); pts[r] = l.split(",")
    s, npad = Gen({k: getattr(a, k) for k in DEFAULTS}, pts, set(a.x.split(","))).build()
    open(a.out, "w").write(s)
    print("wrote", a.out, "lines", s.count("\n"), "pads", npad)
```

```python
import sys, math, struct, argparse
from asmlib import Emit, fix_hazards

NAME = "concat_heads__compressed_kv_cla__gqa_block_cached__decode"
HEADER = open("cdna_kernels/%s.s.ref" % NAME).read().split("; Override launch")[0]

QBP = 0x000000
QAP = 0x020000
AST = 0x040000
BS  = 0x048000
FB  = 0x050000
EPOCH = 0x060000
FA  = 0x080000
MB  = 0x100000
MB_2 = 8192
AP  = 0x200000
XQ  = 0x400000
WS_USED = 0x500000
STAMPS = 0x800000

SCALE = math.log2(math.e) / math.sqrt(128.0)
def f2u(x): return struct.unpack("<I", struct.pack("<f", x))[0]

SRD_WS, SRD_A, SRD_B, SRD_C, SRD_D, SRD_E, SRD_F, SRD_G = 44, 48, 52, 56, 60, 64, 68, 96
P_AX, P_CKV, P_AWQ, P_WUK, P_WUV, P_AWO, P_BX, P_BK, P_BV, P_BWQ, P_BWO, P_OUT, P_DBG, P_WS = range(16, 44, 2)
S_SC, S_SPIN = 15, 14
MASK0 = 72
TAG = 94
ST0 = 16
SPIN = 20000
X = 131072

def srd(n): return f"s[{n}:{n+3}]"
def vr(a, n): return f"v[{a}:{a+n-1}]" if n > 1 else f"v{a}"

DEFAULTS = dict(qd=1, r2=1, fw=2, rep=8, late=0, f1=1, pe=0, gate=-1, ps1=2, ps2=2, clr_at=-1, cpf=1, t1x=2, il=1, pack=0, pa=6, pb=6, qa=4, qat=3, fat=2, uvb=0, pv=0, pvw=4, pvwait=1, pvwin=4, ne=4, we=2, sl_bo=0, kq=12, cu=2, wsb=0, wt1=8, pf1=1, pfwin=6, stw=0, sl_ap=4, sl_xq0=0, sl_xq=2, sl_qa=4, sl_bs=8, np=6, uv0=16, wa=0, wb=0, wc=0, pf=4, pfw=0, pre_q=0, uv1=8, a0=3, t2w=0, wq1=2, kq1=4, sleep=0, pre_p=0, w1=2, kf_p=0, kf_q=12, wq0=8, wk=8, wt=10, wv=8)

class Gen:
    def __init__(self, opt, pts, x):
        self.o = opt; self.alt = pts; self.x = x; self.role = None
        self.stamps = bool(pts)
        self.e = Emit()

    def mk_srd(self, d, p, size):
        self.e(f"s_mov_b32 s{d}, s{p}\ns_mov_b32 s{d+1}, s{p+1}\ns_mov_b32 s{d+2}, {size:#x}\ns_mov_b32 s{d+3}, 0x20000")

    def pt(self, name, role=None):
        sel = self.alt.get(role or self.role)
        if sel and name in sel:
            i = sel.index(name); self.e(f"s_memrealtime s[{80+2*i}:{81+2*i}]" if i < 7 else "s_memrealtime s[100:101]")

    def stamp_out(self, t):
        if not self.stamps: return
        e = self.e
        if "dbg" in self.x:
            skip = e.lab("L_skip")
            e(f"""s_waitcnt lgkmcnt(0)
            s_and_b32 s10, s2, 127
            s_lshl_b32 s10, s10, 3
            s_add_u32 s10, s10, s3
            s_cmp_lg_u32 s10, 0
            s_cbranch_scc1 {skip}
            s_lshr_b32 s10, s2, 7
            s_lshl_b32 s10, s10, 5
            s_mov_b64 exec, 1""")
            for x in self.x:
                if x.startswith("hold"):
                    top = e.lab("L_hold")
                    e(f"""{top}:
                    s_memrealtime s[12:13]
                    s_waitcnt lgkmcnt(0)
                    s_sub_u32 s12, s12, s80
                    s_cmp_lt_u32 s12, {int(x[4:])}
                    s_cbranch_scc1 {top}""")
            self.mk_srd(SRD_A, P_DBG, 256)
            regs = [80, 82, 84, 86, 88, 90, 92, 100]
            for k in range(8):
                e(f"s_sub_u32 s11, s{regs[k]}, {'s80' if k else '0'}\nv_mov_b32 v{t+k}, s11")
            e(f"buffer_store_dwordx4 v[{t}:{t+3}], off, {srd(SRD_A)}, s10\nbuffer_store_dwordx4 v[{t+4}:{t+7}], off, {srd(SRD_A)}, s10 offset:16")
            e(f"{skip}:")
            return
        e("s_waitcnt lgkmcnt(0)\ns_mov_b64 exec, 1")
        e(f"s_lshl_b32 s4, s2, 3\ns_add_u32 s4, s4, s3\ns_lshl_b32 s4, s4, 6\ns_add_u32 s4, s4, {STAMPS}")
        e(f"s_mov_b32 s{SRD_WS+2}, 0x1000000")
        regs = list(range(80, 94)) + [100, 101]
        for i in range(4):
            for k in range(4): e(f"v_mov_b32 v{t+k}, s{regs[4*i+k]}")
            e(f"buffer_store_dwordx4 v[{t}:{t+3}], off, {srd(SRD_WS)}, s4 offset:{16*i}")
            e("s_nop 2")

    def selectors(self, sel, base_lo, base_hi, tmp):
        self.e(f"""v_and_b32 v{tmp}, 1, v0
        v_cmp_eq_u32 vcc, 1, v{tmp}
        v_mov_b32 v{base_lo}, 0x0c0c0100
        v_mov_b32 v{tmp}, 0x01000c0c
        v_cndmask_b32 v{base_lo}, v{base_lo}, v{tmp}, vcc
        v_add_u32 v{base_hi}, 0x0202, v{base_lo}
        v_mov_b32 v{tmp}, 0x03020c0c
        v_cndmask_b32 v{base_hi}, v{base_hi}, v{tmp}, vcc
        v_and_b32 v{tmp}, 2, v0
        v_cmp_eq_u32 vcc, 0, v{tmp}
        v_mov_b32 v{tmp}, 0x0c0c0c0c
        v_cndmask_b32 v{sel}, v{tmp}, v{base_lo}, vcc
        v_cndmask_b32 v{sel+1}, v{base_lo}, v{tmp}, vcc
        v_cndmask_b32 v{sel+2}, v{tmp}, v{base_hi}, vcc
        v_cndmask_b32 v{sel+3}, v{base_hi}, v{tmp}, vcc""")

    def masks(self, lo, hi):
        for j in range(4):
            self.e(f"s_mov_b32 s{MASK0+2*j}, {(lo << (2*j)):#x}\ns_mov_b32 s{MASK0+2*j+1}, {(hi << (2*j)):#x}")

    def rws256(self, nload, x, w, acc, base_lo, base_hi, t0, waits=None):
        e = self.e
        for t in range(nload):
            a = t0 + 2 + 4 * (t & 1)
            e(f"v_perm_b32 v{t0}, v{x+(t>>1)}, v{x+(t>>1)}, v{base_hi if t & 1 else base_lo}")
            for j in range(4): e(f"v_cndmask_b32 v{a+j}, 0, v{t0}, s[{MASK0+2*j}:{MASK0+2*j+1}]")
            if waits: e.wait(waits[t])
            e(f"v_mfma_f32_16x16x32_bf16 {vr(acc,4)}, {vr(a,4)}, {vr(w+4*t,4)}, {vr(acc,4) if t else 0}")

    def rws128(self, nload, x, w, acc0, acc1, sel, pa):
        e = self.e
        for t in range(nload):
            p = pa + 2 + 4 * (t & 1)
            sa, sb = (sel + 2, sel + 3) if t & 1 else (sel, sel + 1)
            e(f"v_perm_b32 v{p}, v{x+(t>>1)}, v{x+(t>>1)}, v{sa}\nv_perm_b32 v{p+1}, v{x+(t>>1)}, v{x+(t>>1)}, v{sb}")
            e(f"v_mfma_f32_16x16x32_bf16 {vr(acc0,4)}, {vr(p,4)}, {vr(w+4*t,4)}, {vr(acc0,4) if t else 0}")
            e(f"v_mfma_f32_16x16x32_bf16 {vr(acc1,4)}, {vr(p-2,4)}, {vr(w+4*t,4)}, {vr(acc1,4) if t else 0}")

    def quad_sum(self, ds):
        for r in range(4):
            for d in ds:
                q = f"quad_perm:[{r},{r},{r},{r}] row_mask:0xf bank_mask:0xf"
                self.e(f"v_mov_b32_dpp v{d}, v{d} {q}" if r == 0 else f"v_add_f32_dpp v{d}, v{d+r}, v{d} {q}")

    def swap_red(self, op, x, t, which):
        for s in which:
            self.e(f"v_mov_b32 v{t}, v{x}\nv_permlane{s}_swap_b32 v{x}, v{t}\n{op} v{x}, v{x}, v{t}")

    def row_red(self, op, x, rots):
        for r in rots:
            self.e(f"{op}_dpp v{x}, v{x}, v{x} row_ror:{r} row_mask:0xf bank_mask:0xf")

    def tree(self, op, base, n, width):
        st = 1
        while st < n:
            for i in range(0, n, 2 * st):
                for r in range(width): self.e(f"{op} v{base+width*i+r}, v{base+width*i+r}, v{base+width*(i+st)+r}")
            st *= 2

    def max3_chain(self, op, dst, regs):
        regs = list(regs)
        if len(regs) == 2:
            self.e(f"v_max_{op} v{dst}, v{regs[0]}, v{regs[1]}"); return
        self.e(f"v_max3_{op} v{dst}, v{regs[0]}, v{regs[1]}, v{regs[2]}")
        regs = regs[3:]
        while len(regs) >= 2:
            self.e(f"v_max3_{op} v{dst}, v{dst}, v{regs[0]}, v{regs[1]}"); regs = regs[2:]
        if regs: self.e(f"v_max_{op} v{dst}, v{dst}, v{regs[0]}")

    def spin_tail(self, top, done, sleep=0):
        if sleep: self.e(f"s_sleep {sleep}")
        if "nodep" in self.x: self.e(f"{done}:"); return
        self.e(f"s_sub_u32 s{S_SPIN}, s{S_SPIN}, 1\ns_cbranch_scc0 {top}\n{done}:")

    def lds_wait(self, addr, t, n=4):
        e = self.e
        top, done = e.lab("L_spin"), e.lab("L_ok")
        e(f"""v_mov_b32 v{t}, {addr}
        s_mov_b32 s{S_SPIN}, {SPIN * 20}
        {top}:
        ds_read_b32 v{t+1}, v{t}
        s_waitcnt lgkmcnt(0)
        v_cmp_ne_u32 vcc, {n}, v{t+1}
        s_cbranch_vccz {done}""")
        self.spin_tail(top, done, 2)

    def lds_inc(self, addr, t):
        self.e(f"""v_mov_b32 v{t}, {addr}
        v_mov_b32 v{t+1}, 1
        s_mov_b64 exec, 1
        ds_add_u32 v{t}, v{t+1}
        s_mov_b64 exec, -1""")

    def poll_loop(self, n, load, use, test, sets, name):
        e = self.e
        top, done = e.lab("L_spin"), e.lab("L_ok")
        if sets == 2:
            for i in range(n): load(0, i)
        e(f"{top}:")
        for k in range(sets):
            self.pt(name)
            for i in range(n): load((k + 1) % sets, i)
            for i in range(n):
                e(f"s_waitcnt vmcnt({(sets - 1) * n + n - 1 - i})"); use(k, i)
            test()
            e(f"s_cbranch_vccz {done}")
        self.spin_tail(top, done)

    def only_wave(self, w):
        skip = self.e.lab("L_skip")
        self.e(f"s_cmp_lg_u32 s3, {w}\ns_cbranch_scc1 {skip}")
        return skip

    def epoch_load(self):
        if self.o["wsb"]: self.e(f"s_add_u32 s{P_WS}, s{P_WS}, {self.o['wsb'] << 20:#x}\ns_addc_u32 s{P_WS+1}, s{P_WS+1}, 0")
        self.e(f"s_load_dword s{TAG}, s[{P_WS}:{P_WS+1}], {EPOCH:#x}")

    def epoch_tag(self):
        self.e(f"s_waitcnt lgkmcnt(0)\ns_add_u32 s{TAG}, s{TAG}, 1\ns_xor_b32 s{TAG+1}, s{TAG}, 0x5bd1e995")

    def post_b(self, sg, sslot, t):
        self.e(f"""v_mov_b32 v{t}, s{TAG}
        v_mov_b32 v{t+1}, s{TAG+1}
        s_lshl_b32 s10, s{sg}, 7
        s_lshl_b32 s11, s{sslot}, 3
        s_add_u32 s10, s10, s11
        s_add_u32 s10, s10, {FB}
        s_mov_b64 exec, 1
        buffer_store_dwordx2 {vr(t,2)}, off, {srd(SRD_WS)}, s10 sc1 ; c:FLAG
        s_mov_b64 exec, -1""")

    def post_a(self, sid, off, t):
        self.e(f"""v_lshlrev_b32 v{t+2}, 11, v0
        v_mov_b32 v{t}, s{TAG}
        v_mov_b32 v{t+1}, s{TAG+1}
        s_lshl_b32 s10, s{sid}, 3
        s_add_u32 s10, s10, {FA+off}
        s_mov_b64 exec, {(1 << self.o["rep"]) - 1}
        buffer_store_dwordx2 {vr(t,2)}, v{t+2}, {srd(SRD_WS)}, s10 offen sc1 ; c:FLAG
        s_mov_b64 exec, -1""")

    def poll_a(self, off, t):
        e = self.e
        top, done = e.lab("L_spin"), e.lab("L_ok")
        e(f"""s_and_b32 s10, s4, 7
        s_lshl_b32 s10, s10, 11
        s_add_u32 s10, s10, {FA+off}
        v_lshlrev_b32 v{t+2}, 3, v0
        {top}:
        buffer_load_dwordx2 {vr(t,2)}, v{t+2}, {srd(SRD_WS)}, s10 offen sc1
        s_waitcnt vmcnt(0)
        v_cmp_ne_u64 vcc, s[{TAG}:{TAG+1}], {vr(t,2)}
        s_cbranch_vccz {done}""")
        self.spin_tail(top, done, self.o["sl_ap"])

    def tag_check(self, g, n, t):
        e = self.e
        for i in range(n):
            e(f"v_xor_b32 v{t+2}, s{TAG+1}, v{g+2*i}\nv_xor_b32 v{g+2*i+1}, s{TAG}, v{g+2*i+1}")
            e(f"v_and_or_b32 v{g+2*i+1}, v{t+2}, v{t+1}, v{g+2*i+1}")
        e(f"v_or_b32 v{t}, v{g+1}, v{g+3}")
        for i in range(2, n, 2): e(f"v_or3_b32 v{t}, v{t}, v{g+2*i+1}, v{g+2*i+3}")

    def bside(self, kind):
        e = self.e; e.vm = 0; o = self.o
        tp = 4 * (o["pa"] + o["pb"])
        pa, pb = (o["pa"], o["pb"]) if kind == "P" else (o["qa"], (128 - 2 * tp) // 4 - o["qa"])
        n = max(pa, pb)
        VK, VL, TMP, SEL, BLO, BHI, QF, AC0, AC1, LS, MX = 1, 2, 3, 4, 8, 9, 10, 14, 18, 22, 23
        T = 24; D0 = 32; KR = 36; VR = 132; PA = 228; U = 246
        L_T1, L_Q, L_MAX, L_L, L_RED, L_T2, L_QA, L_W = 0, 8192, 9216, 9344, 16384, 32768, 40960, 32768
        S_KV, S_VV, S_G, S_B, S_SP = 5, 6, 7, 8, 9
        L_F = 9472
        e(f"L_{kind}:")
        self.role = kind
        if "no" + kind in self.x: e("s_endpgm")
        self.pt("start")
        e(f"""v_and_b32 v{T}, 3, v0
        v_lshrrev_b32 v{TMP}, 4, v0
        v_lshlrev_b32 v{T+1}, 6, v{TMP}
        v_lshl_add_u32 v{T+1}, v{T}, 4, v{T+1}
        v_bfe_u32 v{T}, v0, 2, 2
        v_lshl_add_u32 v{VK}, v{T}, 8, v{T+1}
        v_lshlrev_b32 v{VL}, 4, v0""")
        if kind == "P":
            e(f"""v_lshl_add_u32 v{T+6}, v{T}, 15, v{T+1}
            v_and_b32 v{T+4}, 15, v0
            v_lshlrev_b32 v{T+4}, 4, v{T+4}
            v_lshl_add_u32 v{T+4}, v{TMP}, 15, v{T+4}
            v_bfe_u32 v{T+5}, v0, 3, 1
            v_lshlrev_b32 v{T+5}, 10, v{T+5}
            v_lshl_add_u32 v{T+5}, v{TMP}, 3, v{T+5}
            s_lshr_b32 s10, s2, 3
            s_and_b32 s{S_SP}, s2, 7
            s_mul_i32 s11, s{S_SP}, {tp}
            s_lshr_b32 s13, s2, 2
            s_and_b32 s4, s2, 3""")
        else:
            e(f"""s_sub_u32 s4, s2, 192
            s_lshr_b32 s10, s4, 2
            s_and_b32 s4, s4, 3
            s_add_u32 s{S_SP}, s4, 8
            s_mul_i32 s11, s4, {4*(pa+pb)}
            s_add_u32 s11, s11, {8*tp}
            v_and_b32 v{T+4}, 15, v0
            v_lshlrev_b32 v{T+4}, 4, v{T+4}
            v_lshl_add_u32 v{T+4}, v{TMP}, 16, v{T+4}
            v_bfe_u32 v{T+5}, v0, 3, 1
            v_lshlrev_b32 v{T+5}, 10, v{T+5}
            v_lshl_add_u32 v{T+5}, v{TMP}, 4, v{T+5}
            s_sub_u32 s13, s2, 192
            s_and_b32 s4, s13, 1
            s_lshr_b32 s13, s13, 1
            s_xor_b32 s13, s13, {o["t1x"]}""")
        qd = o["qd"]; uneven = kind == "Q" and qd > 0
        il = o["il"]
        il2 = (il >> 1) & (1 if kind == "P" else 2) and pa == pb
        if not il:
            e(f"""s_mul_i32 s12, s3, {pb}
            s_min_u32 s{S_G}, s3, 4
            s_mul_i32 s{S_G}, s{S_G}, {pa-pb}
            s_add_u32 s12, s12, s{S_G}
            s_add_u32 s11, s11, s12
            s_lshl_b32 s11, s11, 12""")
        else:
            if il2:
                e(f"s_lshl_b32 s11, s{S_SP}, 13")
                if kind == "Q": e(f"s_add_u32 s11, s11, {8 * tp * 4096 - 8 * 8192}")
            else:
                e("s_lshl_b32 s11, s11, 12")
                if uneven: e(f"s_sub_u32 s12, s{S_SP}, 8\ns_mul_i32 s12, s12, {8192 * qd}\ns_add_u32 s11, s11, s12")
            e("s_lshl_b32 s12, s3, 10\ns_add_u32 s11, s11, s12")
        e(f"""s_and_b32 s{S_G}, s10, 7
        s_lshr_b32 s{S_B}, s10, 3
        s_lshl_b32 s10, s10, 21
        s_add_u32 s{S_KV}, s10, s11
        s_mov_b32 s{S_VV}, s{S_KV}""")
        sh = 7 if kind == "P" else 8
        e(f"""s_lshl_b32 s10, s4, {sh}
        s_lshl_b32 s11, s3, {sh-3}
        s_add_u32 s10, s10, s11
        s_lshl_b32 s11, s10, 1
        s_lshl_b32 s10, s10, 13
        s_lshl_b32 s12, s13, 8
        s_add_u32 s10, s10, s12""")
        e("s_waitcnt lgkmcnt(0)")
        self.epoch_load()
        tags = []; cur = [4 * min(pa, pb) - (3 * qd if uneven else 0)]
        def issue(upto):
            nl = cur[0]
            while len(tags) < min(upto, 2 * nl):
                x = len(tags); k = x % nl; j = k & 3
                r, v, sd, so = (KR, VK, SRD_A, S_KV) if x < nl else (VR, VL, SRD_B, S_VV)
                tags.append(e.mem(f"buffer_load_dwordx4 {vr(r+4*k,4)}, v{v}, {srd(sd)}, s{so} offen offset:{0 if il else 1024*j} nt"))
                if not il:
                    if j == 3: e(f"s_add_u32 s{so}, s{so}, 4096")
                else:
                    nm = 4 * min(pa, pb)
                    step = 8192 if k < nm - 1 else 4096
                    if k == nm - 1: step = 8192 - (4096 if pb > pa else 0)
                    if il2: step = 65536 if kind == "P" else 32768
                    if uneven: step = 8192
                    if k < nl - 1: e(f"s_add_u32 s{so}, s{so}, {step}")
        seen = set()
        def land(k):
            e.wait(tags[k])
            if k not in seen: seen.add(k); self.pt(f"l{k}")
        def slide(k0, k1, w):
            for k in range(k0, k1):
                land(k); issue(k + 1 + w)
        self.mk_srd(SRD_WS, P_WS, WS_USED)
        if kind == "P":
            self.mk_srd(SRD_C, P_AX, 2048); self.mk_srd(SRD_D, P_AWQ, 4 << 20)
            e(f"""v_lshlrev_b32 v{LS}, 15, v{TMP}
            v_and_b32 v{U+5}, 15, v0
            v_lshl_add_u32 v{LS}, v{U+5}, 4, v{LS}""")
            skip = self.only_wave(7)
            e(f"""s_lshl_b32 s12, s2, 8
            s_add_u32 s12, s12, {QAP}""")
            for r in range(4): e(f"v_mov_b32 v{U+r}, -1")
            e(f"""s_mov_b32 exec_hi, 0
            buffer_store_dwordx4 {vr(U,4)}, v{LS}, {srd(SRD_WS)}, s12 offen sc1 ; c:QCLR
            s_mov_b64 exec, -1
            {skip}:""")
            def four(slot, voff, s):
                e("s_mov_b32 s12, s10")
                r = []
                for t in range(4):
                    r.append(e.mem(f"buffer_load_dwordx4 {vr(VR+4*(slot+t),4)}, v{voff}, {srd(s)}, s12 offen nt"))
                    if t < 3: e("s_add_u32 s12, s12, 8192")
                return r
            xa = e.mem(f"buffer_load_dwordx2 {vr(T,2)}, v{T+5}, {srd(SRD_C)}, s11 offen")
            w2 = four(0, T + 4, SRD_D)
            self.mk_srd(SRD_E, P_WUK, 4 << 20)
            if o["t2w"] >= 0: e.wait(w2[o["t2w"]])
            w3 = four(4, T + 6, SRD_E)
        else:
            self.mk_srd(SRD_C, P_BX, 2048); self.mk_srd(SRD_D, P_BWQ, 4 << 20)
            xb = e.mem(f"buffer_load_dwordx4 {vr(T,4)}, v{T+5}, {srd(SRD_C)}, s11 offen")
            w1 = []
            for t in range(8):
                if t >= o["wt1"]: e.wait(w1[t - o["wt1"]])
                w1.append(e.mem(f"buffer_load_dwordx4 {vr(VR+4*t,4)}, v{T+4}, {srd(SRD_D)}, s10 offen nt"))
                if t < 7: e("s_add_u32 s10, s10, 8192")
            self.mk_srd(SRD_E, P_OUT, 4096)
            e(f"""v_lshrrev_b32 v{T+6}, 3, v0
            v_lshlrev_b32 v{T+6}, 17, v{T+6}
            v_and_b32 v{U}, 7, v0
            v_lshl_add_u32 v{T+6}, v{U}, 4, v{T+6}
            v_and_b32 v{U}, 15, v0
            v_lshlrev_b32 v{U}, 4, v{U}
            v_lshl_add_u32 v{U}, v{TMP}, 14, v{U}
            s_sub_u32 s68, s2, 192
            s_cmp_lt_u32 s3, 4
            s_cselect_b32 s{SRD_C}, s{P_WUV}, s{P_AWO}
            s_cselect_b32 s{SRD_C+1}, s{P_WUV+1}, s{P_AWO+1}
            s_mov_b32 s{SRD_C+2}, 0x400000
            s_movk_i32 s69, 1024
            s_cselect_b32 s69, 8192, s69
            s_cselect_b64 vcc, -1, 0
            v_cndmask_b32 v{T+6}, v{U}, v{T+6}, vcc
            s_lshl_b32 s10, s3, 20
            s_lshl_b32 s11, s68, 7
            s_add_u32 s10, s10, s11
            s_lshl_b32 s11, s68, 16
            s_and_b32 s12, s3, 3
            s_lshl_b32 s12, s12, 8
            s_add_u32 s11, s11, s12
            s_cmp_lt_u32 s3, 4
            s_cselect_b32 s70, s10, s11
            s_lshl_b32 s71, s3, 14
            s_add_u32 s71, s71, {L_W}""")
            wd = []
            def wdma(upto, w):
                while len(wd) < upto:
                    e(f"s_waitcnt vmcnt({w-1})\ns_mov_b32 m0, s71")
                    wd.append(e.mem(f"buffer_load_dwordx4 v{T+6}, {srd(SRD_C)}, s70 offen nt lds"))
                    e("s_add_u32 s70, s70, s69\ns_add_u32 s71, s71, 1024")
        self.mk_srd(SRD_A, P_BK, 32 << 20); self.mk_srd(SRD_B, P_BV, 32 << 20)
        e.L.append("; split")
        if kind == "P": issue(o["pre_p"])
        e(f"s_mov_b32 s{S_SC}, {f2u(SCALE):#x}\ns_mov_b32 s{S_SPIN}, {SPIN}")
        self.selectors(SEL, BLO, BHI, TMP)
        e(f"v_mov_b32 v{AC0}, 0\nv_mov_b32 v{AC0+1}, 0\nds_write_b64 v{AC0}, {vr(AC0,2)} offset:{L_F}")
        self.epoch_tag()
        if kind == "P":
            self.masks(0x03030303, 0x03030303)
            skip = self.only_wave(7)
            e(f"s_waitcnt vmcnt({e.vm})")
            self.post_a(2, 0, U)
            e(f"{skip}:")
            e(f"s_lshl_b32 s10, s3, 10\nv_add_u32 v{T+7}, s10, v{VL}")
            e.wait(xa)
            self.rws256(4, T, VR, AC0, BLO, BHI, PA, w2)
            self.pt("t2")
            e(f"ds_write_b128 v{T+7}, {vr(AC0,4)} offset:{L_T2}\ns_waitcnt lgkmcnt(0)\ns_barrier")
            XT = VR + 48
            skip = self.only_wave(0)
            for i in range(8): e(f"ds_read_b128 {vr(XT+4*i,4)}, v{VL} offset:{L_T2+1024*i}")
            e(f"""v_mov_b32 v{U+1}, s{TAG+1}
            s_lshl_b32 s10, s2, 11
            s_add_u32 s10, s10, {XQ}
            s_mov_b32 s11, 0xffffff00
            s_waitcnt lgkmcnt(0)""")
            self.tree("v_add_f32", XT, 8, 4)
            for r in range(4): e(f"v_bfi_b32 v{XT+8+2*r}, s11, v{XT+r}, v{U+1}\nv_mov_b32 v{XT+9+2*r}, s{TAG}")
            e(f"buffer_store_dwordx4 {vr(XT+8,4)}, v{VL}, {srd(SRD_WS)}, s10 offen sc1 ; c:XQ")
            e(f"buffer_store_dwordx4 {vr(XT+12,4)}, v{VL}, {srd(SRD_WS)}, s10 offen offset:1024 sc1 ; c:XQ")
            e(f"{skip}:")
            self.pt("xq")
            for i in range(o["pe"]):
                if i >= o["we"]: e(f"s_waitcnt vmcnt({o['we']-1})")
                issue(len(tags) + 1)
            skip, other = e.lab("L_skip"), e.lab("L_other")
            top, done = e.lab("L_spin"), e.lab("L_ok")
            e(f"""s_lshr_b32 s10, s3, 1
            s_cmp_lg_u32 s10, 2
            s_cbranch_scc1 {other}
            s_lshl_b32 s10, s13, 13
            s_and_b32 s12, s3, 1
            s_lshl_b32 s11, s12, 10
            s_add_u32 s10, s10, s11
            s_add_u32 s10, s10, {XQ}
            s_add_u32 s11, s10, 4096
            v_mov_b32 v{U+1}, 0xff
            v_lshrrev_b32 v{U+3}, 5, v0
            v_lshlrev_b32 v{U+3}, 8, v{U+3}
            v_and_b32 v{U+4}, 15, v0
            v_lshl_add_u32 v{U+3}, v{U+4}, 4, v{U+3}
            v_bfe_u32 v{U+4}, v0, 4, 1
            v_lshl_add_u32 v{U+3}, v{U+4}, 3, v{U+3}
            s_lshl_b32 s12, s12, 2
            v_add_u32 v{U+3}, s12, v{U+3}""")
            if o["sl_xq0"]: e(f"s_sleep {o['sl_xq0']}")
            e(f"{top}:")
            for i in range(4): e(f"buffer_load_dwordx4 {vr(VR+4*i,4)}, v{VL}, {srd(SRD_WS)}, s{10+(i>>1)} offen offset:{2048*(i&1)} sc1 ; c:LXQ")
            e("s_waitcnt vmcnt(0)")
            self.tag_check(VR, 8, U)
            e(f"v_cmp_ne_u32 vcc, 0, v{U}\ns_cbranch_vccz {done}")
            self.spin_tail(top, done, o["sl_xq"])
            for i in range(8): e(f"v_and_b32 v{VR+2*i}, 0xffffff00, v{VR+2*i}")
            e(f"""v_add_f32 v{VR}, v{VR}, v{VR+4}
            v_add_f32 v{VR+2}, v{VR+2}, v{VR+6}
            v_add_f32 v{VR+8}, v{VR+8}, v{VR+12}
            v_add_f32 v{VR+10}, v{VR+10}, v{VR+14}
            v_add_f32 v{VR}, v{VR}, v{VR+8}
            v_add_f32 v{VR+2}, v{VR+2}, v{VR+10}
            v_cvt_pk_bf16_f32 v{VR}, v{VR}, v{VR+2}
            ds_write_b32 v{U+3}, v{VR} offset:{L_QA}""")
            ne, we = o["ne"], o["we"]
            vm0, L0 = e.vm, len(e.L)
            issue(len(tags) + ne)
            body = e.L[L0:]
            e(f"s_branch {skip}\n{other}:")
            cnt = 0
            for l in body:
                if l.startswith("buffer_load"):
                    if cnt >= we: e(f"s_waitcnt vmcnt({we-1})")
                    cnt += 1
                e(l)
            e(f"""{skip}:
            v_bfe_u32 v{U}, v0, 2, 1
            v_lshlrev_b32 v{U}, 8, v{U}
            v_and_b32 v{U+2}, 0xf0, v{VK}
            v_add_u32 v{U+1}, v{U}, v{U+2}
            v_lshrrev_b32 v{U+2}, 4, v0
            v_lshl_add_u32 v{U}, v{U+2}, 3, v{U}
            s_lshl_b32 s11, s3, 5
            v_add_u32 v{U}, s11, v{U}
            s_waitcnt lgkmcnt(0)
            s_barrier
            ds_read_b128 {vr(QF,4)}, v{U+1} offset:{L_QA}
            s_waitcnt lgkmcnt(0)""")
            self.pt("qa")
            e.wait(w3[3])
            for t in range(4): e(f"v_mfma_f32_16x16x32_bf16 {vr(VR+4*t,4)}, {vr(VR+16+4*t,4)}, {vr(QF,4)}, 0")
            self.quad_sum([VR + 4 * t for t in range(4)])
            e(f"""v_cvt_pk_bf16_f32 v{AC0}, v{VR}, v{VR+4}
            v_cvt_pk_bf16_f32 v{AC0+1}, v{VR+8}, v{VR+12}
            s_mov_b32 exec_lo, 0x00110011
            s_mov_b32 exec_hi, 0x00110011
            ds_write_b64 v{U}, {vr(AC0,2)} offset:{L_QA+512}
            s_mov_b64 exec, -1
            s_waitcnt lgkmcnt(0)
            s_barrier""")
            skip = self.only_wave(7)
            e(f"""ds_read_b128 {vr(AC0,4)}, v{VL} offset:{L_QA+512}
            s_lshl_b32 s10, s2, 8
            s_add_u32 s10, s10, {QAP}
            s_waitcnt lgkmcnt(0)""")
            for r in range(4): e(f"v_min_u32 v{AC0+r}, -2, v{AC0+r}")
            e(f"""s_mov_b32 exec_hi, 0
            buffer_store_dwordx4 {vr(AC0,4)}, v{LS}, {srd(SRD_WS)}, s10 offen sc1 ; c:QAP
            s_mov_b64 exec, -1""")
            if o["stw"] in (1, 2):
                self.pt("st7"); e("s_waitcnt vmcnt(0)"); self.pt("ack7")
            e(f"{skip}:")
            if o["stw"] > 1: e("s_barrier")
            self.pt("st")
            issue(o["w1"])
        else:
            self.masks(0x03030303, 0x03030303)
            e(f"s_lshl_b32 s10, s3, 10\nv_add_u32 v{T+7}, s10, v{VL}")
            e.wait(xb)
            self.rws256(8, T, VR, AC1, BLO, BHI, PA, w1)
            e(f"ds_write_b128 v{T+7}, {vr(AC1,4)} offset:{L_T1}")
            wdma(o["wq1"], 16)
            e("s_waitcnt lgkmcnt(0)\ns_barrier")
            self.pt("t1")
            skip = self.only_wave(0)
            for i in range(8): e(f"ds_read_b128 {vr(VR+4*i,4)}, v{VL} offset:{L_T1+1024*i}")
            e(f"""v_lshrrev_b32 v{U}, 5, v0
            v_lshlrev_b32 v{U}, 14, v{U}
            v_and_b32 v{U+1}, 15, v0
            v_lshl_add_u32 v{U}, v{U+1}, 5, v{U}
            v_bfe_u32 v{U+1}, v0, 4, 1
            v_lshl_add_u32 v{U}, v{U+1}, 4, v{U}
            s_lshl_b32 s10, s4, 15
            s_lshl_b32 s11, s13, 9
            s_add_u32 s10, s10, s11
            s_add_u32 s10, s10, {QBP}
            s_sub_u32 s12, s2, 192
            s_lshr_b32 s13, s12, 3
            s_and_b32 s12, s12, 7
            s_waitcnt lgkmcnt(0)""")
            self.tree("v_add_f32", VR, 8, 4)
            e(f"buffer_store_dwordx4 {vr(VR,4)}, v{U}, {srd(SRD_WS)}, s10 offen sc1\ns_waitcnt vmcnt(0)")
            self.post_b(13, 12, U)
            e(f"{skip}:")
        variants = [4 * pa] if pa == pb else [4 * pa, 4 * pb]
        if uneven: variants = [4 * pa + qd, 4 * pa - 3 * qd]
        if kind == "Q":
            wdma(16, o["wq1"])
            self.pt("w")
        if uneven: e(f"s_cmp_eq_u32 s{S_SP}, 11\ns_cbranch_scc1 L_{kind}_B")
        elif len(variants) > 1: e(f"s_cmp_ge_u32 s3, 4\ns_cbranch_scc1 L_{kind}_B")
        tags0, vm0 = list(tags), e.vm
        for vi, nv in enumerate(variants):
            if vi: e(f"L_{kind}_B:")
            nl = nv; n = (nl + 3) // 4; cur[0] = nv; tags[:] = tags0; e.vm = vm0; seen.clear()
            kf, wearly = (o["kf_p"], o["w1"]) if kind == "P" else (o["kf_q"], o["wq0"])
            if kind == "Q":
                for k in range(wearly):
                    e(f"s_waitcnt vmcnt({wearly-1})"); issue(k + 1)
                slide(0, kf, wearly)
            else:
                slide(0, kf, wearly)
            e(f"""s_cmp_eq_u32 s3, 0
            s_cselect_b32 s13, 0, 0x40000000
            s_lshl_b32 s12, s{S_G}, 7
            s_add_u32 s12, s12, {FB}
            s_add_u32 s12, s12, s13
            v_lshlrev_b32 v{T+2}, 3, v0
            s_mov_b64 exec, 0xffff""")
            k1 = len(tags)
            fl = e.mem(f"buffer_load_dwordx2 {vr(T,2)}, v{T+2}, {srd(SRD_WS)}, s12 offen sc1 ; c:LFB")
            e("s_mov_b64 exec, -1")
            issue(kf + o["wk"])
            slide(kf, k1, o["wk"])
            e(f"""s_lshl_b32 s10, s{S_B}, 14
            s_lshl_b32 s11, s{S_G}, 11
            s_add_u32 s10, s10, s11
            s_add_u32 s10, s10, {QBP}
            s_add_u32 s10, s10, s13
            s_add_u32 s11, s10, 32768
            v_lshlrev_b32 v{TMP}, 5, v0""")
            e.wait(fl)
            top, done = e.lab("L_spin"), e.lab("L_ok")
            e(f"""s_cmp_lg_u32 s3, 0
            s_cbranch_scc1 {done}
            s_mov_b64 exec, 0xffff
            {top}:
            v_cmp_ne_u64 vcc, s[{TAG}:{TAG+1}], {vr(T,2)}
            s_cbranch_vccz {done}
            buffer_load_dwordx2 {vr(T,2)}, v{T+2}, {srd(SRD_WS)}, s12 offen sc1 ; c:LFB
            s_waitcnt vmcnt(0)""")
            self.spin_tail(top, done, o["sleep"])
            e("s_mov_b64 exec, -1")
            self.pt("qf")
            k2 = len(tags)
            QG = PA
            for k in range(4):
                qg = e.mem(f"buffer_load_dwordx4 {vr(QG+4*k,4)}, v{TMP}, {srd(SRD_WS)}, s{10+(k>>1)} offen offset:{16*(k&1)} sc1 ; c:LQB")
            k3 = min(k2, nl)
            slide(k1, k3, o["wk"])
            skip = self.only_wave(0)
            e.wait(qg)
            for r in range(8): e(f"v_add_f32 v{QG+r}, v{QG+r}, v{QG+8+r}")
            for r in range(4): e(f"v_cvt_pk_bf16_f32 v{QG+r}, v{QG+2*r}, v{QG+2*r+1}")
            e(f"""v_mov_b32 v{T}, 0
            v_mov_b32 v{T+1}, 1
            ds_write_b128 v{VL}, {vr(QG,4)} offset:{L_Q}
            s_waitcnt lgkmcnt(0)
            ds_write_b32 v{T}, v{T+1} offset:{L_F}
            {skip}:""")
            kq = max(k3, min(o["kq"], nl))
            slide(k3, kq, o["wk"])
            top, done = e.lab("L_spin"), e.lab("L_ok")
            e(f"""v_mov_b32 v{T}, 0
            s_mov_b32 s{S_SPIN}, {SPIN * 20}
            {top}:
            ds_read_b32 v{T+1}, v{T} offset:{L_F}
            ds_read_b128 {vr(QF,4)}, v{VK} offset:{L_Q}
            s_waitcnt lgkmcnt(0)
            v_cmp_eq_u32 vcc, 0, v{T+1}
            s_cbranch_vccz {done}""")
            self.spin_tail(top, done, 1)
            e(f"v_bfe_u32 v{T+5}, v0, 2, 2\nv_lshlrev_b32 v{T+5}, 5, v{T+5}\ns_lshl_b32 s10, s3, 2\nv_add_u32 v{T+6}, s10, v{T+5}")
            for z in range(0, 18, 4): e(f"v_mov_b32 v{PA+z}, 0\nv_mov_b32 v{PA+z+1}, 0")
            self.pt("q")
            SK = lambda k: D0 + 4 * k
            ahead = kq
            for i in range(n + 1):
                if i < n:
                    for j in range(min(4, nl - 4 * i)):
                        k = 4 * i + j
                        if k >= kq:
                            land(k); issue(k + 1 + (o["wk"] if k < nl - 4 else o["wt"]))
                        elif j == 0 and o["cu"]:
                            issue(len(tags) + o["cu"])
                        e(f"v_mfma_f32_16x16x32_bf16 {vr(SK(k),4)}, {vr(KR+4*k,4)}, {vr(QF,4)}, 0")
                if i > 0:
                    ks = [SK(k) for k in range(4 * (i - 1), min(4 * i, nl))]
                    self.quad_sum(ks)
                    self.max3_chain("f32", MX, ks if i == 1 else [MX] + ks)
            issue(nl + o["wt"])
            self.pt("k")
            self.swap_red("v_max_f32", MX, TMP, (16, 32))
            e(f"v_mul_f32 v{MX}, s{S_SC}, v{MX}\nds_write_b32 v{T+6}, v{MX} offset:{L_MAX}")
            for k in range(nl): e(f"v_fma_f32 v{SK(k)}, v{SK(k)}, s{S_SC}, -v{MX}")
            for k in range(nl): e(f"v_exp_f32 v{SK(k)}, v{SK(k)}")
            e(f"v_add_f32 v{LS}, v{SK(0)}, v{SK(1)}")
            for k in range(2, nl): e(f"v_add_f32 v{LS}, v{LS}, v{SK(k)}")
            for k in range(0, nl, 2): e(f"v_cvt_pk_bf16_f32 v{SK(k)}, v{SK(k)}, v{SK(min(k+1, nl-1))}")
            self.swap_red("v_add_f32", LS, TMP, (16, 32))
            skip = e.lab("L_skip")
            e(f"""ds_write_b32 v{T+6}, v{LS} offset:{L_L}
            v_mov_b32 v{T}, 0
            v_mov_b32 v{T+1}, 1
            s_mov_b64 exec, 1
            ds_add_rtn_u32 v{T+2}, v{T}, v{T+1} offset:{L_F+4}
            s_waitcnt lgkmcnt(0)
            v_cmp_eq_u32 vcc, 7, v{T+2}
            s_mov_b64 exec, -1
            s_cbranch_vccz {skip}
            v_and_b32 v{T}, 3, v0
            v_lshlrev_b32 v{T}, 5, v{T}
            ds_read_b128 {vr(U,4)}, v{T} offset:{L_MAX}
            ds_read_b128 {vr(U+4,4)}, v{T} offset:{L_MAX+16}
            ds_read_b128 {vr(QF,4)}, v{T} offset:{L_L}
            ds_read_b128 {vr(AC0,4)}, v{T} offset:{L_L+16}
            v_mov_b32 v{T+3}, s{TAG+1}
            s_lshl_b32 s10, s{S_B}, 3
            s_add_u32 s10, s10, s{S_G}
            s_mul_i32 s10, s10, 12
            s_add_u32 s10, s10, s{S_SP}
            s_lshl_b32 s10, s10, 6
            s_add_u32 s10, s10, {BS}
            s_mov_b32 s11, 0xffffff00
            s_waitcnt lgkmcnt(0)""")
            self.max3_chain("f32", T + 2, range(U, U + 8))
            for r in range(8): e(f"v_sub_f32 v{U+r}, v{U+r}, v{T+2}")
            for r in range(8): e(f"v_exp_f32 v{U+r}, v{U+r}")
            e(f"v_mul_f32 v{T+1}, v{U}, v{QF}")
            for r in range(1, 8): e(f"v_fmac_f32 v{T+1}, v{U+r}, v{QF+r}")
            e(f"""v_bfi_b32 v{U+2}, s11, v{T+1}, v{T+3}
            v_bfi_b32 v{U}, s11, v{T+2}, v{T+3}
            v_mov_b32 v{U+1}, s{TAG}
            v_mov_b32 v{U+3}, s{TAG}
            s_mov_b64 exec, 15
            buffer_store_dwordx4 {vr(U,4)}, v{VL}, {srd(SRD_WS)}, s10 offen sc1 ; c:BST
            s_mov_b64 exec, -1
            {skip}:""")
            self.pt("p")
            for i in range(n):
                for j in range(min(4, nl - 4 * i)):
                    k = 4 * i + j; pk = SK(k & ~1); p = PA + 2 + 4 * j
                    sa, sb = (SEL + 2, SEL + 3) if k & 1 else (SEL, SEL + 1)
                    e(f"v_perm_b32 v{p}, v{pk}, v{pk}, v{sa}\nv_perm_b32 v{p+1}, v{pk}, v{pk}, v{sb}")
                if i == n - 1:
                    top, done = e.lab("L_spin"), e.lab("L_ok")
                    e(f"""v_mov_b32 v{T}, 0
                    v_lshrrev_b32 v{T+1}, 4, v0
                    v_lshlrev_b32 v{T+1}, 5, v{T+1}
                    s_lshl_b32 s10, s3, 2
                    v_add_u32 v{T+2}, s10, v{T+1}
                    {top}:
                    ds_read_b32 v{T+3}, v{T} offset:{L_F+4}
                    ds_read_b128 {vr(U,4)}, v{T+1} offset:{L_MAX}
                    ds_read_b128 {vr(U+4,4)}, v{T+1} offset:{L_MAX+16}
                    ds_read_b32 v{LS}, v{T+2} offset:{L_MAX}
                    s_waitcnt lgkmcnt(0)
                    v_cmp_ne_u32 vcc, 8, v{T+3}
                    s_cbranch_vccz {done}""")
                    self.spin_tail(top, done, 1)
                    self.max3_chain("f32", MX, range(U, U + 8))
                    e(f"v_sub_f32 v{LS}, v{LS}, v{MX}\nv_exp_f32 v{LS}, v{LS}")
                    e(f"""s_lshl_b32 s10, s3, 11
                    v_lshl_add_u32 v{T}, v0, 5, s10
                    s_lshl_b32 s10, s3, 8
                    v_and_b32 v{T+2}, 31, v0
                    v_lshl_add_u32 v{T+1}, v{T+2}, 3, s10
                    v_lshlrev_b32 v{T+2}, 2, v0
                    s_lshl_b32 s10, s{S_G}, 2
                    s_lshr_b32 s11, s3, 1
                    s_add_u32 s10, s10, s11
                    s_lshl_b32 s10, s10, 15
                    s_mul_i32 s11, s{S_B}, 24
                    s_add_u32 s11, s11, s{S_SP}
                    s_add_u32 s11, s11, s{S_SP}
                    s_and_b32 s12, s3, 1
                    s_add_u32 s11, s11, s12
                    s_lshl_b32 s11, s11, 7
                    s_add_u32 s10, s10, s11
                    s_add_u32 s10, s10, {MB}""")
                for j in range(min(4, nl - 4 * i)):
                    k = 4 * i + j; p = PA + 2 + 4 * j
                    land(nl + k)
                    issue(nl + k + 1 + o["wv"])
                    e(f"v_mfma_f32_16x16x32_bf16 {vr(AC0,4)}, {vr(p,4)}, {vr(VR+4*k,4)}, {vr(AC0,4) if k else 0}")
                    e(f"v_mfma_f32_16x16x32_bf16 {vr(AC1,4)}, {vr(p-2,4)}, {vr(VR+4*k,4)}, {vr(AC1,4) if k else 0}")
            self.pt("v")
            for r in range(8): e(f"v_mul_f32 v{AC0+r}, v{AC0+r}, v{LS}")
            e(f"""ds_write_b128 v{T}, {vr(AC0,4)} offset:{L_RED}
            ds_write_b128 v{T}, {vr(AC1,4)} offset:{L_RED+16}
            s_waitcnt lgkmcnt(0)
            s_barrier""")
            for i in range(8): e(f"ds_read_b64 {vr(KR+2*i,2)}, v{T+1} offset:{L_RED+2048*i}")
            for i in range(0, 8, 2):
                e(f"s_waitcnt lgkmcnt({6-i})\nv_add_f32 v{KR+2*i}, v{KR+2*i}, v{KR+2*i+2}\nv_add_f32 v{KR+2*i+1}, v{KR+2*i+1}, v{KR+2*i+3}")
                if i == 2: e(f"v_add_f32 v{KR}, v{KR}, v{KR+4}\nv_add_f32 v{KR+1}, v{KR+1}, v{KR+5}")
                if i == 4: e(f"v_add_f32 v{KR}, v{KR}, v{KR+8}\nv_add_f32 v{KR+1}, v{KR+1}, v{KR+9}")
            e(f"""v_add_f32 v{KR}, v{KR}, v{KR+12}
            v_add_f32 v{KR+1}, v{KR+1}, v{KR+13}
            v_cvt_pk_bf16_f32 v{KR}, v{KR}, v{KR+1}
            v_min_u32 v{KR}, -2, v{KR}
            s_mov_b32 exec_hi, 0
            buffer_store_dword v{KR}, v{T+2}, {srd(SRD_WS)}, s10 offen sc1 ; c:MB1""")
            self.pt("end")
            if kind == "Q": e("s_mov_b64 exec, -1\ns_mov_b32 s4, s68\ns_cmp_lt_u32 s3, 4\ns_cbranch_scc1 L_ATAIL")
            self.stamp_out(100)
            e("s_endpgm")

    X_MAX, X_P, X_L, X_CNT = 0, 2048, 20480, 24576

    def row_addr(self, dst, t):
        self.e(f"""v_and_b32 v{t}, 3, v0
        v_lshlrev_b32 v{t}, 2, v{t}
        v_bfe_u32 v{t+1}, v0, 2, 2
        v_or_b32 v{t}, v{t}, v{t+1}
        v_lshrrev_b32 v{t+1}, 5, v0
        v_xor_b32 v{t}, v{t}, v{t+1}
        v_lshlrev_b32 v{t}, 4, v{t}
        v_and_b32 v{t+1}, 31, v0
        v_lshl_add_u32 v{dst}, v{t+1}, 10, v{t}""")

    X_AL = 22528

    def qk(self, rnd, S, FR, A, TA, creg):
        e = self.e
        seq = [(i, 2 * qp + q) for qp in range(2) for i in range(8) for q in range(2)]
        ks = lambda o: seq[o][0] + 8 * seq[o][1]
        qreg = lambda o: FR + 4 * o if o < 4 else creg(ks(o - 4))
        dst = qreg if rnd == 0 else (lambda o: FR + 16 + 4 * (o & 3))
        tg = {}
        e.ds_reset()
        def rd(o):
            if o & 1 == 0: e(f"v_xor_b32 v{TA+((o>>1)&1)}, {seq[o][0] << 5}, v{A}")
            tg[o] = e.ds(f"ds_read_b128 {vr(dst(o),4)}, v{TA+((o>>1)&1)} offset:{256*seq[o][1]}")
        for o in range(3): rd(o)
        for o in range(32):
            if o + 3 < 32: rd(o + 3)
            e.dswait(tg[o])
            c = creg(ks(o)) if rnd == 0 else dst(o)
            e(f"v_mfma_f32_32x32x16_bf16 {vr(S,16)}, {vr(c,4)}, {vr(qreg(o),4)}, {vr(S,16) if o else 0}")
            if rnd == 0 and o == 16: e("s_barrier")

    def stat_addr(self, d, t):
        self.e(f"""v_and_b32 v{d}, 15, v0
        v_lshlrev_b32 v{d}, 5, v{d}
        v_bfe_u32 v{t}, v0, 4, 1
        v_lshl_add_u32 v{d}, v{t}, 10, v{d}
        v_add_u32 v{d}, {X}, v{d}""")

    def softmax(self, rnd, S, P, M, LS, T, lw):
        e = self.e
        self.max3_chain("f32", T, range(S, S + 16))
        self.swap_red("v_max_f32", T, T + 1, (32,))
        e(f"""ds_write_b32 v{T+3}, v{T} offset:{self.X_MAX+16*rnd}
        s_waitcnt lgkmcnt(0)
        s_barrier
        ds_read_b128 {vr(P,4)}, v{T+2} offset:{self.X_MAX+16*rnd}""")
        if rnd == 0:
            e(f"""v_mov_b32 v{T}, {X+self.X_CNT}
            v_mov_b32 v{T+1}, 0
            ds_write2_b32 v{T}, v{T+1}, v{T+1} offset0:0 offset1:16
            ds_write2_b32 v{T}, v{T+1}, v{T+1} offset0:32 offset1:48""")
        e(f"""s_lshl_b32 s10, s{lw}, 11
        s_add_u32 s10, s10, {X+self.X_P+8192*rnd}
        v_lshl_add_u32 v{T+1}, v0, 4, s10
        s_waitcnt lgkmcnt(0)""")
        if rnd == 0:
            self.max3_chain("f32", M, range(P, P + 4))
            e(f"v_mul_f32 v{M}, s{S_SC}, v{M}")
        else:
            self.max3_chain("f32", T, range(P, P + 4))
            e(f"""v_mul_f32 v{T}, s{S_SC}, v{T}
            v_max_f32 v{T}, v{T}, v{M}
            v_sub_f32 v{M}, v{M}, v{T}
            v_exp_f32 v{P}, v{M}
            v_mov_b32 v{M}, v{T}
            v_mul_f32 v{LS}, v{LS}, v{P}""")
        for r in range(16): e(f"v_fma_f32 v{S+r}, v{S+r}, s{S_SC}, -v{M}")
        for r in range(16): e(f"v_exp_f32 v{S+r}, v{S+r}")
        for r in range(8): e(f"v_cvt_pk_bf16_f32 v{P+r}, v{S+2*r}, v{S+2*r+1}")
        e(f"ds_write_b128 v{T+1}, {vr(P,4)}\nds_write_b128 v{T+1}, {vr(P+4,4)} offset:1024")
        if rnd == 0:
            e("s_waitcnt lgkmcnt(0)\ns_barrier")
            self.tree("v_add_f32", S, 16, 1)
            e(f"v_mov_b32 v{LS}, v{S}")
        else:
            self.tree("v_add_f32", S, 16, 1)
            e(f"v_add_f32 v{S}, v{S}, v{LS}")
            self.swap_red("v_add_f32", S, T, (32,))
            e(f"ds_write_b32 v{T+3}, v{S} offset:{self.X_L}\ns_waitcnt lgkmcnt(0)\ns_barrier")

    def qk1(self, S, FR, AQ, TA, creg=None, AC=None):
        e = self.e
        groups = [(qp, i) for qp in range(2) for i in range(8)]
        buf = (lambda g: FR + 8 * (g & 3)) if creg else (lambda g: FR + 16 * (g & 1))
        tg = {}
        e.ds_reset()
        def rd(g):
            qp, i = groups[g]; f = buf(g)
            e(f"v_xor_b32 v{TA}, {i << 5}, v{AQ}")
            if not creg: e(f"v_xor_b32 v{TA+1}, {i << 5}, v{AC}")
            for q in range(2):
                tg[g, q] = e.ds(f"ds_read_b128 {vr(f+4*q,4)}, v{TA} offset:{512*qp+256*q}")
                if not creg: tg[g, q] = e.ds(f"ds_read_b128 {vr(f+8+4*q,4)}, v{TA+1} offset:{512*qp+256*q}")
        ahead = 3 if creg else 1
        for g in range(ahead): rd(g)
        for g in range(16):
            if g + ahead < 16: rd(g + ahead)
            qp, i = groups[g]; f = buf(g)
            for q in range(2):
                e.dswait(tg[g, q])
                c = creg(i + 8 * (2 * qp + q)) if creg else f + 8 + 4 * q
                e(f"v_mfma_f32_32x32x16_bf16 {vr(S,16)}, {vr(c,4)}, {vr(f+4*q,4)}, {vr(S,16) if g or q else 0}")
            if g == 8: e("s_barrier")

    def softmax1(self, S, P, M, T, tile):
        e = self.e
        e(f"""v_and_b32 v{T+2}, 15, v0
        v_lshlrev_b32 v{T+2}, 5, v{T+2}
        v_bfe_u32 v{T+3}, v0, 4, 1
        v_lshl_add_u32 v{T+2}, v{T+3}, 10, v{T+2}
        v_add_u32 v{T+2}, {X}, v{T+2}
        s_lshl_b32 s10, s3, 2
        v_add_u32 v{T+3}, s10, v{T+2}""")
        self.max3_chain("f32", T, range(S, S + 16))
        self.swap_red("v_max_f32", T, T + 1, (32,))
        e(f"""ds_write_b32 v{T+3}, v{T} offset:{self.X_MAX}
        s_waitcnt lgkmcnt(0)
        s_barrier
        ds_read_b128 {vr(P,4)}, v{T+2} offset:{self.X_MAX}
        ds_read_b128 {vr(P+4,4)}, v{T+2} offset:{self.X_MAX+16}
        v_mov_b32 v{T}, {X+self.X_CNT}
        v_mov_b32 v{T+1}, 0
        ds_write2_b32 v{T}, v{T+1}, v{T+1} offset0:0 offset1:16
        ds_write2_b32 v{T}, v{T+1}, v{T+1} offset0:32 offset1:48
        s_lshl_b32 s10, s{tile}, 11
        s_add_u32 s10, s10, {X+self.X_P}
        v_lshl_add_u32 v{T+1}, v0, 4, s10
        s_waitcnt lgkmcnt(0)""")
        self.max3_chain("f32", M, range(P, P + 8))
        e(f"v_mul_f32 v{M}, s{S_SC}, v{M}")
        for r in range(16): e(f"v_fma_f32 v{S+r}, v{S+r}, s{S_SC}, -v{M}")
        for r in range(16): e(f"v_exp_f32 v{S+r}, v{S+r}")
        for r in range(8): e(f"v_cvt_pk_bf16_f32 v{P+r}, v{S+2*r}, v{S+2*r+1}")
        e(f"ds_write_b128 v{T+1}, {vr(P,4)}\nds_write_b128 v{T+1}, {vr(P+4,4)} offset:1024")
        self.tree("v_add_f32", S, 16, 1)
        self.swap_red("v_add_f32", S, T, (32,))
        e(f"ds_write_b32 v{T+3}, v{S} offset:{self.X_L}\ns_waitcnt lgkmcnt(0)\ns_barrier")

    VL, VW, TMP, SEL, BLO, BHI, T, U, W, G, WUV, AC0, AC1, PA, XR = 1, 2, 3, 4, 8, 9, 10, 16, 32, 96, 160, 224, 228, 232, 244
    A_CW, A_CR, A_MB = 13, 14, 15
    S_LW, S_PART, S_PRIV, S_MBJ = 5, 6, 7, 8

    def vw_addr(self):
        VW, T = self.VW, self.T
        self.e(f"""v_lshrrev_b32 v{VW}, 4, v0
        v_lshlrev_b32 v{VW}, 14, v{VW}
        v_and_b32 v{T+1}, 15, v0
        v_lshl_add_u32 v{VW}, v{T+1}, 4, v{VW}""")

    def tail_setup(self):
        VL, T, A_CW, A_CR, A_MB = self.VL, self.T, self.A_CW, self.A_CR, self.A_MB
        self.e(f"""v_lshlrev_b32 v{VL}, 4, v0
        s_lshl_b32 s{self.S_PRIV}, s3, 11
        s_lshl_b32 s{self.S_MBJ}, s4, 14
        s_add_u32 s{self.S_MBJ}, s{self.S_MBJ}, {MB}
        v_lshl_add_u32 v{A_CW}, v0, 2, s{self.S_PRIV}
        v_bfe_u32 v{A_CR}, v0, 3, 1
        v_lshlrev_b32 v{A_CR}, 7, v{A_CR}
        v_lshrrev_b32 v{T+1}, 4, v0
        v_lshl_add_u32 v{A_CR}, v{T+1}, 5, v{A_CR}
        v_add_u32 v{A_CR}, s{self.S_PRIV}, v{A_CR}
        v_lshrrev_b32 v{A_MB}, 5, v0
        v_lshlrev_b32 v{A_MB}, 17, v{A_MB}
        v_bfe_u32 v{T+1}, v0, 3, 1
        v_lshl_add_u32 v{A_MB}, v{T+1}, 14, v{A_MB}
        v_and_b32 v{T+1}, 7, v0
        v_lshl_add_u32 v{A_MB}, v{T+1}, 4, v{A_MB}""")
        self.selectors(self.SEL, self.BLO, self.BHI, self.TMP)

    def core_selectors(self):
        e = self.e
        e(f"v_mov_b32 v{self.TMP}, 0x0c0c0c0c")
        for h, base in enumerate((self.BLO, self.BHI)):
            for j in range(4): e(f"v_cndmask_b32 v{208+4*h+j}, v{self.TMP}, v{base}, s[{MASK0+2*j}:{MASK0+2*j+1}]")

    def wload(self, s, t0=0, t1=16):
        e = self.e
        if "now" in self.x or t0 >= t1: return
        e(f"s_lshl_b32 s10, s4, 16\ns_lshl_b32 s11, s{self.S_LW}, 8\ns_add_u32 s10, s10, s11")
        if t0: e(f"s_add_u32 s10, s10, {1024 * t0}")
        for t in range(t0, t1):
            e.mem(f"buffer_load_dwordx4 {vr(self.W+4*t,4)}, v{self.VW}, {srd(s)}, s10 offen offset:{1024*(t&3)} nt")
            if t & 3 == 3: e("s_add_u32 s10, s10, 4096")

    def a_compute(self):
        e = self.e; e.vm = 0
        AC, AT, AQ, M, TA, T = 1, 2, 3, 4, 6, 8
        FR, S, O, PV = 16, 48, 64, 128
        e("L_AC:")
        self.role = "AC"
        self.pt("start")
        if self.o["cpf"]:
            here = e.lab("L_pc")
            e(f"""s_getpc_b64 s[10:11]
            {here}:
            s_sub_u32 s10, s10, {here}-{NAME}_kernel
            s_subb_u32 s11, s11, 0
            s_lshl_b32 s12, s3, 13
            v_lshl_add_u32 v{T+1}, v0, 7, s12""")
            for i in range(self.o["cpf"]):
                e(f"""v_cmp_gt_u32 vcc, L_END-{NAME}_kernel, v{T+1}
                s_and_saveexec_b64 s[12:13], vcc
                s_cbranch_execz L_cpf{i}
                global_load_dword v{254+i}, v{T+1}, s[10:11]
                L_cpf{i}:
                s_mov_b64 exec, -1
                v_add_u32 v{T+1}, 32768, v{T+1}""")
        e.L.append("; split")
        e(f"v_lshlrev_b32 v{T}, 4, v0\ns_waitcnt lgkmcnt(0)")
        self.epoch_load()
        self.mk_srd(SRD_WS, P_WS, WS_USED); self.mk_srd(SRD_D, P_BWO, 4 << 20); self.mk_srd(SRD_E, P_OUT, 4096)
        for r in range(4): e(f"v_mov_b32 v{FR+r}, -1")
        def clears():
            skip = e.lab("L_skip"); two = e.lab("L_two")
            e(f"""s_and_b32 s10, s4, 62
            s_lshl_b32 s10, s10, 14
            s_and_b32 s11, s4, 1
            s_mul_i32 s11, s11, 3072
            s_add_u32 s10, s10, s11
            s_add_u32 s10, s10, {MB}
            s_cmp_eq_u32 s3, 0
            s_cbranch_scc1 {two}
            s_cmp_eq_u32 s3, 1
            s_cbranch_scc1 {skip}
            s_cmp_ge_u32 s4, 32
            s_cbranch_scc1 {skip}
            s_lshl_b32 s10, s4, 14
            s_lshl_b32 s11, s3, 12
            s_add_u32 s10, s10, s11
            s_add_u32 s10, s10, {MB}
            buffer_store_dwordx4 {vr(FR,4)}, v{T}, {srd(SRD_WS)}, s10 offen offset:3072 sc1 ; c:CLR
            {two}:""")
            for i in range(3): e(f"buffer_store_dwordx4 {vr(FR,4)}, v{T}, {srd(SRD_WS)}, s10 offen offset:{1024*i} sc1 ; c:CLR")
            e(f"{skip}:")
        cat = self.o["clr_at"]
        if cat < 0: clears()
        e(f"s_mov_b32 s{S_SC}, {f2u(SCALE):#x}\ns_mov_b32 s{S_SPIN}, {SPIN}")
        self.row_addr(AC, T + 1)
        e(f"""v_add_u32 v{AQ}, {X}, v{AC}
        s_lshl_b32 s10, s3, 15
        v_add_u32 v{AC}, s10, v{AC}
        v_lshrrev_b32 v{T+2}, 5, v0
        v_bfe_u32 v{T+1}, v0, 2, 2
        v_lshl_add_u32 v{T+3}, v{T+2}, 2, v{T+1}
        v_lshlrev_b32 v{AT}, 10, v{T+3}
        v_bfe_u32 v{T+3}, v0, 4, 1
        v_lshlrev_b32 v{T+3}, 1, v{T+3}
        v_bfe_u32 v{T+4}, v0, 1, 1
        v_or_b32 v{T+3}, v{T+3}, v{T+4}
        v_xor_b32 v{T+3}, v{T+3}, v{T+2}
        v_lshl_add_u32 v{T+3}, v{T+1}, 2, v{T+3}
        v_lshl_add_u32 v{AT}, v{T+3}, 4, v{AT}
        v_and_b32 v{T+3}, 1, v0
        v_lshl_add_u32 v{AT}, v{T+3}, 3, v{AT}
        s_lshl_b32 s10, s3, 8
        v_add_u32 v{AT}, s10, v{AT}""")
        self.epoch_tag()
        def tr_addr():
            for k in range(8):
                e(f"v_xor_b32 v{S+k}, {(2*k) << 4}, v{AT}")
                if k & 1: e(f"v_add_u32 v{S+k}, 8192, v{S+k}")
        def tr_step():
            for k in range(8): e(f"v_add_u32 v{S+k}, 65536, v{S+k}")
        def tr_ct(u, ct):
            for hh in range(2):
                last = e.ds(f"ds_read_b64_tr_b16 {vr(PV+16*(u&7)+4*ct+2*hh,2)}, v{S+2*ct+hh} offset:{32768*((u>>1)&1)+16384*(u&1)}")
            return last
        tr_addr()
        e(f"""s_and_b32 s9, s4, {self.o["rep"] - 1}
        s_lshl_b32 s9, s9, 11
        s_add_u32 s9, s9, {FA}
        v_lshlrev_b32 v{FR+10}, 3, v0""")
        def qc_load():
            for i in range(3): e(f"buffer_load_dwordx2 {vr(FR+4+2*i,2)}, v{FR+10}, {srd(SRD_WS)}, s9 offen offset:{512*i} sc1 ; c:LQC")
        def q_load():
            for i in range(8): e(f"buffer_load_dwordx4 {vr(O+4*i,4)}, v{T}, {srd(SRD_WS)}, s{70+(i>>2)} offen offset:{1024*(i&3)} sc1 ; c:LQA")
        e(f"""s_lshr_b32 s70, s4, 5
        s_lshl_b32 s70, s70, 15
        s_lshl_b32 s71, s3, 13
        s_add_u32 s70, s70, s71
        s_add_u32 s70, s70, {QAP}
        s_add_u32 s71, s70, 4096""")
        qat = self.o["qat"]
        def flags():
            top, done = e.lab("L_spin"), e.lab("L_ok")
            e(f"""s_cmp_lg_u32 s3, 0
            s_cbranch_scc1 {done}
            {top}:
            s_waitcnt vmcnt(0)
            v_cmp_ne_u64 vcc, s[{TAG}:{TAG+1}], {vr(FR+4,2)}
            v_cmp_ne_u64 s[12:13], s[{TAG}:{TAG+1}], {vr(FR+6,2)}
            s_or_b64 vcc, vcc, s[12:13]
            v_cmp_ne_u64 s[12:13], s[{TAG}:{TAG+1}], {vr(FR+8,2)}
            s_or_b64 vcc, vcc, s[12:13]
            s_cbranch_vccz {done}""")
            qc_load()
            self.spin_tail(top, done)
        for t in range(4):
            if t == 1: e("s_waitcnt vmcnt(0)")
            e("s_barrier")
            self.pt(f"t{t}")
            if t == 1:
                skip = self.only_wave(0)
                e("s_lshr_b32 s12, s4, 3\ns_and_b32 s13, s4, 7\ns_add_u32 s13, s13, 8")
                self.post_b(12, 13, FR)
                self.post_a(4, 1024, FR + 12)
                e(f"{skip}:")
            if t == self.o["fat"]:
                skip = self.only_wave(0); qc_load(); e(f"{skip}:")
            if t == 2: tr_step()
            e.ds_reset()
            for u in (2 * t, 2 * t + 1):
                for ct in range(4): tr_ct(u, ct)
            e("s_waitcnt lgkmcnt(0)")
        if self.o["late"]: e("s_barrier")
        flags()
        e("s_barrier")
        self.pt("half")
        q_load()
        e(f"""s_lshl_b32 s12, s3, 13
        s_add_u32 s12, s12, {X}
        s_and_b32 s13, s3, 1
        s_lshl_b32 s13, s13, 5
        v_xor_b32 v{T+1}, s13, v{T}
        v_add_u32 v{T+1}, s12, v{T+1}""")
        top, done = e.lab("L_spin"), e.lab("L_ok")
        e(f"{top}:\ns_waitcnt vmcnt(0)")
        self.max3_chain("u32", T + 2, range(O, O + 16)); self.max3_chain("u32", T + 3, range(O + 16, O + 32))
        e(f"v_max_u32 v{T+2}, v{T+2}, v{T+3}\nv_cmp_eq_u32 vcc, -1, v{T+2}\ns_cbranch_vccz {done}")
        self.pt("qr")
        q_load()
        self.spin_tail(top, done)
        self.pt("qd")
        for i in range(8):
            sw = ((i & 3) << 2) | (i >> 2)
            e(f"v_xor_b32 v{TA+(i&1)}, {sw << 4}, v{T+1}\nds_write_b128 v{TA+(i&1)}, {vr(O+4*i,4)} offset:{1024*i}")
        if self.o["r2"]:
            e("s_waitcnt lgkmcnt(0)\ns_barrier")
            self.pt("b1")
            e(f"v_add_u32 v{T}, {X+self.X_P}, v{T}")
            self.stat_addr(T + 3, T + 1)
            e(f"""s_lshl_b32 s10, s3, 7
            s_add_u32 s10, s10, {X+self.X_AL}
            v_and_b32 v{T+1}, 31, v0
            v_lshl_add_u32 v{AQ}, v{T+1}, 2, s10
            v_lshrrev_b32 v{T+1}, 5, v0
            v_lshl_add_u32 v{AC}, v{T+1}, 4, s10""")
            tr_addr()
            def pv(rnd):
                e.ds_reset()
                pt_ = [e.ds(f"ds_read_b128 {vr(FR+4*u,4)}, v{T} offset:{8192*rnd+1024*u}") for u in range(8)]
                for u in range(8):
                    e.dswait(pt_[u])
                    for ct in range(4):
                        e(f"v_mfma_f32_32x32x16_bf16 {vr(O+16*ct,16)}, {vr(FR+4*u,4)}, {vr(PV+16*u+4*ct,4)}, {vr(O+16*ct,16) if u or rnd else 0}")
            e("s_barrier\ns_barrier\ns_barrier")
            self.pt("bp0")
            pv(0)
            e("s_barrier")
            self.pt("bd")
            e.ds_reset()
            for u in range(8):
                if u == 4: tr_step()
                for ct in range(4): tr_ct(u, ct)
            e(f"""s_waitcnt lgkmcnt(0)
            s_barrier
            ds_read_b128 {vr(FR,4)}, v{T+3} offset:{self.X_MAX}
            ds_read_b128 {vr(FR+4,4)}, v{T+3} offset:{self.X_MAX+16}
            s_waitcnt lgkmcnt(0)""")
            self.max3_chain("f32", T + 1, range(FR, FR + 4))
            self.max3_chain("f32", M, [T + 1] + list(range(FR + 4, FR + 8)))
            e(f"""v_mul_f32 v{T+1}, s{S_SC}, v{T+1}
            v_mul_f32 v{M}, s{S_SC}, v{M}
            v_sub_f32 v{T+1}, v{T+1}, v{M}
            v_exp_f32 v{T+1}, v{T+1}
            ds_write_b32 v{AQ}, v{T+1}""")
            for q in range(4): e(f"ds_read_b128 {vr(S+4*q,4)}, v{AC} offset:{32*q}")
            e("s_waitcnt lgkmcnt(0)")
            for ct in range(4):
                for r in range(16): e(f"v_mul_f32 v{O+16*ct+r}, v{O+16*ct+r}, v{S+r}")
            e("s_barrier")
            self.pt("bp")
            pv(1)
        else:
            e("s_add_u32 s9, s3, 4\ns_waitcnt lgkmcnt(0)\ns_barrier")
            self.pt("b1")
            self.qk1(S, FR, AQ, TA, AC=AC)
            self.pt("qk")
            self.softmax1(S, FR, M, T + 1, 9)
            self.pt("bp")
            e(f"v_add_u32 v{T}, {X+self.X_P}, v{T}")
            e.ds_reset()
            pt_, tt_ = {}, {}
            def pread(u): pt_[u] = e.ds(f"ds_read_b128 {vr(FR+4*(u&7),4)}, v{T} offset:{1024*u}")
            for u in range(8): pread(u)
            tr_addr()
            for u in range(16):
                e.dswait(max(pt_[u], tt_.get(u, 0)))
                if u == 4: tr_step()
                for ct in range(4):
                    e(f"v_mfma_f32_32x32x16_bf16 {vr(O+16*ct,16)}, {vr(FR+4*(u&7),4)}, {vr(PV+16*(u&7)+4*ct,4)}, {vr(O+16*ct,16) if u else 0}")
                    if u < 8: tt_[u + 8] = tr_ct(u + 8, ct)
                if u < 8: pread(u + 8)
        self.pt("pv")
        e(f"""v_lshrrev_b32 v{T}, 5, v0
        v_lshlrev_b32 v{T}, 18, v{T}
        v_bfe_u32 v{T+1}, v0, 4, 1
        v_lshl_add_u32 v{T}, v{T+1}, 16, v{T}
        v_and_b32 v{T+1}, 15, v0
        v_lshl_add_u32 v{T}, v{T+1}, 4, v{T}
        s_lshl_b32 s10, s4, 10
        s_lshl_b32 s11, s3, 8
        s_add_u32 s10, s10, s11
        s_add_u32 s10, s10, {AP}""")
        for r in range(16):
            d = FR + 2 * r
            e(f"v_cvt_pk_bf16_f32 v{d}, v{O+r}, v{O+16+r}\nv_cvt_pk_bf16_f32 v{d+1}, v{O+32+r}, v{O+48+r}")
            if r >= 3 and r & 1:
                k = FR + 2 * (r - 3)
                e(f"v_permlane16_swap_b32 v{k}, v{k+2}\nv_permlane16_swap_b32 v{k+1}, v{k+3}")
                e(f"buffer_store_dwordx4 {vr(k,4)}, v{T}, {srd(SRD_WS)}, s10 offen sc1 ; c:AP")
                e(f"s_add_u32 s10, s10, {65536 * (6 if (r - 3) & 2 else 2)}")
        k = FR + 28
        e(f"v_permlane16_swap_b32 v{k}, v{k+2}\nv_permlane16_swap_b32 v{k+1}, v{k+3}")
        e(f"buffer_store_dwordx4 {vr(k,4)}, v{T}, {srd(SRD_WS)}, s10 offen sc1 ; c:AP")
        skip = self.only_wave(0)
        if not self.o["r2"]: e(f"ds_read_b128 {vr(S+4,4)}, v{T+3} offset:{self.X_L+16}")
        e(f"""ds_read_b128 {vr(S,4)}, v{T+3} offset:{self.X_L}
        v_lshlrev_b32 v{T+1}, 3, v0
        s_lshl_b32 s10, s4, 8
        s_add_u32 s10, s10, {AST}
        s_waitcnt lgkmcnt(0)""")
        self.tree("v_add_f32", S, 4 if self.o["r2"] else 8, 1)
        e(f"""v_mov_b32 v{S+1}, v{S}
        v_mov_b32 v{S}, v{M}
        s_mov_b32 exec_hi, 0
        buffer_store_dwordx2 {vr(S,2)}, v{T+1}, {srd(SRD_WS)}, s10 offen sc1
        s_mov_b64 exec, -1
        {skip}:
        s_mov_b32 s5, s3
        s_mov_b32 s6, 1""")
        skip = e.lab("L_skip")
        e(f"""v_mov_b32 v100, {X+self.X_CNT+64}
        v_mov_b32 v101, 1
        s_mov_b64 exec, 1
        s_waitcnt vmcnt(0)
        ds_add_rtn_u32 v102, v100, v101
        s_waitcnt lgkmcnt(0)
        v_cmp_eq_u32 vcc, 3, v102
        s_mov_b64 exec, -1
        s_cbranch_vccz {skip}""")
        if self.o["wb"]: e("buffer_wbl2 sc1\ns_waitcnt vmcnt(0)")
        self.post_a(4, 1536, 96)
        if self.o["fw"]:
            if self.o["fw"] == 2: e("s_waitcnt vmcnt(0)")
            self.lds_inc(X + self.X_CNT + 64, 100)
        e(f"{skip}:")
        self.pt("b9")
        self.vw_addr()
        self.tail_setup()
        self.masks(0x03030303, 0x03030303)
        self.core_selectors()
        if self.o["fw"]:
            self.lds_wait(X + self.X_CNT + 64, 100, 5)
            self.wload(SRD_D)
        else:
            self.wload(SRD_D)
            self.lds_wait(X + self.X_CNT + 64, 100)
        e(f"""s_mov_b32 s{S_SPIN}, {SPIN * 20}
        v_lshlrev_b32 v{self.A_CW}, 2, v0
        v_subrev_u32 v{self.A_CR}, s{self.S_PRIV}, v{self.A_CR}
        s_cmp_eq_u32 s3, 0
        s_cbranch_scc1 L_BPRE
        v_mov_b32 v100, {X + self.X_CNT + 128}
        s_waitcnt vmcnt(0)""")
        top = e.lab("L_spin")
        XR = self.XR
        e(f"""{top}:
        ds_read_b32 v101, v100
        ds_read_b128 {vr(XR,4)}, v{self.A_CR} offset:1024
        ds_read_b128 {vr(XR+4,4)}, v{self.A_CR} offset:1040
        s_waitcnt lgkmcnt(0)
        v_cmp_ne_u32 vcc, 0, v101
        s_cbranch_vccnz L_CORE2
        s_sub_u32 s{S_SPIN}, s{S_SPIN}, 1
        s_cbranch_scc0 {top}
        s_branch L_CORE2
        L_BPRE:
        s_mov_b32 s{S_SPIN}, {SPIN}
        v_mov_b32 v100, {X + self.X_CNT + 128}
        v_mov_b32 v101, 1""")
        self.b_pre()

    def b_pre(self):
        e = self.e
        T, U, G, A_CW, S_PRIV, S_MBJ = self.T, self.U, 104, self.A_CW, self.S_PRIV, self.S_MBJ
        e(f"""v_bfe_u32 v{T}, v0, 4, 1
        v_mul_u32_u24 v{T}, 6144, v{T}
        v_and_b32 v{T+1}, 15, v0
        v_lshl_add_u32 v{T}, v{T+1}, 6, v{T}
        s_lshr_b32 s10, s4, 3
        s_mul_i32 s10, s10, 768
        s_bfe_u32 s11, s4, 0x20001
        s_lshl_b32 s11, s11, 4
        s_add_u32 s10, s10, s11
        s_add_u32 s10, s10, {BS}
        s_mov_b32 s12, 0x0fff0fff
        s_mov_b32 s13, 0
        v_mov_b32 v{U+5}, 0xff
        s_mov_b64 exec, s[12:13]""")
        top, done = e.lab("L_spin"), e.lab("L_ok")
        e(f"""{top}:
        buffer_load_dwordx4 {vr(U,4)}, v{T}, {srd(SRD_WS)}, s10 offen sc1
        s_waitcnt vmcnt(0)""")
        self.tag_check(U, 2, U + 4)
        e(f"v_cmp_ne_u32 vcc, 0, v{U+4}\ns_cbranch_vccz {done}")
        self.spin_tail(top, done, self.o["sl_bs"])
        e(f"s_mov_b64 exec, -1\nv_and_b32 v{U+1}, 0xffffff00, v{U+2}\nv_and_b32 v{U}, 0xffffff00, v{U}")
        self.pt("bstat")
        e(f"""v_mov_b32 v{U+2}, 0xff800000
        v_cndmask_b32 v{U}, v{U+2}, v{U}, s[12:13]
        v_cndmask_b32 v{U+1}, 0, v{U+1}, s[12:13]
        v_mov_b32 v{U+2}, v{U}""")
        self.row_red("v_max_f32", U + 2, (1, 2, 4, 8))
        e(f"v_sub_f32 v{U}, v{U}, v{U+2}\nv_exp_f32 v{U}, v{U}\nv_mul_f32 v{U+1}, v{U}, v{U+1}")
        self.row_red("v_add_f32", U + 1, (1, 2, 4, 8))
        WA, AC0, XR, BLO, BHI = 160, self.AC0, self.XR, self.BLO, self.BHI
        e(f"""v_rcp_f32 v{U+1}, v{U+1}
        v_mul_f32 v{U}, v{U}, v{U+1}
        v_cvt_pk_bf16_f32 v{U}, v{U}, v{U}
        v_bfe_u32 v{T}, v0, 4, 1
        v_mul_u32_u24 v{T}, 24, v{T}
        v_and_b32 v{T+1}, 15, v0
        v_lshl_add_u32 v{T}, v{T+1}, 1, v{T}
        v_lshrrev_b32 v{T+2}, 4, v0
        v_mul_u32_u24 v{T+2}, 12, v{T+2}
        s_mov_b64 exec, s[12:13]
        ds_write_b16 v{T}, v{U} offset:1536
        s_mov_b64 exec, -1
        ds_read_b32 v{XR}, v{T+2} offset:1536
        ds_read_b32 v{XR+1}, v{T+2} offset:1540
        ds_read_b32 v{XR+2}, v{T+2} offset:1544
        v_lshlrev_b32 v{T}, 7, v{T+2}
        v_lshl_add_u32 v{T}, v{T+1}, 4, v{T}
        s_and_b32 s10, s4, 62
        s_lshl_b32 s10, s10, 14
        s_add_u32 s10, s10, {MB}
        v_lshrrev_b32 v{T+2}, 5, v0
        v_lshlrev_b32 v{T+2}, 7, v{T+2}
        v_and_b32 v{T+1}, 7, v0
        v_lshl_add_u32 v{T+2}, v{T+1}, 4, v{T+2}
        v_bfe_u32 v{T+1}, v0, 4, 1
        v_lshl_add_u32 v{T+2}, v{T+1}, 3, v{T+2}
        s_and_b32 s11, s4, 1
        s_lshl_b32 s11, s11, 3
        s_lshl_b32 s12, 0x00ff00ff, s11
        s_mov_b32 s13, s12
        s_mov_b32 s70, 0x00030003
        s_mov_b32 s71, 0x03000300
        s_waitcnt lgkmcnt(0)""")
        for t in range(6): e(f"v_perm_b32 v{U+t}, v{XR+(t>>1)}, v{XR+(t>>1)}, v{BHI if t & 1 else BLO}")
        for j in range(4):
            for t in range(6): e(f"v_cndmask_b32 v{WA+4*t+j}, 0, v{U+t}, s[70:71]")
            if j < 3: e("s_lshl_b32 s70, s70, 2\ns_lshl_b32 s71, s71, 2")
        def chain(g, t):
            if t == 0: e(f"v_max3_u32 v{T+1}, v{g}, v{g+1}, v{g+2}\nv_max_u32 v{T+1}, v{T+1}, v{g+3}")
            else: e(f"v_max3_u32 v{T+1}, v{T+1}, v{g}, v{g+1}\nv_max3_u32 v{T+1}, v{T+1}, v{g+2}, v{g+3}")
        def use(k, t):
            g = G + 24 * k + 4 * t
            e(f"v_mfma_f32_16x16x32_bf16 {vr(AC0,4)}, {vr(WA+4*t,4)}, {vr(g,4)}, {vr(AC0,4) if t else 0}"); chain(g, t)
        if self.o["gate"] >= 0:
            top, done = e.lab("L_spin"), e.lab("L_ok")
            e(f"{top}:")
            for t in range(6): e(f"buffer_load_dword v{G+t}, v{T}, {srd(SRD_WS)}, s10 offen offset:{256*t} sc1 ; c:LMB")
            e("s_mov_b32 s70, 0")
            for t in range(6):
                e(f"""s_waitcnt vmcnt({5-t})
                v_cmp_eq_u32 vcc, -1, v{G+t}
                s_and_b64 vcc, vcc, s[12:13]
                s_bcnt1_i32_b64 s71, vcc
                s_add_u32 s70, s70, s71""")
            e(f"s_cmp_le_u32 s70, {8 * self.o['gate']}\ns_cbranch_scc1 {done}")
            self.spin_tail(top, done, self.o["sl_bo"])
        self.poll_loop(6, lambda k, t: e(f"buffer_load_dwordx4 {vr(G+24*k+4*t,4)}, v{T}, {srd(SRD_WS)}, s10 offen offset:{256*t} sc1 ; c:LMB"),
                       use, lambda: e(f"v_cmp_eq_u32 vcc, -1, v{T+1}\ns_and_b64 vcc, vcc, s[12:13]"), self.o["ps1"], "or")
        self.pt("bo")
        e(f"""s_mov_b64 exec, s[12:13]
        v_cvt_pk_bf16_f32 v{U}, v{AC0}, v{AC0+1}
        v_cvt_pk_bf16_f32 v{U+1}, v{AC0+2}, v{AC0+3}
        ds_write_b64 v{T+2}, {vr(U,2)} offset:1024
        s_mov_b64 exec, -1
        ds_write_b32 v100, v101
        s_branch L_CORE1""")

    def a_loader(self):
        e = self.e; e.vm = 0
        VL, VW, TMP, SEL, BLO, BHI, T, U, W, G, WUV, AC0, AC1, PA, XR = (self.VL, self.VW, self.TMP, self.SEL, self.BLO,
            self.BHI, self.T, self.U, self.W, self.G, self.WUV, self.AC0, self.AC1, self.PA, self.XR)
        S_LW, S_PART, S_PRIV, S_MBJ = self.S_LW, self.S_PART, self.S_PRIV, self.S_MBJ
        XO, S, FR, AQ, AC, TA, M = 232, 16, 224, 4, 5, 6, 8
        CNT = X + self.X_CNT
        creg = lambda ks: (W + 4 * ks) if ks < 16 else (WUV + 4 * (ks - 16))
        e("L_AL:")
        self.role = "AL"
        self.pt("start")
        e(f"""s_sub_u32 s{S_LW}, s3, 4
        s_and_b32 s10, s3, 1
        s_lshl_b32 s10, s10, 5
        v_lshlrev_b32 v{VL}, 4, v0
        v_xor_b32 v{T}, s10, v{VL}""")
        for i in range(8): e(f"v_xor_b32 v{XO+i}, {(((i & 3) << 2) | (i >> 2)) << 4}, v{T}")
        e(f"""s_lshl_b32 s66, s4, 18
        s_lshl_b32 s67, s{S_LW}, 13
        s_add_u32 s66, s66, s67
        s_waitcnt lgkmcnt(0)""")
        self.mk_srd(SRD_A, P_CKV, 16 << 20)
        dma = []
        def dma_tile(t):
            for r in range(8):
                if r & 3 == 0: e("s_mov_b32 m0, s67")
                last = e.mem(f"buffer_load_dwordx4 v{XO+r}, {srd(SRD_A)}, s66 offen offset:{1024*(r&3)} nt lds")
                if r == 3: e("s_add_u32 s66, s66, 4096\ns_add_u32 s67, s67, 4096")
                if r == 7: e(f"s_add_u32 s66, s66, 28672\ns_add_u32 s67, s67, {28672 if t != 3 else (28672 - 131072) & 0xffffffff:#x}")
            dma.append(last)
        a0 = self.o["a0"]
        dma_tile(0)
        e.L.append("; split")
        for t in range(1, a0): dma_tile(t)
        if self.stamps: self.mk_srd(SRD_WS, P_WS, WS_USED)
        self.row_addr(AC, T)
        e(f"""v_add_u32 v{AQ}, {X}, v{AC}
        s_lshl_b32 s10, s{S_LW}, 15
        v_add_u32 v{AC}, s10, v{AC}
        s_mov_b32 s{S_SC}, {f2u(SCALE):#x}""")
        for t in range(5):
            if t < 4: e.wait(dma[t])
            e("s_barrier")
            self.pt(f"bar{t}")
            while len(dma) < min(8, a0 + t + 1, 4 + t) or (t == 4 and len(dma) < 8): dma_tile(len(dma))
            self.pt(f"iss{t}")
            if t < 4:
                skip = self.only_wave(4 + t)
                for i in range(8):
                    e(f"v_xor_b32 v{TA+(i&1)}, {i << 5}, v{AC}")
                    for q in range(4): e(f"ds_read_b128 {vr(creg(i+8*q),4)}, v{TA+(i&1)} offset:{256*q}")
                    if i & 1: e("s_waitcnt lgkmcnt(4)")
                e(f"s_waitcnt lgkmcnt(0)\n{skip}:")
        if self.o["r2"]:
            self.stat_addr(T + 2, T + 3)
            if self.o["late"]: e("s_barrier")
            e(f"s_lshl_b32 s10, s{S_LW}, 2\nv_add_u32 v{T+3}, s10, v{T+2}\ns_barrier")
            self.qk(0, S, FR, AQ, TA, creg)
            self.softmax(0, S, FR + 16, M, TMP, T, S_LW)
            e("s_waitcnt vmcnt(0)")
            self.pt("dma")
            e("s_barrier")
            self.qk(1, S, FR, AC, TA, creg)
            self.softmax(1, S, FR + 16, M, TMP, T, S_LW)
        else:
            if self.o["late"]: e("s_barrier")
            e("s_waitcnt vmcnt(0)")
            self.pt("dma")
            e("s_barrier")
            self.qk1(S, FR, AQ, TA, creg=creg)
            self.softmax1(S, FR, M, T, S_LW)
        pv = self.o["pv"]
        if pv:
            npt = self.o["pb"]; assert self.o["pa"] == npt
            self.mk_srd(SRD_B, P_BV, 32 << 20)
            e(f"""s_lshr_b32 s10, s4, 3
            s_lshl_b32 s10, s10, 1
            s_lshr_b32 s11, s{S_LW}, 1
            s_add_u32 s10, s10, s11
            s_lshl_b32 s10, s10, 21
            s_and_b32 s11, s4, 7
            s_mul_i32 s11, s11, {8 * npt}
            s_and_b32 s12, s{S_LW}, 1
            s_lshl_b32 s12, s12, 1
            s_add_u32 s12, s12, {self.o['pvw']}
            s_mul_i32 s12, s12, {npt}
            s_add_u32 s11, s11, s12
            s_add_u32 s11, s11, {npt - pv}
            s_lshl_b32 s11, s11, 12
            s_add_u32 s10, s10, s11
            s_add_u32 s11, s10, {4096 * npt}""")
            if self.o["pvwait"]: self.lds_wait(X + self.X_CNT + 64, T)
            k = 0
            for t in range(pv):
                for sr in (10, 11):
                    for j in range(4):
                        if k >= self.o["pvwin"]: e(f"s_waitcnt vmcnt({self.o['pvwin'] - 1})")
                        e(f"buffer_load_dwordx4 {vr(32 + 4 * k, 4)}, v{VL}, {srd(SRD_B)}, s{sr} offen offset:{1024 * j} nt"); k += 1
                    e(f"s_add_u32 s{sr}, s{sr}, 4096")
            e("s_waitcnt vmcnt(0)")
        self.pt("end")
        self.stamp_out(32)
        e("s_endpgm")

    def a_tail(self):
        e = self.e; e.vm = 0
        VL, VW, TMP, SEL, BLO, BHI, T, U, W, G, AC0, AC1, PA, XR = (self.VL, self.VW, self.TMP, self.SEL, self.BLO,
            self.BHI, self.T, self.U, self.W, self.G, self.AC0, self.AC1, self.PA, self.XR)
        S_LW, S_PART, S_PRIV, S_MBJ = self.S_LW, self.S_PART, self.S_PRIV, self.S_MBJ
        UV, GA, L_W = 96, 160, 32768
        e("L_ATAIL:")
        self.role = "Q"
        e(f"s_mov_b32 s{S_LW}, s3\ns_mov_b32 s{S_PART}, 0\ns_mov_b32 s{S_SPIN}, {SPIN}")
        e(f"""s_cmp_eq_u32 s3, 0
        s_cselect_b32 s69, 0, 0x40000000
        s_and_b32 s70, s4, {self.o["rep"] - 1}
        s_lshl_b32 s70, s70, 11
        s_add_u32 s70, s70, {FA + 1536}
        s_add_u32 s70, s70, s69
        v_lshlrev_b32 v{U+2}, 3, v0""")
        if self.o["f1"]: e(f"buffer_load_dwordx2 {vr(U,2)}, v{U+2}, {srd(SRD_WS)}, s70 offen sc1")
        self.vw_addr()
        self.tail_setup()
        e(f"""s_lshl_b32 s10, s3, 14
        s_add_u32 s10, s10, {L_W}
        v_add_u32 v{T}, s10, v{VL}
        v_add_u32 v{T+1}, 65536, v{T}""")
        e.ds_reset()
        for t in range(16): e.ds(f"ds_read_b128 {vr(UV+4*t,4)}, v{T} offset:{1024*t}")
        for t in range(16): e.ds(f"ds_read_b128 {vr(W+4*t,4)}, v{T+1} offset:{1024*t}")
        top, done = e.lab("L_spin"), e.lab("L_ok")
        e(f"s_cmp_lg_u32 s3, 0\ns_cbranch_scc1 {done}")
        if not self.o["f1"]: e(f"buffer_load_dwordx2 {vr(U,2)}, v{U+2}, {srd(SRD_WS)}, s70 offen sc1")
        e(f"""{top}:
        s_waitcnt vmcnt(0)
        v_cmp_ne_u64 vcc, s[{TAG}:{TAG+1}], {vr(U,2)}
        s_cbranch_vccz {done}""")
        if self.o["sl_ap"]: e(f"s_sleep {self.o['sl_ap']}")
        e(f"buffer_load_dwordx2 {vr(U,2)}, v{U+2}, {srd(SRD_WS)}, s70 offen sc1")
        self.spin_tail(top, done)
        e("s_waitcnt vmcnt(0) lgkmcnt(0)\ns_barrier")
        self.pt("apf")
        e.vm = 0
        e(f"""s_lshr_b32 s12, s4, 1
        s_lshl_b32 s10, s12, 3
        s_add_u32 s10, s10, {AST}
        v_lshlrev_b32 v{T}, 8, v0""")
        st = e.mem(f"buffer_load_dwordx2 {vr(U,2)}, v{T}, {srd(SRD_WS)}, s10 offen sc1")
        e(f"""s_lshl_b32 s10, s12, 16
        s_lshl_b32 s11, s{S_LW}, 8
        s_add_u32 s10, s10, s11
        s_add_u32 s10, s10, {AP}""")
        g = []
        for t in range(16):
            g.append(e.mem(f"buffer_load_dwordx4 {vr(GA+4*t,4)}, v{VW}, {srd(SRD_WS)}, s10 offen offset:{1024*(t&3)} sc1 ; c:LAP"))
            if t & 3 == 3: e("s_add_u32 s10, s10, 4096")
        self.masks(0x00030003, 0x03000300)
        e(f"""v_lshl_add_u32 v{T}, v0, 1, s{S_PRIV}
        v_lshrrev_b32 v{T+1}, 4, v0
        v_lshl_add_u32 v{T+1}, v{T+1}, 5, s{S_PRIV}""")
        e.wait(st)
        e(f"v_mov_b32 v{U+2}, v{U}")
        self.row_red("v_max_f32", U + 2, (1, 2, 4, 8)); self.swap_red("v_max_f32", U + 2, TMP, (16,))
        e(f"v_sub_f32 v{U}, v{U}, v{U+2}\nv_exp_f32 v{U}, v{U}\nv_mul_f32 v{U+1}, v{U}, v{U+1}")
        self.row_red("v_add_f32", U + 1, (1, 2, 4, 8)); self.swap_red("v_add_f32", U + 1, TMP, (16,))
        e(f"""v_rcp_f32 v{U+1}, v{U+1}
        v_mul_f32 v{U}, v{U}, v{U+1}
        v_cvt_pk_bf16_f32 v{U}, v{U}, v{U}
        ds_write_b16 v{T}, v{U}
        s_waitcnt lgkmcnt(0)
        ds_read_b128 {vr(XR,4)}, v{T+1}
        ds_read_b128 {vr(XR+4,4)}, v{T+1} offset:16
        v_lshrrev_b32 v{T}, 5, v0
        v_lshlrev_b32 v{T}, 8, v{T}
        v_and_b32 v{T+1}, 15, v0
        v_lshl_add_u32 v{T}, v{T+1}, 1, v{T}
        v_bfe_u32 v{T+1}, v0, 4, 1
        v_lshl_add_u32 v{T}, v{T+1}, 5, v{T}
        v_add_u32 v{T}, s{S_PRIV}, v{T}
        v_bfe_u32 v{T+1}, v0, 3, 1
        v_lshlrev_b32 v{T+1}, 8, v{T+1}
        v_lshrrev_b32 v{T+2}, 4, v0
        v_lshl_add_u32 v{T+1}, v{T+2}, 6, v{T+1}
        v_bfe_u32 v{T+2}, v0, 2, 1
        v_lshl_add_u32 v{T+1}, v{T+2}, 5, v{T+1}
        v_add_u32 v{T+1}, s{S_PRIV}, v{T+1}
        s_waitcnt lgkmcnt(0)""")
        self.rws256(16, XR, GA, AC0, BLO, BHI, PA, g)
        self.pt("lat")
        e(f"""v_cvt_pk_bf16_f32 v{U}, v{AC0}, v{AC0+1}
        v_cvt_pk_bf16_f32 v{U+1}, v{AC0+2}, v{AC0+3}
        ds_write_b16 v{T}, v{U} offset:256
        ds_write_b16_d16_hi v{T}, v{U} offset:320
        ds_write_b16 v{T}, v{U+1} offset:384
        ds_write_b16_d16_hi v{T}, v{U+1} offset:448
        s_waitcnt lgkmcnt(0)
        ds_read_b128 {vr(XR,4)}, v{T+1} offset:256
        ds_read_b128 {vr(XR+4,4)}, v{T+1} offset:272""")
        for z in (0, 1, 4, 5, 8, 9): e(f"v_mov_b32 v{PA+z}, 0")
        e(f"""v_bfe_u32 v{T}, v0, 3, 1
        v_lshlrev_b32 v{T}, 9, v{T}
        v_lshrrev_b32 v{T+1}, 5, v0
        v_lshl_add_u32 v{T}, v{T+1}, 8, v{T}
        v_and_b32 v{T+1}, 7, v0
        v_lshl_add_u32 v{T}, v{T+1}, 5, v{T}
        s_lshl_b32 s10, s{S_LW}, 10
        v_add_u32 v{T}, s10, v{T}
        s_waitcnt lgkmcnt(0)""")
        self.rws128(16, XR, UV, AC0, AC1, SEL, PA)
        RED = 16384
        e(f"""s_mov_b32 exec_lo, 0xff0000ff
        s_mov_b32 exec_hi, 0xff0000ff
        ds_write_b128 v{T}, {vr(AC0,4)} offset:{RED}
        ds_write_b128 v{T}, {vr(AC1,4)} offset:{RED+16}
        s_mov_b64 exec, -1
        v_lshlrev_b32 v{T}, 3, v0""")
        self.masks(0x03030303, 0x03030303)
        self.core_selectors()
        e("s_waitcnt lgkmcnt(0)\ns_barrier")
        for i in range(8): e(f"ds_read_b64 {vr(U+2*i,2)}, v{T} offset:{RED+512*i}")
        e("s_waitcnt lgkmcnt(0)")
        self.tree("v_add_f32", U, 8, 2)
        self.pt("ctx")
        A_CW, A_CR, A_MB = self.A_CW, self.A_CR, self.A_MB
        e(f"""v_cvt_pk_bf16_f32 v{U}, v{U}, v{U+1}
        ds_write_b32 v{A_CW}, v{U} offset:1024
        L_CORE1:
        ds_read_b128 {vr(XR,4)}, v{A_CR} offset:1024
        ds_read_b128 {vr(XR+4,4)}, v{A_CR} offset:1040
        L_CORE2:
        s_lshl_b32 s10, s{S_LW}, 15
        s_lshl_b32 s11, s4, 7
        s_add_u32 s10, s10, s11
        s_lshl_b32 s11, s{S_PART}, 18
        s_add_u32 s10, s10, s11
        s_add_u32 s10, s10, {MB+MB_2}
        s_waitcnt lgkmcnt(0)""")
        self.pt("cx")
        CS = 208
        for t in range(16):
            a = PA + 2 + 4 * (t & 1)
            for j in range(4): e(f"v_perm_b32 v{a+j}, v{XR+(t>>1)}, v{XR+(t>>1)}, v{CS+4*(t&1)+j}")
            e(f"v_mfma_f32_16x16x32_bf16 {vr(AC0,4)}, {vr(a,4)}, {vr(W+4*t,4)}, {vr(AC0,4) if t else 0}")
        e(f"""v_cvt_pk_bf16_f32 v{AC1}, v{AC0}, v{AC0+1}
        v_cvt_pk_bf16_f32 v{AC1+1}, v{AC0+2}, v{AC0+3}
        v_min_u32 v{AC1}, -2, v{AC1}
        v_min_u32 v{AC1+1}, -2, v{AC1+1}
        v_mov_b32 v{AC1+2}, v{AC1}
        v_mov_b32 v{AC1+3}, v{AC1+1}
        v_permlane16_swap_b32 v{AC1}, v{AC1+2}
        v_permlane16_swap_b32 v{AC1+1}, v{AC1+3}
        s_mov_b32 exec_lo, 0xffff
        s_mov_b32 exec_hi, 0xffff
        buffer_store_dwordx4 {vr(AC1,4)}, v{A_MB}, {srd(SRD_WS)}, s10 offen sc1 ; c:MB2
        s_mov_b64 exec, -1""")
        self.pt("core")
        e(f"""s_lshr_b32 s10, s4, 4
        s_cmp_lg_u32 s10, s{S_PART}
        s_cbranch_scc1 L_FINDONE
        s_cmp_lg_u32 s{S_LW}, 0
        s_cbranch_scc1 L_FINDONE
        s_add_u32 s10, s{S_MBJ}, {MB_2}
        s_add_u32 s11, s10, 4096
        v_mov_b32 v{T}, 0x3f803f80
        v_perm_b32 v{PA+2}, v{T}, v{T}, v{SEL}
        v_perm_b32 v{PA+3}, v{T}, v{T}, v{SEL+1}""")
        for z in (0, 1, 4, 5): e(f"v_mov_b32 v{PA+z}, 0")
        def use(k, i):
            g = G + 32 * k + 4 * i
            e(f"v_mfma_f32_16x16x32_bf16 {vr(AC0,4)}, {vr(PA+2,4)}, {vr(g,4)}, {vr(AC0,4) if i else 0}")
            e(f"v_mfma_f32_16x16x32_bf16 {vr(AC1,4)}, {vr(PA,4)}, {vr(g,4)}, {vr(AC1,4) if i else 0}")
            if i == 0: e(f"v_max3_u32 v{T}, v{g}, v{g+1}, v{g+2}\nv_max_u32 v{T}, v{T}, v{g+3}")
            else: e(f"v_max3_u32 v{T}, v{T}, v{g}, v{g+1}\nv_max3_u32 v{T}, v{T}, v{g+2}, v{g+3}")
        self.poll_loop(8, lambda k, i: e(f"buffer_load_dwordx4 {vr(G+32*k+4*i,4)}, v{VL}, {srd(SRD_WS)}, s{10+(i>>2)} offen offset:{1024*(i&3)} sc1 ; c:LMB"),
                       use, lambda: e(f"v_cmp_eq_u32 vcc, -1, v{T}"), self.o["ps2"], "fr")
        self.pt("fp")
        for r in range(8): self.row_red("v_add_f32", AC0 + r, (8,))
        for r in range(4): e(f"v_cvt_pk_bf16_f32 v{U+r}, v{AC0+2*r}, v{AC0+2*r+1}")
        e(f"""s_bfe_u32 s10, s4, 0x10003
        s_lshl_b32 s10, s10, 11
        s_and_b32 s11, s4, 7
        s_lshl_b32 s11, s11, 7
        s_add_u32 s10, s10, s11
        s_lshl_b32 s11, s{S_PART}, 10
        s_add_u32 s10, s10, s11
        s_mov_b64 exec, 0xff
        buffer_store_dwordx4 {vr(U,4)}, v{VL}, {srd(SRD_E)}, s10 offen
        s_cmp_lg_u32 s4, 16
        s_cbranch_scc1 L_FINDONE
        s_mov_b64 exec, 1
        v_mov_b32 v{T}, s{TAG}
        s_mov_b32 s10, {EPOCH}
        buffer_store_dword v{T}, off, {srd(SRD_WS)}, s10
        L_FINDONE:""")
        self.pt("fin")
        self.stamp_out(16)
        e("s_endpgm")

    def build(self):
        e = self.e
        e("""s_cmp_ge_u32 s2, 256
        s_cbranch_scc1 L_END
        s_load_dwordx16 s[16:31], s[0:1], 0
        s_load_dwordx8 s[32:39], s[0:1], 64
        s_load_dwordx4 s[40:43], s[0:1], 96
        v_lshrrev_b32 v1, 6, v0
        v_and_b32 v0, 63, v0
        v_readfirstlane_b32 s3, v1
        s_sub_u32 s4, s2, 128""")
        tests = {"P": "s_cmp_lt_u32 s2, 128\ns_cbranch_scc1 L_P", "Q": "s_cmp_ge_u32 s2, 192\ns_cbranch_scc1 L_Q",
                 "L": "s_cmp_ge_u32 s5, 64\ns_cbranch_scc0 L_AL", "C": "s_cmp_lt_u32 s5, 64\ns_cbranch_scc1 L_AC"}
        order = self.o["order"]
        for r in order[1:]:
            if r == "L": e("s_cmp_ge_u32 s3, 4\ns_cselect_b32 s5, s4, 64")
            if r == "C": e("s_cmp_lt_u32 s3, 4\ns_cselect_b32 s5, s4, 64")
            e(tests[r])
        fn = {"P": lambda: self.bside("P"), "Q": lambda: (self.bside("Q"), self.a_tail()), "L": self.a_loader, "C": self.a_compute}
        marks = {}
        for r in order:
            i0 = len(e.L); fn[r](); marks[r] = (i0, len(e.L))
        if self.o["pack"]:
            heads, bodies = [], []
            for r in order:
                seg = e.L[marks[r][0]:marks[r][1]]
                k = seg.index("; split")
                heads += seg[:k] + [f"s_branch L_{r}_REST"]
                bodies += [f"L_{r}_REST:"] + seg[k + 1:]
            e.L = e.L[:marks[order[0]][0]] + heads + bodies
        e.L = [l for l in e.L if l != "; split"]
        e("L_END:\ns_endpgm")
        if "nobar" in self.x:
            i0 = e.L.index("L_P:"); i1 = e.L.index("L_AC:")
            e.L = e.L[:i0] + [l for l in e.L[i0:i1] if l != "s_barrier"] + e.L[i1:]
        if "nomath" in self.x:
            i0 = e.L.index("L_P:"); i1 = e.L.index("L_AC:")
            e.L = e.L[:i0] + [l for l in e.L[i0:i1] if not l.startswith(("v_mfma", "v_exp", "v_fma", "v_perm_", "v_add_f32", "v_mov_b32_dpp", "v_cvt", "v_max3"))] + e.L[i1:]
        if "noph1" in self.x:
            i0 = e.L.index("L_P:"); i1 = e.L.index("L_AC:")
            e.L = e.L[:i0] + [l for l in e.L[i0:i1] if not (l.startswith("buffer_load") and (srd(SRD_D) in l or srd(SRD_E) in l))] + e.L[i1:]
        for x in self.x:
            if x.startswith("c:"): e.L = [l for l in e.L if not l.endswith("; " + x)]
        for x in self.x:
            if x.startswith("m:"):
                tag, m = x[2:].split("=")
                e.L = [l.replace(" sc1", " " + m.replace("+", " ")) if l.endswith("; c:" + tag) else l for l in e.L]
            if x.startswith("allst="):
                m = x[6:].replace("+", " ")
                e.L = [l.replace(" sc1", " " + m if m else "") if l.startswith("buffer_store") else l for l in e.L]
        if "nost" in self.x:
            e.L = [l for l in e.L if not (l.startswith("buffer_store") and "sc1" in l)]
        if "nosc" in self.x:
            e.L = [l for l in e.L if not (l.startswith("buffer_load") and "sc1" in l)]
        if "noA" in self.x:
            for lab in ("L_AL:", "L_AC:"):
                i = e.L.index(lab); e.L.insert(i + 1, "s_endpgm")
        if "link" in self.x:
            e.L = [l.replace(", v1, s[48:51]", ", v2, s[48:51]") if l.startswith("buffer_load_dwordx4") and "lds" not in l else l for l in e.L]
        if self.o["wb"]: e.L = [l.replace(" sc1", "") if l.endswith("; c:AP") else l for l in e.L]
        body, npad = fix_hazards(e.L)
        out = [HEADER.rstrip(), "; @launch grid=(256,1,1) block=(512,1,1) lds=163840", DOC.strip(),
               '.amdgcn_target "amdgcn-amd-amdhsa--gfx950"', ".text", f".globl {NAME}_kernel", ".p2align 8",
               f".type {NAME}_kernel,@function", f"{NAME}_kernel:"]
        if not self.stamps: body = [l.split(" ; c:")[0] for l in body]
        out += [("" if l.endswith(":") else "    ") + l for l in body]
        out += ['.section .rodata,"a"', ".p2align 6", f".amdhsa_kernel {NAME}_kernel",
                "  .amdhsa_next_free_vgpr 256", "  .amdhsa_next_free_sgpr 102", "  .amdhsa_accum_offset 256",
                "  .amdhsa_group_segment_fixed_size 0", "  .amdhsa_kernarg_size 112", "  .amdhsa_user_sgpr_count 2",
                "  .amdhsa_user_sgpr_kernarg_segment_ptr 1", "  .amdhsa_system_sgpr_workgroup_id_x 1",
                ".end_amdhsa_kernel"]
        return "\n".join(out) + "\n", npad

DOC = """
; Softmax uses the true maximum of every split; splits are merged with their maxima and sums.
; Hand-offs go through d_ws with write-through stores and L1-bypassing loads. Flags and tagged words carry
"""

PTS = {"P": "start,xq,st,qf,q,k,v,end", "Q": "start,fin,w,free,end,core,apf,ctx",
       "AC": "start,fin,qd,b1,b9,core,pv,bo", "AL": "start,bar0,bar3,iss4,dma,x,y,end"}

if __name__ == "__main__":
    ap = argparse.ArgumentParser()
    ap.add_argument("out"); ap.add_argument("--stamps", action="store_true")
    ap.add_argument("--pts", action="append", default=[]); ap.add_argument("--x", default="")
    for k, v in DEFAULTS.items(): ap.add_argument("--" + k, type=int, default=v)
    ap.add_argument("--order", default="LPQC"); DEFAULTS["order"] = 0
    a = ap.parse_args()
    pts = {}
    if a.stamps:
        pts = {k: v.split(",") for k, v in PTS.items()}
        for p in a.pts:
            r, l = p.split(":"); pts[r] = l.split(",")
    s, npad = Gen({k: getattr(a, k) for k in DEFAULTS}, pts, set(a.x.split(","))).build()
    open(a.out, "w").write(s)
    print("wrote", a.out, "lines", s.count("\n"), "pads", npad)
```

```python
import sys, math, struct, argparse, re
from asmlib import Emit, fix_hazards

NAME = "concat_heads__compressed_kv_cla__gqa_block_cached__decode"
HEADER = open("cdna_kernels/%s.s.ref" % NAME).read().split("; Override launch")[0]

QBP = 0x000000
QAP = 0x020000
AST = 0x040000
BS  = 0x048000
FB  = 0x050000
EPOCH = 0x060000
FA  = 0x080000
MB  = 0x100000
MB_2 = 8192
AP  = 0x200000
XQ  = 0x400000
WS_USED = 0x500000
STAMPS = 0x800000

SCALE = math.log2(math.e) / math.sqrt(128.0)
def f2u(x): return struct.unpack("<I", struct.pack("<f", x))[0]

SRD_WS, SRD_A, SRD_B, SRD_C, SRD_D, SRD_E, SRD_F, SRD_G = 44, 48, 52, 56, 60, 64, 68, 96
P_AX, P_CKV, P_AWQ, P_WUK, P_WUV, P_AWO, P_BX, P_BK, P_BV, P_BWQ, P_BWO, P_OUT, P_DBG, P_WS = range(16, 44, 2)
S_SC, S_SPIN = 15, 14
MASK0 = 72
TAG = 94
ST0 = 16
SPIN = 20000
X = 131072

def srd(n): return f"s[{n}:{n+3}]"
def vr(a, n): return f"v[{a}:{a+n-1}]" if n > 1 else f"v{a}"

DEFAULTS = dict(hoist=1, al=12, qd=1, r2=1, fw=2, rep=8, late=0, f1=1, pe=0, gate=-1, ps1=2, ps2=2, clr_at=-1, cpf=1, t1x=2, il=1, pack=0, pa=6, pb=6, qa=4, qat=3, fat=2, uvb=0, pv=0, pvw=4, pvwait=1, pvwin=4, ne=4, we=2, sl_bo=0, kq=12, cu=2, wsb=0, wt1=8, pf1=1, pfwin=6, stw=0, sl_ap=4, sl_xq0=0, sl_xq=2, sl_qa=4, sl_bs=8, np=6, uv0=16, wa=0, wb=0, wc=0, pf=4, pfw=0, pre_q=0, uv1=8, a0=3, t2w=0, wq1=2, kq1=4, sleep=0, pre_p=0, w1=2, kf_p=0, kf_q=12, wq0=8, wk=8, wt=10, wv=8)

class Gen:
    def __init__(self, opt, pts, x):
        self.o = opt; self.alt = pts; self.x = x; self.role = None
        self.stamps = bool(pts)
        self.e = Emit()

    def mk_srd(self, d, p, size):
        self.e(f"s_mov_b32 s{d}, s{p}\ns_mov_b32 s{d+1}, s{p+1}\ns_mov_b32 s{d+2}, {size:#x}\ns_mov_b32 s{d+3}, 0x20000")

    def pt(self, name, role=None):
        sel = self.alt.get(role or self.role)
        if sel and name in sel:
            i = sel.index(name); self.e(f"s_memrealtime s[{80+2*i}:{81+2*i}]" if i < 7 else "s_memrealtime s[100:101]")

    def stamp_out(self, t):
        if not self.stamps: return
        e = self.e
        if "dbg" in self.x:
            skip = e.lab("L_skip")
            e(f"""s_waitcnt lgkmcnt(0)
            s_and_b32 s10, s2, 127
            s_lshl_b32 s10, s10, 3
            s_add_u32 s10, s10, s3
            s_cmp_lg_u32 s10, 0
            s_cbranch_scc1 {skip}
            s_lshr_b32 s10, s2, 7
            s_lshl_b32 s10, s10, 5
            s_mov_b64 exec, 1""")
            for x in self.x:
                if x.startswith("hold"):
                    top = e.lab("L_hold")
                    e(f"""{top}:
                    s_memrealtime s[12:13]
                    s_waitcnt lgkmcnt(0)
                    s_sub_u32 s12, s12, s80
                    s_cmp_lt_u32 s12, {int(x[4:])}
                    s_cbranch_scc1 {top}""")
            self.mk_srd(SRD_A, P_DBG, 256)
            regs = [80, 82, 84, 86, 88, 90, 92, 100]
            for k in range(8):
                e(f"s_sub_u32 s11, s{regs[k]}, {'s80' if k else '0'}\nv_mov_b32 v{t+k}, s11")
            e(f"buffer_store_dwordx4 v[{t}:{t+3}], off, {srd(SRD_A)}, s10\nbuffer_store_dwordx4 v[{t+4}:{t+7}], off, {srd(SRD_A)}, s10 offset:16")
            e(f"{skip}:")
            return
        e("s_waitcnt lgkmcnt(0)\ns_mov_b64 exec, 1")
        e(f"s_lshl_b32 s4, s2, 3\ns_add_u32 s4, s4, s3\ns_lshl_b32 s4, s4, 6\ns_add_u32 s4, s4, {STAMPS}")
        e(f"s_mov_b32 s{SRD_WS+2}, 0x1000000")
        regs = list(range(80, 94)) + [100, 101]
        for i in range(4):
            for k in range(4): e(f"v_mov_b32 v{t+k}, s{regs[4*i+k]}")
            e(f"buffer_store_dwordx4 v[{t}:{t+3}], off, {srd(SRD_WS)}, s4 offset:{16*i}")
            e("s_nop 2")

    def selectors(self, sel, base_lo, base_hi, tmp):
        self.e(f"""v_and_b32 v{tmp}, 1, v0
        v_cmp_eq_u32 vcc, 1, v{tmp}
        v_mov_b32 v{base_lo}, 0x0c0c0100
        v_mov_b32 v{tmp}, 0x01000c0c
        v_cndmask_b32 v{base_lo}, v{base_lo}, v{tmp}, vcc
        v_add_u32 v{base_hi}, 0x0202, v{base_lo}
        v_mov_b32 v{tmp}, 0x03020c0c
        v_cndmask_b32 v{base_hi}, v{base_hi}, v{tmp}, vcc
        v_and_b32 v{tmp}, 2, v0
        v_cmp_eq_u32 vcc, 0, v{tmp}
        v_mov_b32 v{tmp}, 0x0c0c0c0c
        v_cndmask_b32 v{sel}, v{tmp}, v{base_lo}, vcc
        v_cndmask_b32 v{sel+1}, v{base_lo}, v{tmp}, vcc
        v_cndmask_b32 v{sel+2}, v{tmp}, v{base_hi}, vcc
        v_cndmask_b32 v{sel+3}, v{base_hi}, v{tmp}, vcc""")

    def masks(self, lo, hi):
        for j in range(4):
            self.e(f"s_mov_b32 s{MASK0+2*j}, {(lo << (2*j)):#x}\ns_mov_b32 s{MASK0+2*j+1}, {(hi << (2*j)):#x}")

    def rws256(self, nload, x, w, acc, base_lo, base_hi, t0, waits=None):
        e = self.e
        for t in range(nload):
            a = t0 + 2 + 4 * (t & 1)
            e(f"v_perm_b32 v{t0}, v{x+(t>>1)}, v{x+(t>>1)}, v{base_hi if t & 1 else base_lo}")
            for j in range(4): e(f"v_cndmask_b32 v{a+j}, 0, v{t0}, s[{MASK0+2*j}:{MASK0+2*j+1}]")
            if waits: e.wait(waits[t])
            e(f"v_mfma_f32_16x16x32_bf16 {vr(acc,4)}, {vr(a,4)}, {vr(w+4*t,4)}, {vr(acc,4) if t else 0}")

    def rws128(self, nload, x, w, acc0, acc1, sel, pa):
        e = self.e
        for t in range(nload):
            p = pa + 2 + 4 * (t & 1)
            sa, sb = (sel + 2, sel + 3) if t & 1 else (sel, sel + 1)
            e(f"v_perm_b32 v{p}, v{x+(t>>1)}, v{x+(t>>1)}, v{sa}\nv_perm_b32 v{p+1}, v{x+(t>>1)}, v{x+(t>>1)}, v{sb}")
            e(f"v_mfma_f32_16x16x32_bf16 {vr(acc0,4)}, {vr(p,4)}, {vr(w+4*t,4)}, {vr(acc0,4) if t else 0}")
            e(f"v_mfma_f32_16x16x32_bf16 {vr(acc1,4)}, {vr(p-2,4)}, {vr(w+4*t,4)}, {vr(acc1,4) if t else 0}")

    def quad_sum(self, ds):
        for r in range(4):
            for d in ds:
                q = f"quad_perm:[{r},{r},{r},{r}] row_mask:0xf bank_mask:0xf"
                self.e(f"v_mov_b32_dpp v{d}, v{d} {q}" if r == 0 else f"v_add_f32_dpp v{d}, v{d+r}, v{d} {q}")

    def swap_red(self, op, x, t, which):
        for s in which:
            self.e(f"v_mov_b32 v{t}, v{x}\nv_permlane{s}_swap_b32 v{x}, v{t}\n{op} v{x}, v{x}, v{t}")

    def row_red(self, op, x, rots):
        for r in rots:
            self.e(f"{op}_dpp v{x}, v{x}, v{x} row_ror:{r} row_mask:0xf bank_mask:0xf")

    def tree(self, op, base, n, width):
        st = 1
        while st < n:
            for i in range(0, n, 2 * st):
                for r in range(width): self.e(f"{op} v{base+width*i+r}, v{base+width*i+r}, v{base+width*(i+st)+r}")
            st *= 2

    def max3_chain(self, op, dst, regs):
        regs = list(regs)
        if len(regs) == 2:
            self.e(f"v_max_{op} v{dst}, v{regs[0]}, v{regs[1]}"); return
        self.e(f"v_max3_{op} v{dst}, v{regs[0]}, v{regs[1]}, v{regs[2]}")
        regs = regs[3:]
        while len(regs) >= 2:
            self.e(f"v_max3_{op} v{dst}, v{dst}, v{regs[0]}, v{regs[1]}"); regs = regs[2:]
        if regs: self.e(f"v_max_{op} v{dst}, v{dst}, v{regs[0]}")

    def spin_tail(self, top, done, sleep=0):
        if sleep: self.e(f"s_sleep {sleep}")
        if "nodep" in self.x: self.e(f"{done}:"); return
        self.e(f"s_sub_u32 s{S_SPIN}, s{S_SPIN}, 1\ns_cbranch_scc0 {top}\n{done}:")

    def lds_wait(self, addr, t, n=4):
        e = self.e
        top, done = e.lab("L_spin"), e.lab("L_ok")
        e(f"""v_mov_b32 v{t}, {addr}
        s_mov_b32 s{S_SPIN}, {SPIN * 20}
        {top}:
        ds_read_b32 v{t+1}, v{t}
        s_waitcnt lgkmcnt(0)
        v_cmp_ne_u32 vcc, {n}, v{t+1}
        s_cbranch_vccz {done}""")
        self.spin_tail(top, done, 2)

    def lds_inc(self, addr, t):
        self.e(f"""v_mov_b32 v{t}, {addr}
        v_mov_b32 v{t+1}, 1
        s_mov_b64 exec, 1
        ds_add_u32 v{t}, v{t+1}
        s_mov_b64 exec, -1""")

    def poll_loop(self, n, load, use, test, sets, name):
        e = self.e
        top, done = e.lab("L_spin"), e.lab("L_ok")
        for k in range(sets - 1):
            for i in range(n): load(k, i)
        e(f"{top}:")
        for k in range(sets):
            self.pt(name)
            for i in range(n): load((k + sets - 1) % sets, i)
            for i in range(n):
                e(f"s_waitcnt vmcnt({(sets - 1) * n + n - 1 - i})"); use(k, i)
            test()
            e(f"s_cbranch_vccz {done}")
        self.spin_tail(top, done)

    def only_wave(self, w):
        skip = self.e.lab("L_skip")
        self.e(f"s_cmp_lg_u32 s3, {w}\ns_cbranch_scc1 {skip}")
        return skip

    def epoch_load(self):
        if self.o["wsb"]: self.e(f"s_add_u32 s{P_WS}, s{P_WS}, {self.o['wsb'] << 20:#x}\ns_addc_u32 s{P_WS+1}, s{P_WS+1}, 0")
        self.e(f"s_load_dword s{TAG}, s[{P_WS}:{P_WS+1}], {EPOCH:#x}")

    def epoch_tag(self):
        self.e(f"s_waitcnt lgkmcnt(0)\ns_add_u32 s{TAG}, s{TAG}, 1\ns_xor_b32 s{TAG+1}, s{TAG}, 0x5bd1e995")

    def post_b(self, sg, sslot, t):
        self.e(f"""v_mov_b32 v{t}, s{TAG}
        v_mov_b32 v{t+1}, s{TAG+1}
        s_lshl_b32 s10, s{sg}, 7
        s_lshl_b32 s11, s{sslot}, 3
        s_add_u32 s10, s10, s11
        s_add_u32 s10, s10, {FB}
        s_mov_b64 exec, 1
        buffer_store_dwordx2 {vr(t,2)}, off, {srd(SRD_WS)}, s10 sc1 ; c:FLAG
        s_mov_b64 exec, -1""")

    def post_a(self, sid, off, t):
        self.e(f"""v_lshlrev_b32 v{t+2}, 11, v0
        v_mov_b32 v{t}, s{TAG}
        v_mov_b32 v{t+1}, s{TAG+1}
        s_lshl_b32 s10, s{sid}, 3
        s_add_u32 s10, s10, {FA+off}
        s_mov_b64 exec, {(1 << self.o["rep"]) - 1}
        buffer_store_dwordx2 {vr(t,2)}, v{t+2}, {srd(SRD_WS)}, s10 offen sc1 ; c:FLAG
        s_mov_b64 exec, -1""")

    def poll_a(self, off, t):
        e = self.e
        top, done = e.lab("L_spin"), e.lab("L_ok")
        e(f"""s_and_b32 s10, s4, 7
        s_lshl_b32 s10, s10, 11
        s_add_u32 s10, s10, {FA+off}
        v_lshlrev_b32 v{t+2}, 3, v0
        {top}:
        buffer_load_dwordx2 {vr(t,2)}, v{t+2}, {srd(SRD_WS)}, s10 offen sc1
        s_waitcnt vmcnt(0)
        v_cmp_ne_u64 vcc, s[{TAG}:{TAG+1}], {vr(t,2)}
        s_cbranch_vccz {done}""")
        self.spin_tail(top, done, self.o["sl_ap"])

    def tag_check(self, g, n, t):
        e = self.e
        for i in range(n):
            e(f"v_xor_b32 v{t+2}, s{TAG+1}, v{g+2*i}\nv_xor_b32 v{g+2*i+1}, s{TAG}, v{g+2*i+1}")
            e(f"v_and_or_b32 v{g+2*i+1}, v{t+2}, v{t+1}, v{g+2*i+1}")
        e(f"v_or_b32 v{t}, v{g+1}, v{g+3}")
        for i in range(2, n, 2): e(f"v_or3_b32 v{t}, v{t}, v{g+2*i+1}, v{g+2*i+3}")

    def bside(self, kind):
        e = self.e; e.vm = 0; o = self.o
        tp = 4 * (o["pa"] + o["pb"])
        pa, pb = (o["pa"], o["pb"]) if kind == "P" else (o["qa"], (128 - 2 * tp) // 4 - o["qa"])
        n = max(pa, pb)
        VK, VL, TMP, SEL, BLO, BHI, QF, AC0, AC1, LS, MX = 1, 2, 3, 4, 8, 9, 10, 14, 18, 22, 23
        T = 24; D0 = 32; KR = 36; VR = 132; PA = 228; U = 246
        L_T1, L_Q, L_MAX, L_L, L_RED, L_T2, L_QA, L_W = 0, 8192, 9216, 9344, 16384, 32768, 40960, 32768
        S_KV, S_VV, S_G, S_B, S_SP = 5, 6, 7, 8, 9
        L_F = 9472
        e(f"L_{kind}:")
        self.role = kind
        if "no" + kind in self.x: e("s_endpgm")
        self.pt("start")
        e(f"""v_and_b32 v{T}, 3, v0
        v_lshrrev_b32 v{TMP}, 4, v0
        v_lshlrev_b32 v{T+1}, 6, v{TMP}
        v_lshl_add_u32 v{T+1}, v{T}, 4, v{T+1}
        v_bfe_u32 v{T}, v0, 2, 2
        v_lshl_add_u32 v{VK}, v{T}, 8, v{T+1}
        v_lshlrev_b32 v{VL}, 4, v0""")
        if kind == "P":
            e(f"""v_lshl_add_u32 v{T+6}, v{T}, 15, v{T+1}
            v_and_b32 v{T+4}, 15, v0
            v_lshlrev_b32 v{T+4}, 4, v{T+4}
            v_lshl_add_u32 v{T+4}, v{TMP}, 15, v{T+4}
            v_bfe_u32 v{T+5}, v0, 3, 1
            v_lshlrev_b32 v{T+5}, 10, v{T+5}
            v_lshl_add_u32 v{T+5}, v{TMP}, 3, v{T+5}
            s_lshr_b32 s10, s2, 3
            s_and_b32 s{S_SP}, s2, 7
            s_mul_i32 s11, s{S_SP}, {tp}
            s_lshr_b32 s13, s2, 2
            s_and_b32 s4, s2, 3""")
        else:
            e(f"""s_sub_u32 s4, s2, 192
            s_lshr_b32 s10, s4, 2
            s_and_b32 s4, s4, 3
            s_add_u32 s{S_SP}, s4, 8
            s_mul_i32 s11, s4, {4*(pa+pb)}
            s_add_u32 s11, s11, {8*tp}
            v_and_b32 v{T+4}, 15, v0
            v_lshlrev_b32 v{T+4}, 4, v{T+4}
            v_lshl_add_u32 v{T+4}, v{TMP}, 16, v{T+4}
            v_bfe_u32 v{T+5}, v0, 3, 1
            v_lshlrev_b32 v{T+5}, 10, v{T+5}
            v_lshl_add_u32 v{T+5}, v{TMP}, 4, v{T+5}
            s_sub_u32 s13, s2, 192
            s_and_b32 s4, s13, 1
            s_lshr_b32 s13, s13, 1
            s_xor_b32 s13, s13, {o["t1x"]}""")
        qd = o["qd"]; uneven = kind == "Q" and qd > 0
        il = o["il"]
        il2 = (il >> 1) & (1 if kind == "P" else 2) and pa == pb
        if not il:
            e(f"""s_mul_i32 s12, s3, {pb}
            s_min_u32 s{S_G}, s3, 4
            s_mul_i32 s{S_G}, s{S_G}, {pa-pb}
            s_add_u32 s12, s12, s{S_G}
            s_add_u32 s11, s11, s12
            s_lshl_b32 s11, s11, 12""")
        else:
            if il2:
                e(f"s_lshl_b32 s11, s{S_SP}, 13")
                if kind == "Q": e(f"s_add_u32 s11, s11, {8 * tp * 4096 - 8 * 8192}")
            else:
                e("s_lshl_b32 s11, s11, 12")
                if uneven: e(f"s_sub_u32 s12, s{S_SP}, 8\ns_mul_i32 s12, s12, {8192 * qd}\ns_add_u32 s11, s11, s12")
            e("s_lshl_b32 s12, s3, 10\ns_add_u32 s11, s11, s12")
        e(f"""s_and_b32 s{S_G}, s10, 7
        s_lshr_b32 s{S_B}, s10, 3
        s_lshl_b32 s10, s10, 21
        s_add_u32 s{S_KV}, s10, s11
        s_mov_b32 s{S_VV}, s{S_KV}""")
        sh = 7 if kind == "P" else 8
        e(f"""s_lshl_b32 s10, s4, {sh}
        s_lshl_b32 s11, s3, {sh-3}
        s_add_u32 s10, s10, s11
        s_lshl_b32 s11, s10, 1
        s_lshl_b32 s10, s10, 13
        s_lshl_b32 s12, s13, 8
        s_add_u32 s10, s10, s12""")
        e("s_waitcnt lgkmcnt(0)")
        self.epoch_load()
        tags = []; cur = [4 * min(pa, pb) - (3 * qd if uneven else 0)]
        def issue(upto):
            nl = cur[0]
            while len(tags) < min(upto, 2 * nl):
                x = len(tags); k = x % nl; j = k & 3
                r, v, sd, so = (KR, VK, SRD_A, S_KV) if x < nl else (VR, VL, SRD_B, S_VV)
                tags.append(e.mem(f"buffer_load_dwordx4 {vr(r+4*k,4)}, v{v}, {srd(sd)}, s{so} offen offset:{0 if il else 1024*j} nt"))
                if not il:
                    if j == 3: e(f"s_add_u32 s{so}, s{so}, 4096")
                else:
                    nm = 4 * min(pa, pb)
                    step = 8192 if k < nm - 1 else 4096
                    if k == nm - 1: step = 8192 - (4096 if pb > pa else 0)
                    if il2: step = 65536 if kind == "P" else 32768
                    if uneven: step = 8192
                    if k < nl - 1: e(f"s_add_u32 s{so}, s{so}, {step}")
        seen = set()
        def land(k):
            e.wait(tags[k])
            if k not in seen: seen.add(k); self.pt(f"l{k}")
        def slide(k0, k1, w):
            for k in range(k0, k1):
                land(k); issue(k + 1 + w)
        self.mk_srd(SRD_WS, P_WS, WS_USED)
        if kind == "P":
            self.mk_srd(SRD_C, P_AX, 2048); self.mk_srd(SRD_D, P_AWQ, 4 << 20)
            e(f"""v_lshlrev_b32 v{LS}, 15, v{TMP}
            v_and_b32 v{U+5}, 15, v0
            v_lshl_add_u32 v{LS}, v{U+5}, 4, v{LS}""")
            skip = self.only_wave(7)
            e(f"""s_lshl_b32 s12, s2, 8
            s_add_u32 s12, s12, {QAP}""")
            for r in range(4): e(f"v_mov_b32 v{U+r}, -1")
            e(f"""s_mov_b32 exec_hi, 0
            buffer_store_dwordx4 {vr(U,4)}, v{LS}, {srd(SRD_WS)}, s12 offen sc1 ; c:QCLR
            s_mov_b64 exec, -1
            {skip}:""")
            def four(slot, voff, s):
                e("s_mov_b32 s12, s10")
                r = []
                for t in range(4):
                    r.append(e.mem(f"buffer_load_dwordx4 {vr(VR+4*(slot+t),4)}, v{voff}, {srd(s)}, s12 offen nt"))
                    if t < 3: e("s_add_u32 s12, s12, 8192")
                return r
            xa = e.mem(f"buffer_load_dwordx2 {vr(T,2)}, v{T+5}, {srd(SRD_C)}, s11 offen")
            w2 = four(0, T + 4, SRD_D)
            self.mk_srd(SRD_E, P_WUK, 4 << 20)
            if o["t2w"] >= 0: e.wait(w2[o["t2w"]])
            w3 = four(4, T + 6, SRD_E)
        else:
            self.mk_srd(SRD_C, P_BX, 2048); self.mk_srd(SRD_D, P_BWQ, 4 << 20)
            xb = e.mem(f"buffer_load_dwordx4 {vr(T,4)}, v{T+5}, {srd(SRD_C)}, s11 offen")
            w1 = []
            for t in range(8):
                if t >= o["wt1"]: e.wait(w1[t - o["wt1"]])
                w1.append(e.mem(f"buffer_load_dwordx4 {vr(VR+4*t,4)}, v{T+4}, {srd(SRD_D)}, s10 offen nt"))
                if t < 7: e("s_add_u32 s10, s10, 8192")
            self.mk_srd(SRD_E, P_OUT, 4096)
            e(f"""v_lshrrev_b32 v{T+6}, 3, v0
            v_lshlrev_b32 v{T+6}, 17, v{T+6}
            v_and_b32 v{U}, 7, v0
            v_lshl_add_u32 v{T+6}, v{U}, 4, v{T+6}
            v_and_b32 v{U}, 15, v0
            v_lshlrev_b32 v{U}, 4, v{U}
            v_lshl_add_u32 v{U}, v{TMP}, 14, v{U}
            s_sub_u32 s68, s2, 192
            s_cmp_lt_u32 s3, 4
            s_cselect_b32 s{SRD_C}, s{P_WUV}, s{P_AWO}
            s_cselect_b32 s{SRD_C+1}, s{P_WUV+1}, s{P_AWO+1}
            s_mov_b32 s{SRD_C+2}, 0x400000
            s_movk_i32 s69, 1024
            s_cselect_b32 s69, 8192, s69
            s_cselect_b64 vcc, -1, 0
            v_cndmask_b32 v{T+6}, v{U}, v{T+6}, vcc
            s_lshl_b32 s10, s3, 20
            s_lshl_b32 s11, s68, 7
            s_add_u32 s10, s10, s11
            s_lshl_b32 s11, s68, 16
            s_and_b32 s12, s3, 3
            s_lshl_b32 s12, s12, 8
            s_add_u32 s11, s11, s12
            s_cmp_lt_u32 s3, 4
            s_cselect_b32 s70, s10, s11
            s_lshl_b32 s71, s3, 14
            s_add_u32 s71, s71, {L_W}""")
            wd = []
            def wdma(upto, w):
                while len(wd) < upto:
                    e(f"s_waitcnt vmcnt({w-1})\ns_mov_b32 m0, s71")
                    wd.append(e.mem(f"buffer_load_dwordx4 v{T+6}, {srd(SRD_C)}, s70 offen nt lds"))
                    e("s_add_u32 s70, s70, s69\ns_add_u32 s71, s71, 1024")
        self.mk_srd(SRD_A, P_BK, 32 << 20); self.mk_srd(SRD_B, P_BV, 32 << 20)
        e.L.append("; split")
        if kind == "P": issue(o["pre_p"])
        e(f"s_mov_b32 s{S_SC}, {f2u(SCALE):#x}\ns_mov_b32 s{S_SPIN}, {SPIN}")
        self.selectors(SEL, BLO, BHI, TMP)
        e(f"v_mov_b32 v{AC0}, 0\nv_mov_b32 v{AC0+1}, 0\nds_write_b64 v{AC0}, {vr(AC0,2)} offset:{L_F}")
        self.epoch_tag()
        if kind == "P":
            self.masks(0x03030303, 0x03030303)
            skip = self.only_wave(7)
            e(f"s_waitcnt vmcnt({e.vm})")
            self.post_a(2, 0, U)
            e(f"{skip}:")
            e(f"s_lshl_b32 s10, s3, 10\nv_add_u32 v{T+7}, s10, v{VL}")
            e.wait(xa)
            self.rws256(4, T, VR, AC0, BLO, BHI, PA, w2)
            self.pt("t2")
            e(f"ds_write_b128 v{T+7}, {vr(AC0,4)} offset:{L_T2}\ns_waitcnt lgkmcnt(0)\ns_barrier")
            XT = VR + 48
            skip = self.only_wave(0)
            for i in range(8): e(f"ds_read_b128 {vr(XT+4*i,4)}, v{VL} offset:{L_T2+1024*i}")
            e(f"""v_mov_b32 v{U+1}, s{TAG+1}
            s_lshl_b32 s10, s2, 11
            s_add_u32 s10, s10, {XQ}
            s_mov_b32 s11, 0xffffff00
            s_waitcnt lgkmcnt(0)""")
            self.tree("v_add_f32", XT, 8, 4)
            for r in range(4): e(f"v_bfi_b32 v{XT+8+2*r}, s11, v{XT+r}, v{U+1}\nv_mov_b32 v{XT+9+2*r}, s{TAG}")
            e(f"buffer_store_dwordx4 {vr(XT+8,4)}, v{VL}, {srd(SRD_WS)}, s10 offen sc1 ; c:XQ")
            e(f"buffer_store_dwordx4 {vr(XT+12,4)}, v{VL}, {srd(SRD_WS)}, s10 offen offset:1024 sc1 ; c:XQ")
            e(f"{skip}:")
            self.pt("xq")
            for i in range(o["pe"]):
                if i >= o["we"]: e(f"s_waitcnt vmcnt({o['we']-1})")
                issue(len(tags) + 1)
            skip, other = e.lab("L_skip"), e.lab("L_other")
            top, done = e.lab("L_spin"), e.lab("L_ok")
            e(f"""s_lshr_b32 s10, s3, 1
            s_cmp_lg_u32 s10, 2
            s_cbranch_scc1 {other}
            s_lshl_b32 s10, s13, 13
            s_and_b32 s12, s3, 1
            s_lshl_b32 s11, s12, 10
            s_add_u32 s10, s10, s11
            s_add_u32 s10, s10, {XQ}
            s_add_u32 s11, s10, 4096
            v_mov_b32 v{U+1}, 0xff
            v_lshrrev_b32 v{U+3}, 5, v0
            v_lshlrev_b32 v{U+3}, 8, v{U+3}
            v_and_b32 v{U+4}, 15, v0
            v_lshl_add_u32 v{U+3}, v{U+4}, 4, v{U+3}
            v_bfe_u32 v{U+4}, v0, 4, 1
            v_lshl_add_u32 v{U+3}, v{U+4}, 3, v{U+3}
            s_lshl_b32 s12, s12, 2
            v_add_u32 v{U+3}, s12, v{U+3}""")
            if o["sl_xq0"]: e(f"s_sleep {o['sl_xq0']}")
            e(f"{top}:")
            for i in range(4): e(f"buffer_load_dwordx4 {vr(VR+4*i,4)}, v{VL}, {srd(SRD_WS)}, s{10+(i>>1)} offen offset:{2048*(i&1)} sc1 ; c:LXQ")
            e("s_waitcnt vmcnt(0)")
            self.tag_check(VR, 8, U)
            e(f"v_cmp_ne_u32 vcc, 0, v{U}\ns_cbranch_vccz {done}")
            self.spin_tail(top, done, o["sl_xq"])
            for i in range(8): e(f"v_and_b32 v{VR+2*i}, 0xffffff00, v{VR+2*i}")
            e(f"""v_add_f32 v{VR}, v{VR}, v{VR+4}
            v_add_f32 v{VR+2}, v{VR+2}, v{VR+6}
            v_add_f32 v{VR+8}, v{VR+8}, v{VR+12}
            v_add_f32 v{VR+10}, v{VR+10}, v{VR+14}
            v_add_f32 v{VR}, v{VR}, v{VR+8}
            v_add_f32 v{VR+2}, v{VR+2}, v{VR+10}
            v_cvt_pk_bf16_f32 v{VR}, v{VR}, v{VR+2}
            ds_write_b32 v{U+3}, v{VR} offset:{L_QA}""")
            ne, we = o["ne"], o["we"]
            vm0, L0 = e.vm, len(e.L)
            issue(len(tags) + ne)
            body = e.L[L0:]
            e(f"s_branch {skip}\n{other}:")
            cnt = 0
            for l in body:
                if l.startswith("buffer_load"):
                    if cnt >= we: e(f"s_waitcnt vmcnt({we-1})")
                    cnt += 1
                e(l)
            e(f"""{skip}:
            v_bfe_u32 v{U}, v0, 2, 1
            v_lshlrev_b32 v{U}, 8, v{U}
            v_and_b32 v{U+2}, 0xf0, v{VK}
            v_add_u32 v{U+1}, v{U}, v{U+2}
            v_lshrrev_b32 v{U+2}, 4, v0
            v_lshl_add_u32 v{U}, v{U+2}, 3, v{U}
            s_lshl_b32 s11, s3, 5
            v_add_u32 v{U}, s11, v{U}
            s_waitcnt lgkmcnt(0)
            s_barrier
            ds_read_b128 {vr(QF,4)}, v{U+1} offset:{L_QA}
            s_waitcnt lgkmcnt(0)""")
            self.pt("qa")
            e.wait(w3[3])
            for t in range(4): e(f"v_mfma_f32_16x16x32_bf16 {vr(VR+4*t,4)}, {vr(VR+16+4*t,4)}, {vr(QF,4)}, 0")
            self.quad_sum([VR + 4 * t for t in range(4)])
            e(f"""v_cvt_pk_bf16_f32 v{AC0}, v{VR}, v{VR+4}
            v_cvt_pk_bf16_f32 v{AC0+1}, v{VR+8}, v{VR+12}
            s_mov_b32 exec_lo, 0x00110011
            s_mov_b32 exec_hi, 0x00110011
            ds_write_b64 v{U}, {vr(AC0,2)} offset:{L_QA+512}
            s_mov_b64 exec, -1
            s_waitcnt lgkmcnt(0)
            s_barrier""")
            skip = self.only_wave(7)
            e(f"""ds_read_b128 {vr(AC0,4)}, v{VL} offset:{L_QA+512}
            s_lshl_b32 s10, s2, 8
            s_add_u32 s10, s10, {QAP}
            s_waitcnt lgkmcnt(0)""")
            for r in range(4): e(f"v_min_u32 v{AC0+r}, -2, v{AC0+r}")
            e(f"""s_mov_b32 exec_hi, 0
            buffer_store_dwordx4 {vr(AC0,4)}, v{LS}, {srd(SRD_WS)}, s10 offen sc1 ; c:QAP
            s_mov_b64 exec, -1""")
            if o["stw"] in (1, 2):
                self.pt("st7"); e("s_waitcnt vmcnt(0)"); self.pt("ack7")
            e(f"{skip}:")
            if o["stw"] > 1: e("s_barrier")
            self.pt("st")
            issue(o["w1"])
        else:
            self.masks(0x03030303, 0x03030303)
            e(f"s_lshl_b32 s10, s3, 10\nv_add_u32 v{T+7}, s10, v{VL}")
            e.wait(xb)
            self.rws256(8, T, VR, AC1, BLO, BHI, PA, w1)
            e(f"ds_write_b128 v{T+7}, {vr(AC1,4)} offset:{L_T1}")
            wdma(o["wq1"], 16)
            e("s_waitcnt lgkmcnt(0)\ns_barrier")
            self.pt("t1")
            skip = self.only_wave(0)
            for i in range(8): e(f"ds_read_b128 {vr(VR+4*i,4)}, v{VL} offset:{L_T1+1024*i}")
            e(f"""v_lshrrev_b32 v{U}, 5, v0
            v_lshlrev_b32 v{U}, 14, v{U}
            v_and_b32 v{U+1}, 15, v0
            v_lshl_add_u32 v{U}, v{U+1}, 5, v{U}
            v_bfe_u32 v{U+1}, v0, 4, 1
            v_lshl_add_u32 v{U}, v{U+1}, 4, v{U}
            s_lshl_b32 s10, s4, 15
            s_lshl_b32 s11, s13, 9
            s_add_u32 s10, s10, s11
            s_add_u32 s10, s10, {QBP}
            s_sub_u32 s12, s2, 192
            s_lshr_b32 s13, s12, 3
            s_and_b32 s12, s12, 7
            s_waitcnt lgkmcnt(0)""")
            self.tree("v_add_f32", VR, 8, 4)
            e(f"buffer_store_dwordx4 {vr(VR,4)}, v{U}, {srd(SRD_WS)}, s10 offen sc1\ns_waitcnt vmcnt(0)")
            self.post_b(13, 12, U)
            e(f"{skip}:")
        variants = [4 * pa] if pa == pb else [4 * pa, 4 * pb]
        if uneven: variants = [4 * pa + qd, 4 * pa - 3 * qd]
        if kind == "Q":
            wdma(16, o["wq1"])
            self.pt("w")
        if uneven: e(f"s_cmp_eq_u32 s{S_SP}, 11\ns_cbranch_scc1 L_{kind}_B")
        elif len(variants) > 1: e(f"s_cmp_ge_u32 s3, 4\ns_cbranch_scc1 L_{kind}_B")
        tags0, vm0 = list(tags), e.vm
        for vi, nv in enumerate(variants):
            if vi: e(f"L_{kind}_B:")
            nl = nv; n = (nl + 3) // 4; cur[0] = nv; tags[:] = tags0; e.vm = vm0; seen.clear()
            kf, wearly = (o["kf_p"], o["w1"]) if kind == "P" else (o["kf_q"], o["wq0"])
            if kind == "Q":
                for k in range(wearly):
                    e(f"s_waitcnt vmcnt({wearly-1})"); issue(k + 1)
                slide(0, kf, wearly)
            else:
                slide(0, kf, wearly)
            e(f"""s_cmp_eq_u32 s3, 0
            s_cselect_b32 s13, 0, 0x40000000
            s_lshl_b32 s12, s{S_G}, 7
            s_add_u32 s12, s12, {FB}
            s_add_u32 s12, s12, s13
            v_lshlrev_b32 v{T+2}, 3, v0
            s_mov_b64 exec, 0xffff""")
            k1 = len(tags)
            fl = e.mem(f"buffer_load_dwordx2 {vr(T,2)}, v{T+2}, {srd(SRD_WS)}, s12 offen sc1 ; c:LFB")
            e("s_mov_b64 exec, -1")
            issue(kf + o["wk"])
            slide(kf, k1, o["wk"])
            e(f"""s_lshl_b32 s10, s{S_B}, 14
            s_lshl_b32 s11, s{S_G}, 11
            s_add_u32 s10, s10, s11
            s_add_u32 s10, s10, {QBP}
            s_add_u32 s10, s10, s13
            s_add_u32 s11, s10, 32768
            v_lshlrev_b32 v{TMP}, 5, v0""")
            e.wait(fl)
            top, done = e.lab("L_spin"), e.lab("L_ok")
            e(f"""s_cmp_lg_u32 s3, 0
            s_cbranch_scc1 {done}
            s_mov_b64 exec, 0xffff
            {top}:
            v_cmp_ne_u64 vcc, s[{TAG}:{TAG+1}], {vr(T,2)}
            s_cbranch_vccz {done}
            buffer_load_dwordx2 {vr(T,2)}, v{T+2}, {srd(SRD_WS)}, s12 offen sc1 ; c:LFB
            s_waitcnt vmcnt(0)""")
            self.spin_tail(top, done, o["sleep"])
            e("s_mov_b64 exec, -1")
            self.pt("qf")
            k2 = len(tags)
            QG = PA
            for k in range(4):
                qg = e.mem(f"buffer_load_dwordx4 {vr(QG+4*k,4)}, v{TMP}, {srd(SRD_WS)}, s{10+(k>>1)} offen offset:{16*(k&1)} sc1 ; c:LQB")
            k3 = min(k2, nl)
            slide(k1, k3, o["wk"])
            skip = self.only_wave(0)
            e.wait(qg)
            for r in range(8): e(f"v_add_f32 v{QG+r}, v{QG+r}, v{QG+8+r}")
            for r in range(4): e(f"v_cvt_pk_bf16_f32 v{QG+r}, v{QG+2*r}, v{QG+2*r+1}")
            e(f"""v_mov_b32 v{T}, 0
            v_mov_b32 v{T+1}, 1
            ds_write_b128 v{VL}, {vr(QG,4)} offset:{L_Q}
            s_waitcnt lgkmcnt(0)
            ds_write_b32 v{T}, v{T+1} offset:{L_F}
            {skip}:""")
            kq = max(k3, min(o["kq"], nl))
            slide(k3, kq, o["wk"])
            top, done = e.lab("L_spin"), e.lab("L_ok")
            e(f"""v_mov_b32 v{T}, 0
            s_mov_b32 s{S_SPIN}, {SPIN * 20}
            {top}:
            ds_read_b32 v{T+1}, v{T} offset:{L_F}
            ds_read_b128 {vr(QF,4)}, v{VK} offset:{L_Q}
            s_waitcnt lgkmcnt(0)
            v_cmp_eq_u32 vcc, 0, v{T+1}
            s_cbranch_vccz {done}""")
            self.spin_tail(top, done, 1)
            e(f"v_bfe_u32 v{T+5}, v0, 2, 2\nv_lshlrev_b32 v{T+5}, 5, v{T+5}\ns_lshl_b32 s10, s3, 2\nv_add_u32 v{T+6}, s10, v{T+5}")
            for z in range(0, 18, 4): e(f"v_mov_b32 v{PA+z}, 0\nv_mov_b32 v{PA+z+1}, 0")
            self.pt("q")
            SK = lambda k: D0 + 4 * k
            ahead = kq
            for i in range(n + 1):
                if i < n:
                    for j in range(min(4, nl - 4 * i)):
                        k = 4 * i + j
                        if k >= kq:
                            land(k); issue(k + 1 + (o["wk"] if k < nl - 4 else o["wt"]))
                        elif j == 0 and o["cu"]:
                            issue(len(tags) + o["cu"])
                        e(f"v_mfma_f32_16x16x32_bf16 {vr(SK(k),4)}, {vr(KR+4*k,4)}, {vr(QF,4)}, 0")
                if i > 0:
                    ks = [SK(k) for k in range(4 * (i - 1), min(4 * i, nl))]
                    self.quad_sum(ks)
                    self.max3_chain("f32", MX, ks if i == 1 else [MX] + ks)
            issue(nl + o["wt"])
            self.pt("k")
            self.swap_red("v_max_f32", MX, TMP, (16, 32))
            e(f"v_mul_f32 v{MX}, s{S_SC}, v{MX}\nds_write_b32 v{T+6}, v{MX} offset:{L_MAX}")
            for k in range(nl): e(f"v_fma_f32 v{SK(k)}, v{SK(k)}, s{S_SC}, -v{MX}")
            for k in range(nl): e(f"v_exp_f32 v{SK(k)}, v{SK(k)}")
            e(f"v_add_f32 v{LS}, v{SK(0)}, v{SK(1)}")
            for k in range(2, nl): e(f"v_add_f32 v{LS}, v{LS}, v{SK(k)}")
            for k in range(0, nl, 2): e(f"v_cvt_pk_bf16_f32 v{SK(k)}, v{SK(k)}, v{SK(min(k+1, nl-1))}")
            self.swap_red("v_add_f32", LS, TMP, (16, 32))
            skip = e.lab("L_skip")
            e(f"""ds_write_b32 v{T+6}, v{LS} offset:{L_L}
            v_mov_b32 v{T}, 0
            v_mov_b32 v{T+1}, 1
            s_mov_b64 exec, 1
            ds_add_rtn_u32 v{T+2}, v{T}, v{T+1} offset:{L_F+4}
            s_waitcnt lgkmcnt(0)
            v_cmp_eq_u32 vcc, 7, v{T+2}
            s_mov_b64 exec, -1
            s_cbranch_vccz {skip}
            v_and_b32 v{T}, 3, v0
            v_lshlrev_b32 v{T}, 5, v{T}
            ds_read_b128 {vr(U,4)}, v{T} offset:{L_MAX}
            ds_read_b128 {vr(U+4,4)}, v{T} offset:{L_MAX+16}
            ds_read_b128 {vr(QF,4)}, v{T} offset:{L_L}
            ds_read_b128 {vr(AC0,4)}, v{T} offset:{L_L+16}
            v_mov_b32 v{T+3}, s{TAG+1}
            s_lshl_b32 s10, s{S_B}, 3
            s_add_u32 s10, s10, s{S_G}
            s_mul_i32 s10, s10, 12
            s_add_u32 s10, s10, s{S_SP}
            s_lshl_b32 s10, s10, 6
            s_add_u32 s10, s10, {BS}
            s_mov_b32 s11, 0xffffff00
            s_waitcnt lgkmcnt(0)""")
            self.max3_chain("f32", T + 2, range(U, U + 8))
            for r in range(8): e(f"v_sub_f32 v{U+r}, v{U+r}, v{T+2}")
            for r in range(8): e(f"v_exp_f32 v{U+r}, v{U+r}")
            e(f"v_mul_f32 v{T+1}, v{U}, v{QF}")
            for r in range(1, 8): e(f"v_fmac_f32 v{T+1}, v{U+r}, v{QF+r}")
            e(f"""v_bfi_b32 v{U+2}, s11, v{T+1}, v{T+3}
            v_bfi_b32 v{U}, s11, v{T+2}, v{T+3}
            v_mov_b32 v{U+1}, s{TAG}
            v_mov_b32 v{U+3}, s{TAG}
            s_mov_b64 exec, 15
            buffer_store_dwordx4 {vr(U,4)}, v{VL}, {srd(SRD_WS)}, s10 offen sc1 ; c:BST
            s_mov_b64 exec, -1
            {skip}:""")
            self.pt("p")
            for i in range(n):
                for j in range(min(4, nl - 4 * i)):
                    k = 4 * i + j; pk = SK(k & ~1); p = PA + 2 + 4 * j
                    sa, sb = (SEL + 2, SEL + 3) if k & 1 else (SEL, SEL + 1)
                    e(f"v_perm_b32 v{p}, v{pk}, v{pk}, v{sa}\nv_perm_b32 v{p+1}, v{pk}, v{pk}, v{sb}")
                if i == n - 1:
                    top, done = e.lab("L_spin"), e.lab("L_ok")
                    e(f"""v_mov_b32 v{T}, 0
                    v_lshrrev_b32 v{T+1}, 4, v0
                    v_lshlrev_b32 v{T+1}, 5, v{T+1}
                    s_lshl_b32 s10, s3, 2
                    v_add_u32 v{T+2}, s10, v{T+1}
                    {top}:
                    ds_read_b32 v{T+3}, v{T} offset:{L_F+4}
                    ds_read_b128 {vr(U,4)}, v{T+1} offset:{L_MAX}
                    ds_read_b128 {vr(U+4,4)}, v{T+1} offset:{L_MAX+16}
                    ds_read_b32 v{LS}, v{T+2} offset:{L_MAX}
                    s_waitcnt lgkmcnt(0)
                    v_cmp_ne_u32 vcc, 8, v{T+3}
                    s_cbranch_vccz {done}""")
                    self.spin_tail(top, done, 1)
                    self.max3_chain("f32", MX, range(U, U + 8))
                    e(f"v_sub_f32 v{LS}, v{LS}, v{MX}\nv_exp_f32 v{LS}, v{LS}")
                    e(f"""s_lshl_b32 s10, s3, 11
                    v_lshl_add_u32 v{T}, v0, 5, s10
                    s_lshl_b32 s10, s3, 8
                    v_and_b32 v{T+2}, 31, v0
                    v_lshl_add_u32 v{T+1}, v{T+2}, 3, s10
                    v_lshlrev_b32 v{T+2}, 2, v0
                    s_lshl_b32 s10, s{S_G}, 2
                    s_lshr_b32 s11, s3, 1
                    s_add_u32 s10, s10, s11
                    s_lshl_b32 s10, s10, 15
                    s_mul_i32 s11, s{S_B}, 24
                    s_add_u32 s11, s11, s{S_SP}
                    s_add_u32 s11, s11, s{S_SP}
                    s_and_b32 s12, s3, 1
                    s_add_u32 s11, s11, s12
                    s_lshl_b32 s11, s11, 7
                    s_add_u32 s10, s10, s11
                    s_add_u32 s10, s10, {MB}""")
                for j in range(min(4, nl - 4 * i)):
                    k = 4 * i + j; p = PA + 2 + 4 * j
                    land(nl + k)
                    issue(nl + k + 1 + o["wv"])
                    e(f"v_mfma_f32_16x16x32_bf16 {vr(AC0,4)}, {vr(p,4)}, {vr(VR+4*k,4)}, {vr(AC0,4) if k else 0}")
                    e(f"v_mfma_f32_16x16x32_bf16 {vr(AC1,4)}, {vr(p-2,4)}, {vr(VR+4*k,4)}, {vr(AC1,4) if k else 0}")
            self.pt("v")
            for r in range(8): e(f"v_mul_f32 v{AC0+r}, v{AC0+r}, v{LS}")
            e(f"""ds_write_b128 v{T}, {vr(AC0,4)} offset:{L_RED}
            ds_write_b128 v{T}, {vr(AC1,4)} offset:{L_RED+16}
            s_waitcnt lgkmcnt(0)
            s_barrier""")
            for i in range(8): e(f"ds_read_b64 {vr(KR+2*i,2)}, v{T+1} offset:{L_RED+2048*i}")
            for i in range(0, 8, 2):
                e(f"s_waitcnt lgkmcnt({6-i})\nv_add_f32 v{KR+2*i}, v{KR+2*i}, v{KR+2*i+2}\nv_add_f32 v{KR+2*i+1}, v{KR+2*i+1}, v{KR+2*i+3}")
                if i == 2: e(f"v_add_f32 v{KR}, v{KR}, v{KR+4}\nv_add_f32 v{KR+1}, v{KR+1}, v{KR+5}")
                if i == 4: e(f"v_add_f32 v{KR}, v{KR}, v{KR+8}\nv_add_f32 v{KR+1}, v{KR+1}, v{KR+9}")
            e(f"""v_add_f32 v{KR}, v{KR}, v{KR+12}
            v_add_f32 v{KR+1}, v{KR+1}, v{KR+13}
            v_cvt_pk_bf16_f32 v{KR}, v{KR}, v{KR+1}
            v_min_u32 v{KR}, -2, v{KR}
            s_mov_b32 exec_hi, 0
            buffer_store_dword v{KR}, v{T+2}, {srd(SRD_WS)}, s10 offen sc1 ; c:MB1""")
            self.pt("end")
            if kind == "Q": e("s_mov_b64 exec, -1\ns_mov_b32 s4, s68\ns_cmp_lt_u32 s3, 4\ns_cbranch_scc1 L_ATAIL")
            self.stamp_out(100)
            e("s_endpgm")

    X_MAX, X_P, X_L, X_CNT = 0, 2048, 20480, 24576

    def row_addr(self, dst, t):
        self.e(f"""v_and_b32 v{t}, 3, v0
        v_lshlrev_b32 v{t}, 2, v{t}
        v_bfe_u32 v{t+1}, v0, 2, 2
        v_or_b32 v{t}, v{t}, v{t+1}
        v_lshrrev_b32 v{t+1}, 5, v0
        v_xor_b32 v{t}, v{t}, v{t+1}
        v_lshlrev_b32 v{t}, 4, v{t}
        v_and_b32 v{t+1}, 31, v0
        v_lshl_add_u32 v{dst}, v{t+1}, 10, v{t}""")

    X_AL = 22528

    def qk(self, rnd, S, FR, A, TA, creg):
        e = self.e
        seq = [(i, 2 * qp + q) for qp in range(2) for i in range(8) for q in range(2)]
        ks = lambda o: seq[o][0] + 8 * seq[o][1]
        qreg = lambda o: FR + 4 * o if o < 4 else creg(ks(o - 4))
        dst = qreg if rnd == 0 else (lambda o: FR + 16 + 4 * (o & 3))
        tg = {}
        e.ds_reset()
        def rd(o):
            if o & 1 == 0: e(f"v_xor_b32 v{TA+((o>>1)&1)}, {seq[o][0] << 5}, v{A}")
            tg[o] = e.ds(f"ds_read_b128 {vr(dst(o),4)}, v{TA+((o>>1)&1)} offset:{256*seq[o][1]}")
        for o in range(3): rd(o)
        for o in range(32):
            if o + 3 < 32: rd(o + 3)
            e.dswait(tg[o])
            c = creg(ks(o)) if rnd == 0 else dst(o)
            e(f"v_mfma_f32_32x32x16_bf16 {vr(S,16)}, {vr(c,4)}, {vr(qreg(o),4)}, {vr(S,16) if o else 0}")
            if rnd == 0 and o == 16: e("s_barrier")

    def stat_addr(self, d, t):
        self.e(f"""v_and_b32 v{d}, 15, v0
        v_lshlrev_b32 v{d}, 5, v{d}
        v_bfe_u32 v{t}, v0, 4, 1
        v_lshl_add_u32 v{d}, v{t}, 10, v{d}
        v_add_u32 v{d}, {X}, v{d}""")

    def softmax(self, rnd, S, P, M, LS, T, lw):
        e = self.e
        self.max3_chain("f32", T, range(S, S + 16))
        self.swap_red("v_max_f32", T, T + 1, (32,))
        e(f"""ds_write_b32 v{T+3}, v{T} offset:{self.X_MAX+16*rnd}
        s_waitcnt lgkmcnt(0)
        s_barrier
        ds_read_b128 {vr(P,4)}, v{T+2} offset:{self.X_MAX+16*rnd}""")
        if rnd == 0:
            e(f"""v_mov_b32 v{T}, {X+self.X_CNT}
            v_mov_b32 v{T+1}, 0
            ds_write2_b32 v{T}, v{T+1}, v{T+1} offset0:0 offset1:16
            ds_write2_b32 v{T}, v{T+1}, v{T+1} offset0:32 offset1:48""")
        e(f"""s_lshl_b32 s10, s{lw}, 11
        s_add_u32 s10, s10, {X+self.X_P+8192*rnd}
        v_lshl_add_u32 v{T+1}, v0, 4, s10
        s_waitcnt lgkmcnt(0)""")
        if rnd == 0:
            self.max3_chain("f32", M, range(P, P + 4))
            e(f"v_mul_f32 v{M}, s{S_SC}, v{M}")
        else:
            self.max3_chain("f32", T, range(P, P + 4))
            e(f"""v_mul_f32 v{T}, s{S_SC}, v{T}
            v_max_f32 v{T}, v{T}, v{M}
            v_sub_f32 v{M}, v{M}, v{T}
            v_exp_f32 v{P}, v{M}
            v_mov_b32 v{M}, v{T}
            v_mul_f32 v{LS}, v{LS}, v{P}""")
        for r in range(16): e(f"v_fma_f32 v{S+r}, v{S+r}, s{S_SC}, -v{M}")
        for r in range(16): e(f"v_exp_f32 v{S+r}, v{S+r}")
        for r in range(8): e(f"v_cvt_pk_bf16_f32 v{P+r}, v{S+2*r}, v{S+2*r+1}")
        e(f"ds_write_b128 v{T+1}, {vr(P,4)}\nds_write_b128 v{T+1}, {vr(P+4,4)} offset:1024")
        if rnd == 0:
            e("s_waitcnt lgkmcnt(0)\ns_barrier")
            self.tree("v_add_f32", S, 16, 1)
            e(f"v_mov_b32 v{LS}, v{S}")
        else:
            self.tree("v_add_f32", S, 16, 1)
            e(f"v_add_f32 v{S}, v{S}, v{LS}")
            self.swap_red("v_add_f32", S, T, (32,))
            e(f"ds_write_b32 v{T+3}, v{S} offset:{self.X_L}\ns_waitcnt lgkmcnt(0)\ns_barrier")

    def qk1(self, S, FR, AQ, TA, creg=None, AC=None):
        e = self.e
        groups = [(qp, i) for qp in range(2) for i in range(8)]
        buf = (lambda g: FR + 8 * (g & 3)) if creg else (lambda g: FR + 16 * (g & 1))
        tg = {}
        e.ds_reset()
        def rd(g):
            qp, i = groups[g]; f = buf(g)
            e(f"v_xor_b32 v{TA}, {i << 5}, v{AQ}")
            if not creg: e(f"v_xor_b32 v{TA+1}, {i << 5}, v{AC}")
            for q in range(2):
                tg[g, q] = e.ds(f"ds_read_b128 {vr(f+4*q,4)}, v{TA} offset:{512*qp+256*q}")
                if not creg: tg[g, q] = e.ds(f"ds_read_b128 {vr(f+8+4*q,4)}, v{TA+1} offset:{512*qp+256*q}")
        ahead = 3 if creg else 1
        for g in range(ahead): rd(g)
        for g in range(16):
            if g + ahead < 16: rd(g + ahead)
            qp, i = groups[g]; f = buf(g)
            for q in range(2):
                e.dswait(tg[g, q])
                c = creg(i + 8 * (2 * qp + q)) if creg else f + 8 + 4 * q
                e(f"v_mfma_f32_32x32x16_bf16 {vr(S,16)}, {vr(c,4)}, {vr(f+4*q,4)}, {vr(S,16) if g or q else 0}")
            if g == 8: e("s_barrier")

    def softmax1(self, S, P, M, T, tile):
        e = self.e
        e(f"""v_and_b32 v{T+2}, 15, v0
        v_lshlrev_b32 v{T+2}, 5, v{T+2}
        v_bfe_u32 v{T+3}, v0, 4, 1
        v_lshl_add_u32 v{T+2}, v{T+3}, 10, v{T+2}
        v_add_u32 v{T+2}, {X}, v{T+2}
        s_lshl_b32 s10, s3, 2
        v_add_u32 v{T+3}, s10, v{T+2}""")
        self.max3_chain("f32", T, range(S, S + 16))
        self.swap_red("v_max_f32", T, T + 1, (32,))
        e(f"""ds_write_b32 v{T+3}, v{T} offset:{self.X_MAX}
        s_waitcnt lgkmcnt(0)
        s_barrier
        ds_read_b128 {vr(P,4)}, v{T+2} offset:{self.X_MAX}
        ds_read_b128 {vr(P+4,4)}, v{T+2} offset:{self.X_MAX+16}
        v_mov_b32 v{T}, {X+self.X_CNT}
        v_mov_b32 v{T+1}, 0
        ds_write2_b32 v{T}, v{T+1}, v{T+1} offset0:0 offset1:16
        ds_write2_b32 v{T}, v{T+1}, v{T+1} offset0:32 offset1:48
        s_lshl_b32 s10, s{tile}, 11
        s_add_u32 s10, s10, {X+self.X_P}
        v_lshl_add_u32 v{T+1}, v0, 4, s10
        s_waitcnt lgkmcnt(0)""")
        self.max3_chain("f32", M, range(P, P + 8))
        e(f"v_mul_f32 v{M}, s{S_SC}, v{M}")
        for r in range(16): e(f"v_fma_f32 v{S+r}, v{S+r}, s{S_SC}, -v{M}")
        for r in range(16): e(f"v_exp_f32 v{S+r}, v{S+r}")
        for r in range(8): e(f"v_cvt_pk_bf16_f32 v{P+r}, v{S+2*r}, v{S+2*r+1}")
        e(f"ds_write_b128 v{T+1}, {vr(P,4)}\nds_write_b128 v{T+1}, {vr(P+4,4)} offset:1024")
        self.tree("v_add_f32", S, 16, 1)
        self.swap_red("v_add_f32", S, T, (32,))
        e(f"ds_write_b32 v{T+3}, v{S} offset:{self.X_L}\ns_waitcnt lgkmcnt(0)\ns_barrier")

    VL, VW, TMP, SEL, BLO, BHI, T, U, W, G, WUV, AC0, AC1, PA, XR = 1, 2, 3, 4, 8, 9, 10, 16, 32, 96, 160, 224, 228, 232, 244
    A_CW, A_CR, A_MB = 13, 14, 15
    S_LW, S_PART, S_PRIV, S_MBJ = 5, 6, 7, 8

    def vw_addr(self):
        VW, T = self.VW, self.T
        self.e(f"""v_lshrrev_b32 v{VW}, 4, v0
        v_lshlrev_b32 v{VW}, 14, v{VW}
        v_and_b32 v{T+1}, 15, v0
        v_lshl_add_u32 v{VW}, v{T+1}, 4, v{VW}""")

    def tail_setup(self):
        VL, T, A_CW, A_CR, A_MB = self.VL, self.T, self.A_CW, self.A_CR, self.A_MB
        self.e(f"""v_lshlrev_b32 v{VL}, 4, v0
        s_lshl_b32 s{self.S_PRIV}, s3, 11
        s_lshl_b32 s{self.S_MBJ}, s4, 14
        s_add_u32 s{self.S_MBJ}, s{self.S_MBJ}, {MB}
        v_lshl_add_u32 v{A_CW}, v0, 2, s{self.S_PRIV}
        v_bfe_u32 v{A_CR}, v0, 3, 1
        v_lshlrev_b32 v{A_CR}, 7, v{A_CR}
        v_lshrrev_b32 v{T+1}, 4, v0
        v_lshl_add_u32 v{A_CR}, v{T+1}, 5, v{A_CR}
        v_add_u32 v{A_CR}, s{self.S_PRIV}, v{A_CR}
        v_lshrrev_b32 v{A_MB}, 5, v0
        v_lshlrev_b32 v{A_MB}, 17, v{A_MB}
        v_bfe_u32 v{T+1}, v0, 3, 1
        v_lshl_add_u32 v{A_MB}, v{T+1}, 14, v{A_MB}
        v_and_b32 v{T+1}, 7, v0
        v_lshl_add_u32 v{A_MB}, v{T+1}, 4, v{A_MB}""")
        self.selectors(self.SEL, self.BLO, self.BHI, self.TMP)

    def core_selectors(self):
        e = self.e
        e(f"v_mov_b32 v{self.TMP}, 0x0c0c0c0c")
        for h, base in enumerate((self.BLO, self.BHI)):
            for j in range(4): e(f"v_cndmask_b32 v{208+4*h+j}, v{self.TMP}, v{base}, s[{MASK0+2*j}:{MASK0+2*j+1}]")

    def wload(self, s, t0=0, t1=16):
        e = self.e
        if "now" in self.x or t0 >= t1: return
        e(f"s_lshl_b32 s10, s4, 16\ns_lshl_b32 s11, s{self.S_LW}, 8\ns_add_u32 s10, s10, s11")
        if t0: e(f"s_add_u32 s10, s10, {1024 * t0}")
        for t in range(t0, t1):
            e.mem(f"buffer_load_dwordx4 {vr(self.W+4*t,4)}, v{self.VW}, {srd(s)}, s10 offen offset:{1024*(t&3)} nt")
            if t & 3 == 3: e("s_add_u32 s10, s10, 4096")

    def a_compute(self):
        e = self.e; e.vm = 0
        AC, AT, AQ, M, TA, T = 1, 2, 3, 4, 6, 8
        FR, S, O, PV = 16, 48, 64, 128
        e("L_AC:")
        self.role = "AC"
        self.pt("start")
        if self.o["cpf"]:
            here = e.lab("L_pc")
            e(f"""s_getpc_b64 s[10:11]
            {here}:
            s_sub_u32 s10, s10, {here}-{NAME}_kernel
            s_subb_u32 s11, s11, 0
            s_lshl_b32 s12, s3, 13
            v_lshl_add_u32 v{T+1}, v0, 7, s12""")
            for i in range(self.o["cpf"]):
                e(f"""v_cmp_gt_u32 vcc, L_END-{NAME}_kernel, v{T+1}
                s_and_saveexec_b64 s[12:13], vcc
                s_cbranch_execz L_cpf{i}
                global_load_dword v{254+i}, v{T+1}, s[10:11]
                L_cpf{i}:
                s_mov_b64 exec, -1
                v_add_u32 v{T+1}, 32768, v{T+1}""")
        e.L.append("; split")
        e(f"v_lshlrev_b32 v{T}, 4, v0\ns_waitcnt lgkmcnt(0)")
        self.epoch_load()
        self.mk_srd(SRD_WS, P_WS, WS_USED); self.mk_srd(SRD_D, P_BWO, 4 << 20); self.mk_srd(SRD_E, P_OUT, 4096)
        for r in range(4): e(f"v_mov_b32 v{FR+r}, -1")
        def clears():
            skip = e.lab("L_skip"); two = e.lab("L_two")
            e(f"""s_and_b32 s10, s4, 62
            s_lshl_b32 s10, s10, 14
            s_and_b32 s11, s4, 1
            s_mul_i32 s11, s11, 3072
            s_add_u32 s10, s10, s11
            s_add_u32 s10, s10, {MB}
            s_cmp_eq_u32 s3, 0
            s_cbranch_scc1 {two}
            s_cmp_eq_u32 s3, 1
            s_cbranch_scc1 {skip}
            s_cmp_ge_u32 s4, 32
            s_cbranch_scc1 {skip}
            s_lshl_b32 s10, s4, 14
            s_lshl_b32 s11, s3, 12
            s_add_u32 s10, s10, s11
            s_add_u32 s10, s10, {MB}
            buffer_store_dwordx4 {vr(FR,4)}, v{T}, {srd(SRD_WS)}, s10 offen offset:3072 sc1 ; c:CLR
            {two}:""")
            for i in range(3): e(f"buffer_store_dwordx4 {vr(FR,4)}, v{T}, {srd(SRD_WS)}, s10 offen offset:{1024*i} sc1 ; c:CLR")
            e(f"{skip}:")
        cat = self.o["clr_at"]
        if cat < 0: clears()
        e(f"s_mov_b32 s{S_SC}, {f2u(SCALE):#x}\ns_mov_b32 s{S_SPIN}, {SPIN}")
        self.row_addr(AC, T + 1)
        e(f"""v_add_u32 v{AQ}, {X}, v{AC}
        s_lshl_b32 s10, s3, 15
        v_add_u32 v{AC}, s10, v{AC}
        v_lshrrev_b32 v{T+2}, 5, v0
        v_bfe_u32 v{T+1}, v0, 2, 2
        v_lshl_add_u32 v{T+3}, v{T+2}, 2, v{T+1}
        v_lshlrev_b32 v{AT}, 10, v{T+3}
        v_bfe_u32 v{T+3}, v0, 4, 1
        v_lshlrev_b32 v{T+3}, 1, v{T+3}
        v_bfe_u32 v{T+4}, v0, 1, 1
        v_or_b32 v{T+3}, v{T+3}, v{T+4}
        v_xor_b32 v{T+3}, v{T+3}, v{T+2}
        v_lshl_add_u32 v{T+3}, v{T+1}, 2, v{T+3}
        v_lshl_add_u32 v{AT}, v{T+3}, 4, v{AT}
        v_and_b32 v{T+3}, 1, v0
        v_lshl_add_u32 v{AT}, v{T+3}, 3, v{AT}
        s_lshl_b32 s10, s3, 8
        v_add_u32 v{AT}, s10, v{AT}""")
        self.epoch_tag()
        def tr_addr():
            for k in range(8):
                e(f"v_xor_b32 v{S+k}, {(2*k) << 4}, v{AT}")
                if k & 1: e(f"v_add_u32 v{S+k}, 8192, v{S+k}")
        def tr_step():
            for k in range(8): e(f"v_add_u32 v{S+k}, 65536, v{S+k}")
        def tr_ct(u, ct):
            for hh in range(2):
                last = e.ds(f"ds_read_b64_tr_b16 {vr(PV+16*(u&7)+4*ct+2*hh,2)}, v{S+2*ct+hh} offset:{32768*((u>>1)&1)+16384*(u&1)}")
            return last
        tr_addr()
        e(f"""s_and_b32 s9, s4, {self.o["rep"] - 1}
        s_lshl_b32 s9, s9, 11
        s_add_u32 s9, s9, {FA}
        v_lshlrev_b32 v{FR+10}, 3, v0""")
        def qc_load():
            for i in range(3): e(f"buffer_load_dwordx2 {vr(FR+4+2*i,2)}, v{FR+10}, {srd(SRD_WS)}, s9 offen offset:{512*i} sc1 ; c:LQC")
        def q_load():
            for i in range(8): e(f"buffer_load_dwordx4 {vr(O+4*i,4)}, v{T}, {srd(SRD_WS)}, s{70+(i>>2)} offen offset:{1024*(i&3)} sc1 ; c:LQA")
        e(f"""s_lshr_b32 s70, s4, 5
        s_lshl_b32 s70, s70, 15
        s_lshl_b32 s71, s3, 13
        s_add_u32 s70, s70, s71
        s_add_u32 s70, s70, {QAP}
        s_add_u32 s71, s70, 4096""")
        qat = self.o["qat"]
        def flags():
            top, done = e.lab("L_spin"), e.lab("L_ok")
            e(f"""s_cmp_lg_u32 s3, 0
            s_cbranch_scc1 {done}
            {top}:
            s_waitcnt vmcnt(0)
            v_cmp_ne_u64 vcc, s[{TAG}:{TAG+1}], {vr(FR+4,2)}
            v_cmp_ne_u64 s[12:13], s[{TAG}:{TAG+1}], {vr(FR+6,2)}
            s_or_b64 vcc, vcc, s[12:13]
            v_cmp_ne_u64 s[12:13], s[{TAG}:{TAG+1}], {vr(FR+8,2)}
            s_or_b64 vcc, vcc, s[12:13]
            s_cbranch_vccz {done}""")
            qc_load()
            self.spin_tail(top, done)
        for t in range(4):
            if t == 1: e("s_waitcnt vmcnt(0)")
            e("s_barrier")
            self.pt(f"t{t}")
            if t == 1:
                skip = self.only_wave(0)
                e("s_lshr_b32 s12, s4, 3\ns_and_b32 s13, s4, 7\ns_add_u32 s13, s13, 8")
                self.post_b(12, 13, FR)
                self.post_a(4, 1024, FR + 12)
                e(f"{skip}:")
            if t == self.o["fat"]:
                skip = self.only_wave(0); qc_load(); e(f"{skip}:")
            if t == 2: tr_step()
            e.ds_reset()
            for u in (2 * t, 2 * t + 1):
                for ct in range(4): tr_ct(u, ct)
            e("s_waitcnt lgkmcnt(0)")
        if self.o["late"]: e("s_barrier")
        flags()
        e("s_barrier")
        self.pt("half")
        q_load()
        e(f"""s_lshl_b32 s12, s3, 13
        s_add_u32 s12, s12, {X}
        s_and_b32 s13, s3, 1
        s_lshl_b32 s13, s13, 5
        v_xor_b32 v{T+1}, s13, v{T}
        v_add_u32 v{T+1}, s12, v{T+1}""")
        top, done = e.lab("L_spin"), e.lab("L_ok")
        e(f"{top}:\ns_waitcnt vmcnt(0)")
        self.max3_chain("u32", T + 2, range(O, O + 16)); self.max3_chain("u32", T + 3, range(O + 16, O + 32))
        e(f"v_max_u32 v{T+2}, v{T+2}, v{T+3}\nv_cmp_eq_u32 vcc, -1, v{T+2}\ns_cbranch_vccz {done}")
        self.pt("qr")
        q_load()
        self.spin_tail(top, done)
        self.pt("qd")
        for i in range(8):
            sw = ((i & 3) << 2) | (i >> 2)
            e(f"v_xor_b32 v{TA+(i&1)}, {sw << 4}, v{T+1}\nds_write_b128 v{TA+(i&1)}, {vr(O+4*i,4)} offset:{1024*i}")
        if self.o["r2"]:
            e("s_waitcnt lgkmcnt(0)\ns_barrier")
            self.pt("b1")
            e(f"v_add_u32 v{T}, {X+self.X_P}, v{T}")
            self.stat_addr(T + 3, T + 1)
            e(f"""s_lshl_b32 s10, s3, 7
            s_add_u32 s10, s10, {X+self.X_AL}
            v_and_b32 v{T+1}, 31, v0
            v_lshl_add_u32 v{AQ}, v{T+1}, 2, s10
            v_lshrrev_b32 v{T+1}, 5, v0
            v_lshl_add_u32 v{AC}, v{T+1}, 4, s10""")
            tr_addr()
            def pv(rnd):
                e.ds_reset()
                pt_ = [e.ds(f"ds_read_b128 {vr(FR+4*u,4)}, v{T} offset:{8192*rnd+1024*u}") for u in range(8)]
                for u in range(8):
                    e.dswait(pt_[u])
                    for ct in range(4):
                        e(f"v_mfma_f32_32x32x16_bf16 {vr(O+16*ct,16)}, {vr(FR+4*u,4)}, {vr(PV+16*u+4*ct,4)}, {vr(O+16*ct,16) if u or rnd else 0}")
            e("s_barrier\ns_barrier\ns_barrier")
            self.pt("bp0")
            pv(0)
            e("s_barrier")
            self.pt("bd")
            e.ds_reset()
            for u in range(8):
                if u == 4: tr_step()
                for ct in range(4): tr_ct(u, ct)
            e(f"""s_waitcnt lgkmcnt(0)
            s_barrier
            ds_read_b128 {vr(FR,4)}, v{T+3} offset:{self.X_MAX}
            ds_read_b128 {vr(FR+4,4)}, v{T+3} offset:{self.X_MAX+16}
            s_waitcnt lgkmcnt(0)""")
            self.max3_chain("f32", T + 1, range(FR, FR + 4))
            self.max3_chain("f32", M, [T + 1] + list(range(FR + 4, FR + 8)))
            e(f"""v_mul_f32 v{T+1}, s{S_SC}, v{T+1}
            v_mul_f32 v{M}, s{S_SC}, v{M}
            v_sub_f32 v{T+1}, v{T+1}, v{M}
            v_exp_f32 v{T+1}, v{T+1}
            ds_write_b32 v{AQ}, v{T+1}""")
            for q in range(4): e(f"ds_read_b128 {vr(S+4*q,4)}, v{AC} offset:{32*q}")
            e("s_waitcnt lgkmcnt(0)")
            for ct in range(4):
                for r in range(16): e(f"v_mul_f32 v{O+16*ct+r}, v{O+16*ct+r}, v{S+r}")
            e("s_barrier")
            self.pt("bp")
            pv(1)
        else:
            e("s_add_u32 s9, s3, 4\ns_waitcnt lgkmcnt(0)\ns_barrier")
            self.pt("b1")
            self.qk1(S, FR, AQ, TA, AC=AC)
            self.pt("qk")
            self.softmax1(S, FR, M, T + 1, 9)
            self.pt("bp")
            e(f"v_add_u32 v{T}, {X+self.X_P}, v{T}")
            e.ds_reset()
            pt_, tt_ = {}, {}
            def pread(u): pt_[u] = e.ds(f"ds_read_b128 {vr(FR+4*(u&7),4)}, v{T} offset:{1024*u}")
            for u in range(8): pread(u)
            tr_addr()
            for u in range(16):
                e.dswait(max(pt_[u], tt_.get(u, 0)))
                if u == 4: tr_step()
                for ct in range(4):
                    e(f"v_mfma_f32_32x32x16_bf16 {vr(O+16*ct,16)}, {vr(FR+4*(u&7),4)}, {vr(PV+16*(u&7)+4*ct,4)}, {vr(O+16*ct,16) if u else 0}")
                    if u < 8: tt_[u + 8] = tr_ct(u + 8, ct)
                if u < 8: pread(u + 8)
        self.pt("pv")
        e(f"""v_lshrrev_b32 v{T}, 5, v0
        v_lshlrev_b32 v{T}, 18, v{T}
        v_bfe_u32 v{T+1}, v0, 4, 1
        v_lshl_add_u32 v{T}, v{T+1}, 16, v{T}
        v_and_b32 v{T+1}, 15, v0
        v_lshl_add_u32 v{T}, v{T+1}, 4, v{T}
        s_lshl_b32 s10, s4, 10
        s_lshl_b32 s11, s3, 8
        s_add_u32 s10, s10, s11
        s_add_u32 s10, s10, {AP}""")
        for r in range(16):
            d = FR + 2 * r
            e(f"v_cvt_pk_bf16_f32 v{d}, v{O+r}, v{O+16+r}\nv_cvt_pk_bf16_f32 v{d+1}, v{O+32+r}, v{O+48+r}")
            if r >= 3 and r & 1:
                k = FR + 2 * (r - 3)
                e(f"v_permlane16_swap_b32 v{k}, v{k+2}\nv_permlane16_swap_b32 v{k+1}, v{k+3}")
                e(f"buffer_store_dwordx4 {vr(k,4)}, v{T}, {srd(SRD_WS)}, s10 offen sc1 ; c:AP")
                e(f"s_add_u32 s10, s10, {65536 * (6 if (r - 3) & 2 else 2)}")
        k = FR + 28
        e(f"v_permlane16_swap_b32 v{k}, v{k+2}\nv_permlane16_swap_b32 v{k+1}, v{k+3}")
        e(f"buffer_store_dwordx4 {vr(k,4)}, v{T}, {srd(SRD_WS)}, s10 offen sc1 ; c:AP")
        skip = self.only_wave(0)
        if not self.o["r2"]: e(f"ds_read_b128 {vr(S+4,4)}, v{T+3} offset:{self.X_L+16}")
        e(f"""ds_read_b128 {vr(S,4)}, v{T+3} offset:{self.X_L}
        v_lshlrev_b32 v{T+1}, 3, v0
        s_lshl_b32 s10, s4, 8
        s_add_u32 s10, s10, {AST}
        s_waitcnt lgkmcnt(0)""")
        self.tree("v_add_f32", S, 4 if self.o["r2"] else 8, 1)
        e(f"""v_mov_b32 v{S+1}, v{S}
        v_mov_b32 v{S}, v{M}
        s_mov_b32 exec_hi, 0
        buffer_store_dwordx2 {vr(S,2)}, v{T+1}, {srd(SRD_WS)}, s10 offen sc1
        s_mov_b64 exec, -1
        {skip}:
        s_mov_b32 s5, s3
        s_mov_b32 s6, 1""")
        skip = e.lab("L_skip")
        e(f"""v_mov_b32 v100, {X+self.X_CNT+64}
        v_mov_b32 v101, 1
        s_mov_b64 exec, 1
        s_waitcnt vmcnt(0)
        ds_add_rtn_u32 v102, v100, v101
        s_waitcnt lgkmcnt(0)
        v_cmp_eq_u32 vcc, 3, v102
        s_mov_b64 exec, -1
        s_cbranch_vccz {skip}""")
        if self.o["wb"]: e("buffer_wbl2 sc1\ns_waitcnt vmcnt(0)")
        self.post_a(4, 1536, 96)
        if self.o["fw"]:
            if self.o["fw"] == 2: e("s_waitcnt vmcnt(0)")
            self.lds_inc(X + self.X_CNT + 64, 100)
        e(f"{skip}:")
        self.pt("b9")
        self.vw_addr()
        self.tail_setup()
        self.masks(0x03030303, 0x03030303)
        self.core_selectors()
        if self.o["fw"]:
            self.lds_wait(X + self.X_CNT + 64, 100, 5)
            self.wload(SRD_D)
        else:
            self.wload(SRD_D)
            self.lds_wait(X + self.X_CNT + 64, 100)
        e(f"""s_mov_b32 s{S_SPIN}, {SPIN * 20}
        v_lshlrev_b32 v{self.A_CW}, 2, v0
        v_subrev_u32 v{self.A_CR}, s{self.S_PRIV}, v{self.A_CR}
        s_cmp_eq_u32 s3, 0
        s_cbranch_scc1 L_BPRE
        v_mov_b32 v100, {X + self.X_CNT + 128}
        s_waitcnt vmcnt(0)""")
        top = e.lab("L_spin")
        XR = self.XR
        e(f"""{top}:
        ds_read_b32 v101, v100
        ds_read_b128 {vr(XR,4)}, v{self.A_CR} offset:1024
        ds_read_b128 {vr(XR+4,4)}, v{self.A_CR} offset:1040
        s_waitcnt lgkmcnt(0)
        v_cmp_ne_u32 vcc, 0, v101
        s_cbranch_vccnz L_CORE2
        s_sub_u32 s{S_SPIN}, s{S_SPIN}, 1
        s_cbranch_scc0 {top}
        s_branch L_CORE2
        L_BPRE:
        s_mov_b32 s{S_SPIN}, {SPIN}
        v_mov_b32 v100, {X + self.X_CNT + 128}
        v_mov_b32 v101, 1""")
        self.b_pre()

    def b_pre(self):
        e = self.e
        T, U, G, A_CW, S_PRIV, S_MBJ = self.T, self.U, 104, self.A_CW, self.S_PRIV, self.S_MBJ
        e(f"""v_bfe_u32 v{T}, v0, 4, 1
        v_mul_u32_u24 v{T}, 6144, v{T}
        v_and_b32 v{T+1}, 15, v0
        v_lshl_add_u32 v{T}, v{T+1}, 6, v{T}
        s_lshr_b32 s10, s4, 3
        s_mul_i32 s10, s10, 768
        s_bfe_u32 s11, s4, 0x20001
        s_lshl_b32 s11, s11, 4
        s_add_u32 s10, s10, s11
        s_add_u32 s10, s10, {BS}
        s_mov_b32 s12, 0x0fff0fff
        s_mov_b32 s13, 0
        v_mov_b32 v{U+5}, 0xff
        s_mov_b64 exec, s[12:13]""")
        top, done = e.lab("L_spin"), e.lab("L_ok")
        e(f"""{top}:
        buffer_load_dwordx4 {vr(U,4)}, v{T}, {srd(SRD_WS)}, s10 offen sc1
        s_waitcnt vmcnt(0)""")
        self.tag_check(U, 2, U + 4)
        e(f"v_cmp_ne_u32 vcc, 0, v{U+4}\ns_cbranch_vccz {done}")
        self.spin_tail(top, done, self.o["sl_bs"])
        e(f"s_mov_b64 exec, -1\nv_and_b32 v{U+1}, 0xffffff00, v{U+2}\nv_and_b32 v{U}, 0xffffff00, v{U}")
        self.pt("bstat")
        e(f"""v_mov_b32 v{U+2}, 0xff800000
        v_cndmask_b32 v{U}, v{U+2}, v{U}, s[12:13]
        v_cndmask_b32 v{U+1}, 0, v{U+1}, s[12:13]
        v_mov_b32 v{U+2}, v{U}""")
        self.row_red("v_max_f32", U + 2, (1, 2, 4, 8))
        e(f"v_sub_f32 v{U}, v{U}, v{U+2}\nv_exp_f32 v{U}, v{U}\nv_mul_f32 v{U+1}, v{U}, v{U+1}")
        self.row_red("v_add_f32", U + 1, (1, 2, 4, 8))
        WA, AC0, XR, BLO, BHI = 180, self.AC0, self.XR, self.BLO, self.BHI
        e(f"""v_rcp_f32 v{U+1}, v{U+1}
        v_mul_f32 v{U}, v{U}, v{U+1}
        v_cvt_pk_bf16_f32 v{U}, v{U}, v{U}
        v_bfe_u32 v{T}, v0, 4, 1
        v_mul_u32_u24 v{T}, 24, v{T}
        v_and_b32 v{T+1}, 15, v0
        v_lshl_add_u32 v{T}, v{T+1}, 1, v{T}
        v_lshrrev_b32 v{T+2}, 4, v0
        v_mul_u32_u24 v{T+2}, 12, v{T+2}
        s_mov_b64 exec, s[12:13]
        ds_write_b16 v{T}, v{U} offset:1536
        s_mov_b64 exec, -1
        ds_read_b32 v{XR}, v{T+2} offset:1536
        ds_read_b32 v{XR+1}, v{T+2} offset:1540
        ds_read_b32 v{XR+2}, v{T+2} offset:1544
        v_lshlrev_b32 v{T}, 7, v{T+2}
        v_lshl_add_u32 v{T}, v{T+1}, 4, v{T}
        s_and_b32 s10, s4, 62
        s_lshl_b32 s10, s10, 14
        s_add_u32 s10, s10, {MB}
        v_lshrrev_b32 v{T+2}, 5, v0
        v_lshlrev_b32 v{T+2}, 7, v{T+2}
        v_and_b32 v{T+1}, 7, v0
        v_lshl_add_u32 v{T+2}, v{T+1}, 4, v{T+2}
        v_bfe_u32 v{T+1}, v0, 4, 1
        v_lshl_add_u32 v{T+2}, v{T+1}, 3, v{T+2}
        s_and_b32 s11, s4, 1
        s_lshl_b32 s11, s11, 3
        s_lshl_b32 s12, 0x00ff00ff, s11
        s_mov_b32 s13, s12
        s_mov_b32 s70, 0x00030003
        s_mov_b32 s71, 0x03000300
        s_waitcnt lgkmcnt(0)""")
        for t in range(6): e(f"v_perm_b32 v{U+t}, v{XR+(t>>1)}, v{XR+(t>>1)}, v{BHI if t & 1 else BLO}")
        for j in range(4):
            for t in range(6): e(f"v_cndmask_b32 v{WA+4*t+j}, 0, v{U+t}, s[70:71]")
            if j < 3: e("s_lshl_b32 s70, s70, 2\ns_lshl_b32 s71, s71, 2")
        def chain(g, t):
            if t == 0: e(f"v_max3_u32 v{T+1}, v{g}, v{g+1}, v{g+2}\nv_max_u32 v{T+1}, v{T+1}, v{g+3}")
            else: e(f"v_max3_u32 v{T+1}, v{T+1}, v{g}, v{g+1}\nv_max3_u32 v{T+1}, v{T+1}, v{g+2}, v{g+3}")
        def use(k, t):
            g = G + 24 * k + 4 * t
            e(f"v_mfma_f32_16x16x32_bf16 {vr(AC0,4)}, {vr(WA+4*t,4)}, {vr(g,4)}, {vr(AC0,4) if t else 0}"); chain(g, t)
        if self.o["gate"] >= 0:
            top, done = e.lab("L_spin"), e.lab("L_ok")
            e(f"{top}:")
            for t in range(6): e(f"buffer_load_dword v{G+t}, v{T}, {srd(SRD_WS)}, s10 offen offset:{256*t} sc1 ; c:LMB")
            e("s_mov_b32 s70, 0")
            for t in range(6):
                e(f"""s_waitcnt vmcnt({5-t})
                v_cmp_eq_u32 vcc, -1, v{G+t}
                s_and_b64 vcc, vcc, s[12:13]
                s_bcnt1_i32_b64 s71, vcc
                s_add_u32 s70, s70, s71""")
            e(f"s_cmp_le_u32 s70, {8 * self.o['gate']}\ns_cbranch_scc1 {done}")
            self.spin_tail(top, done, self.o["sl_bo"])
        self.poll_loop(6, lambda k, t: e(f"buffer_load_dwordx4 {vr(G+24*k+4*t,4)}, v{T}, {srd(SRD_WS)}, s10 offen offset:{256*t} sc1 ; c:LMB"),
                       use, lambda: e(f"v_cmp_eq_u32 vcc, -1, v{T+1}\ns_and_b64 vcc, vcc, s[12:13]"), self.o["ps1"], "or")
        self.pt("bo")
        e(f"""s_mov_b64 exec, s[12:13]
        v_cvt_pk_bf16_f32 v{U}, v{AC0}, v{AC0+1}
        v_cvt_pk_bf16_f32 v{U+1}, v{AC0+2}, v{AC0+3}
        ds_write_b64 v{T+2}, {vr(U,2)} offset:1024
        s_mov_b64 exec, -1
        ds_write_b32 v100, v101
        s_branch L_CORE1""")

    def a_loader(self):
        e = self.e; e.vm = 0
        VL, VW, TMP, SEL, BLO, BHI, T, U, W, G, WUV, AC0, AC1, PA, XR = (self.VL, self.VW, self.TMP, self.SEL, self.BLO,
            self.BHI, self.T, self.U, self.W, self.G, self.WUV, self.AC0, self.AC1, self.PA, self.XR)
        S_LW, S_PART, S_PRIV, S_MBJ = self.S_LW, self.S_PART, self.S_PRIV, self.S_MBJ
        XO, S, FR, AQ, AC, TA, M = 232, 16, 224, 4, 5, 6, 8
        CNT = X + self.X_CNT
        creg = lambda ks: (W + 4 * ks) if ks < 16 else (WUV + 4 * (ks - 16))
        e("L_AL:")
        self.role = "AL"
        self.pt("start")
        e(f"""s_sub_u32 s{S_LW}, s3, 4
        s_and_b32 s10, s3, 1
        s_lshl_b32 s10, s10, 5
        v_lshlrev_b32 v{VL}, 4, v0
        v_xor_b32 v{T}, s10, v{VL}""")
        for i in range(8): e(f"v_xor_b32 v{XO+i}, {(((i & 3) << 2) | (i >> 2)) << 4}, v{T}")
        e(f"""s_lshl_b32 s66, s4, 18
        s_lshl_b32 s67, s{S_LW}, 13
        s_add_u32 s66, s66, s67
        s_waitcnt lgkmcnt(0)""")
        self.mk_srd(SRD_A, P_CKV, 16 << 20)
        dma = []
        def dma_tile(t):
            for r in range(8):
                if r & 3 == 0: e("s_mov_b32 m0, s67")
                last = e.mem(f"buffer_load_dwordx4 v{XO+r}, {srd(SRD_A)}, s66 offen offset:{1024*(r&3)} nt lds")
                if r == 3: e("s_add_u32 s66, s66, 4096\ns_add_u32 s67, s67, 4096")
                if r == 7: e(f"s_add_u32 s66, s66, 28672\ns_add_u32 s67, s67, {28672 if t != 3 else (28672 - 131072) & 0xffffffff:#x}")
            dma.append(last)
        a0 = self.o["a0"]
        dma_tile(0)
        e.L.append("; split")
        for t in range(1, a0): dma_tile(t)
        if self.stamps: self.mk_srd(SRD_WS, P_WS, WS_USED)
        self.row_addr(AC, T)
        e(f"""v_add_u32 v{AQ}, {X}, v{AC}
        s_lshl_b32 s10, s{S_LW}, 15
        v_add_u32 v{AC}, s10, v{AC}
        s_mov_b32 s{S_SC}, {f2u(SCALE):#x}""")
        for t in range(5):
            if t < 4: e.wait(dma[t])
            e("s_barrier")
            self.pt(f"bar{t}")
            while len(dma) < min(8, a0 + t + 1, 4 + t) or (t == 4 and len(dma) < 8): dma_tile(len(dma))
            self.pt(f"iss{t}")
            if t < 4:
                skip = self.only_wave(4 + t)
                for i in range(8):
                    e(f"v_xor_b32 v{TA+(i&1)}, {i << 5}, v{AC}")
                    for q in range(4): e(f"ds_read_b128 {vr(creg(i+8*q),4)}, v{TA+(i&1)} offset:{256*q}")
                    if i & 1: e("s_waitcnt lgkmcnt(4)")
                e(f"s_waitcnt lgkmcnt(0)\n{skip}:")
        if self.o["r2"]:
            self.stat_addr(T + 2, T + 3)
            if self.o["late"]: e("s_barrier")
            e(f"s_lshl_b32 s10, s{S_LW}, 2\nv_add_u32 v{T+3}, s10, v{T+2}\ns_barrier")
            self.qk(0, S, FR, AQ, TA, creg)
            self.softmax(0, S, FR + 16, M, TMP, T, S_LW)
            e("s_waitcnt vmcnt(0)")
            self.pt("dma")
            e("s_barrier")
            self.qk(1, S, FR, AC, TA, creg)
            self.softmax(1, S, FR + 16, M, TMP, T, S_LW)
        else:
            if self.o["late"]: e("s_barrier")
            e("s_waitcnt vmcnt(0)")
            self.pt("dma")
            e("s_barrier")
            self.qk1(S, FR, AQ, TA, creg=creg)
            self.softmax1(S, FR, M, T, S_LW)
        pv = self.o["pv"]
        if pv:
            npt = self.o["pb"]; assert self.o["pa"] == npt
            self.mk_srd(SRD_B, P_BV, 32 << 20)
            e(f"""s_lshr_b32 s10, s4, 3
            s_lshl_b32 s10, s10, 1
            s_lshr_b32 s11, s{S_LW}, 1
            s_add_u32 s10, s10, s11
            s_lshl_b32 s10, s10, 21
            s_and_b32 s11, s4, 7
            s_mul_i32 s11, s11, {8 * npt}
            s_and_b32 s12, s{S_LW}, 1
            s_lshl_b32 s12, s12, 1
            s_add_u32 s12, s12, {self.o['pvw']}
            s_mul_i32 s12, s12, {npt}
            s_add_u32 s11, s11, s12
            s_add_u32 s11, s11, {npt - pv}
            s_lshl_b32 s11, s11, 12
            s_add_u32 s10, s10, s11
            s_add_u32 s11, s10, {4096 * npt}""")
            if self.o["pvwait"]: self.lds_wait(X + self.X_CNT + 64, T)
            k = 0
            for t in range(pv):
                for sr in (10, 11):
                    for j in range(4):
                        if k >= self.o["pvwin"]: e(f"s_waitcnt vmcnt({self.o['pvwin'] - 1})")
                        e(f"buffer_load_dwordx4 {vr(32 + 4 * k, 4)}, v{VL}, {srd(SRD_B)}, s{sr} offen offset:{1024 * j} nt"); k += 1
                    e(f"s_add_u32 s{sr}, s{sr}, 4096")
            e("s_waitcnt vmcnt(0)")
        self.pt("end")
        self.stamp_out(32)
        e("s_endpgm")

    def a_tail(self):
        e = self.e; e.vm = 0
        VL, VW, TMP, SEL, BLO, BHI, T, U, W, G, AC0, AC1, PA, XR = (self.VL, self.VW, self.TMP, self.SEL, self.BLO,
            self.BHI, self.T, self.U, self.W, self.G, self.AC0, self.AC1, self.PA, self.XR)
        S_LW, S_PART, S_PRIV, S_MBJ = self.S_LW, self.S_PART, self.S_PRIV, self.S_MBJ
        UV, GA, L_W = 96, 160, 32768
        e("L_ATAIL:")
        self.role = "Q"
        e(f"s_mov_b32 s{S_LW}, s3\ns_mov_b32 s{S_PART}, 0\ns_mov_b32 s{S_SPIN}, {SPIN}")
        e(f"""s_cmp_eq_u32 s3, 0
        s_cselect_b32 s69, 0, 0x40000000
        s_and_b32 s70, s4, {self.o["rep"] - 1}
        s_lshl_b32 s70, s70, 11
        s_add_u32 s70, s70, {FA + 1536}
        s_add_u32 s70, s70, s69
        v_lshlrev_b32 v{U+2}, 3, v0""")
        if self.o["f1"]: e(f"buffer_load_dwordx2 {vr(U,2)}, v{U+2}, {srd(SRD_WS)}, s70 offen sc1")
        self.vw_addr()
        self.tail_setup()
        e(f"""s_lshl_b32 s10, s3, 14
        s_add_u32 s10, s10, {L_W}
        v_add_u32 v{T}, s10, v{VL}
        v_add_u32 v{T+1}, 65536, v{T}""")
        e.ds_reset()
        for t in range(16): e.ds(f"ds_read_b128 {vr(UV+4*t,4)}, v{T} offset:{1024*t}")
        for t in range(16): e.ds(f"ds_read_b128 {vr(W+4*t,4)}, v{T+1} offset:{1024*t}")
        top, done = e.lab("L_spin"), e.lab("L_ok")
        e(f"s_cmp_lg_u32 s3, 0\ns_cbranch_scc1 {done}")
        if not self.o["f1"]: e(f"buffer_load_dwordx2 {vr(U,2)}, v{U+2}, {srd(SRD_WS)}, s70 offen sc1")
        e(f"""{top}:
        s_waitcnt vmcnt(0)
        v_cmp_ne_u64 vcc, s[{TAG}:{TAG+1}], {vr(U,2)}
        s_cbranch_vccz {done}""")
        if self.o["sl_ap"]: e(f"s_sleep {self.o['sl_ap']}")
        e(f"buffer_load_dwordx2 {vr(U,2)}, v{U+2}, {srd(SRD_WS)}, s70 offen sc1")
        self.spin_tail(top, done)
        e("s_waitcnt vmcnt(0) lgkmcnt(0)\ns_barrier")
        self.pt("apf")
        e.vm = 0
        e(f"""s_lshr_b32 s12, s4, 1
        s_lshl_b32 s10, s12, 3
        s_add_u32 s10, s10, {AST}
        v_lshlrev_b32 v{T}, 8, v0""")
        st = e.mem(f"buffer_load_dwordx2 {vr(U,2)}, v{T}, {srd(SRD_WS)}, s10 offen sc1")
        e(f"""s_lshl_b32 s10, s12, 16
        s_lshl_b32 s11, s{S_LW}, 8
        s_add_u32 s10, s10, s11
        s_add_u32 s10, s10, {AP}""")
        g = []
        for t in range(16):
            g.append(e.mem(f"buffer_load_dwordx4 {vr(GA+4*t,4)}, v{VW}, {srd(SRD_WS)}, s10 offen offset:{1024*(t&3)} sc1 ; c:LAP"))
            if t & 3 == 3: e("s_add_u32 s10, s10, 4096")
        self.masks(0x00030003, 0x03000300)
        e(f"""v_lshl_add_u32 v{T}, v0, 1, s{S_PRIV}
        v_lshrrev_b32 v{T+1}, 4, v0
        v_lshl_add_u32 v{T+1}, v{T+1}, 5, s{S_PRIV}""")
        e.wait(st)
        e(f"v_mov_b32 v{U+2}, v{U}")
        self.row_red("v_max_f32", U + 2, (1, 2, 4, 8)); self.swap_red("v_max_f32", U + 2, TMP, (16,))
        e(f"v_sub_f32 v{U}, v{U}, v{U+2}\nv_exp_f32 v{U}, v{U}\nv_mul_f32 v{U+1}, v{U}, v{U+1}")
        self.row_red("v_add_f32", U + 1, (1, 2, 4, 8)); self.swap_red("v_add_f32", U + 1, TMP, (16,))
        e(f"""v_rcp_f32 v{U+1}, v{U+1}
        v_mul_f32 v{U}, v{U}, v{U+1}
        v_cvt_pk_bf16_f32 v{U}, v{U}, v{U}
        ds_write_b16 v{T}, v{U}
        ds_read_b128 {vr(XR,4)}, v{T+1}
        ds_read_b128 {vr(XR+4,4)}, v{T+1} offset:16
        v_lshrrev_b32 v{T}, 5, v0
        v_lshlrev_b32 v{T}, 8, v{T}
        v_and_b32 v{T+1}, 15, v0
        v_lshl_add_u32 v{T}, v{T+1}, 1, v{T}
        v_bfe_u32 v{T+1}, v0, 4, 1
        v_lshl_add_u32 v{T}, v{T+1}, 5, v{T}
        v_add_u32 v{T}, s{S_PRIV}, v{T}
        v_bfe_u32 v{T+1}, v0, 3, 1
        v_lshlrev_b32 v{T+1}, 8, v{T+1}
        v_lshrrev_b32 v{T+2}, 4, v0
        v_lshl_add_u32 v{T+1}, v{T+2}, 6, v{T+1}
        v_bfe_u32 v{T+2}, v0, 2, 1
        v_lshl_add_u32 v{T+1}, v{T+2}, 5, v{T+1}
        v_add_u32 v{T+1}, s{S_PRIV}, v{T+1}
        s_waitcnt lgkmcnt(0)""")
        self.rws256(16, XR, GA, AC0, BLO, BHI, PA, g)
        self.pt("lat")
        e(f"""v_cvt_pk_bf16_f32 v{U}, v{AC0}, v{AC0+1}
        v_cvt_pk_bf16_f32 v{U+1}, v{AC0+2}, v{AC0+3}
        ds_write_b16 v{T}, v{U} offset:256
        ds_write_b16_d16_hi v{T}, v{U} offset:320
        ds_write_b16 v{T}, v{U+1} offset:384
        ds_write_b16_d16_hi v{T}, v{U+1} offset:448
        ds_read_b128 {vr(XR,4)}, v{T+1} offset:256
        ds_read_b128 {vr(XR+4,4)}, v{T+1} offset:272""")
        self.masks(0x03030303, 0x03030303)
        self.core_selectors()
        for z in (0, 1, 4, 5, 8, 9): e(f"v_mov_b32 v{PA+z}, 0")
        e(f"""v_bfe_u32 v{T}, v0, 3, 1
        v_lshlrev_b32 v{T}, 9, v{T}
        v_lshrrev_b32 v{T+1}, 5, v0
        v_lshl_add_u32 v{T}, v{T+1}, 8, v{T}
        v_and_b32 v{T+1}, 7, v0
        v_lshl_add_u32 v{T}, v{T+1}, 5, v{T}
        s_lshl_b32 s10, s{S_LW}, 10
        v_add_u32 v{T}, s10, v{T}
        s_waitcnt lgkmcnt(0)""")
        self.rws128(16, XR, UV, AC0, AC1, SEL, PA)
        RED = 16384
        e(f"""s_mov_b32 exec_lo, 0xff0000ff
        s_mov_b32 exec_hi, 0xff0000ff
        ds_write_b128 v{T}, {vr(AC0,4)} offset:{RED}
        ds_write_b128 v{T}, {vr(AC1,4)} offset:{RED+16}
        s_mov_b64 exec, -1
        v_lshlrev_b32 v{T}, 3, v0""")
        e("s_waitcnt lgkmcnt(0)\ns_barrier")
        for i in range(8): e(f"ds_read_b64 {vr(U+2*i,2)}, v{T} offset:{RED+512*i}")
        e("s_waitcnt lgkmcnt(0)")
        self.tree("v_add_f32", U, 8, 2)
        self.pt("ctx")
        A_CW, A_CR, A_MB = self.A_CW, self.A_CR, self.A_MB
        e(f"""v_cvt_pk_bf16_f32 v{U}, v{U}, v{U+1}
        ds_write_b32 v{A_CW}, v{U} offset:1024
        L_CORE1:
        ds_read_b128 {vr(XR,4)}, v{A_CR} offset:1024
        ds_read_b128 {vr(XR+4,4)}, v{A_CR} offset:1040
        L_CORE2:
        s_lshl_b32 s10, s{S_LW}, 15
        s_lshl_b32 s11, s4, 7
        s_add_u32 s10, s10, s11
        s_lshl_b32 s11, s{S_PART}, 18
        s_add_u32 s10, s10, s11
        s_add_u32 s10, s10, {MB+MB_2}
        s_waitcnt lgkmcnt(0)""")
        self.pt("cx")
        CS = 208
        for t in range(16):
            a = PA + 2 + 4 * (t & 1)
            for j in range(4): e(f"v_perm_b32 v{a+j}, v{XR+(t>>1)}, v{XR+(t>>1)}, v{CS+4*(t&1)+j}")
            e(f"v_mfma_f32_16x16x32_bf16 {vr(AC0,4)}, {vr(a,4)}, {vr(W+4*t,4)}, {vr(AC0,4) if t else 0}")
        e(f"""v_cvt_pk_bf16_f32 v{AC1}, v{AC0}, v{AC0+1}
        v_cvt_pk_bf16_f32 v{AC1+1}, v{AC0+2}, v{AC0+3}
        v_min_u32 v{AC1}, -2, v{AC1}
        v_min_u32 v{AC1+1}, -2, v{AC1+1}
        v_mov_b32 v{AC1+2}, v{AC1}
        v_mov_b32 v{AC1+3}, v{AC1+1}
        v_permlane16_swap_b32 v{AC1}, v{AC1+2}
        v_permlane16_swap_b32 v{AC1+1}, v{AC1+3}
        s_mov_b32 exec_lo, 0xffff
        s_mov_b32 exec_hi, 0xffff
        buffer_store_dwordx4 {vr(AC1,4)}, v{A_MB}, {srd(SRD_WS)}, s10 offen sc1 ; c:MB2
        s_mov_b64 exec, -1""")
        self.pt("core")
        e(f"""s_lshr_b32 s10, s4, 4
        s_cmp_lg_u32 s10, s{S_PART}
        s_cbranch_scc1 L_FINDONE
        s_cmp_lg_u32 s{S_LW}, 0
        s_cbranch_scc1 L_FINDONE
        s_add_u32 s10, s{S_MBJ}, {MB_2}
        s_add_u32 s11, s10, 4096
        v_mov_b32 v{T}, 0x3f803f80
        v_perm_b32 v{PA+2}, v{T}, v{T}, v{SEL}
        v_perm_b32 v{PA+3}, v{T}, v{T}, v{SEL+1}""")
        for z in (0, 1, 4, 5): e(f"v_mov_b32 v{PA+z}, 0")
        def use(k, i):
            g = G + 32 * k + 4 * i
            e(f"v_mfma_f32_16x16x32_bf16 {vr(AC0,4)}, {vr(PA+2,4)}, {vr(g,4)}, {vr(AC0,4) if i else 0}")
            e(f"v_mfma_f32_16x16x32_bf16 {vr(AC1,4)}, {vr(PA,4)}, {vr(g,4)}, {vr(AC1,4) if i else 0}")
            if i == 0: e(f"v_max3_u32 v{T}, v{g}, v{g+1}, v{g+2}\nv_max_u32 v{T}, v{T}, v{g+3}")
            else: e(f"v_max3_u32 v{T}, v{T}, v{g}, v{g+1}\nv_max3_u32 v{T}, v{T}, v{g+2}, v{g+3}")
        self.poll_loop(8, lambda k, i: e(f"buffer_load_dwordx4 {vr(G+32*k+4*i,4)}, v{VL}, {srd(SRD_WS)}, s{10+(i>>2)} offen offset:{1024*(i&3)} sc1 ; c:LMB"),
                       use, lambda: e(f"v_cmp_eq_u32 vcc, -1, v{T}"), self.o["ps2"], "fr")
        self.pt("fp")
        for r in range(8): self.row_red("v_add_f32", AC0 + r, (8,))
        for r in range(4): e(f"v_cvt_pk_bf16_f32 v{U+r}, v{AC0+2*r}, v{AC0+2*r+1}")
        e(f"""s_bfe_u32 s10, s4, 0x10003
        s_lshl_b32 s10, s10, 11
        s_and_b32 s11, s4, 7
        s_lshl_b32 s11, s11, 7
        s_add_u32 s10, s10, s11
        s_lshl_b32 s11, s{S_PART}, 10
        s_add_u32 s10, s10, s11
        s_mov_b64 exec, 0xff
        buffer_store_dwordx4 {vr(U,4)}, v{VL}, {srd(SRD_E)}, s10 offen
        s_cmp_lg_u32 s4, 16
        s_cbranch_scc1 L_FINDONE
        s_mov_b64 exec, 1
        v_mov_b32 v{T}, s{TAG}
        s_mov_b32 s10, {EPOCH}
        buffer_store_dword v{T}, off, {srd(SRD_WS)}, s10
        L_FINDONE:""")
        self.pt("fin")
        self.stamp_out(16)
        e("s_endpgm")

    def build(self):
        e = self.e
        e("""s_cmp_ge_u32 s2, 256
        s_cbranch_scc1 L_END
        s_load_dwordx16 s[16:31], s[0:1], 0
        s_load_dwordx8 s[32:39], s[0:1], 64
        s_load_dwordx4 s[40:43], s[0:1], 96
        v_lshrrev_b32 v1, 6, v0
        v_and_b32 v0, 63, v0
        v_readfirstlane_b32 s3, v1
        s_sub_u32 s4, s2, 128""")
        tests = {"P": "s_cmp_lt_u32 s2, 128\ns_cbranch_scc1 L_P", "Q": "s_cmp_ge_u32 s2, 192\ns_cbranch_scc1 L_Q",
                 "L": "s_cmp_ge_u32 s5, 64\ns_cbranch_scc0 L_AL", "C": "s_cmp_lt_u32 s5, 64\ns_cbranch_scc1 L_AC"}
        order = self.o["order"]
        for r in order[1:]:
            if r == "L": e("s_cmp_ge_u32 s3, 4\ns_cselect_b32 s5, s4, 64")
            if r == "C": e("s_cmp_lt_u32 s3, 4\ns_cselect_b32 s5, s4, 64")
            e(tests[r])
        fn = {"P": lambda: self.bside("P"), "Q": lambda: (self.bside("Q"), self.a_tail()), "L": self.a_loader, "C": self.a_compute}
        marks = {}
        for r in order:
            i0 = len(e.L); fn[r](); marks[r] = (i0, len(e.L))
        if self.o["pack"]:
            heads, bodies = [], []
            for r in order:
                seg = e.L[marks[r][0]:marks[r][1]]
                k = seg.index("; split")
                head = seg[:k]
                if self.o["hoist"] and "s_waitcnt lgkmcnt(0)" in head:
                    w = head.index("s_waitcnt lgkmcnt(0)")
                    f = next(i for i in range(w, len(head)) if head[i].startswith(("buffer_", "s_cbranch")))
                    cst = [l for l in head[w:f] if re.fullmatch(r"s_mov_b32 s\d+, 0x[0-9a-f]+", l)]
                    late = [l for l in head[w + 1:f] if l.startswith("s_load_dword")]
                    rest = [l for l in head[w:f] if l not in cst and l not in late]
                    head = head[:w] + cst + rest + head[f:] + late
                heads += head + [f"s_branch L_{r}_REST"]
                bodies += [f"L_{r}_REST:"] + seg[k + 1:]
            e.L = e.L[:marks[order[0]][0]] + heads + bodies
        e.L = [l for l in e.L if l != "; split"]
        e("L_END:\ns_endpgm")
        if "nobar" in self.x:
            i0 = e.L.index("L_P:"); i1 = e.L.index("L_AC:")
            e.L = e.L[:i0] + [l for l in e.L[i0:i1] if l != "s_barrier"] + e.L[i1:]
        if "nomath" in self.x:
            i0 = e.L.index("L_P:"); i1 = e.L.index("L_AC:")
            e.L = e.L[:i0] + [l for l in e.L[i0:i1] if not l.startswith(("v_mfma", "v_exp", "v_fma", "v_perm_", "v_add_f32", "v_mov_b32_dpp", "v_cvt", "v_max3"))] + e.L[i1:]
        if "noph1" in self.x:
            i0 = e.L.index("L_P:"); i1 = e.L.index("L_AC:")
            e.L = e.L[:i0] + [l for l in e.L[i0:i1] if not (l.startswith("buffer_load") and (srd(SRD_D) in l or srd(SRD_E) in l))] + e.L[i1:]
        for x in self.x:
            if x.startswith("c:"): e.L = [l for l in e.L if not l.endswith("; " + x)]
        for x in self.x:
            if x.startswith("m:"):
                tag, m = x[2:].split("=")
                e.L = [l.replace(" sc1", " " + m.replace("+", " ")) if l.endswith("; c:" + tag) else l for l in e.L]
            if x.startswith("allst="):
                m = x[6:].replace("+", " ")
                e.L = [l.replace(" sc1", " " + m if m else "") if l.startswith("buffer_store") else l for l in e.L]
        if "nost" in self.x:
            e.L = [l for l in e.L if not (l.startswith("buffer_store") and "sc1" in l)]
        if "nosc" in self.x:
            e.L = [l for l in e.L if not (l.startswith("buffer_load") and "sc1" in l)]
        if "noA" in self.x:
            for lab in ("L_AL:", "L_AC:"):
                i = e.L.index(lab); e.L.insert(i + 1, "s_endpgm")
        if "link" in self.x:
            e.L = [l.replace(", v1, s[48:51]", ", v2, s[48:51]") if l.startswith("buffer_load_dwordx4") and "lds" not in l else l for l in e.L]
        if self.o["wb"]: e.L = [l.replace(" sc1", "") if l.endswith("; c:AP") else l for l in e.L]
        body, npad = fix_hazards(e.L)
        out = [HEADER.rstrip(), "; @launch grid=(256,1,1) block=(512,1,1) lds=163840", DOC.strip(),
               '.amdgcn_target "amdgcn-amd-amdhsa--gfx950"', ".text", f".globl {NAME}_kernel"] + ([f".p2align {self.o['al']}"] if self.o["al"] else []) + [".p2align 8",
               f".type {NAME}_kernel,@function", f"{NAME}_kernel:"]
        if not self.stamps: body = [l.split(" ; c:")[0] for l in body]
        out += [("" if l.endswith(":") else "    ") + l for l in body]
        out += ['.section .rodata,"a"', ".p2align 6", f".amdhsa_kernel {NAME}_kernel",
                "  .amdhsa_next_free_vgpr 256", "  .amdhsa_next_free_sgpr 102", "  .amdhsa_accum_offset 256",
                "  .amdhsa_group_segment_fixed_size 0", "  .amdhsa_kernarg_size 112", "  .amdhsa_user_sgpr_count 2",
                "  .amdhsa_user_sgpr_kernarg_segment_ptr 1", "  .amdhsa_system_sgpr_workgroup_id_x 1",
                ".end_amdhsa_kernel"]
        return "\n".join(out) + "\n", npad

DOC = """
; Softmax uses the true maximum of every split; splits are merged with their maxima and sums.
; Hand-offs go through d_ws with write-through stores and L1-bypassing loads. Flags and tagged words carry
"""

PTS = {"P": "start,xq,st,qf,q,k,v,end", "Q": "start,fin,w,free,end,core,apf,ctx",
       "AC": "start,fin,qd,b1,b9,core,pv,bo", "AL": "start,bar0,bar3,iss4,dma,x,y,end"}

if __name__ == "__main__":
    ap = argparse.ArgumentParser()
    ap.add_argument("out"); ap.add_argument("--stamps", action="store_true")
    ap.add_argument("--pts", action="append", default=[]); ap.add_argument("--x", default="")
    for k, v in DEFAULTS.items(): ap.add_argument("--" + k, type=int, default=v)
    ap.add_argument("--order", default="LPQC"); DEFAULTS["order"] = 0
    a = ap.parse_args()
    pts = {}
    if a.stamps:
        pts = {k: v.split(",") for k, v in PTS.items()}
        for p in a.pts:
            r, l = p.split(":"); pts[r] = l.split(",")
    s, npad = Gen({k: getattr(a, k) for k in DEFAULTS}, pts, set(a.x.split(","))).build()
    open(a.out, "w").write(s)
    print("wrote", a.out, "lines", s.count("\n"), "pads", npad)
```

```python
import sys, math, struct, argparse, re
from asmlib import Emit, fix_hazards

NAME = "concat_heads__compressed_kv_cla__gqa_block_cached__decode"
HEADER = open("cdna_kernels/%s.s.ref" % NAME).read().split("; Override launch")[0]

QBP = 0x000000
QAP = 0x020000
AST = 0x040000
BS  = 0x048000
FB  = 0x050000
EPOCH = 0x060000
FA  = 0x080000
MB  = 0x100000
MB_2 = 8192
AP  = 0x200000
XQ  = 0x400000
WS_USED = 0x500000
STAMPS = 0x800000

SCALE = math.log2(math.e) / math.sqrt(128.0)
def f2u(x): return struct.unpack("<I", struct.pack("<f", x))[0]

SRD_WS, SRD_A, SRD_B, SRD_C, SRD_D, SRD_E, SRD_F, SRD_G = 44, 48, 52, 56, 60, 64, 68, 96
P_AX, P_CKV, P_AWQ, P_WUK, P_WUV, P_AWO, P_BX, P_BK, P_BV, P_BWQ, P_BWO, P_OUT, P_DBG, P_WS = range(16, 44, 2)
S_SC, S_SPIN = 15, 14
MASK0 = 72
TAG = 94
ST0 = 16
SPIN = 20000
X = 131072

def srd(n): return f"s[{n}:{n+3}]"
def vr(a, n): return f"v[{a}:{a+n-1}]" if n > 1 else f"v{a}"

DEFAULTS = dict(mapt=0, light=3, hoist=1, al=12, qd=1, r2=1, fw=2, rep=8, late=0, f1=1, pe=0, gate=-1, ps1=2, ps2=2, clr_at=-1, cpf=1, t1x=2, il=1, pack=0, pa=6, pb=6, qa=4, qat=3, fat=2, uvb=0, pv=0, pvw=4, pvwait=1, pvwin=4, ne=4, we=2, sl_bo=0, kq=12, cu=2, wsb=0, wt1=8, pf1=1, pfwin=6, stw=0, sl_ap=4, sl_xq0=0, sl_xq=2, sl_qa=4, sl_bs=8, np=6, uv0=16, wa=0, wb=0, wc=0, pf=4, pfw=0, pre_q=0, uv1=8, a0=3, t2w=0, wq1=2, kq1=4, sleep=0, pre_p=0, w1=2, kf_p=0, kf_q=12, wq0=8, wk=8, wt=10, wv=8)

class Gen:
    def __init__(self, opt, pts, x):
        self.o = opt; self.alt = pts; self.x = x; self.role = None
        self.stamps = bool(pts)
        self.e = Emit()

    def mk_srd(self, d, p, size):
        self.e(f"s_mov_b32 s{d}, s{p}\ns_mov_b32 s{d+1}, s{p+1}\ns_mov_b32 s{d+2}, {size:#x}\ns_mov_b32 s{d+3}, 0x20000")

    def pt(self, name, role=None):
        sel = self.alt.get(role or self.role)
        if sel and name in sel:
            i = sel.index(name); self.e(f"s_memrealtime s[{80+2*i}:{81+2*i}]" if i < 7 else "s_memrealtime s[100:101]")

    def stamp_out(self, t):
        if not self.stamps: return
        e = self.e
        if "dbg" in self.x:
            skip = e.lab("L_skip")
            e(f"""s_waitcnt lgkmcnt(0)
            s_and_b32 s10, s2, 127
            s_lshl_b32 s10, s10, 3
            s_add_u32 s10, s10, s3
            s_cmp_lg_u32 s10, 0
            s_cbranch_scc1 {skip}
            s_lshr_b32 s10, s2, 7
            s_lshl_b32 s10, s10, 5
            s_mov_b64 exec, 1""")
            for x in self.x:
                if x.startswith("hold"):
                    top = e.lab("L_hold")
                    e(f"""{top}:
                    s_memrealtime s[12:13]
                    s_waitcnt lgkmcnt(0)
                    s_sub_u32 s12, s12, s80
                    s_cmp_lt_u32 s12, {int(x[4:])}
                    s_cbranch_scc1 {top}""")
            self.mk_srd(SRD_A, P_DBG, 256)
            regs = [80, 82, 84, 86, 88, 90, 92, 100]
            for k in range(8):
                e(f"s_sub_u32 s11, s{regs[k]}, {'s80' if k else '0'}\nv_mov_b32 v{t+k}, s11")
            e(f"buffer_store_dwordx4 v[{t}:{t+3}], off, {srd(SRD_A)}, s10\nbuffer_store_dwordx4 v[{t+4}:{t+7}], off, {srd(SRD_A)}, s10 offset:16")
            e(f"{skip}:")
            return
        e("s_waitcnt lgkmcnt(0)\ns_mov_b64 exec, 1")
        e(f"s_lshl_b32 s4, s2, 3\ns_add_u32 s4, s4, s3\ns_lshl_b32 s4, s4, 6\ns_add_u32 s4, s4, {STAMPS}")
        e(f"s_mov_b32 s{SRD_WS+2}, 0x1000000")
        regs = list(range(80, 94)) + [100, 101]
        for i in range(4):
            for k in range(4): e(f"v_mov_b32 v{t+k}, s{regs[4*i+k]}")
            e(f"buffer_store_dwordx4 v[{t}:{t+3}], off, {srd(SRD_WS)}, s4 offset:{16*i}")
            e("s_nop 2")

    def selectors(self, sel, base_lo, base_hi, tmp):
        self.e(f"""v_and_b32 v{tmp}, 1, v0
        v_cmp_eq_u32 vcc, 1, v{tmp}
        v_mov_b32 v{base_lo}, 0x0c0c0100
        v_mov_b32 v{tmp}, 0x01000c0c
        v_cndmask_b32 v{base_lo}, v{base_lo}, v{tmp}, vcc
        v_add_u32 v{base_hi}, 0x0202, v{base_lo}
        v_mov_b32 v{tmp}, 0x03020c0c
        v_cndmask_b32 v{base_hi}, v{base_hi}, v{tmp}, vcc
        v_and_b32 v{tmp}, 2, v0
        v_cmp_eq_u32 vcc, 0, v{tmp}
        v_mov_b32 v{tmp}, 0x0c0c0c0c
        v_cndmask_b32 v{sel}, v{tmp}, v{base_lo}, vcc
        v_cndmask_b32 v{sel+1}, v{base_lo}, v{tmp}, vcc
        v_cndmask_b32 v{sel+2}, v{tmp}, v{base_hi}, vcc
        v_cndmask_b32 v{sel+3}, v{base_hi}, v{tmp}, vcc""")

    def masks(self, lo, hi):
        for j in range(4):
            self.e(f"s_mov_b32 s{MASK0+2*j}, {(lo << (2*j)):#x}\ns_mov_b32 s{MASK0+2*j+1}, {(hi << (2*j)):#x}")

    def rws256(self, nload, x, w, acc, base_lo, base_hi, t0, waits=None):
        e = self.e
        for t in range(nload):
            a = t0 + 2 + 4 * (t & 1)
            e(f"v_perm_b32 v{t0}, v{x+(t>>1)}, v{x+(t>>1)}, v{base_hi if t & 1 else base_lo}")
            for j in range(4): e(f"v_cndmask_b32 v{a+j}, 0, v{t0}, s[{MASK0+2*j}:{MASK0+2*j+1}]")
            if waits: e.wait(waits[t])
            e(f"v_mfma_f32_16x16x32_bf16 {vr(acc,4)}, {vr(a,4)}, {vr(w+4*t,4)}, {vr(acc,4) if t else 0}")

    def rws128(self, nload, x, w, acc0, acc1, sel, pa):
        e = self.e
        for t in range(nload):
            p = pa + 2 + 4 * (t & 1)
            sa, sb = (sel + 2, sel + 3) if t & 1 else (sel, sel + 1)
            e(f"v_perm_b32 v{p}, v{x+(t>>1)}, v{x+(t>>1)}, v{sa}\nv_perm_b32 v{p+1}, v{x+(t>>1)}, v{x+(t>>1)}, v{sb}")
            e(f"v_mfma_f32_16x16x32_bf16 {vr(acc0,4)}, {vr(p,4)}, {vr(w+4*t,4)}, {vr(acc0,4) if t else 0}")
            e(f"v_mfma_f32_16x16x32_bf16 {vr(acc1,4)}, {vr(p-2,4)}, {vr(w+4*t,4)}, {vr(acc1,4) if t else 0}")

    def quad_sum(self, ds):
        for r in range(4):
            for d in ds:
                q = f"quad_perm:[{r},{r},{r},{r}] row_mask:0xf bank_mask:0xf"
                self.e(f"v_mov_b32_dpp v{d}, v{d} {q}" if r == 0 else f"v_add_f32_dpp v{d}, v{d+r}, v{d} {q}")

    def swap_red(self, op, x, t, which):
        for s in which:
            self.e(f"v_mov_b32 v{t}, v{x}\nv_permlane{s}_swap_b32 v{x}, v{t}\n{op} v{x}, v{x}, v{t}")

    def row_red(self, op, x, rots):
        for r in rots:
            self.e(f"{op}_dpp v{x}, v{x}, v{x} row_ror:{r} row_mask:0xf bank_mask:0xf")

    def tree(self, op, base, n, width):
        st = 1
        while st < n:
            for i in range(0, n, 2 * st):
                for r in range(width): self.e(f"{op} v{base+width*i+r}, v{base+width*i+r}, v{base+width*(i+st)+r}")
            st *= 2

    def max3_chain(self, op, dst, regs):
        regs = list(regs)
        if len(regs) == 2:
            self.e(f"v_max_{op} v{dst}, v{regs[0]}, v{regs[1]}"); return
        self.e(f"v_max3_{op} v{dst}, v{regs[0]}, v{regs[1]}, v{regs[2]}")
        regs = regs[3:]
        while len(regs) >= 2:
            self.e(f"v_max3_{op} v{dst}, v{dst}, v{regs[0]}, v{regs[1]}"); regs = regs[2:]
        if regs: self.e(f"v_max_{op} v{dst}, v{dst}, v{regs[0]}")

    def spin_tail(self, top, done, sleep=0):
        if sleep: self.e(f"s_sleep {sleep}")
        if "nodep" in self.x: self.e(f"{done}:"); return
        self.e(f"s_sub_u32 s{S_SPIN}, s{S_SPIN}, 1\ns_cbranch_scc0 {top}\n{done}:")

    def lds_wait(self, addr, t, n=4):
        e = self.e
        top, done = e.lab("L_spin"), e.lab("L_ok")
        e(f"""v_mov_b32 v{t}, {addr}
        s_mov_b32 s{S_SPIN}, {SPIN * 20}
        {top}:
        ds_read_b32 v{t+1}, v{t}
        s_waitcnt lgkmcnt(0)
        v_cmp_ne_u32 vcc, {n}, v{t+1}
        s_cbranch_vccz {done}""")
        self.spin_tail(top, done, 2)

    def lds_inc(self, addr, t):
        self.e(f"""v_mov_b32 v{t}, {addr}
        v_mov_b32 v{t+1}, 1
        s_mov_b64 exec, 1
        ds_add_u32 v{t}, v{t+1}
        s_mov_b64 exec, -1""")

    def poll_loop(self, n, load, use, test, sets, name):
        e = self.e
        top, done = e.lab("L_spin"), e.lab("L_ok")
        for k in range(sets - 1):
            for i in range(n): load(k, i)
        e(f"{top}:")
        for k in range(sets):
            self.pt(name)
            for i in range(n): load((k + sets - 1) % sets, i)
            for i in range(n):
                e(f"s_waitcnt vmcnt({(sets - 1) * n + n - 1 - i})"); use(k, i)
            test()
            e(f"s_cbranch_vccz {done}")
        self.spin_tail(top, done)

    def only_wave(self, w):
        skip = self.e.lab("L_skip")
        self.e(f"s_cmp_lg_u32 s3, {w}\ns_cbranch_scc1 {skip}")
        return skip

    def epoch_load(self):
        if self.o["wsb"]: self.e(f"s_add_u32 s{P_WS}, s{P_WS}, {self.o['wsb'] << 20:#x}\ns_addc_u32 s{P_WS+1}, s{P_WS+1}, 0")
        self.e(f"s_load_dword s{TAG}, s[{P_WS}:{P_WS+1}], {EPOCH:#x}")

    def epoch_tag(self):
        self.e(f"s_waitcnt lgkmcnt(0)\ns_add_u32 s{TAG}, s{TAG}, 1\ns_xor_b32 s{TAG+1}, s{TAG}, 0x5bd1e995")

    def post_b(self, sg, sslot, t):
        self.e(f"""v_mov_b32 v{t}, s{TAG}
        v_mov_b32 v{t+1}, s{TAG+1}
        s_lshl_b32 s10, s{sg}, 7
        s_lshl_b32 s11, s{sslot}, 3
        s_add_u32 s10, s10, s11
        s_add_u32 s10, s10, {FB}
        s_mov_b64 exec, 1
        buffer_store_dwordx2 {vr(t,2)}, off, {srd(SRD_WS)}, s10 sc1 ; c:FLAG
        s_mov_b64 exec, -1""")

    def post_a(self, sid, off, t):
        self.e(f"""v_lshlrev_b32 v{t+2}, 11, v0
        v_mov_b32 v{t}, s{TAG}
        v_mov_b32 v{t+1}, s{TAG+1}
        s_lshl_b32 s10, s{sid}, 3
        s_add_u32 s10, s10, {FA+off}
        s_mov_b64 exec, {(1 << self.o["rep"]) - 1}
        buffer_store_dwordx2 {vr(t,2)}, v{t+2}, {srd(SRD_WS)}, s10 offen sc1 ; c:FLAG
        s_mov_b64 exec, -1""")

    def poll_a(self, off, t):
        e = self.e
        top, done = e.lab("L_spin"), e.lab("L_ok")
        e(f"""s_and_b32 s10, s4, 7
        s_lshl_b32 s10, s10, 11
        s_add_u32 s10, s10, {FA+off}
        v_lshlrev_b32 v{t+2}, 3, v0
        {top}:
        buffer_load_dwordx2 {vr(t,2)}, v{t+2}, {srd(SRD_WS)}, s10 offen sc1
        s_waitcnt vmcnt(0)
        v_cmp_ne_u64 vcc, s[{TAG}:{TAG+1}], {vr(t,2)}
        s_cbranch_vccz {done}""")
        self.spin_tail(top, done, self.o["sl_ap"])

    def tag_check(self, g, n, t):
        e = self.e
        for i in range(n):
            e(f"v_xor_b32 v{t+2}, s{TAG+1}, v{g+2*i}\nv_xor_b32 v{g+2*i+1}, s{TAG}, v{g+2*i+1}")
            e(f"v_and_or_b32 v{g+2*i+1}, v{t+2}, v{t+1}, v{g+2*i+1}")
        e(f"v_or_b32 v{t}, v{g+1}, v{g+3}")
        for i in range(2, n, 2): e(f"v_or3_b32 v{t}, v{t}, v{g+2*i+1}, v{g+2*i+3}")

    def bside(self, kind):
        e = self.e; e.vm = 0; o = self.o
        tp = 4 * (o["pa"] + o["pb"])
        pa, pb = (o["pa"], o["pb"]) if kind == "P" else (o["qa"], (128 - 2 * tp) // 4 - o["qa"])
        n = max(pa, pb)
        VK, VL, TMP, SEL, BLO, BHI, QF, AC0, AC1, LS, MX = 1, 2, 3, 4, 8, 9, 10, 14, 18, 22, 23
        T = 24; D0 = 32; KR = 36; VR = 132; PA = 228; U = 246
        L_T1, L_Q, L_MAX, L_L, L_RED, L_T2, L_QA, L_W = 0, 8192, 9216, 9344, 16384, 32768, 40960, 32768
        S_KV, S_VV, S_G, S_B, S_SP = 5, 6, 7, 8, 9
        L_F = 9472
        e(f"L_{kind}:")
        self.role = kind
        if "no" + kind in self.x: e("s_endpgm")
        self.pt("start")
        e(f"""v_and_b32 v{T}, 3, v0
        v_lshrrev_b32 v{TMP}, 4, v0
        v_lshlrev_b32 v{T+1}, 6, v{TMP}
        v_lshl_add_u32 v{T+1}, v{T}, 4, v{T+1}
        v_bfe_u32 v{T}, v0, 2, 2
        v_lshl_add_u32 v{VK}, v{T}, 8, v{T+1}
        v_lshlrev_b32 v{VL}, 4, v0""")
        if kind == "P":
            e(f"""v_lshl_add_u32 v{T+6}, v{T}, 15, v{T+1}
            v_and_b32 v{T+4}, 15, v0
            v_lshlrev_b32 v{T+4}, 4, v{T+4}
            v_lshl_add_u32 v{T+4}, v{TMP}, 15, v{T+4}
            v_bfe_u32 v{T+5}, v0, 3, 1
            v_lshlrev_b32 v{T+5}, 10, v{T+5}
            v_lshl_add_u32 v{T+5}, v{TMP}, 3, v{T+5}
            s_lshr_b32 s10, s2, 3
            s_and_b32 s{S_SP}, s2, 7
            s_mul_i32 s11, s{S_SP}, {tp}
            s_lshr_b32 s13, s2, 2
            s_and_b32 s4, s2, 3""")
        else:
            e(f"""s_sub_u32 s4, s2, 192
            s_lshr_b32 s10, s4, 2
            s_and_b32 s4, s4, 3
            s_add_u32 s{S_SP}, s4, 8
            s_mul_i32 s11, s4, {4*(pa+pb)}
            s_add_u32 s11, s11, {8*tp}
            v_and_b32 v{T+4}, 15, v0
            v_lshlrev_b32 v{T+4}, 4, v{T+4}
            v_lshl_add_u32 v{T+4}, v{TMP}, 16, v{T+4}
            v_bfe_u32 v{T+5}, v0, 3, 1
            v_lshlrev_b32 v{T+5}, 10, v{T+5}
            v_lshl_add_u32 v{T+5}, v{TMP}, 4, v{T+5}
            s_sub_u32 s13, s2, 192
            s_and_b32 s4, s13, 1
            s_lshr_b32 s13, s13, 1
            s_xor_b32 s13, s13, {o["t1x"]}""")
        qd = o["qd"]; uneven = kind == "Q" and qd > 0
        il = o["il"]
        il2 = (il >> 1) & (1 if kind == "P" else 2) and pa == pb
        if not il:
            e(f"""s_mul_i32 s12, s3, {pb}
            s_min_u32 s{S_G}, s3, 4
            s_mul_i32 s{S_G}, s{S_G}, {pa-pb}
            s_add_u32 s12, s12, s{S_G}
            s_add_u32 s11, s11, s12
            s_lshl_b32 s11, s11, 12""")
        else:
            if il2:
                e(f"s_lshl_b32 s11, s{S_SP}, 13")
                if kind == "Q": e(f"s_add_u32 s11, s11, {8 * tp * 4096 - 8 * 8192}")
            else:
                e("s_lshl_b32 s11, s11, 12")
                if uneven:
                    e(f"s_sub_u32 s12, s{S_SP}, 8\ns_mul_i32 s12, s12, {8192 * qd}\ns_add_u32 s11, s11, s12")
                    if o["light"] != 3: e(f"s_cmp_gt_u32 s{S_SP}, {8 + o['light']}\ns_cselect_b32 s12, {4 * 8192 * qd}, 0\ns_sub_u32 s11, s11, s12")
            e("s_lshl_b32 s12, s3, 10\ns_add_u32 s11, s11, s12")
        e(f"""s_and_b32 s{S_G}, s10, 7
        s_lshr_b32 s{S_B}, s10, 3
        s_lshl_b32 s10, s10, 21
        s_add_u32 s{S_KV}, s10, s11
        s_mov_b32 s{S_VV}, s{S_KV}""")
        sh = 7 if kind == "P" else 8
        e(f"""s_lshl_b32 s10, s4, {sh}
        s_lshl_b32 s11, s3, {sh-3}
        s_add_u32 s10, s10, s11
        s_lshl_b32 s11, s10, 1
        s_lshl_b32 s10, s10, 13
        s_lshl_b32 s12, s13, 8
        s_add_u32 s10, s10, s12""")
        e("s_waitcnt lgkmcnt(0)")
        self.epoch_load()
        tags = []; cur = [4 * min(pa, pb) - (3 * qd if uneven else 0)]
        def issue(upto):
            nl = cur[0]
            while len(tags) < min(upto, 2 * nl):
                x = len(tags); k = x % nl; j = k & 3
                r, v, sd, so = (KR, VK, SRD_A, S_KV) if x < nl else (VR, VL, SRD_B, S_VV)
                tags.append(e.mem(f"buffer_load_dwordx4 {vr(r+4*k,4)}, v{v}, {srd(sd)}, s{so} offen offset:{0 if il else 1024*j} nt"))
                if not il:
                    if j == 3: e(f"s_add_u32 s{so}, s{so}, 4096")
                else:
                    nm = 4 * min(pa, pb)
                    step = 8192 if k < nm - 1 else 4096
                    if k == nm - 1: step = 8192 - (4096 if pb > pa else 0)
                    if il2: step = 65536 if kind == "P" else 32768
                    if uneven: step = 8192
                    if k < nl - 1: e(f"s_add_u32 s{so}, s{so}, {step}")
        seen = set()
        def land(k):
            e.wait(tags[k])
            if k not in seen: seen.add(k); self.pt(f"l{k}")
        def slide(k0, k1, w):
            for k in range(k0, k1):
                land(k); issue(k + 1 + w)
        self.mk_srd(SRD_WS, P_WS, WS_USED)
        if kind == "P":
            self.mk_srd(SRD_C, P_AX, 2048); self.mk_srd(SRD_D, P_AWQ, 4 << 20)
            e(f"""v_lshlrev_b32 v{LS}, 15, v{TMP}
            v_and_b32 v{U+5}, 15, v0
            v_lshl_add_u32 v{LS}, v{U+5}, 4, v{LS}""")
            skip = self.only_wave(7)
            e(f"""s_lshl_b32 s12, s2, 8
            s_add_u32 s12, s12, {QAP}""")
            for r in range(4): e(f"v_mov_b32 v{U+r}, -1")
            e(f"""s_mov_b32 exec_hi, 0
            buffer_store_dwordx4 {vr(U,4)}, v{LS}, {srd(SRD_WS)}, s12 offen sc1 ; c:QCLR
            s_mov_b64 exec, -1
            {skip}:""")
            def four(slot, voff, s):
                e("s_mov_b32 s12, s10")
                r = []
                for t in range(4):
                    r.append(e.mem(f"buffer_load_dwordx4 {vr(VR+4*(slot+t),4)}, v{voff}, {srd(s)}, s12 offen nt"))
                    if t < 3: e("s_add_u32 s12, s12, 8192")
                return r
            xa = e.mem(f"buffer_load_dwordx2 {vr(T,2)}, v{T+5}, {srd(SRD_C)}, s11 offen")
            w2 = four(0, T + 4, SRD_D)
            self.mk_srd(SRD_E, P_WUK, 4 << 20)
            if o["t2w"] >= 0: e.wait(w2[o["t2w"]])
            w3 = four(4, T + 6, SRD_E)
        else:
            self.mk_srd(SRD_C, P_BX, 2048); self.mk_srd(SRD_D, P_BWQ, 4 << 20)
            xb = e.mem(f"buffer_load_dwordx4 {vr(T,4)}, v{T+5}, {srd(SRD_C)}, s11 offen")
            w1 = []
            for t in range(8):
                if t >= o["wt1"]: e.wait(w1[t - o["wt1"]])
                w1.append(e.mem(f"buffer_load_dwordx4 {vr(VR+4*t,4)}, v{T+4}, {srd(SRD_D)}, s10 offen nt"))
                if t < 7: e("s_add_u32 s10, s10, 8192")
            self.mk_srd(SRD_E, P_OUT, 4096)
            e(f"""v_lshrrev_b32 v{T+6}, 3, v0
            v_lshlrev_b32 v{T+6}, 17, v{T+6}
            v_and_b32 v{U}, 7, v0
            v_lshl_add_u32 v{T+6}, v{U}, 4, v{T+6}
            v_and_b32 v{U}, 15, v0
            v_lshlrev_b32 v{U}, 4, v{U}
            v_lshl_add_u32 v{U}, v{TMP}, 14, v{U}
            s_sub_u32 s68, s2, 192""")
            if o["mapt"]:
                e("""s_and_b32 s10, s68, 7
                s_lshl_b32 s10, s10, 1
                s_bfe_u32 s11, s68, 0x10003
                s_add_u32 s10, s10, s11
                s_and_b32 s68, s68, 48
                s_add_u32 s68, s68, s10""")
            e(f"""
            s_cmp_lt_u32 s3, 4
            s_cselect_b32 s{SRD_C}, s{P_WUV}, s{P_AWO}
            s_cselect_b32 s{SRD_C+1}, s{P_WUV+1}, s{P_AWO+1}
            s_mov_b32 s{SRD_C+2}, 0x400000
            s_movk_i32 s69, 1024
            s_cselect_b32 s69, 8192, s69
            s_cselect_b64 vcc, -1, 0
            v_cndmask_b32 v{T+6}, v{U}, v{T+6}, vcc
            s_lshl_b32 s10, s3, 20
            s_lshl_b32 s11, s68, 7
            s_add_u32 s10, s10, s11
            s_lshl_b32 s11, s68, 16
            s_and_b32 s12, s3, 3
            s_lshl_b32 s12, s12, 8
            s_add_u32 s11, s11, s12
            s_cmp_lt_u32 s3, 4
            s_cselect_b32 s70, s10, s11
            s_lshl_b32 s71, s3, 14
            s_add_u32 s71, s71, {L_W}""")
            wd = []
            def wdma(upto, w):
                while len(wd) < upto:
                    e(f"s_waitcnt vmcnt({w-1})\ns_mov_b32 m0, s71")
                    wd.append(e.mem(f"buffer_load_dwordx4 v{T+6}, {srd(SRD_C)}, s70 offen nt lds"))
                    e("s_add_u32 s70, s70, s69\ns_add_u32 s71, s71, 1024")
        self.mk_srd(SRD_A, P_BK, 32 << 20); self.mk_srd(SRD_B, P_BV, 32 << 20)
        e.L.append("; split")
        if kind == "P": issue(o["pre_p"])
        e(f"s_mov_b32 s{S_SC}, {f2u(SCALE):#x}\ns_mov_b32 s{S_SPIN}, {SPIN}")
        self.selectors(SEL, BLO, BHI, TMP)
        e(f"v_mov_b32 v{AC0}, 0\nv_mov_b32 v{AC0+1}, 0\nds_write_b64 v{AC0}, {vr(AC0,2)} offset:{L_F}")
        self.epoch_tag()
        if kind == "P":
            self.masks(0x03030303, 0x03030303)
            skip = self.only_wave(7)
            e(f"s_waitcnt vmcnt({e.vm})")
            self.post_a(2, 0, U)
            e(f"{skip}:")
            e(f"s_lshl_b32 s10, s3, 10\nv_add_u32 v{T+7}, s10, v{VL}")
            e.wait(xa)
            self.rws256(4, T, VR, AC0, BLO, BHI, PA, w2)
            self.pt("t2")
            e(f"ds_write_b128 v{T+7}, {vr(AC0,4)} offset:{L_T2}\ns_waitcnt lgkmcnt(0)\ns_barrier")
            XT = VR + 48
            skip = self.only_wave(0)
            for i in range(8): e(f"ds_read_b128 {vr(XT+4*i,4)}, v{VL} offset:{L_T2+1024*i}")
            e(f"""v_mov_b32 v{U+1}, s{TAG+1}
            s_lshl_b32 s10, s2, 11
            s_add_u32 s10, s10, {XQ}
            s_mov_b32 s11, 0xffffff00
            s_waitcnt lgkmcnt(0)""")
            self.tree("v_add_f32", XT, 8, 4)
            for r in range(4): e(f"v_bfi_b32 v{XT+8+2*r}, s11, v{XT+r}, v{U+1}\nv_mov_b32 v{XT+9+2*r}, s{TAG}")
            e(f"buffer_store_dwordx4 {vr(XT+8,4)}, v{VL}, {srd(SRD_WS)}, s10 offen sc1 ; c:XQ")
            e(f"buffer_store_dwordx4 {vr(XT+12,4)}, v{VL}, {srd(SRD_WS)}, s10 offen offset:1024 sc1 ; c:XQ")
            e(f"{skip}:")
            self.pt("xq")
            for i in range(o["pe"]):
                if i >= o["we"]: e(f"s_waitcnt vmcnt({o['we']-1})")
                issue(len(tags) + 1)
            skip, other = e.lab("L_skip"), e.lab("L_other")
            top, done = e.lab("L_spin"), e.lab("L_ok")
            e(f"""s_lshr_b32 s10, s3, 1
            s_cmp_lg_u32 s10, 2
            s_cbranch_scc1 {other}
            s_lshl_b32 s10, s13, 13
            s_and_b32 s12, s3, 1
            s_lshl_b32 s11, s12, 10
            s_add_u32 s10, s10, s11
            s_add_u32 s10, s10, {XQ}
            s_add_u32 s11, s10, 4096
            v_mov_b32 v{U+1}, 0xff
            v_lshrrev_b32 v{U+3}, 5, v0
            v_lshlrev_b32 v{U+3}, 8, v{U+3}
            v_and_b32 v{U+4}, 15, v0
            v_lshl_add_u32 v{U+3}, v{U+4}, 4, v{U+3}
            v_bfe_u32 v{U+4}, v0, 4, 1
            v_lshl_add_u32 v{U+3}, v{U+4}, 3, v{U+3}
            s_lshl_b32 s12, s12, 2
            v_add_u32 v{U+3}, s12, v{U+3}""")
            if o["sl_xq0"]: e(f"s_sleep {o['sl_xq0']}")
            e(f"{top}:")
            for i in range(4): e(f"buffer_load_dwordx4 {vr(VR+4*i,4)}, v{VL}, {srd(SRD_WS)}, s{10+(i>>1)} offen offset:{2048*(i&1)} sc1 ; c:LXQ")
            e("s_waitcnt vmcnt(0)")
            self.tag_check(VR, 8, U)
            e(f"v_cmp_ne_u32 vcc, 0, v{U}\ns_cbranch_vccz {done}")
            self.spin_tail(top, done, o["sl_xq"])
            for i in range(8): e(f"v_and_b32 v{VR+2*i}, 0xffffff00, v{VR+2*i}")
            e(f"""v_add_f32 v{VR}, v{VR}, v{VR+4}
            v_add_f32 v{VR+2}, v{VR+2}, v{VR+6}
            v_add_f32 v{VR+8}, v{VR+8}, v{VR+12}
            v_add_f32 v{VR+10}, v{VR+10}, v{VR+14}
            v_add_f32 v{VR}, v{VR}, v{VR+8}
            v_add_f32 v{VR+2}, v{VR+2}, v{VR+10}
            v_cvt_pk_bf16_f32 v{VR}, v{VR}, v{VR+2}
            ds_write_b32 v{U+3}, v{VR} offset:{L_QA}""")
            ne, we = o["ne"], o["we"]
            vm0, L0 = e.vm, len(e.L)
            issue(len(tags) + ne)
            body = e.L[L0:]
            e(f"s_branch {skip}\n{other}:")
            cnt = 0
            for l in body:
                if l.startswith("buffer_load"):
                    if cnt >= we: e(f"s_waitcnt vmcnt({we-1})")
                    cnt += 1
                e(l)
            e(f"""{skip}:
            v_bfe_u32 v{U}, v0, 2, 1
            v_lshlrev_b32 v{U}, 8, v{U}
            v_and_b32 v{U+2}, 0xf0, v{VK}
            v_add_u32 v{U+1}, v{U}, v{U+2}
            v_lshrrev_b32 v{U+2}, 4, v0
            v_lshl_add_u32 v{U}, v{U+2}, 3, v{U}
            s_lshl_b32 s11, s3, 5
            v_add_u32 v{U}, s11, v{U}
            s_waitcnt lgkmcnt(0)
            s_barrier
            ds_read_b128 {vr(QF,4)}, v{U+1} offset:{L_QA}
            s_waitcnt lgkmcnt(0)""")
            self.pt("qa")
            e.wait(w3[3])
            for t in range(4): e(f"v_mfma_f32_16x16x32_bf16 {vr(VR+4*t,4)}, {vr(VR+16+4*t,4)}, {vr(QF,4)}, 0")
            self.quad_sum([VR + 4 * t for t in range(4)])
            e(f"""v_cvt_pk_bf16_f32 v{AC0}, v{VR}, v{VR+4}
            v_cvt_pk_bf16_f32 v{AC0+1}, v{VR+8}, v{VR+12}
            s_mov_b32 exec_lo, 0x00110011
            s_mov_b32 exec_hi, 0x00110011
            ds_write_b64 v{U}, {vr(AC0,2)} offset:{L_QA+512}
            s_mov_b64 exec, -1
            s_waitcnt lgkmcnt(0)
            s_barrier""")
            skip = self.only_wave(7)
            e(f"""ds_read_b128 {vr(AC0,4)}, v{VL} offset:{L_QA+512}
            s_lshl_b32 s10, s2, 8
            s_add_u32 s10, s10, {QAP}
            s_waitcnt lgkmcnt(0)""")
            for r in range(4): e(f"v_min_u32 v{AC0+r}, -2, v{AC0+r}")
            e(f"""s_mov_b32 exec_hi, 0
            buffer_store_dwordx4 {vr(AC0,4)}, v{LS}, {srd(SRD_WS)}, s10 offen sc1 ; c:QAP
            s_mov_b64 exec, -1""")
            if o["stw"] in (1, 2):
                self.pt("st7"); e("s_waitcnt vmcnt(0)"); self.pt("ack7")
            e(f"{skip}:")
            if o["stw"] > 1: e("s_barrier")
            self.pt("st")
            issue(o["w1"])
        else:
            self.masks(0x03030303, 0x03030303)
            e(f"s_lshl_b32 s10, s3, 10\nv_add_u32 v{T+7}, s10, v{VL}")
            e.wait(xb)
            self.rws256(8, T, VR, AC1, BLO, BHI, PA, w1)
            e(f"ds_write_b128 v{T+7}, {vr(AC1,4)} offset:{L_T1}")
            wdma(o["wq1"], 16)
            e("s_waitcnt lgkmcnt(0)\ns_barrier")
            self.pt("t1")
            skip = self.only_wave(0)
            for i in range(8): e(f"ds_read_b128 {vr(VR+4*i,4)}, v{VL} offset:{L_T1+1024*i}")
            e(f"""v_lshrrev_b32 v{U}, 5, v0
            v_lshlrev_b32 v{U}, 14, v{U}
            v_and_b32 v{U+1}, 15, v0
            v_lshl_add_u32 v{U}, v{U+1}, 5, v{U}
            v_bfe_u32 v{U+1}, v0, 4, 1
            v_lshl_add_u32 v{U}, v{U+1}, 4, v{U}
            s_lshl_b32 s10, s4, 15
            s_lshl_b32 s11, s13, 9
            s_add_u32 s10, s10, s11
            s_add_u32 s10, s10, {QBP}
            s_sub_u32 s12, s2, 192
            s_lshr_b32 s13, s12, 3
            s_and_b32 s12, s12, 7
            s_waitcnt lgkmcnt(0)""")
            self.tree("v_add_f32", VR, 8, 4)
            e(f"buffer_store_dwordx4 {vr(VR,4)}, v{U}, {srd(SRD_WS)}, s10 offen sc1\ns_waitcnt vmcnt(0)")
            self.post_b(13, 12, U)
            e(f"{skip}:")
        variants = [4 * pa] if pa == pb else [4 * pa, 4 * pb]
        if uneven: variants = [4 * pa + qd, 4 * pa - 3 * qd]
        if kind == "Q":
            wdma(16, o["wq1"])
            self.pt("w")
        if uneven: e(f"s_cmp_eq_u32 s{S_SP}, {8 + o['light']}\ns_cbranch_scc1 L_{kind}_B")
        elif len(variants) > 1: e(f"s_cmp_ge_u32 s3, 4\ns_cbranch_scc1 L_{kind}_B")
        tags0, vm0 = list(tags), e.vm
        for vi, nv in enumerate(variants):
            if vi: e(f"L_{kind}_B:")
            nl = nv; n = (nl + 3) // 4; cur[0] = nv; tags[:] = tags0; e.vm = vm0; seen.clear()
            kf, wearly = (o["kf_p"], o["w1"]) if kind == "P" else (o["kf_q"], o["wq0"])
            if kind == "Q":
                for k in range(wearly):
                    e(f"s_waitcnt vmcnt({wearly-1})"); issue(k + 1)
                slide(0, kf, wearly)
            else:
                slide(0, kf, wearly)
            e(f"""s_cmp_eq_u32 s3, 0
            s_cselect_b32 s13, 0, 0x40000000
            s_lshl_b32 s12, s{S_G}, 7
            s_add_u32 s12, s12, {FB}
            s_add_u32 s12, s12, s13
            v_lshlrev_b32 v{T+2}, 3, v0
            s_mov_b64 exec, 0xffff""")
            k1 = len(tags)
            fl = e.mem(f"buffer_load_dwordx2 {vr(T,2)}, v{T+2}, {srd(SRD_WS)}, s12 offen sc1 ; c:LFB")
            e("s_mov_b64 exec, -1")
            issue(kf + o["wk"])
            slide(kf, k1, o["wk"])
            e(f"""s_lshl_b32 s10, s{S_B}, 14
            s_lshl_b32 s11, s{S_G}, 11
            s_add_u32 s10, s10, s11
            s_add_u32 s10, s10, {QBP}
            s_add_u32 s10, s10, s13
            s_add_u32 s11, s10, 32768
            v_lshlrev_b32 v{TMP}, 5, v0""")
            e.wait(fl)
            top, done = e.lab("L_spin"), e.lab("L_ok")
            e(f"""s_cmp_lg_u32 s3, 0
            s_cbranch_scc1 {done}
            s_mov_b64 exec, 0xffff
            {top}:
            v_cmp_ne_u64 vcc, s[{TAG}:{TAG+1}], {vr(T,2)}
            s_cbranch_vccz {done}
            buffer_load_dwordx2 {vr(T,2)}, v{T+2}, {srd(SRD_WS)}, s12 offen sc1 ; c:LFB
            s_waitcnt vmcnt(0)""")
            self.spin_tail(top, done, o["sleep"])
            e("s_mov_b64 exec, -1")
            self.pt("qf")
            k2 = len(tags)
            QG = PA
            for k in range(4):
                qg = e.mem(f"buffer_load_dwordx4 {vr(QG+4*k,4)}, v{TMP}, {srd(SRD_WS)}, s{10+(k>>1)} offen offset:{16*(k&1)} sc1 ; c:LQB")
            k3 = min(k2, nl)
            slide(k1, k3, o["wk"])
            skip = self.only_wave(0)
            e.wait(qg)
            for r in range(8): e(f"v_add_f32 v{QG+r}, v{QG+r}, v{QG+8+r}")
            for r in range(4): e(f"v_cvt_pk_bf16_f32 v{QG+r}, v{QG+2*r}, v{QG+2*r+1}")
            e(f"""v_mov_b32 v{T}, 0
            v_mov_b32 v{T+1}, 1
            ds_write_b128 v{VL}, {vr(QG,4)} offset:{L_Q}
            s_waitcnt lgkmcnt(0)
            ds_write_b32 v{T}, v{T+1} offset:{L_F}
            {skip}:""")
            kq = max(k3, min(o["kq"], nl))
            slide(k3, kq, o["wk"])
            top, done = e.lab("L_spin"), e.lab("L_ok")
            e(f"""v_mov_b32 v{T}, 0
            s_mov_b32 s{S_SPIN}, {SPIN * 20}
            {top}:
            ds_read_b32 v{T+1}, v{T} offset:{L_F}
            ds_read_b128 {vr(QF,4)}, v{VK} offset:{L_Q}
            s_waitcnt lgkmcnt(0)
            v_cmp_eq_u32 vcc, 0, v{T+1}
            s_cbranch_vccz {done}""")
            self.spin_tail(top, done, 1)
            e(f"v_bfe_u32 v{T+5}, v0, 2, 2\nv_lshlrev_b32 v{T+5}, 5, v{T+5}\ns_lshl_b32 s10, s3, 2\nv_add_u32 v{T+6}, s10, v{T+5}")
            for z in range(0, 18, 4): e(f"v_mov_b32 v{PA+z}, 0\nv_mov_b32 v{PA+z+1}, 0")
            self.pt("q")
            SK = lambda k: D0 + 4 * k
            ahead = kq
            for i in range(n + 1):
                if i < n:
                    for j in range(min(4, nl - 4 * i)):
                        k = 4 * i + j
                        if k >= kq:
                            land(k); issue(k + 1 + (o["wk"] if k < nl - 4 else o["wt"]))
                        elif j == 0 and o["cu"]:
                            issue(len(tags) + o["cu"])
                        e(f"v_mfma_f32_16x16x32_bf16 {vr(SK(k),4)}, {vr(KR+4*k,4)}, {vr(QF,4)}, 0")
                if i > 0:
                    ks = [SK(k) for k in range(4 * (i - 1), min(4 * i, nl))]
                    self.quad_sum(ks)
                    self.max3_chain("f32", MX, ks if i == 1 else [MX] + ks)
            issue(nl + o["wt"])
            self.pt("k")
            self.swap_red("v_max_f32", MX, TMP, (16, 32))
            e(f"v_mul_f32 v{MX}, s{S_SC}, v{MX}\nds_write_b32 v{T+6}, v{MX} offset:{L_MAX}")
            for k in range(nl): e(f"v_fma_f32 v{SK(k)}, v{SK(k)}, s{S_SC}, -v{MX}")
            for k in range(nl): e(f"v_exp_f32 v{SK(k)}, v{SK(k)}")
            e(f"v_add_f32 v{LS}, v{SK(0)}, v{SK(1)}")
            for k in range(2, nl): e(f"v_add_f32 v{LS}, v{LS}, v{SK(k)}")
            for k in range(0, nl, 2): e(f"v_cvt_pk_bf16_f32 v{SK(k)}, v{SK(k)}, v{SK(min(k+1, nl-1))}")
            self.swap_red("v_add_f32", LS, TMP, (16, 32))
            skip = e.lab("L_skip")
            e(f"""ds_write_b32 v{T+6}, v{LS} offset:{L_L}
            v_mov_b32 v{T}, 0
            v_mov_b32 v{T+1}, 1
            s_mov_b64 exec, 1
            ds_add_rtn_u32 v{T+2}, v{T}, v{T+1} offset:{L_F+4}
            s_waitcnt lgkmcnt(0)
            v_cmp_eq_u32 vcc, 7, v{T+2}
            s_mov_b64 exec, -1
            s_cbranch_vccz {skip}
            v_and_b32 v{T}, 3, v0
            v_lshlrev_b32 v{T}, 5, v{T}
            ds_read_b128 {vr(U,4)}, v{T} offset:{L_MAX}
            ds_read_b128 {vr(U+4,4)}, v{T} offset:{L_MAX+16}
            ds_read_b128 {vr(QF,4)}, v{T} offset:{L_L}
            ds_read_b128 {vr(AC0,4)}, v{T} offset:{L_L+16}
            v_mov_b32 v{T+3}, s{TAG+1}
            s_lshl_b32 s10, s{S_B}, 3
            s_add_u32 s10, s10, s{S_G}
            s_mul_i32 s10, s10, 12
            s_add_u32 s10, s10, s{S_SP}
            s_lshl_b32 s10, s10, 6
            s_add_u32 s10, s10, {BS}
            s_mov_b32 s11, 0xffffff00
            s_waitcnt lgkmcnt(0)""")
            self.max3_chain("f32", T + 2, range(U, U + 8))
            for r in range(8): e(f"v_sub_f32 v{U+r}, v{U+r}, v{T+2}")
            for r in range(8): e(f"v_exp_f32 v{U+r}, v{U+r}")
            e(f"v_mul_f32 v{T+1}, v{U}, v{QF}")
            for r in range(1, 8): e(f"v_fmac_f32 v{T+1}, v{U+r}, v{QF+r}")
            e(f"""v_bfi_b32 v{U+2}, s11, v{T+1}, v{T+3}
            v_bfi_b32 v{U}, s11, v{T+2}, v{T+3}
            v_mov_b32 v{U+1}, s{TAG}
            v_mov_b32 v{U+3}, s{TAG}
            s_mov_b64 exec, 15
            buffer_store_dwordx4 {vr(U,4)}, v{VL}, {srd(SRD_WS)}, s10 offen sc1 ; c:BST
            s_mov_b64 exec, -1
            {skip}:""")
            self.pt("p")
            for i in range(n):
                for j in range(min(4, nl - 4 * i)):
                    k = 4 * i + j; pk = SK(k & ~1); p = PA + 2 + 4 * j
                    sa, sb = (SEL + 2, SEL + 3) if k & 1 else (SEL, SEL + 1)
                    e(f"v_perm_b32 v{p}, v{pk}, v{pk}, v{sa}\nv_perm_b32 v{p+1}, v{pk}, v{pk}, v{sb}")
                if i == n - 1:
                    top, done = e.lab("L_spin"), e.lab("L_ok")
                    e(f"""v_mov_b32 v{T}, 0
                    v_lshrrev_b32 v{T+1}, 4, v0
                    v_lshlrev_b32 v{T+1}, 5, v{T+1}
                    s_lshl_b32 s10, s3, 2
                    v_add_u32 v{T+2}, s10, v{T+1}
                    {top}:
                    ds_read_b32 v{T+3}, v{T} offset:{L_F+4}
                    ds_read_b128 {vr(U,4)}, v{T+1} offset:{L_MAX}
                    ds_read_b128 {vr(U+4,4)}, v{T+1} offset:{L_MAX+16}
                    ds_read_b32 v{LS}, v{T+2} offset:{L_MAX}
                    s_waitcnt lgkmcnt(0)
                    v_cmp_ne_u32 vcc, 8, v{T+3}
                    s_cbranch_vccz {done}""")
                    self.spin_tail(top, done, 1)
                    self.max3_chain("f32", MX, range(U, U + 8))
                    e(f"v_sub_f32 v{LS}, v{LS}, v{MX}\nv_exp_f32 v{LS}, v{LS}")
                    e(f"""s_lshl_b32 s10, s3, 11
                    v_lshl_add_u32 v{T}, v0, 5, s10
                    s_lshl_b32 s10, s3, 8
                    v_and_b32 v{T+2}, 31, v0
                    v_lshl_add_u32 v{T+1}, v{T+2}, 3, s10
                    v_lshlrev_b32 v{T+2}, 2, v0
                    s_lshl_b32 s10, s{S_G}, 2
                    s_lshr_b32 s11, s3, 1
                    s_add_u32 s10, s10, s11
                    s_lshl_b32 s10, s10, 15
                    s_mul_i32 s11, s{S_B}, 24
                    s_add_u32 s11, s11, s{S_SP}
                    s_add_u32 s11, s11, s{S_SP}
                    s_and_b32 s12, s3, 1
                    s_add_u32 s11, s11, s12
                    s_lshl_b32 s11, s11, 7
                    s_add_u32 s10, s10, s11
                    s_add_u32 s10, s10, {MB}""")
                for j in range(min(4, nl - 4 * i)):
                    k = 4 * i + j; p = PA + 2 + 4 * j
                    land(nl + k)
                    issue(nl + k + 1 + o["wv"])
                    e(f"v_mfma_f32_16x16x32_bf16 {vr(AC0,4)}, {vr(p,4)}, {vr(VR+4*k,4)}, {vr(AC0,4) if k else 0}")
                    e(f"v_mfma_f32_16x16x32_bf16 {vr(AC1,4)}, {vr(p-2,4)}, {vr(VR+4*k,4)}, {vr(AC1,4) if k else 0}")
            self.pt("v")
            for r in range(8): e(f"v_mul_f32 v{AC0+r}, v{AC0+r}, v{LS}")
            e(f"""ds_write_b128 v{T}, {vr(AC0,4)} offset:{L_RED}
            ds_write_b128 v{T}, {vr(AC1,4)} offset:{L_RED+16}
            s_waitcnt lgkmcnt(0)
            s_barrier""")
            for i in range(8): e(f"ds_read_b64 {vr(KR+2*i,2)}, v{T+1} offset:{L_RED+2048*i}")
            for i in range(0, 8, 2):
                e(f"s_waitcnt lgkmcnt({6-i})\nv_add_f32 v{KR+2*i}, v{KR+2*i}, v{KR+2*i+2}\nv_add_f32 v{KR+2*i+1}, v{KR+2*i+1}, v{KR+2*i+3}")
                if i == 2: e(f"v_add_f32 v{KR}, v{KR}, v{KR+4}\nv_add_f32 v{KR+1}, v{KR+1}, v{KR+5}")
                if i == 4: e(f"v_add_f32 v{KR}, v{KR}, v{KR+8}\nv_add_f32 v{KR+1}, v{KR+1}, v{KR+9}")
            e(f"""v_add_f32 v{KR}, v{KR}, v{KR+12}
            v_add_f32 v{KR+1}, v{KR+1}, v{KR+13}
            v_cvt_pk_bf16_f32 v{KR}, v{KR}, v{KR+1}
            v_min_u32 v{KR}, -2, v{KR}
            s_mov_b32 exec_hi, 0
            buffer_store_dword v{KR}, v{T+2}, {srd(SRD_WS)}, s10 offen sc1 ; c:MB1""")
            self.pt("end")
            if kind == "Q": e("s_mov_b64 exec, -1\ns_mov_b32 s4, s68\ns_cmp_lt_u32 s3, 4\ns_cbranch_scc1 L_ATAIL")
            self.stamp_out(100)
            e("s_endpgm")

    X_MAX, X_P, X_L, X_CNT = 0, 2048, 20480, 24576

    def row_addr(self, dst, t):
        self.e(f"""v_and_b32 v{t}, 3, v0
        v_lshlrev_b32 v{t}, 2, v{t}
        v_bfe_u32 v{t+1}, v0, 2, 2
        v_or_b32 v{t}, v{t}, v{t+1}
        v_lshrrev_b32 v{t+1}, 5, v0
        v_xor_b32 v{t}, v{t}, v{t+1}
        v_lshlrev_b32 v{t}, 4, v{t}
        v_and_b32 v{t+1}, 31, v0
        v_lshl_add_u32 v{dst}, v{t+1}, 10, v{t}""")

    X_AL = 22528

    def qk(self, rnd, S, FR, A, TA, creg):
        e = self.e
        seq = [(i, 2 * qp + q) for qp in range(2) for i in range(8) for q in range(2)]
        ks = lambda o: seq[o][0] + 8 * seq[o][1]
        qreg = lambda o: FR + 4 * o if o < 4 else creg(ks(o - 4))
        dst = qreg if rnd == 0 else (lambda o: FR + 16 + 4 * (o & 3))
        tg = {}
        e.ds_reset()
        def rd(o):
            if o & 1 == 0: e(f"v_xor_b32 v{TA+((o>>1)&1)}, {seq[o][0] << 5}, v{A}")
            tg[o] = e.ds(f"ds_read_b128 {vr(dst(o),4)}, v{TA+((o>>1)&1)} offset:{256*seq[o][1]}")
        for o in range(3): rd(o)
        for o in range(32):
            if o + 3 < 32: rd(o + 3)
            e.dswait(tg[o])
            c = creg(ks(o)) if rnd == 0 else dst(o)
            e(f"v_mfma_f32_32x32x16_bf16 {vr(S,16)}, {vr(c,4)}, {vr(qreg(o),4)}, {vr(S,16) if o else 0}")
            if rnd == 0 and o == 16: e("s_barrier")

    def stat_addr(self, d, t):
        self.e(f"""v_and_b32 v{d}, 15, v0
        v_lshlrev_b32 v{d}, 5, v{d}
        v_bfe_u32 v{t}, v0, 4, 1
        v_lshl_add_u32 v{d}, v{t}, 10, v{d}
        v_add_u32 v{d}, {X}, v{d}""")

    def softmax(self, rnd, S, P, M, LS, T, lw):
        e = self.e
        self.max3_chain("f32", T, range(S, S + 16))
        self.swap_red("v_max_f32", T, T + 1, (32,))
        e(f"""ds_write_b32 v{T+3}, v{T} offset:{self.X_MAX+16*rnd}
        s_waitcnt lgkmcnt(0)
        s_barrier
        ds_read_b128 {vr(P,4)}, v{T+2} offset:{self.X_MAX+16*rnd}""")
        if rnd == 0:
            e(f"""v_mov_b32 v{T}, {X+self.X_CNT}
            v_mov_b32 v{T+1}, 0
            ds_write2_b32 v{T}, v{T+1}, v{T+1} offset0:0 offset1:16
            ds_write2_b32 v{T}, v{T+1}, v{T+1} offset0:32 offset1:48""")
        e(f"""s_lshl_b32 s10, s{lw}, 11
        s_add_u32 s10, s10, {X+self.X_P+8192*rnd}
        v_lshl_add_u32 v{T+1}, v0, 4, s10
        s_waitcnt lgkmcnt(0)""")
        if rnd == 0:
            self.max3_chain("f32", M, range(P, P + 4))
            e(f"v_mul_f32 v{M}, s{S_SC}, v{M}")
        else:
            self.max3_chain("f32", T, range(P, P + 4))
            e(f"""v_mul_f32 v{T}, s{S_SC}, v{T}
            v_max_f32 v{T}, v{T}, v{M}
            v_sub_f32 v{M}, v{M}, v{T}
            v_exp_f32 v{P}, v{M}
            v_mov_b32 v{M}, v{T}
            v_mul_f32 v{LS}, v{LS}, v{P}""")
        for r in range(16): e(f"v_fma_f32 v{S+r}, v{S+r}, s{S_SC}, -v{M}")
        for r in range(16): e(f"v_exp_f32 v{S+r}, v{S+r}")
        for r in range(8): e(f"v_cvt_pk_bf16_f32 v{P+r}, v{S+2*r}, v{S+2*r+1}")
        e(f"ds_write_b128 v{T+1}, {vr(P,4)}\nds_write_b128 v{T+1}, {vr(P+4,4)} offset:1024")
        if rnd == 0:
            e("s_waitcnt lgkmcnt(0)\ns_barrier")
            self.tree("v_add_f32", S, 16, 1)
            e(f"v_mov_b32 v{LS}, v{S}")
        else:
            self.tree("v_add_f32", S, 16, 1)
            e(f"v_add_f32 v{S}, v{S}, v{LS}")
            self.swap_red("v_add_f32", S, T, (32,))
            e(f"ds_write_b32 v{T+3}, v{S} offset:{self.X_L}\ns_waitcnt lgkmcnt(0)\ns_barrier")

    def qk1(self, S, FR, AQ, TA, creg=None, AC=None):
        e = self.e
        groups = [(qp, i) for qp in range(2) for i in range(8)]
        buf = (lambda g: FR + 8 * (g & 3)) if creg else (lambda g: FR + 16 * (g & 1))
        tg = {}
        e.ds_reset()
        def rd(g):
            qp, i = groups[g]; f = buf(g)
            e(f"v_xor_b32 v{TA}, {i << 5}, v{AQ}")
            if not creg: e(f"v_xor_b32 v{TA+1}, {i << 5}, v{AC}")
            for q in range(2):
                tg[g, q] = e.ds(f"ds_read_b128 {vr(f+4*q,4)}, v{TA} offset:{512*qp+256*q}")
                if not creg: tg[g, q] = e.ds(f"ds_read_b128 {vr(f+8+4*q,4)}, v{TA+1} offset:{512*qp+256*q}")
        ahead = 3 if creg else 1
        for g in range(ahead): rd(g)
        for g in range(16):
            if g + ahead < 16: rd(g + ahead)
            qp, i = groups[g]; f = buf(g)
            for q in range(2):
                e.dswait(tg[g, q])
                c = creg(i + 8 * (2 * qp + q)) if creg else f + 8 + 4 * q
                e(f"v_mfma_f32_32x32x16_bf16 {vr(S,16)}, {vr(c,4)}, {vr(f+4*q,4)}, {vr(S,16) if g or q else 0}")
            if g == 8: e("s_barrier")

    def softmax1(self, S, P, M, T, tile):
        e = self.e
        e(f"""v_and_b32 v{T+2}, 15, v0
        v_lshlrev_b32 v{T+2}, 5, v{T+2}
        v_bfe_u32 v{T+3}, v0, 4, 1
        v_lshl_add_u32 v{T+2}, v{T+3}, 10, v{T+2}
        v_add_u32 v{T+2}, {X}, v{T+2}
        s_lshl_b32 s10, s3, 2
        v_add_u32 v{T+3}, s10, v{T+2}""")
        self.max3_chain("f32", T, range(S, S + 16))
        self.swap_red("v_max_f32", T, T + 1, (32,))
        e(f"""ds_write_b32 v{T+3}, v{T} offset:{self.X_MAX}
        s_waitcnt lgkmcnt(0)
        s_barrier
        ds_read_b128 {vr(P,4)}, v{T+2} offset:{self.X_MAX}
        ds_read_b128 {vr(P+4,4)}, v{T+2} offset:{self.X_MAX+16}
        v_mov_b32 v{T}, {X+self.X_CNT}
        v_mov_b32 v{T+1}, 0
        ds_write2_b32 v{T}, v{T+1}, v{T+1} offset0:0 offset1:16
        ds_write2_b32 v{T}, v{T+1}, v{T+1} offset0:32 offset1:48
        s_lshl_b32 s10, s{tile}, 11
        s_add_u32 s10, s10, {X+self.X_P}
        v_lshl_add_u32 v{T+1}, v0, 4, s10
        s_waitcnt lgkmcnt(0)""")
        self.max3_chain("f32", M, range(P, P + 8))
        e(f"v_mul_f32 v{M}, s{S_SC}, v{M}")
        for r in range(16): e(f"v_fma_f32 v{S+r}, v{S+r}, s{S_SC}, -v{M}")
        for r in range(16): e(f"v_exp_f32 v{S+r}, v{S+r}")
        for r in range(8): e(f"v_cvt_pk_bf16_f32 v{P+r}, v{S+2*r}, v{S+2*r+1}")
        e(f"ds_write_b128 v{T+1}, {vr(P,4)}\nds_write_b128 v{T+1}, {vr(P+4,4)} offset:1024")
        self.tree("v_add_f32", S, 16, 1)
        self.swap_red("v_add_f32", S, T, (32,))
        e(f"ds_write_b32 v{T+3}, v{S} offset:{self.X_L}\ns_waitcnt lgkmcnt(0)\ns_barrier")

    VL, VW, TMP, SEL, BLO, BHI, T, U, W, G, WUV, AC0, AC1, PA, XR = 1, 2, 3, 4, 8, 9, 10, 16, 32, 96, 160, 224, 228, 232, 244
    A_CW, A_CR, A_MB = 13, 14, 15
    S_LW, S_PART, S_PRIV, S_MBJ = 5, 6, 7, 8

    def vw_addr(self):
        VW, T = self.VW, self.T
        self.e(f"""v_lshrrev_b32 v{VW}, 4, v0
        v_lshlrev_b32 v{VW}, 14, v{VW}
        v_and_b32 v{T+1}, 15, v0
        v_lshl_add_u32 v{VW}, v{T+1}, 4, v{VW}""")

    def tail_setup(self):
        VL, T, A_CW, A_CR, A_MB = self.VL, self.T, self.A_CW, self.A_CR, self.A_MB
        self.e(f"""v_lshlrev_b32 v{VL}, 4, v0
        s_lshl_b32 s{self.S_PRIV}, s3, 11
        s_lshl_b32 s{self.S_MBJ}, s4, 14
        s_add_u32 s{self.S_MBJ}, s{self.S_MBJ}, {MB}
        v_lshl_add_u32 v{A_CW}, v0, 2, s{self.S_PRIV}
        v_bfe_u32 v{A_CR}, v0, 3, 1
        v_lshlrev_b32 v{A_CR}, 7, v{A_CR}
        v_lshrrev_b32 v{T+1}, 4, v0
        v_lshl_add_u32 v{A_CR}, v{T+1}, 5, v{A_CR}
        v_add_u32 v{A_CR}, s{self.S_PRIV}, v{A_CR}
        v_lshrrev_b32 v{A_MB}, 5, v0
        v_lshlrev_b32 v{A_MB}, 17, v{A_MB}
        v_bfe_u32 v{T+1}, v0, 3, 1
        v_lshl_add_u32 v{A_MB}, v{T+1}, 14, v{A_MB}
        v_and_b32 v{T+1}, 7, v0
        v_lshl_add_u32 v{A_MB}, v{T+1}, 4, v{A_MB}""")
        self.selectors(self.SEL, self.BLO, self.BHI, self.TMP)

    def core_selectors(self):
        e = self.e
        e(f"v_mov_b32 v{self.TMP}, 0x0c0c0c0c")
        for h, base in enumerate((self.BLO, self.BHI)):
            for j in range(4): e(f"v_cndmask_b32 v{208+4*h+j}, v{self.TMP}, v{base}, s[{MASK0+2*j}:{MASK0+2*j+1}]")

    def wload(self, s, t0=0, t1=16):
        e = self.e
        if "now" in self.x or t0 >= t1: return
        e(f"s_lshl_b32 s10, s4, 16\ns_lshl_b32 s11, s{self.S_LW}, 8\ns_add_u32 s10, s10, s11")
        if t0: e(f"s_add_u32 s10, s10, {1024 * t0}")
        for t in range(t0, t1):
            e.mem(f"buffer_load_dwordx4 {vr(self.W+4*t,4)}, v{self.VW}, {srd(s)}, s10 offen offset:{1024*(t&3)} nt")
            if t & 3 == 3: e("s_add_u32 s10, s10, 4096")

    def a_compute(self):
        e = self.e; e.vm = 0
        AC, AT, AQ, M, TA, T = 1, 2, 3, 4, 6, 8
        FR, S, O, PV = 16, 48, 64, 128
        e("L_AC:")
        self.role = "AC"
        self.pt("start")
        if self.o["cpf"]:
            here = e.lab("L_pc")
            e(f"""s_getpc_b64 s[10:11]
            {here}:
            s_sub_u32 s10, s10, {here}-{NAME}_kernel
            s_subb_u32 s11, s11, 0
            s_lshl_b32 s12, s3, 13
            v_lshl_add_u32 v{T+1}, v0, 7, s12""")
            for i in range(self.o["cpf"]):
                e(f"""v_cmp_gt_u32 vcc, L_END-{NAME}_kernel, v{T+1}
                s_and_saveexec_b64 s[12:13], vcc
                s_cbranch_execz L_cpf{i}
                global_load_dword v{254+i}, v{T+1}, s[10:11]
                L_cpf{i}:
                s_mov_b64 exec, -1
                v_add_u32 v{T+1}, 32768, v{T+1}""")
        e.L.append("; split")
        e(f"v_lshlrev_b32 v{T}, 4, v0\ns_waitcnt lgkmcnt(0)")
        self.epoch_load()
        self.mk_srd(SRD_WS, P_WS, WS_USED); self.mk_srd(SRD_D, P_BWO, 4 << 20); self.mk_srd(SRD_E, P_OUT, 4096)
        for r in range(4): e(f"v_mov_b32 v{FR+r}, -1")
        def clears():
            skip = e.lab("L_skip"); two = e.lab("L_two")
            e(f"""s_and_b32 s10, s4, 62
            s_lshl_b32 s10, s10, 14
            s_and_b32 s11, s4, 1
            s_mul_i32 s11, s11, 3072
            s_add_u32 s10, s10, s11
            s_add_u32 s10, s10, {MB}
            s_cmp_eq_u32 s3, 0
            s_cbranch_scc1 {two}
            s_cmp_eq_u32 s3, 1
            s_cbranch_scc1 {skip}
            s_cmp_ge_u32 s4, 32
            s_cbranch_scc1 {skip}
            s_lshl_b32 s10, s4, 14
            s_lshl_b32 s11, s3, 12
            s_add_u32 s10, s10, s11
            s_add_u32 s10, s10, {MB}
            buffer_store_dwordx4 {vr(FR,4)}, v{T}, {srd(SRD_WS)}, s10 offen offset:3072 sc1 ; c:CLR
            {two}:""")
            for i in range(3): e(f"buffer_store_dwordx4 {vr(FR,4)}, v{T}, {srd(SRD_WS)}, s10 offen offset:{1024*i} sc1 ; c:CLR")
            e(f"{skip}:")
        cat = self.o["clr_at"]
        if cat < 0: clears()
        e(f"s_mov_b32 s{S_SC}, {f2u(SCALE):#x}\ns_mov_b32 s{S_SPIN}, {SPIN}")
        self.row_addr(AC, T + 1)
        e(f"""v_add_u32 v{AQ}, {X}, v{AC}
        s_lshl_b32 s10, s3, 15
        v_add_u32 v{AC}, s10, v{AC}
        v_lshrrev_b32 v{T+2}, 5, v0
        v_bfe_u32 v{T+1}, v0, 2, 2
        v_lshl_add_u32 v{T+3}, v{T+2}, 2, v{T+1}
        v_lshlrev_b32 v{AT}, 10, v{T+3}
        v_bfe_u32 v{T+3}, v0, 4, 1
        v_lshlrev_b32 v{T+3}, 1, v{T+3}
        v_bfe_u32 v{T+4}, v0, 1, 1
        v_or_b32 v{T+3}, v{T+3}, v{T+4}
        v_xor_b32 v{T+3}, v{T+3}, v{T+2}
        v_lshl_add_u32 v{T+3}, v{T+1}, 2, v{T+3}
        v_lshl_add_u32 v{AT}, v{T+3}, 4, v{AT}
        v_and_b32 v{T+3}, 1, v0
        v_lshl_add_u32 v{AT}, v{T+3}, 3, v{AT}
        s_lshl_b32 s10, s3, 8
        v_add_u32 v{AT}, s10, v{AT}""")
        self.epoch_tag()
        def tr_addr():
            for k in range(8):
                e(f"v_xor_b32 v{S+k}, {(2*k) << 4}, v{AT}")
                if k & 1: e(f"v_add_u32 v{S+k}, 8192, v{S+k}")
        def tr_step():
            for k in range(8): e(f"v_add_u32 v{S+k}, 65536, v{S+k}")
        def tr_ct(u, ct):
            for hh in range(2):
                last = e.ds(f"ds_read_b64_tr_b16 {vr(PV+16*(u&7)+4*ct+2*hh,2)}, v{S+2*ct+hh} offset:{32768*((u>>1)&1)+16384*(u&1)}")
            return last
        tr_addr()
        e(f"""s_and_b32 s9, s4, {self.o["rep"] - 1}
        s_lshl_b32 s9, s9, 11
        s_add_u32 s9, s9, {FA}
        v_lshlrev_b32 v{FR+10}, 3, v0""")
        def qc_load():
            for i in range(3): e(f"buffer_load_dwordx2 {vr(FR+4+2*i,2)}, v{FR+10}, {srd(SRD_WS)}, s9 offen offset:{512*i} sc1 ; c:LQC")
        def q_load():
            for i in range(8): e(f"buffer_load_dwordx4 {vr(O+4*i,4)}, v{T}, {srd(SRD_WS)}, s{70+(i>>2)} offen offset:{1024*(i&3)} sc1 ; c:LQA")
        e(f"""s_lshr_b32 s70, s4, 5
        s_lshl_b32 s70, s70, 15
        s_lshl_b32 s71, s3, 13
        s_add_u32 s70, s70, s71
        s_add_u32 s70, s70, {QAP}
        s_add_u32 s71, s70, 4096""")
        qat = self.o["qat"]
        def flags():
            top, done = e.lab("L_spin"), e.lab("L_ok")
            e(f"""s_cmp_lg_u32 s3, 0
            s_cbranch_scc1 {done}
            {top}:
            s_waitcnt vmcnt(0)
            v_cmp_ne_u64 vcc, s[{TAG}:{TAG+1}], {vr(FR+4,2)}
            v_cmp_ne_u64 s[12:13], s[{TAG}:{TAG+1}], {vr(FR+6,2)}
            s_or_b64 vcc, vcc, s[12:13]
            v_cmp_ne_u64 s[12:13], s[{TAG}:{TAG+1}], {vr(FR+8,2)}
            s_or_b64 vcc, vcc, s[12:13]
            s_cbranch_vccz {done}""")
            qc_load()
            self.spin_tail(top, done)
        for t in range(4):
            if t == 1: e("s_waitcnt vmcnt(0)")
            e("s_barrier")
            self.pt(f"t{t}")
            if t == 1:
                skip = self.only_wave(0)
                e("s_lshr_b32 s12, s4, 3\ns_and_b32 s13, s4, 7\ns_add_u32 s13, s13, 8")
                self.post_b(12, 13, FR)
                self.post_a(4, 1024, FR + 12)
                e(f"{skip}:")
            if t == self.o["fat"]:
                skip = self.only_wave(0); qc_load(); e(f"{skip}:")
            if t == 2: tr_step()
            e.ds_reset()
            for u in (2 * t, 2 * t + 1):
                for ct in range(4): tr_ct(u, ct)
            e("s_waitcnt lgkmcnt(0)")
        if self.o["late"]: e("s_barrier")
        flags()
        e("s_barrier")
        self.pt("half")
        q_load()
        e(f"""s_lshl_b32 s12, s3, 13
        s_add_u32 s12, s12, {X}
        s_and_b32 s13, s3, 1
        s_lshl_b32 s13, s13, 5
        v_xor_b32 v{T+1}, s13, v{T}
        v_add_u32 v{T+1}, s12, v{T+1}""")
        top, done = e.lab("L_spin"), e.lab("L_ok")
        e(f"{top}:\ns_waitcnt vmcnt(0)")
        self.max3_chain("u32", T + 2, range(O, O + 16)); self.max3_chain("u32", T + 3, range(O + 16, O + 32))
        e(f"v_max_u32 v{T+2}, v{T+2}, v{T+3}\nv_cmp_eq_u32 vcc, -1, v{T+2}\ns_cbranch_vccz {done}")
        self.pt("qr")
        q_load()
        self.spin_tail(top, done)
        self.pt("qd")
        for i in range(8):
            sw = ((i & 3) << 2) | (i >> 2)
            e(f"v_xor_b32 v{TA+(i&1)}, {sw << 4}, v{T+1}\nds_write_b128 v{TA+(i&1)}, {vr(O+4*i,4)} offset:{1024*i}")
        if self.o["r2"]:
            e("s_waitcnt lgkmcnt(0)\ns_barrier")
            self.pt("b1")
            e(f"v_add_u32 v{T}, {X+self.X_P}, v{T}")
            self.stat_addr(T + 3, T + 1)
            e(f"""s_lshl_b32 s10, s3, 7
            s_add_u32 s10, s10, {X+self.X_AL}
            v_and_b32 v{T+1}, 31, v0
            v_lshl_add_u32 v{AQ}, v{T+1}, 2, s10
            v_lshrrev_b32 v{T+1}, 5, v0
            v_lshl_add_u32 v{AC}, v{T+1}, 4, s10""")
            tr_addr()
            def pv(rnd):
                e.ds_reset()
                pt_ = [e.ds(f"ds_read_b128 {vr(FR+4*u,4)}, v{T} offset:{8192*rnd+1024*u}") for u in range(8)]
                for u in range(8):
                    e.dswait(pt_[u])
                    for ct in range(4):
                        e(f"v_mfma_f32_32x32x16_bf16 {vr(O+16*ct,16)}, {vr(FR+4*u,4)}, {vr(PV+16*u+4*ct,4)}, {vr(O+16*ct,16) if u or rnd else 0}")
            e("s_barrier\ns_barrier\ns_barrier")
            self.pt("bp0")
            pv(0)
            e("s_barrier")
            self.pt("bd")
            e.ds_reset()
            for u in range(8):
                if u == 4: tr_step()
                for ct in range(4): tr_ct(u, ct)
            e(f"""s_waitcnt lgkmcnt(0)
            s_barrier
            ds_read_b128 {vr(FR,4)}, v{T+3} offset:{self.X_MAX}
            ds_read_b128 {vr(FR+4,4)}, v{T+3} offset:{self.X_MAX+16}
            s_waitcnt lgkmcnt(0)""")
            self.max3_chain("f32", T + 1, range(FR, FR + 4))
            self.max3_chain("f32", M, [T + 1] + list(range(FR + 4, FR + 8)))
            e(f"""v_mul_f32 v{T+1}, s{S_SC}, v{T+1}
            v_mul_f32 v{M}, s{S_SC}, v{M}
            v_sub_f32 v{T+1}, v{T+1}, v{M}
            v_exp_f32 v{T+1}, v{T+1}
            ds_write_b32 v{AQ}, v{T+1}""")
            for q in range(4): e(f"ds_read_b128 {vr(S+4*q,4)}, v{AC} offset:{32*q}")
            e("s_waitcnt lgkmcnt(0)")
            for ct in range(4):
                for r in range(16): e(f"v_mul_f32 v{O+16*ct+r}, v{O+16*ct+r}, v{S+r}")
            e("s_barrier")
            self.pt("bp")
            pv(1)
        else:
            e("s_add_u32 s9, s3, 4\ns_waitcnt lgkmcnt(0)\ns_barrier")
            self.pt("b1")
            self.qk1(S, FR, AQ, TA, AC=AC)
            self.pt("qk")
            self.softmax1(S, FR, M, T + 1, 9)
            self.pt("bp")
            e(f"v_add_u32 v{T}, {X+self.X_P}, v{T}")
            e.ds_reset()
            pt_, tt_ = {}, {}
            def pread(u): pt_[u] = e.ds(f"ds_read_b128 {vr(FR+4*(u&7),4)}, v{T} offset:{1024*u}")
            for u in range(8): pread(u)
            tr_addr()
            for u in range(16):
                e.dswait(max(pt_[u], tt_.get(u, 0)))
                if u == 4: tr_step()
                for ct in range(4):
                    e(f"v_mfma_f32_32x32x16_bf16 {vr(O+16*ct,16)}, {vr(FR+4*(u&7),4)}, {vr(PV+16*(u&7)+4*ct,4)}, {vr(O+16*ct,16) if u else 0}")
                    if u < 8: tt_[u + 8] = tr_ct(u + 8, ct)
                if u < 8: pread(u + 8)
        self.pt("pv")
        e(f"""v_lshrrev_b32 v{T}, 5, v0
        v_lshlrev_b32 v{T}, 18, v{T}
        v_bfe_u32 v{T+1}, v0, 4, 1
        v_lshl_add_u32 v{T}, v{T+1}, 16, v{T}
        v_and_b32 v{T+1}, 15, v0
        v_lshl_add_u32 v{T}, v{T+1}, 4, v{T}
        s_lshl_b32 s10, s4, 10
        s_lshl_b32 s11, s3, 8
        s_add_u32 s10, s10, s11
        s_add_u32 s10, s10, {AP}""")
        for r in range(16):
            d = FR + 2 * r
            e(f"v_cvt_pk_bf16_f32 v{d}, v{O+r}, v{O+16+r}\nv_cvt_pk_bf16_f32 v{d+1}, v{O+32+r}, v{O+48+r}")
            if r >= 3 and r & 1:
                k = FR + 2 * (r - 3)
                e(f"v_permlane16_swap_b32 v{k}, v{k+2}\nv_permlane16_swap_b32 v{k+1}, v{k+3}")
                e(f"buffer_store_dwordx4 {vr(k,4)}, v{T}, {srd(SRD_WS)}, s10 offen sc1 ; c:AP")
                e(f"s_add_u32 s10, s10, {65536 * (6 if (r - 3) & 2 else 2)}")
        k = FR + 28
        e(f"v_permlane16_swap_b32 v{k}, v{k+2}\nv_permlane16_swap_b32 v{k+1}, v{k+3}")
        e(f"buffer_store_dwordx4 {vr(k,4)}, v{T}, {srd(SRD_WS)}, s10 offen sc1 ; c:AP")
        skip = self.only_wave(0)
        if not self.o["r2"]: e(f"ds_read_b128 {vr(S+4,4)}, v{T+3} offset:{self.X_L+16}")
        e(f"""ds_read_b128 {vr(S,4)}, v{T+3} offset:{self.X_L}
        v_lshlrev_b32 v{T+1}, 3, v0
        s_lshl_b32 s10, s4, 8
        s_add_u32 s10, s10, {AST}
        s_waitcnt lgkmcnt(0)""")
        self.tree("v_add_f32", S, 4 if self.o["r2"] else 8, 1)
        e(f"""v_mov_b32 v{S+1}, v{S}
        v_mov_b32 v{S}, v{M}
        s_mov_b32 exec_hi, 0
        buffer_store_dwordx2 {vr(S,2)}, v{T+1}, {srd(SRD_WS)}, s10 offen sc1
        s_mov_b64 exec, -1
        {skip}:
        s_mov_b32 s5, s3
        s_mov_b32 s6, 1""")
        skip = e.lab("L_skip")
        e(f"""v_mov_b32 v100, {X+self.X_CNT+64}
        v_mov_b32 v101, 1
        s_mov_b64 exec, 1
        s_waitcnt vmcnt(0)
        ds_add_rtn_u32 v102, v100, v101
        s_waitcnt lgkmcnt(0)
        v_cmp_eq_u32 vcc, 3, v102
        s_mov_b64 exec, -1
        s_cbranch_vccz {skip}""")
        if self.o["wb"]: e("buffer_wbl2 sc1\ns_waitcnt vmcnt(0)")
        self.post_a(4, 1536, 96)
        if self.o["fw"]:
            if self.o["fw"] == 2: e("s_waitcnt vmcnt(0)")
            self.lds_inc(X + self.X_CNT + 64, 100)
        e(f"{skip}:")
        self.pt("b9")
        self.vw_addr()
        self.tail_setup()
        self.masks(0x03030303, 0x03030303)
        self.core_selectors()
        if self.o["fw"]:
            self.lds_wait(X + self.X_CNT + 64, 100, 5)
            self.wload(SRD_D)
        else:
            self.wload(SRD_D)
            self.lds_wait(X + self.X_CNT + 64, 100)
        e(f"""s_mov_b32 s{S_SPIN}, {SPIN * 20}
        v_lshlrev_b32 v{self.A_CW}, 2, v0
        v_subrev_u32 v{self.A_CR}, s{self.S_PRIV}, v{self.A_CR}
        s_cmp_eq_u32 s3, 0
        s_cbranch_scc1 L_BPRE
        v_mov_b32 v100, {X + self.X_CNT + 128}
        s_waitcnt vmcnt(0)""")
        top = e.lab("L_spin")
        XR = self.XR
        e(f"""{top}:
        ds_read_b32 v101, v100
        ds_read_b128 {vr(XR,4)}, v{self.A_CR} offset:1024
        ds_read_b128 {vr(XR+4,4)}, v{self.A_CR} offset:1040
        s_waitcnt lgkmcnt(0)
        v_cmp_ne_u32 vcc, 0, v101
        s_cbranch_vccnz L_CORE2
        s_sub_u32 s{S_SPIN}, s{S_SPIN}, 1
        s_cbranch_scc0 {top}
        s_branch L_CORE2
        L_BPRE:
        s_mov_b32 s{S_SPIN}, {SPIN}
        v_mov_b32 v100, {X + self.X_CNT + 128}
        v_mov_b32 v101, 1""")
        self.b_pre()

    def b_pre(self):
        e = self.e
        T, U, G, A_CW, S_PRIV, S_MBJ = self.T, self.U, 104, self.A_CW, self.S_PRIV, self.S_MBJ
        e(f"""v_bfe_u32 v{T}, v0, 4, 1
        v_mul_u32_u24 v{T}, 6144, v{T}
        v_and_b32 v{T+1}, 15, v0
        v_lshl_add_u32 v{T}, v{T+1}, 6, v{T}
        s_lshr_b32 s10, s4, 3
        s_mul_i32 s10, s10, 768
        s_bfe_u32 s11, s4, 0x20001
        s_lshl_b32 s11, s11, 4
        s_add_u32 s10, s10, s11
        s_add_u32 s10, s10, {BS}
        s_mov_b32 s12, 0x0fff0fff
        s_mov_b32 s13, 0
        v_mov_b32 v{U+5}, 0xff
        s_mov_b64 exec, s[12:13]""")
        top, done = e.lab("L_spin"), e.lab("L_ok")
        e(f"""{top}:
        buffer_load_dwordx4 {vr(U,4)}, v{T}, {srd(SRD_WS)}, s10 offen sc1
        s_waitcnt vmcnt(0)""")
        self.tag_check(U, 2, U + 4)
        e(f"v_cmp_ne_u32 vcc, 0, v{U+4}\ns_cbranch_vccz {done}")
        self.spin_tail(top, done, self.o["sl_bs"])
        e(f"s_mov_b64 exec, -1\nv_and_b32 v{U+1}, 0xffffff00, v{U+2}\nv_and_b32 v{U}, 0xffffff00, v{U}")
        self.pt("bstat")
        e(f"""v_mov_b32 v{U+2}, 0xff800000
        v_cndmask_b32 v{U}, v{U+2}, v{U}, s[12:13]
        v_cndmask_b32 v{U+1}, 0, v{U+1}, s[12:13]
        v_mov_b32 v{U+2}, v{U}""")
        self.row_red("v_max_f32", U + 2, (1, 2, 4, 8))
        e(f"v_sub_f32 v{U}, v{U}, v{U+2}\nv_exp_f32 v{U}, v{U}\nv_mul_f32 v{U+1}, v{U}, v{U+1}")
        self.row_red("v_add_f32", U + 1, (1, 2, 4, 8))
        WA, AC0, XR, BLO, BHI = 180, self.AC0, self.XR, self.BLO, self.BHI
        e(f"""v_rcp_f32 v{U+1}, v{U+1}
        v_mul_f32 v{U}, v{U}, v{U+1}
        v_cvt_pk_bf16_f32 v{U}, v{U}, v{U}
        v_bfe_u32 v{T}, v0, 4, 1
        v_mul_u32_u24 v{T}, 24, v{T}
        v_and_b32 v{T+1}, 15, v0
        v_lshl_add_u32 v{T}, v{T+1}, 1, v{T}
        v_lshrrev_b32 v{T+2}, 4, v0
        v_mul_u32_u24 v{T+2}, 12, v{T+2}
        s_mov_b64 exec, s[12:13]
        ds_write_b16 v{T}, v{U} offset:1536
        s_mov_b64 exec, -1
        ds_read_b32 v{XR}, v{T+2} offset:1536
        ds_read_b32 v{XR+1}, v{T+2} offset:1540
        ds_read_b32 v{XR+2}, v{T+2} offset:1544
        v_lshlrev_b32 v{T}, 7, v{T+2}
        v_lshl_add_u32 v{T}, v{T+1}, 4, v{T}
        s_and_b32 s10, s4, 62
        s_lshl_b32 s10, s10, 14
        s_add_u32 s10, s10, {MB}
        v_lshrrev_b32 v{T+2}, 5, v0
        v_lshlrev_b32 v{T+2}, 7, v{T+2}
        v_and_b32 v{T+1}, 7, v0
        v_lshl_add_u32 v{T+2}, v{T+1}, 4, v{T+2}
        v_bfe_u32 v{T+1}, v0, 4, 1
        v_lshl_add_u32 v{T+2}, v{T+1}, 3, v{T+2}
        s_and_b32 s11, s4, 1
        s_lshl_b32 s11, s11, 3
        s_lshl_b32 s12, 0x00ff00ff, s11
        s_mov_b32 s13, s12
        s_mov_b32 s70, 0x00030003
        s_mov_b32 s71, 0x03000300
        s_waitcnt lgkmcnt(0)""")
        for t in range(6): e(f"v_perm_b32 v{U+t}, v{XR+(t>>1)}, v{XR+(t>>1)}, v{BHI if t & 1 else BLO}")
        for j in range(4):
            for t in range(6): e(f"v_cndmask_b32 v{WA+4*t+j}, 0, v{U+t}, s[70:71]")
            if j < 3: e("s_lshl_b32 s70, s70, 2\ns_lshl_b32 s71, s71, 2")
        def chain(g, t):
            if t == 0: e(f"v_max3_u32 v{T+1}, v{g}, v{g+1}, v{g+2}\nv_max_u32 v{T+1}, v{T+1}, v{g+3}")
            else: e(f"v_max3_u32 v{T+1}, v{T+1}, v{g}, v{g+1}\nv_max3_u32 v{T+1}, v{T+1}, v{g+2}, v{g+3}")
        def use(k, t):
            g = G + 24 * k + 4 * t
            e(f"v_mfma_f32_16x16x32_bf16 {vr(AC0,4)}, {vr(WA+4*t,4)}, {vr(g,4)}, {vr(AC0,4) if t else 0}"); chain(g, t)
        if self.o["gate"] >= 0:
            top, done = e.lab("L_spin"), e.lab("L_ok")
            e(f"{top}:")
            for t in range(6): e(f"buffer_load_dword v{G+t}, v{T}, {srd(SRD_WS)}, s10 offen offset:{256*t} sc1 ; c:LMB")
            e("s_mov_b32 s70, 0")
            for t in range(6):
                e(f"""s_waitcnt vmcnt({5-t})
                v_cmp_eq_u32 vcc, -1, v{G+t}
                s_and_b64 vcc, vcc, s[12:13]
                s_bcnt1_i32_b64 s71, vcc
                s_add_u32 s70, s70, s71""")
            e(f"s_cmp_le_u32 s70, {8 * self.o['gate']}\ns_cbranch_scc1 {done}")
            self.spin_tail(top, done, self.o["sl_bo"])
        self.poll_loop(6, lambda k, t: e(f"buffer_load_dwordx4 {vr(G+24*k+4*t,4)}, v{T}, {srd(SRD_WS)}, s10 offen offset:{256*t} sc1 ; c:LMB"),
                       use, lambda: e(f"v_cmp_eq_u32 vcc, -1, v{T+1}\ns_and_b64 vcc, vcc, s[12:13]"), self.o["ps1"], "or")
        self.pt("bo")
        e(f"""s_mov_b64 exec, s[12:13]
        v_cvt_pk_bf16_f32 v{U}, v{AC0}, v{AC0+1}
        v_cvt_pk_bf16_f32 v{U+1}, v{AC0+2}, v{AC0+3}
        ds_write_b64 v{T+2}, {vr(U,2)} offset:1024
        s_mov_b64 exec, -1
        ds_write_b32 v100, v101
        s_branch L_CORE1""")

    def a_loader(self):
        e = self.e; e.vm = 0
        VL, VW, TMP, SEL, BLO, BHI, T, U, W, G, WUV, AC0, AC1, PA, XR = (self.VL, self.VW, self.TMP, self.SEL, self.BLO,
            self.BHI, self.T, self.U, self.W, self.G, self.WUV, self.AC0, self.AC1, self.PA, self.XR)
        S_LW, S_PART, S_PRIV, S_MBJ = self.S_LW, self.S_PART, self.S_PRIV, self.S_MBJ
        XO, S, FR, AQ, AC, TA, M = 232, 16, 224, 4, 5, 6, 8
        CNT = X + self.X_CNT
        creg = lambda ks: (W + 4 * ks) if ks < 16 else (WUV + 4 * (ks - 16))
        e("L_AL:")
        self.role = "AL"
        self.pt("start")
        e(f"""s_sub_u32 s{S_LW}, s3, 4
        s_and_b32 s10, s3, 1
        s_lshl_b32 s10, s10, 5
        v_lshlrev_b32 v{VL}, 4, v0
        v_xor_b32 v{T}, s10, v{VL}""")
        for i in range(8): e(f"v_xor_b32 v{XO+i}, {(((i & 3) << 2) | (i >> 2)) << 4}, v{T}")
        e(f"""s_lshl_b32 s66, s4, 18
        s_lshl_b32 s67, s{S_LW}, 13
        s_add_u32 s66, s66, s67
        s_waitcnt lgkmcnt(0)""")
        self.mk_srd(SRD_A, P_CKV, 16 << 20)
        dma = []
        def dma_tile(t):
            for r in range(8):
                if r & 3 == 0: e("s_mov_b32 m0, s67")
                last = e.mem(f"buffer_load_dwordx4 v{XO+r}, {srd(SRD_A)}, s66 offen offset:{1024*(r&3)} nt lds")
                if r == 3: e("s_add_u32 s66, s66, 4096\ns_add_u32 s67, s67, 4096")
                if r == 7: e(f"s_add_u32 s66, s66, 28672\ns_add_u32 s67, s67, {28672 if t != 3 else (28672 - 131072) & 0xffffffff:#x}")
            dma.append(last)
        a0 = self.o["a0"]
        dma_tile(0)
        e.L.append("; split")
        for t in range(1, a0): dma_tile(t)
        if self.stamps: self.mk_srd(SRD_WS, P_WS, WS_USED)
        self.row_addr(AC, T)
        e(f"""v_add_u32 v{AQ}, {X}, v{AC}
        s_lshl_b32 s10, s{S_LW}, 15
        v_add_u32 v{AC}, s10, v{AC}
        s_mov_b32 s{S_SC}, {f2u(SCALE):#x}""")
        for t in range(5):
            if t < 4: e.wait(dma[t])
            e("s_barrier")
            self.pt(f"bar{t}")
            while len(dma) < min(8, a0 + t + 1, 4 + t) or (t == 4 and len(dma) < 8): dma_tile(len(dma))
            self.pt(f"iss{t}")
            if t < 4:
                skip = self.only_wave(4 + t)
                for i in range(8):
                    e(f"v_xor_b32 v{TA+(i&1)}, {i << 5}, v{AC}")
                    for q in range(4): e(f"ds_read_b128 {vr(creg(i+8*q),4)}, v{TA+(i&1)} offset:{256*q}")
                    if i & 1: e("s_waitcnt lgkmcnt(4)")
                e(f"s_waitcnt lgkmcnt(0)\n{skip}:")
        if self.o["r2"]:
            self.stat_addr(T + 2, T + 3)
            if self.o["late"]: e("s_barrier")
            e(f"s_lshl_b32 s10, s{S_LW}, 2\nv_add_u32 v{T+3}, s10, v{T+2}\ns_barrier")
            self.qk(0, S, FR, AQ, TA, creg)
            self.softmax(0, S, FR + 16, M, TMP, T, S_LW)
            e("s_waitcnt vmcnt(0)")
            self.pt("dma")
            e("s_barrier")
            self.qk(1, S, FR, AC, TA, creg)
            self.softmax(1, S, FR + 16, M, TMP, T, S_LW)
        else:
            if self.o["late"]: e("s_barrier")
            e("s_waitcnt vmcnt(0)")
            self.pt("dma")
            e("s_barrier")
            self.qk1(S, FR, AQ, TA, creg=creg)
            self.softmax1(S, FR, M, T, S_LW)
        pv = self.o["pv"]
        if pv:
            npt = self.o["pb"]; assert self.o["pa"] == npt
            self.mk_srd(SRD_B, P_BV, 32 << 20)
            e(f"""s_lshr_b32 s10, s4, 3
            s_lshl_b32 s10, s10, 1
            s_lshr_b32 s11, s{S_LW}, 1
            s_add_u32 s10, s10, s11
            s_lshl_b32 s10, s10, 21
            s_and_b32 s11, s4, 7
            s_mul_i32 s11, s11, {8 * npt}
            s_and_b32 s12, s{S_LW}, 1
            s_lshl_b32 s12, s12, 1
            s_add_u32 s12, s12, {self.o['pvw']}
            s_mul_i32 s12, s12, {npt}
            s_add_u32 s11, s11, s12
            s_add_u32 s11, s11, {npt - pv}
            s_lshl_b32 s11, s11, 12
            s_add_u32 s10, s10, s11
            s_add_u32 s11, s10, {4096 * npt}""")
            if self.o["pvwait"]: self.lds_wait(X + self.X_CNT + 64, T)
            k = 0
            for t in range(pv):
                for sr in (10, 11):
                    for j in range(4):
                        if k >= self.o["pvwin"]: e(f"s_waitcnt vmcnt({self.o['pvwin'] - 1})")
                        e(f"buffer_load_dwordx4 {vr(32 + 4 * k, 4)}, v{VL}, {srd(SRD_B)}, s{sr} offen offset:{1024 * j} nt"); k += 1
                    e(f"s_add_u32 s{sr}, s{sr}, 4096")
            e("s_waitcnt vmcnt(0)")
        self.pt("end")
        self.stamp_out(32)
        e("s_endpgm")

    def a_tail(self):
        e = self.e; e.vm = 0
        VL, VW, TMP, SEL, BLO, BHI, T, U, W, G, AC0, AC1, PA, XR = (self.VL, self.VW, self.TMP, self.SEL, self.BLO,
            self.BHI, self.T, self.U, self.W, self.G, self.AC0, self.AC1, self.PA, self.XR)
        S_LW, S_PART, S_PRIV, S_MBJ = self.S_LW, self.S_PART, self.S_PRIV, self.S_MBJ
        UV, GA, L_W = 96, 160, 32768
        e("L_ATAIL:")
        self.role = "Q"
        e(f"s_mov_b32 s{S_LW}, s3\ns_mov_b32 s{S_PART}, 0\ns_mov_b32 s{S_SPIN}, {SPIN}")
        e(f"""s_cmp_eq_u32 s3, 0
        s_cselect_b32 s69, 0, 0x40000000
        s_and_b32 s70, s4, {self.o["rep"] - 1}
        s_lshl_b32 s70, s70, 11
        s_add_u32 s70, s70, {FA + 1536}
        s_add_u32 s70, s70, s69
        v_lshlrev_b32 v{U+2}, 3, v0""")
        if self.o["f1"]: e(f"buffer_load_dwordx2 {vr(U,2)}, v{U+2}, {srd(SRD_WS)}, s70 offen sc1")
        self.vw_addr()
        self.tail_setup()
        e(f"""s_lshl_b32 s10, s3, 14
        s_add_u32 s10, s10, {L_W}
        v_add_u32 v{T}, s10, v{VL}
        v_add_u32 v{T+1}, 65536, v{T}""")
        e.ds_reset()
        for t in range(16): e.ds(f"ds_read_b128 {vr(UV+4*t,4)}, v{T} offset:{1024*t}")
        for t in range(16): e.ds(f"ds_read_b128 {vr(W+4*t,4)}, v{T+1} offset:{1024*t}")
        top, done = e.lab("L_spin"), e.lab("L_ok")
        e(f"s_cmp_lg_u32 s3, 0\ns_cbranch_scc1 {done}")
        if not self.o["f1"]: e(f"buffer_load_dwordx2 {vr(U,2)}, v{U+2}, {srd(SRD_WS)}, s70 offen sc1")
        e(f"""{top}:
        s_waitcnt vmcnt(0)
        v_cmp_ne_u64 vcc, s[{TAG}:{TAG+1}], {vr(U,2)}
        s_cbranch_vccz {done}""")
        if self.o["sl_ap"]: e(f"s_sleep {self.o['sl_ap']}")
        e(f"buffer_load_dwordx2 {vr(U,2)}, v{U+2}, {srd(SRD_WS)}, s70 offen sc1")
        self.spin_tail(top, done)
        e("s_waitcnt vmcnt(0) lgkmcnt(0)\ns_barrier")
        self.pt("apf")
        e.vm = 0
        e(f"""s_lshr_b32 s12, s4, 1
        s_lshl_b32 s10, s12, 3
        s_add_u32 s10, s10, {AST}
        v_lshlrev_b32 v{T}, 8, v0""")
        st = e.mem(f"buffer_load_dwordx2 {vr(U,2)}, v{T}, {srd(SRD_WS)}, s10 offen sc1")
        e(f"""s_lshl_b32 s10, s12, 16
        s_lshl_b32 s11, s{S_LW}, 8
        s_add_u32 s10, s10, s11
        s_add_u32 s10, s10, {AP}""")
        g = []
        for t in range(16):
            g.append(e.mem(f"buffer_load_dwordx4 {vr(GA+4*t,4)}, v{VW}, {srd(SRD_WS)}, s10 offen offset:{1024*(t&3)} sc1 ; c:LAP"))
            if t & 3 == 3: e("s_add_u32 s10, s10, 4096")
        self.masks(0x00030003, 0x03000300)
        e(f"""v_lshl_add_u32 v{T}, v0, 1, s{S_PRIV}
        v_lshrrev_b32 v{T+1}, 4, v0
        v_lshl_add_u32 v{T+1}, v{T+1}, 5, s{S_PRIV}""")
        e.wait(st)
        e(f"v_mov_b32 v{U+2}, v{U}")
        self.row_red("v_max_f32", U + 2, (1, 2, 4, 8)); self.swap_red("v_max_f32", U + 2, TMP, (16,))
        e(f"v_sub_f32 v{U}, v{U}, v{U+2}\nv_exp_f32 v{U}, v{U}\nv_mul_f32 v{U+1}, v{U}, v{U+1}")
        self.row_red("v_add_f32", U + 1, (1, 2, 4, 8)); self.swap_red("v_add_f32", U + 1, TMP, (16,))
        e(f"""v_rcp_f32 v{U+1}, v{U+1}
        v_mul_f32 v{U}, v{U}, v{U+1}
        v_cvt_pk_bf16_f32 v{U}, v{U}, v{U}
        ds_write_b16 v{T}, v{U}
        ds_read_b128 {vr(XR,4)}, v{T+1}
        ds_read_b128 {vr(XR+4,4)}, v{T+1} offset:16
        v_lshrrev_b32 v{T}, 5, v0
        v_lshlrev_b32 v{T}, 8, v{T}
        v_and_b32 v{T+1}, 15, v0
        v_lshl_add_u32 v{T}, v{T+1}, 1, v{T}
        v_bfe_u32 v{T+1}, v0, 4, 1
        v_lshl_add_u32 v{T}, v{T+1}, 5, v{T}
        v_add_u32 v{T}, s{S_PRIV}, v{T}
        v_bfe_u32 v{T+1}, v0, 3, 1
        v_lshlrev_b32 v{T+1}, 8, v{T+1}
        v_lshrrev_b32 v{T+2}, 4, v0
        v_lshl_add_u32 v{T+1}, v{T+2}, 6, v{T+1}
        v_bfe_u32 v{T+2}, v0, 2, 1
        v_lshl_add_u32 v{T+1}, v{T+2}, 5, v{T+1}
        v_add_u32 v{T+1}, s{S_PRIV}, v{T+1}
        s_waitcnt lgkmcnt(0)""")
        self.rws256(16, XR, GA, AC0, BLO, BHI, PA, g)
        self.pt("lat")
        e(f"""v_cvt_pk_bf16_f32 v{U}, v{AC0}, v{AC0+1}
        v_cvt_pk_bf16_f32 v{U+1}, v{AC0+2}, v{AC0+3}
        ds_write_b16 v{T}, v{U} offset:256
        ds_write_b16_d16_hi v{T}, v{U} offset:320
        ds_write_b16 v{T}, v{U+1} offset:384
        ds_write_b16_d16_hi v{T}, v{U+1} offset:448
        ds_read_b128 {vr(XR,4)}, v{T+1} offset:256
        ds_read_b128 {vr(XR+4,4)}, v{T+1} offset:272""")
        self.masks(0x03030303, 0x03030303)
        self.core_selectors()
        for z in (0, 1, 4, 5, 8, 9): e(f"v_mov_b32 v{PA+z}, 0")
        e(f"""v_bfe_u32 v{T}, v0, 3, 1
        v_lshlrev_b32 v{T}, 9, v{T}
        v_lshrrev_b32 v{T+1}, 5, v0
        v_lshl_add_u32 v{T}, v{T+1}, 8, v{T}
        v_and_b32 v{T+1}, 7, v0
        v_lshl_add_u32 v{T}, v{T+1}, 5, v{T}
        s_lshl_b32 s10, s{S_LW}, 10
        v_add_u32 v{T}, s10, v{T}
        s_waitcnt lgkmcnt(0)""")
        self.rws128(16, XR, UV, AC0, AC1, SEL, PA)
        RED = 16384
        e(f"""s_mov_b32 exec_lo, 0xff0000ff
        s_mov_b32 exec_hi, 0xff0000ff
        ds_write_b128 v{T}, {vr(AC0,4)} offset:{RED}
        ds_write_b128 v{T}, {vr(AC1,4)} offset:{RED+16}
        s_mov_b64 exec, -1
        v_lshlrev_b32 v{T}, 3, v0""")
        e("s_waitcnt lgkmcnt(0)\ns_barrier")
        for i in range(8): e(f"ds_read_b64 {vr(U+2*i,2)}, v{T} offset:{RED+512*i}")
        e("s_waitcnt lgkmcnt(0)")
        self.tree("v_add_f32", U, 8, 2)
        self.pt("ctx")
        A_CW, A_CR, A_MB = self.A_CW, self.A_CR, self.A_MB
        e(f"""v_cvt_pk_bf16_f32 v{U}, v{U}, v{U+1}
        ds_write_b32 v{A_CW}, v{U} offset:1024
        L_CORE1:
        ds_read_b128 {vr(XR,4)}, v{A_CR} offset:1024
        ds_read_b128 {vr(XR+4,4)}, v{A_CR} offset:1040
        L_CORE2:
        s_lshl_b32 s10, s{S_LW}, 15
        s_lshl_b32 s11, s4, 7
        s_add_u32 s10, s10, s11
        s_lshl_b32 s11, s{S_PART}, 18
        s_add_u32 s10, s10, s11
        s_add_u32 s10, s10, {MB+MB_2}
        s_waitcnt lgkmcnt(0)""")
        self.pt("cx")
        CS = 208
        for t in range(16):
            a = PA + 2 + 4 * (t & 1)
            for j in range(4): e(f"v_perm_b32 v{a+j}, v{XR+(t>>1)}, v{XR+(t>>1)}, v{CS+4*(t&1)+j}")
            e(f"v_mfma_f32_16x16x32_bf16 {vr(AC0,4)}, {vr(a,4)}, {vr(W+4*t,4)}, {vr(AC0,4) if t else 0}")
        e(f"""v_cvt_pk_bf16_f32 v{AC1}, v{AC0}, v{AC0+1}
        v_cvt_pk_bf16_f32 v{AC1+1}, v{AC0+2}, v{AC0+3}
        v_min_u32 v{AC1}, -2, v{AC1}
        v_min_u32 v{AC1+1}, -2, v{AC1+1}
        v_mov_b32 v{AC1+2}, v{AC1}
        v_mov_b32 v{AC1+3}, v{AC1+1}
        v_permlane16_swap_b32 v{AC1}, v{AC1+2}
        v_permlane16_swap_b32 v{AC1+1}, v{AC1+3}
        s_mov_b32 exec_lo, 0xffff
        s_mov_b32 exec_hi, 0xffff
        buffer_store_dwordx4 {vr(AC1,4)}, v{A_MB}, {srd(SRD_WS)}, s10 offen sc1 ; c:MB2
        s_mov_b64 exec, -1""")
        self.pt("core")
        e(f"""s_lshr_b32 s10, s4, 4
        s_cmp_lg_u32 s10, s{S_PART}
        s_cbranch_scc1 L_FINDONE
        s_cmp_lg_u32 s{S_LW}, 0
        s_cbranch_scc1 L_FINDONE
        s_add_u32 s10, s{S_MBJ}, {MB_2}
        s_add_u32 s11, s10, 4096
        v_mov_b32 v{T}, 0x3f803f80
        v_perm_b32 v{PA+2}, v{T}, v{T}, v{SEL}
        v_perm_b32 v{PA+3}, v{T}, v{T}, v{SEL+1}""")
        for z in (0, 1, 4, 5): e(f"v_mov_b32 v{PA+z}, 0")
        def use(k, i):
            g = G + 32 * k + 4 * i
            e(f"v_mfma_f32_16x16x32_bf16 {vr(AC0,4)}, {vr(PA+2,4)}, {vr(g,4)}, {vr(AC0,4) if i else 0}")
            e(f"v_mfma_f32_16x16x32_bf16 {vr(AC1,4)}, {vr(PA,4)}, {vr(g,4)}, {vr(AC1,4) if i else 0}")
            if i == 0: e(f"v_max3_u32 v{T}, v{g}, v{g+1}, v{g+2}\nv_max_u32 v{T}, v{T}, v{g+3}")
            else: e(f"v_max3_u32 v{T}, v{T}, v{g}, v{g+1}\nv_max3_u32 v{T}, v{T}, v{g+2}, v{g+3}")
        self.poll_loop(8, lambda k, i: e(f"buffer_load_dwordx4 {vr(G+32*k+4*i,4)}, v{VL}, {srd(SRD_WS)}, s{10+(i>>2)} offen offset:{1024*(i&3)} sc1 ; c:LMB"),
                       use, lambda: e(f"v_cmp_eq_u32 vcc, -1, v{T}"), self.o["ps2"], "fr")
        self.pt("fp")
        for r in range(8): self.row_red("v_add_f32", AC0 + r, (8,))
        for r in range(4): e(f"v_cvt_pk_bf16_f32 v{U+r}, v{AC0+2*r}, v{AC0+2*r+1}")
        e(f"""s_bfe_u32 s10, s4, 0x10003
        s_lshl_b32 s10, s10, 11
        s_and_b32 s11, s4, 7
        s_lshl_b32 s11, s11, 7
        s_add_u32 s10, s10, s11
        s_lshl_b32 s11, s{S_PART}, 10
        s_add_u32 s10, s10, s11
        s_mov_b64 exec, 0xff
        buffer_store_dwordx4 {vr(U,4)}, v{VL}, {srd(SRD_E)}, s10 offen sc1
        s_cmp_lg_u32 s4, 16
        s_cbranch_scc1 L_FINDONE
        s_mov_b64 exec, 1
        v_mov_b32 v{T}, s{TAG}
        s_mov_b32 s10, {EPOCH}
        buffer_store_dword v{T}, off, {srd(SRD_WS)}, s10 sc1
        L_FINDONE:""")
        self.pt("fin")
        self.stamp_out(16)
        e("s_endpgm")

    def build(self):
        e = self.e
        e("""s_cmp_ge_u32 s2, 256
        s_cbranch_scc1 L_END
        s_load_dwordx16 s[16:31], s[0:1], 0
        s_load_dwordx8 s[32:39], s[0:1], 64
        s_load_dwordx4 s[40:43], s[0:1], 96
        v_lshrrev_b32 v1, 6, v0
        v_and_b32 v0, 63, v0
        v_readfirstlane_b32 s3, v1
        s_sub_u32 s4, s2, 128""")
        tests = {"P": "s_cmp_lt_u32 s2, 128\ns_cbranch_scc1 L_P", "Q": "s_cmp_ge_u32 s2, 192\ns_cbranch_scc1 L_Q",
                 "L": "s_cmp_ge_u32 s5, 64\ns_cbranch_scc0 L_AL", "C": "s_cmp_lt_u32 s5, 64\ns_cbranch_scc1 L_AC"}
        order = self.o["order"]
        for r in order[1:]:
            if r == "L": e("s_cmp_ge_u32 s3, 4\ns_cselect_b32 s5, s4, 64")
            if r == "C": e("s_cmp_lt_u32 s3, 4\ns_cselect_b32 s5, s4, 64")
            e(tests[r])
        fn = {"P": lambda: self.bside("P"), "Q": lambda: (self.bside("Q"), self.a_tail()), "L": self.a_loader, "C": self.a_compute}
        marks = {}
        for r in order:
            i0 = len(e.L); fn[r](); marks[r] = (i0, len(e.L))
        if self.o["pack"]:
            heads, bodies = [], []
            for r in order:
                seg = e.L[marks[r][0]:marks[r][1]]
                k = seg.index("; split")
                head = seg[:k]
                if self.o["hoist"] and "s_waitcnt lgkmcnt(0)" in head:
                    w = head.index("s_waitcnt lgkmcnt(0)")
                    f = next(i for i in range(w, len(head)) if head[i].startswith(("buffer_", "s_cbranch")))
                    cst = [l for l in head[w:f] if re.fullmatch(r"s_mov_b32 s\d+, 0x[0-9a-f]+", l)]
                    late = [l for l in head[w + 1:f] if l.startswith("s_load_dword")]
                    rest = [l for l in head[w:f] if l not in cst and l not in late]
                    head = head[:w] + cst + rest + head[f:] + late
                heads += head + [f"s_branch L_{r}_REST"]
                bodies += [f"L_{r}_REST:"] + seg[k + 1:]
            e.L = e.L[:marks[order[0]][0]] + heads + bodies
        e.L = [l for l in e.L if l != "; split"]
        e("L_END:\ns_endpgm")
        if "nobar" in self.x:
            i0 = e.L.index("L_P:"); i1 = e.L.index("L_AC:")
            e.L = e.L[:i0] + [l for l in e.L[i0:i1] if l != "s_barrier"] + e.L[i1:]
        if "nomath" in self.x:
            i0 = e.L.index("L_P:"); i1 = e.L.index("L_AC:")
            e.L = e.L[:i0] + [l for l in e.L[i0:i1] if not l.startswith(("v_mfma", "v_exp", "v_fma", "v_perm_", "v_add_f32", "v_mov_b32_dpp", "v_cvt", "v_max3"))] + e.L[i1:]
        if "noph1" in self.x:
            i0 = e.L.index("L_P:"); i1 = e.L.index("L_AC:")
            e.L = e.L[:i0] + [l for l in e.L[i0:i1] if not (l.startswith("buffer_load") and (srd(SRD_D) in l or srd(SRD_E) in l))] + e.L[i1:]
        for x in self.x:
            if x.startswith("c:"): e.L = [l for l in e.L if not l.endswith("; " + x)]
        for x in self.x:
            if x.startswith("m:"):
                tag, m = x[2:].split("=")
                e.L = [l.replace(" sc1", " " + m.replace("+", " ")) if l.endswith("; c:" + tag) else l for l in e.L]
            if x.startswith("allst="):
                m = x[6:].replace("+", " ")
                e.L = [l.replace(" sc1", " " + m if m else "") if l.startswith("buffer_store") else l for l in e.L]
        if "nost" in self.x:
            e.L = [l for l in e.L if not (l.startswith("buffer_store") and "sc1" in l)]
        if "nosc" in self.x:
            e.L = [l for l in e.L if not (l.startswith("buffer_load") and "sc1" in l)]
        if "noA" in self.x:
            for lab in ("L_AL:", "L_AC:"):
                i = e.L.index(lab); e.L.insert(i + 1, "s_endpgm")
        if "link" in self.x:
            e.L = [l.replace(", v1, s[48:51]", ", v2, s[48:51]") if l.startswith("buffer_load_dwordx4") and "lds" not in l else l for l in e.L]
        if self.o["wb"]: e.L = [l.replace(" sc1", "") if l.endswith("; c:AP") else l for l in e.L]
        body, npad = fix_hazards(e.L)
        out = [HEADER.rstrip(), "; @launch grid=(256,1,1) block=(512,1,1) lds=163840", DOC.strip(),
               '.amdgcn_target "amdgcn-amd-amdhsa--gfx950"', ".text", f".globl {NAME}_kernel"] + ([f".p2align {self.o['al']}"] if self.o["al"] else []) + [".p2align 8",
               f".type {NAME}_kernel,@function", f"{NAME}_kernel:"]
        if not self.stamps: body = [l.split(" ; c:")[0] for l in body]
        out += [("" if l.endswith(":") else "    ") + l for l in body]
        out += ['.section .rodata,"a"', ".p2align 6", f".amdhsa_kernel {NAME}_kernel",
                "  .amdhsa_next_free_vgpr 256", "  .amdhsa_next_free_sgpr 102", "  .amdhsa_accum_offset 256",
                "  .amdhsa_group_segment_fixed_size 0", "  .amdhsa_kernarg_size 112", "  .amdhsa_user_sgpr_count 2",
                "  .amdhsa_user_sgpr_kernarg_segment_ptr 1", "  .amdhsa_system_sgpr_workgroup_id_x 1",
                ".end_amdhsa_kernel"]
        return "\n".join(out) + "\n", npad

DOC = """
; Softmax uses the true maximum of every split; splits are merged with their maxima and sums.
; Hand-offs go through d_ws with write-through stores and L1-bypassing loads. Flags and tagged words carry
"""

PTS = {"P": "start,xq,st,qf,q,k,v,end", "Q": "start,fin,w,free,end,core,apf,ctx",
       "AC": "start,fin,qd,b1,b9,core,pv,bo", "AL": "start,bar0,bar3,iss4,dma,x,y,end"}

if __name__ == "__main__":
    ap = argparse.ArgumentParser()
    ap.add_argument("out"); ap.add_argument("--stamps", action="store_true")
    ap.add_argument("--pts", action="append", default=[]); ap.add_argument("--x", default="")
    for k, v in DEFAULTS.items(): ap.add_argument("--" + k, type=int, default=v)
    ap.add_argument("--order", default="LPQC"); DEFAULTS["order"] = 0
    a = ap.parse_args()
    pts = {}
    if a.stamps:
        pts = {k: v.split(",") for k, v in PTS.items()}
        for p in a.pts:
            r, l = p.split(":"); pts[r] = l.split(",")
    s, npad = Gen({k: getattr(a, k) for k in DEFAULTS}, pts, set(a.x.split(","))).build()
    open(a.out, "w").write(s)
    print("wrote", a.out, "lines", s.count("\n"), "pads", npad)
```
